```python
import torch

def _softmax(x, axis=-1):
    return torch.softmax(x, dim=axis)

def _gelu(x):
    return torch.nn.functional.gelu(x, approximate='tanh')

def _silu(x):
    return torch.nn.functional.silu(x)

def _sigmoid(x):
    return torch.sigmoid(x)

def _layernorm(x, axis=-1, eps=1e-05):
    m = x.mean(dim=axis, keepdim=True)
    v = x.var(dim=axis, keepdim=True, unbiased=False)
    return (x - m) / torch.sqrt(v + eps)

def _scatter_add(tgt, idx, src, axis=0):
    return tgt.clone().index_add_(axis, idx, src)

def _segment_sum(src, seg, n):
    out = torch.zeros((n,) + src.shape[1:], dtype=src.dtype)
    return out.index_add_(0, seg, src)

def _pad(x, pw):
    flat = tuple((v for pair in reversed(pw) for v in pair))
    return torch.nn.functional.pad(x, flat)
kernel_name = 'adaLN_cond__ssm_conv_h3__mixer_gmlp__prompt'

def setup_inputs():

    _w = lambda a: (lambda t: t.to(torch.bfloat16) if t.is_floating_point() else t)(torch.as_tensor(a))

    def _A_setup():
        B, S, D = (1, 2048, 576)
        ks = 4
        return {'q': _w((lambda *s: torch.randn(*s, dtype=torch.bfloat16) * 0.05)(B, S, D)), 'k': _w((lambda *s: torch.randn(*s, dtype=torch.bfloat16) * 0.8)(B, S, D)), 'v': _w((lambda *s: torch.randn(*s, dtype=torch.bfloat16) * 0.8)(B, S, D)), 'shift_k': _w((lambda *s: torch.randn(*s, dtype=torch.bfloat16) * 0.8)(D, ks) * 0.5), 'ssm_k': _w((lambda *s: torch.randn(*s, dtype=torch.bfloat16) * 0.8)(D, S) * (1.0 / S ** 0.5)), 'ssm_D': _w((lambda *s: torch.randn(*s, dtype=torch.bfloat16) * 0.8)(D))}
    _A_in = _A_setup()

    def _B_setup():
        B, S, D, F = (1, 2048, 576, 4608)
        Fh = F // 2
        return {'x': _w((lambda *s: torch.randn(*s, dtype=torch.bfloat16) * 0.05)(B, S, D)), 'w_in': _w((lambda *s: torch.randn(*s, dtype=torch.bfloat16) * 0.4)(D, 2 * Fh)), 'w_sp': _w(0.01 * (lambda *s: torch.randn(*s, dtype=torch.bfloat16) * 0.4)(S, S)), 'b_sp': _w(1.0 + 0.01 * (lambda *s: torch.randn(*s, dtype=torch.bfloat16) * 0.05)(S)), 'w_out': _w((lambda *s: torch.randn(*s, dtype=torch.bfloat16) * 0.05)(Fh, D))}
    _B_in = _B_setup()
    return {'A_q': _A_in['q'], 'A_k': _A_in['k'], 'A_v': _A_in['v'], 'A_shift_k': _A_in['shift_k'], 'A_ssm_k': _A_in['ssm_k'], 'A_ssm_D': _A_in['ssm_D'], 'B_x': _B_in['x'], 'B_w_in': _B_in['w_in'], 'B_w_sp': _B_in['w_sp'], 'B_b_sp': _B_in['b_sp'], 'B_w_out': _B_in['w_out'], 'c': _w((lambda *s: torch.randn(*s, dtype=torch.bfloat16) * 0.1)(1, 576) * 8.0), 'w_mod': _w((lambda *s: torch.randn(*s, dtype=torch.bfloat16) * 0.1)(576, 6 * 576) * 576 ** (-0.5) * 8.0)}

def reference(A_q, A_k, A_v, A_shift_k, A_ssm_k, A_ssm_D, B_x, B_w_in, B_w_sp, B_b_sp, B_w_out, c, w_mod):

    def _A_ref(q, k, v, shift_k, ssm_k, ssm_D):
        B, S, D = q.shape
        ks = shift_k.shape[-1]
        k_pad = _pad(k, ((0, 0), (ks - 1, 0), (0, 0)))
        k_shift = torch.zeros_like(k)
        for t in range(ks):
            k_shift = k_shift + k_pad[:, t:t + S, :] * shift_k[:, ks - 1 - t][None, None, :]
        kv = k_shift * v
        L = 2 * S
        kv_pad = _pad(kv, ((0, 0), (0, S), (0, 0)))
        kf_pad = _pad(ssm_k, ((0, 0), (0, S)))
        kv_f = (lambda x, axes=(-2, -1): torch.fft.rfft2(x.float(), dim=axes))(kv_pad[:, None, :, :], axes=(1, 2))
        kf_f = (lambda x, axes=(-2, -1): torch.fft.rfft2(x.float(), dim=axes))(kf_pad[:, None, :], axes=(1, 2))
        kf_f = (lambda x, *d: x.permute(*d))(kf_f, 1, 2, 0)
        y_f = kv_f * kf_f[None, :, :, :]
        y = (lambda x, s, axes=(-2, -1): torch.fft.irfft2(x, s=s, dim=axes).to(torch.bfloat16))(y_f, (1, L), axes=(1, 2))[:, 0, :S, :]
        y = y + kv * ssm_D[None, None, :]
        return q * y

    def _B_ref(x, w_in, w_sp, b_sp, w_out):
        B, S, D = x.shape
        F = w_in.shape[-1]
        Fh = F // 2
        z = _gelu(torch.einsum('bsd,df->bsf', x, w_in))
        z1 = z[..., :Fh].clone()
        z2 = _layernorm(z[..., Fh:], axis=-1)
        g = torch.einsum('ts,bsf->btf', w_sp, z2) + b_sp[None, :, None]
        return torch.einsum('bsf,fd->bsd', z1 * g, w_out)
    x = A_q
    mod = (_silu(c) @ w_mod).reshape(c.shape[0], 6, 1, -1)
    sa, ca, ga, sb, cb, gb = (mod[:, 0].clone(), mod[:, 1].clone(), mod[:, 2].clone(), mod[:, 3].clone(), mod[:, 4].clone(), mod[:, 5].clone())
    h = _layernorm(x, axis=-1) * (1 + ca) + sa
    x = x + ga * _A_ref(h, A_k, A_v, A_shift_k, A_ssm_k, A_ssm_D)
    h = _layernorm(x, axis=-1) * (1 + cb) + sb
    x = x + gb * _B_ref(h, B_w_in, B_w_sp, B_b_sp, B_w_out)
    return x
```

```python
S, D, F, FH = 2048, 576, 4608, 2304
UR    = 0x0000000
ST1   = 0x0480000
MOD   = 0x0488000
MODH  = 0x048C000
UV1   = 0x0490000
UV2   = 0x0495000
ST2   = 0x04A0000
X1F   = 0x0500000
WINF  = 0x0800000
WOUTF = 0x0E00000
WSPF  = 0x1100000
Z1F   = 0x1900000
Z2F   = 0x2200000
PF    = 0x2B00000
WS_SIZE = 0x10000000
KA = dict(q=0, k=8, v=16, shk=24, ssmk=32, ssmD=40, bx=48, win=56, wsp=64, bsp=72, wout=80, c=88, wmod=96, out=104, dbg=112, ws=120)
SZ = dict(q=S*D*2, k=S*D*2, v=S*D*2, shk=D*8, ssmk=D*S*2, ssmD=D*2, win=D*F*2, wsp=S*S*2, bsp=S*2, wout=FH*D*2, c=D*2, wmod=D*6*D*2, out=S*D*2, ws=WS_SIZE)

class Asm:
    def __init__(self):
        self.L = []
    def __call__(self, s):
        for line in s.split("\n"):
            line = line.strip()
            if not line: continue
            self.L.append(line if line.endswith(":") or line.startswith(".") else "  " + line)
    def raw(self, s): self.L.append(s)
    def begin(self, name):
        self.raw(f".text\n.globl {name}\n.p2align 8\n.type {name},@function\n{name}:")
    def desc(self, name, vgpr, accum, sgpr=96):
        self.raw(f""".section .rodata,"a"
.p2align 6
.amdhsa_kernel {name}
  .amdhsa_next_free_vgpr {vgpr}
  .amdhsa_next_free_sgpr {sgpr}
  .amdhsa_accum_offset {accum}
  .amdhsa_group_segment_fixed_size 0
  .amdhsa_kernarg_size 128
  .amdhsa_user_sgpr_count 2
  .amdhsa_user_sgpr_kernarg_segment_ptr 1
  .amdhsa_system_sgpr_workgroup_id_x 1
.end_amdhsa_kernel""")
    def load_args(self):
        self("s_load_dwordx16 s[64:79], s[0:1], 0\ns_load_dwordx16 s[80:95], s[0:1], 64")
    def ptr(self, name):
        return 64 + KA[name] // 4
    def srd(self, d, name, size=None, off=None):
        p = self.ptr(name)
        size = SZ[name] if size is None else size
        if off is None:
            self(f"s_mov_b32 s{d}, s{p}\ns_and_b32 s{d+1}, s{p+1}, 0xffff")
        else:
            self(f"s_add_u32 s{d}, s{p}, {off}\ns_addc_u32 s{d+1}, s{p+1}, 0\ns_and_b32 s{d+1}, s{d+1}, 0xffff")
        self(f"s_mov_b32 s{d+2}, {size}\ns_mov_b32 s{d+3}, 0x20000")

def vr(a, n=1, p="v"):
    return f"{p}{a}" if n == 1 else f"{p}[{a}:{a+n-1}]"
def ar(a, n=1): return vr(a, n, "a")
def sr(a, n=1): return vr(a, n, "s")

def interleave(main, fill, start=0, per=None):
    out = []
    n = len(main) - start
    k = 0
    for i, m in enumerate(main):
        out.append(m)
        if i >= start:
            if per is None:
                tgt = (len(fill) * (i - start + 1) + n - 1) // n
            else:
                tgt = min(len(fill), per * (i - start + 1))
            while k < tgt:
                out.append(fill[k]); k += 1
    out += fill[k:]
    return out

import struct
def float_hex(x): return hex(struct.unpack("<I", struct.pack("<f", x))[0])
```

```python
from gen_common import *
G_LDS = 147456
MF = "v_mfma_f32_16x16x32_bf16"
C0 = -2*0.7978845608028654*1.4426950408889634
C1 = C0*0.044715

class VM:
    def __init__(self, text, tag): self.text, self.tag = text, tag
class WAIT:
    def __init__(self, tags, lgkm=False, key=None): self.tags, self.lgkm, self.key = tags, lgkm, key

def resolve(seq):
    issued = []; res = {}
    pos = {}
    for it in seq:
        if isinstance(it, VM):
            pos[it.tag] = len(issued); issued.append(it.tag)
        elif isinstance(it, WAIT):
            idx = [pos[t] for t in it.tags if t in pos]
            assert len(idx) == len(it.tags), ("missing", [t for t in it.tags if t not in pos])
            n = len(issued) - 1 - max(idx) if idx else 63
            it.n = min(n, 63)
            if it.key is not None: res[it.key] = min(res.get(it.key, 63), it.n)
    return res
def emit(a, seq, keyed=None):
    for it in seq:
        if isinstance(it, VM): a(it.text)
        elif isinstance(it, WAIT):
            n = keyed[it.key] if (keyed is not None and it.key is not None) else it.n
            s = []
            if n < 63: s.append(f"vmcnt({n})")
            if it.lgkm: s.append("lgkmcnt(0)")
            if s: a("s_waitcnt " + " ".join(s))
        else: a(it)

def tile_ids(a):
    a("""
      v_lshrrev_b32 v1, 6, v0
      v_and_b32 v2, 63, v0
      v_readfirstlane_b32 s3, v1
      v_lshlrev_b32 v1, 4, v2
      v_and_b32 v3, 15, v2
      v_lshrrev_b32 v12, 4, v2
      s_and_b32 s6, s2, 7
      s_lshr_b32 s7, s2, 3
      s_lshr_b32 s4, s6, 1
      s_lshl_b32 s4, s4, 2
      s_and_b32 s5, s7, 3
      s_add_u32 s4, s4, s5                ; mt
      s_and_b32 s5, s6, 1
      s_lshl_b32 s5, s5, 3
      s_lshr_b32 s7, s7, 2
      s_add_u32 s5, s5, s7                ; nt
      s_lshl_b32 s6, s4, 2
      s_add_u32 s6, s6, s3
      s_mul_i32 s7, s3, 9216
    """)

P0 = {3: (0, 3), 0: (3, 2), 1: (5, 2), 2: (7, 2)}
def dma_group(k, srd, soff, ntiles=None):
    T = (k + 1) // 4 + 3
    if ntiles is not None and T >= ntiles: return []
    p0, cnt = P0[k % 4]
    out = [f"s_add_u32 m0, s7, {(T % 4)*36864 + p0*1024}", "s_nop 0"]
    for i in range(cnt):
        out.append(VM(f"buffer_load_dwordx4 v1, {srd}, {soff} offen offset:{1024*i} lds", ("B", T, p0+i)))
    inc = cnt*1024 if k % 4 != 2 else 36864 - 7168
    out.append(f"s_add_u32 {soff}, {soff}, {inc}")
    return out
def dma_tile(T, srd, soff):
    out = []
    for k in (3, 0, 1, 2):
        p0, cnt = P0[k]
        out += [f"s_add_u32 m0, s7, {(T % 4)*36864 + p0*1024}", "s_nop 0"]
        for i in range(cnt):
            out.append(VM(f"buffer_load_dwordx4 v1, {srd}, {soff} offen offset:{1024*i} lds", ("B", T, p0+i)))
        out.append(f"s_add_u32 {soff}, {soff}, {cnt*1024 if k != 2 else 36864-7168}")
    return out
def btags(T): return [("B", T, p) for p in range(9)]
def b_reads(k, bbase, slotv):
    T = k // 4
    return [f"ds_read_b128 a[{bbase + (k%2)*36 + 4*j}:{bbase + (k%2)*36 + 4*j + 3}], v{slotv + T % 4} offset:{(k%4)*9216 + j*1024}" for j in range(9)]

def gelu_pairs(xs, ts):
    o = []
    P = lambda r: f"v[{r}:{r+1}]"
    for x, t in zip(xs, ts): o.append(f"v_pk_mul_f32 {P(t)}, {P(x)}, {P(x)}")
    for x, t in zip(xs, ts): o.append(f"v_pk_fma_f32 {P(t)}, {P(t)}, s[40:41], v[14:15]")
    for x, t in zip(xs, ts): o.append(f"v_pk_mul_f32 {P(t)}, {P(t)}, {P(x)}")
    for x, t in zip(xs, ts): o += [f"v_exp_f32 v{t}, v{t}", f"v_exp_f32 v{t+1}, v{t+1}"]
    for x, t in zip(xs, ts): o.append(f"v_pk_add_f32 {P(t)}, {P(t)}, 1.0 op_sel_hi:[1,0]")
    for x, t in zip(xs, ts): o += [f"v_rcp_f32 v{t}, v{t}", f"v_rcp_f32 v{t+1}, v{t+1}"]
    for x, t in zip(xs, ts): o.append(f"v_pk_mul_f32 {P(x)}, {P(x)}, {P(t)}")
    return o
def ror_reduce(regs, final=None):
    o = ["s_nop 1"]
    for rot in (8, 4, 2, 1):
        for i, r in enumerate(regs):
            d = final[i] if (final and rot == 1) else r
            o.append(f"v_add_f32_dpp v{d}, v{r}, v{r} row_ror:{rot} row_mask:0xf bank_mask:0xf")
    return o
def ln_finish(s1, s2, n, cnt, t):
    o = []
    inv = float_hex(1.0/n)
    for x in s1: o.append(f"v_mul_f32 v{x}, {inv}, v{x}")
    for y in s2: o.append(f"v_mul_f32 v{y}, {inv}, v{y}")
    for x, y in zip(s1, s2): o.append(f"v_fma_f32 v{y}, -v{x}, v{x}, v{y}")
    for y in s2: o.append(f"v_max_f32 v{y}, 0, v{y}")
    for y in s2: o.append(f"v_add_f32 v{y}, {float_hex(1e-5)}, v{y}")
    for y in s2: o.append(f"v_rsq_f32 v{y}, v{y}")
    o.append("s_nop 0")
    for x, y in zip(s1, s2): o.append(f"v_mul_f32 v{x}, -v{x}, v{y}")
    return o

def gen_g1(a):
    a.begin("g1_kernel")
    a("s_cmp_ge_u32 s2, 256\ns_cbranch_scc1 G1_END")
    a.load_args()
    tile_ids(a)
    a("s_waitcnt lgkmcnt(0)")
    a.srd(8, "ws")
    SL = 252
    a(f"""
      s_mul_i32 s20, s5, {36*9216}
      s_add_u32 s20, s20, s7
      s_add_u32 s20, s20, {WINF}
      s_mul_i32 s21, s6, 36864
      s_add_u32 s21, s21, {X1F}           ; A soffset
      v_lshlrev_b32 v13, 3, v2            ; lane*8
      v_add_u32 v8, 18432, v13
      v_mov_b32 v{SL}, v1
      v_add_u32 v{SL+1}, 36864, v1
      v_add_u32 v{SL+2}, {2*36864}, v1
      v_add_u32 v{SL+3}, {3*36864}, v1
      v_mov_b32 v4, 0x3f803f80
      v_mov_b32 v5, 0x3f803f80
      v_mov_b32 v6, 0x3f803f80
      v_mov_b32 v7, 0x3f803f80
      s_mov_b32 s40, {float_hex(C1)}
      s_mov_b32 s41, {float_hex(C1)}
      v_mov_b32 v14, {float_hex(C0)}
      v_mov_b32 v15, {float_hex(C0)}
      s_mul_i32 s22, s5, {144*8}
      s_add_u32 s22, s22, {UV2}
      v_lshlrev_b32 v9, 3, v3             ; n*8
    """)
    AB, BB = 0, 144
    ACC2, ACC1, ST = 16, 88, 160
    def a_loads(ks):
        if ks >= 18: return []
        o = []
        for t in range(2):
            for h in range(2):
                r = AB + (ks*2+t)*4 + 2*h
                o.append(VM(f"buffer_load_dwordx2 a[{r}:{r+1}], {['v13','v8'][t]}, s[8:11], s21 offen offset:{(ks%4)*1024 + h*512}", ("A", ks, t, h)))
        if ks % 4 == 3: o.append("s_add_u32 s21, s21, 4096")
        return o
    def atags(ks): return [("A", ks, t, h) for t in range(2) for h in range(2)]
    seq = []
    seq += dma_tile(0, "s[8:11]", "s20")
    for ks in range(0, 4): seq += a_loads(ks)
    seq += dma_tile(1, "s[8:11]", "s20")
    for ks in range(4, 6): seq += a_loads(ks)
    seq += dma_tile(2, "s[8:11]", "s20")
    seq += dma_group(-1, "s[8:11]", "s20", 9)
    seq += [WAIT(btags(0)), "s_barrier"]
    seq += b_reads(0, BB, SL)
    def kstep(kk, extra=[]):
        ks = kk % 18; ps = kk // 18
        o = []
        need = atags(ks) if ps == 0 else []
        bar = (kk % 4 == 3 and kk < 35)
        if bar: need = need + btags((kk+1)//4)
        o.append(WAIT(need, lgkm=True))
        if bar: o.append("s_barrier")
        m = []
        for j in range(9):
            for t in range(2):
                A = f"a[{AB+(ks*2+t)*4}:{AB+(ks*2+t)*4+3}]"
                B = f"a[{BB+(kk%2)*36+4*j}:{BB+(kk%2)*36+4*j+3}]"
                r = (ACC2 if ps == 0 else ACC1) + (j*2+t)*4
                C = "0" if ks == 0 else f"v[{r}:{r+3}]"
                m.append(f"{MF} v[{r}:{r+3}], {A}, {B}, {C}" if ps == 0 else f"{MF} v[{r}:{r+3}], {B}, {A}, {C}")
        if ps == 0:
            for t in range(2):
                A = f"a[{AB+(ks*2+t)*4}:{AB+(ks*2+t)*4+3}]"
                r = ST + 4*t
                m.append(f"{MF} v[{r}:{r+3}], {A}, v[4:7], {'0' if ks == 0 else f'v[{r}:{r+3}]'}")
                r = ST + 8 + 4*t
                m.append(f"{MF} v[{r}:{r+3}], {A}, {A}, {'0' if ks == 0 else f'v[{r}:{r+3}]'}")
        f = (b_reads(kk+1, BB, SL) if kk < 35 else []) + dma_group(kk, "s[8:11]", "s20", 9) + (a_loads(ks+6) if ps == 0 else []) + extra
        o += interleave(m, f)
        return o
    UV = 176
    uv2 = [VM(f"buffer_load_dwordx2 v[{UV+2*j}:{UV+2*j+1}], v9, s[8:11], s22 offen offset:{128*j}", ("UV2", j)) for j in range(9)]
    for kk in range(18):
        seq += kstep(kk, uv2[3*(kk-12):3*(kk-12)+3] if 12 <= kk < 15 else [])
    seq += ["v_mul_u32_u24 v10, 80, v12", "s_nop 7"]
    for t in range(2):
        for r in range(4):
            seq.append(f"ds_bpermute_b32 v{ST+8+4*t+r}, v10, v{ST+8+4*t+r} offset:{4*r}")
    seq.append("s_waitcnt lgkmcnt(0)")
    s1 = [ST+i for i in range(8)]; s2 = [ST+8+i for i in range(8)]
    seq += ln_finish(s1, s2, 576, 8, None)
    ZS = 244
    seq += ["v_and_b32 v10, 3, v3", "v_lshrrev_b32 v11, 2, v3", "v_lshl_add_u32 v11, v11, 4, v3", "v_lshlrev_b32 v11, 2, v11"]
    for t in range(2):
        seq += [f"v_mov_b32 v{ZS+2*t}, v{ST+8+4*t}", f"v_mov_b32 v{ZS+2*t+1}, v{ST+4*t}"]
    for r in range(1, 4):
        seq += [f"v_cmp_eq_u32 vcc, {r}, v10", "s_nop 1"]
        for t in range(2):
            seq += [f"v_cndmask_b32 v{ZS+2*t}, v{ZS+2*t}, v{ST+8+4*t+r}, vcc", f"v_cndmask_b32 v{ZS+2*t+1}, v{ZS+2*t+1}, v{ST+4*t+r}, vcc"]
    for i in range(4): seq.append(f"ds_bpermute_b32 v{ZS+i}, v11, v{ZS+i}")
    seq.append(WAIT([("UV2", j) for j in range(9)]))
    Z1S, Z2S, TMP, GR = 196, 204, 212, 220
    P = lambda r: f"v[{r}:{r+1}]"
    for j in range(9):
        xs = [ACC2 + j*8 + 2*i for i in range(4)]; ts = [TMP + 2*i for i in range(4)]
        uv = P(UV + 2*j)
        for i in range(4): seq.append(f"v_pk_fma_f32 {P(ts[i])}, {P(ST+2*i)}, {uv}, {uv} op_sel:[0,0,1] op_sel_hi:[1,0,1]")
        for i in range(4): seq.append(f"v_pk_fma_f32 {P(xs[i])}, {P(xs[i])}, {P(ST+8+2*i)}, {P(ts[i])}")
        seq += gelu_pairs(xs, ts)
        for i in range(4):
            if j == 0: seq += [f"v_pk_mul_f32 {P(Z2S+2*i)}, {P(xs[i])}, {P(xs[i])}"]
            elif j == 1: seq += [f"v_pk_add_f32 {P(Z1S+2*i)}, {P(xs[i])}, {P(ACC2+2*i)}", f"v_pk_fma_f32 {P(Z2S+2*i)}, {P(xs[i])}, {P(xs[i])}, {P(Z2S+2*i)}"]
            else: seq += [f"v_pk_add_f32 {P(Z1S+2*i)}, {P(xs[i])}, {P(Z1S+2*i)}", f"v_pk_fma_f32 {P(Z2S+2*i)}, {P(xs[i])}, {P(xs[i])}, {P(Z2S+2*i)}"]
    seq += ror_reduce([Z1S+i for i in range(8)] + [Z2S+i for i in range(8)], [GR+2*i for i in range(8)] + [GR+2*i+1 for i in range(8)])
    for i in range(8): seq.append(f"v_or_b32 v{GR+2*i+1}, 1, v{GR+2*i+1}")
    seq += [f"s_lshl_b32 s23, s6, 12", f"s_add_u32 s23, s23, {ST2}", "s_lshl_b32 s24, s5, 8", "s_add_u32 s24, s24, s23",
            "v_lshlrev_b32 v10, 6, v12", "v_lshl_add_u32 v11, v3, 8, v10",
            "v_cmp_eq_u32 vcc, 0, v3", "s_and_saveexec_b64 s[30:31], vcc"]
    for i in range(4): seq.append(VM(f"buffer_store_dwordx4 v[{GR+4*i}:{GR+4*i+3}], v10, s[8:11], s24 offen offset:{16*i} sc1", ("GS", i)))
    seq += ["s_mov_b64 exec, s[30:31]",
            f"s_mul_i32 s22, s5, {144*4}", f"s_add_u32 s22, s22, {UV1}", "s_add_u32 s25, s22, 9216", "v_lshlrev_b32 v9, 4, v12", "s_nop 4"]
    U1 = 160
    uv1 = []
    for j in range(9):
        uv1.append(VM(f"buffer_load_dwordx4 v[{U1+8*j}:{U1+8*j+3}], v9, s[8:11], s22 offen offset:{64*j}", ("U1", j)))
        uv1.append(VM(f"buffer_load_dwordx4 v[{U1+8*j+4}:{U1+8*j+7}], v9, s[8:11], s25 offen offset:{64*j}", ("V1", j)))
    for kk in range(18, 36):
        seq += kstep(kk, uv1[3*(kk-26):3*(kk-26)+3] if 26 <= kk < 32 else [])
    TM1 = 232
    seq += [f"s_lshl_b32 s26, s4, 4", "s_add_u32 s26, s26, s5", "s_lshl_b32 s26, s26, 2", "s_add_u32 s26, s26, s3",
            "s_mul_i32 s26, s26, 9216", f"s_add_u32 s26, s26, {Z1F}", "v_add_u32 v8, 4096, v1", "v_add_u32 v9, 8192, v1", "s_nop 3"]
    seq.append(WAIT([("V1", 8)]))
    for j in range(9):
        xs = [ACC1 + j*8 + 2*i for i in range(4)]; ts = [TM1 + 2*i for i in range(4)]
        for i in range(4):
            zs = P(ZS + 2*(i//2))
            seq.append(f"v_pk_fma_f32 {P(ts[i])}, {P(U1+8*j+2*(i%2))}, {zs}, {P(U1+8*j+4+2*(i%2))} op_sel:[0,1,0] op_sel_hi:[1,1,1]")
        for i in range(4):
            zs = P(ZS + 2*(i//2))
            seq.append(f"v_pk_fma_f32 {P(xs[i])}, {P(xs[i])}, {zs}, {P(ts[i])} op_sel_hi:[1,0,1]")
        seq += gelu_pairs(xs, ts)
        for i in range(4): seq.append(f"v_cvt_pk_bf16_f32 v{U1+8*j+i}, v{xs[i]}, v{xs[i]+1}")
        seq.append(VM(f"buffer_store_dwordx4 v[{U1+8*j}:{U1+8*j+3}], {['v1','v8','v9'][j//4]}, s[8:11], s26 offen offset:{1024*(j%4)}", ("Z1", j)))
    resolve(seq); emit(a, seq)
    PL = 88
    a("s_mov_b32 s27, 0\nG1_POLL:")
    for i in range(4): a(f"buffer_load_dwordx4 v[{PL+4*i}:{PL+4*i+3}], v11, s[8:11], s23 offen offset:{16*i} sc1")
    a("s_waitcnt vmcnt(0)")
    a(f"v_min_u32 v10, v{PL+1}, v{PL+3}")
    for i in range(2, 8): a(f"v_min_u32 v10, v10, v{PL+2*i+1}")
    a("""
      v_cmp_eq_u32 vcc, 0, v10
      s_add_u32 s27, s27, 1
      s_cmp_ge_u32 s27, 0x100000
      s_cbranch_scc1 G1_GO
      s_nop 2
      s_cbranch_vccnz G1_POLL
    G1_GO:
    """)
    R1, R2 = 104, 112
    for x in ror_reduce([PL+i for i in range(16)], [(R1 if i % 2 == 0 else R2) + i//2 for i in range(16)]): a(x)
    for x in ln_finish([R1+i for i in range(8)], [R2+i for i in range(8)], FH, 8, None): a(x)
    a(f"""
      s_mul_i32 s26, s5, {64*9216}
      s_mul_i32 s27, s6, 9216
      s_add_u32 s26, s26, s27
      s_add_u32 s26, s26, {Z2F}
    """)
    for j in range(9):
        xs = [ACC2 + j*8 + 2*i for i in range(4)]
        for i in range(4): a(f"v_pk_fma_f32 {P(xs[i])}, {P(xs[i])}, {P(R2+2*i)}, {P(R1+2*i)}")
        o = 120 + 4*j
        for i in range(4): a(f"v_cvt_pk_bf16_f32 v{o+i}, v{xs[i]}, v{xs[i]+1}")
        a(f"buffer_store_dwordx4 v[{o}:{o+3}], {['v1','v8','v9'][j//4]}, s[8:11], s26 offen offset:{1024*(j%4)}")
    a("G1_END:\ns_endpgm")
    a.desc("g1_kernel", 256+216, 256)

def gen_g2(a):
    a.begin("g2_kernel")
    a("s_cmp_ge_u32 s2, 256\ns_cbranch_scc1 G2_END")
    a.load_args()
    tile_ids(a)
    a(f"""
      s_mul_i32 s20, s5, {64*9216}
      s_add_u32 s20, s20, {Z2F}
      s_lshl_b32 s21, s6, 17
      s_add_u32 s21, s21, {WSPF}
      s_waitcnt lgkmcnt(0)
    """)
    a.srd(8, "ws"); a.srd(12, "ws", 64*9216, "s20"); a.srd(16, "ws", 131072, "s21"); a.srd(24, "bsp")
    SL = 8
    a(f"""
      s_mov_b32 s20, s7
      s_mov_b32 s21, 0
      v_mov_b32 v{SL}, v1
      v_add_u32 v{SL+1}, 36864, v1
      v_add_u32 v{SL+2}, {2*36864}, v1
      v_add_u32 v{SL+3}, {3*36864}, v1
      v_lshrrev_b32 v4, 2, v3
      v_lshlrev_b32 v4, 3, v4
      v_and_b32 v5, 3, v3
      v_add_u32 v4, v4, v5
      v_lshlrev_b32 v4, 1, v4
      s_lshl_b32 s22, s6, 6
      v_add_u32 v13, 4096, v1
      v_add_u32 v14, 8192, v1
      s_lshl_b32 s28, s4, 4
      s_add_u32 s28, s28, s5
      s_lshl_b32 s28, s28, 2
      s_add_u32 s28, s28, s3
      s_mul_i32 s28, s28, 9216
      s_add_u32 s28, s28, {Z1F}
    """)
    BB, AB, ACC, Z1 = 0, 72, 16, 96
    def a_loads(k):
        r = AB + (k % 8)*8
        return [VM(f"buffer_load_dwordx4 a[{r}:{r+3}], v1, s[16:19], s21 offen", ("A", k, 0)),
                VM(f"buffer_load_dwordx4 a[{r+4}:{r+7}], v1, s[16:19], s21 offen offset:1024", ("A", k, 1)),
                "s_add_u32 s21, s21, 2048"]
    pro = []
    pro += dma_tile(0, "s[12:15]", "s20")
    for k in range(0, 4): pro += a_loads(k)
    pro += dma_tile(1, "s[12:15]", "s20")
    for k in range(4, 7): pro += a_loads(k)
    pro += dma_tile(2, "s[12:15]", "s20")
    pro += dma_group(-1, "s[12:15]", "s20")
    pro += [VM("buffer_load_ushort v6, v4, s[24:27], s22 offen", "b0"), VM("buffer_load_ushort v7, v4, s[24:27], s22 offen offset:8", "b1")]
    for j in range(9):
        pro.append(VM(f"buffer_load_dwordx4 v[{Z1+4*j}:{Z1+4*j+3}], {['v1','v13','v14'][j//4]}, s[8:11], s28 offen offset:{1024*(j%4)}", ("Z1", j)))
    for i in range(72): pro.append(f"v_mov_b32 v{ACC+i}, 0")
    pro += [WAIT(btags(0)), "s_barrier"]
    pro += b_reads(0, BB, SL)
    def kstep(k):
        o = []
        need = [("A", k, 0), ("A", k, 1)]
        if k % 4 == 3: need += btags((k+1)//4)
        o.append(WAIT(need, lgkm=True, key=k % 16))
        if k % 4 == 3: o.append("s_barrier")
        m = []
        for j in range(9):
            for t in range(2):
                r = ACC + (j*2+t)*4
                m.append(f"{MF} v[{r}:{r+3}], a[{BB+(k%2)*36+4*j}:{BB+(k%2)*36+4*j+3}], a[{AB+(k%8)*8+4*t}:{AB+(k%8)*8+4*t+3}], v[{r}:{r+3}]")
        f = b_reads(k+1, BB, SL) + dma_group(k, "s[12:15]", "s20") + a_loads(k+7)
        return o + interleave(m, f)
    steps = [kstep(k) for k in range(64)]
    keyed = resolve(pro + [x for s_ in steps for x in s_])
    emit(a, pro)
    a("s_mov_b32 s23, 0\nG2_LOOP:")
    for k in range(16): emit(a, steps[k], keyed)
    a("s_add_u32 s23, s23, 1\ns_cmp_lt_u32 s23, 4\ns_cbranch_scc1 G2_LOOP")
    a(f"""
      v_lshlrev_b32 v4, 16, v6
      v_lshlrev_b32 v6, 16, v7
      s_lshr_b32 s22, s5, 1
      s_mul_i32 s22, s22, 9216
      s_mul_i32 s23, s6, {2*73728}
      s_add_u32 s22, s22, s23
      s_add_u32 s22, s22, {PF}            ; + tau*73728
      s_and_b32 s23, s5, 1
      s_lshl_b32 s29, s23, 12
      s_add_u32 s29, s29, s22
      s_add_u32 s30, s29, 73728
      s_lshl_b32 s23, s23, 3
      s_add_u32 s31, s22, s23
      s_add_u32 s31, s31, 8192
      s_add_u32 s32, s31, 73728
    """)
    P = lambda r: f"v[{r}:{r+1}]"
    T = 136; O = 160
    for j in range(9):
        for t in range(2):
            b = P(4 if t == 0 else 6)
            for h in range(2):
                x = ACC + (j*2+t)*4 + 2*h; z = Z1 + 4*j + 2*t + h; tt = T + 2*((2*t+h) % 4)
                o = O + ((j//2)*2 + t)*4 + (j%2)*2 + h
                a(f"""
                  v_lshlrev_b32 v{tt}, 16, v{z}
                  v_and_b32 v{tt+1}, 0xffff0000, v{z}
                  v_pk_add_f32 {P(x)}, {P(x)}, {b} op_sel_hi:[1,0]
                  v_pk_mul_f32 {P(x)}, {P(x)}, {P(tt)}
                  v_cvt_pk_bf16_f32 v{o}, v{x}, v{x+1}
                """)
        if j % 2 == 1:
            for t in range(2):
                o = O + ((j//2)*2 + t)*4
                a(f"buffer_store_dwordx4 v[{o}:{o+3}], v1, s[8:11], s{29+t} offen offset:{1024*(j//2)}")
    for t in range(2):
        o = O + (8 + t)*4
        a(f"buffer_store_dwordx2 v[{o}:{o+1}], v1, s[8:11], s{31+t} offen")
    a("G2_END:\ns_endpgm")
    a.desc("g2_kernel", 256+136, 256)

def gen_g3(a):
    a.begin("g3_kernel")
    a("s_cmp_ge_u32 s2, 256\ns_cbranch_scc1 G3_END")
    a.load_args()
    a(f"""
      v_lshrrev_b32 v1, 6, v0
      v_and_b32 v2, 63, v0
      v_readfirstlane_b32 s3, v1
      v_lshlrev_b32 v1, 4, v2
      v_and_b32 v3, 15, v2
      v_lshrrev_b32 v12, 4, v2
      s_and_b32 s4, s2, 7
      s_lshl_b32 s4, s4, 2
      s_lshr_b32 s5, s2, 3
      s_and_b32 s6, s5, 3
      s_add_u32 s4, s4, s6                ; mb
      s_lshr_b32 s5, s5, 2                ; nb
      s_mul_i32 s5, s5, 9
      s_lshr_b32 s5, s5, 1                ; n0
      s_mul_i32 s20, s4, {4*73728}
      s_mul_i32 s6, s3, {18*1024}
      s_add_u32 s20, s20, s6
      s_add_u32 s20, s20, {PF}            ; P soffset
      s_mul_i32 s21, s3, {18*36864}
      s_lshl_b32 s6, s5, 10
      s_add_u32 s21, s21, s6
      s_add_u32 s21, s21, {WOUTF}         ; W soffset
      v_add_u32 v8, 4096, v1
    """)
    for u in range(4):
        a(f"s_add_u32 s6, s3, {u}\ns_and_b32 s6, s6, 3\ns_mul_i32 s7, s6, 73728\nv_add_u32 v{4+u}, s7, v1")
        if u > 0: a(f"s_mul_i32 s7, s6, 15360\ns_add_u32 s7, s7, {(u-1)*5120}\nv_add_u32 v{12+u}, s7, v1")
    a("s_waitcnt lgkmcnt(0)")
    a.srd(8, "ws"); a.srd(12, "out")
    ACC = 16; DEP = 6
    def loads(k):
        if k >= 18: return []
        r = (k % DEP)*36
        o = []
        for j in range(5):
            o.append(VM(f"buffer_load_dwordx4 a[{r+16+4*j}:{r+19+4*j}], {'v1' if j < 4 else 'v8'}, s[8:11], s21 offen offset:{1024*(j%4)}", ("W", k, j)))
        for u in range(4):
            o.append(VM(f"buffer_load_dwordx4 a[{r+4*u}:{r+4*u+3}], v{4+u}, s[8:11], s20 offen offset:{1024*(k%4)}", ("P", k, u)))
        o.append("s_add_u32 s21, s21, 36864")
        if k % 4 == 3: o.append("s_add_u32 s20, s20, 4096")
        return o
    seq = []
    for k in range(DEP-1): seq += loads(k)
    ep = [f"s_lshl_b32 s22, s4, 2", "s_add_u32 s22, s22, s3", "s_mul_i32 s23, s22, 18432", "s_lshl_b32 s24, s5, 9", "s_add_u32 s23, s23, s24", f"s_add_u32 s23, s23, {X1F}",
          "v_lshlrev_b32 v9, 3, v2", "s_lshl_b32 s24, s5, 6", f"s_add_u32 s24, s24, {MOD + 5*576*4}", "v_lshlrev_b32 v10, 4, v12"]
    for j in range(5):
        ep.append(VM(f"buffer_load_dwordx2 v[{96+2*j}:{97+2*j}], v9, s[8:11], s23 offen offset:{512*j}", ("X", j)))
        ep.append(VM(f"buffer_load_dwordx4 v[{108+4*j}:{111+4*j}], v10, s[8:11], s24 offen offset:{64*j}", ("G", j)))
    for k in range(18):
        seq.append(WAIT([("P", k, 3)]))
        r = (k % DEP)*36
        m = []
        for u in range(4):
            for j in range(5):
                c = ACC + (u*5+j)*4
                m.append(f"{MF} v[{c}:{c+3}], a[{r+16+4*j}:{r+19+4*j}], a[{r+4*u}:{r+4*u+3}], {'0' if k == 0 else f'v[{c}:{c+3}]'}")
        seq += interleave(m, loads(k+DEP-1) + (ep if k == 13 else []))
    seq += ["s_mul_i32 s7, s3, 15360", "v_add_u32 v11, s7, v1", "s_nop 6"]
    for u in range(1, 4):
        for j in range(5):
            c = ACC + (u*5+j)*4
            seq.append(f"ds_write_b128 v{12+u}, v[{c}:{c+3}] offset:{1024*j}")
    seq += ["v_lshrrev_b32 v4, 2, v3", "v_lshlrev_b32 v4, 3, v4", "v_and_b32 v5, 3, v3", "v_add_u32 v4, v4, v5", "v_mul_u32_u24 v4, 1152, v4",
            "v_lshl_add_u32 v4, v12, 3, v4", "s_lshr_b32 s25, s22, 1", f"s_mul_i32 s25, s25, {32*1152}", "s_and_b32 s26, s22, 1", f"s_mul_i32 s26, s26, {4*1152}",
            "s_add_u32 s25, s25, s26", "s_lshl_b32 s26, s5, 5", "s_add_u32 s25, s25, s26",
            "s_waitcnt lgkmcnt(0)", "s_barrier"]
    for i in range(15):
        c = ACC + 20 + 4*i
        seq.append(f"ds_read_b128 v[{c}:{c+3}], v11 offset:{1024*i}")
    seq += [WAIT([("G", 4)], lgkm=True)]
    P = lambda r: f"v[{r}:{r+1}]"
    for j in range(5):
        for h in range(2):
            x = ACC + 4*j + 2*h
            seq += [f"v_pk_add_f32 {P(x)}, {P(x)}, {P(x+20)}", f"v_pk_add_f32 {P(x+40)}, {P(x+40)}, {P(x+60)}",
                    f"v_lshlrev_b32 v{x+20}, 16, v{96+2*j+h}", f"v_and_b32 v{x+21}, 0xffff0000, v{96+2*j+h}",
                    f"v_pk_add_f32 {P(x)}, {P(x)}, {P(x+40)}",
                    f"v_pk_fma_f32 {P(x)}, {P(x)}, {P(108+4*j+2*h)}, {P(x+20)}",
                    f"v_cvt_pk_bf16_f32 v{96+2*j+h}, v{x}, v{x+1}"]
        seq.append(VM(f"buffer_store_dwordx2 v[{96+2*j}:{97+2*j}], v4, s[12:15], s25 offen offset:{32*j}", ("O", j)))
    resolve(seq); emit(a, seq)
    a("G3_END:\ns_endpgm")
    a.desc("g3_kernel", 128+216, 128)

G_LAUNCH = {"g1": f"; @launch kernel=g1_kernel grid=(256,1,1) block=(256,1,1) lds={G_LDS}",
            "g2": f"; @launch kernel=g2_kernel grid=(256,1,1) block=(256,1,1) lds={G_LDS}",
            "g3": f"; @launch kernel=g3_kernel grid=(256,1,1) block=(256,1,1) lds=61440"}
G_GENS = {"g1": gen_g1, "g2": gen_g2, "g3": gen_g3}
```

```python
from gen_common import *
K1_MOD, K1_KV, K1_ST = 108, 288, 256
K1_GRID = K1_MOD + K1_KV + K1_ST

def gen_k1(a):
    a.begin("k1_kernel")
    a(f"s_cmp_ge_u32 s2, {K1_GRID}\ns_cbranch_scc1 K1_END")
    a.load_args()
    a(f"s_cmp_lt_u32 s2, {K1_MOD}\ns_cbranch_scc1 K1_MODR")
    a(f"s_cmp_lt_u32 s2, {K1_MOD+K1_KV}\ns_cbranch_scc1 K1_KVR")
    a(f"s_sub_u32 s3, s2, {K1_MOD+K1_KV}")
    a("""
      v_lshrrev_b32 v1, 5, v0
      v_and_b32 v2, 31, v0
      s_lshl_b32 s4, s3, 3
      v_add_u32 v1, s4, v1                ; row
      v_mul_u32_u24 v3, 1152, v1
      v_lshl_add_u32 v3, v2, 2, v3
      s_waitcnt lgkmcnt(0)
    """)
    a.srd(8, "q"); a.srd(12, "ws")
    for i in range(9):
        a(f"buffer_load_dword v{8+i}, v3, s[8:11], 0 offen offset:{128*i}")
    a(f"""
      v_mov_b32 v4, 0
      v_lshlrev_b32 v5, 2, v0
      s_lshl_b32 s5, s3, 10
      s_add_u32 s5, s5, {ST2}
      buffer_store_dword v4, v5, s[12:15], s5 offen
      s_waitcnt vmcnt(1)
    """)
    for i in range(9):
        a(f"v_lshlrev_b32 v{20+2*i}, 16, v{8+i}\nv_and_b32 v{21+2*i}, 0xffff0000, v{8+i}")
    def red32(r, t):
        a(f"""
          s_nop 1
          v_add_f32_dpp {r}, {r}, {r} quad_perm:[1,0,3,2] row_mask:0xf bank_mask:0xf
          s_nop 1
          v_add_f32_dpp {r}, {r}, {r} quad_perm:[2,3,0,1] row_mask:0xf bank_mask:0xf
          s_nop 1
          v_add_f32_dpp {r}, {r}, {r} row_half_mirror row_mask:0xf bank_mask:0xf
          s_nop 1
          v_add_f32_dpp {r}, {r}, {r} row_mirror row_mask:0xf bank_mask:0xf
          s_nop 0
          v_mov_b32 {t}, {r}
          s_nop 1
          v_permlane16_swap_b32 {r}, {t}
          s_nop 1
          v_add_f32 {r}, {r}, {t}
        """)
    a("v_pk_add_f32 v[6:7], v[20:21], v[22:23]")
    for i in range(2, 9): a(f"v_pk_add_f32 v[6:7], v[6:7], v[{20+2*i}:{21+2*i}]")
    a("v_add_f32 v6, v6, v7")
    red32("v6", "v7")
    a(f"v_mul_f32 v6, {float_hex(1.0/576)}, v6      ; mean")
    for i in range(9): a(f"v_pk_add_f32 v[{20+2*i}:{21+2*i}], v[{20+2*i}:{21+2*i}], v[6:7] op_sel_hi:[1,0] neg_lo:[0,1] neg_hi:[0,1]")
    a("v_pk_mul_f32 v[40:41], v[20:21], v[20:21]")
    for i in range(1, 9): a(f"v_pk_fma_f32 v[40:41], v[{20+2*i}:{21+2*i}], v[{20+2*i}:{21+2*i}], v[40:41]")
    a("v_add_f32 v40, v40, v41")
    red32("v40", "v41")
    a(f"""
      v_mov_b32 v41, {float_hex(1e-5)}
      v_fmac_f32 v41, {float_hex(1.0/576)}, v40
      v_rsq_f32 v40, v41
      s_nop 0
      v_mul_f32 v41, v6, v40
      v_sub_f32 v41, 0, v41               ; -mean*rstd
      v_lshlrev_b32 v5, 3, v1
      v_cmp_eq_u32 vcc, 0, v2
      s_and_saveexec_b64 s[20:21], vcc
      s_mov_b32 s5, {ST1}
      buffer_store_dwordx2 v[40:41], v5, s[12:15], s5 offen
      s_endpgm
    """)
    a("K1_KVR:")
    a(f"""
      s_sub_u32 s3, s2, {K1_MOD}
      s_mul_i32 s4, s3, 7282
      s_lshr_b32 s4, s4, 16               ; rb
      s_mul_i32 s5, s4, 9
      s_sub_u32 s5, s3, s5                ; cb
      v_lshrrev_b32 v1, 5, v0             ; rg 0..7
      v_and_b32 v2, 31, v0
      s_lshl_b32 s6, s4, 6
      v_lshl_add_u32 v1, v1, 3, s6        ; s0
      s_lshl_b32 s7, s5, 7
      v_lshl_add_u32 v3, v2, 2, s7
      v_mul_u32_u24 v4, 1152, v1
      v_add_u32 v4, v4, v3
      v_subrev_u32 v5, 4608, v4
      v_add_u32 v6, 4608, v4
      v_lshlrev_b32 v7, 2, v3
      s_waitcnt lgkmcnt(0)
    """)
    a.srd(8, "k"); a.srd(12, "v"); a.srd(16, "shk"); a.srd(20, "ws"); a.srd(24, "ssmk")
    a("buffer_load_dwordx4 v[12:15], v7, s[16:19], 0 offen")
    for i in range(12):
        a(f"buffer_load_dword v{16+i}, {['v5','v4','v6'][i//4]}, s[8:11], 0 offen offset:{1152*(i%4)}")
    for i in range(3, 12):
        a(f"buffer_load_dword v{28+i-3}, {['v5','v4','v6'][i//4]}, s[12:15], 0 offen offset:{1152*(i%4)}")
    a("""
      v_lshlrev_b32 v8, 4, v0
      s_lshl_b32 s28, s3, 13
      buffer_load_dwordx4 v[100:103], v8, s[24:27], s28 offen
      s_add_u32 s28, s28, 4096
      buffer_load_dwordx4 v[104:107], v8, s[24:27], s28 offen
    """)
    a("""
      v_lshlrev_b32 v9, 12, v3
      v_sub_u32 v10, 2040, v1
      v_lshl_add_u32 v9, v10, 1, v9
      v_add_u32 v10, 8192, v9
      s_waitcnt vmcnt(2)
    """)
    for j in range(4):
        op = "v_lshlrev_b32 {d}, 16, {s}" if j % 2 == 0 else "v_and_b32 {d}, 0xffff0000, {s}"
        a(op.format(d=f"v{40+2*j}", s=f"v{12+j//2}"))
        a(op.format(d=f"v{41+2*j}", s=f"v{14+j//2}"))
    for i in range(12):
        a(f"v_lshlrev_b32 v{48+2*i}, 16, v{16+i}\nv_and_b32 v{49+2*i}, 0xffff0000, v{16+i}")
    for i in range(9):
        a(f"v_lshlrev_b32 v{72+2*i}, 16, v{28+i}\nv_and_b32 v{73+2*i}, 0xffff0000, v{28+i}")
    for i in range(9):
        d = f"v[{16+2*i}:{17+2*i}]"
        kk = lambda j: f"v[{48+2*(i+3-j)}:{49+2*(i+3-j)}]"
        a(f"v_pk_mul_f32 {d}, {kk(3)}, v[46:47]")
        for j in (2, 1, 0):
            a(f"v_pk_fma_f32 {d}, {kk(j)}, v[{40+2*j}:{41+2*j}], {d}")
        a(f"v_pk_mul_f32 {d}, {d}, v[{72+2*i}:{73+2*i}]")
    o = 48
    for ch in range(2):
        for p in range(2):
            top = 7 + p
            for dd in range(4):
                a(f"v_cvt_pk_bf16_f32 v{o+dd}, v{16+2*(top-2*dd)+ch}, v{16+2*(top-2*dd-1)+ch}")
            a(f"s_mov_b32 s29, {UR + 4096*p}")
            a(f"buffer_store_dwordx4 v[{o}:{o+3}], {['v9','v10'][ch]}, s[20:23], s29 offen")
            o += 4
    a("s_endpgm")
    a("K1_MODR:")
    a("""
      v_and_b32 v1, 3, v0                 ; chunk
      v_lshrrev_b32 v2, 2, v0
      v_mul_u32_u24 v3, 6912, v2
      v_lshl_add_u32 v3, v1, 4, v3
      s_lshl_b32 s4, s2, 6
      v_lshlrev_b32 v4, 1, v2
      s_waitcnt lgkmcnt(0)
    """)
    a.srd(8, "wmod"); a.srd(12, "c"); a.srd(16, "ws")
    for i in range(9):
        a(f"buffer_load_ushort v{8+i}, v4, s[12:15], 0 offen offset:{128*i}")
    for i in range(9):
        a(f"buffer_load_dwordx4 v[{20+4*i}:{23+4*i}], v3, s[8:11], s4 offen")
        if i < 8: a(f"s_add_u32 s4, s4, {64*6912}")
    a("s_waitcnt vmcnt(9)")
    for i in range(9): a(f"v_lshlrev_b32 v{8+i}, 16, v{8+i}")
    for i in range(9): a(f"v_mul_f32 v{60+i}, {float_hex(-1.4426950408889634)}, v{8+i}")
    for i in range(9): a(f"v_exp_f32 v{60+i}, v{60+i}")
    for i in range(9): a(f"v_add_f32 v{60+i}, 1.0, v{60+i}")
    for i in range(9): a(f"v_rcp_f32 v{60+i}, v{60+i}")
    for i in range(9): a(f"v_mul_f32 v{8+i}, v{8+i}, v{60+i}")
    for i in range(9): a(f"v_cvt_pk_bf16_f32 v{8+i}, v{8+i}, v{8+i}")
    for i in range(9): a(f"v_lshlrev_b32 v{8+i}, 16, v{8+i}")
    for i in range(9):
        a(f"s_waitcnt vmcnt({8-i})")
        for dd in range(4):
            src = f"v{20+4*i+dd}"
            a(f"v_lshlrev_b32 v60, 16, {src}\nv_and_b32 v61, 0xffff0000, {src}")
            if i == 0:
                a(f"v_mul_f32 v{70+2*dd}, v8, v60\nv_mul_f32 v{71+2*dd}, v8, v61")
            else:
                a(f"v_fmac_f32 v{70+2*dd}, v{8+i}, v60\nv_fmac_f32 v{71+2*dd}, v{8+i}, v61")
    a("s_nop 1")
    for rot in (8, 4):
        for j in range(8): a(f"v_add_f32_dpp v{70+j}, v{70+j}, v{70+j} row_ror:{rot} row_mask:0xf bank_mask:0xf")
    for sw in ("16", "32"):
        for j in range(8): a(f"v_mov_b32 v{80+j}, v{70+j}")
        a("s_nop 1")
        for j in range(8): a(f"v_permlane{sw}_swap_b32 v{70+j}, v{80+j}")
        a("s_nop 1")
        for j in range(8): a(f"v_add_f32 v{70+j}, v{70+j}, v{80+j}")
    a("""
      v_lshrrev_b32 v5, 6, v0
      v_lshlrev_b32 v5, 7, v5
      v_lshl_add_u32 v5, v1, 5, v5
      v_and_b32 v6, 63, v0
      v_cmp_gt_u32 vcc, 4, v6
      s_and_saveexec_b64 s[20:21], vcc
      ds_write_b128 v5, v[70:73]
      ds_write_b128 v5, v[74:77] offset:16
      s_mov_b64 exec, s[20:21]
      s_waitcnt lgkmcnt(0)
      s_barrier
      v_lshlrev_b32 v5, 2, v0
      v_lshlrev_b32 v6, 1, v0
      v_cmp_gt_u32 vcc, 32, v0
      s_and_saveexec_b64 s[20:21], vcc
      s_cbranch_execz K1_END
      ds_read_b32 v8, v5
      ds_read_b32 v9, v5 offset:128
      ds_read_b32 v10, v5 offset:256
      ds_read_b32 v11, v5 offset:384
      s_mul_i32 s4, s2, 3641              ; /18
      s_lshr_b32 s4, s4, 16               ; section
      s_cmp_eq_u32 s4, 1
      s_cselect_b32 s5, 1.0, 0
      s_cmp_eq_u32 s4, 4
      s_cselect_b32 s5, 1.0, s5
      s_waitcnt lgkmcnt(0)
      v_add_f32 v8, v8, v9
      v_add_f32 v10, v10, v11
      v_add_f32 v8, v8, v10
      v_cvt_pk_bf16_f32 v8, v8, v8
      v_lshlrev_b32 v8, 16, v8
      v_add_f32 v8, s5, v8
      v_cvt_pk_bf16_f32 v9, v8, v8
      v_lshlrev_b32 v8, 16, v9
    """)
    a(f"""
      s_lshl_b32 s6, s2, 7
      s_add_u32 s6, s6, {MOD}
      buffer_store_dword v8, v5, s[16:19], s6 offen
      s_lshl_b32 s6, s2, 6
      s_add_u32 s6, s6, {MODH}
      buffer_store_short v9, v6, s[16:19], s6 offen
    K1_END:
      s_endpgm
    """)
    a.desc("k1_kernel", 108, 108)
```

```python
from gen_common import *
K2_GRID = 256
CH_LDS = 25792; KCS = 4160; URO = 16640; URS = 4576; YO = 4*CH_LDS; YS = 9216
K2_LDS = YO + 4*YS

def gen_k2(a):
    a.begin("k2_kernel")
    a(f"s_cmp_ge_u32 s2, {K2_GRID}\ns_cbranch_scc1 K2_END")
    a.load_args()
    a("""
      v_lshrrev_b32 v1, 6, v0
      v_and_b32 v2, 63, v0                ; lane
      v_readfirstlane_b32 s3, v1          ; wave
      v_lshlrev_b32 v3, 4, v2             ; lane*16
      v_and_b32 v4, 15, v2                ; l&15
      v_lshrrev_b32 v5, 4, v2             ; g
      s_waitcnt lgkmcnt(0)
    """)
    a.srd(8, "ws")
    a("s_cmp_ge_u32 s3, 4\ns_cbranch_scc1 K2_WSP")
    a("s_cmp_ge_u32 s2, 252\ns_cbranch_scc1 K2_END")
    a("s_cmp_ge_u32 s2, 144\ns_cbranch_scc1 K2_REPACK")
    a(f"""
      s_and_b32 s4, s2, 7
      s_mul_i32 s4, s4, 18
      s_lshr_b32 s5, s2, 3
      s_add_u32 s4, s4, s5                ; cg
      s_lshl_b32 s5, s4, 2
      s_add_u32 s5, s5, s3                ; channel
      s_mul_i32 s6, s3, {CH_LDS}
    """)
    a.srd(12, "ssmk"); a.srd(16, "q")
    p = a.ptr("ssmD"); w = a.ptr("ws")
    a(f"""
      s_lshl_b32 s7, s4, 3
      s_load_dwordx2 s[20:21], s[{p}:{p+1}], s7
      s_lshl_b32 s7, s4, 4
      s_add_u32 s22, s7, {MOD}
      s_load_dwordx4 s[24:27], s[{w}:{w+1}], s22       ; sa
      s_add_u32 s22, s7, {MOD+576*4}
      s_load_dwordx4 s[28:31], s[{w}:{w+1}], s22       ; 1+ca
      s_add_u32 s22, s7, {MOD+2*576*4}
      s_load_dwordx4 s[32:35], s[{w}:{w+1}], s22       ; ga
      s_lshl_b32 s36, s5, 12
      s_lshl_b32 s37, s5, 13
      s_add_u32 s37, s37, {UR}
    """)
    for p_ in range(2):
        a(f"s_add_u32 m0, s6, {URO + p_*URS}")
        if p_ == 1: a("s_add_u32 s37, s37, 4096")
        else: a("s_nop 0")
        for i in range(4):
            a(f"buffer_load_dwordx4 v3, s[8:11], s37 offen offset:{1024*i} lds")
    for t in range(4):
        a(f"s_add_u32 m0, s6, {t*KCS + 60 - 4*t}\ns_nop 0")
        for i in range(4):
            a(f"buffer_load_dwordx4 v3, s[12:15], s36 offen offset:{1024*i} lds")
    a(f"""
      v_mul_u32_u24 v6, 1152, v0
      s_lshl_b32 s38, s4, 3
      v_lshlrev_b32 v7, 3, v0
      s_mov_b32 s39, {ST1}
    """)
    for i in range(8):
        a(f"buffer_load_dwordx2 v[{176+2*i}:{177+2*i}], v6, s[16:19], s38 offen")
        if i < 7: a(f"s_add_u32 s38, s38, {256*1152}")
    for i in range(8):
        a(f"buffer_load_dwordx2 v[{192+2*i}:{193+2*i}], v7, s[8:11], s39 offen offset:{2048*(i%2)}")
        if i % 2 == 1 and i < 7: a("s_add_u32 s39, s39, 4096")
    a(f"""
      v_mov_b32 v8, 0
      v_mov_b32 v9, 0
      v_mov_b32 v10, 0
      v_mov_b32 v11, 0
      v_mul_u32_u24 v12, {KCS}, v5
      v_lshl_add_u32 v12, v4, 2, v12
      v_add_u32 v12, s6, v12
      v_add_u32 v13, v4, v5
      v_lshrrev_b32 v14, 5, v2
      v_mul_u32_u24 v14, {URS}, v14
      v_and_b32 v15, 31, v2
      v_lshl_add_u32 v14, v15, 4, v14
      v_add_u32 v14, s6, v14
      v_cmp_gt_u32 vcc, 15, v13
      s_and_saveexec_b64 s[40:41], vcc
      ds_write_b32 v12, v8
      s_mov_b64 exec, s[40:41]
      v_cmp_gt_u32 vcc, 28, v15
      s_and_saveexec_b64 s[40:41], vcc
      ds_write_b128 v14, v[8:11] offset:{URO+4096}
      s_mov_b64 exec, s[40:41]
    """)
    a(f"""
      v_and_b32 v12, 3, v4
      v_mul_u32_u24 v12, {KCS}, v12
      v_lshrrev_b32 v13, 2, v4
      v_add_u32 v13, v13, v5
      v_lshl_add_u32 v12, v13, 4, v12
      v_add_u32 v12, s6, v12
      v_lshrrev_b32 v13, 3, v4            ; p
      v_mul_u32_u24 v13, {URS}, v13
      v_lshl_add_u32 v13, v5, 4, v13
      v_and_b32 v14, 7, v4                ; a'
      v_lshlrev_b32 v14, 6, v14
      v_sub_u32 v13, v13, v14
      s_add_u32 s7, s6, {URO + 448}
      v_add_u32 v13, s7, v13
    """)
    a("""
      s_waitcnt lgkmcnt(0)
      s_cmp_ge_u32 s3, 2
      s_cselect_b32 s7, s21, s20
      s_and_b32 s22, s3, 1
      s_lshl_b32 s22, s22, 4
      s_lshr_b32 s7, s7, s22
      s_and_b32 s7, s7, 0xffff
      v_mov_b32 v15, s7
      v_lshl_add_u32 v14, v5, 2, v4       ; m + 4g
    """)
    for dd in range(4):
        a(f"v_cmp_eq_u32 vcc, {15-dd}, v14\ns_nop 1\nv_cndmask_b32 v{8+dd}, 0, v15, vcc")
    ACC = 16; FR = [48, 112]
    def reads(buf, r):
        out = []
        for i in range(8):
            out.append(f"ds_read_b128 v[{FR[buf]+32+4*i}:{FR[buf]+35+4*i}], v13 offset:{64*r + 512*(7-i)}")
            out.append(f"ds_read_b128 v[{FR[buf]+4*i}:{FR[buf]+3+4*i}], v12 offset:{64*r + 512*i}")
        return out
    def mfmas(buf):
        out = []
        for p_ in range(8):
            for q_ in range(8 - p_):
                j = p_ + q_
                out.append(f"v_mfma_f32_16x16x32_bf16 v[{ACC+4*j}:{ACC+4*j+3}], v[{FR[buf]+4*p_}:{FR[buf]+4*p_+3}], v[{FR[buf]+32+4*q_}:{FR[buf]+35+4*q_}], v[{ACC+4*j}:{ACC+4*j+3}]")
        return out
    a("s_waitcnt vmcnt(16)")
    for x in reads(0, 0): a(x)
    a("s_waitcnt lgkmcnt(0)")
    for q_ in range(8):
        a(f"v_mfma_f32_16x16x32_bf16 v[{ACC+4*q_}:{ACC+4*q_+3}], v[8:11], v[{FR[0]+32+4*q_}:{FR[0]+35+4*q_}], 0")
    a("s_mov_b32 s7, 0\nK2_CLOOP:")
    for x in interleave(mfmas(0), reads(1, 1), per=1): a(x)
    a("s_waitcnt lgkmcnt(0)")
    for x in interleave(mfmas(1), reads(0, 2), per=1): a(x)
    a("""
      v_add_u32 v12, 128, v12
      v_add_u32 v13, 128, v13
      s_add_u32 s7, s7, 1
      s_cmp_lt_u32 s7, 4
      s_waitcnt lgkmcnt(0)
      s_cbranch_scc1 K2_CLOOP
    """)
    a(f"""
      v_and_b32 v14, 7, v4
      v_mul_u32_u24 v14, 144, v14
      v_lshl_add_u32 v14, v5, 5, v14
      v_lshrrev_b32 v15, 3, v4
      v_lshl_add_u32 v14, v15, 4, v14
      s_mul_i32 s7, s3, {YS}
      s_add_u32 s7, s7, {YO}
      v_add_u32 v14, s7, v14
      s_nop 4
    """)
    for j in range(8):
        a(f"ds_write_b128 v14, v[{ACC+4*j}:{ACC+4*j+3}] offset:{j*8*144}")
    a(f"""
      v_lshrrev_b32 v12, 5, v0
      v_mul_u32_u24 v13, 144, v12
      v_and_b32 v14, 24, v0
      v_and_b32 v15, 1, v0
      v_lshl_add_u32 v14, v15, 2, v14
      v_bfe_u32 v15, v0, 1, 2
      v_add_u32 v14, v14, v15
      v_lshl_add_u32 v13, v14, 2, v13
      v_add_u32 v13, {YO}, v13
      v_mul_u32_u24 v12, 36864, v12
      v_bfe_u32 v14, v0, 2, 1
      v_mul_u32_u24 v14, 18432, v14
      v_add_u32 v12, v12, v14
      v_bfe_u32 v14, v0, 3, 2
      v_lshl_add_u32 v12, v14, 5, v12
      v_and_b32 v14, 3, v0
      v_lshl_add_u32 v12, v14, 3, v12
      s_lshl_b32 s7, s4, 7
      s_add_u32 s7, s7, {X1F}
    """)
    for c in range(4): a(f"v_mov_b32 v{8+c}, s{24+c}")
    a("s_waitcnt lgkmcnt(0)\ns_barrier")
    for half in range(2):
        for i in range(4*half, 4*half+4):
            for c in range(4):
                a(f"ds_read_b32 v{48+4*i+c}, v13 offset:{c*YS + i*8*144}")
        if half == 0: a("s_waitcnt lgkmcnt(0)")
    a("s_waitcnt vmcnt(0)")
    for i in range(8):
        if i == 4: a("s_waitcnt lgkmcnt(0)")
        q0, q1 = 176+2*i, 177+2*i
        st = f"v[{192+2*i}:{193+2*i}]"
        t = 96 + 8*(i%2)
        a(f"""
          v_lshlrev_b32 v{t}, 16, v{q0}
          v_and_b32 v{t+1}, 0xffff0000, v{q0}
          v_lshlrev_b32 v{t+2}, 16, v{q1}
          v_and_b32 v{t+3}, 0xffff0000, v{q1}
          v_pk_fma_f32 v[{t+4}:{t+5}], v[{t}:{t+1}], {st}, {st} op_sel:[0,0,1] op_sel_hi:[1,0,1]
          v_pk_fma_f32 v[{t+6}:{t+7}], v[{t+2}:{t+3}], {st}, {st} op_sel:[0,0,1] op_sel_hi:[1,0,1]
          v_pk_fma_f32 v[{t+4}:{t+5}], v[{t+4}:{t+5}], s[28:29], v[8:9]
          v_pk_fma_f32 v[{t+6}:{t+7}], v[{t+6}:{t+7}], s[30:31], v[10:11]
          v_pk_mul_f32 v[{t+4}:{t+5}], v[{t+4}:{t+5}], v[{48+4*i}:{49+4*i}]
          v_pk_mul_f32 v[{t+6}:{t+7}], v[{t+6}:{t+7}], v[{50+4*i}:{51+4*i}]
          v_pk_fma_f32 v[{t+4}:{t+5}], v[{t+4}:{t+5}], s[32:33], v[{t}:{t+1}]
          v_pk_fma_f32 v[{t+6}:{t+7}], v[{t+6}:{t+7}], s[34:35], v[{t+2}:{t+3}]
          v_cvt_pk_bf16_f32 v{q0}, v{t+4}, v{t+5}
          v_cvt_pk_bf16_f32 v{q1}, v{t+6}, v{t+7}
          buffer_store_dwordx2 v[{q0}:{q1}], v12, s[8:11], s7 offen
        """)
        if i < 7: a(f"s_add_u32 s7, s7, {8*36864}")
    a("s_endpgm")

    a("K2_WSP:")
    a.srd(12, "wsp")
    a(f"""
      s_lshr_b32 s4, s2, 2                ; blk
      s_and_b32 s5, s2, 3
      s_lshl_b32 s5, s5, 2
      s_add_u32 s5, s5, s3
      s_sub_u32 s5, s5, 4                 ; ks/4
      v_lshrrev_b32 v6, 2, v4
      v_lshlrev_b32 v6, 3, v6
      v_and_b32 v7, 3, v4
      v_add_u32 v6, v6, v7
      v_lshlrev_b32 v6, 12, v6
      v_lshl_add_u32 v6, v5, 4, v6        ; + g*16
      v_add_u32 v7, 16384, v6             ; tau=1
      s_lshl_b32 s6, s4, 17               ; blk*32*4096
      s_lshl_b32 s7, s5, 8
      s_add_u32 s7, s7, s6
      s_lshl_b32 s16, s5, 13
      s_add_u32 s16, s16, s6
      s_add_u32 s16, s16, {WSPF}
      v_add_u32 v8, 4096, v3
    """)
    for kk in range(4):
        for t in range(2):
            r = 16 + (kk*2+t)*4
            a(f"buffer_load_dwordx4 v[{r}:{r+3}], {['v6','v7'][t]}, s[12:15], s7 offen offset:{64*kk}")
    for i in range(8):
        r = 16 + 4*i
        a(f"s_waitcnt vmcnt(7)")
        a(f"buffer_store_dwordx4 v[{r}:{r+3}], {['v3','v8'][i//4]}, s[8:11], s16 offen offset:{1024*(i%4)}")
    a("s_endpgm")

    a("K2_REPACK:")
    a("""
      v_lshrrev_b32 v6, 3, v2
      v_and_b32 v7, 7, v2
      v_and_b32 v8, 6, v6                 ; ((row>>1)&3)<<1
      v_xor_b32 v7, v7, v8
      v_lshlrev_b32 v7, 4, v7             ; chunk*16
      v_lshrrev_b32 v9, 2, v2
      v_lshlrev_b32 v9, 7, v9
      v_and_b32 v10, 3, v6
      v_xor_b32 v10, s3, v10
      v_lshl_add_u32 v9, v10, 5, v9
      v_and_b32 v10, 3, v2
      v_lshl_add_u32 v9, v10, 3, v9
      s_mul_i32 s6, s3, 18432
      s_cmp_ge_u32 s2, 216
      s_cbranch_scc1 K2_WOUT
    """)
    a.srd(12, "win")
    TB = 73728
    a(f"""
      s_sub_u32 s4, s2, 144               ; unit
      v_mul_u32_u24 v11, 9216, v6
      v_add_u32 v11, v11, v7
      s_mul_i32 s7, s3, {144*9216}
      s_lshl_b32 s5, s4, 7
      s_add_u32 s7, s7, s5
      s_lshl_b32 s16, s3, 10
      s_add_u32 s17, s16, {MOD + 4*576*4}
      s_add_u32 s16, s16, {TB}
      s_cmp_eq_u32 s3, 3
      s_cselect_b32 s17, {MODH + 3*576*2}, s17
      s_mov_b32 m0, s16
      s_nop 0
      buffer_load_dwordx4 v3, s[8:11], s17 offen lds
      s_cbranch_scc0 K2_WIN_T
      buffer_load_dwordx4 v3, s[8:11], s17 offen offset:1024 lds
    K2_WIN_T:
    """)
    for i in range(18):
        a(f"s_add_u32 m0, s6, {1024*i}\ns_nop 0")
        a(f"buffer_load_dwordx4 v11, s[12:15], s7 offen lds")
        if i < 17: a(f"s_add_u32 s7, s7, {8*9216}")
    a(f"""
      s_lshl_b32 s16, s4, 2
      s_add_u32 s16, s16, s3              ; fc
      s_cmp_ge_u32 s16, 144
      s_cselect_b32 s17, 144, 0
      s_cselect_b32 s18, 0, {18*9216}
      s_cselect_b32 s23, 1, 0             ; is z2
      s_sub_u32 s16, s16, s17             ; fcl
      s_mul_i32 s19, s16, 7282
      s_lshr_b32 s19, s19, 16             ; nt
      s_mul_i32 s20, s19, 9
      s_sub_u32 s20, s16, s20             ; j
      s_mul_i32 s19, s19, {36*9216}
      s_lshl_b32 s20, s20, 10
      s_add_u32 s19, s19, s20
      s_add_u32 s19, s19, s18
      s_add_u32 s19, s19, {WINF}
      v_lshlrev_b32 v12, 4, v5
      v_add_u32 v12, {TB}, v12
      v_lshlrev_b32 v13, 3, v5
      v_add_u32 v13, {TB+3072}, v13
      v_mov_b32 v14, 0                    ; u
      v_mov_b32 v15, 0                    ; v
      s_mov_b32 s21, 0x3f803f80
      s_mov_b32 s22, 0
      s_waitcnt vmcnt(0)
      s_barrier
    K2_WIN_L:
      ds_read_b64_tr_b16 v[16:17], v9
      ds_read_b64_tr_b16 v[18:19], v9 offset:2048
      ds_read_b128 v[20:23], v12
      ds_read_b128 v[24:27], v12 offset:64
      ds_read_b64 v[28:29], v13
      ds_read_b64 v[30:31], v13 offset:32
      v_add_u32 v9, 4096, v9
      v_add_u32 v12, 128, v12
      v_add_u32 v13, 64, v13
      s_waitcnt lgkmcnt(0)
    """)
    for dd in range(4):
        a(f"v_lshlrev_b32 v{32+2*dd}, 16, v{16+dd}\nv_and_b32 v{33+2*dd}, 0xffff0000, v{16+dd}")
    for dd in range(4):
        a(f"v_dot2c_f32_bf16 v15, v{16+dd}, v{28+dd}")
    for dd in range(4):
        a(f"v_pk_mul_f32 v[{32+2*dd}:{33+2*dd}], v[{32+2*dd}:{33+2*dd}], v[{20+2*dd}:{21+2*dd}]")
    for dd in range(4):
        a(f"v_cvt_pk_bf16_f32 v{40+dd}, v{32+2*dd}, v{33+2*dd}")
    a("buffer_store_dwordx4 v[40:43], v3, s[8:11], s19 offen")
    for dd in range(4):
        a(f"v_dot2c_f32_bf16 v14, s21, v{40+dd}")
    a(f"""
      s_add_u32 s19, s19, 9216
      s_add_u32 s22, s22, 1
      s_cmp_lt_u32 s22, 18
      s_cbranch_scc1 K2_WIN_L
      s_nop 2
    """)
    for sw in ("16", "32"):
        a(f"""
          v_mov_b32 v16, v14
          v_mov_b32 v17, v15
          s_nop 1
          v_permlane{sw}_swap_b32 v14, v16
          v_permlane{sw}_swap_b32 v15, v17
          s_nop 1
          v_add_f32 v14, v14, v16
          v_add_f32 v15, v15, v17
        """)
    a(f"""
      v_lshlrev_b32 v16, 2, v4
      v_lshlrev_b32 v17, 3, v4
      v_cmp_gt_u32 vcc, 16, v2
      s_and_saveexec_b64 s[40:41], vcc
      s_cmp_eq_u32 s23, 1
      s_cbranch_scc1 K2_WIN_Z2
      s_lshl_b32 s16, s16, 6
      s_add_u32 s16, s16, {UV1}
      buffer_store_dword v14, v16, s[8:11], s16 offen
      s_add_u32 s16, s16, 9216
      buffer_store_dword v15, v16, s[8:11], s16 offen
      s_endpgm
    K2_WIN_Z2:
      s_lshl_b32 s16, s16, 7
      s_add_u32 s16, s16, {UV2}
      buffer_store_dwordx2 v[14:15], v17, s[8:11], s16 offen
      s_endpgm
    """)
    a("K2_WOUT:")
    a.srd(12, "wout")
    a(f"""
      s_sub_u32 s4, s2, 216               ; unit 0..35
      s_mul_i32 s5, s4, 7282
      s_lshr_b32 s5, s5, 16               ; kq
      s_mul_i32 s16, s5, 9
      s_sub_u32 s4, s4, s16               ; cblk
      v_mul_u32_u24 v11, 1152, v6
      v_add_u32 v11, v11, v7
      s_lshl_b32 s7, s5, 2
      s_add_u32 s7, s7, s3
      s_mul_i32 s7, s7, {144*1152}
      s_lshl_b32 s16, s4, 7
      s_add_u32 s7, s7, s16
    """)
    for i in range(18):
        a(f"s_add_u32 m0, s6, {1024*i}\ns_nop 0")
        a(f"buffer_load_dwordx4 v11, s[12:15], s7 offen lds")
        if i < 17: a(f"s_add_u32 s7, s7, {8*1152}")
    a(f"""
      s_mul_i32 s19, s5, {18*36864}
      s_lshl_b32 s16, s4, 2
      s_add_u32 s16, s16, s3
      s_lshl_b32 s16, s16, 10
      s_add_u32 s19, s19, s16
      s_add_u32 s19, s19, {WOUTF}
      v_add_u32 v10, {288*128}, v9
      s_waitcnt vmcnt(0)
      s_barrier
    """)
    for q_ in range(2):
        base = ['v9', 'v10'][q_]
        for i in range(9):
            b1, b2 = (32*i, 32*i+16) if i < 4 else ((144+32*(i-4), 144+32*(i-4)+16) if i < 8 else (128, 272))
            r = 16 + 4*i
            a(f"ds_read_b64_tr_b16 v[{r}:{r+1}], {base} offset:{b1*128}")
            a(f"ds_read_b64_tr_b16 v[{r+2}:{r+3}], {base} offset:{b2*128}")
            if i == 6: a("s_waitcnt lgkmcnt(0)")
        a("s_waitcnt lgkmcnt(0)")
        for i in range(9):
            r = 16 + 4*i
            a(f"buffer_store_dwordx4 v[{r}:{r+3}], v3, s[8:11], s19 offen")
            a("s_add_u32 s19, s19, 36864")
        if q_ == 0: a("s_waitcnt vmcnt(0)")
    a("K2_END:\ns_endpgm")
    a.desc("k2_kernel", 208, 208)
```

```python
import sys
from gen_common import *
from gen_k1 import *
from gen_k2 import *
parts = sys.argv[2].split(",") if len(sys.argv) > 2 else ["k1","k2","g1","g2","g3"]
a = Asm()
hdr = open("adaLN_cond__ssm_conv_h3__mixer_gmlp__prompt.s.ref").read().split("; Override launch")[0]
a.raw(hdr.rstrip())
launch = {"k1": f"; @launch kernel=k1_kernel grid=({K1_GRID},1,1) block=(256,1,1) lds=512",
          "k2": f"; @launch kernel=k2_kernel grid=({K2_GRID},1,1) block=(512,1,1) lds={K2_LDS}"}
gens = {"k1": gen_k1, "k2": gen_k2}
try:
    from gen_g import *
    launch.update(G_LAUNCH); gens.update(G_GENS)
except ImportError:
    pass
for p in parts: a.raw(launch[p])
a.raw('.amdgcn_target "amdgcn-amd-amdhsa--gfx950"')
for p in parts: gens[p](a)
open(sys.argv[1], "w").write("\n".join(a.L) + "\n")
```

```python
S, D, F, FH = 2048, 576, 4608, 2304
UR    = 0x0000000
ST1   = 0x0480000
MOD   = 0x0488000
MODH  = 0x048C000
UV1   = 0x0490000
UV2   = 0x0495000
ST2   = 0x04A0000
FLB   = 0x04E0000
FLP   = 0x04E1000
FLA   = 0x04E2000
X1F   = 0x0500000
WINF  = 0x0800000
WOUTF = 0x0E00000
WSPF  = 0x1100000
Z1F   = 0x1900000
Z2F   = 0x2200000
PF    = 0x2B00000
STAMPB = 0x8000000
WS_SIZE = 0x10000000
KA = dict(q=0, k=8, v=16, shk=24, ssmk=32, ssmD=40, bx=48, win=56, wsp=64, bsp=72, wout=80, c=88, wmod=96, out=104, dbg=112, ws=120)
SZ = dict(q=S*D*2, k=S*D*2, v=S*D*2, shk=D*8, ssmk=D*S*2, ssmD=D*2, win=D*F*2, wsp=S*S*2, bsp=S*2, wout=FH*D*2, c=D*2, wmod=D*6*D*2, out=S*D*2, ws=WS_SIZE)

class Asm:
    def __init__(self):
        self.L = []
    def __call__(self, s):
        for line in s.split("\n"):
            line = line.strip()
            if not line or line == ";": continue
            self.L.append(line if line.endswith(":") or line.startswith(".") else "  " + line)
    def raw(self, s): self.L.append(s)
    def begin(self, name):
        self.raw(f".text\n.globl {name}\n.p2align 8\n.type {name},@function\n{name}:")
    def desc(self, name, vgpr, accum, sgpr=96):
        self.raw(f""".section .rodata,"a"
.p2align 6
.amdhsa_kernel {name}
  .amdhsa_next_free_vgpr {vgpr}
  .amdhsa_next_free_sgpr {sgpr}
  .amdhsa_accum_offset {accum}
  .amdhsa_group_segment_fixed_size 0
  .amdhsa_kernarg_size 128
  .amdhsa_user_sgpr_count 2
  .amdhsa_user_sgpr_kernarg_segment_ptr 1
  .amdhsa_system_sgpr_workgroup_id_x 1
.end_amdhsa_kernel""")
    STAMPS = False
    def stamp(self, i):
        return f"s_memrealtime s[{48+2*i}:{49+2*i}]" if Asm.STAMPS else "; "
    def stamp_end(self, kidx, n, srd="s[8:11]"):
        if not Asm.STAMPS: return
        self("s_mov_b64 exec, -1")
        self("s_waitcnt vmcnt(0)")
        self(self.stamp(n-1))
        self("s_waitcnt lgkmcnt(0)")
        self(f"v_lshrrev_b32 v1, 6, v0\nv_lshlrev_b32 v1, 6, v1\ns_lshl_b32 s46, s2, 9\ns_add_u32 s46, s46, {STAMPB + kidx*0x80000}")
        self("v_and_b32 v2, 63, v0\nv_cmp_eq_u32 vcc, 0, v2\ns_and_saveexec_b64 s[44:45], vcc")
        for i in range(n):
            self(f"v_mov_b32 v2, s{48+2*i}\nv_mov_b32 v3, s{49+2*i}\nbuffer_store_dwordx2 v[2:3], v1, {srd}, s46 offen offset:{8*i}\ns_nop 1")
    def stamp_flush(self, kidx, n, srd="s[8:11]"):
        self("s_waitcnt lgkmcnt(0)")
        self(f"v_lshrrev_b32 v232, 6, v0\nv_lshlrev_b32 v232, 6, v232\ns_lshl_b32 s46, s2, 9\ns_add_u32 s46, s46, {STAMPB + kidx*0x80000}")
        self("v_and_b32 v234, 63, v0\nv_cmp_eq_u32 vcc, 0, v234\ns_and_saveexec_b64 s[44:45], vcc")
        for i in range(n):
            self(f"v_mov_b32 v234, s{48+2*i}\nv_mov_b32 v235, s{49+2*i}\nbuffer_store_dwordx2 v[234:235], v232, {srd}, s46 offen offset:{8*i}\ns_nop 1")
        self("s_mov_b64 exec, -1\ns_nop 4")
    def load_args(self):
        self("s_load_dwordx16 s[64:79], s[0:1], 0\ns_load_dwordx16 s[80:95], s[0:1], 64")
    def ptr(self, name):
        return 64 + KA[name] // 4
    def srd(self, d, name, size=None, off=None):
        p = self.ptr(name)
        size = SZ[name] if size is None else size
        if off is None:
            self(f"s_mov_b32 s{d}, s{p}\ns_and_b32 s{d+1}, s{p+1}, 0xffff")
        else:
            self(f"s_add_u32 s{d}, s{p}, {off}\ns_addc_u32 s{d+1}, s{p+1}, 0\ns_and_b32 s{d+1}, s{d+1}, 0xffff")
        self(f"s_mov_b32 s{d+2}, {size}\ns_mov_b32 s{d+3}, 0x20000")

def vr(a, n=1, p="v"):
    return f"{p}{a}" if n == 1 else f"{p}[{a}:{a+n-1}]"
def ar(a, n=1): return vr(a, n, "a")
def sr(a, n=1): return vr(a, n, "s")

def interleave(main, fill, start=0, per=None):
    out = []
    n = len(main) - start
    k = 0
    for i, m in enumerate(main):
        out.append(m)
        if i >= start:
            if per is None:
                tgt = (len(fill) * (i - start + 1) + n - 1) // n
            else:
                tgt = min(len(fill), per * (i - start + 1))
            while k < tgt:
                out.append(fill[k]); k += 1
    out += fill[k:]
    return out

import struct
def float_hex(x): return hex(struct.unpack("<I", struct.pack("<f", x))[0])
```

```python
from gen_common import *
import os
X = os.environ.get('X', '').split(',')
G_LDS = 147456
MF = "v_mfma_f32_16x16x32_bf16"
C0 = -2*0.7978845608028654*1.4426950408889634
C1 = C0*0.044715

class VM:
    def __init__(self, text, tag): self.text, self.tag = text, tag
class WAIT:
    def __init__(self, tags, lgkm=False, key=None): self.tags, self.lgkm, self.key = tags, lgkm, key

def resolve(seq):
    issued = []; res = {}
    pos = {}
    for it in seq:
        if isinstance(it, VM):
            pos[it.tag] = len(issued); issued.append(it.tag)
        elif isinstance(it, WAIT):
            idx = [pos[t] for t in it.tags if t in pos]
            assert len(idx) == len(it.tags), ("missing", [t for t in it.tags if t not in pos])
            it.n = min(len(issued) - 1 - max(idx), 62) if idx else 63
            if it.key is not None: res[it.key] = min(res.get(it.key, 63), it.n)
    return res
def emit(a, seq, keyed=None):
    for it in seq:
        if isinstance(it, VM): a(it.text)
        elif isinstance(it, WAIT):
            n = keyed[it.key] if (keyed is not None and it.key is not None) else it.n
            s = []
            if n < 63: s.append(f"vmcnt({n})")
            if it.lgkm: s.append("lgkmcnt(0)")
            if s: a("s_waitcnt " + " ".join(s))
        else: a(it)

def tile_ids(a):
    a("""
      v_lshrrev_b32 v1, 6, v0
      v_and_b32 v2, 63, v0
      v_readfirstlane_b32 s3, v1
      v_lshlrev_b32 v1, 4, v2
      v_and_b32 v3, 15, v2
      v_lshrrev_b32 v12, 4, v2
      s_and_b32 s6, s2, 7
      s_lshr_b32 s7, s2, 3
      s_lshr_b32 s4, s6, 1
      s_lshl_b32 s4, s4, 2
      s_and_b32 s5, s7, 3
      s_add_u32 s4, s4, s5                ; mt
      s_and_b32 s5, s6, 1
      s_lshl_b32 s5, s5, 3
      s_lshr_b32 s7, s7, 2
      s_add_u32 s5, s5, s7                ; nt
      s_lshl_b32 s6, s4, 2
      s_add_u32 s6, s6, s3
      s_mul_i32 s7, s3, 9216
    """)

P0 = {3: (0, 3), 0: (3, 2), 1: (5, 2), 2: (7, 2)}
def dma_group(k, srd, soff, ntiles=None, fl=''):
    T = (k + 1) // 4 + 3
    if ntiles is not None and T >= ntiles: return []
    p0, cnt = P0[k % 4]
    out = [f"s_add_u32 m0, s7, {(T % 4)*36864 + p0*1024}", "s_nop 0"]
    for i in range(cnt):
        out.append(VM(f"buffer_load_dwordx4 v1, {srd}, {soff} offen offset:{1024*i} {fl} lds", ("B", T, p0+i)))
    inc = cnt*1024 if k % 4 != 2 else 36864 - 7168
    out.append(f"s_add_u32 {soff}, {soff}, {inc}")
    return out
def dma_tile(T, srd, soff, fl=''):
    out = []
    for k in (3, 0, 1, 2):
        p0, cnt = P0[k]
        out += [f"s_add_u32 m0, s7, {(T % 4)*36864 + p0*1024}", "s_nop 0"]
        for i in range(cnt):
            out.append(VM(f"buffer_load_dwordx4 v1, {srd}, {soff} offen offset:{1024*i} {fl} lds", ("B", T, p0+i)))
        out.append(f"s_add_u32 {soff}, {soff}, {cnt*1024 if k != 2 else 36864-7168}")
    return out
def btags(T): return [("B", T, p) for p in range(9)]
def b_reads(k, bbase, slotv):
    T = k // 4
    return [f"ds_read_b128 a[{bbase + (k%2)*36 + 4*j}:{bbase + (k%2)*36 + 4*j + 3}], v{slotv + T % 4} offset:{(k%4)*9216 + j*1024}" for j in range(9)]

def gelu_pairs(xs, ts):
    o = []
    P = lambda r: f"v[{r}:{r+1}]"
    for x, t in zip(xs, ts): o.append(f"v_pk_mul_f32 {P(t)}, {P(x)}, {P(x)}")
    for x, t in zip(xs, ts): o.append(f"v_pk_fma_f32 {P(t)}, {P(t)}, s[40:41], v[14:15]")
    for x, t in zip(xs, ts): o.append(f"v_pk_mul_f32 {P(t)}, {P(t)}, {P(x)}")
    for x, t in zip(xs, ts): o += [f"v_exp_f32 v{t}, v{t}", f"v_exp_f32 v{t+1}, v{t+1}"]
    for x, t in zip(xs, ts): o.append(f"v_pk_add_f32 {P(t)}, {P(t)}, 1.0 op_sel_hi:[1,0]")
    for x, t in zip(xs, ts): o += [f"v_rcp_f32 v{t}, v{t}", f"v_rcp_f32 v{t+1}, v{t+1}"]
    for x, t in zip(xs, ts): o.append(f"v_pk_mul_f32 {P(x)}, {P(x)}, {P(t)}")
    return o
def ror_reduce(regs, final=None):
    o = ["s_nop 1"]
    for rot in (8, 4, 2, 1):
        for i, r in enumerate(regs):
            d = final[i] if (final and rot == 1) else r
            o.append(f"v_add_f32_dpp v{d}, v{r}, v{r} row_ror:{rot} row_mask:0xf bank_mask:0xf")
    return o
def ln_finish(s1, s2, n, cnt, t):
    o = []
    inv = float_hex(1.0/n)
    for x in s1: o.append(f"v_mul_f32 v{x}, {inv}, v{x}")
    for y in s2: o.append(f"v_mul_f32 v{y}, {inv}, v{y}")
    for x, y in zip(s1, s2): o.append(f"v_fma_f32 v{y}, -v{x}, v{x}, v{y}")
    for y in s2: o.append(f"v_max_f32 v{y}, 0, v{y}")
    for y in s2: o.append(f"v_add_f32 v{y}, {float_hex(1e-5)}, v{y}")
    for y in s2: o.append(f"v_rsq_f32 v{y}, v{y}")
    o.append("s_nop 0")
    for x, y in zip(s1, s2): o.append(f"v_mul_f32 v{x}, -v{x}, v{y}")
    return o

def gen_g1(a):
    a.begin("g1_kernel")
    a("s_cmp_ge_u32 s2, 256\ns_cbranch_scc1 G1_END")
    a(a.stamp(0))
    a.load_args()
    tile_ids(a)
    a("s_waitcnt lgkmcnt(0)")
    a.srd(8, "ws")
    SL = 252
    a(f"""
      s_mul_i32 s20, s5, {36*9216}
      s_add_u32 s20, s20, s7
      s_add_u32 s20, s20, {WINF}
      s_mul_i32 s21, s6, 36864
      s_add_u32 s21, s21, {X1F}           ; A soffset
      v_lshlrev_b32 v13, 3, v2            ; lane*8
      v_add_u32 v8, 18432, v13
      v_mov_b32 v{SL}, v1
      v_add_u32 v{SL+1}, 36864, v1
      v_add_u32 v{SL+2}, {2*36864}, v1
      v_add_u32 v{SL+3}, {3*36864}, v1
      v_mov_b32 v4, 0x3f803f80
      v_mov_b32 v5, 0x3f803f80
      v_mov_b32 v6, 0x3f803f80
      v_mov_b32 v7, 0x3f803f80
      s_mov_b32 s40, {float_hex(C1)}
      s_mov_b32 s41, {float_hex(C1)}
      v_mov_b32 v14, {float_hex(C0)}
      v_mov_b32 v15, {float_hex(C0)}
      s_mul_i32 s22, s5, {144*8}
      s_add_u32 s22, s22, {UV2}
      v_lshlrev_b32 v9, 3, v3             ; n*8
    """)
    AB, BB = 0, 144
    ACC2, ACC1, ST = 16, 88, 160
    def a_loads(ks):
        if ks >= 18: return []
        o = []
        for t in range(2):
            for h in range(2):
                r = AB + (ks*2+t)*4 + 2*h
                o.append(VM(f"buffer_load_dwordx2 a[{r}:{r+1}], {['v13','v8'][t]}, s[8:11], s21 offen offset:{(ks%4)*1024 + h*512}", ("A", ks, t, h)))
        if ks % 4 == 3: o.append("s_add_u32 s21, s21, 4096")
        return o
    def atags(ks): return [("A", ks, t, h) for t in range(2) for h in range(2)]
    seq = []
    seq += dma_tile(0, "s[8:11]", "s20")
    for ks in range(0, 4): seq += a_loads(ks)
    seq += dma_tile(1, "s[8:11]", "s20")
    for ks in range(4, 6): seq += a_loads(ks)
    seq += dma_tile(2, "s[8:11]", "s20")
    seq += dma_group(-1, "s[8:11]", "s20", 9)
    seq += [WAIT(btags(0)), "s_barrier", a.stamp(1)]
    seq += b_reads(0, BB, SL)
    def kstep(kk, extra=[]):
        ks = kk % 18; ps = kk // 18
        o = []
        need = atags(ks) if ps == 0 else []
        bar = (kk % 4 == 3 and kk < 35)
        if bar: need = need + btags((kk+1)//4)
        o.append(WAIT(need, lgkm=True))
        if bar: o.append("s_barrier")
        m = []
        for j in range(9):
            for t in range(2):
                A = f"a[{AB+(ks*2+t)*4}:{AB+(ks*2+t)*4+3}]"
                B = f"a[{BB+(kk%2)*36+4*j}:{BB+(kk%2)*36+4*j+3}]"
                r = (ACC2 if ps == 0 else ACC1) + (j*2+t)*4
                C = "0" if ks == 0 else f"v[{r}:{r+3}]"
                m.append(f"{MF} v[{r}:{r+3}], {A}, {B}, {C}" if ps == 0 else f"{MF} v[{r}:{r+3}], {B}, {A}, {C}")
        if ps == 0:
            for t in range(2):
                A = f"a[{AB+(ks*2+t)*4}:{AB+(ks*2+t)*4+3}]"
                r = ST + 4*t
                m.append(f"{MF} v[{r}:{r+3}], {A}, v[4:7], {'0' if ks == 0 else f'v[{r}:{r+3}]'}")
                r = ST + 8 + 4*t
                m.append(f"{MF} v[{r}:{r+3}], {A}, {A}, {'0' if ks == 0 else f'v[{r}:{r+3}]'}")
        f = (b_reads(kk+1, BB, SL) if kk < 35 else []) + dma_group(kk, "s[8:11]", "s20", 9) + (a_loads(ks+6) if ps == 0 else []) + extra
        o += interleave(m, f)
        return o
    UV = 176
    uv2 = [VM(f"buffer_load_dwordx2 v[{UV+2*j}:{UV+2*j+1}], v9, s[8:11], s22 offen offset:{128*j}", ("UV2", j)) for j in range(9)]
    for kk in range(18):
        seq += kstep(kk, uv2[3*(kk-12):3*(kk-12)+3] if 12 <= kk < 15 else [])
    seq += [a.stamp(2), "v_mul_u32_u24 v10, 80, v12", "s_nop 7"]
    for t in range(2):
        for r in range(4):
            seq.append(f"ds_bpermute_b32 v{ST+8+4*t+r}, v10, v{ST+8+4*t+r} offset:{4*r}")
    seq.append("s_waitcnt lgkmcnt(0)")
    s1 = [ST+i for i in range(8)]; s2 = [ST+8+i for i in range(8)]
    seq += ln_finish(s1, s2, 576, 8, None)
    ZS = 244
    seq += ["v_and_b32 v10, 3, v3", "v_lshrrev_b32 v11, 2, v3", "v_lshl_add_u32 v11, v11, 4, v3", "v_lshlrev_b32 v11, 2, v11"]
    for t in range(2):
        seq += [f"v_mov_b32 v{ZS+2*t}, v{ST+8+4*t}", f"v_mov_b32 v{ZS+2*t+1}, v{ST+4*t}"]
    for r in range(1, 4):
        seq += [f"v_cmp_eq_u32 vcc, {r}, v10", "s_nop 1"]
        for t in range(2):
            seq += [f"v_cndmask_b32 v{ZS+2*t}, v{ZS+2*t}, v{ST+8+4*t+r}, vcc", f"v_cndmask_b32 v{ZS+2*t+1}, v{ZS+2*t+1}, v{ST+4*t+r}, vcc"]
    for i in range(4): seq.append(f"ds_bpermute_b32 v{ZS+i}, v11, v{ZS+i}")
    seq.append(WAIT([("UV2", j) for j in range(9)]))
    Z1S, Z2S, TMP, GR = 196, 204, 212, 220
    P = lambda r: f"v[{r}:{r+1}]"
    for j in range(9):
        xs = [ACC2 + j*8 + 2*i for i in range(4)]; ts = [TMP + 2*i for i in range(4)]
        uv = P(UV + 2*j)
        for i in range(4): seq.append(f"v_pk_fma_f32 {P(ts[i])}, {P(ST+2*i)}, {uv}, {uv} op_sel:[0,0,1] op_sel_hi:[1,0,1]")
        for i in range(4): seq.append(f"v_pk_fma_f32 {P(xs[i])}, {P(xs[i])}, {P(ST+8+2*i)}, {P(ts[i])}")
        seq += gelu_pairs(xs, ts)
        for i in range(4):
            if j == 0: seq += [f"v_pk_mul_f32 {P(Z2S+2*i)}, {P(xs[i])}, {P(xs[i])}"]
            elif j == 1: seq += [f"v_pk_add_f32 {P(Z1S+2*i)}, {P(xs[i])}, {P(ACC2+2*i)}", f"v_pk_fma_f32 {P(Z2S+2*i)}, {P(xs[i])}, {P(xs[i])}, {P(Z2S+2*i)}"]
            else: seq += [f"v_pk_add_f32 {P(Z1S+2*i)}, {P(xs[i])}, {P(Z1S+2*i)}", f"v_pk_fma_f32 {P(Z2S+2*i)}, {P(xs[i])}, {P(xs[i])}, {P(Z2S+2*i)}"]
    seq += ror_reduce([Z1S+i for i in range(8)] + [Z2S+i for i in range(8)], [GR+2*i for i in range(8)] + [GR+2*i+1 for i in range(8)])
    for i in range(8): seq.append(f"v_or_b32 v{GR+2*i+1}, 1, v{GR+2*i+1}")
    seq += [f"s_lshl_b32 s23, s6, 12", f"s_add_u32 s23, s23, {ST2}", "s_lshl_b32 s24, s5, 8", "s_add_u32 s24, s24, s23",
            "v_lshlrev_b32 v10, 6, v12", "v_lshl_add_u32 v11, v3, 8, v10",
            "v_cmp_eq_u32 vcc, 0, v3", "s_and_saveexec_b64 s[30:31], vcc"]
    for i in range(4): seq.append(VM(f"buffer_store_dwordx4 v[{GR+4*i}:{GR+4*i+3}], v10, s[8:11], s24 offen offset:{16*i} sc1", ("GS", i)))
    seq += ["s_mov_b64 exec, s[30:31]",
            f"s_mul_i32 s22, s5, {144*4}", f"s_add_u32 s22, s22, {UV1}", "s_add_u32 s25, s22, 9216", "v_lshlrev_b32 v9, 4, v12", "s_nop 4"]
    seq.append(a.stamp(3))
    U1 = 160
    uv1 = []
    for j in range(9):
        uv1.append(VM(f"buffer_load_dwordx4 v[{U1+8*j}:{U1+8*j+3}], v9, s[8:11], s22 offen offset:{64*j}", ("U1", j)))
        uv1.append(VM(f"buffer_load_dwordx4 v[{U1+8*j+4}:{U1+8*j+7}], v9, s[8:11], s25 offen offset:{64*j}", ("V1", j)))
    for kk in range(18, 36):
        seq += kstep(kk, uv1[3*(kk-26):3*(kk-26)+3] if 26 <= kk < 32 else [])
    TM1 = 232
    seq.append(a.stamp(4))
    seq += [f"s_lshl_b32 s26, s4, 4", "s_add_u32 s26, s26, s5", "s_lshl_b32 s26, s26, 2", "s_add_u32 s26, s26, s3",
            "s_mul_i32 s26, s26, 9216", f"s_add_u32 s26, s26, {Z1F}", "v_add_u32 v8, 4096, v1", "v_add_u32 v9, 8192, v1", "s_nop 3"]
    seq.append(WAIT([("V1", 8)]))
    for j in range(9):
        xs = [ACC1 + j*8 + 2*i for i in range(4)]; ts = [TM1 + 2*i for i in range(4)]
        for i in range(4):
            zs = P(ZS + 2*(i//2))
            seq.append(f"v_pk_fma_f32 {P(ts[i])}, {P(U1+8*j+2*(i%2))}, {zs}, {P(U1+8*j+4+2*(i%2))} op_sel:[0,1,0] op_sel_hi:[1,1,1]")
        for i in range(4):
            zs = P(ZS + 2*(i//2))
            seq.append(f"v_pk_fma_f32 {P(xs[i])}, {P(xs[i])}, {zs}, {P(ts[i])} op_sel_hi:[1,0,1]")
        seq += gelu_pairs(xs, ts)
        for i in range(4): seq.append(f"v_cvt_pk_bf16_f32 v{U1+8*j+i}, v{xs[i]}, v{xs[i]+1}")
        seq.append(VM(f"buffer_store_dwordx4 v[{U1+8*j}:{U1+8*j+3}], {['v1','v8','v9'][j//4]}, s[8:11], s26 offen offset:{1024*(j%4)}", ("Z1", j)))
    resolve(seq); emit(a, seq)
    PL = 88
    a(a.stamp(5))
    a("s_mov_b32 s27, 0\nG1_POLL:")
    for i in range(4): a(f"buffer_load_dwordx4 v[{PL+4*i}:{PL+4*i+3}], v11, s[8:11], s23 offen offset:{16*i} sc1")
    a("s_waitcnt vmcnt(0)")
    a(f"v_min_u32 v10, v{PL+1}, v{PL+3}")
    for i in range(2, 8): a(f"v_min_u32 v10, v10, v{PL+2*i+1}")
    a("""
      v_cmp_eq_u32 vcc, 0, v10
      s_add_u32 s27, s27, 1
      s_cmp_ge_u32 s27, 0x100000
      s_cbranch_scc1 G1_GO
      s_nop 2
      s_cbranch_vccnz G1_POLL
    G1_GO:
    """)
    R1, R2 = 104, 112
    a(a.stamp(6))
    for x in ror_reduce([PL+i for i in range(16)], [(R1 if i % 2 == 0 else R2) + i//2 for i in range(16)]): a(x)
    for x in ln_finish([R1+i for i in range(8)], [R2+i for i in range(8)], FH, 8, None): a(x)
    a(f"""
      s_mul_i32 s26, s5, {64*9216}
      s_mul_i32 s27, s6, 9216
      s_add_u32 s26, s26, s27
      s_add_u32 s26, s26, {Z2F}
    """)
    for j in range(9):
        xs = [ACC2 + j*8 + 2*i for i in range(4)]
        for i in range(4): a(f"v_pk_fma_f32 {P(xs[i])}, {P(xs[i])}, {P(R2+2*i)}, {P(R1+2*i)}")
        o = 120 + 4*j
        for i in range(4): a(f"v_cvt_pk_bf16_f32 v{o+i}, v{xs[i]}, v{xs[i]+1}")
        a(f"buffer_store_dwordx4 v[{o}:{o+3}], {['v1','v8','v9'][j//4]}, s[8:11], s26 offen offset:{1024*(j%4)}")
    a.stamp_end(2, 8)
    a("G1_END:\ns_endpgm")
    a.desc("g1_kernel", 256+216, 256)

def gen_g2(a):
    a.begin("g2_kernel")
    a("s_cmp_ge_u32 s2, 256\ns_cbranch_scc1 G2_END")
    a(a.stamp(0))
    a.load_args()
    tile_ids(a)
    a(f"""
      s_mul_i32 s20, s5, {64*9216}
      s_add_u32 s20, s20, {Z2F}
      s_lshl_b32 s21, s6, 17
      s_add_u32 s21, s21, {WSPF}
      s_waitcnt lgkmcnt(0)
    """)
    a.srd(8, "ws"); a.srd(12, "ws", 64*9216, "s20"); a.srd(16, "ws", 131072, "s21"); a.srd(24, "bsp")
    SL = 8
    a(f"""
      s_mov_b32 s20, s7
      s_mov_b32 s21, 0
      v_mov_b32 v{SL}, v1
      v_add_u32 v{SL+1}, 36864, v1
      v_add_u32 v{SL+2}, {2*36864}, v1
      v_add_u32 v{SL+3}, {3*36864}, v1
      v_lshrrev_b32 v4, 2, v3
      v_lshlrev_b32 v4, 3, v4
      v_and_b32 v5, 3, v3
      v_add_u32 v4, v4, v5
      v_lshlrev_b32 v4, 1, v4
      s_lshl_b32 s22, s6, 6
      v_add_u32 v13, 4096, v1
      v_add_u32 v14, 8192, v1
      s_lshl_b32 s28, s4, 4
      s_add_u32 s28, s28, s5
      s_lshl_b32 s28, s28, 2
      s_add_u32 s28, s28, s3
      s_mul_i32 s28, s28, 9216
      s_add_u32 s28, s28, {Z1F}
    """)
    BB, AB, ACC, Z1 = 0, 72, 16, 96
    def a_loads(k):
        r = AB + (k % 8)*8
        return [VM(f"buffer_load_dwordx4 a[{r}:{r+3}], v1, s[16:19], s21 offen", ("A", k, 0)),
                VM(f"buffer_load_dwordx4 a[{r+4}:{r+7}], v1, s[16:19], s21 offen offset:1024", ("A", k, 1)),
                "s_add_u32 s21, s21, 2048"]
    pro = []
    pro += dma_tile(0, "s[12:15]", "s20")
    for k in range(0, 4): pro += a_loads(k)
    pro += dma_tile(1, "s[12:15]", "s20")
    for k in range(4, 7): pro += a_loads(k)
    pro += dma_tile(2, "s[12:15]", "s20")
    pro += dma_group(-1, "s[12:15]", "s20")
    pro += [VM("buffer_load_ushort v6, v4, s[24:27], s22 offen", "b0"), VM("buffer_load_ushort v7, v4, s[24:27], s22 offen offset:8", "b1")]
    for j in range(9):
        pro.append(VM(f"buffer_load_dwordx4 v[{Z1+4*j}:{Z1+4*j+3}], {['v1','v13','v14'][j//4]}, s[8:11], s28 offen offset:{1024*(j%4)}", ("Z1", j)))
    for i in range(72): pro.append(f"v_mov_b32 v{ACC+i}, 0")
    pro += [WAIT(btags(0)), "s_barrier", a.stamp(1)]
    pro += b_reads(0, BB, SL)
    def kstep(k):
        o = []
        need = [("A", k, 0), ("A", k, 1)]
        if k % 4 == 3: need += btags((k+1)//4)
        o.append(WAIT(need, lgkm=True, key=k % 16))
        if k % 4 == 3: o.append("s_barrier")
        m = []
        for j in range(9):
            for t in range(2):
                r = ACC + (j*2+t)*4
                m.append(f"{MF} v[{r}:{r+3}], a[{BB+(k%2)*36+4*j}:{BB+(k%2)*36+4*j+3}], a[{AB+(k%8)*8+4*t}:{AB+(k%8)*8+4*t+3}], v[{r}:{r+3}]")
        f = b_reads(k+1, BB, SL) + dma_group(k, "s[12:15]", "s20") + a_loads(k+7)
        if 'g2noload' in X:
            for x in f:
                if isinstance(x, VM): x.text = "s_nop 0"
        if 'g2nods' in X: f = [x for x in f if not (isinstance(x, str) and x.startswith("ds_read"))]
        if 'g2nomfma' in X: m = m[:1]
        if 'g2nobar' in X: o = [x for x in o if x != "s_barrier"]
        return o + interleave(m, f)
    steps = [kstep(k) for k in range(64)]
    keyed = resolve(pro + [x for s_ in steps for x in s_])
    emit(a, pro)
    a("s_mov_b32 s23, 0\nG2_LOOP:")
    for k in range(16): emit(a, steps[k], keyed)
    a("s_add_u32 s23, s23, 1\ns_cmp_lt_u32 s23, 4\ns_cbranch_scc1 G2_LOOP")
    a(a.stamp(2))
    a(f"""
      v_lshlrev_b32 v4, 16, v6
      v_lshlrev_b32 v6, 16, v7
      s_lshr_b32 s22, s5, 1
      s_mul_i32 s22, s22, 9216
      s_mul_i32 s23, s6, {2*73728}
      s_add_u32 s22, s22, s23
      s_add_u32 s22, s22, {PF}            ; + tau*73728
      s_and_b32 s23, s5, 1
      s_lshl_b32 s29, s23, 12
      s_add_u32 s29, s29, s22
      s_add_u32 s30, s29, 73728
      s_lshl_b32 s23, s23, 3
      s_add_u32 s31, s22, s23
      s_add_u32 s31, s31, 8192
      s_add_u32 s32, s31, 73728
    """)
    P = lambda r: f"v[{r}:{r+1}]"
    T = 136; O = 160
    for j in range(9):
        for t in range(2):
            b = P(4 if t == 0 else 6)
            for h in range(2):
                x = ACC + (j*2+t)*4 + 2*h; z = Z1 + 4*j + 2*t + h; tt = T + 2*((2*t+h) % 4)
                o = O + ((j//2)*2 + t)*4 + (j%2)*2 + h
                a(f"""
                  v_lshlrev_b32 v{tt}, 16, v{z}
                  v_and_b32 v{tt+1}, 0xffff0000, v{z}
                  v_pk_add_f32 {P(x)}, {P(x)}, {b} op_sel_hi:[1,0]
                  v_pk_mul_f32 {P(x)}, {P(x)}, {P(tt)}
                  v_cvt_pk_bf16_f32 v{o}, v{x}, v{x+1}
                """)
        if j % 2 == 1:
            for t in range(2):
                o = O + ((j//2)*2 + t)*4
                a(f"buffer_store_dwordx4 v[{o}:{o+3}], v1, s[8:11], s{29+t} offen offset:{1024*(j//2)}")
    for t in range(2):
        o = O + (8 + t)*4
        a(f"buffer_store_dwordx2 v[{o}:{o+1}], v1, s[8:11], s{31+t} offen")
    a(a.stamp(3))
    a.stamp_end(3, 5)
    a("G2_END:\ns_endpgm")
    a.desc("g2_kernel", 256+136, 256)

def gen_g3(a):
    a.begin("g3_kernel")
    a("s_cmp_ge_u32 s2, 256\ns_cbranch_scc1 G3_END")
    a(a.stamp(0))
    a.load_args()
    a(f"""
      v_lshrrev_b32 v1, 6, v0
      v_and_b32 v2, 63, v0
      v_readfirstlane_b32 s3, v1
      v_lshlrev_b32 v1, 4, v2
      v_and_b32 v3, 15, v2
      v_lshrrev_b32 v12, 4, v2
      s_and_b32 s4, s2, 7
      s_lshl_b32 s4, s4, 2
      s_lshr_b32 s5, s2, 3
      s_and_b32 s6, s5, 3
      s_add_u32 s4, s4, s6                ; mb
      s_lshr_b32 s5, s5, 2                ; nb
      s_mul_i32 s5, s5, 9
      s_lshr_b32 s5, s5, 1                ; n0
      s_mul_i32 s20, s4, {4*73728}
      s_mul_i32 s6, s3, {18*1024}
      s_add_u32 s20, s20, s6
      s_add_u32 s20, s20, {PF}            ; P soffset
      s_mul_i32 s21, s3, {18*36864}
      s_lshl_b32 s6, s5, 10
      s_add_u32 s21, s21, s6
      s_add_u32 s21, s21, {WOUTF}         ; W soffset
      v_add_u32 v8, 4096, v1
    """)
    for u in range(4):
        a(f"s_add_u32 s6, s3, {u}\ns_and_b32 s6, s6, 3\ns_mul_i32 s7, s6, 73728\nv_add_u32 v{4+u}, s7, v1")
        if u > 0: a(f"s_mul_i32 s7, s6, 15360\ns_add_u32 s7, s7, {(u-1)*5120}\nv_add_u32 v{12+u}, s7, v1")
    a("s_waitcnt lgkmcnt(0)")
    a.srd(8, "ws"); a.srd(12, "out")
    ACC = 16; DEP = 6
    def loads(k):
        if k >= 18: return []
        r = (k % DEP)*36
        o = []
        for j in range(5):
            o.append(VM(f"buffer_load_dwordx4 a[{r+16+4*j}:{r+19+4*j}], {'v1' if j < 4 else 'v8'}, s[8:11], s21 offen offset:{1024*(j%4)}", ("W", k, j)))
        for u in range(4):
            o.append(VM(f"buffer_load_dwordx4 a[{r+4*u}:{r+4*u+3}], v{4+u}, s[8:11], s20 offen offset:{1024*(k%4)}", ("P", k, u)))
        o.append("s_add_u32 s21, s21, 36864")
        if k % 4 == 3: o.append("s_add_u32 s20, s20, 4096")
        return o
    seq = []
    for k in range(DEP-1): seq += loads(k)
    ep = [f"s_lshl_b32 s22, s4, 2", "s_add_u32 s22, s22, s3", "s_mul_i32 s23, s22, 18432", "s_lshl_b32 s24, s5, 9", "s_add_u32 s23, s23, s24", f"s_add_u32 s23, s23, {X1F}",
          "v_lshlrev_b32 v9, 3, v2", "s_lshl_b32 s24, s5, 6", f"s_add_u32 s24, s24, {MOD + 5*576*4}", "v_lshlrev_b32 v10, 4, v12"]
    for j in range(5):
        ep.append(VM(f"buffer_load_dwordx2 v[{96+2*j}:{97+2*j}], v9, s[8:11], s23 offen offset:{512*j}", ("X", j)))
        ep.append(VM(f"buffer_load_dwordx4 v[{108+4*j}:{111+4*j}], v10, s[8:11], s24 offen offset:{64*j}", ("G", j)))
    for k in range(18):
        seq.append(WAIT([("P", k, 3)]))
        if k == 0: seq.append(a.stamp(1))
        r = (k % DEP)*36
        m = []
        for u in range(4):
            for j in range(5):
                c = ACC + (u*5+j)*4
                m.append(f"{MF} v[{c}:{c+3}], a[{r+16+4*j}:{r+19+4*j}], a[{r+4*u}:{r+4*u+3}], {'0' if k == 0 else f'v[{c}:{c+3}]'}")
        seq += interleave(m, loads(k+DEP-1) + (ep if k == 13 else []))
    seq += [a.stamp(2), "s_mul_i32 s7, s3, 15360", "v_add_u32 v11, s7, v1", "s_nop 6"]
    for u in range(1, 4):
        for j in range(5):
            c = ACC + (u*5+j)*4
            seq.append(f"ds_write_b128 v{12+u}, v[{c}:{c+3}] offset:{1024*j}")
    seq += ["v_lshrrev_b32 v4, 2, v3", "v_lshlrev_b32 v4, 3, v4", "v_and_b32 v5, 3, v3", "v_add_u32 v4, v4, v5", "v_mul_u32_u24 v4, 1152, v4",
            "v_lshl_add_u32 v4, v12, 3, v4", "s_lshr_b32 s25, s22, 1", f"s_mul_i32 s25, s25, {32*1152}", "s_and_b32 s26, s22, 1", f"s_mul_i32 s26, s26, {4*1152}",
            "s_add_u32 s25, s25, s26", "s_lshl_b32 s26, s5, 5", "s_add_u32 s25, s25, s26",
            "s_waitcnt lgkmcnt(0)", "s_barrier", a.stamp(3)]
    for i in range(15):
        c = ACC + 20 + 4*i
        seq.append(f"ds_read_b128 v[{c}:{c+3}], v11 offset:{1024*i}")
    seq += [WAIT([("G", 4)], lgkm=True)]
    P = lambda r: f"v[{r}:{r+1}]"
    for j in range(5):
        for h in range(2):
            x = ACC + 4*j + 2*h
            seq += [f"v_pk_add_f32 {P(x)}, {P(x)}, {P(x+20)}", f"v_pk_add_f32 {P(x+40)}, {P(x+40)}, {P(x+60)}",
                    f"v_lshlrev_b32 v{x+20}, 16, v{96+2*j+h}", f"v_and_b32 v{x+21}, 0xffff0000, v{96+2*j+h}",
                    f"v_pk_add_f32 {P(x)}, {P(x)}, {P(x+40)}",
                    f"v_pk_fma_f32 {P(x)}, {P(x)}, {P(108+4*j+2*h)}, {P(x+20)}",
                    f"v_cvt_pk_bf16_f32 v{96+2*j+h}, v{x}, v{x+1}"]
        seq.append(VM(f"buffer_store_dwordx2 v[{96+2*j}:{97+2*j}], v4, s[12:15], s25 offen offset:{32*j}", ("O", j)))
    resolve(seq); emit(a, seq)
    a(a.stamp(4))
    a.stamp_end(4, 6)
    a("G3_END:\ns_endpgm")
    a.desc("g3_kernel", 128+216, 128)

G_LAUNCH = {"g1": f"; @launch kernel=g1_kernel grid=(256,1,1) block=(256,1,1) lds={G_LDS}",
            "g2": f"; @launch kernel=g2_kernel grid=(256,1,1) block=(256,1,1) lds={G_LDS}",
            "g3": f"; @launch kernel=g3_kernel grid=(256,1,1) block=(256,1,1) lds=61440"}
G_GENS = {"g1": gen_g1, "g2": gen_g2, "g3": gen_g3}
```

```python
from gen_common import *
import os
X = os.environ.get('X', '').split(',')
URST = 'sc1' if 'ursc1' in X else ''
K1_MOD, K1_KV, K1_ST = 108, 288, 256
K1_GRID = K1_MOD + K1_KV + K1_ST

def gen_k1(a):
    a.begin("k1_kernel")
    a(f"s_cmp_ge_u32 s2, {K1_GRID}\ns_cbranch_scc1 K1_END")
    a(a.stamp(0))
    a.load_args()
    a(f"s_cmp_lt_u32 s2, {K1_MOD}\ns_cbranch_scc1 K1_MODR")
    a(f"s_cmp_lt_u32 s2, {K1_MOD+K1_KV}\ns_cbranch_scc1 K1_KVR")
    a(f"s_sub_u32 s3, s2, {K1_MOD+K1_KV}")
    a("""
      v_lshrrev_b32 v1, 5, v0
      v_and_b32 v2, 31, v0
      s_lshl_b32 s4, s3, 3
      v_add_u32 v1, s4, v1                ; row
      v_mul_u32_u24 v3, 1152, v1
      v_lshl_add_u32 v3, v2, 2, v3
      s_waitcnt lgkmcnt(0)
    """)
    a.srd(8, "q"); a.srd(12, "ws")
    for i in range(9):
        a(f"buffer_load_dword v{8+i}, v3, s[8:11], 0 offen offset:{128*i}")
    a(f"""
      v_mov_b32 v4, 0
      v_lshlrev_b32 v5, 2, v0
      s_lshl_b32 s5, s3, 10
      s_add_u32 s5, s5, {ST2}
      buffer_store_dword v4, v5, s[12:15], s5 offen
      s_waitcnt vmcnt(1)
    """)
    a(a.stamp(1))
    for i in range(9):
        a(f"v_lshlrev_b32 v{20+2*i}, 16, v{8+i}\nv_and_b32 v{21+2*i}, 0xffff0000, v{8+i}")
    def red32(r, t):
        a(f"""
          s_nop 1
          v_add_f32_dpp {r}, {r}, {r} quad_perm:[1,0,3,2] row_mask:0xf bank_mask:0xf
          s_nop 1
          v_add_f32_dpp {r}, {r}, {r} quad_perm:[2,3,0,1] row_mask:0xf bank_mask:0xf
          s_nop 1
          v_add_f32_dpp {r}, {r}, {r} row_half_mirror row_mask:0xf bank_mask:0xf
          s_nop 1
          v_add_f32_dpp {r}, {r}, {r} row_mirror row_mask:0xf bank_mask:0xf
          s_nop 0
          v_mov_b32 {t}, {r}
          s_nop 1
          v_permlane16_swap_b32 {r}, {t}
          s_nop 1
          v_add_f32 {r}, {r}, {t}
        """)
    a("v_pk_add_f32 v[6:7], v[20:21], v[22:23]")
    for i in range(2, 9): a(f"v_pk_add_f32 v[6:7], v[6:7], v[{20+2*i}:{21+2*i}]")
    a("v_add_f32 v6, v6, v7")
    red32("v6", "v7")
    a(f"v_mul_f32 v6, {float_hex(1.0/576)}, v6      ; mean")
    for i in range(9): a(f"v_pk_add_f32 v[{20+2*i}:{21+2*i}], v[{20+2*i}:{21+2*i}], v[6:7] op_sel_hi:[1,0] neg_lo:[0,1] neg_hi:[0,1]")
    a("v_pk_mul_f32 v[40:41], v[20:21], v[20:21]")
    for i in range(1, 9): a(f"v_pk_fma_f32 v[40:41], v[{20+2*i}:{21+2*i}], v[{20+2*i}:{21+2*i}], v[40:41]")
    a("v_add_f32 v40, v40, v41")
    red32("v40", "v41")
    a(f"""
      v_mov_b32 v41, {float_hex(1e-5)}
      v_fmac_f32 v41, {float_hex(1.0/576)}, v40
      v_rsq_f32 v40, v41
      s_nop 0
      v_mul_f32 v41, v6, v40
      v_sub_f32 v41, 0, v41               ; -mean*rstd
      v_lshlrev_b32 v5, 3, v1
      v_cmp_eq_u32 vcc, 0, v2
      s_and_saveexec_b64 s[20:21], vcc
      s_mov_b32 s5, {ST1}
      buffer_store_dwordx2 v[40:41], v5, s[12:15], s5 offen
    """)
    a.stamp_end(0, 3, "s[12:15]")
    a("s_endpgm")
    a("K1_KVR:")
    a(f"""
      s_sub_u32 s3, s2, {K1_MOD}
      s_mul_i32 s4, s3, 7282
      s_lshr_b32 s4, s4, 16               ; rb
      s_mul_i32 s5, s4, 9
      s_sub_u32 s5, s3, s5                ; cb
      v_lshrrev_b32 v1, 5, v0             ; rg 0..7
      v_and_b32 v2, 31, v0
      s_lshl_b32 s6, s4, 6
      v_lshl_add_u32 v1, v1, 3, s6        ; s0
      s_lshl_b32 s7, s5, 7
      v_lshl_add_u32 v3, v2, 2, s7
      v_mul_u32_u24 v4, 1152, v1
      v_add_u32 v4, v4, v3
      v_subrev_u32 v5, 4608, v4
      v_add_u32 v6, 4608, v4
      v_lshlrev_b32 v7, 2, v3
      s_waitcnt lgkmcnt(0)
    """)
    a.srd(8, "k"); a.srd(12, "v"); a.srd(16, "shk"); a.srd(20, "ws")
    a("buffer_load_dwordx4 v[12:15], v7, s[16:19], 0 offen")
    for i in range(12):
        a(f"buffer_load_dword v{16+i}, {['v5','v4','v6'][i//4]}, s[8:11], 0 offen offset:{1152*(i%4)} nt")
    for i in range(3, 12):
        a(f"buffer_load_dword v{28+i-3}, {['v5','v4','v6'][i//4]}, s[12:15], 0 offen offset:{1152*(i%4)} nt")
    a(f"""
      s_cmp_ge_u32 s3, 12
      s_cbranch_scc1 K1_NOZ
      v_mov_b32 v8, 0
      v_lshlrev_b32 v9, 2, v0
      s_lshl_b32 s28, s3, 10
      s_add_u32 s28, s28, {FLB}
      buffer_store_dword v8, v9, s[20:23], s28 offen
    K1_NOZ:
    """)
    a("""
      v_lshlrev_b32 v9, 12, v3
      v_sub_u32 v10, 2040, v1
      v_lshl_add_u32 v9, v10, 1, v9
      v_add_u32 v10, 8192, v9
      s_waitcnt vmcnt(0)
    """)
    a(a.stamp(1))
    for j in range(4):
        op = "v_lshlrev_b32 {d}, 16, {s}" if j % 2 == 0 else "v_and_b32 {d}, 0xffff0000, {s}"
        a(op.format(d=f"v{40+2*j}", s=f"v{12+j//2}"))
        a(op.format(d=f"v{41+2*j}", s=f"v{14+j//2}"))
    for i in range(12):
        a(f"v_lshlrev_b32 v{48+2*i}, 16, v{16+i}\nv_and_b32 v{49+2*i}, 0xffff0000, v{16+i}")
    for i in range(9):
        a(f"v_lshlrev_b32 v{72+2*i}, 16, v{28+i}\nv_and_b32 v{73+2*i}, 0xffff0000, v{28+i}")
    for i in range(9):
        d = f"v[{16+2*i}:{17+2*i}]"
        kk = lambda j: f"v[{48+2*(i+3-j)}:{49+2*(i+3-j)}]"
        a(f"v_pk_mul_f32 {d}, {kk(3)}, v[46:47]")
        for j in (2, 1, 0):
            a(f"v_pk_fma_f32 {d}, {kk(j)}, v[{40+2*j}:{41+2*j}], {d}")
        a(f"v_pk_mul_f32 {d}, {d}, v[{72+2*i}:{73+2*i}]")
    o = 48
    for ch in range(2):
        for p in range(2):
            top = 7 + p
            for dd in range(4):
                a(f"v_cvt_pk_bf16_f32 v{o+dd}, v{16+2*(top-2*dd)+ch}, v{16+2*(top-2*dd-1)+ch}")
            a(f"s_mov_b32 s29, {UR + 4096*p}")
            a(f"buffer_store_dwordx4 v[{o}:{o+3}], {['v9','v10'][ch]}, s[20:23], s29 offen {URST}")
            o += 4
    a.stamp_end(0, 3, "s[20:23]")
    a("s_endpgm")
    a("K1_MODR:")
    a("""
      v_and_b32 v1, 3, v0                 ; chunk
      v_lshrrev_b32 v2, 2, v0
      v_mul_u32_u24 v3, 6912, v2
      v_lshl_add_u32 v3, v1, 4, v3
      s_lshl_b32 s4, s2, 6
      v_lshlrev_b32 v4, 1, v2
      s_waitcnt lgkmcnt(0)
    """)
    a.srd(8, "wmod"); a.srd(12, "c"); a.srd(16, "ws")
    for i in range(9):
        a(f"buffer_load_ushort v{8+i}, v4, s[12:15], 0 offen offset:{128*i}")
    for i in range(9):
        a(f"buffer_load_dwordx4 v[{20+4*i}:{23+4*i}], v3, s[8:11], s4 offen nt")
        if i < 8: a(f"s_add_u32 s4, s4, {64*6912}")
    a("s_waitcnt vmcnt(9)")
    for i in range(9): a(f"v_lshlrev_b32 v{8+i}, 16, v{8+i}")
    for i in range(9): a(f"v_mul_f32 v{60+i}, {float_hex(-1.4426950408889634)}, v{8+i}")
    for i in range(9): a(f"v_exp_f32 v{60+i}, v{60+i}")
    for i in range(9): a(f"v_add_f32 v{60+i}, 1.0, v{60+i}")
    for i in range(9): a(f"v_rcp_f32 v{60+i}, v{60+i}")
    for i in range(9): a(f"v_mul_f32 v{8+i}, v{8+i}, v{60+i}")
    for i in range(9): a(f"v_cvt_pk_bf16_f32 v{8+i}, v{8+i}, v{8+i}")
    for i in range(9): a(f"v_lshlrev_b32 v{8+i}, 16, v{8+i}")
    for i in range(9):
        a(f"s_waitcnt vmcnt({8-i})")
        for dd in range(4):
            src = f"v{20+4*i+dd}"
            a(f"v_lshlrev_b32 v60, 16, {src}\nv_and_b32 v61, 0xffff0000, {src}")
            if i == 0:
                a(f"v_mul_f32 v{70+2*dd}, v8, v60\nv_mul_f32 v{71+2*dd}, v8, v61")
            else:
                a(f"v_fmac_f32 v{70+2*dd}, v{8+i}, v60\nv_fmac_f32 v{71+2*dd}, v{8+i}, v61")
    a(a.stamp(1))
    a("s_nop 1")
    for rot in (8, 4):
        for j in range(8): a(f"v_add_f32_dpp v{70+j}, v{70+j}, v{70+j} row_ror:{rot} row_mask:0xf bank_mask:0xf")
    for sw in ("16", "32"):
        for j in range(8): a(f"v_mov_b32 v{80+j}, v{70+j}")
        a("s_nop 1")
        for j in range(8): a(f"v_permlane{sw}_swap_b32 v{70+j}, v{80+j}")
        a("s_nop 1")
        for j in range(8): a(f"v_add_f32 v{70+j}, v{70+j}, v{80+j}")
    a("""
      v_lshrrev_b32 v5, 6, v0
      v_lshlrev_b32 v5, 7, v5
      v_lshl_add_u32 v5, v1, 5, v5
      v_and_b32 v6, 63, v0
      v_cmp_gt_u32 vcc, 4, v6
      s_and_saveexec_b64 s[20:21], vcc
      ds_write_b128 v5, v[70:73]
      ds_write_b128 v5, v[74:77] offset:16
      s_mov_b64 exec, s[20:21]
      s_waitcnt lgkmcnt(0)
      s_barrier
      v_lshlrev_b32 v5, 2, v0
      v_lshlrev_b32 v6, 1, v0
      v_cmp_gt_u32 vcc, 32, v0
      s_and_saveexec_b64 s[20:21], vcc
      s_cbranch_execz K1_END
      ds_read_b32 v8, v5
      ds_read_b32 v9, v5 offset:128
      ds_read_b32 v10, v5 offset:256
      ds_read_b32 v11, v5 offset:384
      s_mul_i32 s4, s2, 3641              ; /18
      s_lshr_b32 s4, s4, 16               ; section
      s_cmp_eq_u32 s4, 1
      s_cselect_b32 s5, 1.0, 0
      s_cmp_eq_u32 s4, 4
      s_cselect_b32 s5, 1.0, s5
      s_waitcnt lgkmcnt(0)
      v_add_f32 v8, v8, v9
      v_add_f32 v10, v10, v11
      v_add_f32 v8, v8, v10
      v_cvt_pk_bf16_f32 v8, v8, v8
      v_lshlrev_b32 v8, 16, v8
      v_add_f32 v8, s5, v8
      v_cvt_pk_bf16_f32 v9, v8, v8
      v_lshlrev_b32 v8, 16, v9
    """)
    a(f"""
      s_lshl_b32 s6, s2, 7
      s_add_u32 s6, s6, {MOD}
      buffer_store_dword v8, v5, s[16:19], s6 offen
      s_lshl_b32 s6, s2, 6
      s_add_u32 s6, s6, {MODH}
      buffer_store_short v9, v6, s[16:19], s6 offen
    """)
    a.stamp_end(0, 3, "s[16:19]")
    a("K1_END:\ns_endpgm")
    a.desc("k1_kernel", 92, 92)
```

```python
from gen_common import *
K2_GRID = 252
CH_LDS = 25792; KCS = 4160; URO = 16640; URS = 4576; YO = 4*CH_LDS; YS = 9216
K2_LDS = YO + 4*YS

def gen_k2(a):
    a.begin("k2_kernel")
    a(f"s_cmp_ge_u32 s2, {K2_GRID}\ns_cbranch_scc1 K2_END")
    a(a.stamp(0))
    a.load_args()
    a("""
      v_lshrrev_b32 v1, 6, v0
      v_and_b32 v2, 63, v0                ; lane
      v_readfirstlane_b32 s3, v1          ; wave
      v_lshlrev_b32 v3, 4, v2             ; lane*16
      v_and_b32 v4, 15, v2                ; l&15
      v_lshrrev_b32 v5, 4, v2             ; g
      s_and_b32 s4, s2, 7
      s_mul_i32 s4, s4, 18
      s_lshr_b32 s5, s2, 3
      s_add_u32 s4, s4, s5
      s_waitcnt lgkmcnt(0)
    """)
    a.srd(8, "ws")
    a("s_cmp_ge_u32 s2, 144\ns_cbranch_scc1 K2_REPACK")
    a("s_cmp_ge_u32 s3, 4\ns_cbranch_scc1 K2_HELP")
    a(f"""
      s_lshl_b32 s5, s4, 2
      s_add_u32 s5, s5, s3                ; channel
      s_mul_i32 s6, s3, {CH_LDS}
    """)
    a.srd(12, "ssmk")
    p = a.ptr("ssmD"); w = a.ptr("ws")
    a(f"""
      s_lshl_b32 s7, s4, 3
      s_load_dwordx2 s[20:21], s[{p}:{p+1}], s7
      s_lshl_b32 s36, s5, 12
      s_lshl_b32 s37, s5, 13
      s_add_u32 s37, s37, {UR}
    """)
    def kcopy(t):
        a(f"s_add_u32 m0, s6, {t*KCS + 60 - 4*t}\ns_nop 0")
        for i in range(4):
            a(f"buffer_load_dwordx4 v3, s[12:15], s36 offen offset:{1024*i} lds")
    kcopy(0)
    for p_ in range(2):
        a(f"s_add_u32 m0, s6, {URO + p_*URS}")
        if p_ == 1: a("s_add_u32 s37, s37, 4096")
        else: a("s_nop 0")
        for i in range(4):
            a(f"buffer_load_dwordx4 v3, s[8:11], s37 offen offset:{1024*i} lds")
    for t in range(1, 4): kcopy(t)
    a("s_barrier")
    a(f"""
      v_mov_b32 v8, 0
      v_mov_b32 v9, 0
      v_mov_b32 v10, 0
      v_mov_b32 v11, 0
      v_mul_u32_u24 v12, {KCS}, v5
      v_lshl_add_u32 v12, v4, 2, v12
      v_add_u32 v12, s6, v12
      v_add_u32 v13, v4, v5
      v_lshrrev_b32 v14, 5, v2
      v_mul_u32_u24 v14, {URS}, v14
      v_and_b32 v15, 31, v2
      v_lshl_add_u32 v14, v15, 4, v14
      v_add_u32 v14, s6, v14
      v_cmp_gt_u32 vcc, 15, v13
      s_and_saveexec_b64 s[40:41], vcc
      ds_write_b32 v12, v8
      s_mov_b64 exec, s[40:41]
      v_cmp_gt_u32 vcc, 28, v15
      s_and_saveexec_b64 s[40:41], vcc
      ds_write_b128 v14, v[8:11] offset:{URO+4096}
      s_mov_b64 exec, s[40:41]
    """)
    a(f"""
      v_and_b32 v12, 3, v4
      v_mul_u32_u24 v12, {KCS}, v12
      v_lshrrev_b32 v13, 2, v4
      v_add_u32 v13, v13, v5
      v_lshl_add_u32 v12, v13, 4, v12
      v_add_u32 v12, s6, v12
      v_lshrrev_b32 v13, 3, v4            ; p
      v_mul_u32_u24 v13, {URS}, v13
      v_lshl_add_u32 v13, v5, 4, v13
      v_and_b32 v14, 7, v4                ; a'
      v_lshlrev_b32 v14, 6, v14
      v_sub_u32 v13, v13, v14
      s_add_u32 s7, s6, {URO + 448}
      v_add_u32 v13, s7, v13
      v_and_b32 v6, 7, v4
      v_mul_u32_u24 v6, 144, v6
      v_lshl_add_u32 v6, v5, 5, v6
      v_lshrrev_b32 v15, 3, v4
      v_lshl_add_u32 v6, v15, 4, v6
      s_mul_i32 s7, s3, {YS}
      s_add_u32 s7, s7, {YO}
      v_add_u32 v6, s7, v6
    """)
    a("""
      s_waitcnt lgkmcnt(0)
      s_cmp_ge_u32 s3, 2
      s_cselect_b32 s7, s21, s20
      s_and_b32 s22, s3, 1
      s_lshl_b32 s22, s22, 4
      s_lshr_b32 s7, s7, s22
      s_and_b32 s7, s7, 0xffff
      v_mov_b32 v15, s7
      v_lshl_add_u32 v14, v5, 2, v4       ; m + 4g
    """)
    for dd in range(4):
        a(f"v_cmp_eq_u32 vcc, {15-dd}, v14\ns_nop 1\nv_cndmask_b32 v{8+dd}, 0, v15, vcc")
    ACC = 16; FR = [48, 112]
    def reads(buf, r):
        out = []
        for i in range(8):
            out.append(f"ds_read_b128 v[{FR[buf]+32+4*i}:{FR[buf]+35+4*i}], v13 offset:{64*r + 512*(7-i)}")
            out.append(f"ds_read_b128 v[{FR[buf]+4*i}:{FR[buf]+3+4*i}], v12 offset:{64*r + 512*i}")
        return out
    def mfmas(buf):
        out = []
        for p_ in range(8):
            for q_ in range(8 - p_):
                j = p_ + q_
                out.append(f"v_mfma_f32_16x16x32_bf16 v[{ACC+4*j}:{ACC+4*j+3}], v[{FR[buf]+4*p_}:{FR[buf]+4*p_+3}], v[{FR[buf]+32+4*q_}:{FR[buf]+35+4*q_}], v[{ACC+4*j}:{ACC+4*j+3}]")
        return out
    a(a.stamp(1))
    a("s_waitcnt vmcnt(0)")
    a(a.stamp(2))
    for x in reads(0, 0): a(x)
    a("s_waitcnt lgkmcnt(0)")
    for q_ in range(8):
        a(f"v_mfma_f32_16x16x32_bf16 v[{ACC+4*q_}:{ACC+4*q_+3}], v[8:11], v[{FR[0]+32+4*q_}:{FR[0]+35+4*q_}], 0")
    a("s_mov_b32 s7, 0\nK2_CLOOP:")
    for x in interleave(mfmas(0), reads(1, 1), per=1): a(x)
    a("s_waitcnt lgkmcnt(0)")
    for x in interleave(mfmas(1), reads(0, 2), per=1): a(x)
    a("""
      v_add_u32 v12, 128, v12
      v_add_u32 v13, 128, v13
      s_add_u32 s7, s7, 1
      s_cmp_lt_u32 s7, 4
      s_waitcnt lgkmcnt(0)
      s_cbranch_scc1 K2_CLOOP
      s_nop 3
    """)
    a(a.stamp(3))
    for j in range(8):
        a(f"ds_write_b128 v6, v[{ACC+4*j}:{ACC+4*j+3}] offset:{j*8*144}")
    a("s_waitcnt lgkmcnt(0)\ns_barrier")
    a.stamp_end(1, 5)
    a("s_endpgm")

    a("K2_HELP:")
    a.srd(16, "q")
    a(f"""
      s_lshl_b32 s7, s4, 4
      s_add_u32 s22, s7, {MOD}
      s_load_dwordx4 s[24:27], s[{w}:{w+1}], s22       ; sa
      s_add_u32 s22, s7, {MOD+576*4}
      s_load_dwordx4 s[28:31], s[{w}:{w+1}], s22       ; 1+ca
      s_add_u32 s22, s7, {MOD+2*576*4}
      s_load_dwordx4 s[32:35], s[{w}:{w+1}], s22       ; ga
      v_and_b32 v1, 255, v0               ; t
      v_mul_u32_u24 v6, 1152, v1
      s_lshl_b32 s38, s4, 3
      v_lshlrev_b32 v7, 3, v1
      s_mov_b32 s39, {ST1}
      v_lshrrev_b32 v12, 5, v1
      v_mul_u32_u24 v13, 144, v12
      v_and_b32 v14, 24, v1
      v_and_b32 v15, 1, v1
      v_lshl_add_u32 v14, v15, 2, v14
      v_bfe_u32 v15, v1, 1, 2
      v_add_u32 v14, v14, v15
      v_lshl_add_u32 v13, v14, 2, v13
      v_add_u32 v13, {YO}, v13
      v_mul_u32_u24 v12, 36864, v12
      v_bfe_u32 v14, v1, 2, 1
      v_mul_u32_u24 v14, 18432, v14
      v_add_u32 v12, v12, v14
      v_bfe_u32 v14, v1, 3, 2
      v_lshl_add_u32 v12, v14, 5, v12
      v_and_b32 v14, 3, v1
      v_lshl_add_u32 v12, v14, 3, v12
      s_lshl_b32 s7, s4, 7
      s_add_u32 s7, s7, {X1F}
      s_barrier
    """)
    Q, STT, Y, H = 16, 32, 48, 80
    for i in range(8):
        a(f"buffer_load_dwordx2 v[{STT+2*i}:{STT+1+2*i}], v7, s[8:11], s39 offen offset:{2048*(i%2)}")
        if i % 2 == 1 and i < 7: a("s_add_u32 s39, s39, 4096")
    for i in range(8):
        a(f"buffer_load_dwordx2 v[{Q+2*i}:{Q+1+2*i}], v6, s[16:19], s38 offen")
        if i < 7: a(f"s_add_u32 s38, s38, {256*1152}")
    a("s_waitcnt lgkmcnt(0)")
    for c in range(4): a(f"v_mov_b32 v{8+c}, s{24+c}")
    for i in range(8):
        q0, q1 = Q+2*i, Q+1+2*i
        st = f"v[{STT+2*i}:{STT+1+2*i}]"
        t = H + 8*i
        a(f"""
          s_waitcnt vmcnt({7-i})
          v_lshlrev_b32 v{t}, 16, v{q0}
          v_and_b32 v{t+1}, 0xffff0000, v{q0}
          v_lshlrev_b32 v{t+2}, 16, v{q1}
          v_and_b32 v{t+3}, 0xffff0000, v{q1}
          v_fma_f32 v{t+4}, v{t}, v{STT+2*i}, v{STT+2*i+1}
          v_fma_f32 v{t+5}, v{t+1}, v{STT+2*i}, v{STT+2*i+1}
          v_fma_f32 v{t+6}, v{t+2}, v{STT+2*i}, v{STT+2*i+1}
          v_fma_f32 v{t+7}, v{t+3}, v{STT+2*i}, v{STT+2*i+1}
          v_pk_fma_f32 v[{t+4}:{t+5}], v[{t+4}:{t+5}], s[28:29], v[8:9]
          v_pk_fma_f32 v[{t+6}:{t+7}], v[{t+6}:{t+7}], s[30:31], v[10:11]
          v_pk_mul_f32 v[{t+4}:{t+5}], v[{t+4}:{t+5}], s[32:33]
          v_pk_mul_f32 v[{t+6}:{t+7}], v[{t+6}:{t+7}], s[34:35]
        """)
    a(a.stamp(1))
    a("s_barrier")
    a(a.stamp(2))
    def yrd(i):
        for c in range(4):
            a(f"ds_read_b32 v{Y+4*i+c}, v13 offset:{c*YS + i*8*144}")
    if Asm.STAMPS: a("s_waitcnt lgkmcnt(0)")
    for i in range(3): yrd(i)
    for i in range(8):
        t = H + 8*i
        a(f"s_waitcnt lgkmcnt({min(8, 28-4*i)})")
        if i + 3 < 8: yrd(i+3)
        a(f"""
          v_pk_fma_f32 v[{t}:{t+1}], v[{t+4}:{t+5}], v[{Y+4*i}:{Y+1+4*i}], v[{t}:{t+1}]
          v_pk_fma_f32 v[{t+2}:{t+3}], v[{t+6}:{t+7}], v[{Y+2+4*i}:{Y+3+4*i}], v[{t+2}:{t+3}]
          v_cvt_pk_bf16_f32 v{Q+2*i}, v{t}, v{t+1}
          v_cvt_pk_bf16_f32 v{Q+1+2*i}, v{t+2}, v{t+3}
          buffer_store_dwordx2 v[{Q+2*i}:{Q+1+2*i}], v12, s[8:11], s7 offen sc1
        """)
        if i < 7: a(f"s_add_u32 s7, s7, {8*36864}")
    a(a.stamp(3))
    a.stamp_end(1, 5)
    a("s_endpgm")

    a("K2_REPACK:")
    a("""
      s_and_b32 s24, s3, 3                ; jn
      s_lshr_b32 s25, s3, 2               ; K half
      v_lshrrev_b32 v6, 3, v2
      v_and_b32 v7, 7, v2
      v_and_b32 v8, 6, v6                 ; ((row>>1)&3)<<1
      v_xor_b32 v7, v7, v8
      v_lshlrev_b32 v7, 4, v7             ; chunk*16
      v_lshrrev_b32 v9, 2, v2
      v_lshlrev_b32 v9, 7, v9
      v_and_b32 v10, 3, v6
      v_xor_b32 v10, s24, v10
      v_lshl_add_u32 v9, v10, 5, v9
      v_and_b32 v10, 3, v2
      v_lshl_add_u32 v9, v10, 3, v9
      s_mul_i32 s26, s25, 36864
      v_add_u32 v9, s26, v9
      s_mul_i32 s6, s3, 9216
      s_cmp_ge_u32 s2, 216
      s_cbranch_scc1 K2_WOUT
    """)
    a.srd(12, "win")
    TB = 73728
    a(f"""
      s_sub_u32 s4, s2, 144               ; unit
      v_mul_u32_u24 v11, 9216, v6
      v_add_u32 v11, v11, v7
      s_mul_i32 s7, s3, {72*9216}
      s_lshl_b32 s5, s4, 7
      s_add_u32 s7, s7, s5
    """)
    for i in range(9):
        a(f"s_add_u32 m0, s6, {1024*i}\ns_nop 0")
        a(f"buffer_load_dwordx4 v11, s[12:15], s7 offen nt lds")
        if i < 8: a(f"s_add_u32 s7, s7, {8*9216}")
    a(f"""
      s_cmp_ge_u32 s3, 5
      s_cbranch_scc1 K2_WIN_T
      s_lshl_b32 s16, s3, 10
      s_add_u32 s17, s16, {MOD + 4*576*4}
      s_add_u32 s18, s16, {MODH + 3*576*2 - 3072}
      s_cmp_ge_u32 s3, 3
      s_cselect_b32 s17, s18, s17
      s_add_u32 m0, s16, {TB}
      s_nop 0
      buffer_load_dwordx4 v3, s[8:11], s17 offen lds
    K2_WIN_T:
      s_lshl_b32 s16, s4, 2
      s_add_u32 s16, s16, s24             ; fc
      s_cmp_ge_u32 s16, 144
      s_cselect_b32 s17, 144, 0
      s_cselect_b32 s18, 0, {18*9216}
      s_cselect_b32 s23, 1, 0             ; is z2
      s_sub_u32 s16, s16, s17             ; fcl
      s_mul_i32 s19, s16, 7282
      s_lshr_b32 s19, s19, 16             ; nt
      s_mul_i32 s20, s19, 9
      s_sub_u32 s20, s16, s20             ; j
      s_mul_i32 s19, s19, {36*9216}
      s_lshl_b32 s20, s20, 10
      s_add_u32 s19, s19, s20
      s_add_u32 s19, s19, s18
      s_mul_i32 s20, s25, {9*9216}
      s_add_u32 s19, s19, s20
      s_add_u32 s19, s19, {WINF}
      s_mul_i32 s20, s25, 1152
      s_add_u32 s20, s20, {TB}
      v_lshl_add_u32 v12, v5, 4, s20
      s_mul_i32 s20, s25, 576
      s_add_u32 s20, s20, {TB+3072}
      v_lshl_add_u32 v13, v5, 3, s20
      v_mov_b32 v14, 0                    ; u
      v_mov_b32 v15, 0                    ; v
      s_mov_b32 s21, 0x3f803f80
      s_waitcnt vmcnt(0)
      {a.stamp(1)}
      s_barrier
      {a.stamp(2)}
    """)
    def rd(ks):
        b = 16 + 16*(ks % 3)
        a(f"""
          ds_read_b64_tr_b16 v[{b}:{b+1}], v9 offset:{4096*ks}
          ds_read_b64_tr_b16 v[{b+2}:{b+3}], v9 offset:{4096*ks+2048}
          ds_read_b128 v[{b+4}:{b+7}], v12 offset:{128*ks}
          ds_read_b128 v[{b+8}:{b+11}], v12 offset:{128*ks+64}
          ds_read_b64 v[{b+12}:{b+13}], v13 offset:{64*ks}
          ds_read_b64 v[{b+14}:{b+15}], v13 offset:{64*ks+32}
        """)
    if Asm.STAMPS: a("s_waitcnt lgkmcnt(0)")
    rd(0); rd(1)
    for ks in range(9):
        b = 16 + 16*(ks % 3); t = 64; o = 72 + 4*(ks % 2)
        if ks + 2 < 9:
            a("s_waitcnt lgkmcnt(6)"); rd(ks+2)
        else: a(f"s_waitcnt lgkmcnt({6 if ks + 1 < 9 else 0})")
        for dd in range(4):
            a(f"v_lshlrev_b32 v{t+2*dd}, 16, v{b+dd}\nv_and_b32 v{t+1+2*dd}, 0xffff0000, v{b+dd}")
        for dd in range(4): a(f"v_dot2c_f32_bf16 v15, v{b+dd}, v{b+12+dd}")
        for dd in range(4): a(f"v_pk_mul_f32 v[{t+2*dd}:{t+1+2*dd}], v[{t+2*dd}:{t+1+2*dd}], v[{b+4+2*dd}:{b+5+2*dd}]")
        for dd in range(4): a(f"v_cvt_pk_bf16_f32 v{o+dd}, v{t+2*dd}, v{t+1+2*dd}")
        a(f"buffer_store_dwordx4 v[{o}:{o+3}], v3, s[8:11], s19 offen sc1")
        for dd in range(4): a(f"v_dot2c_f32_bf16 v14, s21, v{o+dd}")
        if ks < 8: a("s_add_u32 s19, s19, 9216")
    a("s_nop 2")
    for sw in ("16", "32"):
        a(f"""
          v_mov_b32 v16, v14
          v_mov_b32 v17, v15
          s_nop 1
          v_permlane{sw}_swap_b32 v14, v16
          v_permlane{sw}_swap_b32 v15, v17
          s_nop 1
          v_add_f32 v14, v14, v16
          v_add_f32 v15, v15, v17
        """)
    a(f"""
      s_lshl_b32 s20, s24, 7
      s_add_u32 s20, s20, {TB+5120}
      v_lshl_add_u32 v18, v4, 3, s20
      v_lshlrev_b32 v16, 2, v4
      v_lshlrev_b32 v17, 3, v4
      s_cmp_eq_u32 s25, 0
      s_cbranch_scc1 K2_WIN_LO
      ds_write_b64 v18, v[14:15]
      s_waitcnt lgkmcnt(0)
      s_barrier
    """)
    a.stamp_end(1, 4)
    a(f"""
      s_endpgm
    K2_WIN_LO:
      s_barrier
      ds_read_b64 v[20:21], v18
      v_cmp_gt_u32 vcc, 16, v2
      s_and_saveexec_b64 s[40:41], vcc
      s_waitcnt lgkmcnt(0)
      v_add_f32 v14, v14, v20
      v_add_f32 v15, v15, v21
      s_cmp_eq_u32 s23, 1
      s_cbranch_scc1 K2_WIN_Z2
      s_lshl_b32 s16, s16, 6
      s_add_u32 s16, s16, {UV1}
      buffer_store_dword v14, v16, s[8:11], s16 offen
      s_add_u32 s16, s16, 9216
      buffer_store_dword v15, v16, s[8:11], s16 offen
    """)
    a.stamp_end(1, 4)
    a(f"""
      s_endpgm
    K2_WIN_Z2:
      s_lshl_b32 s16, s16, 7
      s_add_u32 s16, s16, {UV2}
      buffer_store_dwordx2 v[14:15], v17, s[8:11], s16 offen
    """)
    a.stamp_end(1, 4)
    a("s_endpgm")
    a("K2_WOUT:")
    a.srd(12, "wout")
    a(f"""
      s_sub_u32 s4, s2, 216               ; unit 0..35
      s_mul_i32 s5, s4, 7282
      s_lshr_b32 s5, s5, 16               ; kq
      s_mul_i32 s16, s5, 9
      s_sub_u32 s4, s4, s16               ; cblk
      v_mul_u32_u24 v11, 1152, v6
      v_add_u32 v11, v11, v7
      s_lshl_b32 s7, s5, 3
      s_add_u32 s7, s7, s3
      s_mul_i32 s7, s7, {72*1152}
      s_lshl_b32 s16, s4, 7
      s_add_u32 s7, s7, s16
    """)
    for i in range(9):
        a(f"s_add_u32 m0, s6, {1024*i}\ns_nop 0")
        a(f"buffer_load_dwordx4 v11, s[12:15], s7 offen nt lds")
        if i < 8: a(f"s_add_u32 s7, s7, {8*1152}")
    a(f"""
      s_lshl_b32 s19, s5, 1
      s_add_u32 s19, s19, s25
      s_mul_i32 s19, s19, {9*36864}
      s_lshl_b32 s16, s4, 2
      s_add_u32 s16, s16, s24
      s_lshl_b32 s16, s16, 10
      s_add_u32 s19, s19, s16
      s_add_u32 s19, s19, {WOUTF}
      s_waitcnt vmcnt(0)
      {a.stamp(1)}
      s_barrier
      {a.stamp(2)}
    """)
    for i in range(9):
        b1, b2 = (32*i, 32*i+16) if i < 4 else ((144+32*(i-4), 144+32*(i-4)+16) if i < 8 else (128, 272))
        r = 16 + 4*i
        a(f"ds_read_b64_tr_b16 v[{r}:{r+1}], v9 offset:{b1*128}")
        a(f"ds_read_b64_tr_b16 v[{r+2}:{r+3}], v9 offset:{b2*128}")
    a("s_waitcnt lgkmcnt(0)")
    for i in range(9):
        r = 16 + 4*i
        a(f"buffer_store_dwordx4 v[{r}:{r+3}], v3, s[8:11], s19 offen sc1")
        if i < 8: a("s_add_u32 s19, s19, 36864")
    a.stamp_end(1, 4)
    a("K2_END:\ns_endpgm")
    a.desc("k2_kernel", 176, 176)
```

```python
from gen_common import *
from gen_g import *
P = lambda r: f"v[{r}:{r+1}]"
BIG = 0x7fffff00

def poll_loop(a, name, loads, regs, tmp):
    a(f"s_mov_b32 s27, 0\n{name}_POLL:")
    for x in loads: a(x)
    a("s_waitcnt vmcnt(0)")
    if len(regs) == 1: a(f"v_cmp_eq_u32 vcc, 0, v{regs[0]}")
    else:
        a(f"v_min_u32 v{tmp}, v{regs[0]}, v{regs[1]}")
        for r in regs[2:]: a(f"v_min_u32 v{tmp}, v{tmp}, v{r}")
        a(f"v_cmp_eq_u32 vcc, 0, v{tmp}")
    a(f"""
      s_add_u32 s27, s27, 1
      s_cmp_ge_u32 s27, 0x80000
      s_cbranch_scc1 {name}_GO
      s_nop 2
      s_cbranch_vccnz {name}_POLL
    {name}_GO:
    """)

def gen_gm(a):
    a.begin("gm_kernel")
    a("s_cmp_ge_u32 s2, 256\ns_cbranch_scc1 GM_END")
    a(a.stamp(0))
    a.load_args()
    tile_ids(a)
    SL = 252
    a(f"""
      s_mul_i32 s20, s5, {36*9216}
      s_add_u32 s20, s20, s7
      s_add_u32 s20, s20, {WINF}
      s_mul_i32 s21, s6, 36864
      s_add_u32 s21, s21, {X1F}           ; A soffset
      v_lshlrev_b32 v13, 3, v2            ; lane*8
      v_add_u32 v8, 18432, v13
      s_mul_i32 s28, s5, {64*9216}
      s_add_u32 s28, s28, {Z2F}
      s_lshl_b32 s29, s6, 17
      s_add_u32 s30, s29, {WSPF}
      s_waitcnt lgkmcnt(0)
    """)
    a.srd(8, "ws")
    AB, BB = 0, 144
    ACC2, ACC1, ST = 16, 88, 160
    def a_loads(ks):
        if ks >= 18: return []
        o = []
        for t in range(2):
            for h in range(2):
                r = AB + (ks*2+t)*4 + 2*h
                o.append(VM(f"buffer_load_dwordx2 a[{r}:{r+1}], {['v13','v8'][t]}, s[8:11], s21 offen offset:{(ks%4)*1024 + h*512}", ("A", ks, t, h)))
        if ks % 4 == 3: o.append("s_add_u32 s21, s21, 4096")
        return o
    def atags(ks): return [("A", ks, t, h) for t in range(2) for h in range(2)]
    seq = []
    seq += dma_tile(0, "s[8:11]", "s20")
    for ks in range(0, 4): seq += a_loads(ks)
    seq += dma_tile(1, "s[8:11]", "s20")
    for ks in range(4, 6): seq += a_loads(ks)
    seq += dma_tile(2, "s[8:11]", "s20")
    seq += dma_group(-1, "s[8:11]", "s20", 9)
    resolve(seq); emit(a, seq); pre = seq; seq = []
    a.srd(12, "ws", 64*9216, "s28"); a.srd(16, "ws", 131072, "s30"); a.srd(32, "wsp"); a.srd(36, "bsp")
    a(f"""
      v_mov_b32 v{SL}, v1
      v_add_u32 v{SL+1}, 36864, v1
      v_add_u32 v{SL+2}, {2*36864}, v1
      v_add_u32 v{SL+3}, {3*36864}, v1
      v_mov_b32 v4, 0x3f803f80
      v_mov_b32 v5, 0x3f803f80
      v_mov_b32 v6, 0x3f803f80
      v_mov_b32 v7, 0x3f803f80
      s_mov_b32 s40, {float_hex(C1)}
      s_mov_b32 s41, {float_hex(C1)}
      v_mov_b32 v14, {float_hex(C0)}
      v_mov_b32 v15, {float_hex(C0)}
      s_mul_i32 s22, s5, {144*8}
      s_add_u32 s22, s22, {UV2}
      v_lshlrev_b32 v9, 3, v3             ; n*8
      v_lshrrev_b32 v248, 2, v3
      v_lshlrev_b32 v248, 3, v248
      v_and_b32 v249, 3, v3
      v_add_u32 v248, v248, v249
      v_lshlrev_b32 v249, 12, v248
      v_lshl_add_u32 v249, v12, 4, v249
      v_add_u32 v250, 16384, v249
      s_lshl_b32 s31, s5, 8
      s_add_u32 s29, s29, s31
      s_lshl_b32 s31, s5, 13
      v_add_u32 v251, 4096, v1
    """)
    seq += [WAIT(btags(0)), "s_barrier", a.stamp(1)]
    seq += b_reads(0, BB, SL)
    def kstep(kk, extra=[], need_extra=[]):
        ks = kk % 18; ps = kk // 18
        o = []
        need = (atags(ks) if ps == 0 else []) + need_extra
        bar = (kk % 4 == 3 and kk < 35)
        if bar: need = need + btags((kk+1)//4)
        o.append(WAIT(need, lgkm=True))
        if bar: o.append("s_barrier")
        m = []
        for j in range(9):
            for t in range(2):
                A = f"a[{AB+(ks*2+t)*4}:{AB+(ks*2+t)*4+3}]"
                B = f"a[{BB+(kk%2)*36+4*j}:{BB+(kk%2)*36+4*j+3}]"
                r = (ACC2 if ps == 0 else ACC1) + (j*2+t)*4
                C = "0" if ks == 0 else f"v[{r}:{r+3}]"
                m.append(f"{MF} v[{r}:{r+3}], {A}, {B}, {C}" if ps == 0 else f"{MF} v[{r}:{r+3}], {B}, {A}, {C}")
        if ps == 0:
            for t in range(2):
                A = f"a[{AB+(ks*2+t)*4}:{AB+(ks*2+t)*4+3}]"
                r = ST + 4*t
                m.append(f"{MF} v[{r}:{r+3}], {A}, v[4:7], {'0' if ks == 0 else f'v[{r}:{r+3}]'}")
                r = ST + 8 + 4*t
                m.append(f"{MF} v[{r}:{r+3}], {A}, {A}, {'0' if ks == 0 else f'v[{r}:{r+3}]'}")
        f = (b_reads(kk+1, BB, SL) if kk < 35 else []) + dma_group(kk, "s[8:11]", "s20", 9) + (a_loads(ks+6) if ps == 0 else []) + extra
        o += interleave(m, f)
        return o
    UV = 176; WS = 216
    uv2 = [VM(f"buffer_load_dwordx2 v[{UV+2*j}:{UV+2*j+1}], v9, s[8:11], s22 offen offset:{128*j}", ("UV2", j)) for j in range(9)]
    wl = [VM(f"buffer_load_dwordx4 a[{WS+4*i}:{WS+4*i+3}], v{249+i%2}, s[32:35], s29 offen offset:{64*(i//2)} nt", ("WL", i)) for i in range(8)]
    for kk in range(18):
        ex = []
        if kk == 12: ex = uv2[:5]
        if kk == 13: ex = uv2[5:]
        if kk in (14, 15): ex = wl[4*(kk-14):4*(kk-14)+4]
        seq += kstep(kk, ex)
    seq += [a.stamp(2), "v_mul_u32_u24 v10, 80, v12", "s_nop 7"]
    for t in range(2):
        for r in range(4):
            seq.append(f"ds_bpermute_b32 v{ST+8+4*t+r}, v10, v{ST+8+4*t+r} offset:{4*r}")
    seq.append("s_waitcnt lgkmcnt(0)")
    s1 = [ST+i for i in range(8)]; s2 = [ST+8+i for i in range(8)]
    seq += ln_finish(s1, s2, 576, 8, None)
    ZR = [240, 244]; ZN = [242, 246]
    seq += ["v_and_b32 v10, 3, v3", "v_lshrrev_b32 v11, 2, v3", "v_lshl_add_u32 v11, v11, 4, v3", "v_lshlrev_b32 v11, 2, v11"]
    for t in range(2):
        seq += [f"v_mov_b32 v{ZR[t]}, v{ST+8+4*t}", f"v_mov_b32 v{ZN[t]}, v{ST+4*t}"]
    for r in range(1, 4):
        seq += [f"v_cmp_eq_u32 vcc, {r}, v10", "s_nop 1"]
        for t in range(2):
            seq += [f"v_cndmask_b32 v{ZR[t]}, v{ZR[t]}, v{ST+8+4*t+r}, vcc", f"v_cndmask_b32 v{ZN[t]}, v{ZN[t]}, v{ST+4*t+r}, vcc"]
    for r in ZR + ZN: seq.append(f"ds_bpermute_b32 v{r}, v11, v{r}")
    seq.append(WAIT([("UV2", j) for j in range(9)]))
    Z1S, Z2S, TMP, GR = 196, 204, 212, 220
    for j in range(9):
        xs = [ACC2 + j*8 + 2*i for i in range(4)]; ts = [TMP + 2*i for i in range(4)]
        uv = P(UV + 2*j)
        seq.append(f"v_mov_b32 v194, v{UV+2*j+1}")
        for i in range(4): seq.append(f"v_pk_fma_f32 {P(ts[i])}, {P(ST+2*i)}, {uv}, v[194:195] op_sel_hi:[1,0,0]")
        for i in range(4): seq.append(f"v_pk_fma_f32 {P(xs[i])}, {P(xs[i])}, {P(ST+8+2*i)}, {P(ts[i])}")
        seq += gelu_pairs(xs, ts)
        for i in range(4):
            if j == 0: seq += [f"v_pk_mul_f32 {P(Z2S+2*i)}, {P(xs[i])}, {P(xs[i])}"]
            elif j == 1: seq += [f"v_pk_add_f32 {P(Z1S+2*i)}, {P(xs[i])}, {P(ACC2+2*i)}", f"v_pk_fma_f32 {P(Z2S+2*i)}, {P(xs[i])}, {P(xs[i])}, {P(Z2S+2*i)}"]
            else: seq += [f"v_pk_add_f32 {P(Z1S+2*i)}, {P(xs[i])}, {P(Z1S+2*i)}", f"v_pk_fma_f32 {P(Z2S+2*i)}, {P(xs[i])}, {P(xs[i])}, {P(Z2S+2*i)}"]
    wst = [VM(f"buffer_store_dwordx4 a[{WS+4*i}:{WS+4*i+3}], {['v1','v251'][i//4]}, s[16:19], s31 offen offset:{1024*(i%4)} sc1", ("WS", i)) for i in range(8)]
    seq += ror_reduce([Z1S+i for i in range(8)] + [Z2S+i for i in range(8)], [GR+2*i for i in range(8)] + [GR+2*i+1 for i in range(8)])
    for i in range(8): seq.append(f"v_or_b32 v{GR+2*i+1}, 1, v{GR+2*i+1}")
    seq += [f"s_lshl_b32 s23, s6, 12", f"s_add_u32 s23, s23, {ST2}", "s_lshl_b32 s24, s5, 8", "s_add_u32 s24, s24, s23",
            "v_lshlrev_b32 v10, 6, v12", "v_lshl_add_u32 v11, v3, 8, v10",
            "v_cmp_eq_u32 vcc, 0, v3", f"v_mov_b32 v4, {BIG}", "s_nop 0", "v_cndmask_b32 v10, v4, v10, vcc",
            f"s_mul_i32 s22, s5, {144*4}", f"s_add_u32 s22, s22, {UV1}", "s_add_u32 s25, s22, 9216", "v_lshlrev_b32 v9, 4, v12", a.stamp(3)]
    gs = [VM(f"buffer_store_dwordx4 v[{GR+4*i}:{GR+4*i+3}], v10, s[8:11], s24 offen offset:{16*i} sc1", ("GS", i)) for i in range(4)]
    seq += gs
    U1 = 160
    uv1 = []
    for j in range(9):
        uv1.append(VM(f"buffer_load_dwordx4 v[{U1+8*j}:{U1+8*j+3}], v9, s[8:11], s22 offen offset:{64*j}", ("U1", j)))
        uv1.append(VM(f"buffer_load_dwordx4 v[{U1+8*j+4}:{U1+8*j+7}], v9, s[8:11], s25 offen offset:{64*j}", ("V1", j)))
    PL = 176; R1 = [196+i for i in range(8)]; R2 = [204+i for i in range(8)]
    pl = [f"buffer_load_dwordx4 v[{PL+4*i}:{PL+4*i+3}], v11, s[8:11], s23 offen offset:{16*i} sc1" for i in range(4)]
    bl = [VM("buffer_load_ushort v6, v5, s[36:39], s26 offen", "b0"), VM("buffer_load_ushort v7, v5, s[36:39], s26 offen offset:8", "b1")]
    chk = [f"v_min_u32 v4, v{PL+1}, v{PL+3}"] + [f"v_min_u32 v4, v4, v{PL+2*i+1}" for i in range(2, 8)] + ["v_cmp_eq_u32 vcc, 0, v4"]
    pollS = [WAIT([("PL", 3)])] + chk + ["s_mov_b32 s27, 0", "s_nop 3", "s_cbranch_vccz GM_S_GO", "GM_S_POLL:"] + pl + ["s_waitcnt vmcnt(0)"] + chk + \
            ["s_add_u32 s27, s27, 1", "s_cmp_ge_u32 s27, 0x80000", "s_cbranch_scc1 GM_S_GO", "s_nop 2", "s_cbranch_vccnz GM_S_POLL", "GM_S_GO:", a.stamp(4)]
    nrm = ror_reduce([PL+i for i in range(16)], [(R1 if i % 2 == 0 else R2)[i//2] for i in range(16)])[1:]
    nrm += ln_finish(R1, R2, FH, 8, None)
    nrm += ["s_mul_i32 s26, s6, 9216", "v_add_u32 v8, 8192, v1"]
    for j in range(9):
        for i in range(8): nrm.append(f"v_fma_f32 v{ACC2+8*j+i}, v{ACC2+8*j+i}, v{R2[i]}, v{R1[i]}")
        for i in range(4): nrm.append(f"v_cvt_pk_bf16_f32 v{ACC2+8*j+i}, v{ACC2+8*j+2*i}, v{ACC2+8*j+2*i+1}")
        nrm.append(VM(f"buffer_store_dwordx4 v[{ACC2+8*j}:{ACC2+8*j+3}], {['v1','v251','v8'][j//4]}, s[12:15], s26 offen offset:{1024*(j%4)} sc1", ("Z2", j)))
    KP, KN0, KN1 = 21, 23, 32
    per = (len(nrm) + (KN1-KN0) - 1) // (KN1-KN0)
    for kk in range(18, 36):
        ex = []; ne = []
        if kk == 18: ex = ["v_lshlrev_b32 v5, 1, v248", "s_lshl_b32 s26, s6, 6"] + bl
        if kk == KP+1: ex = wst; ne = [("WL", 7)]
        if kk == KP: ex = [VM(x, ("PL", i)) for i, x in enumerate(pl)]
        if kk == KN0: seq += pollS
        if KN0 <= kk < KN1: ex = nrm[per*(kk-KN0):per*(kk-KN0+1)]
        if kk >= 32: ex = uv1[5*(kk-32):5*(kk-32)+5]
        seq += kstep(kk, ex, ne)
    seq += [a.stamp(5), "s_barrier"]
    A2B, B2B, ACC = 72, 0, 16
    def a2_loads(k):
        r = A2B + (k % 8)*8
        return [VM(f"buffer_load_dwordx4 a[{r}:{r+3}], v1, s[16:19], s21 offen sc1", ("A2", k, 0)),
                VM(f"buffer_load_dwordx4 a[{r+4}:{r+7}], v1, s[16:19], s21 offen offset:1024 sc1", ("A2", k, 1)),
                "s_add_u32 s21, s21, 2048"]
    TM1 = 232
    def z1g(j):
        o = []
        xs = [ACC1 + j*8 + 2*i for i in range(4)]; ts = [TM1 + 2*i for i in range(4)]
        for i in range(4):
            o.append(f"v_pk_fma_f32 {P(ts[i])}, {P(U1+8*j+2*(i%2))}, {P(ZN[i//2])}, {P(U1+8*j+4+2*(i%2))} op_sel_hi:[1,0,1]")
        for i in range(4):
            o.append(f"v_pk_fma_f32 {P(xs[i])}, {P(xs[i])}, {P(ZR[i//2])}, {P(ts[i])} op_sel_hi:[1,0,1]")
        o += gelu_pairs(xs, ts)
        for i in range(4): o.append(f"v_cvt_pk_bf16_f32 v{U1+8*j+i}, v{xs[i]}, v{xs[i]+1}")
        return o
    J2 = 4
    seq += ["s_lshl_b32 s23, s5, 2", "s_add_u32 s23, s23, s3", "s_lshl_b32 s23, s23, 6", f"s_add_u32 s23, s23, {FLB}",
            "s_lshl_b32 s24, s6, 6", f"s_add_u32 s24, s24, {FLA}",
            "s_lshl_b32 s25, s4, 2", "s_add_u32 s25, s25, s23", "s_lshl_b32 s26, s5, 2", "s_add_u32 s26, s26, s24",
            f"v_mov_b32 v4, {BIG}", "v_writelane_b32 v4, s25, 0", "v_writelane_b32 v4, s26, 1", "v_mov_b32 v5, 1",
            WAIT([("Z2", 8)]), VM("buffer_store_dword v5, v4, s[8:11], 0 offen sc1", "FB"),
            "v_and_b32 v10, 1, v12", "v_cmp_eq_u32 vcc, 0, v10", "v_mov_b32 v10, s23", "v_mov_b32 v11, s24", "v_cndmask_b32 v10, v11, v10, vcc",
            "v_lshl_add_u32 v10, v3, 2, v10",
            "v_cmp_eq_u32 vcc, 0, v2", f"v_mov_b32 v13, {BIG}", "s_mov_b32 s21, 0", "s_mov_b32 s20, s7", "v_cndmask_b32 v13, v13, 0, vcc",
            WAIT([("V1", 8)])]
    for j in range(J2): seq += z1g(j)
    resolve(pre + seq); emit(a, seq)
    poll_loop(a, "GM_B", ["buffer_load_dword v11, v10, s[8:11], 0 offen sc1"], [11], None)
    a(a.stamp(6))
    pro = []
    n0 = 0
    pro += dma_tile(0, "s[12:15]", "s20", "sc1")
    for k in range(0, 4): pro += a2_loads(k)
    pro += dma_tile(1, "s[12:15]", "s20", "sc1")
    for k in range(4, 7): pro += a2_loads(k)
    pro += dma_tile(2, "s[12:15]", "s20", "sc1")
    pro += dma_group(-1, "s[12:15]", "s20", None, "sc1")
    for j in range(J2, 9): pro += z1g(j)
    for i in range(72): pro.append(f"v_mov_b32 v{ACC+i}, 0")
    pro += [WAIT(btags(0)), "s_barrier", a.stamp(7)]
    pro += b_reads(0, B2B, SL)
    def kstep2(k):
        o = []
        need = [("A2", k, 0), ("A2", k, 1)]
        if k % 4 == 3: need += btags((k+1)//4)
        o.append(WAIT(need, lgkm=True, key=k % 16))
        if k % 4 == 3: o.append("s_barrier")
        m = []
        for j in range(9):
            for t in range(2):
                r = ACC + (j*2+t)*4
                m.append(f"{MF} v[{r}:{r+3}], a[{B2B+(k%2)*36+4*j}:{B2B+(k%2)*36+4*j+3}], a[{A2B+(k%8)*8+4*t}:{A2B+(k%8)*8+4*t+3}], v[{r}:{r+3}]")
        f = b_reads(k+1, B2B, SL) + dma_group(k, "s[12:15]", "s20", None, "sc1") + a2_loads(k+7)
        return o + interleave(m, f)
    steps = [kstep2(k) for k in range(64)]
    keyed = resolve(pro + [x for s_ in steps for x in s_])
    emit(a, pro[n0:])
    if Asm.STAMPS: a.stamp_flush(2, 8)
    a("s_mov_b32 s23, 0\nG2_LOOP:")
    for k in range(16): emit(a, steps[k], keyed)
    a("s_add_u32 s23, s23, 1\ns_cmp_lt_u32 s23, 4\ns_cbranch_scc1 G2_LOOP")
    a(a.stamp(0))
    a(f"""
      v_lshlrev_b32 v4, 16, v6
      v_lshlrev_b32 v6, 16, v7
      s_lshr_b32 s22, s5, 1
      s_mul_i32 s22, s22, 9216
      s_mul_i32 s23, s6, {2*73728}
      s_add_u32 s22, s22, s23
      s_add_u32 s22, s22, {PF}            ; + tau*73728
      s_and_b32 s23, s5, 1
      s_lshl_b32 s28, s23, 12
      s_add_u32 s28, s28, s22
      s_add_u32 s29, s28, 73728
      s_lshl_b32 s23, s23, 3
      s_add_u32 s30, s22, s23
      s_add_u32 s30, s30, 8192
      s_add_u32 s31, s30, 73728
      s_lshr_b32 s24, s6, 1
      s_lshl_b32 s24, s24, 4
      s_add_u32 s24, s24, s5
      s_lshl_b32 s24, s24, 3
      s_and_b32 s25, s6, 1
      s_lshl_b32 s25, s25, 2
      s_add_u32 s24, s24, s25
      s_add_u32 s24, s24, {FLP}
    """)
    T = 88; O = 96
    seq = []
    for j in range(9):
        for t in range(2):
            b = P(4 if t == 0 else 6)
            for h in range(2):
                x = ACC + (j*2+t)*4 + 2*h; z = U1 + 8*j + 2*t + h; tt = T + 2*((2*t+h) % 4)
                o = O + ((j//2)*2 + t)*4 + (j%2)*2 + h
                seq += [f"v_lshlrev_b32 v{tt}, 16, v{z}", f"v_and_b32 v{tt+1}, 0xffff0000, v{z}",
                        f"v_pk_add_f32 {P(x)}, {P(x)}, {b} op_sel_hi:[1,0]", f"v_pk_mul_f32 {P(x)}, {P(x)}, {P(tt)}",
                        f"v_cvt_pk_bf16_f32 v{o}, v{x}, v{x+1}"]
        if j % 2 == 1:
            for t in range(2):
                o = O + ((j//2)*2 + t)*4
                seq.append(VM(f"buffer_store_dwordx4 v[{o}:{o+3}], v1, s[8:11], s{28+t} offen offset:{1024*(j//2)} sc1", ("PS", j, t)))
    for t in range(2):
        o = O + (8 + t)*4
        seq.append(VM(f"buffer_store_dwordx2 v[{o}:{o+1}], v1, s[8:11], s{30+t} offen sc1", ("PS", 9, t)))
    seq += f"""
      s_and_b32 s4, s2, 7
      s_lshl_b32 s4, s4, 2
      s_lshr_b32 s5, s2, 3
      s_and_b32 s6, s5, 3
      s_add_u32 s4, s4, s6                ; mb
      s_lshr_b32 s5, s5, 2                ; nb
      s_mul_i32 s5, s5, 9
      s_lshr_b32 s5, s5, 1                ; n0
      s_mul_i32 s20, s4, {4*73728}
      s_mul_i32 s6, s3, {18*1024}
      s_add_u32 s20, s20, s6
      s_add_u32 s20, s20, {PF}            ; P soffset
      s_mul_i32 s21, s3, {18*36864}
      s_lshl_b32 s6, s5, 10
      s_add_u32 s21, s21, s6
      s_add_u32 s21, s21, {WOUTF}         ; W soffset
      s_lshl_b32 s23, s4, 7
      s_lshl_b32 s6, s3, 5
      s_add_u32 s23, s23, s6
      s_add_u32 s23, s23, {FLP}           ; poll address
      v_and_b32 v10, 7, v2
      v_lshlrev_b32 v10, 2, v10
      s_waitcnt lgkmcnt(0)""".split("\n")
    PV, LW = 240, 244
    for u in range(4):
        seq += [f"s_add_u32 s6, s3, {u}", "s_and_b32 s6, s6, 3", "s_mul_i32 s7, s6, 73728", f"v_add_u32 v{PV+u}, s7, v1"]
        if u > 0: seq += ["s_mul_i32 s7, s6, 15360", f"s_add_u32 s7, s7, {(u-1)*5120}", f"v_add_u32 v{LW+u}, s7, v1"]
    DEP = 6; AC3 = 16
    def w_loads(k):
        if k >= 18: return []
        r = (k % DEP)*36
        return [VM(f"buffer_load_dwordx4 a[{r+16+4*j}:{r+19+4*j}], {'v1' if j < 4 else 'v251'}, s[8:11], s21 offen offset:{1024*(j%4)}", ("W", k, j)) for j in range(5)] + ["s_add_u32 s21, s21, 36864"]
    def p_loads(k):
        if k >= 18: return []
        r = (k % DEP)*36
        o = [VM(f"buffer_load_dwordx4 a[{r+4*u}:{r+4*u+3}], v{PV+u}, s[8:11], s20 offen offset:{1024*(k%4)} sc1", ("P", k, u)) for u in range(4)]
        if k % 4 == 3: o.append("s_add_u32 s20, s20, 4096")
        return o
    NPRE = 2
    for k in range(NPRE): seq += w_loads(k)
    seq += [a.stamp(1), WAIT([("PS", 9, 1)]), VM("buffer_store_dword v5, v13, s[8:11], s24 offen sc1", "FP"), a.stamp(2), "s_barrier"]
    for k in range(NPRE, DEP-1): seq += w_loads(k)
    XR, GB = 140, 152
    seq += [f"s_lshl_b32 s22, s4, 2", "s_add_u32 s22, s22, s3", "s_mul_i32 s25, s22, 18432", "s_lshl_b32 s24, s5, 9", "s_add_u32 s25, s25, s24", f"s_add_u32 s25, s25, {X1F}",
            "v_lshlrev_b32 v9, 3, v2", "s_lshl_b32 s24, s5, 6", f"s_add_u32 s24, s24, {MOD + 5*576*4}", "v_lshlrev_b32 v8, 4, v12"]
    for j in range(5):
        seq.append(VM(f"buffer_load_dwordx2 v[{XR+2*j}:{XR+1+2*j}], v9, s[8:11], s25 offen offset:{512*j}", ("X", j)))
        seq.append(VM(f"buffer_load_dwordx4 v[{GB+4*j}:{GB+3+4*j}], v8, s[8:11], s24 offen offset:{64*j}", ("G", j)))
    resolve(seq); emit(a, seq)
    a.srd(12, "out")
    poll_loop(a, "GM_P", ["buffer_load_dword v11, v10, s[8:11], s23 offen sc1"], [11], None)
    a(a.stamp(3))
    seq = []
    for k in range(DEP-1): seq += p_loads(k)
    for k in range(18):
        seq.append(WAIT([("P", k, 3)]))
        if k == 0: seq.append(a.stamp(4))
        r = (k % DEP)*36
        m = []
        for u in range(4):
            for j in range(5):
                c = AC3 + (u*5+j)*4
                m.append(f"{MF} v[{c}:{c+3}], a[{r+16+4*j}:{r+19+4*j}], a[{r+4*u}:{r+4*u+3}], {'0' if k == 0 else f'v[{c}:{c+3}]'}")
        seq += interleave(m, w_loads(k+DEP-1) + p_loads(k+DEP-1))
    seq += [a.stamp(5), "s_mul_i32 s7, s3, 15360", "v_add_u32 v11, s7, v1", "s_nop 6"]
    for u in range(1, 4):
        for j in range(5):
            c = AC3 + (u*5+j)*4
            seq.append(f"ds_write_b128 v{LW+u}, v[{c}:{c+3}] offset:{1024*j}")
    seq += ["v_mul_u32_u24 v4, 1152, v248",
            "v_lshl_add_u32 v4, v12, 3, v4", "s_lshr_b32 s25, s22, 1", f"s_mul_i32 s25, s25, {32*1152}", "s_and_b32 s26, s22, 1", f"s_mul_i32 s26, s26, {4*1152}",
            "s_add_u32 s25, s25, s26", "s_lshl_b32 s26, s5, 5", "s_add_u32 s25, s25, s26",
            "s_waitcnt lgkmcnt(0)", "s_barrier"]
    for i in range(15):
        c = AC3 + 20 + 4*i
        seq.append(f"ds_read_b128 v[{c}:{c+3}], v11 offset:{1024*i}")
    seq += ["s_waitcnt lgkmcnt(0)"]
    for j in range(5):
        for h in range(2):
            x = AC3 + 4*j + 2*h
            seq += [f"v_pk_add_f32 {P(x)}, {P(x)}, {P(x+20)}", f"v_pk_add_f32 {P(x+40)}, {P(x+40)}, {P(x+60)}",
                    f"v_lshlrev_b32 v{x+20}, 16, v{XR+2*j+h}", f"v_and_b32 v{x+21}, 0xffff0000, v{XR+2*j+h}",
                    f"v_pk_add_f32 {P(x)}, {P(x)}, {P(x+40)}",
                    f"v_pk_fma_f32 {P(x)}, {P(x)}, {P(GB+4*j+2*h)}, {P(x+20)}",
                    f"v_cvt_pk_bf16_f32 v{XR+2*j+h}, v{x}, v{x+1}"]
        seq.append(VM(f"buffer_store_dwordx2 v[{XR+2*j}:{XR+1+2*j}], v4, s[12:15], s25 offen offset:{32*j}", ("O", j)))
    resolve(seq); emit(a, seq)
    a(a.stamp(6))
    a.stamp_end(3, 8)
    a("GM_END:\ns_endpgm")
    a.desc("gm_kernel", 256+248, 256)
```

```python
import sys
from gen_common import *
from gen_k1 import *
from gen_k2 import *
parts = sys.argv[2].split(",") if len(sys.argv) > 2 else ["k1","k2","gm"]
a = Asm()
Asm.STAMPS = len(sys.argv) > 3 and sys.argv[3] == 'stamp'
hdr = open("adaLN_cond__ssm_conv_h3__mixer_gmlp__prompt.s.ref").read().split("; Override launch")[0]
a.raw(hdr.rstrip())
launch = {"k1": f"; @launch kernel=k1_kernel grid=({K1_GRID},1,1) block=(256,1,1) lds=512",
          "k2": f"; @launch kernel=k2_kernel grid=({K2_GRID},1,1) block=(512,1,1) lds={K2_LDS}"}
gens = {"k1": gen_k1, "k2": gen_k2}
try:
    from gen_g import *
    launch.update(G_LAUNCH); gens.update(G_GENS)
except ImportError:
    pass
from gen_m import *
launch["gm"] = f"; @launch kernel=gm_kernel grid=(256,1,1) block=(256,1,1) lds={G_LDS}"
gens["gm"] = gen_gm
for p in parts: a.raw(launch[p])
a.raw('.amdgcn_target "amdgcn-amd-amdhsa--gfx950"')
for p in parts: gens[p](a)
open(sys.argv[1], "w").write("\n".join(a.L) + "\n")
```

```python
S, D, F, FH = 2048, 576, 4608, 2304
UR    = 0x0000000
ST1   = 0x0480000
MOD   = 0x0488000
MODH  = 0x048C000
UV1   = 0x0490000
UV2   = 0x0495000
ST2   = 0x04A0000
FLF   = 0x04E0000
FLB   = 0x0780000
FLP   = 0x07A0000
X1F   = 0x0500000
WINF  = 0x0800000
WOUTF = 0x0E00000
WSPF  = 0x1100000
Z1F   = 0x1900000
QP    = 0x1900000
Z2F   = 0x2200000
PF    = 0x2B00000
STAMPB = 0x8000000
WS_SIZE = 0x10000000
KA = dict(q=0, k=8, v=16, shk=24, ssmk=32, ssmD=40, bx=48, win=56, wsp=64, bsp=72, wout=80, c=88, wmod=96, out=104, dbg=112, ws=120)
SZ = dict(q=S*D*2, k=S*D*2, v=S*D*2, shk=D*8, ssmk=D*S*2, ssmD=D*2, win=D*F*2, wsp=S*S*2, bsp=S*2, wout=FH*D*2, c=D*2, wmod=D*6*D*2, out=S*D*2, ws=WS_SIZE, dbg=256)

class Asm:
    def __init__(self):
        self.L = []
    def __call__(self, s):
        for line in s.split("\n"):
            line = line.strip()
            if not line or line == ";": continue
            self.L.append(line if line.endswith(":") or line.startswith(".") else "  " + line)
    def raw(self, s): self.L.append(s)
    def begin(self, name):
        self.raw(f".text\n.globl {name}\n.p2align 8\n.type {name},@function\n{name}:")
    def desc(self, name, vgpr, accum, sgpr=96):
        self.raw(f""".section .rodata,"a"
.p2align 6
.amdhsa_kernel {name}
  .amdhsa_next_free_vgpr {vgpr}
  .amdhsa_next_free_sgpr {sgpr}
  .amdhsa_accum_offset {accum}
  .amdhsa_group_segment_fixed_size 0
  .amdhsa_kernarg_size 128
  .amdhsa_user_sgpr_count 2
  .amdhsa_user_sgpr_kernarg_segment_ptr 1
  .amdhsa_system_sgpr_workgroup_id_x 1
.end_amdhsa_kernel""")
    STAMPS = False
    def stamp(self, i):
        return f"s_memrealtime s[{48+2*i}:{49+2*i}]" if Asm.STAMPS else "; "
    def stamp_end(self, kidx, n, srd="s[8:11]"):
        if not Asm.STAMPS: return
        self("s_mov_b64 exec, -1")
        self("s_waitcnt vmcnt(0)")
        self(self.stamp(n-1))
        self("s_waitcnt lgkmcnt(0)")
        self(f"v_lshrrev_b32 v1, 6, v0\nv_lshlrev_b32 v1, 6, v1\ns_lshl_b32 s46, s2, 9\ns_add_u32 s46, s46, {STAMPB + kidx*0x80000}")
        self("v_and_b32 v2, 63, v0\nv_cmp_eq_u32 vcc, 0, v2\ns_and_saveexec_b64 s[44:45], vcc")
        for i in range(n):
            self(f"v_mov_b32 v2, s{48+2*i}\nv_mov_b32 v3, s{49+2*i}\nbuffer_store_dwordx2 v[2:3], v1, {srd}, s46 offen offset:{8*i}\ns_nop 1")
    def stamp_flush(self, kidx, n, srd="s[8:11]"):
        self("s_waitcnt lgkmcnt(0)")
        self(f"v_lshrrev_b32 v232, 6, v0\nv_lshlrev_b32 v232, 6, v232\ns_lshl_b32 s46, s2, 9\ns_add_u32 s46, s46, {STAMPB + kidx*0x80000}")
        self("v_and_b32 v234, 63, v0\nv_cmp_eq_u32 vcc, 0, v234\ns_and_saveexec_b64 s[44:45], vcc")
        for i in range(n):
            self(f"v_mov_b32 v234, s{48+2*i}\nv_mov_b32 v235, s{49+2*i}\nbuffer_store_dwordx2 v[234:235], v232, {srd}, s46 offen offset:{8*i}\ns_nop 1")
        self("s_mov_b64 exec, -1\ns_nop 4")
    def load_args(self):
        self("s_load_dwordx16 s[64:79], s[0:1], 0\ns_load_dwordx16 s[80:95], s[0:1], 64")
    def ptr(self, name):
        return 64 + KA[name] // 4
    def srd(self, d, name, size=None, off=None):
        p = self.ptr(name)
        size = SZ[name] if size is None else size
        if off is None:
            self(f"s_mov_b32 s{d}, s{p}\ns_and_b32 s{d+1}, s{p+1}, 0xffff")
        else:
            self(f"s_add_u32 s{d}, s{p}, {off}\ns_addc_u32 s{d+1}, s{p+1}, 0\ns_and_b32 s{d+1}, s{d+1}, 0xffff")
        self(f"s_mov_b32 s{d+2}, {size}\ns_mov_b32 s{d+3}, 0x20000")

def vr(a, n=1, p="v"):
    return f"{p}{a}" if n == 1 else f"{p}[{a}:{a+n-1}]"
def ar(a, n=1): return vr(a, n, "a")
def sr(a, n=1): return vr(a, n, "s")

def interleave(main, fill, start=0, per=None):
    out = []
    n = len(main) - start
    k = 0
    for i, m in enumerate(main):
        out.append(m)
        if i >= start:
            if per is None:
                tgt = (len(fill) * (i - start + 1) + n - 1) // n
            else:
                tgt = min(len(fill), per * (i - start + 1))
            while k < tgt:
                out.append(fill[k]); k += 1
    out += fill[k:]
    return out

import struct
def float_hex(x): return hex(struct.unpack("<I", struct.pack("<f", x))[0])
```

```python
from gen_common import *
F_GRID = 256
CH_LDS = 25792; KCS = 4160; URO = 16640; URS = 4576; YO = 4*CH_LDS; YS = 9216
QO = YO + 4*YS
F_LDS = QO + 16384 + 16
BIG = 0x7fffff00
FU, FH2, FM = FLF, FLF + 576*128, FLF + 720*128
CNT = QO + 16384

def poll(a, name, addr, dst, nonce="s42"):
    a(f"""
      s_mov_b32 s43, 0
    {name}_POLL:
      buffer_load_dword {dst}, {addr}, s[8:11], 0 offen sc1
      s_waitcnt vmcnt(0)
      v_cmp_ne_u32 vcc, {nonce}, {dst}
      s_add_u32 s43, s43, 1
      s_cmp_ge_u32 s43, 0x80000
      s_cbranch_scc1 {name}_GO
      s_nop 2
      s_cbranch_vccnz {name}_POLL
    {name}_GO:
    """)
def get_nonce(a, name, tmp):
    a(f"""
      s_mov_b32 s43, 0
      v_mov_b32 {tmp}, 0
    {name}_NP:
      buffer_load_dword {tmp}, {tmp}, s[28:31], 0 offen sc1
      s_waitcnt vmcnt(0)
      v_readfirstlane_b32 s42, {tmp}
      s_add_u32 s43, s43, 1
      s_cmp_ge_u32 s43, 0x80000
      s_cbranch_scc1 {name}_NG
      s_cmp_eq_u32 s42, 0
      s_cbranch_scc1 {name}_NP
    {name}_NG:
    """)
def red32(a, r, t):
    a(f"""
      s_nop 1
      v_add_f32_dpp {r}, {r}, {r} quad_perm:[1,0,3,2] row_mask:0xf bank_mask:0xf
      s_nop 1
      v_add_f32_dpp {r}, {r}, {r} quad_perm:[2,3,0,1] row_mask:0xf bank_mask:0xf
      s_nop 1
      v_add_f32_dpp {r}, {r}, {r} row_half_mirror row_mask:0xf bank_mask:0xf
      s_nop 1
      v_add_f32_dpp {r}, {r}, {r} row_mirror row_mask:0xf bank_mask:0xf
      s_nop 0
      v_mov_b32 {t}, {r}
      s_nop 1
      v_permlane16_swap_b32 {r}, {t}
      s_nop 1
      v_add_f32 {r}, {r}, {t}
    """)
def wsp_loads(a, R):
    a.srd(12, "wsp")
    a(f"""
      s_lshr_b32 s18, s2, 2               ; blk
      s_and_b32 s19, s2, 3
      s_lshl_b32 s19, s19, 2
      s_and_b32 s16, s3, 3
      s_add_u32 s19, s19, s16             ; ks/4
      v_lshrrev_b32 v6, 2, v4
      v_lshlrev_b32 v6, 3, v6
      v_and_b32 v7, 3, v4
      v_add_u32 v6, v6, v7
      v_lshlrev_b32 v6, 12, v6
      v_lshl_add_u32 v6, v5, 4, v6
      v_add_u32 v7, 16384, v6
      s_lshl_b32 s18, s18, 17
      s_lshl_b32 s16, s19, 8
      s_add_u32 s16, s16, s18
      s_lshl_b32 s17, s19, 13
      s_add_u32 s17, s17, s18
      s_add_u32 s17, s17, {WSPF}
    """)
    for i in range(8):
        a(f"buffer_load_dwordx4 v[{R+4*i}:{R+4*i+3}], {['v6','v7'][i%2]}, s[12:15], s16 offen offset:{64*(i//2)} nt")
    a("v_add_u32 v6, 4096, v3")
def wsp_stores(a, R):
    for i in range(8):
        a(f"s_waitcnt vmcnt(7)")
        a(f"buffer_store_dwordx4 v[{R+4*i}:{R+4*i+3}], {['v3','v6'][i//4]}, s[8:11], s17 offen offset:{1024*(i%4)} sc1")

def gen_f(a):
    a.begin("f_kernel")
    a(f"s_cmp_ge_u32 s2, {F_GRID}\ns_cbranch_scc1 F_END")
    a(a.stamp(0))
    a.load_args()
    a("""
      s_memrealtime s[40:41]
      v_lshrrev_b32 v1, 6, v0
      v_and_b32 v2, 63, v0                ; lane
      v_readfirstlane_b32 s3, v1          ; wave
      v_lshlrev_b32 v3, 4, v2             ; lane*16
      v_and_b32 v4, 15, v2                ; l&15
      v_lshrrev_b32 v5, 4, v2             ; g
      s_and_b32 s4, s2, 7
      s_mul_i32 s4, s4, 18
      s_lshr_b32 s5, s2, 3
      s_add_u32 s4, s4, s5
      s_waitcnt lgkmcnt(0)
    """)
    a.srd(8, "ws"); a.srd(28, "dbg", 256)
    a(f"v_cmp_eq_u32 vcc, 0, v2\nv_mov_b32 v122, {BIG}\ns_nop 0\nv_cndmask_b32 v122, v122, 0, vcc")
    a(f"""
      s_cmp_lg_u32 s2, 255
      s_cbranch_scc1 F_NOTAG
      s_cmp_lg_u32 s3, 0
      s_cbranch_scc1 F_NOTAG
      s_mul_i32 s41, s41, 0x9e3779b1
      s_xor_b32 s40, s40, s41
      s_or_b32 s40, s40, 1
      v_mov_b32 v8, s40
      v_lshlrev_b32 v9, 8, v2
      buffer_store_dword v8, v9, s[28:31], 0 offen sc1
    F_NOTAG:
      s_cmp_ge_u32 s2, 144
      s_cbranch_scc1 F_OTHER
    """)
    a(f"""
      s_and_b32 s5, s4, 15                ; rb
      s_lshr_b32 s6, s4, 4                ; cb
      v_lshrrev_b32 v6, 5, v0             ; rg 0..15
      v_and_b32 v7, 31, v0                ; cp
      s_lshl_b32 s7, s5, 7
      v_lshl_add_u32 v8, v6, 3, s7        ; s0
      s_lshl_b32 s7, s6, 7
      v_lshl_add_u32 v9, v7, 2, s7
      v_mul_u32_u24 v10, 1152, v8
      v_add_u32 v10, v10, v9              ; row s0
      v_subrev_u32 v11, 4608, v10         ; row s0-4
      v_add_u32 v12, 4608, v10            ; row s0+4
      v_lshlrev_b32 v13, 2, v9
    """)
    a.srd(12, "k"); a.srd(16, "v"); a.srd(20, "shk"); a.srd(24, "q"); a.srd(32, "ssmk")
    KR, VR, QR, SQ, TK = 20, 32, 104, 124, 144
    a("buffer_load_dwordx4 v[16:19], v13, s[20:23], 0 offen")
    for i in range(12):
        a(f"buffer_load_dword v{KR+i}, {['v11','v10','v12'][i//4]}, s[12:15], 0 offen offset:{1152*(i%4)} nt")
        if i >= 3: a(f"buffer_load_dword v{VR+i-3}, {['v11','v10','v12'][i//4]}, s[16:19], 0 offen offset:{1152*(i%4)} nt")
    def zero_gm():
        a(f"""
          v_mov_b32 v120, 0
          v_lshlrev_b32 v121, 1, v0
          s_lshl_b32 s46, s2, 10
          s_add_u32 s46, s46, {ST2}
          buffer_store_short v120, v121, s[8:11], s46 offen
          s_and_b32 s46, s3, 3
          s_lshl_b32 s47, s2, 2
          s_add_u32 s46, s46, s47
          s_lshl_b32 s46, s46, 7
          s_lshr_b32 s47, s3, 2
          s_mul_i32 s47, s47, {FLP-FLB}
          s_add_u32 s46, s46, s47
          s_add_u32 s46, s46, {FLB}
          buffer_store_dword v120, v122, s[8:11], s46 offen
        """)
    a(f"""
      s_and_b32 s36, s3, 3
      s_mul_i32 s38, s36, {CH_LDS}
      s_lshl_b32 s7, s4, 2
      s_add_u32 s7, s7, s36               ; channel
      s_lshl_b32 s44, s7, 12
      s_lshl_b32 s45, s7, 13
      s_add_u32 s45, s45, {UR}
      v_sub_u32 v13, 15, v6
      v_and_b32 v11, 7, v7
      v_xor_b32 v13, v13, v11
      v_lshlrev_b32 v13, 4, v13
      v_lshl_add_u32 v13, v7, 10, v13
      v_add_u32 v13, {YO}, v13
      v_mov_b32 v14, 0
      v_mov_b32 v15, {CNT}
      ds_write_b32 v15, v14
      s_barrier
      s_cmp_lt_u32 s3, 4
      s_cbranch_scc1 F_P1_W
      s_lshl_b32 s7, s5, 7
      s_lshl_b32 s46, s36, 5
      s_add_u32 s7, s7, s46
      v_add_u32 v10, s7, v5
      v_mul_u32_u24 v10, 1152, v10
      s_lshl_b32 s7, s6, 7
      v_lshl_add_u32 v10, v4, 3, v10
      s_lshl_b32 s46, s4, 4
      s_lshl_b32 s47, s36, 2
      s_add_u32 s46, s46, s47
      v_lshrrev_b32 v14, 5, v2
      v_add_u32 v14, s46, v14
      v_mul_u32_u24 v15, 1152, v14
      v_lshl_add_u32 v15, v7, 2, v15
    """)
    for i in range(4): a(f"buffer_load_dwordx4 v[{TK+4*i}:{TK+3+4*i}], v3, s[32:35], s44 offen offset:{1024*i}")
    for i in range(8):
        a(f"buffer_load_dwordx2 v[{QR+2*i}:{QR+1+2*i}], v10, s[24:27], s7 offen")
        if i < 7: a("s_add_u32 s7, s7, 4608")
    a("s_waitcnt vmcnt(12)\ns_branch F_P1_C\nF_P1_W:\ns_waitcnt vmcnt(0)\nF_P1_C:")
    a(a.stamp(1))
    SH, KU, VU = 50, 58, 82
    for j in range(4):
        op = "v_lshlrev_b32 {d}, 16, {s}" if j % 2 == 0 else "v_and_b32 {d}, 0xffff0000, {s}"
        a(op.format(d=f"v{SH+2*j}", s=f"v{16+j//2}"))
        a(op.format(d=f"v{SH+1+2*j}", s=f"v{18+j//2}"))
    for i in range(12): a(f"v_lshlrev_b32 v{KU+2*i}, 16, v{KR+i}\nv_and_b32 v{KU+1+2*i}, 0xffff0000, v{KR+i}")
    for i in range(9): a(f"v_lshlrev_b32 v{VU+2*i}, 16, v{VR+i}\nv_and_b32 v{VU+1+2*i}, 0xffff0000, v{VR+i}")
    RES = 20
    for i in range(9):
        d = f"v[{RES+2*i}:{RES+1+2*i}]"
        kk = lambda j: f"v[{KU+2*(i+3-j)}:{KU+1+2*(i+3-j)}]"
        a(f"v_pk_mul_f32 {d}, {kk(3)}, v[{SH+6}:{SH+7}]")
        for j in (2, 1, 0): a(f"v_pk_fma_f32 {d}, {kk(j)}, v[{SH+2*j}:{SH+1+2*j}], {d}")
        a(f"v_pk_mul_f32 {d}, {d}, v[{VU+2*i}:{VU+1+2*i}]")
    o = 60
    for ch in range(2):
        for p in range(2):
            top = 7 + p
            for dd in range(4):
                a(f"v_cvt_pk_bf16_f32 v{o+dd}, v{RES+2*(top-2*dd)+ch}, v{RES+2*(top-2*dd-1)+ch}")
            a(f"ds_write_b128 v13, v[{o}:{o+3}] offset:{(2*ch+p)*256}")
            o += 4
    a(f"""
      v_lshrrev_b32 v11, 4, v0
      v_xor_b32 v12, v4, v1
      v_lshlrev_b32 v12, 4, v12
      v_lshl_add_u32 v12, v11, 8, v12
      v_add_u32 v12, {YO}, v12            ; even i
      v_xor_b32 v8, 64, v12
      v_lshlrev_b32 v11, 12, v11
      v_lshl_add_u32 v11, v4, 4, v11
      s_lshl_b32 s46, s6, 19
      s_sub_u32 s47, 15, s5
      s_lshl_b32 s47, s47, 8
      s_add_u32 s46, s46, s47
      s_add_u32 s46, s46, {UR}
      s_waitcnt lgkmcnt(0)
      s_barrier
      s_cmp_ge_u32 s3, 4
      s_cbranch_scc1 F_HELP
    """)
    for i in range(8): a(f"ds_read_b128 v[{60+4*i}:{63+4*i}], {['v12','v8'][i%2]} offset:{4096*i}")
    for i in range(8):
        a(f"s_waitcnt lgkmcnt({7-i})")
        a(f"buffer_store_dwordx4 v[{60+4*i}:{63+4*i}], v11, s[8:11], s46 offen sc1")
        if i < 7: a(f"s_add_u32 s46, s46, {16*4096}")
    get_nonce(a, "F_C", "v14")
    a(f"""
      {a.stamp(2)}
      v_mov_b32 v14, s42
      s_lshr_b32 s7, s44, 5
      s_add_u32 s7, s7, {FU}
      buffer_store_dword v14, v122, s[8:11], s7 offen sc1
    """)
    for t in range(4):
        a(f"s_add_u32 m0, s38, {t*KCS + 60 - 4*t}\ns_nop 0")
        for i in range(4):
            a(f"buffer_load_dwordx4 v3, s[32:35], s44 offen offset:{1024*i} lds")
    zero_gm()
    p = a.ptr("ssmD"); w = a.ptr("ws")
    a(f"""
      s_lshl_b32 s7, s4, 3
      s_load_dwordx2 s[20:21], s[{p}:{p+1}], s7
      s_lshl_b32 s7, s6, 6
      v_add_u32 v14, s7, v2
      v_lshlrev_b32 v14, 7, v14
      v_add_u32 v14, {FU}, v14
      v_mov_b32 v8, 0
      v_mov_b32 v9, 0
      v_mov_b32 v10, 0
      v_mov_b32 v11, 0
      v_mul_u32_u24 v12, {KCS}, v5
      v_lshl_add_u32 v12, v4, 2, v12
      v_add_u32 v12, s38, v12
      v_add_u32 v13, v4, v5
      v_lshrrev_b32 v16, 5, v2
      v_mul_u32_u24 v16, {URS}, v16
      v_and_b32 v15, 31, v2
      v_lshl_add_u32 v16, v15, 4, v16
      v_add_u32 v16, s38, v16
      v_cmp_gt_u32 vcc, 15, v13
      s_and_saveexec_b64 s[46:47], vcc
      ds_write_b32 v12, v8
      s_mov_b64 exec, s[46:47]
      v_cmp_gt_u32 vcc, 28, v15
      s_and_saveexec_b64 s[46:47], vcc
      ds_write_b128 v16, v[8:11] offset:{URO+4096}
      s_mov_b64 exec, s[46:47]
      v_and_b32 v12, 3, v4
      v_mul_u32_u24 v12, {KCS}, v12
      v_lshrrev_b32 v13, 2, v4
      v_add_u32 v13, v13, v5
      v_lshl_add_u32 v12, v13, 4, v12
      v_add_u32 v12, s38, v12
      v_lshrrev_b32 v13, 3, v4            ; p
      v_mul_u32_u24 v13, {URS}, v13
      v_lshl_add_u32 v13, v5, 4, v13
      v_and_b32 v16, 7, v4                ; a'
      v_lshlrev_b32 v16, 6, v16
      v_sub_u32 v13, v13, v16
      s_add_u32 s7, s38, {URO + 448}
      v_add_u32 v13, s7, v13
      v_and_b32 v6, 7, v4
      v_mul_u32_u24 v6, 144, v6
      v_lshl_add_u32 v6, v5, 5, v6
      v_lshrrev_b32 v15, 3, v4
      v_lshl_add_u32 v6, v15, 4, v6
      s_mul_i32 s7, s3, {YS}
      s_add_u32 s7, s7, {YO}
      v_add_u32 v6, s7, v6
      s_waitcnt lgkmcnt(0)
      s_cmp_ge_u32 s3, 2
      s_cselect_b32 s7, s21, s20
      s_and_b32 s22, s3, 1
      s_lshl_b32 s22, s22, 4
      s_lshr_b32 s7, s7, s22
      s_and_b32 s7, s7, 0xffff
      v_mov_b32 v15, s7
      v_lshl_add_u32 v16, v5, 2, v4       ; m + 4g
    """)
    for dd in range(4):
        a(f"v_cmp_eq_u32 vcc, {15-dd}, v16\ns_nop 1\nv_cndmask_b32 v{8+dd}, 0, v15, vcc")
    poll(a, "F_U", "v14", "v15")
    a(a.stamp(3))
    for p_ in range(2):
        a(f"s_add_u32 m0, s38, {URO + p_*URS}")
        if p_ == 1: a("s_add_u32 s45, s45, 4096")
        else: a("s_nop 0")
        for i in range(4):
            a(f"buffer_load_dwordx4 v3, s[8:11], s45 offen offset:{1024*i} sc1 lds")
    ACC = 16; FR = [48, 112]
    def reads(buf, r, which="AB"):
        out = []
        for i in range(8):
            if "B" in which: out.append(f"ds_read_b128 v[{FR[buf]+32+4*i}:{FR[buf]+35+4*i}], v13 offset:{64*r + 512*(7-i)}")
            if "A" in which: out.append(f"ds_read_b128 v[{FR[buf]+4*i}:{FR[buf]+3+4*i}], v12 offset:{64*r + 512*i}")
        return out
    def mfmas(buf):
        out = []
        for p_ in range(8):
            for q_ in range(8 - p_):
                j = p_ + q_
                out.append(f"v_mfma_f32_16x16x32_bf16 v[{ACC+4*j}:{ACC+4*j+3}], v[{FR[buf]+4*p_}:{FR[buf]+4*p_+3}], v[{FR[buf]+32+4*q_}:{FR[buf]+35+4*q_}], v[{ACC+4*j}:{ACC+4*j+3}]")
        return out
    for x in reads(0, 0, "A"): a(x)
    a("s_waitcnt vmcnt(0) lgkmcnt(0)")
    a(a.stamp(4))
    for x in reads(0, 0, "B"): a(x)
    a("s_waitcnt lgkmcnt(0)")
    for q_ in range(8):
        a(f"v_mfma_f32_16x16x32_bf16 v[{ACC+4*q_}:{ACC+4*q_+3}], v[8:11], v[{FR[0]+32+4*q_}:{FR[0]+35+4*q_}], 0")
    a("s_mov_b32 s7, 0\nF_CLOOP:")
    for x in interleave(mfmas(0), reads(1, 1), per=1): a(x)
    a("s_waitcnt lgkmcnt(0)")
    for x in interleave(mfmas(1), reads(0, 2), per=1): a(x)
    a("""
      v_add_u32 v12, 128, v12
      v_add_u32 v13, 128, v13
      s_add_u32 s7, s7, 1
      s_cmp_lt_u32 s7, 4
      s_waitcnt lgkmcnt(0)
      s_cbranch_scc1 F_CLOOP
      s_nop 3
    """)
    a(a.stamp(5))
    for j in range(8):
        a(f"ds_write_b128 v6, v[{ACC+4*j}:{ACC+4*j+3}] offset:{j*8*144}")
    a("s_waitcnt lgkmcnt(0)\ns_barrier")
    a.stamp_end(0, 7)
    a("s_endpgm")

    a("F_HELP:")
    for r in range(2):
        for i in range(9):
            a(f"buffer_load_dword v{SQ+9*r+i}, v15, s[24:27], 0 offen offset:{128*i + 2304*r}")
    a(f"""
      s_lshl_b32 s7, s36, 12
      s_add_u32 s7, s7, {QO}
      v_lshrrev_b32 v8, 1, v5
      v_xor_b32 v8, v8, v4
      v_and_b32 v9, 1, v5
      v_lshlrev_b32 v9, 3, v9
      v_lshl_add_u32 v9, v4, 8, v9
      v_add_u32 v9, s7, v9
      s_waitcnt vmcnt(18)
    """)
    for i in range(8):
        a(f"v_xor_b32 v10, {2*i}, v8\nv_lshl_add_u32 v10, v10, 4, v9\nds_write_b64 v10, v[{QR+2*i}:{QR+1+2*i}]")
    a(f"""
      v_xor_b32 v8, v4, v5
      v_lshlrev_b32 v9, 8, v5
      v_add_u32 v9, s7, v9
      v_lshlrev_b32 v11, 14, v5
      v_lshl_add_u32 v11, v4, 4, v11
      s_lshl_b32 s47, s6, 18
      s_lshl_b32 s7, s5, 10
      s_add_u32 s47, s47, s7
      s_lshl_b32 s7, s36, 8
      s_add_u32 s47, s47, s7
      s_add_u32 s47, s47, {QP}
      s_waitcnt lgkmcnt(0)
    """)
    for i in range(4):
        a(f"v_xor_b32 v10, {4*i}, v8\nv_lshl_add_u32 v10, v10, 4, v9\nds_read_b128 v[{60+4*i}:{63+4*i}], v10 offset:{1024*i}")
    for i in range(4):
        a(f"s_waitcnt lgkmcnt({3-i})")
        a(f"buffer_store_dwordx4 v[{60+4*i}:{63+4*i}], v11, s[8:11], s47 offen sc1")
        if i < 3: a(f"s_add_u32 s47, s47, {4*16384}")
    a(f"v_cmp_eq_u32 vcc, 0, v7\nv_lshlrev_b32 v15, 3, v14\nv_mov_b32 v14, {BIG}\ns_mov_b32 s7, {ST1}\nv_cndmask_b32 v15, v14, v15, vcc")
    U = 20
    for r in range(2):
        a(f"s_waitcnt vmcnt({13 if r == 0 else 5})")
        for i in range(9): a(f"v_lshlrev_b32 v{U+2*i}, 16, v{SQ+9*r+i}\nv_and_b32 v{U+1+2*i}, 0xffff0000, v{SQ+9*r+i}")
        a(f"v_pk_add_f32 v[16:17], v[{U}:{U+1}], v[{U+2}:{U+3}]")
        for i in range(2, 9): a(f"v_pk_add_f32 v[16:17], v[16:17], v[{U+2*i}:{U+1+2*i}]")
        a("v_add_f32 v16, v16, v17")
        red32(a, "v16", "v17")
        a(f"v_mul_f32 v16, {float_hex(1.0/576)}, v16")
        for i in range(18): a(f"v_sub_f32 v{U+i}, v{U+i}, v16")
        R = 40 + 2*r
        a(f"v_pk_mul_f32 v[{R}:{R+1}], v[{U}:{U+1}], v[{U}:{U+1}]")
        for i in range(1, 9): a(f"v_pk_fma_f32 v[{R}:{R+1}], v[{U+2*i}:{U+1+2*i}], v[{U+2*i}:{U+1+2*i}], v[{R}:{R+1}]")
        a(f"v_add_f32 v{R}, v{R}, v{R+1}")
        red32(a, f"v{R}", f"v{R+1}")
        a(f"""
          v_mov_b32 v{R+1}, {float_hex(1e-5)}
          v_fmac_f32 v{R+1}, {float_hex(1.0/576)}, v{R}
          v_rsq_f32 v{R}, v{R+1}
          s_nop 0
          v_mul_f32 v{R+1}, v16, v{R}
          v_sub_f32 v{R+1}, 0, v{R+1}
          buffer_store_dwordx2 v[{R}:{R+1}], v15, s[8:11], s7 offen offset:{16*r} sc1
        """)
    get_nonce(a, "F_H", "v14")
    a(f"""
      {a.stamp(2)}
      v_mov_b32 v14, 1
      v_mov_b32 v15, {CNT}
      s_mov_b64 exec, 1
      ds_add_rtn_u32 v14, v15, v14
      s_waitcnt lgkmcnt(0)
      v_readfirstlane_b32 s7, v14
      s_mov_b64 exec, -1
      s_cmp_lg_u32 s7, 3
      s_cbranch_scc1 F_H_NOF
      v_mov_b32 v14, s42
      s_lshl_b32 s7, s4, 7
      s_add_u32 s7, s7, {FH2}
      buffer_store_dword v14, v122, s[8:11], s7 offen sc1
    F_H_NOF:
    """)
    zero_gm()
    a(f"""
      v_and_b32 v1, 255, v0               ; t
      s_and_b32 s7, s4, 0xf0
      v_add_u32 v14, s7, v4
      v_subrev_u32 v15, 16, v2
      v_lshrrev_b32 v15, 2, v15
      v_lshlrev_b32 v15, 4, v15
      v_and_b32 v16, 3, v2
      s_lshl_b32 s7, s36, 2
      v_add3_u32 v15, v15, v16, s7
      v_min_u32 v16, 2, v16
      v_mul_u32_u24 v16, 18, v16
      s_lshr_b32 s7, s4, 3
      s_add_u32 s7, s7, 144
      v_add_u32 v16, s7, v16
      v_cmp_gt_u32 vcc, 16, v2
      s_nop 1
      v_cndmask_b32 v15, v15, v14, vcc
      v_cmp_gt_u32 vcc, 48, v2
      s_nop 1
      v_cndmask_b32 v15, v16, v15, vcc
      v_lshlrev_b32 v15, 7, v15
      v_add_u32 v15, {FH2}, v15
      v_lshlrev_b32 v9, 3, v1             ; t*8
      s_lshl_b32 s38, s4, 14
      s_add_u32 s38, s38, {QP}
      s_mov_b32 s39, {ST1}
      v_lshrrev_b32 v12, 5, v1
      v_mul_u32_u24 v13, 144, v12
      v_and_b32 v14, 24, v1
      v_and_b32 v16, 1, v1
      v_lshl_add_u32 v14, v16, 2, v14
      v_bfe_u32 v16, v1, 1, 2
      v_add_u32 v14, v14, v16
      v_lshl_add_u32 v13, v14, 2, v13
      v_add_u32 v13, {YO}, v13
      v_mul_u32_u24 v12, 36864, v12
      v_bfe_u32 v14, v1, 2, 1
      v_mul_u32_u24 v14, 18432, v14
      v_add_u32 v12, v12, v14
      v_bfe_u32 v14, v1, 3, 2
      v_lshl_add_u32 v12, v14, 5, v12
      v_and_b32 v14, 3, v1
      v_lshl_add_u32 v12, v14, 3, v12
      s_lshl_b32 s7, s4, 7
      s_add_u32 s7, s7, {X1F}
      v_mov_b32 v10, 0
      s_lshl_b32 s22, s4, 4
      s_add_u32 s22, s22, {MOD}
    """)
    poll(a, "F_HP", "v15", "v14")
    a(a.stamp(3))
    Q, STT, Y, H, MD, WR = 16, 32, 48, 80, 144, 160
    for c in range(3):
        a(f"buffer_load_dwordx4 v[{MD+4*c}:{MD+4*c+3}], v10, s[8:11], s22 offen sc1")
        if c < 2: a("s_add_u32 s22, s22, 2304")
    for i in range(8):
        a(f"buffer_load_dwordx2 v[{STT+2*i}:{STT+1+2*i}], v9, s[8:11], s39 offen offset:{2048*(i%2)} sc1")
        a(f"buffer_load_dwordx2 v[{Q+2*i}:{Q+1+2*i}], v9, s[8:11], s38 offen offset:{2048*(i%2)} sc1")
        if i % 2 == 1 and i < 7: a("s_add_u32 s39, s39, 4096\ns_add_u32 s38, s38, 4096")
    for i in range(8):
        q0, q1 = Q+2*i, Q+1+2*i
        t = H + 8*i
        a(f"""
          s_waitcnt vmcnt({14-2*i})
          v_lshlrev_b32 v{t}, 16, v{q0}
          v_and_b32 v{t+1}, 0xffff0000, v{q0}
          v_lshlrev_b32 v{t+2}, 16, v{q1}
          v_and_b32 v{t+3}, 0xffff0000, v{q1}
        """)
        for c in range(4): a(f"v_fma_f32 v{t+4+c}, v{t+c}, v{STT+2*i}, v{STT+2*i+1}")
        for c in range(4): a(f"v_fma_f32 v{t+4+c}, v{t+4+c}, v{MD+4+c}, v{MD+c}")
        for c in range(4): a(f"v_mul_f32 v{t+4+c}, v{t+4+c}, v{MD+8+c}")
    a(a.stamp(4))
    a("s_barrier")
    a(a.stamp(5))
    def yrd(i):
        for c in range(4):
            a(f"ds_read_b32 v{Y+4*i+c}, v13 offset:{c*YS + i*8*144}")
    if Asm.STAMPS: a("s_waitcnt lgkmcnt(0)")
    for i in range(3): yrd(i)
    for i in range(8):
        t = H + 8*i
        a(f"s_waitcnt lgkmcnt({min(8, 28-4*i)})")
        if i + 3 < 8: yrd(i+3)
        a(f"""
          v_pk_fma_f32 v[{t}:{t+1}], v[{t+4}:{t+5}], v[{Y+4*i}:{Y+1+4*i}], v[{t}:{t+1}]
          v_pk_fma_f32 v[{t+2}:{t+3}], v[{t+6}:{t+7}], v[{Y+2+4*i}:{Y+3+4*i}], v[{t+2}:{t+3}]
          v_cvt_pk_bf16_f32 v{Q+2*i}, v{t}, v{t+1}
          v_cvt_pk_bf16_f32 v{Q+1+2*i}, v{t+2}, v{t+3}
          buffer_store_dwordx2 v[{Q+2*i}:{Q+1+2*i}], v12, s[8:11], s7 offen sc1
        """)
        if i < 7: a(f"s_add_u32 s7, s7, {8*36864}")
    a.stamp_end(0, 7)
    a("s_endpgm")

    a("F_OTHER:")
    a("s_cmp_ge_u32 s2, 252\ns_cbranch_scc1 F_LAST")
    a.srd(12, "wmod"); a.srd(16, "c")
    MT = 80000
    a(f"""
      s_sub_u32 s4, s2, 144
      v_and_b32 v6, 3, v0
      v_lshrrev_b32 v7, 2, v0
      v_mul_u32_u24 v8, 6912, v7
      v_lshl_add_u32 v8, v6, 4, v8
      s_lshl_b32 s5, s4, 6
      v_lshlrev_b32 v9, 1, v7
    """)
    for i in range(5): a(f"buffer_load_ushort v{80+i}, v9, s[16:19], 0 offen offset:{256*i}")
    for i in range(5):
        a(f"buffer_load_dwordx4 v[{88+4*i}:{91+4*i}], v8, s[12:15], s5 offen nt")
        if i < 4: a(f"s_add_u32 s5, s5, {128*6912}")
    a("""
      s_and_b32 s24, s3, 3                ; jn
      s_lshr_b32 s25, s3, 2               ; K half
      v_lshrrev_b32 v10, 3, v2
      v_and_b32 v11, 7, v2
      v_and_b32 v12, 6, v10
      v_xor_b32 v11, v11, v12
      v_lshlrev_b32 v11, 4, v11           ; chunk*16
      v_lshrrev_b32 v9, 2, v2
      v_lshlrev_b32 v9, 7, v9
      v_and_b32 v12, 3, v10
      v_xor_b32 v12, s24, v12
      v_lshl_add_u32 v9, v12, 5, v9
      v_and_b32 v12, 3, v2
      v_lshl_add_u32 v9, v12, 3, v9
      s_mul_i32 s26, s25, 36864
      v_add_u32 v9, s26, v9
      s_mul_i32 s6, s3, 9216
      s_cmp_ge_u32 s2, 216
      s_cbranch_scc1 F_WOUT_LD
    """)
    a.srd(20, "win")
    a(f"""
      s_mov_b32 s26, 9216
      s_mul_i32 s7, s3, {72*9216}
      s_lshl_b32 s5, s4, 7
      s_add_u32 s7, s7, s5
      s_branch F_W_LD
    F_WOUT_LD:
    """)
    a.srd(20, "wout")
    a(f"""
      s_mov_b32 s26, 1152
      s_sub_u32 s32, s2, 216              ; unit 0..35
      s_mul_i32 s33, s32, 7282
      s_lshr_b32 s33, s33, 16             ; kq
      s_mul_i32 s5, s33, 9
      s_sub_u32 s32, s32, s5              ; cblk
      s_lshl_b32 s7, s33, 3
      s_add_u32 s7, s7, s3
      s_mul_i32 s7, s7, {72*1152}
      s_lshl_b32 s5, s32, 7
      s_add_u32 s7, s7, s5
    F_W_LD:
      v_mul_lo_u32 v10, v10, s26
      v_add_u32 v11, v11, v10
      s_lshl_b32 s26, s26, 3
    """)
    def wdma(r):
        for i in r:
            a(f"s_add_u32 m0, s6, {1024*i}\ns_nop 0")
            a(f"buffer_load_dwordx4 v11, s[20:23], s7 offen nt lds")
            if i < 8: a(f"s_add_u32 s7, s7, s26")
    a("s_barrier\ns_cmp_eq_u32 s3, 0\ns_cbranch_scc1 F_W0")
    wdma(range(4))
    a("s_waitcnt vmcnt(4)\ns_branch F_W1\nF_W0:\ns_waitcnt vmcnt(0)\nF_W1:")
    C, T, AC = 80, 108, 113
    a("\n".join(f"v_lshlrev_b32 v{C+i}, 16, v{C+i}" for i in range(5)))
    a("\n".join(f"v_mul_f32 v{T+i}, {float_hex(-1.4426950408889634)}, v{C+i}" for i in range(5)))
    a("\n".join(f"v_exp_f32 v{T+i}, v{T+i}" for i in range(5)))
    a("\n".join(f"v_add_f32 v{T+i}, 1.0, v{T+i}" for i in range(5)))
    a("\n".join(f"v_rcp_f32 v{T+i}, v{T+i}" for i in range(5)))
    a("\n".join(f"v_mul_f32 v{C+i}, v{C+i}, v{T+i}" for i in range(5)))
    a("\n".join(f"v_cvt_pk_bf16_f32 v{C+i}, v{C+i}, v{C+i}" for i in range(5)))
    a("\n".join(f"v_lshlrev_b32 v{C+i}, 16, v{C+i}" for i in range(5)))
    AC = 64
    for i in range(5):
        for dd in range(4):
            src = f"v{88+4*i+dd}"
            a(f"v_lshlrev_b32 v108, 16, {src}\nv_and_b32 v109, 0xffff0000, {src}")
            if i == 0: a(f"v_mul_f32 v{AC+2*dd}, v{C}, v108\nv_mul_f32 v{AC+1+2*dd}, v{C}, v109")
            else: a(f"v_fmac_f32 v{AC+2*dd}, v{C+i}, v108\nv_fmac_f32 v{AC+1+2*dd}, v{C+i}, v109")
    a(a.stamp(1))
    a("s_nop 1")
    for rot in (8, 4):
        for j in range(8): a(f"v_add_f32_dpp v{AC+j}, v{AC+j}, v{AC+j} row_ror:{rot} row_mask:0xf bank_mask:0xf")
    for sw in ("16", "32"):
        for j in range(8): a(f"v_mov_b32 v{72+j}, v{AC+j}")
        a("s_nop 1")
        for j in range(8): a(f"v_permlane{sw}_swap_b32 v{AC+j}, v{72+j}")
        a("s_nop 1")
        for j in range(8): a(f"v_add_f32 v{AC+j}, v{AC+j}, v{72+j}")
    a(f"""
      v_lshlrev_b32 v7, 7, v1
      v_lshl_add_u32 v7, v6, 5, v7
      v_add_u32 v7, {MT}, v7
      v_cmp_gt_u32 vcc, 4, v2
      s_and_saveexec_b64 s[46:47], vcc
      ds_write_b128 v7, v[{AC}:{AC+3}]
      ds_write_b128 v7, v[{AC+4}:{AC+7}] offset:16
      s_mov_b64 exec, s[46:47]
      s_waitcnt lgkmcnt(0)
      s_barrier
      s_cmp_lg_u32 s3, 0
      s_cbranch_scc1 F_MOD_DONE
      v_and_b32 v7, 31, v2
      v_lshlrev_b32 v7, 2, v7
      v_add_u32 v8, {MT}, v7
    """)
    for i in range(8): a(f"ds_read_b32 v{AC+i}, v8 offset:{128*i}")
    a(f"""
      s_mul_i32 s5, s4, 3641              ; /18
      s_lshr_b32 s5, s5, 16               ; section
      s_cmp_eq_u32 s5, 1
      s_cselect_b32 s27, 1.0, 0
      s_cmp_eq_u32 s5, 4
      s_cselect_b32 s27, 1.0, s27
      v_lshrrev_b32 v8, 1, v7
      s_waitcnt lgkmcnt(0)
    """)
    for i in range(4): a(f"v_add_f32 v{AC+i}, v{AC+i}, v{AC+4+i}")
    a(f"""
      v_add_f32 v{AC}, v{AC}, v{AC+1}
      v_add_f32 v{AC+2}, v{AC+2}, v{AC+3}
      v_add_f32 v{AC}, v{AC}, v{AC+2}
      v_cvt_pk_bf16_f32 v{AC}, v{AC}, v{AC}
      v_lshlrev_b32 v{AC}, 16, v{AC}
      v_add_f32 v{AC}, s27, v{AC}
      v_cvt_pk_bf16_f32 v{AC+1}, v{AC}, v{AC}
      v_lshlrev_b32 v{AC}, 16, v{AC+1}
      s_lshl_b32 s5, s4, 7
      s_add_u32 s5, s5, {MOD}
      buffer_store_dword v{AC}, v7, s[8:11], s5 offen sc1
      s_lshl_b32 s5, s4, 6
      s_add_u32 s5, s5, {MODH}
      buffer_store_short v{AC+1}, v8, s[8:11], s5 offen sc1
    """)
    get_nonce(a, "F_M0", "v14")
    a(f"""
      v_mov_b32 v14, s42
      s_lshl_b32 s5, s4, 7
      s_add_u32 s5, s5, {FM}
      buffer_store_dword v14, v122, s[8:11], s5 offen sc1
      s_barrier
    """)
    wdma(range(4))
    a("s_branch F_MOD_J\nF_MOD_DONE:\ns_barrier\nF_MOD_J:")
    a(a.stamp(2))
    wdma(range(4, 9))
    zero_gm()
    get_nonce(a, "F_M", "v14")
    a(f"""
      s_cmp_ge_u32 s2, 216
      s_cbranch_scc1 F_WOUT
    """)
    TB = 73728
    a(f"""
      s_cmp_ge_u32 s3, 5
      s_cbranch_scc1 F_WIN_T
      v_min_u32 v14, 35, v2
      v_lshlrev_b32 v14, 7, v14
      v_add_u32 v14, {FM + 54*128}, v14
    """)
    poll(a, "F_W", "v14", "v15")
    a(f"""
      s_lshl_b32 s16, s3, 10
      s_add_u32 s17, s16, {MOD + 4*576*4}
      s_add_u32 s18, s16, {MODH + 3*576*2 - 3072}
      s_cmp_ge_u32 s3, 3
      s_cselect_b32 s17, s18, s17
      s_add_u32 m0, s16, {TB}
      s_nop 0
      buffer_load_dwordx4 v3, s[8:11], s17 offen sc1 lds
    F_WIN_T:
      s_lshl_b32 s16, s4, 2
      s_add_u32 s16, s16, s24             ; fc
      s_cmp_ge_u32 s16, 144
      s_cselect_b32 s17, 144, 0
      s_cselect_b32 s18, 0, {18*9216}
      s_cselect_b32 s23, 1, 0             ; is z2
      s_sub_u32 s34, s16, s17             ; fcl
      s_mul_i32 s19, s34, 7282
      s_lshr_b32 s19, s19, 16             ; nt
      s_mul_i32 s20, s19, 9
      s_sub_u32 s20, s34, s20             ; j
      s_mul_i32 s19, s19, {36*9216}
      s_lshl_b32 s20, s20, 10
      s_add_u32 s19, s19, s20
      s_add_u32 s19, s19, s18
      s_mul_i32 s20, s25, {9*9216}
      s_add_u32 s19, s19, s20
      s_add_u32 s35, s19, {WINF}
      s_mul_i32 s20, s25, 1152
      s_add_u32 s20, s20, {TB}
      v_lshl_add_u32 v12, v5, 4, s20
      s_mul_i32 s20, s25, 576
      s_add_u32 s20, s20, {TB+3072}
      v_lshl_add_u32 v13, v5, 3, s20
      v_mov_b32 v14, 0                    ; u
      v_mov_b32 v15, 0                    ; v
      s_mov_b32 s21, 0x3f803f80
      s_waitcnt vmcnt(0)
      s_barrier
      {a.stamp(3)}
    """)
    def rd(ks):
        b = 16 + 16*(ks % 3)
        a(f"""
          ds_read_b64_tr_b16 v[{b}:{b+1}], v9 offset:{4096*ks}
          ds_read_b64_tr_b16 v[{b+2}:{b+3}], v9 offset:{4096*ks+2048}
          ds_read_b128 v[{b+4}:{b+7}], v12 offset:{128*ks}
          ds_read_b128 v[{b+8}:{b+11}], v12 offset:{128*ks+64}
          ds_read_b64 v[{b+12}:{b+13}], v13 offset:{64*ks}
          ds_read_b64 v[{b+14}:{b+15}], v13 offset:{64*ks+32}
        """)
    if Asm.STAMPS: a("s_waitcnt lgkmcnt(0)")
    rd(0); rd(1)
    for ks in range(9):
        b = 16 + 16*(ks % 3); t = 64; o = 72 + 4*(ks % 2)
        if ks + 2 < 9:
            a("s_waitcnt lgkmcnt(6)"); rd(ks+2)
        else: a(f"s_waitcnt lgkmcnt({6 if ks + 1 < 9 else 0})")
        for dd in range(4):
            a(f"v_lshlrev_b32 v{t+2*dd}, 16, v{b+dd}\nv_and_b32 v{t+1+2*dd}, 0xffff0000, v{b+dd}")
        for dd in range(4): a(f"v_dot2c_f32_bf16 v15, v{b+dd}, v{b+12+dd}")
        for dd in range(4): a(f"v_pk_mul_f32 v[{t+2*dd}:{t+1+2*dd}], v[{t+2*dd}:{t+1+2*dd}], v[{b+4+2*dd}:{b+5+2*dd}]")
        for dd in range(4): a(f"v_cvt_pk_bf16_f32 v{o+dd}, v{t+2*dd}, v{t+1+2*dd}")
        a(f"buffer_store_dwordx4 v[{o}:{o+3}], v3, s[8:11], s35 offen sc1")
        for dd in range(4): a(f"v_dot2c_f32_bf16 v14, s21, v{o+dd}")
        if ks < 8: a("s_add_u32 s35, s35, 9216")
    a("s_nop 2")
    for sw in ("16", "32"):
        a(f"""
          v_mov_b32 v16, v14
          v_mov_b32 v17, v15
          s_nop 1
          v_permlane{sw}_swap_b32 v14, v16
          v_permlane{sw}_swap_b32 v15, v17
          s_nop 1
          v_add_f32 v14, v14, v16
          v_add_f32 v15, v15, v17
        """)
    a(f"""
      {a.stamp(4)}
      s_lshl_b32 s20, s24, 7
      s_add_u32 s20, s20, {TB+5120}
      v_lshl_add_u32 v18, v4, 3, s20
      v_lshlrev_b32 v16, 2, v4
      v_lshlrev_b32 v17, 3, v4
      s_cmp_lt_u32 s3, 4
      s_cbranch_scc1 F_WIN_LO
      ds_write_b64 v18, v[14:15]
      s_waitcnt lgkmcnt(0)
      s_barrier
    """)
    a.stamp_end(0, 6)
    a(f"""
      s_endpgm
    F_WIN_LO:
      s_barrier
      ds_read_b64 v[20:21], v18
      v_cmp_gt_u32 vcc, 16, v2
      s_and_saveexec_b64 s[46:47], vcc
      s_waitcnt lgkmcnt(0)
      v_add_f32 v14, v14, v20
      v_add_f32 v15, v15, v21
      s_cmp_eq_u32 s23, 1
      s_cbranch_scc1 F_WIN_Z2
      s_lshl_b32 s16, s34, 6
      s_add_u32 s16, s16, {UV1}
      buffer_store_dword v14, v16, s[8:11], s16 offen
      s_add_u32 s16, s16, 9216
      buffer_store_dword v15, v16, s[8:11], s16 offen
    """)
    a.stamp_end(0, 6)
    a(f"""
      s_endpgm
    F_WIN_Z2:
      s_lshl_b32 s16, s34, 7
      s_add_u32 s16, s16, {UV2}
      buffer_store_dwordx2 v[14:15], v17, s[8:11], s16 offen
    """)
    a.stamp_end(0, 6)
    a("s_endpgm")
    a(f"""
    F_WOUT:
      s_lshl_b32 s19, s33, 1
      s_add_u32 s19, s19, s25
      s_mul_i32 s19, s19, {9*36864}
      s_lshl_b32 s16, s32, 2
      s_add_u32 s16, s16, s24
      s_lshl_b32 s16, s16, 10
      s_add_u32 s19, s19, s16
      s_add_u32 s35, s19, {WOUTF}
      s_barrier
      {a.stamp(3)}
    """)
    for half in range(2):
        rng = range(0, 5) if half == 0 else range(5, 9)
        for i in rng:
            b1, b2 = (32*i, 32*i+16) if i < 4 else ((144+32*(i-4), 144+32*(i-4)+16) if i < 8 else (128, 272))
            r = 16 + 4*i
            a(f"ds_read_b64_tr_b16 v[{r}:{r+1}], v9 offset:{b1*128}")
            a(f"ds_read_b64_tr_b16 v[{r+2}:{r+3}], v9 offset:{b2*128}")
        a("s_waitcnt lgkmcnt(0)")
    for i in range(9):
        r = 16 + 4*i
        a(f"buffer_store_dwordx4 v[{r}:{r+3}], v3, s[8:11], s35 offen sc1")
        if i < 8: a("s_add_u32 s35, s35, 36864")
    a(a.stamp(4))
    a("s_branch F_WARM\nF_LAST:")
    zero_gm()
    a("""
    F_WARM:
      s_getpc_b64 s[12:13]
    F_PC:
      s_add_u32 s12, s12, gm_kernel-F_PC
      s_addc_u32 s13, s13, 0
      s_and_b32 s13, s13, 0xffff
      s_mov_b32 s14, GM_CODE_END-gm_kernel
      s_mov_b32 s15, 0x20000
      v_lshlrev_b32 v6, 7, v0
      buffer_load_dword v7, v6, s[12:15], 0 offen
    """)
    a.stamp_end(0, 6)
    a("F_END:\ns_endpgm")
    a.desc("f_kernel", 176, 176)
```

```python
from gen_common import *
from gen_g import *
P = lambda r: f"v[{r}:{r+1}]"
BIG = 0x7fffff00

def poll_loop(a, name, loads, regs, tmp):
    a(f"s_mov_b32 s27, 0\n{name}_POLL:")
    for x in loads: a(x)
    a("s_waitcnt vmcnt(0)")
    if len(regs) == 1: a(f"v_cmp_eq_u32 vcc, 0, v{regs[0]}")
    else:
        a(f"v_min_u32 v{tmp}, v{regs[0]}, v{regs[1]}")
        for r in regs[2:]: a(f"v_min_u32 v{tmp}, v{tmp}, v{r}")
        a(f"v_cmp_eq_u32 vcc, 0, v{tmp}")
    a(f"""
      s_add_u32 s27, s27, 1
      s_cmp_ge_u32 s27, 0x80000
      s_cbranch_scc1 {name}_GO
      s_nop 2
      s_cbranch_vccnz {name}_POLL
    {name}_GO:
    """)

def gen_gm(a):
    a.begin("gm_kernel")
    a("s_cmp_ge_u32 s2, 256\ns_cbranch_scc1 GM_END")
    a(a.stamp(0))
    a.load_args()
    tile_ids(a)
    SL = 252
    a(f"""
      s_mul_i32 s20, s5, {36*9216}
      s_add_u32 s20, s20, s7
      s_add_u32 s20, s20, {WINF}
      s_mul_i32 s21, s6, 36864
      s_add_u32 s21, s21, {X1F}           ; A soffset
      s_mul_i32 s30, s3, 12288
      s_add_u32 s30, s30, {3*36864}
      v_lshl_add_u32 v13, v2, 3, s30
      v_add_u32 v8, {18432-1024}, v1
      s_mul_i32 s28, s5, {64*9216}
      s_add_u32 s28, s28, {Z2F}
      s_lshl_b32 s29, s6, 17
      s_waitcnt lgkmcnt(0)
    """)
    a.srd(8, "ws")
    AB, BB = 0, 144
    ACC2, ACC1, ST = 16, 88, 160
    ALDS = 3*36864
    def a_dma(ks):
        if ks >= 18: return []
        o = [f"s_add_u32 m0, s30, {(ks % 6)*2048}", "s_nop 0",
             VM(f"buffer_load_dwordx4 v1, s[8:11], s21 offen lds", ("A", ks, 0)),
             VM(f"buffer_load_dwordx4 v8, s[8:11], s21 offen offset:1024 lds", ("A", ks, 1)),
             "s_add_u32 s21, s21, 1024"]
        return o
    def a_reads(ks):
        if ks >= 18: return []
        return [f"ds_read_b64 a[{AB+(ks*2+t)*4+2*h}:{AB+(ks*2+t)*4+2*h+1}], v13 offset:{(ks % 6)*2048 + t*1024 + h*512}" for t in range(2) for h in range(2)]
    def atags(ks): return [("A", ks, t) for t in range(2)] if ks < 18 else []
    def b1_group(k):
        T = (k+1)//4 + 2
        if T >= 9: return []
        p0, cnt = P0[k % 4]
        o = [f"s_add_u32 m0, s7, {(T % 3)*36864 + p0*1024}", "s_nop 0"]
        for i in range(cnt): o.append(VM(f"buffer_load_dwordx4 v1, s[8:11], s20 offen offset:{1024*i} lds", ("B", T, p0+i)))
        o.append(f"s_add_u32 s20, s20, {cnt*1024 if k % 4 != 2 else 36864 - 7168}")
        return o
    def b1_reads(k):
        return [f"ds_read_b128 a[{BB + (k%2)*36 + 4*j}:{BB + (k%2)*36 + 4*j + 3}], v{SL + (k//4) % 3} offset:{(k%4)*9216 + j*1024}" for j in range(9)]
    seq = []
    seq += a_dma(0)
    for k in range(-9, -5): seq += b1_group(k)
    for ks in range(1, 4): seq += a_dma(ks)
    resolve(seq); emit(a, seq); pre = seq; seq = []
    early = {0: b1_group(-5) + b1_group(-4) + b1_group(-3) + b1_group(-2) + a_dma(4), 1: a_dma(5) + a_dma(6) + b1_group(-1) + b1_group(0) + b1_group(1)}
    a.srd(12, "ws", 64*9216, "s28"); a.srd(16, "wsp"); a.srd(36, "bsp")
    a(f"""
      v_mov_b32 v{SL}, v1
      v_add_u32 v{SL+1}, 36864, v1
      v_add_u32 v{SL+2}, {2*36864}, v1
      v_mov_b32 v4, 0x3f803f80
      v_mov_b32 v5, 0x3f803f80
      v_mov_b32 v6, 0x3f803f80
      v_mov_b32 v7, 0x3f803f80
      s_mov_b32 s40, {float_hex(C1)}
      s_mov_b32 s41, {float_hex(C1)}
      v_mov_b32 v14, {float_hex(C0)}
      v_mov_b32 v15, {float_hex(C0)}
      s_mul_i32 s22, s5, {144*8}
      s_add_u32 s22, s22, {UV2}
      v_lshlrev_b32 v9, 3, v3             ; n*8
      v_lshrrev_b32 v248, 2, v3
      v_lshlrev_b32 v248, 3, v248
      v_and_b32 v249, 3, v3
      v_add_u32 v248, v248, v249
      v_add_u32 v251, 4096, v1
    """)
    seq += [WAIT(btags(0)), "s_barrier", a.stamp(1)]
    seq += a_reads(0) + b1_reads(0)
    def kstep(kk, extra=[], need_extra=[]):
        ks = kk % 18; ps = kk // 18
        o = []
        need = (atags(ks+1) if ps == 0 else []) + need_extra
        bar = (kk % 4 == 3 and kk < 35)
        if bar: need = need + btags((kk+1)//4)
        o.append(WAIT(need, lgkm=True))
        if bar: o.append("s_barrier")
        m = []
        for j in range(9):
            for t in range(2):
                A = f"a[{AB+(ks*2+t)*4}:{AB+(ks*2+t)*4+3}]"
                B = f"a[{BB+(kk%2)*36+4*j}:{BB+(kk%2)*36+4*j+3}]"
                r = (ACC2 if ps == 0 else ACC1) + (j*2+t)*4
                C = "0" if ks == 0 else f"v[{r}:{r+3}]"
                m.append(f"{MF} v[{r}:{r+3}], {A}, {B}, {C}" if ps == 0 else f"{MF} v[{r}:{r+3}], {B}, {A}, {C}")
        if ps == 0:
            for t in range(2):
                A = f"a[{AB+(ks*2+t)*4}:{AB+(ks*2+t)*4+3}]"
                r = ST + 4*t
                m.append(f"{MF} v[{r}:{r+3}], {A}, v[4:7], {'0' if ks == 0 else f'v[{r}:{r+3}]'}")
                r = ST + 8 + 4*t
                m.append(f"{MF} v[{r}:{r+3}], {A}, {A}, {'0' if ks == 0 else f'v[{r}:{r+3}]'}")
        f = (a_reads(kk+1) if ps == 0 else []) + (b1_reads(kk+1) if kk < 35 else []) + early.get(kk, []) + (a_dma(kk+5) + b1_group(kk) if kk >= 2 else []) + extra
        o += interleave(m, f)
        return o
    UV = 176; WS = 216
    uv2 = [VM(f"buffer_load_dwordx2 v[{UV+2*j}:{UV+2*j+1}], v9, s[8:11], s22 offen offset:{128*j}", ("UV2", j)) for j in range(9)]
    for kk in range(18):
        ex = []
        ne = []
        if kk == 14: ex = uv2[:5]
        if kk == 15: ex = uv2[5:]
        seq += kstep(kk, ex, ne)
    seq += [a.stamp(2), "v_mul_u32_u24 v10, 80, v12", "s_nop 7"]
    for t in range(2):
        for r in range(4):
            seq.append(f"ds_bpermute_b32 v{ST+8+4*t+r}, v10, v{ST+8+4*t+r} offset:{4*r}")
    seq.append("s_waitcnt lgkmcnt(0)")
    s1 = [ST+i for i in range(8)]; s2 = [ST+8+i for i in range(8)]
    seq += ln_finish(s1, s2, 576, 8, None)
    ZR = [240, 244]; ZN = [242, 246]
    seq += ["v_and_b32 v10, 3, v3", "v_lshrrev_b32 v11, 2, v3", "v_lshl_add_u32 v11, v11, 4, v3", "v_lshlrev_b32 v11, 2, v11"]
    for t in range(2):
        seq += [f"v_mov_b32 v{ZR[t]}, v{ST+8+4*t}", f"v_mov_b32 v{ZN[t]}, v{ST+4*t}"]
    for r in range(1, 4):
        seq += [f"v_cmp_eq_u32 vcc, {r}, v10", "s_nop 1"]
        for t in range(2):
            seq += [f"v_cndmask_b32 v{ZR[t]}, v{ZR[t]}, v{ST+8+4*t+r}, vcc", f"v_cndmask_b32 v{ZN[t]}, v{ZN[t]}, v{ST+4*t+r}, vcc"]
    for r in ZR + ZN: seq.append(f"ds_bpermute_b32 v{r}, v11, v{r}")
    seq.append(WAIT([("UV2", j) for j in range(9)]))
    touch = ["v_lshlrev_b32 v13, 12, v12", "v_lshl_add_u32 v13, v3, 4, v13", "s_lshl_b32 s31, s5, 8", "s_add_u32 s31, s31, s29"]
    for i in range(8):
        touch += [VM(f"buffer_load_dwordx4 a[{WS+4*i}:{WS+4*i+3}], v13, s[16:19], s31 offen {'nt' if 'tnt' in X else ''}", ("WL", i)), "s_add_u32 s31, s31, 16384"]
    seq += touch
    Z1S, Z2S, TMP, GR = 196, 204, 212, 220
    for j in range(9):
        xs = [ACC2 + j*8 + 2*i for i in range(4)]; ts = [TMP + 2*i for i in range(4)]
        uv = P(UV + 2*j)
        seq.append(f"v_mov_b32 v194, v{UV+2*j+1}")
        for i in range(4): seq.append(f"v_pk_fma_f32 {P(ts[i])}, {P(ST+2*i)}, {uv}, v[194:195] op_sel_hi:[1,0,0]")
        for i in range(4): seq.append(f"v_pk_fma_f32 {P(xs[i])}, {P(xs[i])}, {P(ST+8+2*i)}, {P(ts[i])}")
        seq += gelu_pairs(xs, ts)
        for i in range(4):
            if j == 0: seq += [f"v_pk_mul_f32 {P(Z2S+2*i)}, {P(xs[i])}, {P(xs[i])}"]
            elif j == 1: seq += [f"v_pk_add_f32 {P(Z1S+2*i)}, {P(xs[i])}, {P(ACC2+2*i)}", f"v_pk_fma_f32 {P(Z2S+2*i)}, {P(xs[i])}, {P(xs[i])}, {P(Z2S+2*i)}"]
            else: seq += [f"v_pk_add_f32 {P(Z1S+2*i)}, {P(xs[i])}, {P(Z1S+2*i)}", f"v_pk_fma_f32 {P(Z2S+2*i)}, {P(xs[i])}, {P(xs[i])}, {P(Z2S+2*i)}"]
    seq += ror_reduce([Z1S+i for i in range(8)] + [Z2S+i for i in range(8)], [GR+2*i for i in range(8)] + [GR+2*i+1 for i in range(8)])
    for i in range(8): seq.append(f"v_or_b32 v{GR+2*i+1}, 1, v{GR+2*i+1}")
    seq += [f"s_lshl_b32 s23, s6, 12", f"s_add_u32 s23, s23, {ST2}", "s_lshl_b32 s24, s5, 8", "s_add_u32 s24, s24, s23",
            "v_lshlrev_b32 v10, 6, v12", "v_lshl_add_u32 v11, v3, 8, v10",
            "v_cmp_eq_u32 vcc, 0, v3", f"v_mov_b32 v4, {BIG}", "s_nop 0", "v_cndmask_b32 v10, v4, v10, vcc",
            f"s_mul_i32 s22, s5, {144*4}", f"s_add_u32 s22, s22, {UV1}", "s_add_u32 s25, s22, 9216", "v_lshlrev_b32 v9, 4, v12", a.stamp(3)]
    gs = [VM(f"buffer_store_dwordx4 v[{GR+4*i}:{GR+4*i+3}], v10, s[8:11], s24 offen offset:{16*i} sc1", ("GS", i)) for i in range(4)]
    seq += gs
    U1 = 160
    uv1 = []
    for j in range(9):
        uv1.append(VM(f"buffer_load_dwordx4 v[{U1+8*j}:{U1+8*j+3}], v9, s[8:11], s22 offen offset:{64*j}", ("U1", j)))
        uv1.append(VM(f"buffer_load_dwordx4 v[{U1+8*j+4}:{U1+8*j+7}], v9, s[8:11], s25 offen offset:{64*j}", ("V1", j)))
    PL = 176; R1 = [232+i for i in range(8)]; R2 = [241, 243, 245, 247, 249, 250, 4, 10]
    pl = [f"buffer_load_dwordx4 v[{PL+4*i}:{PL+4*i+3}], v11, s[8:11], s23 offen offset:{16*i} sc1" for i in range(4)]
    bl = [VM("buffer_load_ushort v6, v5, s[36:39], s26 offen", "b0"), VM("buffer_load_ushort v7, v5, s[36:39], s26 offen offset:8", "b1")]
    chk = [f"v_min_u32 v4, v{PL+1}, v{PL+3}"] + [f"v_min_u32 v4, v4, v{PL+2*i+1}" for i in range(2, 8)] + ["v_cmp_eq_u32 vcc, 0, v4"]
    pollS = [WAIT([("PL", 3)])] + chk + ["s_mov_b32 s27, 0", "s_nop 3", "s_cbranch_vccz GM_S_GO", "GM_S_POLL:"] + pl + ["s_waitcnt vmcnt(0)"] + chk + \
            ["s_add_u32 s27, s27, 1", "s_cmp_ge_u32 s27, 0x80000", "s_cbranch_scc1 GM_S_GO", "s_nop 2", "s_cbranch_vccnz GM_S_POLL", "GM_S_GO:", a.stamp(4)]
    nrm = ror_reduce([PL+i for i in range(16)], [(R1 if i % 2 == 0 else R2)[i//2] for i in range(16)])[1:]
    nrm += ln_finish(R1, R2, FH, 8, None)
    nrm += ["s_mul_i32 s26, s6, 9216", "v_add_u32 v8, 8192, v1"]
    nrm0 = nrm; nrm = []
    for j in range(9):
        for i in range(8): nrm.append(f"v_fma_f32 v{ACC2+8*j+i}, v{ACC2+8*j+i}, v{R2[i]}, v{R1[i]}")
        for i in range(4): nrm.append(f"v_cvt_pk_bf16_f32 v{ACC2+8*j+i}, v{ACC2+8*j+2*i}, v{ACC2+8*j+2*i+1}")
        nrm.append(VM(f"buffer_store_dwordx4 v[{ACC2+8*j}:{ACC2+8*j+3}], {['v1','v251','v8'][j//4]}, s[12:15], s26 offen offset:{1024*(j%4)} sc1", ("Z2", j)))
    KT = -1
    KP, KN0, KN1 = 20, 22, 26
    per = (len(nrm0) + (KN1-KN0) - 1) // (KN1-KN0)
    for kk in range(18, 36):
        ex = []; ne = []
        if kk == 18: ex = ["v_lshlrev_b32 v5, 1, v248", "s_lshl_b32 s26, s6, 6"] + bl
        if kk == KP: ex = [VM(x, ("PL", i)) for i, x in enumerate(pl)]
        if kk == KN0: seq += pollS
        if KN0 <= kk < KN1: ex = nrm0[per*(kk-KN0):per*(kk-KN0+1)]
        if KN1 <= kk < KN1+9: ex = nrm[13*(kk-KN1):13*(kk-KN1+1)]
        if kk == KT: ex = ex + touch
        if kk >= 33: ex = uv1[6*(kk-33):6*(kk-33)+6] + ex
        seq += kstep(kk, ex, ne)
    seq += [a.stamp(5), "s_barrier"]
    A2B, B2B, ACC = 72, 0, 16
    AV = [9, 249, 250, 255]
    def a2_group(k):
        Pp = (k-1)//2 + 3; h = (k-1) % 2
        o = [f"s_add_u32 m0, s30, {(Pp % 3)*4096 + h*2048}", "s_nop 0"]
        for i in range(2):
            o.append(VM(f"buffer_load_dwordx4 v{AV[2*h+i]}, s[16:19], s21 offen offset:{1024*i} {'nt' if 'ant' in X else ''} lds", ("A2", Pp, 2*h+i)))
        if h == 1: o.append("s_add_u32 s21, s21, 128")
        return o
    def a2_reads(k):
        r = A2B + (k % 2)*8
        return [f"ds_read_b128 a[{r+4*t}:{r+4*t+3}], {'v4' if k % 2 == 0 else 'v8'} offset:{((k//2) % 3)*4096 + t*2048}" for t in range(2)]
    def b2_group(k):
        T = (k+1)//4 + 2
        p0, cnt = P0[k % 4]
        o = [f"s_add_u32 m0, s7, {(T % 3)*36864 + p0*1024}", "s_nop 0"]
        for i in range(cnt): o.append(VM(f"buffer_load_dwordx4 v1, s[12:15], s20 offen offset:{1024*i} sc1 lds", ("B", T, p0+i)))
        o.append(f"s_add_u32 s20, s20, {cnt*1024 if k % 4 != 2 else 36864 - 7168}")
        return o
    def b2_reads(k, js=range(9)):
        return [f"ds_read_b128 a[{B2B + (k%2)*36 + 4*j}:{B2B + (k%2)*36 + 4*j + 3}], v{SL + (k//4) % 3} offset:{(k%4)*9216 + j*1024}" for j in js]
    TM1 = 232
    def z1g(j):
        o = []
        xs = [ACC1 + j*8 + 2*i for i in range(4)]; ts = [TM1 + 2*i for i in range(4)]
        for i in range(4):
            o.append(f"v_pk_fma_f32 {P(ts[i])}, {P(U1+8*j+2*(i%2))}, {P(ZN[i//2])}, {P(U1+8*j+4+2*(i%2))} op_sel_hi:[1,0,1]")
        for i in range(4):
            o.append(f"v_pk_fma_f32 {P(xs[i])}, {P(xs[i])}, {P(ZR[i//2])}, {P(ts[i])} op_sel_hi:[1,0,1]")
        o += gelu_pairs(xs, ts)
        for i in range(4): o.append(f"v_cvt_pk_bf16_f32 v{U1+8*j+i}, v{xs[i]}, v{xs[i]+1}")
        return o
    J1, J2 = 2, 5
    seq += ["s_lshl_b32 s24, s6, 4", "s_add_u32 s24, s24, s5", "s_lshl_b32 s24, s24, 7", f"s_add_u32 s24, s24, {FLB}",
            "s_lshl_b32 s23, s3, 4", "s_add_u32 s23, s23, s5", "s_lshl_b32 s23, s23, 7", f"s_add_u32 s23, s23, {FLB}",
            "v_mov_b32 v5, 1", "v_lshlrev_b32 v10, 13, v3",
            "v_cmp_eq_u32 vcc, 0, v2", f"v_mov_b32 v13, {BIG}", "s_mov_b32 s21, s29", "s_mov_b32 s20, s7", "v_cndmask_b32 v13, v13, 0, vcc"]
    seq += ["v_lshrrev_b32 v4, 3, v2", "v_lshrrev_b32 v8, 2, v4", "v_lshlrev_b32 v8, 3, v8", "v_and_b32 v11, 3, v4", "v_add_u32 v8, v8, v11", "v_lshlrev_b32 v8, 12, v8",
            "v_lshrrev_b32 v4, 1, v4", "v_and_b32 v11, 7, v2", "v_xor_b32 v4, v4, v11",
            f"v_lshl_add_u32 v{AV[0]}, v4, 4, v8", "v_xor_b32 v4, 4, v4", f"v_lshl_add_u32 v{AV[1]}, v4, 4, v8", f"v_add_u32 v{AV[1]}, {65536-1024}, v{AV[1]}",
            f"v_add_u32 v{AV[2]}, 16384, v{AV[0]}", f"v_add_u32 v{AV[3]}, 16384, v{AV[1]}",
            "v_lshrrev_b32 v4, 1, v3", "v_xor_b32 v4, v4, v12", "v_lshlrev_b32 v4, 4, v4", "v_lshl_add_u32 v4, v3, 7, v4", "v_add_u32 v4, s30, v4", "v_xor_b32 v8, 64, v4"]
    for k in range(-5, 0): seq += a2_group(k)
    seq += [
            WAIT([("V1", 8)])]
    for j in range(J2):
        if j == J1: seq += [WAIT([("Z2", 8)]), VM("buffer_store_dword v5, v13, s[8:11], s24 offen sc1", "FB")]
        seq += z1g(j)
    resolve(pre + seq); emit(a, seq)
    poll_loop(a, "GM_B", ["buffer_load_dword v11, v10, s[8:11], s23 offen sc1"], [11], None)
    a(a.stamp(6))
    pro = []
    for k in range(-9, 0): pro += b2_group(k)
    val = []
    for j in range(J2, 9): val += z1g(j)
    for i in range(72): val.append(f"v_mov_b32 v{ACC+i}, 0")
    pro = [VM("; ", ("A2", Pp, i)) for Pp in range(3) for i in range(4) if (Pp, i) < (2, 2)] + pro[:21] + interleave(val, pro[21:])
    pro += [WAIT(btags(0)), "s_barrier", a.stamp(7)]
    pro += b2_reads(0) + a2_reads(0)
    def mf2(k, j, t):
        r = ACC + (j*2+t)*4
        return f"{MF} v[{r}:{r+3}], a[{B2B+(k%2)*36+4*j}:{B2B+(k%2)*36+4*j+3}], a[{A2B+(k%2)*8+4*t}:{A2B+(k%2)*8+4*t+3}], v[{r}:{r+3}]"
    def kstep2(k):
        o = []
        need = []
        if k % 2 == 1: need += [("A2", (k+1)//2, i) for i in range(4)]
        if k % 4 == 3: need += btags((k+1)//4)
        o.append(WAIT(need, lgkm=True, key=k % 12))
        if k % 4 == 3: o.append("s_barrier")
        m = [mf2(k, j, t) for j in range(9) for t in range(2)]
        f = a2_reads(k+1) + b2_reads(k+1) + a2_group(k) + b2_group(k)
        return o + interleave(m, f)
    steps = [kstep2(k) for k in range(60)]
    tail = f"""
      v_lshlrev_b32 v240, 16, v6
      v_lshlrev_b32 v242, 16, v7
      s_lshr_b32 s22, s5, 1
      s_mul_i32 s22, s22, 9216
      s_mul_i32 s23, s6, {2*73728}
      s_add_u32 s22, s22, s23
      s_add_u32 s22, s22, {PF}
      s_and_b32 s23, s5, 1
      s_lshl_b32 s28, s23, 12
      s_add_u32 s28, s28, s22
      s_add_u32 s29, s28, 73728
      s_lshl_b32 s23, s23, 3
      s_add_u32 s30, s22, s23
      s_add_u32 s30, s30, 8192
      s_add_u32 s31, s30, 73728
      s_add_u32 s24, s24, {FLP-FLB}""".split("\n")
    AL, BL = 88, 120
    tail += [WAIT([("A2", 31, i) for i in range(4)], lgkm=True)]
    for k in (61, 62, 63):
        tail += [f"ds_read_b128 a[{AL+8*(k-61)+4*t}:{AL+8*(k-61)+4*t+3}], {'v4' if k % 2 == 0 else 'v8'} offset:{((k//2) % 3)*4096 + t*2048}" for t in range(2)]
    def bl_reads(j): return [f"ds_read_b128 a[{BL+12*(j%3)+4*(k-61)}:{BL+12*(j%3)+4*(k-61)+3}], v{SL} offset:{(k%4)*9216 + j*1024}" for k in (61, 62, 63)] if j < 9 else []
    tail += bl_reads(0) + bl_reads(1)
    T = 88; O = 96
    def epi(j):
        o = []
        for t in range(2):
            b = 240 + 2*t
            for h in range(2):
                x = ACC + (j*2+t)*4 + 2*h; z = U1 + 8*j + 2*t + h; tt = T + 2*((2*t+h) % 4)
                od = O + ((j//2)*2 + t)*4 + (j%2)*2 + h
                o += [f"v_lshlrev_b32 v{tt}, 16, v{z}", f"v_and_b32 v{tt+1}, 0xffff0000, v{z}",
                      f"v_add_f32 v{x}, v{x}, v{b}", f"v_add_f32 v{x+1}, v{x+1}, v{b}", f"v_mul_f32 v{x}, v{x}, v{tt}", f"v_mul_f32 v{x+1}, v{x+1}, v{tt+1}",
                      f"v_cvt_pk_bf16_f32 v{od}, v{x}, v{x+1}"]
        for t in range(2):
            od = O + ((j//2)*2 + t)*4
            if j % 2 == 1: o.append(VM(f"buffer_store_dwordx4 v[{od}:{od+3}], v1, s[8:11], s{28+t} offen offset:{1024*(j//2)} sc1", ("PS", j, t)))
            if j == 8: o.append(VM(f"buffer_store_dwordx2 v[{od}:{od+1}], v1, s[8:11], s{30+t} offen sc1", ("PS", 9, t)))
        return o
    for j in range(9):
        m_ = [mf2(60, j, 0), mf2(60, j, 1)]
        for k in (61, 62, 63):
            for t in range(2):
                r = ACC + (j*2+t)*4
                m_.append(f"{MF} v[{r}:{r+3}], a[{BL+12*(j%3)+4*(k-61)}:{BL+12*(j%3)+4*(k-61)+3}], a[{AL+8*(k-61)+4*t}:{AL+8*(k-61)+4*t+3}], v[{r}:{r+3}]")
        tail.append(f"s_waitcnt lgkmcnt({3 if j < 8 else 0})")
        tail += interleave(m_, bl_reads(j+2) + (epi(j-2) if j >= 2 else []))
    tail += epi(7) + epi(8)
    keyed = resolve(pro + [x for s_ in steps for x in s_] + tail)
    emit(a, pro)
    if Asm.STAMPS: a.stamp_flush(2, 8)
    a("s_mov_b32 s23, 0\nG2_LOOP:")
    for k in range(12): emit(a, steps[k], keyed)
    a("s_add_u32 s23, s23, 1\ns_cmp_lt_u32 s23, 5\ns_cbranch_scc1 G2_LOOP")
    a(a.stamp(0))
    if Asm.STAMPS: a("s_waitcnt lgkmcnt(0)")
    emit(a, tail)
    seq = [VM("; ", x.tag) for x in tail if isinstance(x, VM)]
    seq += f"""
      s_and_b32 s4, s2, 7
      s_lshl_b32 s4, s4, 2
      s_lshr_b32 s5, s2, 3
      s_and_b32 s6, s5, 3
      s_add_u32 s4, s4, s6                ; mb
      s_lshr_b32 s5, s5, 2                ; nb
      s_mul_i32 s5, s5, 9
      s_lshr_b32 s5, s5, 1                ; n0
      s_mul_i32 s20, s4, {4*73728}
      s_mul_i32 s6, s3, {18*1024}
      s_add_u32 s20, s20, s6
      s_add_u32 s20, s20, {PF}            ; P soffset
      s_mul_i32 s21, s3, {18*36864}
      s_lshl_b32 s6, s5, 10
      s_add_u32 s21, s21, s6
      s_add_u32 s21, s21, {WOUTF}         ; W soffset
      s_lshl_b32 s23, s4, 12
      s_lshl_b32 s6, s3, 9
      s_add_u32 s23, s23, s6
      s_add_u32 s23, s23, {FLP}           ; poll address
      v_and_b32 v10, 3, v2
      v_bfe_u32 v11, v2, 2, 1
      v_lshl_add_u32 v10, v11, 4, v10
      v_lshlrev_b32 v10, 7, v10
      s_waitcnt lgkmcnt(0)""".split("\n")
    PV, LW = 240, 244
    for u in range(4):
        seq += [f"s_add_u32 s6, s3, {u}", "s_and_b32 s6, s6, 3", "s_mul_i32 s7, s6, 73728", f"v_add_u32 v{PV+u}, s7, v1"]
        if u > 0: seq += ["s_mul_i32 s7, s6, 15360", f"s_add_u32 s7, s7, {(u-1)*5120}", f"v_add_u32 v{LW+u}, s7, v1"]
    DEP = 6; AC3 = 16
    def w_loads(k):
        if k >= 18: return []
        r = (k % DEP)*36
        return [VM(f"buffer_load_dwordx4 a[{r+16+4*j}:{r+19+4*j}], {'v1' if j < 4 else 'v251'}, s[8:11], s21 offen offset:{1024*(j%4)}", ("W", k, j)) for j in range(5)] + ["s_add_u32 s21, s21, 36864"]
    def p_loads(k):
        if k >= 18: return []
        r = (k % DEP)*36
        o = [VM(f"buffer_load_dwordx4 a[{r+4*u}:{r+4*u+3}], v{PV+u}, s[8:11], s20 offen offset:{1024*(k%4)} sc1", ("P", k, u)) for u in range(4)]
        if k % 4 == 3: o.append("s_add_u32 s20, s20, 4096")
        return o
    NPRE = 2
    for k in range(NPRE): seq += w_loads(k)
    seq += [a.stamp(1), WAIT([("PS", 9, 1)]), VM("buffer_store_dword v5, v13, s[8:11], s24 offen sc1", "FP"), a.stamp(2), "s_barrier"]
    for k in range(NPRE, DEP-1): seq += w_loads(k)
    XR, GB = 140, 152
    seq += [f"s_lshl_b32 s22, s4, 2", "s_add_u32 s22, s22, s3", "s_mul_i32 s25, s22, 18432", "s_lshl_b32 s24, s5, 9", "s_add_u32 s25, s25, s24", f"s_add_u32 s25, s25, {X1F}",
            "v_lshlrev_b32 v9, 3, v2", "s_lshl_b32 s24, s5, 6", f"s_add_u32 s24, s24, {MOD + 5*576*4}", "v_lshlrev_b32 v8, 4, v12"]
    for j in range(5):
        seq.append(VM(f"buffer_load_dwordx2 v[{XR+2*j}:{XR+1+2*j}], v9, s[8:11], s25 offen offset:{512*j}", ("X", j)))
        seq.append(VM(f"buffer_load_dwordx4 v[{GB+4*j}:{GB+3+4*j}], v8, s[8:11], s24 offen offset:{64*j}", ("G", j)))
    resolve(seq); emit(a, seq)
    a.srd(12, "out")
    poll_loop(a, "GM_P", ["buffer_load_dword v11, v10, s[8:11], s23 offen sc1"], [11], None)
    a(a.stamp(3))
    seq = []
    for k in range(DEP-1): seq += p_loads(k)
    for k in range(18):
        seq.append(WAIT([("P", k, 3)]))
        if k == 0: seq.append(a.stamp(4))
        r = (k % DEP)*36
        m = []
        for u in range(4):
            for j in range(5):
                c = AC3 + (u*5+j)*4
                m.append(f"{MF} v[{c}:{c+3}], a[{r+16+4*j}:{r+19+4*j}], a[{r+4*u}:{r+4*u+3}], {'0' if k == 0 else f'v[{c}:{c+3}]'}")
        seq += interleave(m, w_loads(k+DEP-1) + p_loads(k+DEP-1))
    seq += [a.stamp(5), "s_mul_i32 s7, s3, 15360", "v_add_u32 v11, s7, v1", "s_nop 6"]
    for u in range(1, 4):
        for j in range(5):
            c = AC3 + (u*5+j)*4
            seq.append(f"ds_write_b128 v{LW+u}, v[{c}:{c+3}] offset:{1024*j}")
    seq += ["v_mul_u32_u24 v4, 1152, v248",
            "v_lshl_add_u32 v4, v12, 3, v4", "s_lshr_b32 s25, s22, 1", f"s_mul_i32 s25, s25, {32*1152}", "s_and_b32 s26, s22, 1", f"s_mul_i32 s26, s26, {4*1152}",
            "s_add_u32 s25, s25, s26", "s_lshl_b32 s26, s5, 5", "s_add_u32 s25, s25, s26",
            "s_waitcnt lgkmcnt(0)", "s_barrier"]
    for i in range(15):
        c = AC3 + 20 + 4*i
        seq.append(f"ds_read_b128 v[{c}:{c+3}], v11 offset:{1024*i}")
    seq += ["s_waitcnt lgkmcnt(0)"]
    for j in range(5):
        for h in range(2):
            x = AC3 + 4*j + 2*h
            seq += [f"v_pk_add_f32 {P(x)}, {P(x)}, {P(x+20)}", f"v_pk_add_f32 {P(x+40)}, {P(x+40)}, {P(x+60)}",
                    f"v_lshlrev_b32 v{x+20}, 16, v{XR+2*j+h}", f"v_and_b32 v{x+21}, 0xffff0000, v{XR+2*j+h}",
                    f"v_pk_add_f32 {P(x)}, {P(x)}, {P(x+40)}",
                    f"v_pk_fma_f32 {P(x)}, {P(x)}, {P(GB+4*j+2*h)}, {P(x+20)}",
                    f"v_cvt_pk_bf16_f32 v{XR+2*j+h}, v{x}, v{x+1}"]
        seq.append(VM(f"buffer_store_dwordx2 v[{XR+2*j}:{XR+1+2*j}], v4, s[12:15], s25 offen offset:{32*j}", ("O", j)))
    resolve(seq); emit(a, seq)
    a(a.stamp(6))
    a.stamp_end(3, 8)
    a("GM_END:\ns_endpgm\nGM_CODE_END:")
    a.desc("gm_kernel", 256+248, 256)
```

```python
import sys
from gen_common import *
parts = sys.argv[2].split(",") if len(sys.argv) > 2 else ["f","gm"]
a = Asm()
Asm.STAMPS = len(sys.argv) > 3 and sys.argv[3] == 'stamp'
hdr = open("adaLN_cond__ssm_conv_h3__mixer_gmlp__prompt.s.ref").read().split("; Override launch")[0]
a.raw(hdr.rstrip())
launch = {}; gens = {}
try:
    from gen_g import *
    launch.update(G_LAUNCH); gens.update(G_GENS)
except ImportError:
    pass
from gen_m import *
launch["gm"] = f"; @launch kernel=gm_kernel grid=(256,1,1) block=(256,1,1) lds=163840"
gens["gm"] = gen_gm
from gen_f import *
launch["f"] = f"; @launch kernel=f_kernel grid=({F_GRID},1,1) block=(512,1,1) lds={F_LDS}"
gens["f"] = gen_f
for p in parts: a.raw(launch[p])
a.raw('.amdgcn_target "amdgcn-amd-amdhsa--gfx950"')
for p in parts: gens[p](a)
open(sys.argv[1], "w").write("\n".join(a.L) + "\n")
```

```python
S, D, F, FH = 2048, 576, 4608, 2304
UR    = 0x0000000
ST1   = 0x0480000
MOD   = 0x0488000
MODH  = 0x048C000
UV1   = 0x0490000
UV2   = 0x0495000
ST2   = 0x04A0000
FLF   = 0x04E0000
ST3   = 0x0740000
FLB   = 0x0780000
FLP   = 0x07A0000
MODP  = 0x07C0000
X1F   = 0x0500000
WINF  = 0x0800000
WOUTF = 0x0E00000
WSPF  = 0x1100000
Z1F   = 0x1900000
QP    = 0x1900000
Z2F   = 0x2200000
PF    = 0x2B00000
STAMPB = 0x8000000
WS_SIZE = 0x10000000
KA = dict(q=0, k=8, v=16, shk=24, ssmk=32, ssmD=40, bx=48, win=56, wsp=64, bsp=72, wout=80, c=88, wmod=96, out=104, dbg=112, ws=120)
SZ = dict(q=S*D*2, k=S*D*2, v=S*D*2, shk=D*8, ssmk=D*S*2, ssmD=D*2, win=D*F*2, wsp=S*S*2, bsp=S*2, wout=FH*D*2, c=D*2, wmod=D*6*D*2, out=S*D*2, ws=WS_SIZE, dbg=256)

class Asm:
    def __init__(self):
        self.L = []
    def __call__(self, s):
        for line in s.split("\n"):
            line = line.strip()
            if not line or line == ";": continue
            self.L.append(line if line.endswith(":") or line.startswith(".") else "  " + line)
    def raw(self, s): self.L.append(s)
    def begin(self, name):
        self.raw(f".text\n.globl {name}\n.p2align 8\n.type {name},@function\n{name}:")
    def desc(self, name, vgpr, accum, sgpr=96):
        self.raw(f""".section .rodata,"a"
.p2align 6
.amdhsa_kernel {name}
  .amdhsa_next_free_vgpr {vgpr}
  .amdhsa_next_free_sgpr {sgpr}
  .amdhsa_accum_offset {accum}
  .amdhsa_group_segment_fixed_size 0
  .amdhsa_kernarg_size 128
  .amdhsa_user_sgpr_count 2
  .amdhsa_user_sgpr_kernarg_segment_ptr 1
  .amdhsa_system_sgpr_workgroup_id_x 1
.end_amdhsa_kernel""")
    STAMPS = False
    def stamp(self, i):
        return f"s_memrealtime s[{48+2*i}:{49+2*i}]" if Asm.STAMPS else "; "
    def stamp_end(self, kidx, n, srd="s[8:11]"):
        if not Asm.STAMPS: return
        self("s_mov_b64 exec, -1")
        self("s_waitcnt vmcnt(0)")
        self(self.stamp(n-1))
        self("s_waitcnt lgkmcnt(0)")
        self(f"v_lshrrev_b32 v1, 6, v0\nv_lshlrev_b32 v1, 6, v1\ns_lshl_b32 s46, s2, 9\ns_add_u32 s46, s46, {STAMPB + kidx*0x80000}")
        self("v_and_b32 v2, 63, v0\nv_cmp_eq_u32 vcc, 0, v2\ns_and_saveexec_b64 s[44:45], vcc")
        for i in range(n):
            self(f"v_mov_b32 v2, s{48+2*i}\nv_mov_b32 v3, s{49+2*i}\nbuffer_store_dwordx2 v[2:3], v1, {srd}, s46 offen offset:{8*i}\ns_nop 1")
    def stamp_flush2(self, kidx, n, srd="s[8:11]"):
        self("s_waitcnt lgkmcnt(0)")
        self(f"v_lshrrev_b32 v232, 6, v0\nv_lshlrev_b32 v232, 6, v232\ns_lshl_b32 s46, s2, 9\ns_add_u32 s46, s46, {STAMPB + kidx*0x80000}")
        self("s_mov_b64 exec, 1")
        for i in range(n):
            self(f"v_mov_b32 v234, s{48+2*i}\nv_mov_b32 v235, s{49+2*i}\nbuffer_store_dwordx2 v[234:235], v232, {srd}, s46 offen offset:{8*i}\ns_nop 1")
        self("s_mov_b64 exec, -1\ns_nop 4")
    def load_args(self):
        self("s_load_dwordx16 s[64:79], s[0:1], 0\ns_load_dwordx16 s[80:95], s[0:1], 64")
    def ptr(self, name):
        return 64 + KA[name] // 4
    def srd(self, d, name, size=None, off=None):
        p = self.ptr(name)
        size = SZ[name] if size is None else size
        if off is None:
            self(f"s_mov_b32 s{d}, s{p}\ns_and_b32 s{d+1}, s{p+1}, 0xffff")
        else:
            self(f"s_add_u32 s{d}, s{p}, {off}\ns_addc_u32 s{d+1}, s{p+1}, 0\ns_and_b32 s{d+1}, s{d+1}, 0xffff")
        self(f"s_mov_b32 s{d+2}, {size}\ns_mov_b32 s{d+3}, 0x20000")

def vr(a, n=1, p="v"):
    return f"{p}{a}" if n == 1 else f"{p}[{a}:{a+n-1}]"
def ar(a, n=1): return vr(a, n, "a")
def sr(a, n=1): return vr(a, n, "s")

def interleave(main, fill, start=0, per=None):
    out = []
    n = len(main) - start
    k = 0
    for i, m in enumerate(main):
        out.append(m)
        if i >= start:
            if per is None:
                tgt = (len(fill) * (i - start + 1) + n - 1) // n
            else:
                tgt = min(len(fill), per * (i - start + 1))
            while k < tgt:
                out.append(fill[k]); k += 1
    out += fill[k:]
    return out

import struct
def float_hex(x): return hex(struct.unpack("<I", struct.pack("<f", x))[0])

import os
SLP = int(os.environ.get('SLP', '2'))
```

```python
from gen_common import *
import os
X = os.environ.get('X', '').split(',')
F_GRID = 256
CH_LDS = 25792; KCS = 4160; URO = 16640; URS = 4576; YO = 4*CH_LDS; YS = 9216
QO = YO + 4*YS
F_LDS = QO + 18432 + 16
BIG = 0x7fffff00
FU, FH2, FM = FLF, FLF + 576*128, FLF + 720*128
CNT = QO + 18432

def poll(a, name, addr, dst, nonce="s42", pair=None):
    a(f"""
      s_mov_b32 s43, 0
    {name}_POLL:
      {f"buffer_load_dwordx2 {pair}" if pair else f"buffer_load_dword {dst}"}, {addr}, s[8:11], 0 offen sc1
      s_waitcnt vmcnt(0)
      v_cmp_ne_u32 vcc, {nonce}, {dst}
      s_add_u32 s43, s43, 1
      s_cmp_ge_u32 s43, 0x80000
      s_cbranch_scc1 {name}_GO
      s_nop 2
      s_cbranch_vccz {name}_GO
      s_sleep {SLP}
      s_branch {name}_POLL
    {name}_GO:
    """)
def get_nonce(a, name, tmp):
    a(f"""
      s_mov_b32 s43, 0
      v_mov_b32 {tmp}, 0
    {name}_NP:
      buffer_load_dword {tmp}, {tmp}, s[28:31], 0 offen sc1
      s_waitcnt vmcnt(0)
      v_readfirstlane_b32 s42, {tmp}
      s_add_u32 s43, s43, 1
      s_cmp_ge_u32 s43, 0x80000
      s_cbranch_scc1 {name}_NG
      s_cmp_lg_u32 s42, 0
      s_cbranch_scc1 {name}_NG
      s_sleep {SLP}
      s_branch {name}_NP
    {name}_NG:
    """)
def check_nonce(a, name, reg):
    a(f"""
      v_readfirstlane_b32 s42, {reg}
      s_nop 3
      s_cmp_lg_u32 s42, 0
      s_cbranch_scc1 {name}_NG
    """)
    get_nonce(a, name, reg)
def red32(a, r, t):
    a(f"""
      s_nop 1
      v_add_f32_dpp {r}, {r}, {r} quad_perm:[1,0,3,2] row_mask:0xf bank_mask:0xf
      s_nop 1
      v_add_f32_dpp {r}, {r}, {r} quad_perm:[2,3,0,1] row_mask:0xf bank_mask:0xf
      s_nop 1
      v_add_f32_dpp {r}, {r}, {r} row_half_mirror row_mask:0xf bank_mask:0xf
      s_nop 1
      v_add_f32_dpp {r}, {r}, {r} row_mirror row_mask:0xf bank_mask:0xf
      s_nop 0
      v_mov_b32 {t}, {r}
      s_nop 1
      v_permlane16_swap_b32 {r}, {t}
      s_nop 1
      v_add_f32 {r}, {r}, {t}
    """)
def wsp_loads(a, R):
    a.srd(12, "wsp")
    a(f"""
      s_lshr_b32 s18, s2, 2               ; blk
      s_and_b32 s19, s2, 3
      s_lshl_b32 s19, s19, 2
      s_and_b32 s16, s3, 3
      s_add_u32 s19, s19, s16             ; ks/4
      v_lshrrev_b32 v6, 2, v4
      v_lshlrev_b32 v6, 3, v6
      v_and_b32 v7, 3, v4
      v_add_u32 v6, v6, v7
      v_lshlrev_b32 v6, 12, v6
      v_lshl_add_u32 v6, v5, 4, v6
      v_add_u32 v7, 16384, v6
      s_lshl_b32 s18, s18, 17
      s_lshl_b32 s16, s19, 8
      s_add_u32 s16, s16, s18
      s_lshl_b32 s17, s19, 13
      s_add_u32 s17, s17, s18
      s_add_u32 s17, s17, {WSPF}
    """)
    for i in range(8):
        a(f"buffer_load_dwordx4 v[{R+4*i}:{R+4*i+3}], {['v6','v7'][i%2]}, s[12:15], s16 offen offset:{64*(i//2)} nt")
    a("v_add_u32 v6, 4096, v3")
def wsp_stores(a, R):
    for i in range(8):
        a(f"s_waitcnt vmcnt(7)")
        a(f"buffer_store_dwordx4 v[{R+4*i}:{R+4*i+3}], {['v3','v6'][i//4]}, s[8:11], s17 offen offset:{1024*(i%4)} sc1")

def touch_wsp(a, R, nw):
    if 'ftouch' not in X: return
    a.srd(16, "wsp")
    n = 32 // nw
    a(f"s_lshl_b32 s46, s2, 15\ns_and_b32 s47, s3, {nw-1}\ns_mul_i32 s47, s47, {n*1024}\ns_add_u32 s46, s46, s47")
    for i in range(n):
        if i == 4: a("s_add_u32 s46, s46, 4096")
        a(f"buffer_load_dwordx4 v[{R}:{R+3}], v3, s[16:19], s46 offen offset:{1024*(i%4)}")
def gen_f(a):
    fine = 'fine' in X
    st0 = a.stamp
    FS = (lambda i: st0(i) + "\ns_waitcnt lgkmcnt(0)") if (fine and Asm.STAMPS) else (lambda i: "; ")
    if fine: a.stamp = lambda i: st0(i) if i in (0, 1, 6) else "; "
    a.begin("f_kernel")
    a(f"s_cmp_ge_u32 s2, {F_GRID}\ns_cbranch_scc1 F_END")
    a(a.stamp(0))
    a.load_args()
    a("""
      s_memrealtime s[40:41]
      v_lshrrev_b32 v1, 6, v0
      v_and_b32 v2, 63, v0                ; lane
      v_readfirstlane_b32 s3, v1          ; wave
      v_lshlrev_b32 v3, 4, v2             ; lane*16
      v_and_b32 v4, 15, v2                ; l&15
      v_lshrrev_b32 v5, 4, v2             ; g
      s_and_b32 s4, s2, 7
      s_mul_i32 s4, s4, 18
      s_lshr_b32 s5, s2, 3
      s_add_u32 s4, s4, s5
      s_waitcnt lgkmcnt(0)
    """)
    a.srd(8, "ws"); a.srd(28, "dbg", 256)
    a(f"v_cmp_eq_u32 vcc, 0, v2\nv_mov_b32 v122, {BIG}\ns_nop 0\nv_cndmask_b32 v122, v122, 0, vcc")
    a(f"""
      s_cmp_lg_u32 s2, 255
      s_cbranch_scc1 F_NOTAG
      s_cmp_lg_u32 s3, 0
      s_cbranch_scc1 F_NOTAG
      s_mul_i32 s41, s41, 0x9e3779b1
      s_xor_b32 s40, s40, s41
      s_or_b32 s40, s40, 1
      v_mov_b32 v8, s40
      v_lshlrev_b32 v9, 8, v2
      buffer_store_dword v8, v9, s[28:31], 0 offen sc1
    F_NOTAG:
      s_cmp_ge_u32 s2, 144
      s_cbranch_scc1 F_OTHER
    """)
    a(f"""
      s_and_b32 s5, s4, 15                ; rb
      s_lshr_b32 s6, s4, 4                ; cb
      v_lshrrev_b32 v6, 5, v0             ; rg 0..15
      v_and_b32 v7, 31, v0                ; cp
      s_lshl_b32 s7, s5, 7
      v_lshl_add_u32 v8, v6, 3, s7        ; s0
      s_lshl_b32 s7, s6, 7
      v_lshl_add_u32 v9, v7, 2, s7
      v_mul_u32_u24 v10, 1152, v8
      v_add_u32 v10, v10, v9              ; row s0
      v_subrev_u32 v11, 4608, v10         ; row s0-4
      v_add_u32 v12, 4608, v10            ; row s0+4
      v_lshlrev_b32 v13, 2, v9
    """)
    a.srd(12, "k"); a.srd(16, "v"); a.srd(20, "shk"); a.srd(24, "q"); a.srd(32, "ssmk")
    KR, VR, QR, SQ, TK = 20, 32, 104, 124, 144
    a("buffer_load_dwordx4 v[16:19], v13, s[20:23], 0 offen")
    for i in range(1, 12):
        a(f"buffer_load_dword v{KR+i}, {['v11','v10','v12'][i//4]}, s[12:15], 0 offen offset:{1152*(i%4)} nt")
        if i >= 4: a(f"buffer_load_dword v{VR+i-3}, {['v11','v10','v12'][i//4]}, s[16:19], 0 offen offset:{1152*(i%4)} nt")
    def zero_gm():
        a(f"""
          v_mov_b32 v120, 0
          v_lshlrev_b32 v121, 1, v0
          s_lshl_b32 s46, s2, 10
          s_add_u32 s46, s46, {ST2}
          buffer_store_short v120, v121, s[8:11], s46 offen
          s_and_b32 s46, s3, 3
          s_lshl_b32 s47, s2, 2
          s_add_u32 s46, s46, s47
          s_lshl_b32 s46, s46, 7
          s_lshr_b32 s47, s3, 2
          s_mul_i32 s47, s47, {FLP-FLB}
          s_add_u32 s46, s46, s47
          s_add_u32 s46, s46, {FLB}
          buffer_store_dword v120, v122, s[8:11], s46 offen
        """)
    a(f"""
      s_and_b32 s36, s3, 3
      s_mul_i32 s38, s36, {CH_LDS}
      s_lshl_b32 s7, s4, 2
      s_add_u32 s7, s7, s36               ; channel
      s_lshl_b32 s44, s7, 12
      s_add_u32 s45, s44, {UR}
      v_sub_u32 v13, 15, v6
      v_and_b32 v11, 7, v7
      v_xor_b32 v13, v13, v11
      v_lshlrev_b32 v13, 4, v13
      v_lshl_add_u32 v13, v7, 9, v13
      v_add_u32 v13, {YO}, v13
      v_mov_b32 v123, 0
      v_mov_b32 v15, {CNT}
      ds_write2_b32 v15, v123, v123 offset1:1
      buffer_load_dword v123, v123, s[28:31], 0 offen sc1
      s_lshl_b32 s46, s4, 4
      s_lshl_b32 s47, s36, 2
      s_add_u32 s46, s46, s47
      v_lshrrev_b32 v14, 5, v2
      v_add_u32 v14, s46, v14
      v_mul_u32_u24 v15, 1152, v14
      v_lshl_add_u32 v15, v7, 2, v15
      s_waitcnt vmcnt(1)
      s_cmp_lt_u32 s3, 4
      s_cbranch_scc1 F_P1_C
    """)
    for r in range(2):
        for i in range(9):
            a(f"buffer_load_dword v{SQ+9*r+i}, v15, s[24:27], 0 offen offset:{128*i + 2304*r} nt")
    a("F_P1_C:")
    a(a.stamp(1))
    SH, KU, VU = 50, 58, 82
    for j in range(4):
        op = "v_lshlrev_b32 {d}, 16, {s}" if j % 2 == 0 else "v_and_b32 {d}, 0xffff0000, {s}"
        a(op.format(d=f"v{SH+2*j}", s=f"v{16+j//2}"))
        a(op.format(d=f"v{SH+1+2*j}", s=f"v{18+j//2}"))
    for i in range(1, 12): a(f"v_lshlrev_b32 v{KU+2*i}, 16, v{KR+i}\nv_and_b32 v{KU+1+2*i}, 0xffff0000, v{KR+i}")
    for i in range(1, 9): a(f"v_lshlrev_b32 v{VU+2*i}, 16, v{VR+i}\nv_and_b32 v{VU+1+2*i}, 0xffff0000, v{VR+i}")
    RES = 20
    for i in range(1, 9):
        d = f"v[{RES+2*i}:{RES+1+2*i}]"
        kk = lambda j: f"v[{KU+2*(i+3-j)}:{KU+1+2*(i+3-j)}]"
        a(f"v_pk_mul_f32 {d}, {kk(3)}, v[{SH+6}:{SH+7}]")
        for j in (2, 1, 0): a(f"v_pk_fma_f32 {d}, {kk(j)}, v[{SH+2*j}:{SH+1+2*j}], {d}")
        a(f"v_pk_mul_f32 {d}, {d}, v[{VU+2*i}:{VU+1+2*i}]")
    o = 60
    for ch in range(2):
        for dd in range(4):
            a(f"v_cvt_pk_bf16_f32 v{o+dd}, v{RES+2*(8-2*dd)+ch}, v{RES+2*(7-2*dd)+ch}")
        a(f"ds_write_b128 v13, v[{o}:{o+3}] offset:{ch*256}")
        o += 4
    a(f"""
      v_lshrrev_b32 v11, 4, v0
      v_and_b32 v12, 7, v6
      v_xor_b32 v12, v4, v12
      v_lshlrev_b32 v12, 4, v12
      v_lshl_add_u32 v12, v11, 8, v12
      v_add_u32 v12, {YO}, v12
      v_lshlrev_b32 v11, 12, v11
      v_lshl_add_u32 v11, v4, 4, v11
      s_lshl_b32 s46, s6, 18
      s_sub_u32 s47, 15, s5
      s_lshl_b32 s47, s47, 8
      s_add_u32 s46, s46, s47
      s_add_u32 s46, s46, {UR}
      s_waitcnt lgkmcnt(0)
      {FS(2)}
      s_barrier
      {FS(3)}
      s_cmp_ge_u32 s3, 4
      s_cbranch_scc1 F_HELP
    """)
    for i in range(4): a(f"ds_read_b128 v[{60+4*i}:{63+4*i}], v12 offset:{4096*i}")
    for i in range(4):
        a(f"s_waitcnt lgkmcnt({3-i})")
        a(f"buffer_store_dwordx4 v[{60+4*i}:{63+4*i}], v11, s[8:11], s46 offen sc1")
        if i < 3: a(f"s_add_u32 s46, s46, {16*4096}")
    def kcopy(t):
        a(f"s_add_u32 m0, s38, {t*KCS + 60 - 4*t}\ns_nop 0")
        for i in range(4):
            a(f"buffer_load_dwordx4 v3, s[32:35], s44 offen offset:{1024*i} lds")
    for t in range(4): kcopy(t)
    a(FS(4))
    a("s_waitcnt vmcnt(16)")
    a(FS(5))
    check_nonce(a, "F_C", "v123")
    a(f"""
      {a.stamp(2)}
      v_mov_b32 v14, s42
      s_lshr_b32 s7, s44, 5
      s_add_u32 s7, s7, {FU}
      buffer_store_dword v14, v122, s[8:11], s7 offen sc1
    """)
    p = a.ptr("ssmD"); w = a.ptr("ws")
    a(f"""
      s_lshl_b32 s7, s4, 3
      s_load_dwordx2 s[20:21], s[{p}:{p+1}], s7
      s_lshl_b32 s7, s6, 6
      s_and_b32 s22, s4, 3
      s_add_u32 s7, s7, s22
      v_lshl_add_u32 v14, v4, 2, s7
      v_lshlrev_b32 v14, 7, v14
      v_add_u32 v14, {FU}, v14
      v_mov_b32 v8, 0
      v_mov_b32 v9, 0
      v_mov_b32 v10, 0
      v_mov_b32 v11, 0
      v_mul_u32_u24 v12, {KCS}, v5
      v_lshl_add_u32 v12, v4, 2, v12
      v_add_u32 v12, s38, v12
      v_add_u32 v13, v4, v5
      v_lshrrev_b32 v16, 5, v2
      v_mul_u32_u24 v16, {URS}, v16
      v_and_b32 v15, 31, v2
      v_lshl_add_u32 v16, v15, 4, v16
      v_add_u32 v16, s38, v16
      v_cmp_gt_u32 vcc, 15, v13
      s_and_saveexec_b64 s[46:47], vcc
      ds_write_b32 v12, v8
      s_mov_b64 exec, s[46:47]
      v_cmp_gt_u32 vcc, 28, v15
      s_and_saveexec_b64 s[46:47], vcc
      ds_write_b128 v16, v[8:11] offset:{URO+4096}
      s_mov_b64 exec, s[46:47]
      v_and_b32 v12, 3, v4
      v_mul_u32_u24 v12, {KCS}, v12
      v_lshrrev_b32 v13, 2, v4
      v_add_u32 v13, v13, v5
      v_lshl_add_u32 v12, v13, 4, v12
      v_add_u32 v12, s38, v12
      v_lshrrev_b32 v13, 3, v4            ; p
      v_mul_u32_u24 v13, {URS}, v13
      v_lshl_add_u32 v13, v5, 4, v13
      v_and_b32 v16, 7, v4                ; a'
      v_lshlrev_b32 v16, 6, v16
      v_sub_u32 v13, v13, v16
      s_add_u32 s7, s38, {URO + 448}
      v_add_u32 v13, s7, v13
      v_and_b32 v6, 7, v4
      v_mul_u32_u24 v6, 144, v6
      v_lshl_add_u32 v6, v5, 5, v6
      v_lshrrev_b32 v15, 3, v4
      v_lshl_add_u32 v6, v15, 4, v6
      s_mul_i32 s7, s3, {YS}
      s_add_u32 s7, s7, {YO}
      v_add_u32 v6, s7, v6
      s_waitcnt lgkmcnt(0)
      s_cmp_ge_u32 s3, 2
      s_cselect_b32 s7, s21, s20
      s_and_b32 s22, s3, 1
      s_lshl_b32 s22, s22, 4
      s_lshr_b32 s7, s7, s22
      s_and_b32 s7, s7, 0xffff
      v_mov_b32 v15, s7
      v_lshl_add_u32 v16, v5, 2, v4       ; m + 4g
    """)
    for dd in range(4):
        a(f"v_cmp_eq_u32 vcc, {15-dd}, v16\ns_nop 1\nv_cndmask_b32 v{8+dd}, 0, v15, vcc")
    poll(a, "F_U", "v14", "v15")
    a(a.stamp(3))
    UB = 112
    for i in range(4):
        a(f"buffer_load_dwordx4 v[{UB+8*i}:{UB+8*i+3}], v3, s[8:11], s45 offen offset:{1024*i} sc1")
        a(f"buffer_load_dword v{UB+8*i+4}, v3, s[8:11], s45 offen offset:{1024*i+16} sc1")
    a(f"s_add_u32 s7, s38, {URO}\nv_add_u32 v14, s7, v3\nv_cmp_eq_u32 vcc, 63, v2")
    ACC = 16; FR = [48, 112]
    def reads(buf, r, which="AB"):
        out = []
        for i in range(8):
            if "B" in which: out.append(f"ds_read_b128 v[{FR[buf]+32+4*i}:{FR[buf]+35+4*i}], v13 offset:{64*r + 512*(7-i)}")
            if "A" in which: out.append(f"ds_read_b128 v[{FR[buf]+4*i}:{FR[buf]+3+4*i}], v12 offset:{64*r + 512*i}")
        return out
    def mfmas(buf):
        out = []
        for p_ in range(8):
            for q_ in range(8 - p_):
                j = p_ + q_
                out.append(f"v_mfma_f32_16x16x32_bf16 v[{ACC+4*j}:{ACC+4*j+3}], v[{FR[buf]+4*p_}:{FR[buf]+4*p_+3}], v[{FR[buf]+32+4*q_}:{FR[buf]+35+4*q_}], v[{ACC+4*j}:{ACC+4*j+3}]")
        return out
    for x in reads(0, 0, "A"): a(x)
    for i in range(4):
        b = UB + 8*i
        a(f"s_waitcnt vmcnt({6-2*i})")
        if i == 3: a(f"v_cndmask_b32 v{b+4}, v{b+4}, 0, vcc")
        a(f"ds_write_b128 v14, v[{b}:{b+3}] offset:{URS + 1024*i}")
        for d_ in range(4): a(f"v_alignbit_b32 v{144+4*i+d_}, v{b+d_+1}, v{b+d_}, 16")
        a(f"ds_write_b128 v14, v[{144+4*i}:{147+4*i}] offset:{1024*i}")
        if i == 1: a("s_waitcnt lgkmcnt(0)")
    a("s_waitcnt lgkmcnt(0)")
    a(a.stamp(4))
    for x in reads(0, 0, "B"): a(x)
    touch_wsp(a, 176, 4)
    a("s_waitcnt lgkmcnt(0)")
    for q_ in range(8):
        a(f"v_mfma_f32_16x16x32_bf16 v[{ACC+4*q_}:{ACC+4*q_+3}], v[8:11], v[{FR[0]+32+4*q_}:{FR[0]+35+4*q_}], 0")
    a("s_mov_b32 s7, 0\nF_CLOOP:")
    for x in interleave(mfmas(0), reads(1, 1), per=1): a(x)
    a("s_waitcnt lgkmcnt(0)")
    for x in interleave(mfmas(1), reads(0, 2), per=1): a(x)
    a("""
      v_add_u32 v12, 128, v12
      v_add_u32 v13, 128, v13
      s_add_u32 s7, s7, 1
      s_cmp_lt_u32 s7, 4
      s_waitcnt lgkmcnt(0)
      s_cbranch_scc1 F_CLOOP
      s_nop 3
    """)
    a(a.stamp(5))
    for j in range(8):
        a(f"ds_write_b128 v6, v[{ACC+4*j}:{ACC+4*j+3}] offset:{j*8*144}")
    a("s_waitcnt lgkmcnt(0)\ns_barrier")
    a(f"v_cmp_eq_u32 vcc, 0, v2\nv_mov_b32 v122, {BIG}\ns_nop 0\nv_cndmask_b32 v122, v122, 0, vcc")
    zero_gm()
    a.stamp_end(0, 7)
    a("s_endpgm")

    a("F_HELP:")
    a(f"""
      s_cmp_ge_u32 s4, 128
      s_cbranch_scc1 F_H_SKIP
      v_lshrrev_b32 v8, 1, v7             ; c>>1
      v_and_b32 v9, 7, v8
      s_lshl_b32 s7, s36, 1
      v_xor_b32 v9, s7, v9
      v_lshlrev_b32 v8, 7, v8
      v_lshrrev_b32 v10, 5, v2
      v_lshl_add_u32 v8, v10, 3, v8
      v_and_b32 v10, 1, v7
      v_lshl_add_u32 v8, v10, 2, v8
      v_add_u32 v8, {QO}, v8
      v_lshl_add_u32 v10, v9, 4, v8       ; r = 0
      v_xor_b32 v9, 1, v9
      v_lshl_add_u32 v11, v9, 4, v8       ; r = 1
      s_waitcnt vmcnt(0)
      {FS(4)}
    """)
    for r in range(2):
        for i in range(9): a(f"ds_write_b32 v{10+r}, v{SQ+9*r+i} offset:{2048*i}")
        a("s_waitcnt lgkmcnt(0)")
    a(f"""
      v_mov_b32 v8, 1
      v_mov_b32 v9, {CNT}
      s_mov_b64 exec, 1
      ds_add_u32 v9, v8 offset:4
      s_mov_b64 exec, -1
      v_cmp_eq_u32 vcc, 0, v7
      v_lshlrev_b32 v15, 3, v14
      v_mov_b32 v14, {BIG}
      s_mov_b32 s7, {ST1}
      v_cndmask_b32 v15, v14, v15, vcc
    """)
    a(f"""
      v_and_b32 v1, 255, v0
      v_lshrrev_b32 v10, 3, v1            ; cg (+32 i)
      v_and_b32 v11, 7, v2
      v_xor_b32 v12, v11, v10
      v_and_b32 v12, 7, v12
      v_lshlrev_b32 v12, 4, v12
      v_lshl_add_u32 v12, v10, 7, v12
      v_add_u32 v12, {QO}, v12
      v_lshlrev_b32 v10, 14, v10
      v_lshl_add_u32 v10, v11, 4, v10
      s_lshl_b32 s47, s4, 7
      s_add_u32 s47, s47, {QP}
    F_H_SYNC:
      ds_read_b32 v8, v9 offset:4
      s_waitcnt lgkmcnt(0)
      v_readfirstlane_b32 s46, v8
      s_nop 3
      s_cmp_lt_u32 s46, 4
      s_cbranch_scc1 F_H_SYNC
    """)
    for i in range(4): a(f"ds_read_b128 v[{60+4*i}:{63+4*i}], v12 offset:{4096*i}")
    for i in range(4):
        a(f"s_waitcnt lgkmcnt({3-i})")
        a(f"buffer_store_dwordx4 v[{60+4*i}:{63+4*i}], v10, s[8:11], s47 offen sc1")
        a(f"s_add_u32 s47, s47, {32*16384}")
    a(f"""
      s_cmp_ge_u32 s36, 2
      s_cbranch_scc1 F_H_ST
      ds_read_b128 v[76:79], v12 offset:16384
      s_waitcnt lgkmcnt(0)
      buffer_store_dwordx4 v[76:79], v10, s[8:11], s47 offen sc1
    F_H_ST:
      {FS(5)}
    """)
    U = 20
    for r in range(2):
        for i in range(9): a(f"v_lshlrev_b32 v{U+2*i}, 16, v{SQ+9*r+i}\nv_and_b32 v{U+1+2*i}, 0xffff0000, v{SQ+9*r+i}")
        a(f"v_pk_add_f32 v[16:17], v[{U}:{U+1}], v[{U+2}:{U+3}]")
        for i in range(2, 9): a(f"v_pk_add_f32 v[16:17], v[16:17], v[{U+2*i}:{U+1+2*i}]")
        a("v_add_f32 v16, v16, v17")
        red32(a, "v16", "v17")
        a(f"v_mul_f32 v16, {float_hex(1.0/576)}, v16")
        for i in range(18): a(f"v_sub_f32 v{U+i}, v{U+i}, v16")
        R = 40 + 2*r
        a(f"v_pk_mul_f32 v[{R}:{R+1}], v[{U}:{U+1}], v[{U}:{U+1}]")
        for i in range(1, 9): a(f"v_pk_fma_f32 v[{R}:{R+1}], v[{U+2*i}:{U+1+2*i}], v[{U+2*i}:{U+1+2*i}], v[{R}:{R+1}]")
        a(f"v_add_f32 v{R}, v{R}, v{R+1}")
        red32(a, f"v{R}", f"v{R+1}")
        a(f"""
          v_mov_b32 v{R+1}, {float_hex(1e-5)}
          v_fmac_f32 v{R+1}, {float_hex(1.0/576)}, v{R}
          v_rsq_f32 v{R}, v{R+1}
          s_nop 0
          v_mul_f32 v{R+1}, v16, v{R}
          v_sub_f32 v{R+1}, 0, v{R+1}
          buffer_store_dwordx2 v[{R}:{R+1}], v15, s[8:11], s7 offen offset:{16*r} sc1
        """)
    a(f"""
    F_H_SKIP:
      s_waitcnt vmcnt(0)
    """)
    check_nonce(a, "F_H", "v123")
    a(f"""
      {a.stamp(2)}
      v_mov_b32 v14, 1
      v_mov_b32 v15, {CNT}
      s_mov_b64 exec, 1
      ds_add_rtn_u32 v14, v15, v14
      s_waitcnt lgkmcnt(0)
      v_readfirstlane_b32 s7, v14
      s_mov_b64 exec, -1
      s_cmp_lg_u32 s7, 3
      s_cbranch_scc1 F_H_NOF
      v_mov_b32 v14, s42
      s_lshl_b32 s7, s4, 7
      s_add_u32 s7, s7, {FH2}
      buffer_store_dword v14, v122, s[8:11], s7 offen offset:4 sc1
    F_H_NOF:
    """)
    zero_gm()
    a(f"""
      v_and_b32 v1, 255, v0               ; t
      v_lshrrev_b32 v15, 2, v2
      v_lshlrev_b32 v15, 4, v15
      v_and_b32 v16, 3, v2
      s_lshl_b32 s7, s36, 2
      v_add3_u32 v15, v15, v16, s7
      v_lshlrev_b32 v15, 7, v15
      v_add_u32 v15, {FH2}, v15
      v_bfe_u32 v17, v2, 3, 2
      v_min_u32 v17, 2, v17
      v_mul_u32_u24 v17, 576, v17
      v_bfe_u32 v18, v2, 2, 1
      v_mul_u32_u24 v18, 3456, v18
      s_lshl_b32 s7, s4, 2
      v_add3_u32 v16, v16, v17, v18
      v_add_u32 v16, s7, v16
      v_lshlrev_b32 v16, 3, v16
      v_add_u32 v16, {MODP}, v16
      v_cmp_gt_u32 vcc, 32, v2
      s_nop 1
      v_cndmask_b32 v15, v16, v15, vcc
      v_lshlrev_b32 v9, 3, v1             ; t*8
      s_lshl_b32 s38, s4, 14
      s_add_u32 s38, s38, {QP}
      s_mov_b32 s39, {ST1}
      v_lshrrev_b32 v12, 5, v1
      v_mul_u32_u24 v13, 144, v12
      v_and_b32 v14, 24, v1
      v_and_b32 v16, 1, v1
      v_lshl_add_u32 v14, v16, 2, v14
      v_bfe_u32 v16, v1, 1, 2
      v_add_u32 v14, v14, v16
      v_lshl_add_u32 v13, v14, 2, v13
      v_add_u32 v13, {YO}, v13
      v_mul_u32_u24 v12, 36864, v12
      v_bfe_u32 v14, v1, 2, 1
      v_mul_u32_u24 v14, 18432, v14
      v_add_u32 v12, v12, v14
      v_bfe_u32 v14, v1, 3, 2
      v_lshl_add_u32 v12, v14, 5, v12
      v_and_b32 v14, 3, v1
      v_lshl_add_u32 v12, v14, 3, v12
      s_lshl_b32 s7, s4, 7
      s_add_u32 s7, s7, {X1F}
    """)
    poll(a, "F_HP", "v15", "v11", pair="v[10:11]")
    a(a.stamp(3))
    Q, STT, Y, H, MD, WR = 16, 32, 48, 80, 144, 160
    for i in range(8):
        a(f"buffer_load_dwordx2 v[{STT+2*i}:{STT+1+2*i}], v9, s[8:11], s39 offen offset:{2048*(i%2)} sc1")
        a(f"buffer_load_dwordx2 v[{Q+2*i}:{Q+1+2*i}], v9, s[8:11], s38 offen offset:{2048*(i%2)} sc1")
        if i % 2 == 1 and i < 7: a("s_add_u32 s39, s39, 4096\ns_add_u32 s38, s38, 4096")
    a("""
      v_add_f32_dpp v10, v10, v10 row_shl:4 row_mask:0xf bank_mask:0xf
      v_bfe_u32 v11, v2, 3, 2
      v_cmp_eq_u32 vcc, 1, v11
      v_cvt_pk_bf16_f32 v10, v10, v10
      v_lshlrev_b32 v10, 16, v10
      v_cndmask_b32 v11, 0, 1.0, vcc
      v_add_f32 v10, v10, v11
      v_cvt_pk_bf16_f32 v10, v10, v10
      v_lshlrev_b32 v10, 16, v10
      s_nop 0
    """)
    for i in range(12): a(f"v_readlane_b32 s{12+i}, v10, {32 + 8*(i//4) + i%4}")
    a("s_nop 1")
    for i in range(12): a(f"v_mov_b32 v{MD+i}, s{12+i}")
    for i in range(8):
        q0, q1 = Q+2*i, Q+1+2*i
        t = H + 8*i
        a(f"""
          s_waitcnt vmcnt({14-2*i})
          v_lshlrev_b32 v{t}, 16, v{q0}
          v_and_b32 v{t+1}, 0xffff0000, v{q0}
          v_lshlrev_b32 v{t+2}, 16, v{q1}
          v_and_b32 v{t+3}, 0xffff0000, v{q1}
        """)
        for c in range(4): a(f"v_fma_f32 v{t+4+c}, v{t+c}, v{STT+2*i}, v{STT+2*i+1}")
        for c in range(4): a(f"v_fma_f32 v{t+4+c}, v{t+4+c}, v{MD+4+c}, v{MD+c}")
        for c in range(4): a(f"v_mul_f32 v{t+4+c}, v{t+4+c}, v{MD+8+c}")
    a(a.stamp(4))
    a("s_barrier")
    a(a.stamp(5))
    def yrd(i):
        for c in range(4):
            a(f"ds_read_b32 v{Y+4*i+c}, v13 offset:{c*YS + i*8*144}")
    if Asm.STAMPS: a("s_waitcnt lgkmcnt(0)")
    for i in range(3): yrd(i)
    for i in range(8):
        t = H + 8*i
        a(f"s_waitcnt lgkmcnt({min(8, 28-4*i)})")
        if i + 3 < 8: yrd(i+3)
        a(f"""
          v_pk_fma_f32 v[{t}:{t+1}], v[{t+4}:{t+5}], v[{Y+4*i}:{Y+1+4*i}], v[{t}:{t+1}]
          v_pk_fma_f32 v[{t+2}:{t+3}], v[{t+6}:{t+7}], v[{Y+2+4*i}:{Y+3+4*i}], v[{t+2}:{t+3}]
          v_cvt_pk_bf16_f32 v{Q+2*i}, v{t}, v{t+1}
          v_cvt_pk_bf16_f32 v{Q+1+2*i}, v{t+2}, v{t+3}
          buffer_store_dwordx2 v[{Q+2*i}:{Q+1+2*i}], v12, s[8:11], s7 offen sc1
        """)
        if i < 7: a(f"s_add_u32 s7, s7, {8*36864}")
    a.stamp_end(0, 7)
    a("s_endpgm")

    a("F_OTHER:")
    a("s_cmp_ge_u32 s2, 252\ns_cbranch_scc1 F_LAST")
    a("s_cmp_lt_u32 s2, 216\ns_cbranch_scc1 F_WIN")
    a.srd(12, "wmod"); a.srd(16, "c")
    a(f"""
      s_sub_u32 s4, s2, 216
      s_and_b32 s5, s4, 1                 ; half
      s_lshr_b32 s4, s4, 1                ; cbk
      s_mul_i32 s6, s5, 288
      v_and_b32 v6, 7, v0                 ; chunk
      v_lshrrev_b32 v7, 3, v0
      v_add_u32 v10, s6, v7
      v_mul_u32_u24 v8, 6912, v10
      v_lshl_add_u32 v8, v6, 4, v8
      v_lshlrev_b32 v9, 1, v10
      s_cmp_lt_u32 s3, 4
      s_cselect_b32 s7, 0, {BIG}
      v_add_u32 v11, s7, v8
      v_add_u32 v12, s7, v9
      s_add_u32 s20, s4, 27
      s_mov_b32 s21, s4
      s_add_u32 s22, s4, 18
      s_add_u32 s23, s4, 36
      s_cmp_lt_u32 s4, 9
      s_cselect_b32 s22, s22, s23
      v_mov_b32 v123, 0
    """)
    C, T, AC = 16, 24, 32
    for i in range(5): a(f"buffer_load_ushort v{C+i}, {'v9' if i < 4 else 'v12'}, s[16:19], 0 offen offset:{128*i}")
    def mloads(r):
        b = 48 + 20*(r % 2)
        a(f"s_lshl_b32 s24, s{20+r}, 7")
        for i in range(5):
            a(f"buffer_load_dwordx4 v[{b+4*i}:{b+3+4*i}], {'v8' if i < 4 else 'v11'}, s[12:15], s24 offen nt")
            if i < 4: a(f"s_add_u32 s24, s24, {64*6912}")
    mloads(0)
    a("buffer_load_dword v123, v123, s[28:31], 0 offen sc1")
    a("s_waitcnt vmcnt(6)")
    a("\n".join(f"v_lshlrev_b32 v{C+i}, 16, v{C+i}" for i in range(5)))
    a("\n".join(f"v_mul_f32 v{T+i}, {float_hex(-1.4426950408889634)}, v{C+i}" for i in range(5)))
    a("\n".join(f"v_exp_f32 v{T+i}, v{T+i}" for i in range(5)))
    a("\n".join(f"v_add_f32 v{T+i}, 1.0, v{T+i}" for i in range(5)))
    a("\n".join(f"v_rcp_f32 v{T+i}, v{T+i}" for i in range(5)))
    a("\n".join(f"v_mul_f32 v{C+i}, v{C+i}, v{T+i}" for i in range(5)))
    a("\n".join(f"v_cvt_pk_bf16_f32 v{C+i}, v{C+i}, v{C+i}" for i in range(5)))
    a("\n".join(f"v_lshlrev_b32 v{C+i}, 16, v{C+i}" for i in range(5)))
    a(f"""
      v_lshlrev_b32 v13, 8, v1
      v_lshl_add_u32 v13, v6, 5, v13
      v_lshlrev_b32 v14, 2, v2
      v_lshlrev_b32 v15, 3, v2
      s_mul_i32 s25, s5, {3456*8}
      s_add_u32 s25, s25, {MODP}
      s_waitcnt vmcnt(0)
    """)
    check_nonce(a, "F_M", "v123")
    for r in range(3):
        b = 48 + 20*(r % 2)
        if r > 0: a("s_waitcnt vmcnt(0)")
        if r < 2: mloads(r+1)
        for i in range(5):
            for dd in range(4):
                src = f"v{b+4*i+dd}"
                a(f"v_lshlrev_b32 v24, 16, {src}\nv_and_b32 v25, 0xffff0000, {src}")
                if i == 0: a(f"v_mul_f32 v{AC+2*dd}, v{C}, v24\nv_mul_f32 v{AC+1+2*dd}, v{C}, v25")
                else: a(f"v_fmac_f32 v{AC+2*dd}, v{C+i}, v24\nv_fmac_f32 v{AC+1+2*dd}, v{C+i}, v25")
        a("s_nop 1")
        for j in range(8): a(f"v_add_f32_dpp v{AC+j}, v{AC+j}, v{AC+j} row_ror:8 row_mask:0xf bank_mask:0xf")
        for sw in ("16", "32"):
            for j in range(8): a(f"v_mov_b32 v{40+j}, v{AC+j}")
            a("s_nop 1")
            for j in range(8): a(f"v_permlane{sw}_swap_b32 v{AC+j}, v{40+j}")
            a("s_nop 1")
            for j in range(8): a(f"v_add_f32 v{AC+j}, v{AC+j}, v{40+j}")
        a(f"""
          s_mov_b64 exec, 0xff
          ds_write_b128 v13, v[{AC}:{AC+3}] offset:{2048*r}
          ds_write_b128 v13, v[{AC+4}:{AC+7}] offset:{2048*r+16}
          s_mov_b64 exec, -1
          s_waitcnt lgkmcnt(0)
          s_barrier
          s_cmp_lg_u32 s3, {7-r}
          s_cbranch_scc1 F_MOD_N{r}
        """)
        for i in range(8): a(f"ds_read_b32 v{AC+i}, v14 offset:{2048*r + 256*i}")
        a(f"s_lshl_b32 s24, s{20+r}, 9\ns_add_u32 s24, s24, s25\ns_waitcnt lgkmcnt(0)")
        for i in range(4): a(f"v_add_f32 v{AC+i}, v{AC+i}, v{AC+4+i}")
        a(f"""
          v_add_f32 v{AC}, v{AC}, v{AC+1}
          v_add_f32 v{AC+2}, v{AC+2}, v{AC+3}
          v_add_f32 v{AC}, v{AC}, v{AC+2}
          v_mov_b32 v{AC+1}, s42
          buffer_store_dwordx2 v[{AC}:{AC+1}], v15, s[8:11], s24 offen sc1
          s_nop 1
        F_MOD_N{r}:
        """)
        a(a.stamp(1+r))
    a(a.stamp(4))
    a("s_branch F_LAST")
    TB = 73728; WO = 81920
    a("F_WIN:")
    a.srd(20, "win"); a.srd(12, "wout")
    a(f"""
      s_sub_u32 s4, s2, 144
      s_lshr_b32 s5, s4, 3
      s_and_b32 s4, s4, 7
      s_mul_i32 s4, s4, 9
      s_add_u32 s4, s4, s5                ; unit
      s_and_b32 s24, s3, 3                ; jn
      s_lshr_b32 s25, s3, 2               ; K half
      v_lshrrev_b32 v10, 3, v2
      v_and_b32 v11, 7, v2
      v_and_b32 v12, 6, v10
      v_xor_b32 v11, v11, v12
      v_lshlrev_b32 v11, 4, v11           ; chunk*16
      v_lshrrev_b32 v8, 2, v2
      v_lshlrev_b32 v8, 7, v8
      v_and_b32 v12, 3, v10
      v_xor_b32 v12, s24, v12
      v_lshl_add_u32 v8, v12, 5, v8
      v_and_b32 v12, 3, v2
      v_lshl_add_u32 v8, v12, 3, v8
      s_mul_i32 s26, s25, 36864
      v_add_u32 v9, s26, v8
      s_mul_i32 s26, s25, {144*128}
      s_add_u32 s26, s26, {WO}
      v_add_u32 v8, s26, v8
      s_mul_i32 s6, s3, 9216
      s_mul_i32 s7, s3, {72*9216}
      s_lshl_b32 s5, s4, 7
      s_add_u32 s7, s7, s5
      v_mul_u32_u24 v7, 1152, v10
      v_add_u32 v7, v7, v11
      v_mul_u32_u24 v10, 9216, v10
      v_add_u32 v11, v11, v10
      s_mul_i32 s33, s4, 7282
      s_lshr_b32 s33, s33, 16             ; q8
      s_mul_i32 s5, s33, 9
      s_sub_u32 s32, s4, s5               ; cblk
    """)
    a.srd(16, "ssmk")
    a("v_lshlrev_b32 v14, 4, v0\ns_lshl_b32 s5, s4, 15")
    for i in range(4):
        a(f"buffer_load_dwordx4 v[{16+4*i}:{19+4*i}], v14, s[16:19], s5 offen")
        if i < 3: a("s_add_u32 s5, s5, 8192")
    for i in range(9):
        a(f"s_add_u32 m0, s6, {1024*i}\ns_nop 0")
        a(f"buffer_load_dwordx4 v11, s[20:23], s7 offen nt lds")
        if i < 8: a(f"s_add_u32 s7, s7, {8*9216}")
    zero_gm()
    get_nonce(a, "F_W", "v14")
    a(f"""
      v_min_u32 v6, 287, v0
      v_lshlrev_b32 v12, 4, v6
      s_mov_b32 s16, {MODP + 3*576*8}
      s_mov_b32 s17, {MODP + 3*576*8 + 3456*8}
      s_mov_b32 s18, {MODP + 4*576*8}
      s_mov_b32 s19, {MODP + 4*576*8 + 3456*8}
      s_mov_b32 s43, 0
      s_cmp_ge_u32 s3, 5
      s_cbranch_scc1 F_WG_SKIP
    F_WG_POLL:
    """)
    for i in range(4): a(f"buffer_load_dwordx4 v[{16+4*i}:{19+4*i}], v12, s[8:11], s{16+i} offen sc1")
    a("s_waitcnt vmcnt(0)\nv_xor_b32 v13, s42, v17")
    for r_ in (19, 21, 23, 25, 27, 29, 31): a(f"v_xor_b32 v14, s42, v{r_}\nv_or_b32 v13, v13, v14")
    a(f"""
      v_cmp_ne_u32 vcc, 0, v13
      s_add_u32 s43, s43, 1
      s_cmp_ge_u32 s43, 0x80000
      s_cbranch_scc1 F_WG_GO
      s_nop 2
      s_cbranch_vccz F_WG_GO
      s_sleep {SLP}
      s_branch F_WG_POLL
    F_WG_GO:
      v_add_f32 v16, v16, v20
      v_add_f32 v18, v18, v22
      v_add_f32 v24, v24, v28
      v_add_f32 v26, v26, v30
      v_cvt_pk_bf16_f32 v16, v16, v18
      v_cvt_pk_bf16_f32 v24, v24, v26
      v_and_b32 v25, 0xffff0000, v24
      v_lshlrev_b32 v24, 16, v24
      v_add_f32 v24, 1.0, v24
      v_add_f32 v25, 1.0, v25
      v_cvt_pk_bf16_f32 v24, v24, v25
      v_and_b32 v25, 0xffff0000, v24
      v_lshlrev_b32 v24, 16, v24
      v_lshlrev_b32 v13, 3, v6
      v_lshlrev_b32 v14, 2, v6
      v_add_u32 v13, {TB}, v13
      v_add_u32 v14, {TB+3072}, v14
      ds_write_b64 v13, v[24:25]
      ds_write_b32 v14, v16
    F_WG_SKIP:
      {a.stamp(1)}
      s_lshl_b32 s16, s4, 2
      s_add_u32 s16, s16, s24             ; fc
      s_cmp_ge_u32 s16, 144
      s_cselect_b32 s17, 144, 0
      s_cselect_b32 s18, 0, {18*9216}
      s_cselect_b32 s23, 1, 0             ; is z2
      s_sub_u32 s34, s16, s17             ; fcl
      s_mul_i32 s19, s34, 7282
      s_lshr_b32 s19, s19, 16             ; nt
      s_mul_i32 s20, s19, 9
      s_sub_u32 s20, s34, s20             ; j
      s_mul_i32 s19, s19, {36*9216}
      s_lshl_b32 s20, s20, 10
      s_add_u32 s19, s19, s20
      s_add_u32 s19, s19, s18
      s_mul_i32 s20, s25, {9*9216}
      s_add_u32 s19, s19, s20
      s_add_u32 s35, s19, {WINF}
      s_mul_i32 s20, s25, 1152
      s_add_u32 s20, s20, {TB}
      v_lshl_add_u32 v12, v5, 4, s20
      s_mul_i32 s20, s25, 576
      s_add_u32 s20, s20, {TB+3072}
      v_lshl_add_u32 v13, v5, 3, s20
      v_mov_b32 v14, 0                    ; u
      v_mov_b32 v15, 0                    ; v
      s_mov_b32 s21, 0x3f803f80
      s_mul_i32 s7, s33, {288*1152}
      s_mul_i32 s5, s3, {8*1152}
      s_add_u32 s7, s7, s5
      s_lshl_b32 s5, s32, 7
      s_add_u32 s7, s7, s5
      s_lshl_b32 s6, s3, 10
      s_waitcnt vmcnt(0) lgkmcnt(0)
      s_barrier
      {a.stamp(2)}
    """)
    for i in range(5):
        if i == 4: a("s_cmp_ge_u32 s3, 4\ns_cbranch_scc1 F_WO_I")
        a(f"s_add_u32 m0, s6, {WO + 8192*i}\ns_nop 0")
        a(f"buffer_load_dwordx4 v7, s[12:15], s7 offen nt lds")
        if i < 4: a(f"s_add_u32 s7, s7, {64*1152}")
    a("F_WO_I:")
    touch_wsp(a, 176, 8)
    def rd(ks):
        b = 16 + 16*(ks % 3)
        a(f"""
          ds_read_b64_tr_b16 v[{b}:{b+1}], v9 offset:{4096*ks}
          ds_read_b64_tr_b16 v[{b+2}:{b+3}], v9 offset:{4096*ks+2048}
          ds_read_b128 v[{b+4}:{b+7}], v12 offset:{128*ks}
          ds_read_b128 v[{b+8}:{b+11}], v12 offset:{128*ks+64}
          ds_read_b64 v[{b+12}:{b+13}], v13 offset:{64*ks}
          ds_read_b64 v[{b+14}:{b+15}], v13 offset:{64*ks+32}
        """)
    if Asm.STAMPS: a("s_waitcnt lgkmcnt(0)")
    rd(0); rd(1)
    for ks in range(9):
        b = 16 + 16*(ks % 3); t = 64; o = 72 + 4*(ks % 2)
        if ks + 2 < 9:
            a("s_waitcnt lgkmcnt(6)"); rd(ks+2)
        else: a(f"s_waitcnt lgkmcnt({6 if ks + 1 < 9 else 0})")
        for dd in range(4):
            a(f"v_lshlrev_b32 v{t+2*dd}, 16, v{b+dd}\nv_and_b32 v{t+1+2*dd}, 0xffff0000, v{b+dd}")
        for dd in range(4): a(f"v_dot2c_f32_bf16 v15, v{b+dd}, v{b+12+dd}")
        for dd in range(4): a(f"v_pk_mul_f32 v[{t+2*dd}:{t+1+2*dd}], v[{t+2*dd}:{t+1+2*dd}], v[{b+4+2*dd}:{b+5+2*dd}]")
        for dd in range(4): a(f"v_cvt_pk_bf16_f32 v{o+dd}, v{t+2*dd}, v{t+1+2*dd}")
        a(f"buffer_store_dwordx4 v[{o}:{o+3}], v3, s[8:11], s35 offen sc1")
        for dd in range(4): a(f"v_dot2c_f32_bf16 v14, s21, v{o+dd}")
        if ks < 8: a("s_add_u32 s35, s35, 9216")
    a("s_nop 2")
    for sw in ("16", "32"):
        a(f"""
          v_mov_b32 v16, v14
          v_mov_b32 v17, v15
          s_nop 1
          v_permlane{sw}_swap_b32 v14, v16
          v_permlane{sw}_swap_b32 v15, v17
          s_nop 1
          v_add_f32 v14, v14, v16
          v_add_f32 v15, v15, v17
        """)
    a(f"""
      {a.stamp(3)}
      s_lshl_b32 s20, s24, 7
      s_add_u32 s20, s20, {TB+5120}
      v_lshl_add_u32 v18, v4, 3, s20
      v_lshlrev_b32 v16, 2, v4
      v_lshlrev_b32 v17, 3, v4
      s_cmp_lt_u32 s3, 4
      s_cbranch_scc1 F_WIN_NW
      ds_write_b64 v18, v[14:15]
    F_WIN_NW:
      s_mul_i32 s19, s33, 9
      s_lshl_b32 s16, s25, 2
      s_add_u32 s19, s19, s16
      s_mul_i32 s19, s19, 36864
      s_lshl_b32 s16, s32, 2
      s_add_u32 s16, s16, s24
      s_lshl_b32 s16, s16, 10
      s_add_u32 s19, s19, s16
      s_add_u32 s35, s19, {WOUTF}
      s_waitcnt vmcnt({13 if 'ftouch' in X else 9}) lgkmcnt(0)
      s_barrier
      {a.stamp(4)}
    """)
    for i in range(4):
        r = 24 + 4*i
        a(f"ds_read_b64_tr_b16 v[{r}:{r+1}], v8 offset:{32*i*128}")
        a(f"ds_read_b64_tr_b16 v[{r+2}:{r+3}], v8 offset:{(32*i+16)*128}")
    a("s_waitcnt lgkmcnt(0)")
    for i in range(4):
        r = 24 + 4*i
        a(f"buffer_store_dwordx4 v[{r}:{r+3}], v3, s[8:11], s35 offen sc1")
        a("s_add_u32 s35, s35, 36864")
    a(f"""
      s_cmp_ge_u32 s3, 4
      s_cbranch_scc1 F_FIN
      ds_read_b64_tr_b16 v[40:41], v8 offset:{128*128}
      ds_read_b64_tr_b16 v[42:43], v8 offset:{272*128}
      ds_read_b64 v[20:21], v18
      s_add_u32 s35, s35, {4*36864}
      s_waitcnt lgkmcnt(0)
      buffer_store_dwordx4 v[40:43], v3, s[8:11], s35 offen sc1
      v_add_f32 v14, v14, v20
      v_add_f32 v15, v15, v21
      s_mov_b64 exec, 0xffff
      s_cmp_eq_u32 s23, 1
      s_cbranch_scc1 F_WIN_Z2
      s_lshl_b32 s16, s34, 6
      s_add_u32 s16, s16, {UV1}
      buffer_store_dword v14, v16, s[8:11], s16 offen
      s_add_u32 s16, s16, 9216
      buffer_store_dword v15, v16, s[8:11], s16 offen
      s_branch F_FIN
    F_WIN_Z2:
      s_lshl_b32 s16, s34, 7
      s_add_u32 s16, s16, {UV2}
      buffer_store_dwordx2 v[14:15], v17, s[8:11], s16 offen
      s_branch F_FIN
    """)
    a("F_LAST:")
    zero_gm()
    touch_wsp(a, 176, 8)
    a("""
    F_WARM:
      s_getpc_b64 s[12:13]
    F_PC:
      s_add_u32 s12, s12, gm_kernel-F_PC
      s_addc_u32 s13, s13, 0
      s_and_b32 s13, s13, 0xffff
      s_mov_b32 s14, GM_CODE_END-gm_kernel
      s_mov_b32 s15, 0x20000
      v_lshlrev_b32 v6, 7, v0
      buffer_load_dword v7, v6, s[12:15], 0 offen
    F_FIN:
    """)
    a.stamp_end(0, 6)
    a("F_END:\ns_endpgm")
    a.stamp = st0
    a.desc("f_kernel", 180, 180)
```

```python
from gen_common import *
import os
X = os.environ.get('X', '').split(',')
G_LDS = 147456
MF = "v_mfma_f32_16x16x32_bf16"
C0 = -2*0.7978845608028654*1.4426950408889634
C1 = C0*0.044715

class VM:
    def __init__(self, text, tag): self.text, self.tag = text, tag
class WAIT:
    def __init__(self, tags, lgkm=False, key=None): self.tags, self.lgkm, self.key = tags, lgkm, key

def resolve(seq):
    issued = []; res = {}
    pos = {}
    for it in seq:
        if isinstance(it, VM):
            pos[it.tag] = len(issued); issued.append(it.tag)
        elif isinstance(it, WAIT):
            idx = [pos[t] for t in it.tags if t in pos]
            assert len(idx) == len(it.tags), ("missing", [t for t in it.tags if t not in pos])
            it.n = min(len(issued) - 1 - max(idx), 62) if idx else 63
            if it.key is not None: res[it.key] = min(res.get(it.key, 63), it.n)
    return res
def emit(a, seq, keyed=None):
    for it in seq:
        if isinstance(it, VM): a(it.text)
        elif isinstance(it, WAIT):
            n = keyed[it.key] if (keyed is not None and it.key is not None) else it.n
            s = []
            if n < 63: s.append(f"vmcnt({n})")
            if it.lgkm: s.append("lgkmcnt(0)")
            if s: a("s_waitcnt " + " ".join(s))
        else: a(it)

def spread(main, fill):
    groups = []; cur = []; other = []
    for x in fill:
        if isinstance(x, VM): groups.append(cur + [x]); cur = []
        elif isinstance(x, str) and x.startswith("s_") and not x.startswith("s_waitcnt"):
            if x != "s_nop 0": cur.append(x)
        else: other.append(x)
    tailops = cur
    n = len(main); slots = [[] for _ in range(n)]
    G = len(groups)
    for i, gr in enumerate(groups):
        pos = min(n-1, (i*n + n//2) // G) if G else 0
        pos = max(pos, 1)
        if len(gr) > 1:
            if i > 0 and slots[pos] : slots[pos] += gr[:-1] + ["s_nop 0"]
            else: slots[pos-1] += gr[:-1]
        slots[pos].append(gr[-1])
    slots[n-1] += tailops
    k = 0
    per = 1
    while k < len(other):
        free = [i for i in range(n) if len(slots[i]) < per]
        need = len(other) - k
        if len(free) >= need or per > 8:
            break
        per += 1
    out = []
    for i in range(n):
        out.append(main[i])
        room = max(0, per - len(slots[i]))
        out += other[k:k+room]; k += min(room, len(other)-k)
        out += slots[i]
    out += other[k:]
    return out
def sched(main, ds, vm_groups, other=[], ds_per=1, vm_start=2):
    n = len(main); slots = [[] for _ in range(n)]
    for i, x in enumerate(ds): slots[min(n-1, i // ds_per)].append(x)
    G = len(vm_groups)
    last = -1
    for i, gr in enumerate(vm_groups):
        pos = vm_start + (i * (n - vm_start)) // G
        pos = min(n-1, max(pos, last + 1)) if last + 1 < n else n-1
        pre = [x for x in gr if not isinstance(x, VM)]
        vm = [x for x in gr if isinstance(x, VM)]
        if vm and pre:
            if pos - 1 >= last and pos >= 1 and pos != last: slots[pos-1] += pre
            else: slots[pos] += pre + ["s_nop 0"]
        elif pre: slots[pos] += pre
        slots[pos] += vm
        last = pos
    k = 0
    for i in range(n):
        tgt = (len(other) * (i+1) + n - 1) // n
        slots[i] += other[k:tgt]; k = max(k, tgt)
    out = []
    for i in range(n): out += [main[i]] + slots[i]
    return out
def vgroups(fill):
    groups = []; cur = []
    for x in fill:
        if x == "s_nop 0": continue
        cur.append(x)
        if isinstance(x, VM): groups.append(cur); cur = []
    return groups, cur
def tile_ids(a):
    a("""
      v_lshrrev_b32 v1, 6, v0
      v_and_b32 v2, 63, v0
      v_readfirstlane_b32 s3, v1
      v_lshlrev_b32 v1, 4, v2
      v_and_b32 v3, 15, v2
      v_lshrrev_b32 v12, 4, v2
      s_and_b32 s6, s2, 7
      s_lshr_b32 s7, s2, 3
      s_lshr_b32 s4, s6, 1
      s_lshl_b32 s4, s4, 2
      s_and_b32 s5, s7, 3
      s_add_u32 s4, s4, s5                ; mt
      s_and_b32 s5, s6, 1
      s_lshl_b32 s5, s5, 3
      s_lshr_b32 s7, s7, 2
      s_add_u32 s5, s5, s7                ; nt
      s_lshl_b32 s6, s4, 2
      s_add_u32 s6, s6, s3
      s_mul_i32 s7, s3, 9216
    """)

P0 = {3: (0, 3), 0: (3, 2), 1: (5, 2), 2: (7, 2)}
def dma_group(k, srd, soff, ntiles=None, fl=''):
    T = (k + 1) // 4 + 3
    if ntiles is not None and T >= ntiles: return []
    p0, cnt = P0[k % 4]
    out = [f"s_add_u32 m0, s7, {(T % 4)*36864 + p0*1024}", "s_nop 0"]
    for i in range(cnt):
        out.append(VM(f"buffer_load_dwordx4 v1, {srd}, {soff} offen offset:{1024*i} {fl} lds", ("B", T, p0+i)))
    inc = cnt*1024 if k % 4 != 2 else 36864 - 7168
    out.append(f"s_add_u32 {soff}, {soff}, {inc}")
    return out
def dma_tile(T, srd, soff, fl=''):
    out = []
    for k in (3, 0, 1, 2):
        p0, cnt = P0[k]
        out += [f"s_add_u32 m0, s7, {(T % 4)*36864 + p0*1024}", "s_nop 0"]
        for i in range(cnt):
            out.append(VM(f"buffer_load_dwordx4 v1, {srd}, {soff} offen offset:{1024*i} {fl} lds", ("B", T, p0+i)))
        out.append(f"s_add_u32 {soff}, {soff}, {cnt*1024 if k != 2 else 36864-7168}")
    return out
def btags(T): return [("B", T, p) for p in range(9)]
def b_reads(k, bbase, slotv):
    T = k // 4
    return [f"ds_read_b128 a[{bbase + (k%2)*36 + 4*j}:{bbase + (k%2)*36 + 4*j + 3}], v{slotv + T % 4} offset:{(k%4)*9216 + j*1024}" for j in range(9)]

def gelu_pairs(xs, ts):
    o = []
    P = lambda r: f"v[{r}:{r+1}]"
    for x, t in zip(xs, ts): o.append(f"v_pk_mul_f32 {P(t)}, {P(x)}, {P(x)}")
    for x, t in zip(xs, ts): o.append(f"v_pk_fma_f32 {P(t)}, {P(t)}, s[40:41], v[14:15]")
    for x, t in zip(xs, ts): o.append(f"v_pk_mul_f32 {P(t)}, {P(t)}, {P(x)}")
    for x, t in zip(xs, ts): o += [f"v_exp_f32 v{t}, v{t}", f"v_exp_f32 v{t+1}, v{t+1}"]
    for x, t in zip(xs, ts): o.append(f"v_pk_add_f32 {P(t)}, {P(t)}, 1.0 op_sel_hi:[1,0]")
    for x, t in zip(xs, ts): o += [f"v_rcp_f32 v{t}, v{t}", f"v_rcp_f32 v{t+1}, v{t+1}"]
    for x, t in zip(xs, ts): o.append(f"v_pk_mul_f32 {P(x)}, {P(x)}, {P(t)}")
    return o
def ror_reduce(regs, final=None):
    o = ["s_nop 1"]
    for rot in (8, 4, 2, 1):
        for i, r in enumerate(regs):
            d = final[i] if (final and rot == 1) else r
            o.append(f"v_add_f32_dpp v{d}, v{r}, v{r} row_ror:{rot} row_mask:0xf bank_mask:0xf")
    return o
def ln_finish(s1, s2, n, cnt, t):
    o = []
    inv = float_hex(1.0/n)
    for x in s1: o.append(f"v_mul_f32 v{x}, {inv}, v{x}")
    for y in s2: o.append(f"v_mul_f32 v{y}, {inv}, v{y}")
    for x, y in zip(s1, s2): o.append(f"v_fma_f32 v{y}, -v{x}, v{x}, v{y}")
    for y in s2: o.append(f"v_max_f32 v{y}, 0, v{y}")
    for y in s2: o.append(f"v_add_f32 v{y}, {float_hex(1e-5)}, v{y}")
    for y in s2: o.append(f"v_rsq_f32 v{y}, v{y}")
    o.append("s_nop 0")
    for x, y in zip(s1, s2): o.append(f"v_mul_f32 v{x}, -v{x}, v{y}")
    return o

def gen_g1(a):
    a.begin("g1_kernel")
    a("s_cmp_ge_u32 s2, 256\ns_cbranch_scc1 G1_END")
    a(a.stamp(0))
    a.load_args()
    tile_ids(a)
    a("s_waitcnt lgkmcnt(0)")
    a.srd(8, "ws")
    SL = 252
    a(f"""
      s_mul_i32 s20, s5, {36*9216}
      s_add_u32 s20, s20, s7
      s_add_u32 s20, s20, {WINF}
      s_mul_i32 s21, s6, 36864
      s_add_u32 s21, s21, {X1F}           ; A soffset
      v_lshlrev_b32 v13, 3, v2            ; lane*8
      v_add_u32 v8, 18432, v13
      v_mov_b32 v{SL}, v1
      v_add_u32 v{SL+1}, 36864, v1
      v_add_u32 v{SL+2}, {2*36864}, v1
      v_add_u32 v{SL+3}, {3*36864}, v1
      v_mov_b32 v4, 0x3f803f80
      v_mov_b32 v5, 0x3f803f80
      v_mov_b32 v6, 0x3f803f80
      v_mov_b32 v7, 0x3f803f80
      s_mov_b32 s40, {float_hex(C1)}
      s_mov_b32 s41, {float_hex(C1)}
      v_mov_b32 v14, {float_hex(C0)}
      v_mov_b32 v15, {float_hex(C0)}
      s_mul_i32 s22, s5, {144*8}
      s_add_u32 s22, s22, {UV2}
      v_lshlrev_b32 v9, 3, v3             ; n*8
    """)
    AB, BB = 0, 144
    ACC2, ACC1, ST = 16, 88, 160
    def a_loads(ks):
        if ks >= 18: return []
        o = []
        for t in range(2):
            for h in range(2):
                r = AB + (ks*2+t)*4 + 2*h
                o.append(VM(f"buffer_load_dwordx2 a[{r}:{r+1}], {['v13','v8'][t]}, s[8:11], s21 offen offset:{(ks%4)*1024 + h*512}", ("A", ks, t, h)))
        if ks % 4 == 3: o.append("s_add_u32 s21, s21, 4096")
        return o
    def atags(ks): return [("A", ks, t, h) for t in range(2) for h in range(2)]
    seq = []
    seq += dma_tile(0, "s[8:11]", "s20")
    for ks in range(0, 4): seq += a_loads(ks)
    seq += dma_tile(1, "s[8:11]", "s20")
    for ks in range(4, 6): seq += a_loads(ks)
    seq += dma_tile(2, "s[8:11]", "s20")
    seq += dma_group(-1, "s[8:11]", "s20", 9)
    seq += [WAIT(btags(0)), "s_barrier", a.stamp(1)]
    seq += b_reads(0, BB, SL)
    def kstep(kk, extra=[]):
        ks = kk % 18; ps = kk // 18
        o = []
        need = atags(ks) if ps == 0 else []
        bar = (kk % 4 == 3 and kk < 35)
        if bar: need = need + btags((kk+1)//4)
        o.append(WAIT(need, lgkm=True))
        if bar: o.append("s_barrier")
        m = []
        for j in range(9):
            for t in range(2):
                A = f"a[{AB+(ks*2+t)*4}:{AB+(ks*2+t)*4+3}]"
                B = f"a[{BB+(kk%2)*36+4*j}:{BB+(kk%2)*36+4*j+3}]"
                r = (ACC2 if ps == 0 else ACC1) + (j*2+t)*4
                C = "0" if ks == 0 else f"v[{r}:{r+3}]"
                m.append(f"{MF} v[{r}:{r+3}], {A}, {B}, {C}" if ps == 0 else f"{MF} v[{r}:{r+3}], {B}, {A}, {C}")
        if ps == 0:
            for t in range(2):
                A = f"a[{AB+(ks*2+t)*4}:{AB+(ks*2+t)*4+3}]"
                r = ST + 4*t
                m.append(f"{MF} v[{r}:{r+3}], {A}, v[4:7], {'0' if ks == 0 else f'v[{r}:{r+3}]'}")
                r = ST + 8 + 4*t
                m.append(f"{MF} v[{r}:{r+3}], {A}, {A}, {'0' if ks == 0 else f'v[{r}:{r+3}]'}")
        f = (b_reads(kk+1, BB, SL) if kk < 35 else []) + dma_group(kk, "s[8:11]", "s20", 9) + (a_loads(ks+6) if ps == 0 else []) + extra
        o += interleave(m, f)
        return o
    UV = 176
    uv2 = [VM(f"buffer_load_dwordx2 v[{UV+2*j}:{UV+2*j+1}], v9, s[8:11], s22 offen offset:{128*j}", ("UV2", j)) for j in range(9)]
    for kk in range(18):
        seq += kstep(kk, uv2[3*(kk-12):3*(kk-12)+3] if 12 <= kk < 15 else [])
    seq += [a.stamp(2), "v_mul_u32_u24 v10, 80, v12", "s_nop 7"]
    for t in range(2):
        for r in range(4):
            seq.append(f"ds_bpermute_b32 v{ST+8+4*t+r}, v10, v{ST+8+4*t+r} offset:{4*r}")
    seq.append("s_waitcnt lgkmcnt(0)")
    s1 = [ST+i for i in range(8)]; s2 = [ST+8+i for i in range(8)]
    seq += ln_finish(s1, s2, 576, 8, None)
    ZS = 244
    seq += ["v_and_b32 v10, 3, v3", "v_lshrrev_b32 v11, 2, v3", "v_lshl_add_u32 v11, v11, 4, v3", "v_lshlrev_b32 v11, 2, v11"]
    for t in range(2):
        seq += [f"v_mov_b32 v{ZS+2*t}, v{ST+8+4*t}", f"v_mov_b32 v{ZS+2*t+1}, v{ST+4*t}"]
    for r in range(1, 4):
        seq += [f"v_cmp_eq_u32 vcc, {r}, v10", "s_nop 1"]
        for t in range(2):
            seq += [f"v_cndmask_b32 v{ZS+2*t}, v{ZS+2*t}, v{ST+8+4*t+r}, vcc", f"v_cndmask_b32 v{ZS+2*t+1}, v{ZS+2*t+1}, v{ST+4*t+r}, vcc"]
    for i in range(4): seq.append(f"ds_bpermute_b32 v{ZS+i}, v11, v{ZS+i}")
    seq.append(WAIT([("UV2", j) for j in range(9)]))
    Z1S, Z2S, TMP, GR = 196, 204, 212, 220
    P = lambda r: f"v[{r}:{r+1}]"
    for j in range(9):
        xs = [ACC2 + j*8 + 2*i for i in range(4)]; ts = [TMP + 2*i for i in range(4)]
        uv = P(UV + 2*j)
        for i in range(4): seq.append(f"v_pk_fma_f32 {P(ts[i])}, {P(ST+2*i)}, {uv}, {uv} op_sel:[0,0,1] op_sel_hi:[1,0,1]")
        for i in range(4): seq.append(f"v_pk_fma_f32 {P(xs[i])}, {P(xs[i])}, {P(ST+8+2*i)}, {P(ts[i])}")
        seq += gelu_pairs(xs, ts)
        for i in range(4):
            if j == 0: seq += [f"v_pk_mul_f32 {P(Z2S+2*i)}, {P(xs[i])}, {P(xs[i])}"]
            elif j == 1: seq += [f"v_pk_add_f32 {P(Z1S+2*i)}, {P(xs[i])}, {P(ACC2+2*i)}", f"v_pk_fma_f32 {P(Z2S+2*i)}, {P(xs[i])}, {P(xs[i])}, {P(Z2S+2*i)}"]
            else: seq += [f"v_pk_add_f32 {P(Z1S+2*i)}, {P(xs[i])}, {P(Z1S+2*i)}", f"v_pk_fma_f32 {P(Z2S+2*i)}, {P(xs[i])}, {P(xs[i])}, {P(Z2S+2*i)}"]
    seq += ror_reduce([Z1S+i for i in range(8)] + [Z2S+i for i in range(8)], [GR+2*i for i in range(8)] + [GR+2*i+1 for i in range(8)])
    for i in range(8): seq.append(f"v_or_b32 v{GR+2*i+1}, 1, v{GR+2*i+1}")
    seq += [f"s_lshl_b32 s23, s6, 12", f"s_add_u32 s23, s23, {ST2}", "s_lshl_b32 s24, s5, 8", "s_add_u32 s24, s24, s23",
            "v_lshlrev_b32 v10, 6, v12", "v_lshl_add_u32 v11, v3, 8, v10",
            "v_cmp_eq_u32 vcc, 0, v3", "s_and_saveexec_b64 s[30:31], vcc"]
    for i in range(4): seq.append(VM(f"buffer_store_dwordx4 v[{GR+4*i}:{GR+4*i+3}], v10, s[8:11], s24 offen offset:{16*i} sc1", ("GS", i)))
    seq += ["s_mov_b64 exec, s[30:31]",
            f"s_mul_i32 s22, s5, {144*4}", f"s_add_u32 s22, s22, {UV1}", "s_add_u32 s25, s22, 9216", "v_lshlrev_b32 v9, 4, v12", "s_nop 4"]
    seq.append(a.stamp(3))
    U1 = 160
    uv1 = []
    for j in range(9):
        uv1.append(VM(f"buffer_load_dwordx4 v[{U1+8*j}:{U1+8*j+3}], v9, s[8:11], s22 offen offset:{64*j}", ("U1", j)))
        uv1.append(VM(f"buffer_load_dwordx4 v[{U1+8*j+4}:{U1+8*j+7}], v9, s[8:11], s25 offen offset:{64*j}", ("V1", j)))
    for kk in range(18, 36):
        seq += kstep(kk, uv1[3*(kk-26):3*(kk-26)+3] if 26 <= kk < 32 else [])
    TM1 = 232
    seq.append(a.stamp(4))
    seq += [f"s_lshl_b32 s26, s4, 4", "s_add_u32 s26, s26, s5", "s_lshl_b32 s26, s26, 2", "s_add_u32 s26, s26, s3",
            "s_mul_i32 s26, s26, 9216", f"s_add_u32 s26, s26, {Z1F}", "v_add_u32 v8, 4096, v1", "v_add_u32 v9, 8192, v1", "s_nop 3"]
    seq.append(WAIT([("V1", 8)]))
    for j in range(9):
        xs = [ACC1 + j*8 + 2*i for i in range(4)]; ts = [TM1 + 2*i for i in range(4)]
        for i in range(4):
            zs = P(ZS + 2*(i//2))
            seq.append(f"v_pk_fma_f32 {P(ts[i])}, {P(U1+8*j+2*(i%2))}, {zs}, {P(U1+8*j+4+2*(i%2))} op_sel:[0,1,0] op_sel_hi:[1,1,1]")
        for i in range(4):
            zs = P(ZS + 2*(i//2))
            seq.append(f"v_pk_fma_f32 {P(xs[i])}, {P(xs[i])}, {zs}, {P(ts[i])} op_sel_hi:[1,0,1]")
        seq += gelu_pairs(xs, ts)
        for i in range(4): seq.append(f"v_cvt_pk_bf16_f32 v{U1+8*j+i}, v{xs[i]}, v{xs[i]+1}")
        seq.append(VM(f"buffer_store_dwordx4 v[{U1+8*j}:{U1+8*j+3}], {['v1','v8','v9'][j//4]}, s[8:11], s26 offen offset:{1024*(j%4)}", ("Z1", j)))
    resolve(seq); emit(a, seq)
    PL = 88
    a(a.stamp(5))
    a("s_mov_b32 s27, 0\nG1_POLL:")
    for i in range(4): a(f"buffer_load_dwordx4 v[{PL+4*i}:{PL+4*i+3}], v11, s[8:11], s23 offen offset:{16*i} sc1")
    a("s_waitcnt vmcnt(0)")
    a(f"v_min_u32 v10, v{PL+1}, v{PL+3}")
    for i in range(2, 8): a(f"v_min_u32 v10, v10, v{PL+2*i+1}")
    a("""
      v_cmp_eq_u32 vcc, 0, v10
      s_add_u32 s27, s27, 1
      s_cmp_ge_u32 s27, 0x100000
      s_cbranch_scc1 G1_GO
      s_nop 2
      s_cbranch_vccnz G1_POLL
    G1_GO:
    """)
    R1, R2 = 104, 112
    a(a.stamp(6))
    for x in ror_reduce([PL+i for i in range(16)], [(R1 if i % 2 == 0 else R2) + i//2 for i in range(16)]): a(x)
    for x in ln_finish([R1+i for i in range(8)], [R2+i for i in range(8)], FH, 8, None): a(x)
    a(f"""
      s_mul_i32 s26, s5, {64*9216}
      s_mul_i32 s27, s6, 9216
      s_add_u32 s26, s26, s27
      s_add_u32 s26, s26, {Z2F}
    """)
    for j in range(9):
        xs = [ACC2 + j*8 + 2*i for i in range(4)]
        for i in range(4): a(f"v_pk_fma_f32 {P(xs[i])}, {P(xs[i])}, {P(R2+2*i)}, {P(R1+2*i)}")
        o = 120 + 4*j
        for i in range(4): a(f"v_cvt_pk_bf16_f32 v{o+i}, v{xs[i]}, v{xs[i]+1}")
        a(f"buffer_store_dwordx4 v[{o}:{o+3}], {['v1','v8','v9'][j//4]}, s[8:11], s26 offen offset:{1024*(j%4)}")
    a.stamp_end(2, 8)
    a("G1_END:\ns_endpgm")
    a.desc("g1_kernel", 256+216, 256)

def gen_g2(a):
    a.begin("g2_kernel")
    a("s_cmp_ge_u32 s2, 256\ns_cbranch_scc1 G2_END")
    a(a.stamp(0))
    a.load_args()
    tile_ids(a)
    a(f"""
      s_mul_i32 s20, s5, {64*9216}
      s_add_u32 s20, s20, {Z2F}
      s_lshl_b32 s21, s6, 17
      s_add_u32 s21, s21, {WSPF}
      s_waitcnt lgkmcnt(0)
    """)
    a.srd(8, "ws"); a.srd(12, "ws", 64*9216, "s20"); a.srd(16, "ws", 131072, "s21"); a.srd(24, "bsp")
    SL = 8
    a(f"""
      s_mov_b32 s20, s7
      s_mov_b32 s21, 0
      v_mov_b32 v{SL}, v1
      v_add_u32 v{SL+1}, 36864, v1
      v_add_u32 v{SL+2}, {2*36864}, v1
      v_add_u32 v{SL+3}, {3*36864}, v1
      v_lshrrev_b32 v4, 2, v3
      v_lshlrev_b32 v4, 3, v4
      v_and_b32 v5, 3, v3
      v_add_u32 v4, v4, v5
      v_lshlrev_b32 v4, 1, v4
      s_lshl_b32 s22, s6, 6
      v_add_u32 v13, 4096, v1
      v_add_u32 v14, 8192, v1
      s_lshl_b32 s28, s4, 4
      s_add_u32 s28, s28, s5
      s_lshl_b32 s28, s28, 2
      s_add_u32 s28, s28, s3
      s_mul_i32 s28, s28, 9216
      s_add_u32 s28, s28, {Z1F}
    """)
    BB, AB, ACC, Z1 = 0, 72, 16, 96
    def a_loads(k):
        r = AB + (k % 8)*8
        return [VM(f"buffer_load_dwordx4 a[{r}:{r+3}], v1, s[16:19], s21 offen", ("A", k, 0)),
                VM(f"buffer_load_dwordx4 a[{r+4}:{r+7}], v1, s[16:19], s21 offen offset:1024", ("A", k, 1)),
                "s_add_u32 s21, s21, 2048"]
    pro = []
    pro += dma_tile(0, "s[12:15]", "s20")
    for k in range(0, 4): pro += a_loads(k)
    pro += dma_tile(1, "s[12:15]", "s20")
    for k in range(4, 7): pro += a_loads(k)
    pro += dma_tile(2, "s[12:15]", "s20")
    pro += dma_group(-1, "s[12:15]", "s20")
    pro += [VM("buffer_load_ushort v6, v4, s[24:27], s22 offen", "b0"), VM("buffer_load_ushort v7, v4, s[24:27], s22 offen offset:8", "b1")]
    for j in range(9):
        pro.append(VM(f"buffer_load_dwordx4 v[{Z1+4*j}:{Z1+4*j+3}], {['v1','v13','v14'][j//4]}, s[8:11], s28 offen offset:{1024*(j%4)}", ("Z1", j)))
    for i in range(72): pro.append(f"v_mov_b32 v{ACC+i}, 0")
    pro += [WAIT(btags(0)), "s_barrier", a.stamp(1)]
    pro += b_reads(0, BB, SL)
    def kstep(k):
        o = []
        need = [("A", k, 0), ("A", k, 1)]
        if k % 4 == 3: need += btags((k+1)//4)
        o.append(WAIT(need, lgkm=True, key=k % 16))
        if k % 4 == 3: o.append("s_barrier")
        m = []
        for j in range(9):
            for t in range(2):
                r = ACC + (j*2+t)*4
                m.append(f"{MF} v[{r}:{r+3}], a[{BB+(k%2)*36+4*j}:{BB+(k%2)*36+4*j+3}], a[{AB+(k%8)*8+4*t}:{AB+(k%8)*8+4*t+3}], v[{r}:{r+3}]")
        f = b_reads(k+1, BB, SL) + dma_group(k, "s[12:15]", "s20") + a_loads(k+7)
        if 'g2noload' in X:
            for x in f:
                if isinstance(x, VM): x.text = "s_nop 0"
        if 'g2nods' in X: f = [x for x in f if not (isinstance(x, str) and x.startswith("ds_read"))]
        if 'g2nomfma' in X: m = m[:1]
        if 'g2nobar' in X: o = [x for x in o if x != "s_barrier"]
        return o + interleave(m, f)
    steps = [kstep(k) for k in range(64)]
    keyed = resolve(pro + [x for s_ in steps for x in s_])
    emit(a, pro)
    a("s_mov_b32 s23, 0\nG2_LOOP:")
    for k in range(16): emit(a, steps[k], keyed)
    a("s_add_u32 s23, s23, 1\ns_cmp_lt_u32 s23, 4\ns_cbranch_scc1 G2_LOOP")
    a(a.stamp(2))
    a(f"""
      v_lshlrev_b32 v4, 16, v6
      v_lshlrev_b32 v6, 16, v7
      s_lshr_b32 s22, s5, 1
      s_mul_i32 s22, s22, 9216
      s_mul_i32 s23, s6, {2*73728}
      s_add_u32 s22, s22, s23
      s_add_u32 s22, s22, {PF}            ; + tau*73728
      s_and_b32 s23, s5, 1
      s_lshl_b32 s29, s23, 12
      s_add_u32 s29, s29, s22
      s_add_u32 s30, s29, 73728
      s_lshl_b32 s23, s23, 3
      s_add_u32 s31, s22, s23
      s_add_u32 s31, s31, 8192
      s_add_u32 s32, s31, 73728
    """)
    P = lambda r: f"v[{r}:{r+1}]"
    T = 136; O = 160
    for j in range(9):
        for t in range(2):
            b = P(4 if t == 0 else 6)
            for h in range(2):
                x = ACC + (j*2+t)*4 + 2*h; z = Z1 + 4*j + 2*t + h; tt = T + 2*((2*t+h) % 4)
                o = O + ((j//2)*2 + t)*4 + (j%2)*2 + h
                a(f"""
                  v_lshlrev_b32 v{tt}, 16, v{z}
                  v_and_b32 v{tt+1}, 0xffff0000, v{z}
                  v_pk_add_f32 {P(x)}, {P(x)}, {b} op_sel_hi:[1,0]
                  v_pk_mul_f32 {P(x)}, {P(x)}, {P(tt)}
                  v_cvt_pk_bf16_f32 v{o}, v{x}, v{x+1}
                """)
        if j % 2 == 1:
            for t in range(2):
                o = O + ((j//2)*2 + t)*4
                a(f"buffer_store_dwordx4 v[{o}:{o+3}], v1, s[8:11], s{29+t} offen offset:{1024*(j//2)}")
    for t in range(2):
        o = O + (8 + t)*4
        a(f"buffer_store_dwordx2 v[{o}:{o+1}], v1, s[8:11], s{31+t} offen")
    a(a.stamp(3))
    a.stamp_end(3, 5)
    a("G2_END:\ns_endpgm")
    a.desc("g2_kernel", 256+136, 256)

def gen_g3(a):
    a.begin("g3_kernel")
    a("s_cmp_ge_u32 s2, 256\ns_cbranch_scc1 G3_END")
    a(a.stamp(0))
    a.load_args()
    a(f"""
      v_lshrrev_b32 v1, 6, v0
      v_and_b32 v2, 63, v0
      v_readfirstlane_b32 s3, v1
      v_lshlrev_b32 v1, 4, v2
      v_and_b32 v3, 15, v2
      v_lshrrev_b32 v12, 4, v2
      s_and_b32 s4, s2, 7
      s_lshl_b32 s4, s4, 2
      s_lshr_b32 s5, s2, 3
      s_and_b32 s6, s5, 3
      s_add_u32 s4, s4, s6                ; mb
      s_lshr_b32 s5, s5, 2                ; nb
      s_mul_i32 s5, s5, 9
      s_lshr_b32 s5, s5, 1                ; n0
      s_mul_i32 s20, s4, {4*73728}
      s_mul_i32 s6, s3, {18*1024}
      s_add_u32 s20, s20, s6
      s_add_u32 s20, s20, {PF}            ; P soffset
      s_mul_i32 s21, s3, {18*36864}
      s_lshl_b32 s6, s5, 10
      s_add_u32 s21, s21, s6
      s_add_u32 s21, s21, {WOUTF}         ; W soffset
      v_add_u32 v8, 4096, v1
    """)
    for u in range(4):
        a(f"s_add_u32 s6, s3, {u}\ns_and_b32 s6, s6, 3\ns_mul_i32 s7, s6, 73728\nv_add_u32 v{4+u}, s7, v1")
        if u > 0: a(f"s_mul_i32 s7, s6, 15360\ns_add_u32 s7, s7, {(u-1)*5120}\nv_add_u32 v{12+u}, s7, v1")
    a("s_waitcnt lgkmcnt(0)")
    a.srd(8, "ws"); a.srd(12, "out")
    ACC = 16; DEP = 6
    def loads(k):
        if k >= 18: return []
        r = (k % DEP)*36
        o = []
        for j in range(5):
            o.append(VM(f"buffer_load_dwordx4 a[{r+16+4*j}:{r+19+4*j}], {'v1' if j < 4 else 'v8'}, s[8:11], s21 offen offset:{1024*(j%4)}", ("W", k, j)))
        for u in range(4):
            o.append(VM(f"buffer_load_dwordx4 a[{r+4*u}:{r+4*u+3}], v{4+u}, s[8:11], s20 offen offset:{1024*(k%4)}", ("P", k, u)))
        o.append("s_add_u32 s21, s21, 36864")
        if k % 4 == 3: o.append("s_add_u32 s20, s20, 4096")
        return o
    seq = []
    for k in range(DEP-1): seq += loads(k)
    ep = [f"s_lshl_b32 s22, s4, 2", "s_add_u32 s22, s22, s3", "s_mul_i32 s23, s22, 18432", "s_lshl_b32 s24, s5, 9", "s_add_u32 s23, s23, s24", f"s_add_u32 s23, s23, {X1F}",
          "v_lshlrev_b32 v9, 3, v2", "s_lshl_b32 s24, s5, 6", f"s_add_u32 s24, s24, {MOD + 5*576*4}", "v_lshlrev_b32 v10, 4, v12"]
    for j in range(5):
        ep.append(VM(f"buffer_load_dwordx2 v[{96+2*j}:{97+2*j}], v9, s[8:11], s23 offen offset:{512*j}", ("X", j)))
        ep.append(VM(f"buffer_load_dwordx4 v[{108+4*j}:{111+4*j}], v10, s[8:11], s24 offen offset:{64*j}", ("G", j)))
    for k in range(18):
        seq.append(WAIT([("P", k, 3)]))
        if k == 0: seq.append(a.stamp(1))
        r = (k % DEP)*36
        m = []
        for u in range(4):
            for j in range(5):
                c = ACC + (u*5+j)*4
                m.append(f"{MF} v[{c}:{c+3}], a[{r+16+4*j}:{r+19+4*j}], a[{r+4*u}:{r+4*u+3}], {'0' if k == 0 else f'v[{c}:{c+3}]'}")
        seq += interleave(m, loads(k+DEP-1) + (ep if k == 13 else []))
    seq += [a.stamp(2), "s_mul_i32 s7, s3, 15360", "v_add_u32 v11, s7, v1", "s_nop 6"]
    for u in range(1, 4):
        for j in range(5):
            c = ACC + (u*5+j)*4
            seq.append(f"ds_write_b128 v{12+u}, v[{c}:{c+3}] offset:{1024*j}")
    seq += ["v_lshrrev_b32 v4, 2, v3", "v_lshlrev_b32 v4, 3, v4", "v_and_b32 v5, 3, v3", "v_add_u32 v4, v4, v5", "v_mul_u32_u24 v4, 1152, v4",
            "v_lshl_add_u32 v4, v12, 3, v4", "s_lshr_b32 s25, s22, 1", f"s_mul_i32 s25, s25, {32*1152}", "s_and_b32 s26, s22, 1", f"s_mul_i32 s26, s26, {4*1152}",
            "s_add_u32 s25, s25, s26", "s_lshl_b32 s26, s5, 5", "s_add_u32 s25, s25, s26",
            "s_waitcnt lgkmcnt(0)", "s_barrier", a.stamp(3)]
    for i in range(15):
        c = ACC + 20 + 4*i
        seq.append(f"ds_read_b128 v[{c}:{c+3}], v11 offset:{1024*i}")
    seq += [WAIT([("G", 4)], lgkm=True)]
    P = lambda r: f"v[{r}:{r+1}]"
    for j in range(5):
        for h in range(2):
            x = ACC + 4*j + 2*h
            seq += [f"v_pk_add_f32 {P(x)}, {P(x)}, {P(x+20)}", f"v_pk_add_f32 {P(x+40)}, {P(x+40)}, {P(x+60)}",
                    f"v_lshlrev_b32 v{x+20}, 16, v{96+2*j+h}", f"v_and_b32 v{x+21}, 0xffff0000, v{96+2*j+h}",
                    f"v_pk_add_f32 {P(x)}, {P(x)}, {P(x+40)}",
                    f"v_pk_fma_f32 {P(x)}, {P(x)}, {P(108+4*j+2*h)}, {P(x+20)}",
                    f"v_cvt_pk_bf16_f32 v{96+2*j+h}, v{x}, v{x+1}"]
        seq.append(VM(f"buffer_store_dwordx2 v[{96+2*j}:{97+2*j}], v4, s[12:15], s25 offen offset:{32*j}", ("O", j)))
    resolve(seq); emit(a, seq)
    a(a.stamp(4))
    a.stamp_end(4, 6)
    a("G3_END:\ns_endpgm")
    a.desc("g3_kernel", 128+216, 128)

G_LAUNCH = {"g1": f"; @launch kernel=g1_kernel grid=(256,1,1) block=(256,1,1) lds={G_LDS}",
            "g2": f"; @launch kernel=g2_kernel grid=(256,1,1) block=(256,1,1) lds={G_LDS}",
            "g3": f"; @launch kernel=g3_kernel grid=(256,1,1) block=(256,1,1) lds=61440"}
G_GENS = {"g1": gen_g1, "g2": gen_g2, "g3": gen_g3}
```

```python
from gen_common import *
from gen_g import *
P = lambda r: f"v[{r}:{r+1}]"
BIG = 0x7fffff00

def poll_loop(a, name, loads, regs, tmp):
    a(f"s_mov_b32 s27, 0\n{name}_POLL:")
    for x in loads: a(x)
    a("s_waitcnt vmcnt(0)")
    if len(regs) == 1: a(f"v_cmp_eq_u32 vcc, 0, v{regs[0]}")
    else:
        a(f"v_min_u32 v{tmp}, v{regs[0]}, v{regs[1]}")
        for r in regs[2:]: a(f"v_min_u32 v{tmp}, v{tmp}, v{r}")
        a(f"v_cmp_eq_u32 vcc, 0, v{tmp}")
    a(f"""
      s_add_u32 s27, s27, 1
      s_cmp_ge_u32 s27, 0x80000
      s_cbranch_scc1 {name}_GO
      s_nop 2
      s_cbranch_vccz {name}_GO
      s_sleep {SLP}
      s_branch {name}_POLL
    {name}_GO:
    """)

def gen_gm(a):
    a.begin("gm_kernel")
    a("s_cmp_ge_u32 s2, 256\ns_cbranch_scc1 GM_END")
    a(a.stamp(0))
    a.load_args()
    tile_ids(a)
    SL = 252
    a(f"""
      s_mul_i32 s20, s5, {36*9216}
      s_add_u32 s20, s20, s7
      s_add_u32 s20, s20, {WINF}
      s_mul_i32 s21, s6, 36864
      s_add_u32 s21, s21, {X1F}           ; A soffset
      s_mul_i32 s30, s3, 12288
      s_add_u32 s30, s30, {3*36864}
      v_lshl_add_u32 v13, v2, 3, s30
      v_add_u32 v8, {18432-1024}, v1
      s_mul_i32 s28, s5, {64*9216}
      s_add_u32 s28, s28, {Z2F}
      s_lshl_b32 s29, s6, 17
      s_waitcnt lgkmcnt(0)
    """)
    a.srd(8, "ws")
    AB, BB = 0, 144
    ACC2, ACC1, ST = 16, 88, 160
    ALDS = 3*36864
    def a_dma(ks):
        if ks >= 18: return []
        o = [f"s_add_u32 m0, s30, {(ks % 6)*2048}", "s_nop 0",
             VM(f"buffer_load_dwordx4 v1, s[8:11], s21 offen lds", ("A", ks, 0)),
             VM(f"buffer_load_dwordx4 v8, s[8:11], s21 offen offset:1024 lds", ("A", ks, 1)),
             "s_add_u32 s21, s21, 1024"]
        return o
    def a_reads(ks):
        if ks >= 18: return []
        return [f"ds_read_b64 a[{AB+(ks*2+t)*4+2*h}:{AB+(ks*2+t)*4+2*h+1}], v13 offset:{(ks % 6)*2048 + t*1024 + h*512}" for t in range(2) for h in range(2)]
    def atags(ks): return [("A", ks, t) for t in range(2)] if ks < 18 else []
    def b1_group(k):
        T = (k+1)//4 + 2
        if T >= 9: return []
        p0, cnt = P0[k % 4]
        o = [f"s_add_u32 m0, s7, {(T % 3)*36864 + p0*1024}", "s_nop 0"]
        for i in range(cnt): o.append(VM(f"buffer_load_dwordx4 v1, s[8:11], s20 offen offset:{1024*i} lds", ("B", T, p0+i)))
        o.append(f"s_add_u32 s20, s20, {cnt*1024 if k % 4 != 2 else 36864 - 7168}")
        return o
    def b1_reads(k):
        return [f"ds_read_b128 a[{BB + (k%2)*36 + 4*j}:{BB + (k%2)*36 + 4*j + 3}], v{SL + (k//4) % 3} offset:{(k%4)*9216 + j*1024}" for j in range(9)]
    seq = []
    seq += a_dma(0)
    for k in range(-9, -5): seq += b1_group(k)
    for ks in range(1, 4): seq += a_dma(ks)
    seq += ["s_getpc_b64 s[32:33]", "GM_PC:", "s_sub_u32 s32, s32, GM_PC-gm_kernel", "s_subb_u32 s33, s33, 0", "s_and_b32 s33, s33, 0xffff",
            "s_mov_b32 s34, GM_CODE_END-gm_kernel", "s_mov_b32 s35, 0x20000", "s_lshr_b32 s31, s2, 3", "s_lshl_b32 s31, s31, 7",
            "v_lshlrev_b32 v255, 12, v0", "v_add_u32 v255, s31, v255", VM("buffer_load_dword v11, v255, s[32:35], 0 offen", "CW")]
    resolve(seq); emit(a, seq); pre = seq; seq = []
    early = {0: b1_group(-5) + b1_group(-4) + b1_group(-3) + b1_group(-2) + a_dma(4), 1: a_dma(5) + a_dma(6) + b1_group(-1) + b1_group(0) + b1_group(1)}
    a.srd(12, "ws", 64*9216, "s28"); a.srd(16, "wsp"); a.srd(36, "bsp")
    a(f"""
      v_mov_b32 v{SL}, v1
      v_add_u32 v{SL+1}, 36864, v1
      v_add_u32 v{SL+2}, {2*36864}, v1
      v_mov_b32 v4, 0x3f803f80
      v_mov_b32 v5, 0x3f803f80
      v_mov_b32 v6, 0x3f803f80
      v_mov_b32 v7, 0x3f803f80
      s_mov_b32 s40, {float_hex(C1)}
      s_mov_b32 s41, {float_hex(C1)}
      v_mov_b32 v14, {float_hex(C0)}
      v_mov_b32 v15, {float_hex(C0)}
      s_mul_i32 s22, s5, {144*8}
      s_add_u32 s22, s22, {UV2}
      v_lshlrev_b32 v9, 3, v3             ; n*8
      v_lshrrev_b32 v248, 2, v3
      v_lshlrev_b32 v248, 3, v248
      v_and_b32 v249, 3, v3
      v_add_u32 v248, v248, v249
      v_add_u32 v251, 4096, v1
    """)
    seq += [WAIT(btags(0)), "s_barrier", a.stamp(1)]
    seq += a_reads(0) + b1_reads(0)
    def kstep(kk, extra=[], need_extra=[]):
        ks = kk % 18; ps = kk // 18
        o = []
        need = (atags(ks+1) if ps == 0 else []) + need_extra
        bar = (kk % 4 == 3 and kk < 35)
        if bar: need = need + btags((kk+1)//4)
        o.append(WAIT(need, lgkm=True))
        if bar: o.append("s_barrier")
        m = []
        for j in range(9):
            for t in range(2):
                A = f"a[{AB+(ks*2+t)*4}:{AB+(ks*2+t)*4+3}]"
                B = f"a[{BB+(kk%2)*36+4*j}:{BB+(kk%2)*36+4*j+3}]"
                r = (ACC2 if ps == 0 else ACC1) + (j*2+t)*4
                C = "0" if ks == 0 else f"v[{r}:{r+3}]"
                m.append(f"{MF} v[{r}:{r+3}], {A}, {B}, {C}" if ps == 0 else f"{MF} v[{r}:{r+3}], {B}, {A}, {C}")
        if ps == 0:
            for t in range(2):
                A = f"a[{AB+(ks*2+t)*4}:{AB+(ks*2+t)*4+3}]"
                r = ST + 4*t
                m.append(f"{MF} v[{r}:{r+3}], {A}, v[4:7], {'0' if ks == 0 else f'v[{r}:{r+3}]'}")
                r = ST + 8 + 4*t
                m.append(f"{MF} v[{r}:{r+3}], {A}, {A}, {'0' if ks == 0 else f'v[{r}:{r+3}]'}")
        f = (a_reads(kk+1) if ps == 0 else []) + (b1_reads(kk+1) if kk < 35 else []) + early.get(kk, []) + (a_dma(kk+5) + (b1_group(kk) if not (11 <= kk < 18 and 'dl' in X) else []) if kk >= 2 else []) + extra
        o += interleave(m, f)
        return o
    UV = 176; WS = 216
    uv2 = [VM(f"buffer_load_dwordx2 v[{UV+2*j}:{UV+2*j+1}], v9, s[8:11], s22 offen offset:{128*j}", ("UV2", j)) for j in range(9)]
    for kk in range(18):
        ex = []
        ne = []
        if kk == 14: ex = uv2[:5]
        if kk == 15: ex = uv2[5:]
        seq += kstep(kk, ex, ne)
    seq += [a.stamp(2), "v_mul_u32_u24 v10, 80, v12", "s_nop 7"]
    for t in range(2):
        for r in range(4):
            seq.append(f"ds_bpermute_b32 v{ST+8+4*t+r}, v10, v{ST+8+4*t+r} offset:{4*r}")
    seq.append("s_waitcnt lgkmcnt(0)")
    s1 = [ST+i for i in range(8)]; s2 = [ST+8+i for i in range(8)]
    seq += ln_finish(s1, s2, 576, 8, None)
    ZR = [240, 244]; ZN = [242, 246]
    seq += ["v_and_b32 v10, 3, v3", "v_lshrrev_b32 v11, 2, v3", "v_lshl_add_u32 v11, v11, 4, v3", "v_lshlrev_b32 v11, 2, v11"]
    for t in range(2):
        seq += [f"v_mov_b32 v{ZR[t]}, v{ST+8+4*t}", f"v_mov_b32 v{ZN[t]}, v{ST+4*t}"]
    for r in range(1, 4):
        seq += [f"v_cmp_eq_u32 vcc, {r}, v10", "s_nop 1"]
        for t in range(2):
            seq += [f"v_cndmask_b32 v{ZR[t]}, v{ZR[t]}, v{ST+8+4*t+r}, vcc", f"v_cndmask_b32 v{ZN[t]}, v{ZN[t]}, v{ST+4*t+r}, vcc"]
    for r in ZR + ZN: seq.append(f"ds_bpermute_b32 v{r}, v11, v{r}")
    seq.append(WAIT([("UV2", j) for j in range(9)]))
    touch = ["v_lshlrev_b32 v13, 12, v12", "v_lshl_add_u32 v13, v3, 4, v13", "s_lshl_b32 s31, s5, 8", "s_add_u32 s31, s31, s29"]
    for i in range(8):
        touch += [VM(f"buffer_load_dwordx4 a[{WS+4*i}:{WS+4*i+3}], v13, s[16:19], s31 offen {'nt' if 'tnt' in X else ''}", ("WL", i)), "s_add_u32 s31, s31, 16384"]
    if 'dl' in X:
        for kk in range(11, 18): seq += b1_group(kk)
    if 'ftouch' not in X: seq += touch
    Z1S, Z2S, TMP, GR = 196, 204, 212, 220
    for j in range(9):
        xs = [ACC2 + j*8 + 2*i for i in range(4)]; ts = [TMP + 2*i for i in range(4)]
        uv = P(UV + 2*j)
        seq.append(f"v_mov_b32 v194, v{UV+2*j+1}")
        for i in range(4): seq.append(f"v_pk_fma_f32 {P(ts[i])}, {P(ST+2*i)}, {uv}, v[194:195] op_sel_hi:[1,0,0]")
        for i in range(4): seq.append(f"v_pk_fma_f32 {P(xs[i])}, {P(xs[i])}, {P(ST+8+2*i)}, {P(ts[i])}")
        seq += gelu_pairs(xs, ts)
        for i in range(4):
            if j == 0: seq += [f"v_pk_mul_f32 {P(Z2S+2*i)}, {P(xs[i])}, {P(xs[i])}"]
            elif j == 1: seq += [f"v_pk_add_f32 {P(Z1S+2*i)}, {P(xs[i])}, {P(ACC2+2*i)}", f"v_pk_fma_f32 {P(Z2S+2*i)}, {P(xs[i])}, {P(xs[i])}, {P(Z2S+2*i)}"]
            else: seq += [f"v_pk_add_f32 {P(Z1S+2*i)}, {P(xs[i])}, {P(Z1S+2*i)}", f"v_pk_fma_f32 {P(Z2S+2*i)}, {P(xs[i])}, {P(xs[i])}, {P(Z2S+2*i)}"]
    seq += ror_reduce([Z1S+i for i in range(8)] + [Z2S+i for i in range(8)], [GR+2*i for i in range(8)] + [GR+2*i+1 for i in range(8)])
    for i in range(8): seq.append(f"v_or_b32 v{GR+2*i+1}, 1, v{GR+2*i+1}")
    seq += [f"s_lshl_b32 s23, s6, 12", f"s_add_u32 s23, s23, {ST2}", "s_lshl_b32 s24, s5, 8", "s_add_u32 s24, s24, s23",
            "v_lshlrev_b32 v10, 6, v12", "v_lshl_add_u32 v11, v3, 8, v10",
            "v_cmp_eq_u32 vcc, 0, v3", f"v_mov_b32 v4, {BIG}", "s_nop 0", "v_cndmask_b32 v10, v4, v10, vcc",
            f"s_mul_i32 s22, s5, {144*4}", f"s_add_u32 s22, s22, {UV1}", "s_add_u32 s25, s22, 9216", "v_lshlrev_b32 v9, 4, v12", a.stamp(3)]
    gs = [VM(f"buffer_store_dwordx4 v[{GR+4*i}:{GR+4*i+3}], v10, s[8:11], s24 offen offset:{16*i} sc1", ("GS", i)) for i in range(4)]
    seq += gs
    U1 = 160
    uv1 = []
    for j in range(9):
        uv1.append(VM(f"buffer_load_dwordx4 v[{U1+8*j}:{U1+8*j+3}], v9, s[8:11], s22 offen offset:{64*j}", ("U1", j)))
        uv1.append(VM(f"buffer_load_dwordx4 v[{U1+8*j+4}:{U1+8*j+7}], v9, s[8:11], s25 offen offset:{64*j}", ("V1", j)))
    PL = 176; R1 = [232+i for i in range(8)]; R2 = [241, 243, 245, 247, 249, 250, 4, 10]
    pl = [f"buffer_load_dwordx4 v[{PL+4*i}:{PL+4*i+3}], v11, s[8:11], s23 offen offset:{16*i} sc1" for i in range(4)]
    bl = [VM("buffer_load_ushort v6, v5, s[36:39], s26 offen", "b0"), VM("buffer_load_ushort v7, v5, s[36:39], s26 offen offset:8", "b1")]
    chk = [f"v_min_u32 v4, v{PL+1}, v{PL+3}"] + [f"v_min_u32 v4, v4, v{PL+2*i+1}" for i in range(2, 8)] + ["v_cmp_eq_u32 vcc, 0, v4"]
    pollS = [WAIT([("PL", 3)])] + chk + ["s_mov_b32 s27, 0", "s_nop 3", "s_cbranch_vccz GM_S_GO", "GM_S_POLL:"] + pl + ["s_waitcnt vmcnt(0)"] + chk + \
            ["s_add_u32 s27, s27, 1", "s_cmp_ge_u32 s27, 0x80000", "s_cbranch_scc1 GM_S_GO", "s_nop 2", "s_cbranch_vccz GM_S_GO", f"s_sleep {SLP}", "s_branch GM_S_POLL", "GM_S_GO:", a.stamp(4)]
    nrm = ror_reduce([PL+i for i in range(16)], [(R1 if i % 2 == 0 else R2)[i//2] for i in range(16)])[1:]
    nrm += ln_finish(R1, R2, FH, 8, None)
    nrm += ["s_mul_i32 s26, s6, 9216", "v_add_u32 v8, 8192, v1"]
    nrm0 = nrm; nrm = []
    for j in range(9):
        for i in range(8): nrm.append(f"v_fma_f32 v{ACC2+8*j+i}, v{ACC2+8*j+i}, v{R2[i]}, v{R1[i]}")
        for i in range(4): nrm.append(f"v_cvt_pk_bf16_f32 v{ACC2+8*j+i}, v{ACC2+8*j+2*i}, v{ACC2+8*j+2*i+1}")
        nrm.append(VM(f"buffer_store_dwordx4 v[{ACC2+8*j}:{ACC2+8*j+3}], {['v1','v251','v8'][j//4]}, s[12:15], s26 offen offset:{1024*(j%4)} sc1", ("Z2", j)))
    KT = -1
    KP, KN0, KN1, JPK, KF = [int(x) for x in os.environ.get('P2', '21,23,25,2,34').split(',')]
    per = (len(nrm0) + (KN1-KN0) - 1) // (KN1-KN0)
    flagprep = ["s_lshl_b32 s24, s6, 4", "s_add_u32 s24, s24, s5", "s_lshl_b32 s24, s24, 7", f"s_add_u32 s24, s24, {FLB}",
            "v_cmp_eq_u32 vcc, 0, v2", f"v_mov_b32 v13, {BIG}", "v_mov_b32 v5, 1", "v_cndmask_b32 v13, v13, 0, vcc"]
    ACC, B2V = 16, 88
    AV = [241, 243, 245, 247]
    aprep = ["v_lshrrev_b32 v4, 3, v2", "v_lshrrev_b32 v8, 2, v4", "v_lshlrev_b32 v8, 3, v8", "v_and_b32 v11, 3, v4", "v_add_u32 v8, v8, v11", "v_lshlrev_b32 v8, 12, v8",
            "v_lshrrev_b32 v4, 1, v4", "v_and_b32 v11, 7, v2", "v_xor_b32 v4, v4, v11",
            f"v_lshl_add_u32 v{AV[0]}, v4, 4, v8", "v_xor_b32 v4, 4, v4", f"v_lshl_add_u32 v{AV[1]}, v4, 4, v8", f"v_add_u32 v{AV[1]}, {65536-1024}, v{AV[1]}",
            f"v_add_u32 v{AV[2]}, {16384-2048}, v{AV[0]}", f"v_add_u32 v{AV[3]}, {16384-2048}, v{AV[1]}",
            "v_lshrrev_b32 v4, 1, v3", "v_xor_b32 v4, v4, v12", "v_lshlrev_b32 v4, 4, v4", "v_lshl_add_u32 v4, v3, 7, v4",
            "v_add_u32 v249, s7, v4", "v_xor_b32 v250, 64, v249", "v_add_u32 v4, s30, v4", "v_xor_b32 v8, 64, v4", "s_mov_b32 s21, s29"]
    PLACE = {"R0": ("s30", 0), "R1": ("s30", 4096), "R2": ("s30", 8192), "S0a": ("s7", 0), "S0b": ("s7", 4096), "S1a": ("s7", 36864), "S1b": ("s7", 36864+4096)}
    def a2_dma(Pp, pl):
        b, off = PLACE[pl]
        return [f"s_add_u32 m0, {b}, {off}", "s_nop 0"] + \
               [VM(f"buffer_load_dwordx4 v{AV[i]}, s[16:19], s21 offen offset:{1024*i} lds", ("A2", Pp, i)) for i in range(4)] + ["s_add_u32 s21, s21, 128"]
    def a2_rd(Pp, pl):
        b, off = PLACE[pl]
        regs = ("v4", "v8") if b == "s30" else ("v249", "v250")
        return [f"ds_read_b128 a[{8*((2*Pp+e) % 32)+4*t}:{8*((2*Pp+e) % 32)+4*t+3}], {regs[e]} offset:{off + t*2048}" for e in range(2) for t in range(2)]
    def a2tags(Pp): return [("A2", Pp, i) for i in range(4)]
    rnd1 = ["R0", "R1", "R2", "S0a", "S0b", "S1a", "S1b"]; rnd2 = ["S0a", "S0b", "S1a", "S1b", "R0", "R1", "R2"]
    r1 = {31: [0], 32: [1, 2], 33: [3], 34: [4, 5], 35: [6]}
    for kk in range(18, 36):
        ex = []; ne = []
        if kk == 19: ex = [VM("buffer_load_dword v4, v255, s[32:35], 0 offen", "CW2")]
        if kk == 18: ex = ["v_lshlrev_b32 v5, 1, v248", "s_lshl_b32 s26, s6, 6"] + bl
        if kk == KP: ex = [VM(x, ("PL", i)) for i, x in enumerate(pl)]
        if kk == KN0: seq += pollS
        if KN0 <= kk < KN1: ex = nrm0[per*(kk-KN0):per*(kk-KN0+1)]
        if kk >= KN1: ex = nrm[13*JPK*(kk-KN1):13*JPK*(kk-KN1+1)]
        if kk == 30:
            assert not ex
            ex = aprep + flagprep
        if kk == KF: ex = [VM("buffer_store_dword v5, v13, s[8:11], s24 offen sc1", "FB")] + ex; ne = [("Z2", 8)]
        if kk in (31, 33, 35): ex = ex + uv1[3*(kk-31):3*(kk-31)+6]
        for Pp in r1.get(kk, []): ex = ex + a2_dma(Pp, rnd1[Pp])
        seq += kstep(kk, ex, ne)
    seq += [a.stamp(5)]
    TM1 = 232
    def z1g(j):
        o = []
        xs = [ACC1 + j*8 + 2*i for i in range(4)]; ts = [TM1 + 2*i for i in range(4)]
        for i in range(4):
            o.append(f"v_pk_fma_f32 {P(ts[i])}, {P(U1+8*j+2*(i%2))}, {P(ZN[i//2])}, {P(U1+8*j+4+2*(i%2))} op_sel_hi:[1,0,1]")
        for i in range(4):
            o.append(f"v_pk_fma_f32 {P(xs[i])}, {P(xs[i])}, {P(ZR[i//2])}, {P(ts[i])} op_sel_hi:[1,0,1]")
        o += gelu_pairs(xs, ts)
        for i in range(4): o.append(f"v_cvt_pk_bf16_f32 v{U1+8*j+i}, v{xs[i]}, v{xs[i]+1}")
        return o
    def b2_group(k):
        T = (k+1)//4 + 2
        if T >= 16: return []
        p0, cnt = P0[k % 4]
        o = [f"s_add_u32 m0, s7, {(T % 3)*36864 + p0*1024}", "s_nop 0"]
        for i in range(cnt): o.append(VM(f"buffer_load_dwordx4 v1, s[12:15], s20 offen offset:{1024*i} sc1 lds", ("B2", T, p0+i)))
        o.append(f"s_add_u32 s20, s20, {cnt*1024 if k % 4 != 2 else 36864 - 7168}")
        return o
    def b2tags(T): return [("B2", T, p) for p in range(9)]
    def b2_reads(k):
        return [f"ds_read_b128 v[{B2V + (k%2)*36 + 4*j}:{B2V + (k%2)*36 + 4*j + 3}], v{SL + (k//4) % 3} offset:{(k%4)*9216 + j*1024}" for j in range(9)]
    seq += ["s_lshl_b32 s23, s3, 4", "s_add_u32 s23, s23, s5", "s_lshl_b32 s23, s23, 7", f"s_add_u32 s23, s23, {FLB}",
            "v_lshlrev_b32 v10, 13, v3", "s_mov_b32 s20, s7", "s_nop 2", WAIT([("V1", 2)])]
    seq += z1g(0)
    seq += [WAIT(a2tags(6))]
    f1 = a2_rd(3, "S0a") + a2_rd(4, "S0b") + a2_rd(5, "S1a") + ["s_waitcnt lgkmcnt(0)"] + a2_rd(6, "S1b") + a2_rd(0, "R0") + a2_rd(1, "R1")
    seq += interleave(z1g(1), f1)
    f2 = a2_dma(7, "S0a") + a2_dma(8, "S0b") + ["s_waitcnt lgkmcnt(0)"] + a2_rd(2, "R2") + a2_dma(9, "S1a")
    seq += interleave(z1g(2), f2)
    f3 = a2_dma(10, "S1b") + a2_dma(11, "R0") + ["s_waitcnt lgkmcnt(0)"]
    seq += interleave(z1g(3), f3)
    seq += interleave(z1g(4), a2_dma(12, "R1") + a2_dma(13, "R2"))
    J2 = int(os.environ.get('J2', '6'))
    for j in range(5, J2): seq += z1g(j)
    resolve(pre + seq); emit(a, seq)
    poll_loop(a, "GM_B", ["buffer_load_dword v11, v10, s[8:11], s23 offen sc1"], [11], None)
    a(a.stamp(6))
    seq = a2_rd(7, "S0a") + a2_rd(8, "S0b") + ["s_barrier", "s_waitcnt lgkmcnt(0)"] + a2_rd(9, "S1a") + a2_rd(10, "S1b")
    for k in range(-9, -5): seq += b2_group(k)
    fl = ["s_waitcnt lgkmcnt(0)"] + a2_rd(11, "R0") + a2_rd(12, "R1") + a2_rd(13, "R2")
    for k in range(-5, -1): fl += b2_group(k)
    fl += ["s_waitcnt lgkmcnt(0)"] + a2_dma(14, "R0") + b2_group(-1)
    val = []
    for j in range(J2, 9): val += z1g(j)
    seq += interleave(val, fl)
    seq += [WAIT(b2tags(0)), "s_barrier", a.stamp(7)] + b2_reads(0)
    if Asm.STAMPS: seq.append("STAMPFLUSH")
    RP = lambda Pp: 2 + 3*(Pp-14)
    rd_at = {RP(Pp): Pp for Pp in range(14, 32)}
    dma_at = {0: 15, 1: 16}
    for Pp in range(17, 32): dma_at[RP(Pp-3)+1] = Pp
    def areg(k, t): return f"a[{8*(k%32)+4*t}:{8*(k%32)+4*t+3}]"
    def mf2(k, j, t, breg):
        r = ACC + (j*2+t)*4
        return f"{MF} v[{r}:{r+3}], v[{breg}:{breg+3}], {areg(k, t)}, {'0' if k == 0 else f'v[{r}:{r+3}]'}"
    g3prep = f"""
      s_and_b32 s32, s2, 7
      s_lshl_b32 s32, s32, 2
      s_lshr_b32 s33, s2, 3
      s_and_b32 s34, s33, 3
      s_add_u32 s32, s32, s34             ; mb
      s_lshr_b32 s33, s33, 2
      s_mul_i32 s33, s33, 9
      s_lshr_b32 s33, s33, 1              ; n0
      s_mul_i32 s35, s3, {18*36864}
      s_lshl_b32 s34, s33, 10
      s_add_u32 s35, s35, s34
      s_add_u32 s35, s35, {WOUTF}         ; W soffset (registers part)
      s_add_u32 s36, s35, {11*36864}      ; W soffset (lds part)
      s_mul_i32 s37, s3, 30720
      s_add_u32 s37, s37, 36864           ; lds W area""".split("\n")
    NWR = 11
    def w_reg(k): return 20*k if k < NWR else (20*(k-NWR) if k < 17 else 224)
    def w_loads(k, so="s35"):
        r = w_reg(k)
        return [VM(f"buffer_load_dwordx4 a[{r+4*j}:{r+4*j+3}], {'v1' if j < 4 else 'v251'}, s[8:11], {so} offen offset:{1024*(j%4)}", ("W", k, j)) for j in range(5)] + [f"s_add_u32 {so}, {so}, 36864"]
    def w_dma(k):
        o = [f"s_add_u32 m0, s37, {(k-NWR)*5120}", "s_nop 0"]
        o += [VM(f"buffer_load_dwordx4 v1, s[8:11], s36 offen offset:{1024*j} lds", ("W", k, j)) for j in range(4)]
        o += [f"s_add_u32 m0, s37, {(k-NWR)*5120 + 4096}", "s_nop 0", VM(f"buffer_load_dwordx4 v251, s[8:11], s36 offen lds", ("W", k, 4)), "s_add_u32 s36, s36, 36864"]
        return o
    apieces = {}
    for k0, Pp in dma_at.items():
        b, off = PLACE[f"R{(Pp-14) % 3}"]
        ks_ = [k0, k0, k0+1, k0+2] if k0 >= 3 else [k0]*4
        for i in range(4):
            gr = [f"s_add_u32 m0, {b}, {off}", VM(f"buffer_load_dwordx4 v{AV[i]}, s[16:19], s21 offen offset:{1024*i} lds", ("A2", Pp, i))]
            if i > 0 and ks_[i] == ks_[i-1]: gr = gr[1:]
            apieces.setdefault(ks_[i], []).append(gr)
            if i == 3: apieces[ks_[i]].append(["s_add_u32 s21, s21, 128"])
    CWK = [int(x) for x in os.environ.get('CWK', '1,9,17,25,33,41,49').split(',')]
    for k in range(60):
        need = []
        if k in rd_at: need += a2tags(rd_at[k])
        if k % 4 == 3: need += b2tags((k+1)//4)
        seq.append(WAIT(need, lgkm=True))
        if k % 4 == 3 and 'nobar' not in X: seq.append("s_barrier")
        mm = [mf2(k, j, t, B2V + (k%2)*36 + 4*j) for j in range(9) for t in range(2)]
        ds = b2_reads(k+1)
        if k in rd_at: ds += a2_rd(rd_at[k], f"R{(rd_at[k]-14) % 3}")
        f = b2_group(k) + [y for x in apieces.get(k, []) for y in x]
        if k in CWK: f += [VM("buffer_load_dword v11, v255, s[32:35], 0 offen", ("CW", k))]
        if k in (56, 57, 58): f += w_loads(k-56)
        if k == 59: f += w_loads(3)
        gs_, rest = vgroups(f)
        if 'nov' in X and k < 55:
            for gr in gs_: gr[-1].text = "s_nop 0"
        seq += sched(mm, ds, gs_, g3prep if k == 55 else [], ds_per=int(os.environ.get("DSP", "1")), vm_start=int(os.environ.get("VMS", "2"))) + rest
    seq.append(a.stamp(0))
    seq += f"""
      v_lshlrev_b32 v240, 16, v6
      v_lshlrev_b32 v242, 16, v7
      s_lshr_b32 s22, s5, 1
      s_mul_i32 s22, s22, 9216
      s_mul_i32 s23, s6, {2*73728}
      s_add_u32 s22, s22, s23
      s_add_u32 s22, s22, {PF}
      s_and_b32 s23, s5, 1
      s_lshl_b32 s28, s23, 12
      s_add_u32 s28, s28, s22
      s_add_u32 s29, s28, 73728
      s_lshl_b32 s23, s23, 3
      s_add_u32 s30, s22, s23
      s_add_u32 s30, s30, 8192
      s_add_u32 s31, s30, 73728
      s_add_u32 s24, s24, {FLP-FLB}
      s_waitcnt lgkmcnt(0)""".split("\n")
    BL = B2V + 36
    def bl_reads(j): return [f"ds_read_b128 v[{BL+12*(j%3)+4*(k-61)}:{BL+12*(j%3)+4*(k-61)+3}], v{SL} offset:{(k%4)*9216 + j*1024}" for k in (61, 62, 63)] if j < 9 else []
    seq += bl_reads(0) + bl_reads(1)
    OQ = [U1 + 8*i + 4 for i in range(9)] + [232]
    def epi(j):
        o = []
        for t in range(2):
            b = 240 + 2*t
            for h in range(2):
                x = ACC + (j*2+t)*4 + 2*h; z = U1 + 8*j + 2*t + h; tt = 236 + 2*h
                od = OQ[(j//2)*2 + t] + (j%2)*2 + h
                o += [f"v_lshlrev_b32 v{tt}, 16, v{z}", f"v_and_b32 v{tt+1}, 0xffff0000, v{z}",
                      f"v_add_f32 v{x}, v{x}, v{b}", f"v_add_f32 v{x+1}, v{x+1}, v{b}", f"v_mul_f32 v{x}, v{x}, v{tt}", f"v_mul_f32 v{x+1}, v{x+1}, v{tt+1}",
                      f"v_cvt_pk_bf16_f32 v{od}, v{x}, v{x+1}"]
        for t in range(2):
            od = OQ[(j//2)*2 + t]
            if j % 2 == 1: o.append(VM(f"buffer_store_dwordx4 v[{od}:{od+3}], v1, s[8:11], s{28+t} offen offset:{1024*(j//2)} sc1", ("PS", j, t)))
            if j == 8: o.append(VM(f"buffer_store_dwordx2 v[{od}:{od+1}], v1, s[8:11], s{30+t} offen sc1", ("PS", 9, t)))
        return o
    WT = [int(x) for x in os.environ.get('WT', '4,2,5').split(',')]
    wq = [w_loads(k) for k in range(4, NWR)] + [w_dma(k) for k in range(NWR, 17)] + [w_loads(17, "s36")]
    for j in range(9):
        m_ = [mf2(60, j, 0, B2V + 4*j), mf2(60, j, 1, B2V + 4*j)]
        for k in (61, 62, 63):
            for t in range(2): m_.append(mf2(k, j, t, BL+12*(j%3)+4*(k-61)))
        seq.append(f"s_waitcnt lgkmcnt({3 if j < 8 else 0})")
        ex = wq.pop(0) if (j % 2 == 0 and j//2 < WT[0]) else []
        seq += interleave(m_, bl_reads(j+2) + ex + (epi(j-2) if j >= 2 else []))
    seq += epi(7) + epi(8)
    PV, LW = 240, 244
    seq += f"""
      s_mul_i32 s20, s32, {4*73728}
      s_mul_i32 s6, s3, {18*1024}
      s_add_u32 s20, s20, s6
      s_add_u32 s20, s20, {PF}            ; P soffset
      s_lshl_b32 s23, s32, 12
      s_lshl_b32 s6, s3, 9
      s_add_u32 s23, s23, s6
      s_add_u32 s23, s23, {FLP}           ; poll address
      v_and_b32 v10, 3, v2
      v_bfe_u32 v11, v2, 2, 1
      v_lshl_add_u32 v10, v11, 4, v10
      v_lshlrev_b32 v10, 7, v10
      v_add_u32 v249, s37, v1""".split("\n")
    for u in range(4):
        seq += [f"s_add_u32 s6, s3, {u}", "s_and_b32 s6, s6, 3", "s_mul_i32 s7, s6, 73728", f"v_add_u32 v{PV+u}, s7, v1"]
        if u > 0: seq += ["s_mul_i32 s7, s6, 15360", f"s_add_u32 s7, s7, {(u-1)*5120}", f"v_add_u32 v{LW+u}, s7, v1"]
    for _ in range(WT[1]): seq += wq.pop(0)
    seq += [a.stamp(1), WAIT([("PS", 9, 1)]), VM("buffer_store_dword v5, v13, s[8:11], s24 offen sc1", "FP"), a.stamp(2)]
    DEP = 6; AC3 = 16; PR = 96; XR, GB, GR_ = 192, 204, 96
    seq += [f"s_lshl_b32 s22, s32, 2", "s_add_u32 s22, s22, s3", "s_mul_i32 s25, s22, 18432", "s_lshl_b32 s24, s33, 9", "s_add_u32 s25, s25, s24", f"s_add_u32 s25, s25, {X1F}",
            "v_lshlrev_b32 v9, 3, v2", "s_lshl_b32 s24, s33, 7", f"s_add_u32 s24, s24, {MODP + 5*576*8}", f"s_add_u32 s26, s24, {3456*8}", "v_lshlrev_b32 v8, 5, v12"]
    for j in range(5):
        seq.append(VM(f"buffer_load_dwordx2 v[{XR+2*j}:{XR+1+2*j}], v9, s[8:11], s25 offen offset:{512*j}", ("X", j)))
        for q_ in range(4):
            seq.append(VM(f"buffer_load_dwordx4 v[{GR_+16*j+4*q_}:{GR_+16*j+4*q_+3}], v8, s[8:11], s{24 if q_ < 2 else 26} offen offset:{128*j + 16*(q_%2)}", ("G", j, q_)))
    for _ in range(WT[2]): seq += wq.pop(0)
    seq.append(WAIT([("G", 4, 3)]))
    for j in range(5):
        g_ = GR_ + 16*j
        for e in range(4): seq.append(f"v_add_f32 v{g_+2*e}, v{g_+2*e}, v{g_+8+2*e}")
        for h in range(2): seq.append(f"v_cvt_pk_bf16_f32 v{g_+8+h}, v{g_+4*h}, v{g_+4*h+2}")
        for h in range(2): seq += [f"v_lshlrev_b32 v{GB+4*j+2*h}, 16, v{g_+8+h}", f"v_and_b32 v{GB+4*j+2*h+1}, 0xffff0000, v{g_+8+h}"]
    resolve(seq)
    for it in seq:
        if it == "STAMPFLUSH": a.stamp_flush2(2, 8)
        else: emit(a, [it])
    a.srd(12, "out")
    poll_loop(a, "GM_P", ["buffer_load_dword v11, v10, s[8:11], s23 offen sc1"], [11], None)
    a(a.stamp(3))
    done = [VM("; ", x.tag) for x in seq if isinstance(x, VM) and x.tag[0] == "W"]
    def p_loads(k):
        if k >= 18: return []
        r = PR + (k % DEP)*16
        o = [VM(f"buffer_load_dwordx4 v[{r+4*u}:{r+4*u+3}], v{PV+u}, s[8:11], s20 offen offset:{1024*(k%4)} sc1", ("P", k, u)) for u in range(4)]
        if k % 4 == 3: o.append("s_add_u32 s20, s20, 4096")
        return o
    def w_rd(k): return [f"ds_read_b128 a[{w_reg(k)+4*j}:{w_reg(k)+4*j+3}], v249 offset:{(k-NWR)*5120 + 1024*j}" for j in range(5)]
    seq = list(done)
    for k in range(DEP-1): seq += p_loads(k)
    for k in range(18):
        kr = k + 4
        need = [("P", k, 3)] + ([("W", k, 4)] if (k < NWR or k == 17) else []) + ([("W", kr, 4)] if NWR <= kr < 17 else [])
        seq.append(WAIT(need, lgkm=(NWR <= k < 17)))
        if k == 0: seq.append(a.stamp(4))
        r = PR + (k % DEP)*16
        mm = []
        for u in range(4):
            for j in range(5):
                c = AC3 + (u*5+j)*4
                mm.append(f"{MF} v[{c}:{c+3}], a[{w_reg(k)+4*j}:{w_reg(k)+4*j+3}], v[{r+4*u}:{r+4*u+3}], {'0' if k == 0 else f'v[{c}:{c+3}]'}")
        f = p_loads(k+DEP-1) + (wq.pop(0) if wq else []) + (w_rd(kr) if NWR <= kr < 17 else [])
        seq += interleave(mm, f)
    seq += [a.stamp(5), "s_mul_i32 s7, s3, 15360", "v_add_u32 v11, s7, v1", "s_nop 4", "s_barrier"]
    for u in range(1, 4):
        for j in range(5):
            c = AC3 + (u*5+j)*4
            seq.append(f"ds_write_b128 v{LW+u}, v[{c}:{c+3}] offset:{1024*j}")
    seq += ["v_mul_u32_u24 v4, 1152, v248",
            "v_lshl_add_u32 v4, v12, 3, v4", "s_lshr_b32 s25, s22, 1", f"s_mul_i32 s25, s25, {32*1152}", "s_and_b32 s26, s22, 1", f"s_mul_i32 s26, s26, {4*1152}",
            "s_add_u32 s25, s25, s26", "s_lshl_b32 s26, s33, 5", "s_add_u32 s25, s25, s26",
            "s_waitcnt lgkmcnt(0)", "s_barrier"]
    for i in range(15):
        c = AC3 + 20 + 4*i
        seq.append(f"ds_read_b128 v[{c}:{c+3}], v11 offset:{1024*i}")
        if i == 13: seq.append("s_waitcnt lgkmcnt(8)")
    seq += ["s_waitcnt lgkmcnt(0)"]
    for j in range(5):
        for h in range(2):
            x = AC3 + 4*j + 2*h
            seq += [f"v_pk_add_f32 {P(x)}, {P(x)}, {P(x+20)}", f"v_pk_add_f32 {P(x+40)}, {P(x+40)}, {P(x+60)}",
                    f"v_lshlrev_b32 v{x+20}, 16, v{XR+2*j+h}", f"v_and_b32 v{x+21}, 0xffff0000, v{XR+2*j+h}",
                    f"v_pk_add_f32 {P(x)}, {P(x)}, {P(x+40)}",
                    f"v_pk_fma_f32 {P(x)}, {P(x)}, {P(GB+4*j+2*h)}, {P(x+20)}",
                    f"v_cvt_pk_bf16_f32 v{XR+2*j+h}, v{x}, v{x+1}"]
        seq.append(VM(f"buffer_store_dwordx2 v[{XR+2*j}:{XR+1+2*j}], v4, s[12:15], s25 offen offset:{32*j}", ("O", j)))
    resolve(seq); emit(a, seq)
    a(a.stamp(6))
    a.stamp_end(3, 8)
    a("GM_END:\ns_endpgm\nGM_CODE_END:")
    a.desc("gm_kernel", 512, 256)
```

```python
from gen_common import *
import os
X = os.environ.get('X', '').split(',')
F_GRID = 256
CH_LDS = 25792; KCS = 4160; URO = 16640; URS = 4576; YO = 4*CH_LDS; YS = 9216
QO = YO + 4*YS
F_LDS = QO + 18432 + 16
BIG = 0x7fffff00
FU, FH2, FM = FLF, FLF + 576*128, FLF + 720*128
CNT = QO + 18432

def poll(a, name, addr, dst, nonce="s42", pair=None):
    a(f"""
      s_mov_b32 s43, 0
    {name}_POLL:
      {f"buffer_load_dwordx2 {pair}" if pair else f"buffer_load_dword {dst}"}, {addr}, s[8:11], 0 offen sc1
      s_waitcnt vmcnt(0)
      v_cmp_ne_u32 vcc, {nonce}, {dst}
      s_add_u32 s43, s43, 1
      s_cmp_ge_u32 s43, 0x80000
      s_cbranch_scc1 {name}_GO
      s_nop 2
      s_cbranch_vccz {name}_GO
      s_sleep {SLP}
      s_branch {name}_POLL
    {name}_GO:
    """)
def get_nonce(a, name, tmp):
    a(f"""
      s_mov_b32 s43, 0
      v_mov_b32 {tmp}, 0
    {name}_NP:
      buffer_load_dword {tmp}, {tmp}, s[28:31], 0 offen sc1
      s_waitcnt vmcnt(0)
      v_readfirstlane_b32 s42, {tmp}
      s_add_u32 s43, s43, 1
      s_cmp_ge_u32 s43, 0x80000
      s_cbranch_scc1 {name}_NG
      s_cmp_lg_u32 s42, 0
      s_cbranch_scc1 {name}_NG
      s_sleep {SLP}
      s_branch {name}_NP
    {name}_NG:
    """)
def check_nonce(a, name, reg):
    a(f"""
      v_readfirstlane_b32 s42, {reg}
      s_nop 3
      s_cmp_lg_u32 s42, 0
      s_cbranch_scc1 {name}_NG
    """)
    get_nonce(a, name, reg)
def red32(a, r, t):
    a(f"""
      s_nop 1
      v_add_f32_dpp {r}, {r}, {r} quad_perm:[1,0,3,2] row_mask:0xf bank_mask:0xf
      s_nop 1
      v_add_f32_dpp {r}, {r}, {r} quad_perm:[2,3,0,1] row_mask:0xf bank_mask:0xf
      s_nop 1
      v_add_f32_dpp {r}, {r}, {r} row_half_mirror row_mask:0xf bank_mask:0xf
      s_nop 1
      v_add_f32_dpp {r}, {r}, {r} row_mirror row_mask:0xf bank_mask:0xf
      s_nop 0
      v_mov_b32 {t}, {r}
      s_nop 1
      v_permlane16_swap_b32 {r}, {t}
      s_nop 1
      v_add_f32 {r}, {r}, {t}
    """)
def wsp_loads(a, R):
    a.srd(12, "wsp")
    a(f"""
      s_lshr_b32 s18, s2, 2               ; blk
      s_and_b32 s19, s2, 3
      s_lshl_b32 s19, s19, 2
      s_and_b32 s16, s3, 3
      s_add_u32 s19, s19, s16             ; ks/4
      v_lshrrev_b32 v6, 2, v4
      v_lshlrev_b32 v6, 3, v6
      v_and_b32 v7, 3, v4
      v_add_u32 v6, v6, v7
      v_lshlrev_b32 v6, 12, v6
      v_lshl_add_u32 v6, v5, 4, v6
      v_add_u32 v7, 16384, v6
      s_lshl_b32 s18, s18, 17
      s_lshl_b32 s16, s19, 8
      s_add_u32 s16, s16, s18
      s_lshl_b32 s17, s19, 13
      s_add_u32 s17, s17, s18
      s_add_u32 s17, s17, {WSPF}
    """)
    for i in range(8):
        a(f"buffer_load_dwordx4 v[{R+4*i}:{R+4*i+3}], {['v6','v7'][i%2]}, s[12:15], s16 offen offset:{64*(i//2)}")
    a("v_add_u32 v6, 4096, v3")
def wsp_stores(a, R):
    for i in range(8):
        a(f"s_waitcnt vmcnt(7)")
        a(f"buffer_store_dwordx4 v[{R+4*i}:{R+4*i+3}], {['v3','v6'][i//4]}, s[8:11], s17 offen offset:{1024*(i%4)} sc1")

def touch_wsp(a, R, nw):
    if 'ftouch' not in X: return
    a.srd(16, "wsp")
    n = 32 // nw
    a(f"s_lshl_b32 s46, s2, 15\ns_and_b32 s47, s3, {nw-1}\ns_mul_i32 s47, s47, {n*1024}\ns_add_u32 s46, s46, s47")
    for i in range(n):
        if i == 4: a("s_add_u32 s46, s46, 4096")
        a(f"buffer_load_dwordx4 v[{R}:{R+3}], v3, s[16:19], s46 offen offset:{1024*(i%4)}")
def gen_f(a):
    fine = 'fine' in X
    st0 = a.stamp
    FS = (lambda i: st0(i) + "\ns_waitcnt lgkmcnt(0)") if (fine and Asm.STAMPS) else (lambda i: "; ")
    if fine: a.stamp = lambda i: st0(i) if i in (0, 1, 6) else "; "
    a.begin("f_kernel")
    a(f"s_cmp_ge_u32 s2, {F_GRID}\ns_cbranch_scc1 F_END")
    a(a.stamp(0))
    a.load_args()
    a("""
      s_memrealtime s[40:41]
      v_lshrrev_b32 v1, 6, v0
      v_and_b32 v2, 63, v0                ; lane
      v_readfirstlane_b32 s3, v1          ; wave
      v_lshlrev_b32 v3, 4, v2             ; lane*16
      v_and_b32 v4, 15, v2                ; l&15
      v_lshrrev_b32 v5, 4, v2             ; g
      s_and_b32 s4, s2, 7
      s_mul_i32 s4, s4, 18
      s_lshr_b32 s5, s2, 3
      s_add_u32 s4, s4, s5
      s_waitcnt lgkmcnt(0)
    """)
    a.srd(8, "ws"); a.srd(28, "dbg", 256)
    a(f"v_cmp_eq_u32 vcc, 0, v2\nv_mov_b32 v122, {BIG}\ns_nop 0\nv_cndmask_b32 v122, v122, 0, vcc")
    a(f"""
      s_cmp_lg_u32 s2, 255
      s_cbranch_scc1 F_NOTAG
      s_cmp_lg_u32 s3, 0
      s_cbranch_scc1 F_NOTAG
      s_mul_i32 s41, s41, 0x9e3779b1
      s_xor_b32 s40, s40, s41
      s_or_b32 s40, s40, 1
      v_mov_b32 v8, s40
      v_lshlrev_b32 v9, 8, v2
      buffer_store_dword v8, v9, s[28:31], 0 offen sc1
    F_NOTAG:
      s_cmp_ge_u32 s2, 144
      s_cbranch_scc1 F_OTHER
    """)
    a(f"""
      s_and_b32 s5, s4, 15                ; rb
      s_lshr_b32 s6, s4, 4                ; cb
      v_lshrrev_b32 v6, 5, v0             ; rg 0..15
      v_and_b32 v7, 31, v0                ; cp
      s_lshl_b32 s7, s5, 7
      v_lshl_add_u32 v8, v6, 3, s7        ; s0
      s_lshl_b32 s7, s6, 7
      v_lshl_add_u32 v9, v7, 2, s7
      v_mul_u32_u24 v10, 1152, v8
      v_add_u32 v10, v10, v9              ; row s0
      v_subrev_u32 v11, 4608, v10         ; row s0-4
      v_add_u32 v12, 4608, v10            ; row s0+4
      v_lshlrev_b32 v13, 2, v9
    """)
    a.srd(12, "k"); a.srd(16, "v"); a.srd(20, "shk"); a.srd(24, "q"); a.srd(32, "ssmk")
    KR, VR, QR, SQ, TK = 20, 32, 104, 124, 144
    a("buffer_load_dwordx4 v[16:19], v13, s[20:23], 0 offen")
    for i in range(1, 12):
        a(f"buffer_load_dword v{KR+i}, {['v11','v10','v12'][i//4]}, s[12:15], 0 offen offset:{1152*(i%4)}")
        if i >= 4: a(f"buffer_load_dword v{VR+i-3}, {['v11','v10','v12'][i//4]}, s[16:19], 0 offen offset:{1152*(i%4)}")
    def zero_gm():
        a(f"""
          v_mov_b32 v120, 0
          v_lshlrev_b32 v121, 1, v0
          s_lshl_b32 s46, s2, 10
          s_add_u32 s46, s46, {ST2}
          buffer_store_short v120, v121, s[8:11], s46 offen
          s_and_b32 s46, s3, 3
          s_lshl_b32 s47, s2, 2
          s_add_u32 s46, s46, s47
          s_lshl_b32 s46, s46, 7
          s_lshr_b32 s47, s3, 2
          s_mul_i32 s47, s47, {FLP-FLB}
          s_add_u32 s46, s46, s47
          s_add_u32 s46, s46, {FLB}
          buffer_store_dword v120, v122, s[8:11], s46 offen
        """)
    a(f"""
      s_and_b32 s36, s3, 3
      s_mul_i32 s38, s36, {CH_LDS}
      s_lshl_b32 s7, s4, 2
      s_add_u32 s7, s7, s36               ; channel
      s_lshl_b32 s44, s7, 12
      s_add_u32 s45, s44, {UR}
      v_sub_u32 v13, 15, v6
      v_and_b32 v11, 7, v7
      v_xor_b32 v13, v13, v11
      v_lshlrev_b32 v13, 4, v13
      v_lshl_add_u32 v13, v7, 9, v13
      v_add_u32 v13, {YO}, v13
      v_mov_b32 v123, 0
      v_mov_b32 v15, {CNT}
      ds_write2_b32 v15, v123, v123 offset1:1
      buffer_load_dword v123, v123, s[28:31], 0 offen sc1
      s_lshl_b32 s46, s4, 4
      s_lshl_b32 s47, s36, 2
      s_add_u32 s46, s46, s47
      v_lshrrev_b32 v14, 5, v2
      v_add_u32 v14, s46, v14
      v_mul_u32_u24 v15, 1152, v14
      v_lshl_add_u32 v15, v7, 2, v15
      s_waitcnt vmcnt(1)
      s_cmp_lt_u32 s3, 4
      s_cbranch_scc1 F_P1_C
    """)
    for r in range(2):
        for i in range(9):
            a(f"buffer_load_dword v{SQ+9*r+i}, v15, s[24:27], 0 offen offset:{128*i + 2304*r}")
    a("F_P1_C:")
    a(a.stamp(1))
    SH, KU, VU = 50, 58, 82
    for j in range(4):
        op = "v_lshlrev_b32 {d}, 16, {s}" if j % 2 == 0 else "v_and_b32 {d}, 0xffff0000, {s}"
        a(op.format(d=f"v{SH+2*j}", s=f"v{16+j//2}"))
        a(op.format(d=f"v{SH+1+2*j}", s=f"v{18+j//2}"))
    for i in range(1, 12): a(f"v_lshlrev_b32 v{KU+2*i}, 16, v{KR+i}\nv_and_b32 v{KU+1+2*i}, 0xffff0000, v{KR+i}")
    for i in range(1, 9): a(f"v_lshlrev_b32 v{VU+2*i}, 16, v{VR+i}\nv_and_b32 v{VU+1+2*i}, 0xffff0000, v{VR+i}")
    RES = 20
    for i in range(1, 9):
        d = f"v[{RES+2*i}:{RES+1+2*i}]"
        kk = lambda j: f"v[{KU+2*(i+3-j)}:{KU+1+2*(i+3-j)}]"
        a(f"v_pk_mul_f32 {d}, {kk(3)}, v[{SH+6}:{SH+7}]")
        for j in (2, 1, 0): a(f"v_pk_fma_f32 {d}, {kk(j)}, v[{SH+2*j}:{SH+1+2*j}], {d}")
        a(f"v_pk_mul_f32 {d}, {d}, v[{VU+2*i}:{VU+1+2*i}]")
    o = 60
    for ch in range(2):
        for dd in range(4):
            a(f"v_cvt_pk_bf16_f32 v{o+dd}, v{RES+2*(8-2*dd)+ch}, v{RES+2*(7-2*dd)+ch}")
        a(f"ds_write_b128 v13, v[{o}:{o+3}] offset:{ch*256}")
        o += 4
    a(f"""
      v_lshrrev_b32 v11, 4, v0
      v_and_b32 v12, 7, v6
      v_xor_b32 v12, v4, v12
      v_lshlrev_b32 v12, 4, v12
      v_lshl_add_u32 v12, v11, 8, v12
      v_add_u32 v12, {YO}, v12
      v_lshlrev_b32 v11, 12, v11
      v_lshl_add_u32 v11, v4, 4, v11
      s_lshl_b32 s46, s6, 18
      s_sub_u32 s47, 15, s5
      s_lshl_b32 s47, s47, 8
      s_add_u32 s46, s46, s47
      s_add_u32 s46, s46, {UR}
      s_waitcnt lgkmcnt(0)
      {FS(2)}
      s_barrier
      {FS(3)}
      s_cmp_ge_u32 s3, 4
      s_cbranch_scc1 F_HELP
    """)
    for i in range(4): a(f"ds_read_b128 v[{60+4*i}:{63+4*i}], v12 offset:{4096*i}")
    for i in range(4):
        a(f"s_waitcnt lgkmcnt({3-i})")
        a(f"buffer_store_dwordx4 v[{60+4*i}:{63+4*i}], v11, s[8:11], s46 offen sc1")
        if i < 3: a(f"s_add_u32 s46, s46, {16*4096}")
    def kcopy(t):
        a(f"s_add_u32 m0, s38, {t*KCS + 60 - 4*t}\ns_nop 0")
        for i in range(4):
            a(f"buffer_load_dwordx4 v3, s[32:35], s44 offen offset:{1024*i} lds")
    for t in range(4): kcopy(t)
    a(FS(4))
    a("s_waitcnt vmcnt(16)")
    a(FS(5))
    check_nonce(a, "F_C", "v123")
    a(f"""
      {a.stamp(2)}
      v_mov_b32 v14, s42
      s_lshr_b32 s7, s44, 5
      s_add_u32 s7, s7, {FU}
      buffer_store_dword v14, v122, s[8:11], s7 offen sc1
    """)
    p = a.ptr("ssmD"); w = a.ptr("ws")
    a(f"""
      s_lshl_b32 s7, s4, 3
      s_load_dwordx2 s[20:21], s[{p}:{p+1}], s7
      s_lshl_b32 s7, s6, 6
      s_and_b32 s22, s4, 3
      s_add_u32 s7, s7, s22
      v_lshl_add_u32 v14, v4, 2, s7
      v_lshlrev_b32 v14, 7, v14
      v_add_u32 v14, {FU}, v14
      v_mov_b32 v8, 0
      v_mov_b32 v9, 0
      v_mov_b32 v10, 0
      v_mov_b32 v11, 0
      v_mul_u32_u24 v12, {KCS}, v5
      v_lshl_add_u32 v12, v4, 2, v12
      v_add_u32 v12, s38, v12
      v_add_u32 v13, v4, v5
      v_lshrrev_b32 v16, 5, v2
      v_mul_u32_u24 v16, {URS}, v16
      v_and_b32 v15, 31, v2
      v_lshl_add_u32 v16, v15, 4, v16
      v_add_u32 v16, s38, v16
      v_cmp_gt_u32 vcc, 15, v13
      s_and_saveexec_b64 s[46:47], vcc
      ds_write_b32 v12, v8
      s_mov_b64 exec, s[46:47]
      v_cmp_gt_u32 vcc, 28, v15
      s_and_saveexec_b64 s[46:47], vcc
      ds_write_b128 v16, v[8:11] offset:{URO+4096}
      s_mov_b64 exec, s[46:47]
      v_and_b32 v12, 3, v4
      v_mul_u32_u24 v12, {KCS}, v12
      v_lshrrev_b32 v13, 2, v4
      v_add_u32 v13, v13, v5
      v_lshl_add_u32 v12, v13, 4, v12
      v_add_u32 v12, s38, v12
      v_lshrrev_b32 v13, 3, v4            ; p
      v_mul_u32_u24 v13, {URS}, v13
      v_lshl_add_u32 v13, v5, 4, v13
      v_and_b32 v16, 7, v4                ; a'
      v_lshlrev_b32 v16, 6, v16
      v_sub_u32 v13, v13, v16
      s_add_u32 s7, s38, {URO + 448}
      v_add_u32 v13, s7, v13
      v_and_b32 v6, 7, v4
      v_mul_u32_u24 v6, 144, v6
      v_lshl_add_u32 v6, v5, 5, v6
      v_lshrrev_b32 v15, 3, v4
      v_lshl_add_u32 v6, v15, 4, v6
      s_mul_i32 s7, s3, {YS}
      s_add_u32 s7, s7, {YO}
      v_add_u32 v6, s7, v6
      s_waitcnt lgkmcnt(0)
      s_cmp_ge_u32 s3, 2
      s_cselect_b32 s7, s21, s20
      s_and_b32 s22, s3, 1
      s_lshl_b32 s22, s22, 4
      s_lshr_b32 s7, s7, s22
      s_and_b32 s7, s7, 0xffff
      v_mov_b32 v15, s7
      v_lshl_add_u32 v16, v5, 2, v4       ; m + 4g
    """)
    for dd in range(4):
        a(f"v_cmp_eq_u32 vcc, {15-dd}, v16\ns_nop 1\nv_cndmask_b32 v{8+dd}, 0, v15, vcc")
    poll(a, "F_U", "v14", "v15")
    a(a.stamp(3))
    UB = 112
    for i in range(4):
        a(f"buffer_load_dwordx4 v[{UB+8*i}:{UB+8*i+3}], v3, s[8:11], s45 offen offset:{1024*i} sc1")
        a(f"buffer_load_dword v{UB+8*i+4}, v3, s[8:11], s45 offen offset:{1024*i+16} sc1")
    a(f"s_add_u32 s7, s38, {URO}\nv_add_u32 v14, s7, v3\nv_cmp_eq_u32 vcc, 63, v2")
    ACC = 16; FR = [48, 112]
    def reads(buf, r, which="AB"):
        out = []
        for i in range(8):
            if "B" in which: out.append(f"ds_read_b128 v[{FR[buf]+32+4*i}:{FR[buf]+35+4*i}], v13 offset:{64*r + 512*(7-i)}")
            if "A" in which: out.append(f"ds_read_b128 v[{FR[buf]+4*i}:{FR[buf]+3+4*i}], v12 offset:{64*r + 512*i}")
        return out
    def mfmas(buf):
        out = []
        for p_ in range(8):
            for q_ in range(8 - p_):
                j = p_ + q_
                out.append(f"v_mfma_f32_16x16x32_bf16 v[{ACC+4*j}:{ACC+4*j+3}], v[{FR[buf]+4*p_}:{FR[buf]+4*p_+3}], v[{FR[buf]+32+4*q_}:{FR[buf]+35+4*q_}], v[{ACC+4*j}:{ACC+4*j+3}]")
        return out
    for x in reads(0, 0, "A"): a(x)
    for i in range(4):
        b = UB + 8*i
        a(f"s_waitcnt vmcnt({6-2*i})")
        if i == 3: a(f"v_cndmask_b32 v{b+4}, v{b+4}, 0, vcc")
        a(f"ds_write_b128 v14, v[{b}:{b+3}] offset:{URS + 1024*i}")
        for d_ in range(4): a(f"v_alignbit_b32 v{144+4*i+d_}, v{b+d_+1}, v{b+d_}, 16")
        a(f"ds_write_b128 v14, v[{144+4*i}:{147+4*i}] offset:{1024*i}")
        if i == 1: a("s_waitcnt lgkmcnt(0)")
    a("s_waitcnt lgkmcnt(0)")
    a(a.stamp(4))
    for x in reads(0, 0, "B"): a(x)
    touch_wsp(a, 176, 4)
    a("s_waitcnt lgkmcnt(0)")
    for q_ in range(8):
        a(f"v_mfma_f32_16x16x32_bf16 v[{ACC+4*q_}:{ACC+4*q_+3}], v[8:11], v[{FR[0]+32+4*q_}:{FR[0]+35+4*q_}], 0")
    a("s_mov_b32 s7, 0\nF_CLOOP:")
    for x in interleave(mfmas(0), reads(1, 1), per=1): a(x)
    a("s_waitcnt lgkmcnt(0)")
    for x in interleave(mfmas(1), reads(0, 2), per=1): a(x)
    a("""
      v_add_u32 v12, 128, v12
      v_add_u32 v13, 128, v13
      s_add_u32 s7, s7, 1
      s_cmp_lt_u32 s7, 4
      s_waitcnt lgkmcnt(0)
      s_cbranch_scc1 F_CLOOP
      s_nop 3
    """)
    a(a.stamp(5))
    for j in range(8):
        a(f"ds_write_b128 v6, v[{ACC+4*j}:{ACC+4*j+3}] offset:{j*8*144}")
    a("s_waitcnt lgkmcnt(0)\ns_barrier")
    a(f"v_cmp_eq_u32 vcc, 0, v2\nv_mov_b32 v122, {BIG}\ns_nop 0\nv_cndmask_b32 v122, v122, 0, vcc")
    zero_gm()
    a.stamp_end(0, 7)
    a("s_endpgm")

    a("F_HELP:")
    a(f"""
      s_cmp_ge_u32 s4, 128
      s_cbranch_scc1 F_H_SKIP
      v_lshrrev_b32 v8, 1, v7             ; c>>1
      v_and_b32 v9, 7, v8
      s_lshl_b32 s7, s36, 1
      v_xor_b32 v9, s7, v9
      v_lshlrev_b32 v8, 7, v8
      v_lshrrev_b32 v10, 5, v2
      v_lshl_add_u32 v8, v10, 3, v8
      v_and_b32 v10, 1, v7
      v_lshl_add_u32 v8, v10, 2, v8
      v_add_u32 v8, {QO}, v8
      v_lshl_add_u32 v10, v9, 4, v8       ; r = 0
      v_xor_b32 v9, 1, v9
      v_lshl_add_u32 v11, v9, 4, v8       ; r = 1
      s_waitcnt vmcnt(0)
      {FS(4)}
    """)
    for r in range(2):
        for i in range(9): a(f"ds_write_b32 v{10+r}, v{SQ+9*r+i} offset:{2048*i}")
        a("s_waitcnt lgkmcnt(0)")
    a(f"""
      v_mov_b32 v8, 1
      v_mov_b32 v9, {CNT}
      s_mov_b64 exec, 1
      ds_add_u32 v9, v8 offset:4
      s_mov_b64 exec, -1
      v_cmp_eq_u32 vcc, 0, v7
      v_lshlrev_b32 v15, 3, v14
      v_mov_b32 v14, {BIG}
      s_mov_b32 s7, {ST1}
      v_cndmask_b32 v15, v14, v15, vcc
    """)
    a(f"""
      v_and_b32 v1, 255, v0
      v_lshrrev_b32 v10, 3, v1            ; cg (+32 i)
      v_and_b32 v11, 7, v2
      v_xor_b32 v12, v11, v10
      v_and_b32 v12, 7, v12
      v_lshlrev_b32 v12, 4, v12
      v_lshl_add_u32 v12, v10, 7, v12
      v_add_u32 v12, {QO}, v12
      v_lshlrev_b32 v10, 14, v10
      v_lshl_add_u32 v10, v11, 4, v10
      s_lshl_b32 s47, s4, 7
      s_add_u32 s47, s47, {QP}
    F_H_SYNC:
      ds_read_b32 v8, v9 offset:4
      s_waitcnt lgkmcnt(0)
      v_readfirstlane_b32 s46, v8
      s_nop 3
      s_cmp_lt_u32 s46, 4
      s_cbranch_scc1 F_H_SYNC
    """)
    for i in range(4): a(f"ds_read_b128 v[{60+4*i}:{63+4*i}], v12 offset:{4096*i}")
    for i in range(4):
        a(f"s_waitcnt lgkmcnt({3-i})")
        a(f"buffer_store_dwordx4 v[{60+4*i}:{63+4*i}], v10, s[8:11], s47 offen sc1")
        a(f"s_add_u32 s47, s47, {32*16384}")
    a(f"""
      s_cmp_ge_u32 s36, 2
      s_cbranch_scc1 F_H_ST
      ds_read_b128 v[76:79], v12 offset:16384
      s_waitcnt lgkmcnt(0)
      buffer_store_dwordx4 v[76:79], v10, s[8:11], s47 offen sc1
    F_H_ST:
      {FS(5)}
    """)
    U = 20
    for r in range(2):
        for i in range(9): a(f"v_lshlrev_b32 v{U+2*i}, 16, v{SQ+9*r+i}\nv_and_b32 v{U+1+2*i}, 0xffff0000, v{SQ+9*r+i}")
        a(f"v_pk_add_f32 v[16:17], v[{U}:{U+1}], v[{U+2}:{U+3}]")
        for i in range(2, 9): a(f"v_pk_add_f32 v[16:17], v[16:17], v[{U+2*i}:{U+1+2*i}]")
        a("v_add_f32 v16, v16, v17")
        red32(a, "v16", "v17")
        a(f"v_mul_f32 v16, {float_hex(1.0/576)}, v16")
        for i in range(18): a(f"v_sub_f32 v{U+i}, v{U+i}, v16")
        R = 40 + 2*r
        a(f"v_pk_mul_f32 v[{R}:{R+1}], v[{U}:{U+1}], v[{U}:{U+1}]")
        for i in range(1, 9): a(f"v_pk_fma_f32 v[{R}:{R+1}], v[{U+2*i}:{U+1+2*i}], v[{U+2*i}:{U+1+2*i}], v[{R}:{R+1}]")
        a(f"v_add_f32 v{R}, v{R}, v{R+1}")
        red32(a, f"v{R}", f"v{R+1}")
        a(f"""
          v_mov_b32 v{R+1}, {float_hex(1e-5)}
          v_fmac_f32 v{R+1}, {float_hex(1.0/576)}, v{R}
          v_rsq_f32 v{R}, v{R+1}
          s_nop 0
          v_mul_f32 v{R+1}, v16, v{R}
          v_sub_f32 v{R+1}, 0, v{R+1}
          buffer_store_dwordx2 v[{R}:{R+1}], v15, s[8:11], s7 offen offset:{16*r} sc1
        """)
    a(f"""
    F_H_SKIP:
      s_waitcnt vmcnt(0)
    """)
    check_nonce(a, "F_H", "v123")
    a(f"""
      {a.stamp(2)}
      v_mov_b32 v14, 1
      v_mov_b32 v15, {CNT}
      s_mov_b64 exec, 1
      ds_add_rtn_u32 v14, v15, v14
      s_waitcnt lgkmcnt(0)
      v_readfirstlane_b32 s7, v14
      s_mov_b64 exec, -1
      s_cmp_lg_u32 s7, 3
      s_cbranch_scc1 F_H_NOF
      v_mov_b32 v14, s42
      s_lshl_b32 s7, s4, 7
      s_add_u32 s7, s7, {FH2}
      buffer_store_dword v14, v122, s[8:11], s7 offen offset:4 sc1
    F_H_NOF:
    """)
    zero_gm()
    a(f"""
      v_and_b32 v1, 255, v0               ; t
      v_lshrrev_b32 v15, 2, v2
      v_lshlrev_b32 v15, 4, v15
      v_and_b32 v16, 3, v2
      s_lshl_b32 s7, s36, 2
      v_add3_u32 v15, v15, v16, s7
      v_lshlrev_b32 v15, 7, v15
      v_add_u32 v15, {FH2}, v15
      v_bfe_u32 v17, v2, 3, 2
      v_min_u32 v17, 2, v17
      v_mul_u32_u24 v17, 576, v17
      v_bfe_u32 v18, v2, 2, 1
      v_mul_u32_u24 v18, 3456, v18
      s_lshl_b32 s7, s4, 2
      v_add3_u32 v16, v16, v17, v18
      v_add_u32 v16, s7, v16
      v_lshlrev_b32 v16, 3, v16
      v_add_u32 v16, {MODP}, v16
      v_cmp_gt_u32 vcc, 32, v2
      s_nop 1
      v_cndmask_b32 v15, v16, v15, vcc
      v_lshlrev_b32 v9, 3, v1             ; t*8
      s_lshl_b32 s38, s4, 14
      s_add_u32 s38, s38, {QP}
      s_mov_b32 s39, {ST1}
      v_lshrrev_b32 v12, 5, v1
      v_mul_u32_u24 v13, 144, v12
      v_and_b32 v14, 24, v1
      v_and_b32 v16, 1, v1
      v_lshl_add_u32 v14, v16, 2, v14
      v_bfe_u32 v16, v1, 1, 2
      v_add_u32 v14, v14, v16
      v_lshl_add_u32 v13, v14, 2, v13
      v_add_u32 v13, {YO}, v13
      v_mul_u32_u24 v12, 36864, v12
      v_bfe_u32 v14, v1, 2, 1
      v_mul_u32_u24 v14, 18432, v14
      v_add_u32 v12, v12, v14
      v_bfe_u32 v14, v1, 3, 2
      v_lshl_add_u32 v12, v14, 5, v12
      v_and_b32 v14, 3, v1
      v_lshl_add_u32 v12, v14, 3, v12
      s_lshl_b32 s7, s4, 7
      s_add_u32 s7, s7, {X1F}
    """)
    poll(a, "F_HP", "v15", "v11", pair="v[10:11]")
    a(a.stamp(3))
    Q, STT, Y, H, MD, WR = 16, 32, 48, 80, 144, 160
    for i in range(8):
        a(f"buffer_load_dwordx2 v[{STT+2*i}:{STT+1+2*i}], v9, s[8:11], s39 offen offset:{2048*(i%2)} sc1")
        a(f"buffer_load_dwordx2 v[{Q+2*i}:{Q+1+2*i}], v9, s[8:11], s38 offen offset:{2048*(i%2)} sc1")
        if i % 2 == 1 and i < 7: a("s_add_u32 s39, s39, 4096\ns_add_u32 s38, s38, 4096")
    a("""
      v_add_f32_dpp v10, v10, v10 row_shl:4 row_mask:0xf bank_mask:0xf
      v_bfe_u32 v11, v2, 3, 2
      v_cmp_eq_u32 vcc, 1, v11
      v_cvt_pk_bf16_f32 v10, v10, v10
      v_lshlrev_b32 v10, 16, v10
      v_cndmask_b32 v11, 0, 1.0, vcc
      v_add_f32 v10, v10, v11
      v_cvt_pk_bf16_f32 v10, v10, v10
      v_lshlrev_b32 v10, 16, v10
      s_nop 0
    """)
    for i in range(12): a(f"v_readlane_b32 s{12+i}, v10, {32 + 8*(i//4) + i%4}")
    a("s_nop 1")
    for i in range(12): a(f"v_mov_b32 v{MD+i}, s{12+i}")
    for i in range(8):
        q0, q1 = Q+2*i, Q+1+2*i
        t = H + 8*i
        a(f"""
          s_waitcnt vmcnt({14-2*i})
          v_lshlrev_b32 v{t}, 16, v{q0}
          v_and_b32 v{t+1}, 0xffff0000, v{q0}
          v_lshlrev_b32 v{t+2}, 16, v{q1}
          v_and_b32 v{t+3}, 0xffff0000, v{q1}
        """)
        for c in range(4): a(f"v_fma_f32 v{t+4+c}, v{t+c}, v{STT+2*i}, v{STT+2*i+1}")
        for c in range(4): a(f"v_fma_f32 v{t+4+c}, v{t+4+c}, v{MD+4+c}, v{MD+c}")
        for c in range(4): a(f"v_mul_f32 v{t+4+c}, v{t+4+c}, v{MD+8+c}")
    a(a.stamp(4))
    a("s_barrier")
    a(a.stamp(5))
    def yrd(i):
        for c in range(4):
            a(f"ds_read_b32 v{Y+4*i+c}, v13 offset:{c*YS + i*8*144}")
    if Asm.STAMPS: a("s_waitcnt lgkmcnt(0)")
    for i in range(3): yrd(i)
    for i in range(8):
        t = H + 8*i
        a(f"s_waitcnt lgkmcnt({min(8, 28-4*i)})")
        if i + 3 < 8: yrd(i+3)
        a(f"""
          v_pk_fma_f32 v[{t}:{t+1}], v[{t+4}:{t+5}], v[{Y+4*i}:{Y+1+4*i}], v[{t}:{t+1}]
          v_pk_fma_f32 v[{t+2}:{t+3}], v[{t+6}:{t+7}], v[{Y+2+4*i}:{Y+3+4*i}], v[{t+2}:{t+3}]
          v_cvt_pk_bf16_f32 v{Q+2*i}, v{t}, v{t+1}
          v_cvt_pk_bf16_f32 v{Q+1+2*i}, v{t+2}, v{t+3}
          buffer_store_dwordx2 v[{Q+2*i}:{Q+1+2*i}], v12, s[8:11], s7 offen sc1
        """)
        if i < 7: a(f"s_add_u32 s7, s7, {8*36864}")
    a.stamp_end(0, 7)
    a("s_endpgm")

    a("F_OTHER:")
    a("s_cmp_ge_u32 s2, 252\ns_cbranch_scc1 F_LAST")
    a("s_cmp_lt_u32 s2, 216\ns_cbranch_scc1 F_WIN")
    a.srd(12, "wmod"); a.srd(16, "c")
    a(f"""
      s_sub_u32 s4, s2, 216
      s_and_b32 s5, s4, 1                 ; half
      s_lshr_b32 s4, s4, 1                ; cbk
      s_mul_i32 s6, s5, 288
      v_and_b32 v6, 7, v0                 ; chunk
      v_lshrrev_b32 v7, 3, v0
      v_add_u32 v10, s6, v7
      v_mul_u32_u24 v8, 6912, v10
      v_lshl_add_u32 v8, v6, 4, v8
      v_lshlrev_b32 v9, 1, v10
      s_cmp_lt_u32 s3, 4
      s_cselect_b32 s7, 0, {BIG}
      v_add_u32 v11, s7, v8
      v_add_u32 v12, s7, v9
      s_add_u32 s20, s4, 27
      s_mov_b32 s21, s4
      s_add_u32 s22, s4, 18
      s_add_u32 s23, s4, 36
      s_cmp_lt_u32 s4, 9
      s_cselect_b32 s22, s22, s23
      v_mov_b32 v123, 0
    """)
    C, T, AC = 16, 24, 32
    for i in range(5): a(f"buffer_load_ushort v{C+i}, {'v9' if i < 4 else 'v12'}, s[16:19], 0 offen offset:{128*i}")
    def mloads(r):
        b = 48 + 20*(r % 2)
        a(f"s_lshl_b32 s24, s{20+r}, 7")
        for i in range(5):
            a(f"buffer_load_dwordx4 v[{b+4*i}:{b+3+4*i}], {'v8' if i < 4 else 'v11'}, s[12:15], s24 offen")
            if i < 4: a(f"s_add_u32 s24, s24, {64*6912}")
    mloads(0)
    a("buffer_load_dword v123, v123, s[28:31], 0 offen sc1")
    a("s_waitcnt vmcnt(6)")
    a("\n".join(f"v_lshlrev_b32 v{C+i}, 16, v{C+i}" for i in range(5)))
    a("\n".join(f"v_mul_f32 v{T+i}, {float_hex(-1.4426950408889634)}, v{C+i}" for i in range(5)))
    a("\n".join(f"v_exp_f32 v{T+i}, v{T+i}" for i in range(5)))
    a("\n".join(f"v_add_f32 v{T+i}, 1.0, v{T+i}" for i in range(5)))
    a("\n".join(f"v_rcp_f32 v{T+i}, v{T+i}" for i in range(5)))
    a("\n".join(f"v_mul_f32 v{C+i}, v{C+i}, v{T+i}" for i in range(5)))
    a("\n".join(f"v_cvt_pk_bf16_f32 v{C+i}, v{C+i}, v{C+i}" for i in range(5)))
    a("\n".join(f"v_lshlrev_b32 v{C+i}, 16, v{C+i}" for i in range(5)))
    a(f"""
      v_lshlrev_b32 v13, 8, v1
      v_lshl_add_u32 v13, v6, 5, v13
      v_lshlrev_b32 v14, 2, v2
      v_lshlrev_b32 v15, 3, v2
      s_mul_i32 s25, s5, {3456*8}
      s_add_u32 s25, s25, {MODP}
      s_waitcnt vmcnt(0)
    """)
    check_nonce(a, "F_M", "v123")
    for r in range(3):
        b = 48 + 20*(r % 2)
        if r > 0: a("s_waitcnt vmcnt(0)")
        if r < 2: mloads(r+1)
        for i in range(5):
            for dd in range(4):
                src = f"v{b+4*i+dd}"
                a(f"v_lshlrev_b32 v24, 16, {src}\nv_and_b32 v25, 0xffff0000, {src}")
                if i == 0: a(f"v_mul_f32 v{AC+2*dd}, v{C}, v24\nv_mul_f32 v{AC+1+2*dd}, v{C}, v25")
                else: a(f"v_fmac_f32 v{AC+2*dd}, v{C+i}, v24\nv_fmac_f32 v{AC+1+2*dd}, v{C+i}, v25")
        a("s_nop 1")
        for j in range(8): a(f"v_add_f32_dpp v{AC+j}, v{AC+j}, v{AC+j} row_ror:8 row_mask:0xf bank_mask:0xf")
        for sw in ("16", "32"):
            for j in range(8): a(f"v_mov_b32 v{40+j}, v{AC+j}")
            a("s_nop 1")
            for j in range(8): a(f"v_permlane{sw}_swap_b32 v{AC+j}, v{40+j}")
            a("s_nop 1")
            for j in range(8): a(f"v_add_f32 v{AC+j}, v{AC+j}, v{40+j}")
        a(f"""
          s_mov_b64 exec, 0xff
          ds_write_b128 v13, v[{AC}:{AC+3}] offset:{2048*r}
          ds_write_b128 v13, v[{AC+4}:{AC+7}] offset:{2048*r+16}
          s_mov_b64 exec, -1
          s_waitcnt lgkmcnt(0)
          s_barrier
          s_cmp_lg_u32 s3, {7-r}
          s_cbranch_scc1 F_MOD_N{r}
        """)
        for i in range(8): a(f"ds_read_b32 v{AC+i}, v14 offset:{2048*r + 256*i}")
        a(f"s_lshl_b32 s24, s{20+r}, 9\ns_add_u32 s24, s24, s25\ns_waitcnt lgkmcnt(0)")
        for i in range(4): a(f"v_add_f32 v{AC+i}, v{AC+i}, v{AC+4+i}")
        a(f"""
          v_add_f32 v{AC}, v{AC}, v{AC+1}
          v_add_f32 v{AC+2}, v{AC+2}, v{AC+3}
          v_add_f32 v{AC}, v{AC}, v{AC+2}
          v_mov_b32 v{AC+1}, s42
          buffer_store_dwordx2 v[{AC}:{AC+1}], v15, s[8:11], s24 offen sc1
          s_nop 1
        F_MOD_N{r}:
        """)
        a(a.stamp(1+r))
    a(a.stamp(4))
    a("s_branch F_LAST")
    TB = 73728; WO = 81920
    a("F_WIN:")
    a.srd(20, "win"); a.srd(12, "wout")
    a(f"""
      s_sub_u32 s4, s2, 144
      s_lshr_b32 s5, s4, 3
      s_and_b32 s4, s4, 7
      s_mul_i32 s4, s4, 9
      s_add_u32 s4, s4, s5                ; unit
      s_and_b32 s24, s3, 3                ; jn
      s_lshr_b32 s25, s3, 2               ; K half
      v_lshrrev_b32 v10, 3, v2
      v_and_b32 v11, 7, v2
      v_and_b32 v12, 6, v10
      v_xor_b32 v11, v11, v12
      v_lshlrev_b32 v11, 4, v11           ; chunk*16
      v_lshrrev_b32 v8, 2, v2
      v_lshlrev_b32 v8, 7, v8
      v_and_b32 v12, 3, v10
      v_xor_b32 v12, s24, v12
      v_lshl_add_u32 v8, v12, 5, v8
      v_and_b32 v12, 3, v2
      v_lshl_add_u32 v8, v12, 3, v8
      s_mul_i32 s26, s25, 36864
      v_add_u32 v9, s26, v8
      s_mul_i32 s26, s25, {144*128}
      s_add_u32 s26, s26, {WO}
      v_add_u32 v8, s26, v8
      s_mul_i32 s6, s3, 9216
      s_mul_i32 s7, s3, {72*9216}
      s_lshl_b32 s5, s4, 7
      s_add_u32 s7, s7, s5
      v_mul_u32_u24 v7, 1152, v10
      v_add_u32 v7, v7, v11
      v_mul_u32_u24 v10, 9216, v10
      v_add_u32 v11, v11, v10
      s_mul_i32 s33, s4, 7282
      s_lshr_b32 s33, s33, 16             ; q8
      s_mul_i32 s5, s33, 9
      s_sub_u32 s32, s4, s5               ; cblk
    """)
    a.srd(16, "ssmk")
    a("v_lshlrev_b32 v14, 4, v0\ns_lshl_b32 s5, s4, 15")
    for i in range(4):
        a(f"buffer_load_dwordx4 v[{16+4*i}:{19+4*i}], v14, s[16:19], s5 offen")
        if i < 3: a("s_add_u32 s5, s5, 8192")
    for i in range(9):
        a(f"s_add_u32 m0, s6, {1024*i}\ns_nop 0")
        a(f"buffer_load_dwordx4 v11, s[20:23], s7 offen lds")
        if i < 8: a(f"s_add_u32 s7, s7, {8*9216}")
    zero_gm()
    get_nonce(a, "F_W", "v14")
    a(f"""
      v_min_u32 v6, 287, v0
      v_lshlrev_b32 v12, 4, v6
      s_mov_b32 s16, {MODP + 3*576*8}
      s_mov_b32 s17, {MODP + 3*576*8 + 3456*8}
      s_mov_b32 s18, {MODP + 4*576*8}
      s_mov_b32 s19, {MODP + 4*576*8 + 3456*8}
      s_mov_b32 s43, 0
      s_cmp_ge_u32 s3, 5
      s_cbranch_scc1 F_WG_SKIP
    F_WG_POLL:
    """)
    for i in range(4): a(f"buffer_load_dwordx4 v[{16+4*i}:{19+4*i}], v12, s[8:11], s{16+i} offen sc1")
    a("s_waitcnt vmcnt(0)\nv_xor_b32 v13, s42, v17")
    for r_ in (19, 21, 23, 25, 27, 29, 31): a(f"v_xor_b32 v14, s42, v{r_}\nv_or_b32 v13, v13, v14")
    a(f"""
      v_cmp_ne_u32 vcc, 0, v13
      s_add_u32 s43, s43, 1
      s_cmp_ge_u32 s43, 0x80000
      s_cbranch_scc1 F_WG_GO
      s_nop 2
      s_cbranch_vccz F_WG_GO
      s_sleep {SLP}
      s_branch F_WG_POLL
    F_WG_GO:
      v_add_f32 v16, v16, v20
      v_add_f32 v18, v18, v22
      v_add_f32 v24, v24, v28
      v_add_f32 v26, v26, v30
      v_cvt_pk_bf16_f32 v16, v16, v18
      v_cvt_pk_bf16_f32 v24, v24, v26
      v_and_b32 v25, 0xffff0000, v24
      v_lshlrev_b32 v24, 16, v24
      v_add_f32 v24, 1.0, v24
      v_add_f32 v25, 1.0, v25
      v_cvt_pk_bf16_f32 v24, v24, v25
      v_and_b32 v25, 0xffff0000, v24
      v_lshlrev_b32 v24, 16, v24
      v_lshlrev_b32 v13, 3, v6
      v_lshlrev_b32 v14, 2, v6
      v_add_u32 v13, {TB}, v13
      v_add_u32 v14, {TB+3072}, v14
      ds_write_b64 v13, v[24:25]
      ds_write_b32 v14, v16
    F_WG_SKIP:
      {a.stamp(1)}
      s_lshl_b32 s16, s4, 2
      s_add_u32 s16, s16, s24             ; fc
      s_cmp_ge_u32 s16, 144
      s_cselect_b32 s17, 144, 0
      s_cselect_b32 s18, 0, {18*9216}
      s_cselect_b32 s23, 1, 0             ; is z2
      s_sub_u32 s34, s16, s17             ; fcl
      s_mul_i32 s19, s34, 7282
      s_lshr_b32 s19, s19, 16             ; nt
      s_mul_i32 s20, s19, 9
      s_sub_u32 s20, s34, s20             ; j
      s_mul_i32 s19, s19, {36*9216}
      s_lshl_b32 s20, s20, 10
      s_add_u32 s19, s19, s20
      s_add_u32 s19, s19, s18
      s_mul_i32 s20, s25, {9*9216}
      s_add_u32 s19, s19, s20
      s_add_u32 s35, s19, {WINF}
      s_mul_i32 s20, s25, 1152
      s_add_u32 s20, s20, {TB}
      v_lshl_add_u32 v12, v5, 4, s20
      s_mul_i32 s20, s25, 576
      s_add_u32 s20, s20, {TB+3072}
      v_lshl_add_u32 v13, v5, 3, s20
      v_mov_b32 v14, 0                    ; u
      v_mov_b32 v15, 0                    ; v
      s_mov_b32 s21, 0x3f803f80
      s_mul_i32 s7, s33, {288*1152}
      s_mul_i32 s5, s3, {8*1152}
      s_add_u32 s7, s7, s5
      s_lshl_b32 s5, s32, 7
      s_add_u32 s7, s7, s5
      s_lshl_b32 s6, s3, 10
      s_waitcnt vmcnt(0) lgkmcnt(0)
      s_barrier
      {a.stamp(2)}
    """)
    for i in range(5):
        if i == 4: a("s_cmp_ge_u32 s3, 4\ns_cbranch_scc1 F_WO_I")
        a(f"s_add_u32 m0, s6, {WO + 8192*i}\ns_nop 0")
        a(f"buffer_load_dwordx4 v7, s[12:15], s7 offen lds")
        if i < 4: a(f"s_add_u32 s7, s7, {64*1152}")
    a("F_WO_I:")
    touch_wsp(a, 176, 8)
    def rd(ks):
        b = 16 + 16*(ks % 3)
        a(f"""
          ds_read_b64_tr_b16 v[{b}:{b+1}], v9 offset:{4096*ks}
          ds_read_b64_tr_b16 v[{b+2}:{b+3}], v9 offset:{4096*ks+2048}
          ds_read_b128 v[{b+4}:{b+7}], v12 offset:{128*ks}
          ds_read_b128 v[{b+8}:{b+11}], v12 offset:{128*ks+64}
          ds_read_b64 v[{b+12}:{b+13}], v13 offset:{64*ks}
          ds_read_b64 v[{b+14}:{b+15}], v13 offset:{64*ks+32}
        """)
    if Asm.STAMPS: a("s_waitcnt lgkmcnt(0)")
    rd(0); rd(1)
    for ks in range(9):
        b = 16 + 16*(ks % 3); t = 64; o = 72 + 4*(ks % 2)
        if ks + 2 < 9:
            a("s_waitcnt lgkmcnt(6)"); rd(ks+2)
        else: a(f"s_waitcnt lgkmcnt({6 if ks + 1 < 9 else 0})")
        for dd in range(4):
            a(f"v_lshlrev_b32 v{t+2*dd}, 16, v{b+dd}\nv_and_b32 v{t+1+2*dd}, 0xffff0000, v{b+dd}")
        for dd in range(4): a(f"v_dot2c_f32_bf16 v15, v{b+dd}, v{b+12+dd}")
        for dd in range(4): a(f"v_pk_mul_f32 v[{t+2*dd}:{t+1+2*dd}], v[{t+2*dd}:{t+1+2*dd}], v[{b+4+2*dd}:{b+5+2*dd}]")
        for dd in range(4): a(f"v_cvt_pk_bf16_f32 v{o+dd}, v{t+2*dd}, v{t+1+2*dd}")
        a(f"buffer_store_dwordx4 v[{o}:{o+3}], v3, s[8:11], s35 offen sc1")
        for dd in range(4): a(f"v_dot2c_f32_bf16 v14, s21, v{o+dd}")
        if ks < 8: a("s_add_u32 s35, s35, 9216")
    a("s_nop 2")
    for sw in ("16", "32"):
        a(f"""
          v_mov_b32 v16, v14
          v_mov_b32 v17, v15
          s_nop 1
          v_permlane{sw}_swap_b32 v14, v16
          v_permlane{sw}_swap_b32 v15, v17
          s_nop 1
          v_add_f32 v14, v14, v16
          v_add_f32 v15, v15, v17
        """)
    a(f"""
      {a.stamp(3)}
      s_lshl_b32 s20, s24, 7
      s_add_u32 s20, s20, {TB+5120}
      v_lshl_add_u32 v18, v4, 3, s20
      v_lshlrev_b32 v16, 2, v4
      v_lshlrev_b32 v17, 3, v4
      s_cmp_lt_u32 s3, 4
      s_cbranch_scc1 F_WIN_NW
      ds_write_b64 v18, v[14:15]
    F_WIN_NW:
      s_mul_i32 s19, s33, 9
      s_lshl_b32 s16, s25, 2
      s_add_u32 s19, s19, s16
      s_mul_i32 s19, s19, 36864
      s_lshl_b32 s16, s32, 2
      s_add_u32 s16, s16, s24
      s_lshl_b32 s16, s16, 10
      s_add_u32 s19, s19, s16
      s_add_u32 s35, s19, {WOUTF}
      s_waitcnt vmcnt({13 if 'ftouch' in X else 9}) lgkmcnt(0)
      s_barrier
      {a.stamp(4)}
    """)
    for i in range(4):
        r = 24 + 4*i
        a(f"ds_read_b64_tr_b16 v[{r}:{r+1}], v8 offset:{32*i*128}")
        a(f"ds_read_b64_tr_b16 v[{r+2}:{r+3}], v8 offset:{(32*i+16)*128}")
    a("s_waitcnt lgkmcnt(0)")
    for i in range(4):
        r = 24 + 4*i
        a(f"buffer_store_dwordx4 v[{r}:{r+3}], v3, s[8:11], s35 offen sc1")
        a("s_add_u32 s35, s35, 36864")
    a(f"""
      s_cmp_ge_u32 s3, 4
      s_cbranch_scc1 F_FIN
      ds_read_b64_tr_b16 v[40:41], v8 offset:{128*128}
      ds_read_b64_tr_b16 v[42:43], v8 offset:{272*128}
      ds_read_b64 v[20:21], v18
      s_add_u32 s35, s35, {4*36864}
      s_waitcnt lgkmcnt(0)
      buffer_store_dwordx4 v[40:43], v3, s[8:11], s35 offen sc1
      v_add_f32 v14, v14, v20
      v_add_f32 v15, v15, v21
      s_mov_b64 exec, 0xffff
      s_cmp_eq_u32 s23, 1
      s_cbranch_scc1 F_WIN_Z2
      s_lshl_b32 s16, s34, 6
      s_add_u32 s16, s16, {UV1}
      buffer_store_dword v14, v16, s[8:11], s16 offen
      s_add_u32 s16, s16, 9216
      buffer_store_dword v15, v16, s[8:11], s16 offen
      s_branch F_FIN
    F_WIN_Z2:
      s_lshl_b32 s16, s34, 7
      s_add_u32 s16, s16, {UV2}
      buffer_store_dwordx2 v[14:15], v17, s[8:11], s16 offen
      s_branch F_FIN
    """)
    a("F_LAST:")
    zero_gm()
    touch_wsp(a, 176, 8)
    a("""
    F_WARM:
      s_getpc_b64 s[12:13]
    F_PC:
      s_add_u32 s12, s12, gm_kernel-F_PC
      s_addc_u32 s13, s13, 0
      s_and_b32 s13, s13, 0xffff
      s_mov_b32 s14, GM_CODE_END-gm_kernel
      s_mov_b32 s15, 0x20000
      v_lshlrev_b32 v6, 7, v0
      buffer_load_dword v7, v6, s[12:15], 0 offen
    F_FIN:
    """)
    a.stamp_end(0, 6)
    a("F_END:\ns_endpgm")
    a.stamp = st0
    a.desc("f_kernel", 180, 180)
```

```python
from gen_common import *
import os
X = os.environ.get('X', '').split(',')
G_LDS = 147456
MF = "v_mfma_f32_16x16x32_bf16"
C0 = -2*0.7978845608028654*1.4426950408889634
C1 = C0*0.044715

class VM:
    def __init__(self, text, tag): self.text, self.tag = text, tag
class WAIT:
    def __init__(self, tags, lgkm=False, key=None): self.tags, self.lgkm, self.key = tags, lgkm, key

def resolve(seq):
    issued = []; res = {}
    pos = {}
    for it in seq:
        if isinstance(it, VM):
            pos[it.tag] = len(issued); issued.append(it.tag)
        elif isinstance(it, WAIT):
            idx = [pos[t] for t in it.tags if t in pos]
            assert len(idx) == len(it.tags), ("missing", [t for t in it.tags if t not in pos])
            it.n = min(len(issued) - 1 - max(idx), 62) if idx else 63
            if it.key is not None: res[it.key] = min(res.get(it.key, 63), it.n)
    return res
def emit(a, seq, keyed=None):
    for it in seq:
        if isinstance(it, VM): a(it.text)
        elif isinstance(it, WAIT):
            n = keyed[it.key] if (keyed is not None and it.key is not None) else it.n
            s = []
            if n < 63: s.append(f"vmcnt({n})")
            if it.lgkm: s.append("lgkmcnt(0)")
            if s: a("s_waitcnt " + " ".join(s))
        else: a(it)

def spread(main, fill):
    groups = []; cur = []; other = []
    for x in fill:
        if isinstance(x, VM): groups.append(cur + [x]); cur = []
        elif isinstance(x, str) and x.startswith("s_") and not x.startswith("s_waitcnt"):
            if x != "s_nop 0": cur.append(x)
        else: other.append(x)
    tailops = cur
    n = len(main); slots = [[] for _ in range(n)]
    G = len(groups)
    for i, gr in enumerate(groups):
        pos = min(n-1, (i*n + n//2) // G) if G else 0
        pos = max(pos, 1)
        if len(gr) > 1:
            if i > 0 and slots[pos] : slots[pos] += gr[:-1] + ["s_nop 0"]
            else: slots[pos-1] += gr[:-1]
        slots[pos].append(gr[-1])
    slots[n-1] += tailops
    k = 0
    per = 1
    while k < len(other):
        free = [i for i in range(n) if len(slots[i]) < per]
        need = len(other) - k
        if len(free) >= need or per > 8:
            break
        per += 1
    out = []
    for i in range(n):
        out.append(main[i])
        room = max(0, per - len(slots[i]))
        out += other[k:k+room]; k += min(room, len(other)-k)
        out += slots[i]
    out += other[k:]
    return out
def sched(main, ds, vm_groups, other=[], ds_per=1, vm_start=2):
    n = len(main); slots = [[] for _ in range(n)]
    for i, x in enumerate(ds): slots[min(n-1, i // ds_per)].append(x)
    G = len(vm_groups)
    last = -1
    for i, gr in enumerate(vm_groups):
        pos = vm_start + (i * (n - vm_start)) // G
        pos = min(n-1, max(pos, last + 1)) if last + 1 < n else n-1
        pre = [x for x in gr if not isinstance(x, VM)]
        vm = [x for x in gr if isinstance(x, VM)]
        if vm and pre:
            if pos - 1 >= last and pos >= 1 and pos != last: slots[pos-1] += pre
            else: slots[pos] += pre + ["s_nop 0"]
        elif pre: slots[pos] += pre
        slots[pos] += vm
        last = pos
    cap = 1
    while sum(max(0, cap - len(s_)) for s_ in slots) < len(other): cap += 1
    room = [max(0, cap - len(s_)) for s_ in slots]
    extra_ = sum(room) - len(other)
    for i in range(n):
        if extra_ > 0 and room[i] > 0 and len(slots[i]) > 0: room[i] -= 1; extra_ -= 1
    k = 0
    for i in range(n):
        slots[i] += other[k:k+room[i]]; k += room[i]
    out = []
    for i in range(n): out += [main[i]] + slots[i]
    return out
def vgroups(fill):
    groups = []; cur = []
    for x in fill:
        if x == "s_nop 0": continue
        cur.append(x)
        if isinstance(x, VM): groups.append(cur); cur = []
    return groups, cur
def tile_ids(a):
    a("""
      v_lshrrev_b32 v1, 6, v0
      v_and_b32 v2, 63, v0
      v_readfirstlane_b32 s3, v1
      v_lshlrev_b32 v1, 4, v2
      v_and_b32 v3, 15, v2
      v_lshrrev_b32 v12, 4, v2
      s_and_b32 s6, s2, 7
      s_lshr_b32 s7, s2, 3
      s_lshr_b32 s4, s6, 1
      s_lshl_b32 s4, s4, 2
      s_and_b32 s5, s7, 3
      s_add_u32 s4, s4, s5                ; mt
      s_and_b32 s5, s6, 1
      s_lshl_b32 s5, s5, 3
      s_lshr_b32 s7, s7, 2
      s_add_u32 s5, s5, s7                ; nt
      s_lshl_b32 s6, s4, 2
      s_add_u32 s6, s6, s3
      s_mul_i32 s7, s3, 9216
    """)

P0 = {3: (0, 3), 0: (3, 2), 1: (5, 2), 2: (7, 2)}
def dma_group(k, srd, soff, ntiles=None, fl=''):
    T = (k + 1) // 4 + 3
    if ntiles is not None and T >= ntiles: return []
    p0, cnt = P0[k % 4]
    out = [f"s_add_u32 m0, s7, {(T % 4)*36864 + p0*1024}", "s_nop 0"]
    for i in range(cnt):
        out.append(VM(f"buffer_load_dwordx4 v1, {srd}, {soff} offen offset:{1024*i} {fl} lds", ("B", T, p0+i)))
    inc = cnt*1024 if k % 4 != 2 else 36864 - 7168
    out.append(f"s_add_u32 {soff}, {soff}, {inc}")
    return out
def dma_tile(T, srd, soff, fl=''):
    out = []
    for k in (3, 0, 1, 2):
        p0, cnt = P0[k]
        out += [f"s_add_u32 m0, s7, {(T % 4)*36864 + p0*1024}", "s_nop 0"]
        for i in range(cnt):
            out.append(VM(f"buffer_load_dwordx4 v1, {srd}, {soff} offen offset:{1024*i} {fl} lds", ("B", T, p0+i)))
        out.append(f"s_add_u32 {soff}, {soff}, {cnt*1024 if k != 2 else 36864-7168}")
    return out
def btags(T): return [("B", T, p) for p in range(9)]
def b_reads(k, bbase, slotv):
    T = k // 4
    return [f"ds_read_b128 a[{bbase + (k%2)*36 + 4*j}:{bbase + (k%2)*36 + 4*j + 3}], v{slotv + T % 4} offset:{(k%4)*9216 + j*1024}" for j in range(9)]

def gelu_pairs(xs, ts):
    o = []
    P = lambda r: f"v[{r}:{r+1}]"
    for x, t in zip(xs, ts): o.append(f"v_pk_mul_f32 {P(t)}, {P(x)}, {P(x)}")
    for x, t in zip(xs, ts): o.append(f"v_pk_fma_f32 {P(t)}, {P(t)}, s[40:41], v[14:15]")
    for x, t in zip(xs, ts): o.append(f"v_pk_mul_f32 {P(t)}, {P(t)}, {P(x)}")
    for x, t in zip(xs, ts): o += [f"v_exp_f32 v{t}, v{t}", f"v_exp_f32 v{t+1}, v{t+1}"]
    for x, t in zip(xs, ts): o.append(f"v_pk_add_f32 {P(t)}, {P(t)}, 1.0 op_sel_hi:[1,0]")
    for x, t in zip(xs, ts): o += [f"v_rcp_f32 v{t}, v{t}", f"v_rcp_f32 v{t+1}, v{t+1}"]
    for x, t in zip(xs, ts): o.append(f"v_pk_mul_f32 {P(x)}, {P(x)}, {P(t)}")
    return o
def ror_reduce(regs, final=None):
    o = ["s_nop 1"]
    for rot in (8, 4, 2, 1):
        for i, r in enumerate(regs):
            d = final[i] if (final and rot == 1) else r
            o.append(f"v_add_f32_dpp v{d}, v{r}, v{r} row_ror:{rot} row_mask:0xf bank_mask:0xf")
    return o
def ln_finish(s1, s2, n, cnt, t):
    o = []
    inv = float_hex(1.0/n)
    for x in s1: o.append(f"v_mul_f32 v{x}, {inv}, v{x}")
    for y in s2: o.append(f"v_mul_f32 v{y}, {inv}, v{y}")
    for x, y in zip(s1, s2): o.append(f"v_fma_f32 v{y}, -v{x}, v{x}, v{y}")
    for y in s2: o.append(f"v_max_f32 v{y}, 0, v{y}")
    for y in s2: o.append(f"v_add_f32 v{y}, {float_hex(1e-5)}, v{y}")
    for y in s2: o.append(f"v_rsq_f32 v{y}, v{y}")
    o.append("s_nop 0")
    for x, y in zip(s1, s2): o.append(f"v_mul_f32 v{x}, -v{x}, v{y}")
    return o

def gen_g1(a):
    a.begin("g1_kernel")
    a("s_cmp_ge_u32 s2, 256\ns_cbranch_scc1 G1_END")
    a(a.stamp(0))
    a.load_args()
    tile_ids(a)
    a("s_waitcnt lgkmcnt(0)")
    a.srd(8, "ws")
    SL = 252
    a(f"""
      s_mul_i32 s20, s5, {36*9216}
      s_add_u32 s20, s20, s7
      s_add_u32 s20, s20, {WINF}
      s_mul_i32 s21, s6, 36864
      s_add_u32 s21, s21, {X1F}           ; A soffset
      v_lshlrev_b32 v13, 3, v2            ; lane*8
      v_add_u32 v8, 18432, v13
      v_mov_b32 v{SL}, v1
      v_add_u32 v{SL+1}, 36864, v1
      v_add_u32 v{SL+2}, {2*36864}, v1
      v_add_u32 v{SL+3}, {3*36864}, v1
      v_mov_b32 v4, 0x3f803f80
      v_mov_b32 v5, 0x3f803f80
      v_mov_b32 v6, 0x3f803f80
      v_mov_b32 v7, 0x3f803f80
      s_mov_b32 s40, {float_hex(C1)}
      s_mov_b32 s41, {float_hex(C1)}
      v_mov_b32 v14, {float_hex(C0)}
      v_mov_b32 v15, {float_hex(C0)}
      s_mul_i32 s22, s5, {144*8}
      s_add_u32 s22, s22, {UV2}
      v_lshlrev_b32 v9, 3, v3             ; n*8
    """)
    AB, BB = 0, 144
    ACC2, ACC1, ST = 16, 88, 160
    def a_loads(ks):
        if ks >= 18: return []
        o = []
        for t in range(2):
            for h in range(2):
                r = AB + (ks*2+t)*4 + 2*h
                o.append(VM(f"buffer_load_dwordx2 a[{r}:{r+1}], {['v13','v8'][t]}, s[8:11], s21 offen offset:{(ks%4)*1024 + h*512}", ("A", ks, t, h)))
        if ks % 4 == 3: o.append("s_add_u32 s21, s21, 4096")
        return o
    def atags(ks): return [("A", ks, t, h) for t in range(2) for h in range(2)]
    seq = []
    seq += dma_tile(0, "s[8:11]", "s20")
    for ks in range(0, 4): seq += a_loads(ks)
    seq += dma_tile(1, "s[8:11]", "s20")
    for ks in range(4, 6): seq += a_loads(ks)
    seq += dma_tile(2, "s[8:11]", "s20")
    seq += dma_group(-1, "s[8:11]", "s20", 9)
    seq += [WAIT(btags(0)), "s_barrier", a.stamp(1)]
    seq += b_reads(0, BB, SL)
    def kstep(kk, extra=[]):
        ks = kk % 18; ps = kk // 18
        o = []
        need = atags(ks) if ps == 0 else []
        bar = (kk % 4 == 3 and kk < 35)
        if bar: need = need + btags((kk+1)//4)
        o.append(WAIT(need, lgkm=True))
        if bar: o.append("s_barrier")
        m = []
        for j in range(9):
            for t in range(2):
                A = f"a[{AB+(ks*2+t)*4}:{AB+(ks*2+t)*4+3}]"
                B = f"a[{BB+(kk%2)*36+4*j}:{BB+(kk%2)*36+4*j+3}]"
                r = (ACC2 if ps == 0 else ACC1) + (j*2+t)*4
                C = "0" if ks == 0 else f"v[{r}:{r+3}]"
                m.append(f"{MF} v[{r}:{r+3}], {A}, {B}, {C}" if ps == 0 else f"{MF} v[{r}:{r+3}], {B}, {A}, {C}")
        if ps == 0:
            for t in range(2):
                A = f"a[{AB+(ks*2+t)*4}:{AB+(ks*2+t)*4+3}]"
                r = ST + 4*t
                m.append(f"{MF} v[{r}:{r+3}], {A}, v[4:7], {'0' if ks == 0 else f'v[{r}:{r+3}]'}")
                r = ST + 8 + 4*t
                m.append(f"{MF} v[{r}:{r+3}], {A}, {A}, {'0' if ks == 0 else f'v[{r}:{r+3}]'}")
        f = (b_reads(kk+1, BB, SL) if kk < 35 else []) + dma_group(kk, "s[8:11]", "s20", 9) + (a_loads(ks+6) if ps == 0 else []) + extra
        o += interleave(m, f)
        return o
    UV = 176
    uv2 = [VM(f"buffer_load_dwordx2 v[{UV+2*j}:{UV+2*j+1}], v9, s[8:11], s22 offen offset:{128*j}", ("UV2", j)) for j in range(9)]
    for kk in range(18):
        seq += kstep(kk, uv2[3*(kk-12):3*(kk-12)+3] if 12 <= kk < 15 else [])
    seq += [a.stamp(2), "v_mul_u32_u24 v10, 80, v12", "s_nop 7"]
    for t in range(2):
        for r in range(4):
            seq.append(f"ds_bpermute_b32 v{ST+8+4*t+r}, v10, v{ST+8+4*t+r} offset:{4*r}")
    seq.append("s_waitcnt lgkmcnt(0)")
    s1 = [ST+i for i in range(8)]; s2 = [ST+8+i for i in range(8)]
    seq += ln_finish(s1, s2, 576, 8, None)
    ZS = 244
    seq += ["v_and_b32 v10, 3, v3", "v_lshrrev_b32 v11, 2, v3", "v_lshl_add_u32 v11, v11, 4, v3", "v_lshlrev_b32 v11, 2, v11"]
    for t in range(2):
        seq += [f"v_mov_b32 v{ZS+2*t}, v{ST+8+4*t}", f"v_mov_b32 v{ZS+2*t+1}, v{ST+4*t}"]
    for r in range(1, 4):
        seq += [f"v_cmp_eq_u32 vcc, {r}, v10", "s_nop 1"]
        for t in range(2):
            seq += [f"v_cndmask_b32 v{ZS+2*t}, v{ZS+2*t}, v{ST+8+4*t+r}, vcc", f"v_cndmask_b32 v{ZS+2*t+1}, v{ZS+2*t+1}, v{ST+4*t+r}, vcc"]
    for i in range(4): seq.append(f"ds_bpermute_b32 v{ZS+i}, v11, v{ZS+i}")
    seq.append(WAIT([("UV2", j) for j in range(9)]))
    Z1S, Z2S, TMP, GR = 196, 204, 212, 220
    P = lambda r: f"v[{r}:{r+1}]"
    for j in range(9):
        xs = [ACC2 + j*8 + 2*i for i in range(4)]; ts = [TMP + 2*i for i in range(4)]
        uv = P(UV + 2*j)
        for i in range(4): seq.append(f"v_pk_fma_f32 {P(ts[i])}, {P(ST+2*i)}, {uv}, {uv} op_sel:[0,0,1] op_sel_hi:[1,0,1]")
        for i in range(4): seq.append(f"v_pk_fma_f32 {P(xs[i])}, {P(xs[i])}, {P(ST+8+2*i)}, {P(ts[i])}")
        seq += gelu_pairs(xs, ts)
        for i in range(4):
            if j == 0: seq += [f"v_pk_mul_f32 {P(Z2S+2*i)}, {P(xs[i])}, {P(xs[i])}"]
            elif j == 1: seq += [f"v_pk_add_f32 {P(Z1S+2*i)}, {P(xs[i])}, {P(ACC2+2*i)}", f"v_pk_fma_f32 {P(Z2S+2*i)}, {P(xs[i])}, {P(xs[i])}, {P(Z2S+2*i)}"]
            else: seq += [f"v_pk_add_f32 {P(Z1S+2*i)}, {P(xs[i])}, {P(Z1S+2*i)}", f"v_pk_fma_f32 {P(Z2S+2*i)}, {P(xs[i])}, {P(xs[i])}, {P(Z2S+2*i)}"]
    seq += ror_reduce([Z1S+i for i in range(8)] + [Z2S+i for i in range(8)], [GR+2*i for i in range(8)] + [GR+2*i+1 for i in range(8)])
    for i in range(8): seq.append(f"v_or_b32 v{GR+2*i+1}, 1, v{GR+2*i+1}")
    seq += [f"s_lshl_b32 s23, s6, 12", f"s_add_u32 s23, s23, {ST2}", "s_lshl_b32 s24, s5, 8", "s_add_u32 s24, s24, s23",
            "v_lshlrev_b32 v10, 6, v12", "v_lshl_add_u32 v11, v3, 8, v10",
            "v_cmp_eq_u32 vcc, 0, v3", "s_and_saveexec_b64 s[30:31], vcc"]
    for i in range(4): seq.append(VM(f"buffer_store_dwordx4 v[{GR+4*i}:{GR+4*i+3}], v10, s[8:11], s24 offen offset:{16*i} sc1", ("GS", i)))
    seq += ["s_mov_b64 exec, s[30:31]",
            f"s_mul_i32 s22, s5, {144*4}", f"s_add_u32 s22, s22, {UV1}", "s_add_u32 s25, s22, 9216", "v_lshlrev_b32 v9, 4, v12", "s_nop 4"]
    seq.append(a.stamp(3))
    U1 = 160
    uv1 = []
    for j in range(9):
        uv1.append(VM(f"buffer_load_dwordx4 v[{U1+8*j}:{U1+8*j+3}], v9, s[8:11], s22 offen offset:{64*j}", ("U1", j)))
        uv1.append(VM(f"buffer_load_dwordx4 v[{U1+8*j+4}:{U1+8*j+7}], v9, s[8:11], s25 offen offset:{64*j}", ("V1", j)))
    for kk in range(18, 36):
        seq += kstep(kk, uv1[3*(kk-26):3*(kk-26)+3] if 26 <= kk < 32 else [])
    TM1 = 232
    seq.append(a.stamp(4))
    seq += [f"s_lshl_b32 s26, s4, 4", "s_add_u32 s26, s26, s5", "s_lshl_b32 s26, s26, 2", "s_add_u32 s26, s26, s3",
            "s_mul_i32 s26, s26, 9216", f"s_add_u32 s26, s26, {Z1F}", "v_add_u32 v8, 4096, v1", "v_add_u32 v9, 8192, v1", "s_nop 3"]
    seq.append(WAIT([("V1", 8)]))
    for j in range(9):
        xs = [ACC1 + j*8 + 2*i for i in range(4)]; ts = [TM1 + 2*i for i in range(4)]
        for i in range(4):
            zs = P(ZS + 2*(i//2))
            seq.append(f"v_pk_fma_f32 {P(ts[i])}, {P(U1+8*j+2*(i%2))}, {zs}, {P(U1+8*j+4+2*(i%2))} op_sel:[0,1,0] op_sel_hi:[1,1,1]")
        for i in range(4):
            zs = P(ZS + 2*(i//2))
            seq.append(f"v_pk_fma_f32 {P(xs[i])}, {P(xs[i])}, {zs}, {P(ts[i])} op_sel_hi:[1,0,1]")
        seq += gelu_pairs(xs, ts)
        for i in range(4): seq.append(f"v_cvt_pk_bf16_f32 v{U1+8*j+i}, v{xs[i]}, v{xs[i]+1}")
        seq.append(VM(f"buffer_store_dwordx4 v[{U1+8*j}:{U1+8*j+3}], {['v1','v8','v9'][j//4]}, s[8:11], s26 offen offset:{1024*(j%4)}", ("Z1", j)))
    resolve(seq); emit(a, seq)
    PL = 88
    a(a.stamp(5))
    a("s_mov_b32 s27, 0\nG1_POLL:")
    for i in range(4): a(f"buffer_load_dwordx4 v[{PL+4*i}:{PL+4*i+3}], v11, s[8:11], s23 offen offset:{16*i} sc1")
    a("s_waitcnt vmcnt(0)")
    a(f"v_min_u32 v10, v{PL+1}, v{PL+3}")
    for i in range(2, 8): a(f"v_min_u32 v10, v10, v{PL+2*i+1}")
    a("""
      v_cmp_eq_u32 vcc, 0, v10
      s_add_u32 s27, s27, 1
      s_cmp_ge_u32 s27, 0x100000
      s_cbranch_scc1 G1_GO
      s_nop 2
      s_cbranch_vccnz G1_POLL
    G1_GO:
    """)
    R1, R2 = 104, 112
    a(a.stamp(6))
    for x in ror_reduce([PL+i for i in range(16)], [(R1 if i % 2 == 0 else R2) + i//2 for i in range(16)]): a(x)
    for x in ln_finish([R1+i for i in range(8)], [R2+i for i in range(8)], FH, 8, None): a(x)
    a(f"""
      s_mul_i32 s26, s5, {64*9216}
      s_mul_i32 s27, s6, 9216
      s_add_u32 s26, s26, s27
      s_add_u32 s26, s26, {Z2F}
    """)
    for j in range(9):
        xs = [ACC2 + j*8 + 2*i for i in range(4)]
        for i in range(4): a(f"v_pk_fma_f32 {P(xs[i])}, {P(xs[i])}, {P(R2+2*i)}, {P(R1+2*i)}")
        o = 120 + 4*j
        for i in range(4): a(f"v_cvt_pk_bf16_f32 v{o+i}, v{xs[i]}, v{xs[i]+1}")
        a(f"buffer_store_dwordx4 v[{o}:{o+3}], {['v1','v8','v9'][j//4]}, s[8:11], s26 offen offset:{1024*(j%4)}")
    a.stamp_end(2, 8)
    a("G1_END:\ns_endpgm")
    a.desc("g1_kernel", 256+216, 256)

def gen_g2(a):
    a.begin("g2_kernel")
    a("s_cmp_ge_u32 s2, 256\ns_cbranch_scc1 G2_END")
    a(a.stamp(0))
    a.load_args()
    tile_ids(a)
    a(f"""
      s_mul_i32 s20, s5, {64*9216}
      s_add_u32 s20, s20, {Z2F}
      s_lshl_b32 s21, s6, 17
      s_add_u32 s21, s21, {WSPF}
      s_waitcnt lgkmcnt(0)
    """)
    a.srd(8, "ws"); a.srd(12, "ws", 64*9216, "s20"); a.srd(16, "ws", 131072, "s21"); a.srd(24, "bsp")
    SL = 8
    a(f"""
      s_mov_b32 s20, s7
      s_mov_b32 s21, 0
      v_mov_b32 v{SL}, v1
      v_add_u32 v{SL+1}, 36864, v1
      v_add_u32 v{SL+2}, {2*36864}, v1
      v_add_u32 v{SL+3}, {3*36864}, v1
      v_lshrrev_b32 v4, 2, v3
      v_lshlrev_b32 v4, 3, v4
      v_and_b32 v5, 3, v3
      v_add_u32 v4, v4, v5
      v_lshlrev_b32 v4, 1, v4
      s_lshl_b32 s22, s6, 6
      v_add_u32 v13, 4096, v1
      v_add_u32 v14, 8192, v1
      s_lshl_b32 s28, s4, 4
      s_add_u32 s28, s28, s5
      s_lshl_b32 s28, s28, 2
      s_add_u32 s28, s28, s3
      s_mul_i32 s28, s28, 9216
      s_add_u32 s28, s28, {Z1F}
    """)
    BB, AB, ACC, Z1 = 0, 72, 16, 96
    def a_loads(k):
        r = AB + (k % 8)*8
        return [VM(f"buffer_load_dwordx4 a[{r}:{r+3}], v1, s[16:19], s21 offen", ("A", k, 0)),
                VM(f"buffer_load_dwordx4 a[{r+4}:{r+7}], v1, s[16:19], s21 offen offset:1024", ("A", k, 1)),
                "s_add_u32 s21, s21, 2048"]
    pro = []
    pro += dma_tile(0, "s[12:15]", "s20")
    for k in range(0, 4): pro += a_loads(k)
    pro += dma_tile(1, "s[12:15]", "s20")
    for k in range(4, 7): pro += a_loads(k)
    pro += dma_tile(2, "s[12:15]", "s20")
    pro += dma_group(-1, "s[12:15]", "s20")
    pro += [VM("buffer_load_ushort v6, v4, s[24:27], s22 offen", "b0"), VM("buffer_load_ushort v7, v4, s[24:27], s22 offen offset:8", "b1")]
    for j in range(9):
        pro.append(VM(f"buffer_load_dwordx4 v[{Z1+4*j}:{Z1+4*j+3}], {['v1','v13','v14'][j//4]}, s[8:11], s28 offen offset:{1024*(j%4)}", ("Z1", j)))
    for i in range(72): pro.append(f"v_mov_b32 v{ACC+i}, 0")
    pro += [WAIT(btags(0)), "s_barrier", a.stamp(1)]
    pro += b_reads(0, BB, SL)
    def kstep(k):
        o = []
        need = [("A", k, 0), ("A", k, 1)]
        if k % 4 == 3: need += btags((k+1)//4)
        o.append(WAIT(need, lgkm=True, key=k % 16))
        if k % 4 == 3: o.append("s_barrier")
        m = []
        for j in range(9):
            for t in range(2):
                r = ACC + (j*2+t)*4
                m.append(f"{MF} v[{r}:{r+3}], a[{BB+(k%2)*36+4*j}:{BB+(k%2)*36+4*j+3}], a[{AB+(k%8)*8+4*t}:{AB+(k%8)*8+4*t+3}], v[{r}:{r+3}]")
        f = b_reads(k+1, BB, SL) + dma_group(k, "s[12:15]", "s20") + a_loads(k+7)
        if 'g2noload' in X:
            for x in f:
                if isinstance(x, VM): x.text = "s_nop 0"
        if 'g2nods' in X: f = [x for x in f if not (isinstance(x, str) and x.startswith("ds_read"))]
        if 'g2nomfma' in X: m = m[:1]
        if 'g2nobar' in X: o = [x for x in o if x != "s_barrier"]
        return o + interleave(m, f)
    steps = [kstep(k) for k in range(64)]
    keyed = resolve(pro + [x for s_ in steps for x in s_])
    emit(a, pro)
    a("s_mov_b32 s23, 0\nG2_LOOP:")
    for k in range(16): emit(a, steps[k], keyed)
    a("s_add_u32 s23, s23, 1\ns_cmp_lt_u32 s23, 4\ns_cbranch_scc1 G2_LOOP")
    a(a.stamp(2))
    a(f"""
      v_lshlrev_b32 v4, 16, v6
      v_lshlrev_b32 v6, 16, v7
      s_lshr_b32 s22, s5, 1
      s_mul_i32 s22, s22, 9216
      s_mul_i32 s23, s6, {2*73728}
      s_add_u32 s22, s22, s23
      s_add_u32 s22, s22, {PF}            ; + tau*73728
      s_and_b32 s23, s5, 1
      s_lshl_b32 s29, s23, 12
      s_add_u32 s29, s29, s22
      s_add_u32 s30, s29, 73728
      s_lshl_b32 s23, s23, 3
      s_add_u32 s31, s22, s23
      s_add_u32 s31, s31, 8192
      s_add_u32 s32, s31, 73728
    """)
    P = lambda r: f"v[{r}:{r+1}]"
    T = 136; O = 160
    for j in range(9):
        for t in range(2):
            b = P(4 if t == 0 else 6)
            for h in range(2):
                x = ACC + (j*2+t)*4 + 2*h; z = Z1 + 4*j + 2*t + h; tt = T + 2*((2*t+h) % 4)
                o = O + ((j//2)*2 + t)*4 + (j%2)*2 + h
                a(f"""
                  v_lshlrev_b32 v{tt}, 16, v{z}
                  v_and_b32 v{tt+1}, 0xffff0000, v{z}
                  v_pk_add_f32 {P(x)}, {P(x)}, {b} op_sel_hi:[1,0]
                  v_pk_mul_f32 {P(x)}, {P(x)}, {P(tt)}
                  v_cvt_pk_bf16_f32 v{o}, v{x}, v{x+1}
                """)
        if j % 2 == 1:
            for t in range(2):
                o = O + ((j//2)*2 + t)*4
                a(f"buffer_store_dwordx4 v[{o}:{o+3}], v1, s[8:11], s{29+t} offen offset:{1024*(j//2)}")
    for t in range(2):
        o = O + (8 + t)*4
        a(f"buffer_store_dwordx2 v[{o}:{o+1}], v1, s[8:11], s{31+t} offen")
    a(a.stamp(3))
    a.stamp_end(3, 5)
    a("G2_END:\ns_endpgm")
    a.desc("g2_kernel", 256+136, 256)

def gen_g3(a):
    a.begin("g3_kernel")
    a("s_cmp_ge_u32 s2, 256\ns_cbranch_scc1 G3_END")
    a(a.stamp(0))
    a.load_args()
    a(f"""
      v_lshrrev_b32 v1, 6, v0
      v_and_b32 v2, 63, v0
      v_readfirstlane_b32 s3, v1
      v_lshlrev_b32 v1, 4, v2
      v_and_b32 v3, 15, v2
      v_lshrrev_b32 v12, 4, v2
      s_and_b32 s4, s2, 7
      s_lshl_b32 s4, s4, 2
      s_lshr_b32 s5, s2, 3
      s_and_b32 s6, s5, 3
      s_add_u32 s4, s4, s6                ; mb
      s_lshr_b32 s5, s5, 2                ; nb
      s_mul_i32 s5, s5, 9
      s_lshr_b32 s5, s5, 1                ; n0
      s_mul_i32 s20, s4, {4*73728}
      s_mul_i32 s6, s3, {18*1024}
      s_add_u32 s20, s20, s6
      s_add_u32 s20, s20, {PF}            ; P soffset
      s_mul_i32 s21, s3, {18*36864}
      s_lshl_b32 s6, s5, 10
      s_add_u32 s21, s21, s6
      s_add_u32 s21, s21, {WOUTF}         ; W soffset
      v_add_u32 v8, 4096, v1
    """)
    for u in range(4):
        a(f"s_add_u32 s6, s3, {u}\ns_and_b32 s6, s6, 3\ns_mul_i32 s7, s6, 73728\nv_add_u32 v{4+u}, s7, v1")
        if u > 0: a(f"s_mul_i32 s7, s6, 15360\ns_add_u32 s7, s7, {(u-1)*5120}\nv_add_u32 v{12+u}, s7, v1")
    a("s_waitcnt lgkmcnt(0)")
    a.srd(8, "ws"); a.srd(12, "out")
    ACC = 16; DEP = 6
    def loads(k):
        if k >= 18: return []
        r = (k % DEP)*36
        o = []
        for j in range(5):
            o.append(VM(f"buffer_load_dwordx4 a[{r+16+4*j}:{r+19+4*j}], {'v1' if j < 4 else 'v8'}, s[8:11], s21 offen offset:{1024*(j%4)}", ("W", k, j)))
        for u in range(4):
            o.append(VM(f"buffer_load_dwordx4 a[{r+4*u}:{r+4*u+3}], v{4+u}, s[8:11], s20 offen offset:{1024*(k%4)}", ("P", k, u)))
        o.append("s_add_u32 s21, s21, 36864")
        if k % 4 == 3: o.append("s_add_u32 s20, s20, 4096")
        return o
    seq = []
    for k in range(DEP-1): seq += loads(k)
    ep = [f"s_lshl_b32 s22, s4, 2", "s_add_u32 s22, s22, s3", "s_mul_i32 s23, s22, 18432", "s_lshl_b32 s24, s5, 9", "s_add_u32 s23, s23, s24", f"s_add_u32 s23, s23, {X1F}",
          "v_lshlrev_b32 v9, 3, v2", "s_lshl_b32 s24, s5, 6", f"s_add_u32 s24, s24, {MOD + 5*576*4}", "v_lshlrev_b32 v10, 4, v12"]
    for j in range(5):
        ep.append(VM(f"buffer_load_dwordx2 v[{96+2*j}:{97+2*j}], v9, s[8:11], s23 offen offset:{512*j}", ("X", j)))
        ep.append(VM(f"buffer_load_dwordx4 v[{108+4*j}:{111+4*j}], v10, s[8:11], s24 offen offset:{64*j}", ("G", j)))
    for k in range(18):
        seq.append(WAIT([("P", k, 3)]))
        if k == 0: seq.append(a.stamp(1))
        r = (k % DEP)*36
        m = []
        for u in range(4):
            for j in range(5):
                c = ACC + (u*5+j)*4
                m.append(f"{MF} v[{c}:{c+3}], a[{r+16+4*j}:{r+19+4*j}], a[{r+4*u}:{r+4*u+3}], {'0' if k == 0 else f'v[{c}:{c+3}]'}")
        seq += interleave(m, loads(k+DEP-1) + (ep if k == 13 else []))
    seq += [a.stamp(2), "s_mul_i32 s7, s3, 15360", "v_add_u32 v11, s7, v1", "s_nop 6"]
    for u in range(1, 4):
        for j in range(5):
            c = ACC + (u*5+j)*4
            seq.append(f"ds_write_b128 v{12+u}, v[{c}:{c+3}] offset:{1024*j}")
    seq += ["v_lshrrev_b32 v4, 2, v3", "v_lshlrev_b32 v4, 3, v4", "v_and_b32 v5, 3, v3", "v_add_u32 v4, v4, v5", "v_mul_u32_u24 v4, 1152, v4",
            "v_lshl_add_u32 v4, v12, 3, v4", "s_lshr_b32 s25, s22, 1", f"s_mul_i32 s25, s25, {32*1152}", "s_and_b32 s26, s22, 1", f"s_mul_i32 s26, s26, {4*1152}",
            "s_add_u32 s25, s25, s26", "s_lshl_b32 s26, s5, 5", "s_add_u32 s25, s25, s26",
            "s_waitcnt lgkmcnt(0)", "s_barrier", a.stamp(3)]
    for i in range(15):
        c = ACC + 20 + 4*i
        seq.append(f"ds_read_b128 v[{c}:{c+3}], v11 offset:{1024*i}")
    seq += [WAIT([("G", 4)], lgkm=True)]
    P = lambda r: f"v[{r}:{r+1}]"
    for j in range(5):
        for h in range(2):
            x = ACC + 4*j + 2*h
            seq += [f"v_pk_add_f32 {P(x)}, {P(x)}, {P(x+20)}", f"v_pk_add_f32 {P(x+40)}, {P(x+40)}, {P(x+60)}",
                    f"v_lshlrev_b32 v{x+20}, 16, v{96+2*j+h}", f"v_and_b32 v{x+21}, 0xffff0000, v{96+2*j+h}",
                    f"v_pk_add_f32 {P(x)}, {P(x)}, {P(x+40)}",
                    f"v_pk_fma_f32 {P(x)}, {P(x)}, {P(108+4*j+2*h)}, {P(x+20)}",
                    f"v_cvt_pk_bf16_f32 v{96+2*j+h}, v{x}, v{x+1}"]
        seq.append(VM(f"buffer_store_dwordx2 v[{96+2*j}:{97+2*j}], v4, s[12:15], s25 offen offset:{32*j}", ("O", j)))
    resolve(seq); emit(a, seq)
    a(a.stamp(4))
    a.stamp_end(4, 6)
    a("G3_END:\ns_endpgm")
    a.desc("g3_kernel", 128+216, 128)

G_LAUNCH = {"g1": f"; @launch kernel=g1_kernel grid=(256,1,1) block=(256,1,1) lds={G_LDS}",
            "g2": f"; @launch kernel=g2_kernel grid=(256,1,1) block=(256,1,1) lds={G_LDS}",
            "g3": f"; @launch kernel=g3_kernel grid=(256,1,1) block=(256,1,1) lds=61440"}
G_GENS = {"g1": gen_g1, "g2": gen_g2, "g3": gen_g3}
```

```python
from gen_common import *
from gen_g import *
P = lambda r: f"v[{r}:{r+1}]"
BIG = 0x7fffff00

def poll_loop(a, name, loads, regs, tmp):
    a(f"s_mov_b32 s27, 0\n{name}_POLL:")
    for x in loads: a(x)
    a("s_waitcnt vmcnt(0)")
    if len(regs) == 1: a(f"v_cmp_eq_u32 vcc, 0, v{regs[0]}")
    else:
        a(f"v_min_u32 v{tmp}, v{regs[0]}, v{regs[1]}")
        for r in regs[2:]: a(f"v_min_u32 v{tmp}, v{tmp}, v{r}")
        a(f"v_cmp_eq_u32 vcc, 0, v{tmp}")
    a(f"""
      s_add_u32 s27, s27, 1
      s_cmp_ge_u32 s27, 0x80000
      s_cbranch_scc1 {name}_GO
      s_nop 2
      s_cbranch_vccz {name}_GO
      s_sleep {SLP}
      s_branch {name}_POLL
    {name}_GO:
    """)

def gen_gm(a):
    a.begin("gm_kernel")
    a("s_cmp_ge_u32 s2, 256\ns_cbranch_scc1 GM_END")
    a(a.stamp(0))
    a.load_args()
    tile_ids(a)
    SL = 252
    a(f"""
      s_mul_i32 s20, s5, {36*9216}
      s_add_u32 s20, s20, s7
      s_add_u32 s20, s20, {WINF}
      s_mul_i32 s21, s6, 36864
      s_add_u32 s21, s21, {X1F}           ; A soffset
      s_mul_i32 s30, s3, 12288
      s_add_u32 s30, s30, {3*36864}
      v_lshl_add_u32 v13, v2, 3, s30
      v_add_u32 v8, {18432-1024}, v1
      s_mul_i32 s28, s5, {64*9216}
      s_add_u32 s28, s28, {Z2F}
      s_lshl_b32 s29, s6, 17
      s_waitcnt lgkmcnt(0)
    """)
    a.srd(8, "ws")
    AB, BB = 0, 144
    ACC2, ACC1, ST = 16, 88, 160
    ALDS = 3*36864
    def a_dma(ks):
        if ks >= 18: return []
        o = [f"s_add_u32 m0, s30, {(ks % 6)*2048}", "s_nop 0",
             VM(f"buffer_load_dwordx4 v1, s[8:11], s21 offen lds", ("A", ks, 0)),
             VM(f"buffer_load_dwordx4 v8, s[8:11], s21 offen offset:1024 lds", ("A", ks, 1)),
             "s_add_u32 s21, s21, 1024"]
        return o
    def a_reads(ks):
        if ks >= 18: return []
        return [f"ds_read_b64 a[{AB+(ks*2+t)*4+2*h}:{AB+(ks*2+t)*4+2*h+1}], v13 offset:{(ks % 6)*2048 + t*1024 + h*512}" for t in range(2) for h in range(2)]
    def atags(ks): return [("A", ks, t) for t in range(2)] if ks < 18 else []
    def b1_group(k):
        T = (k+1)//4 + 2
        if T >= 9: return []
        p0, cnt = P0[k % 4]
        o = [f"s_add_u32 m0, s7, {(T % 3)*36864 + p0*1024}", "s_nop 0"]
        for i in range(cnt): o.append(VM(f"buffer_load_dwordx4 v1, s[8:11], s20 offen offset:{1024*i} lds", ("B", T, p0+i)))
        o.append(f"s_add_u32 s20, s20, {cnt*1024 if k % 4 != 2 else 36864 - 7168}")
        return o
    def b1_reads(k):
        return [f"ds_read_b128 a[{BB + (k%2)*36 + 4*j}:{BB + (k%2)*36 + 4*j + 3}], v{SL + (k//4) % 3} offset:{(k%4)*9216 + j*1024}" for j in range(9)]
    seq = []
    seq += a_dma(0)
    for k in range(-9, -5): seq += b1_group(k)
    for ks in range(1, 4): seq += a_dma(ks)
    seq += ["s_getpc_b64 s[32:33]", "GM_PC:", "s_sub_u32 s32, s32, GM_PC-gm_kernel", "s_subb_u32 s33, s33, 0", "s_and_b32 s33, s33, 0xffff",
            "s_mov_b32 s34, GM_CODE_END-gm_kernel", "s_mov_b32 s35, 0x20000", "s_lshr_b32 s31, s2, 3", "s_lshl_b32 s31, s31, 7",
            "v_lshlrev_b32 v255, 12, v0", "v_add_u32 v255, s31, v255", VM("buffer_load_dword v11, v255, s[32:35], 0 offen", "CW")]
    resolve(seq); emit(a, seq); pre = seq; seq = []
    early = {0: b1_group(-5) + b1_group(-4) + b1_group(-3) + b1_group(-2) + a_dma(4), 1: a_dma(5) + a_dma(6) + b1_group(-1) + b1_group(0) + b1_group(1)}
    a.srd(12, "ws", 64*9216, "s28"); a.srd(16, "wsp"); a.srd(36, "bsp")
    a(f"""
      v_mov_b32 v{SL}, v1
      v_add_u32 v{SL+1}, 36864, v1
      v_add_u32 v{SL+2}, {2*36864}, v1
      v_mov_b32 v4, 0x3f803f80
      v_mov_b32 v5, 0x3f803f80
      v_mov_b32 v6, 0x3f803f80
      v_mov_b32 v7, 0x3f803f80
      s_mov_b32 s40, {float_hex(C1)}
      s_mov_b32 s41, {float_hex(C1)}
      v_mov_b32 v14, {float_hex(C0)}
      v_mov_b32 v15, {float_hex(C0)}
      s_mul_i32 s22, s5, {144*8}
      s_add_u32 s22, s22, {UV2}
      v_lshlrev_b32 v9, 3, v3             ; n*8
      v_lshrrev_b32 v248, 2, v3
      v_lshlrev_b32 v248, 3, v248
      v_and_b32 v249, 3, v3
      v_add_u32 v248, v248, v249
      v_add_u32 v251, 4096, v1
    """)
    seq += [WAIT(btags(0)), "s_barrier", a.stamp(1)]
    seq += a_reads(0) + b1_reads(0)
    def kstep(kk, extra=[], need_extra=[]):
        ks = kk % 18; ps = kk // 18
        o = []
        need = (atags(ks+1) if ps == 0 else []) + need_extra
        bar = (kk % 4 == 3 and kk < 35)
        if bar: need = need + btags((kk+1)//4)
        o.append(WAIT(need, lgkm=True))
        if bar: o.append("s_barrier")
        m = []
        for j in range(9):
            for t in range(2):
                A = f"a[{AB+(ks*2+t)*4}:{AB+(ks*2+t)*4+3}]"
                B = f"a[{BB+(kk%2)*36+4*j}:{BB+(kk%2)*36+4*j+3}]"
                r = (ACC2 if ps == 0 else ACC1) + (j*2+t)*4
                C = "0" if ks == 0 else f"v[{r}:{r+3}]"
                m.append(f"{MF} v[{r}:{r+3}], {A}, {B}, {C}" if ps == 0 else f"{MF} v[{r}:{r+3}], {B}, {A}, {C}")
        if ps == 0:
            for t in range(2):
                A = f"a[{AB+(ks*2+t)*4}:{AB+(ks*2+t)*4+3}]"
                r = ST + 4*t
                m.append(f"{MF} v[{r}:{r+3}], {A}, v[4:7], {'0' if ks == 0 else f'v[{r}:{r+3}]'}")
                r = ST + 8 + 4*t
                m.append(f"{MF} v[{r}:{r+3}], {A}, {A}, {'0' if ks == 0 else f'v[{r}:{r+3}]'}")
        f = (a_reads(kk+1) if ps == 0 else []) + (b1_reads(kk+1) if kk < 35 else []) + early.get(kk, []) + (a_dma(kk+5) + (b1_group(kk) if not (11 <= kk < 18 and 'dl' in X) else []) if kk >= 2 else []) + extra
        if 'nosch' in X: return o + interleave(m, f)
        ds = [x for x in f if isinstance(x, str) and x.startswith("ds_")]
        base = [x for x in f[:len(f)-len(extra)] if not (isinstance(x, str) and x.startswith("ds_"))]
        if any(isinstance(x, str) and x.startswith("v_") for x in extra):
            gs_, rest = vgroups(base)
            mo = [i for i, x in enumerate(extra) if isinstance(x, str) and "m0" in x]
            cut = mo[0] if mo else len(extra)
            g2_, rest2 = vgroups(rest + extra[cut:])
            o += sched(m, ds, gs_ + g2_, extra[:cut]) + rest2
        else:
            gs_, rest = vgroups(base + extra)
            o += sched(m, ds, gs_) + rest
        return o
    UV = 176; WS = 216
    uv2 = [VM(f"buffer_load_dwordx2 v[{UV+2*j}:{UV+2*j+1}], v9, s[8:11], s22 offen offset:{128*j}", ("UV2", j)) for j in range(9)]
    for kk in range(18):
        ex = []
        ne = []
        if kk == 14: ex = uv2[:5]
        if kk == 15: ex = uv2[5:]
        seq += kstep(kk, ex, ne)
    seq += [a.stamp(2), "v_mul_u32_u24 v10, 80, v12", "s_nop 7"]
    for t in range(2):
        for r in range(4):
            seq.append(f"ds_bpermute_b32 v{ST+8+4*t+r}, v10, v{ST+8+4*t+r} offset:{4*r}")
    seq.append("s_waitcnt lgkmcnt(0)")
    s1 = [ST+i for i in range(8)]; s2 = [ST+8+i for i in range(8)]
    seq += ln_finish(s1, s2, 576, 8, None)
    ZR = [240, 244]; ZN = [242, 246]
    seq += ["v_and_b32 v10, 3, v3", "v_lshrrev_b32 v11, 2, v3", "v_lshl_add_u32 v11, v11, 4, v3", "v_lshlrev_b32 v11, 2, v11"]
    for t in range(2):
        seq += [f"v_mov_b32 v{ZR[t]}, v{ST+8+4*t}", f"v_mov_b32 v{ZN[t]}, v{ST+4*t}"]
    for r in range(1, 4):
        seq += [f"v_cmp_eq_u32 vcc, {r}, v10", "s_nop 1"]
        for t in range(2):
            seq += [f"v_cndmask_b32 v{ZR[t]}, v{ZR[t]}, v{ST+8+4*t+r}, vcc", f"v_cndmask_b32 v{ZN[t]}, v{ZN[t]}, v{ST+4*t+r}, vcc"]
    for r in ZR + ZN: seq.append(f"ds_bpermute_b32 v{r}, v11, v{r}")
    seq.append(WAIT([("UV2", j) for j in range(9)]))
    touch = ["v_lshlrev_b32 v13, 12, v12", "v_lshl_add_u32 v13, v3, 4, v13", "s_lshl_b32 s31, s5, 8", "s_add_u32 s31, s31, s29"]
    for i in range(8):
        touch += [VM(f"buffer_load_dwordx4 a[{WS+4*i}:{WS+4*i+3}], v13, s[16:19], s31 offen {'nt' if 'tnt' in X else ''}", ("WL", i)), "s_add_u32 s31, s31, 16384"]
    if 'dl' in X:
        for kk in range(11, 18): seq += b1_group(kk)
    if 'ftouch' not in X: seq += touch
    Z1S, Z2S, TMP, GR = 196, 204, 212, 220
    for j in range(9):
        xs = [ACC2 + j*8 + 2*i for i in range(4)]; ts = [TMP + 2*i for i in range(4)]
        uv = P(UV + 2*j)
        seq.append(f"v_mov_b32 v194, v{UV+2*j+1}")
        for i in range(4): seq.append(f"v_pk_fma_f32 {P(ts[i])}, {P(ST+2*i)}, {uv}, v[194:195] op_sel_hi:[1,0,0]")
        for i in range(4): seq.append(f"v_pk_fma_f32 {P(xs[i])}, {P(xs[i])}, {P(ST+8+2*i)}, {P(ts[i])}")
        seq += gelu_pairs(xs, ts)
        for i in range(4):
            if j == 0: seq += [f"v_pk_mul_f32 {P(Z2S+2*i)}, {P(xs[i])}, {P(xs[i])}"]
            elif j == 1: seq += [f"v_pk_add_f32 {P(Z1S+2*i)}, {P(xs[i])}, {P(ACC2+2*i)}", f"v_pk_fma_f32 {P(Z2S+2*i)}, {P(xs[i])}, {P(xs[i])}, {P(Z2S+2*i)}"]
            else: seq += [f"v_pk_add_f32 {P(Z1S+2*i)}, {P(xs[i])}, {P(Z1S+2*i)}", f"v_pk_fma_f32 {P(Z2S+2*i)}, {P(xs[i])}, {P(xs[i])}, {P(Z2S+2*i)}"]
    seq += ror_reduce([Z1S+i for i in range(8)] + [Z2S+i for i in range(8)], [GR+2*i for i in range(8)] + [GR+2*i+1 for i in range(8)])
    for i in range(8): seq.append(f"v_or_b32 v{GR+2*i+1}, 1, v{GR+2*i+1}")
    seq += [f"s_lshl_b32 s23, s6, 12", f"s_add_u32 s23, s23, {ST2}", "s_lshl_b32 s24, s5, 8", "s_add_u32 s24, s24, s23",
            "v_lshlrev_b32 v10, 6, v12", "v_lshl_add_u32 v11, v3, 8, v10",
            "v_cmp_eq_u32 vcc, 0, v3", f"v_mov_b32 v4, {BIG}", "s_nop 0", "v_cndmask_b32 v10, v4, v10, vcc",
            f"s_mul_i32 s22, s5, {144*4}", f"s_add_u32 s22, s22, {UV1}", "s_add_u32 s25, s22, 9216", "v_lshlrev_b32 v9, 4, v12", a.stamp(3)]
    gs = [VM(f"buffer_store_dwordx4 v[{GR+4*i}:{GR+4*i+3}], v10, s[8:11], s24 offen offset:{16*i} sc1", ("GS", i)) for i in range(4)]
    seq += gs
    U1 = 160
    uv1 = []
    for j in range(9):
        uv1.append(VM(f"buffer_load_dwordx4 v[{U1+8*j}:{U1+8*j+3}], v9, s[8:11], s22 offen offset:{64*j}", ("U1", j)))
        uv1.append(VM(f"buffer_load_dwordx4 v[{U1+8*j+4}:{U1+8*j+7}], v9, s[8:11], s25 offen offset:{64*j}", ("V1", j)))
    PL = 176; R1 = [200+i for i in range(8)]; R2 = [192+i for i in range(8)]
    pl = [f"buffer_load_dwordx4 v[{PL+4*i}:{PL+4*i+3}], v11, s[8:11], s23 offen offset:{16*i} sc1" for i in range(4)]
    bl = [VM("buffer_load_ushort v6, v5, s[36:39], s26 offen", "b0"), VM("buffer_load_ushort v7, v5, s[36:39], s26 offen offset:8", "b1")]
    chk = [f"v_min_u32 v4, v{PL+1}, v{PL+3}"] + [f"v_min_u32 v4, v4, v{PL+2*i+1}" for i in range(2, 8)] + ["v_cmp_eq_u32 vcc, 0, v4"]
    pollS = [WAIT([("PL", 3)])] + chk + ["s_mov_b32 s27, 0", "s_nop 3", "s_cbranch_vccz GM_S_GO", "GM_S_POLL:"] + pl + ["s_waitcnt vmcnt(0)"] + chk + \
            ["s_add_u32 s27, s27, 1", "s_cmp_ge_u32 s27, 0x80000", "s_cbranch_scc1 GM_S_GO", "s_nop 2", "s_cbranch_vccz GM_S_GO", f"s_sleep {SLP}", "s_branch GM_S_POLL", "GM_S_GO:", a.stamp(4)]
    nrm = ror_reduce([PL+i for i in range(16)], [(R1 if i % 2 == 0 else R2)[i//2] for i in range(16)])[1:]
    nrm += ln_finish(R1, R2, FH, 8, None)
    nrm += ["s_mul_i32 s26, s6, 9216", "v_add_u32 v8, 8192, v1"]
    nrm0 = nrm; nrm = []
    for j in range(9):
        for i in range(8): nrm.append(f"v_fma_f32 v{ACC2+8*j+i}, v{ACC2+8*j+i}, v{R2[i]}, v{R1[i]}")
        for i in range(4): nrm.append(f"v_cvt_pk_bf16_f32 v{ACC2+8*j+i}, v{ACC2+8*j+2*i}, v{ACC2+8*j+2*i+1}")
        nrm.append(VM(f"buffer_store_dwordx4 v[{ACC2+8*j}:{ACC2+8*j+3}], {['v1','v251','v8'][j//4]}, s[12:15], s26 offen offset:{1024*(j%4)} sc1", ("Z2", j)))
    KT = -1
    KP, KN0, KN1, JPK, KF = [int(x) for x in os.environ.get('P2', '21,23,25,2,32').split(',')]
    per = (len(nrm0) + (KN1-KN0) - 1) // (KN1-KN0)
    pb = "buffer_load_dword v11, v10, s[8:11], s23 offen sc1"
    flagprep = ["s_lshl_b32 s24, s6, 4", "s_add_u32 s24, s24, s5", "s_lshl_b32 s24, s24, 7", f"s_add_u32 s24, s24, {FLB}",
            "v_cmp_eq_u32 vcc, 0, v2", f"v_mov_b32 v13, {BIG}", "v_mov_b32 v5, 1", "v_cndmask_b32 v13, v13, 0, vcc"]
    ACC, B2V = 16, 88
    AV = [241, 243, 245, 247]
    aprep = ["v_lshrrev_b32 v4, 3, v2", "v_lshrrev_b32 v249, 2, v4", "v_lshlrev_b32 v249, 3, v249", "v_and_b32 v250, 3, v4", "v_add_u32 v249, v249, v250", "v_lshlrev_b32 v249, 12, v249",
            "v_lshrrev_b32 v4, 1, v4", "v_and_b32 v250, 7, v2", "v_xor_b32 v4, v4, v250",
            f"v_lshl_add_u32 v{AV[0]}, v4, 4, v249", "v_xor_b32 v4, 4, v4", f"v_lshl_add_u32 v{AV[1]}, v4, 4, v249", f"v_add_u32 v{AV[1]}, {65536-1024}, v{AV[1]}",
            f"v_add_u32 v{AV[2]}, {16384-2048}, v{AV[0]}", f"v_add_u32 v{AV[3]}, {16384-2048}, v{AV[1]}", "s_mov_b32 s21, s29"]
    aprep2 = ["v_lshrrev_b32 v4, 1, v3", "v_xor_b32 v4, v4, v12", "v_lshlrev_b32 v4, 4, v4", "v_lshl_add_u32 v4, v3, 7, v4",
            "v_add_u32 v249, s7, v4", "v_xor_b32 v250, 64, v249", "v_add_u32 v4, s30, v4", "v_xor_b32 v8, 64, v4"]
    PLACE = {"R0": ("s30", 0), "R1": ("s30", 4096), "R2": ("s30", 8192), "S0a": ("s7", 0), "S0b": ("s7", 4096), "S1a": ("s7", 36864), "S1b": ("s7", 36864+4096)}
    def a2_dma(Pp, pl):
        b, off = PLACE[pl]
        return [f"s_add_u32 m0, {b}, {off}", "s_nop 0"] + \
               [VM(f"buffer_load_dwordx4 v{AV[i]}, s[16:19], s21 offen offset:{1024*i} lds", ("A2", Pp, i)) for i in range(4)] + ["s_add_u32 s21, s21, 128"]
    def a2_rd(Pp, pl):
        b, off = PLACE[pl]
        regs = ("v4", "v8") if b == "s30" else ("v249", "v250")
        return [f"ds_read_b128 a[{8*((2*Pp+e) % 32)+4*t}:{8*((2*Pp+e) % 32)+4*t+3}], {regs[e]} offset:{off + t*2048}" for e in range(2) for t in range(2)]
    def a2tags(Pp): return [("A2", Pp, i) for i in range(4)]
    r1 = {22: [(0, "R0")], 23: [(1, "R1")], 24: [(2, "R2")], 30: [(3, "S0a")], 31: [(4, "S0b")], 32: [(5, "S1a")], 33: [(6, "S1b")], 34: [(7, "R0")], 35: [(8, "R1")]}
    rr1 = {31: [(0, "R0")], 32: [(1, "R1")], 33: [(2, "R2")], 34: [(3, "S0a")], 35: [(4, "S0b"), (5, "S1a")]}
    for kk in range(18, 36):
        ex = []; ne = []
        if kk == 19: ex = [VM("buffer_load_dword v10, v255, s[32:35], 0 offen", "CW2")]
        if kk == 18: ex = ["v_lshlrev_b32 v5, 1, v248", "s_lshl_b32 s26, s6, 6"] + bl
        if kk == 20: ex = aprep
        if kk == KP: ex = [VM(x, ("PL", i)) for i, x in enumerate(pl)]
        if kk == KN0: seq += pollS
        if KN0 <= kk < KN1: ex = nrm0[per*(kk-KN0):per*(kk-KN0+1)]
        if kk >= KN1: ex = nrm[13*JPK*(kk-KN1):13*JPK*(kk-KN1+1)]
        if kk == 30:
            assert not ex
            ex = aprep2 + flagprep + ["s_lshl_b32 s23, s3, 4", "s_add_u32 s23, s23, s5", "s_lshl_b32 s23, s23, 7", f"s_add_u32 s23, s23, {FLB}", "v_lshlrev_b32 v10, 13, v3"]
        if kk == KF: ex = [VM("buffer_store_dword v5, v13, s[8:11], s24 offen sc1", "FB")] + ex; ne = [("Z2", 8)]
        if kk in (31, 32, 33, 34): ex = ex + uv1[5*(kk-31):5*(kk-31)+5]
        for Pp, pl_ in r1.get(kk, []): ex = ex + a2_dma(Pp, pl_)
        for Pp, pl_ in rr1.get(kk, []): early[kk] = early.get(kk, []) + a2_rd(Pp, pl_); ne = ne + a2tags(Pp)
        if kk == 35: ex = [VM(pb, "PB")] + ex
        seq += kstep(kk, ex, ne)
    seq += [a.stamp(5)]
    TM1 = 232
    JF = int(os.environ.get('JF', '0'))
    def z1g(j):
        o = []
        xs = [ACC1 + j*8 + 2*i for i in range(4)]; ts = [TM1 + 2*i for i in range(4)]
        for i in range(4):
            o.append(f"v_pk_fma_f32 {P(ts[i])}, {P(U1+8*j+2*(i%2))}, {P(ZN[i//2])}, {P(U1+8*j+4+2*(i%2))} op_sel_hi:[1,0,1]")
        for i in range(4):
            o.append(f"v_pk_fma_f32 {P(xs[i])}, {P(xs[i])}, {P(ZR[i//2])}, {P(ts[i])} op_sel_hi:[1,0,1]")
        if j < JF: o += gelu_pairs(xs, ts)
        for i in range(4): o.append(f"v_cvt_pk_bf16_f32 v{U1+8*j+i}, v{xs[i]}, v{xs[i]+1}")
        return o
    def late_gelu(j, hf):
        xs = [U1+8*j+4+i for i in range(4)]; ts = [232+i for i in range(4)]
        o = []
        for d in range(2): o += [f"v_lshlrev_b32 v{xs[2*d]}, 16, v{U1+8*j+2*hf+d}", f"v_and_b32 v{xs[2*d+1]}, 0xffff0000, v{U1+8*j+2*hf+d}"]
        for x, t in zip(xs, ts): o.append(f"v_mul_f32 v{t}, v{x}, v{x}")
        for x, t in zip(xs, ts): o.append(f"v_fma_f32 v{t}, v{t}, s40, v14")
        for x, t in zip(xs, ts): o.append(f"v_mul_f32 v{t}, v{t}, v{x}")
        for x, t in zip(xs, ts): o.append(f"v_exp_f32 v{t}, v{t}")
        for x, t in zip(xs, ts): o.append(f"v_add_f32 v{t}, 1.0, v{t}")
        for x, t in zip(xs, ts): o.append(f"v_rcp_f32 v{t}, v{t}")
        for x, t in zip(xs, ts): o.append(f"v_mul_f32 v{x}, v{x}, v{t}")
        for d in range(2): o.append(f"v_cvt_pk_bf16_f32 v{U1+8*j+2*hf+d}, v{xs[2*d]}, v{xs[2*d+1]}")
        return o
    def b2_group(k):
        T = (k+1)//4 + 2
        if T >= 15: return []
        p0, cnt = P0[k % 4]
        o = [f"s_add_u32 m0, s7, {(T % 3)*36864 + p0*1024}", "s_nop 0"]
        for i in range(cnt): o.append(VM(f"buffer_load_dwordx4 v1, s[12:15], s20 offen offset:{1024*i} sc1 lds", ("B2", T, p0+i)))
        o.append(f"s_add_u32 s20, s20, {cnt*1024 if k % 4 != 2 else 36864 - 7168}")
        return o
    def b2tags(T): return [("B2", T, p) for p in range(9)]
    def b2_reads(k):
        return [f"ds_read_b128 v[{B2V + (k%2)*36 + 4*j}:{B2V + (k%2)*36 + 4*j + 3}], v{SL + (k//4) % 3} offset:{(k%4)*9216 + j*1024}" for j in range(9)]
    seq += ["s_mov_b32 s20, s7", WAIT(a2tags(6) + [("V1", 8)])] + a2_rd(6, "S1b") + ["s_nop 3"]
    J2 = int(os.environ.get('J2', '4'))
    for j in range(J2): seq += z1g(j)
    seq += [WAIT(["PB"]), "v_cmp_eq_u32 vcc, 0, v11", "s_barrier", "s_waitcnt lgkmcnt(0)", "s_nop 2", "s_cbranch_vccz GM_B_GO"]
    resolve(pre + seq); emit(a, seq); pre2 = [VM("; ", x.tag) for x in seq if isinstance(x, VM) and x.tag[0] == "A2" and x.tag[1] >= 7]
    poll_loop(a, "GM_B", [pb], [11], None)
    a(a.stamp(6))
    seq = list(pre2)
    for k in range(-9, -5): seq += b2_group(k)
    fl = []
    for k in range(-5, -3): fl += b2_group(k)
    val = []
    for j in range(J2, 9): val += z1g(j)
    seq += interleave(val, fl)
    seq += [WAIT(b2tags(0)), "s_barrier", a.stamp(7)] + b2_reads(0)
    if Asm.STAMPS: seq.append("STAMPFLUSH")
    KA = 46
    RP = lambda Pp: 2 + ((KA-2)*(Pp-7))//24
    KT0 = 52
    rd_at = {RP(Pp): Pp for Pp in range(7, 32)}
    assert len(rd_at) == 25 and all(RP(p_) <= 2*p_-1 and RP(p_) >= 2*(p_-16)+2 for p_ in range(7, 32))
    dma_at = {2: 9}
    for Pp in range(10, 32): dma_at[RP(Pp-3)+1] = Pp
    def areg(k, t): return f"a[{8*(k%32)+4*t}:{8*(k%32)+4*t+3}]"
    def mf2(k, j, t, breg):
        r = ACC + (j*2+t)*4
        return f"{MF} v[{r}:{r+3}], v[{breg}:{breg+3}], {areg(k, t)}, {'0' if k == 0 else f'v[{r}:{r+3}]'}"
    g3prep = f"""
      s_and_b32 s32, s2, 7
      s_lshl_b32 s32, s32, 2
      s_lshr_b32 s33, s2, 3
      s_and_b32 s34, s33, 3
      s_add_u32 s32, s32, s34             ; mb
      s_lshr_b32 s33, s33, 2
      s_mul_i32 s33, s33, 9
      s_lshr_b32 s33, s33, 1              ; n0
      s_mul_i32 s35, s3, {18*36864}
      s_lshl_b32 s34, s33, 10
      s_add_u32 s35, s35, s34
      s_add_u32 s35, s35, {WOUTF}         ; W soffset (registers part)
      s_add_u32 s36, s35, {11*36864}      ; W soffset (lds part)
      s_mul_i32 s37, s3, 30720
      s_add_u32 s37, s37, 36864           ; lds W area""".split("\n")
    NWR = 11
    def w_reg(k): return 20*k if k < NWR else (20*(k-NWR) if k < 17 else 224)
    def w_loads(k, so="s35"):
        r = w_reg(k)
        return [VM(f"buffer_load_dwordx4 a[{r+4*j}:{r+4*j+3}], {'v1' if j < 4 else 'v251'}, s[8:11], {so} offen offset:{1024*(j%4)}", ("W", k, j)) for j in range(5)] + [f"s_add_u32 {so}, {so}, 36864"]
    def w_dma(k):
        o = [f"s_add_u32 m0, s37, {(k-NWR)*5120}", "s_nop 0"]
        o += [VM(f"buffer_load_dwordx4 v1, s[8:11], s36 offen offset:{1024*j} lds", ("W", k, j)) for j in range(4)]
        o += [f"s_add_u32 m0, s37, {(k-NWR)*5120 + 4096}", "s_nop 0", VM(f"buffer_load_dwordx4 v251, s[8:11], s36 offen lds", ("W", k, 4)), "s_add_u32 s36, s36, 36864"]
        return o
    apieces = {}
    for k0, Pp in dma_at.items():
        b, off = PLACE[f"R{(Pp-7) % 3}"]
        ks_ = [k0, k0, k0+1, k0+1] if (k0+1) not in dma_at else [k0]*4
        for i in range(4):
            gr = [f"s_add_u32 m0, {b}, {off}", VM(f"buffer_load_dwordx4 v{AV[i]}, s[16:19], s21 offen offset:{1024*i} lds", ("A2", Pp, i))]
            if i > 0 and ks_[i] == ks_[i-1]: gr = gr[1:]
            apieces.setdefault(ks_[i], []).append(gr)
            if i == 3: apieces[ks_[i]].append(["s_add_u32 s21, s21, 128"])
    CWK = [int(x) for x in os.environ.get('CWK', '1,9,17,25,33,41,49').split(',')]
    def t15_group(k):
        p0, cnt = P0[k % 4]
        o = [f"s_add_u32 m0, s7, {ALDS + p0*1024}"]
        for i in range(cnt): o.append(VM(f"buffer_load_dwordx4 v1, s[12:15], s21 offen offset:{1024*i} sc1 lds", ("B2", 15, p0+i)))
        o.append(f"s_add_u32 s21, s21, {cnt*1024}")
        return o
    tailprep = f"""
      v_lshlrev_b32 v240, 16, v6
      v_lshlrev_b32 v242, 16, v7
      v_add_u32 v4, {ALDS}, v1
      v_lshlrev_b32 v8, 3, v2
      s_lshr_b32 s22, s5, 1
      s_mul_i32 s22, s22, 9216
      s_mul_i32 s23, s6, {2*73728}
      s_add_u32 s22, s22, s23
      s_add_u32 s22, s22, {PF}
      s_and_b32 s23, s5, 1
      s_lshl_b32 s28, s23, 12
      s_add_u32 s28, s28, s22
      s_add_u32 s29, s28, 73728
      s_lshl_b32 s23, s23, 9
      s_add_u32 s30, s22, s23
      s_add_u32 s30, s30, 8192
      s_add_u32 s31, s30, 73728
      s_add_u32 s24, s24, {FLP-FLB}""".split("\n")
    TK = [52, 53, 54, 55, 60, 61, 62, 63, 56, 57, 58, 59]
    def ureg(u): return B2V + 24*(u % 3)
    def u_reads(u):
        if u >= 18: return []
        j, hf = divmod(u, 2)
        o = []
        for i, k in enumerate(TK[6*hf:6*hf+6]):
            ad = "v4" if k >= 60 else f"v{SL + (k//4) % 3}"
            o.append(f"ds_read_b128 v[{ureg(u)+4*i}:{ureg(u)+4*i+3}], {ad} offset:{(k%4)*9216 + j*1024}")
        return o
    lg = []
    for j in range(JF, 9): lg += late_gelu(j, 0) + late_gelu(j, 1)
    LG0, LG1 = 1, 44
    for k in range(KT0):
        need = []
        if k in rd_at: need += a2tags(rd_at[k])
        if k % 4 == 3: need += b2tags((k+1)//4)
        if k == KT0-1: need += b2tags(15)
        if k == 51: need += [("G", 3)]
        seq.append(WAIT(need, lgkm=True))
        if k % 4 == 3: seq.append("s_barrier")
        mm = [mf2(k, j, t, B2V + (k%2)*36 + 4*j) for j in range(9) for t in range(2)]
        ds = b2_reads(k+1) if k+1 < KT0 else u_reads(0)
        if k in rd_at: ds += a2_rd(rd_at[k], f"R{(rd_at[k]-7) % 3}")
        f = {0: b2_group(-3) + b2_group(-2), 1: b2_group(-1) + b2_group(0), 2: b2_group(1) + b2_group(2)}.get(k, None)
        if f is None: f = b2_group(k)
        f = f + [y for x in apieces.get(k, []) for y in x]
        if 47 <= k < 49: f = t15_group(2*k-47) + t15_group(2*k-46) + f
        if k in CWK: f += [VM("buffer_load_dword v11, v255, s[32:35], 0 offen", ("CW", k))]
        oth = []
        if k == 46: oth = [f"s_add_u32 s21, s7, {15*36864}"]
        if k == 48: oth = tailprep
        if k == 44: oth = ["s_lshr_b32 s42, s2, 5", "s_mul_i32 s42, s42, 9", "s_lshr_b32 s42, s42, 1", "s_lshl_b32 s42, s42, 7",
                           f"s_add_u32 s42, s42, {MODP + 5*576*8}", f"s_add_u32 s43, s42, {3456*8}", "v_lshlrev_b32 v9, 3, v2"]
        if k == 45: f += [VM(f"buffer_load_dwordx2 v[{232+2*i}:{233+2*i}], v9, s[8:11], s{42 + i%2} offen offset:{512*(i//2)}", ("G", i)) for i in range(4)]
        if k == 51: oth = ["v_add_f32 v14, v232, v234", "v_add_f32 v15, v236, v238", "v_cvt_pk_bf16_f32 v14, v14, v15", "v_and_b32 v15, 0xffff0000, v14", "v_lshlrev_b32 v14, 16, v14"]
        if k == 50: oth = g3prep
        if LG0 <= k < LG1: oth = oth + lg[len(lg)*(k-LG0)//(LG1-LG0):len(lg)*(k+1-LG0)//(LG1-LG0)]
        gs_, rest = vgroups(f)
        seq += sched(mm, ds, gs_, oth) + rest
    seq.append(a.stamp(0))
    OQ = [U1 + 8*i + 4 for i in range(9)] + [232]
    def epi(j):
        o = []
        for t in range(2):
            b = 240 + 2*t
            for h in range(2):
                x = ACC + (j*2+t)*4 + 2*h; z = U1 + 8*j + 2*t + h; tt = 236 + 2*h
                od = OQ[(j//2)*2 + t] + (j%2)*2 + h
                o += [f"v_lshlrev_b32 v{tt}, 16, v{z}", f"v_and_b32 v{tt+1}, 0xffff0000, v{z}",
                      f"v_add_f32 v{x}, v{x}, v{b}", f"v_add_f32 v{x+1}, v{x+1}, v{b}", f"v_mul_f32 v{x}, v{x}, v{tt}", f"v_mul_f32 v{x+1}, v{x+1}, v{tt+1}",
                      f"v_cvt_pk_bf16_f32 v{od}, v{x}, v{x+1}"]
            od = OQ[(j//2)*2 + t]
            if j % 2 == 1: o.append(VM(f"buffer_store_dwordx4 v[{od}:{od+3}], v1, s[8:11], s{28+t} offen offset:{1024*(j//2)} sc1", ("PS", j, t)))
            if j == 8: o.append(VM(f"buffer_store_dwordx2 v[{od}:{od+1}], v8, s[8:11], s{30+t} offen sc1", ("PS", 9, t)))
        return o
    WT = [int(x) for x in os.environ.get('WT', '8,1,6').split(',')]
    wq = [w_loads(k) for k in range(0, NWR)] + [w_dma(k) for k in range(NWR, 17)] + [w_loads(17, "s36")]
    seq += [WAIT(b2tags(14), lgkm=True), "s_barrier"] + u_reads(1)
    for u in range(18):
        j, hf = divmod(u, 2)
        m_ = [mf2(k, j, t, ureg(u) + 4*i) for i, k in enumerate(TK[6*hf:6*hf+6]) for t in range(2)]
        if u > 0: seq.append(f"s_waitcnt lgkmcnt({6 if u < 17 else 0})")
        ex = wq.pop(0) if (hf == 0 and j < WT[0]) else []
        e = epi(j-1) if j >= 1 else []
        h_ = len(e)//2
        if hf == 0: seq += interleave(m_[:5], u_reads(u+2)) + interleave(m_[5:], e[:h_] + ex)
        else: seq += interleave(m_, u_reads(u+2) + e[h_:])
    seq += ["s_nop 7"] + epi(8) + ["s_barrier"]
    PV, LW = 240, 244
    seq += f"""
      s_mul_i32 s20, s32, {4*73728}
      s_mul_i32 s6, s3, {18*1024}
      s_add_u32 s20, s20, s6
      s_add_u32 s20, s20, {PF}            ; P soffset
      s_lshl_b32 s23, s32, 12
      s_lshl_b32 s6, s3, 9
      s_add_u32 s23, s23, s6
      s_add_u32 s23, s23, {FLP}           ; poll address
      v_and_b32 v10, 3, v2
      v_bfe_u32 v11, v2, 2, 1
      v_lshl_add_u32 v10, v11, 4, v10
      v_lshlrev_b32 v10, 7, v10
      v_add_u32 v249, s37, v1""".split("\n")
    for u in range(4):
        seq += [f"s_add_u32 s6, s3, {u}", "s_and_b32 s6, s6, 3", "s_mul_i32 s7, s6, 73728", f"v_add_u32 v{PV+u}, s7, v1"]
        if u > 0: seq += ["s_mul_i32 s7, s6, 15360", f"s_add_u32 s7, s7, {(u-1)*5120}", f"v_add_u32 v{LW+u}, s7, v1"]
    for _ in range(WT[1]): seq += wq.pop(0)
    seq += [a.stamp(1), WAIT([("PS", 9, 1)]), VM("buffer_store_dword v5, v13, s[8:11], s24 offen sc1", "FP"), a.stamp(2)]
    DEP = 6; AC3 = 16; PR = 96; XR, GB, GR_ = 192, 204, 96
    seq += [f"s_lshl_b32 s22, s32, 2", "s_add_u32 s22, s22, s3", "s_mul_i32 s25, s22, 18432", "s_lshl_b32 s24, s33, 9", "s_add_u32 s25, s25, s24", f"s_add_u32 s25, s25, {X1F}",
            "v_lshlrev_b32 v8, 4, v12"]
    xl = [VM(f"buffer_load_dwordx2 v[{XR+2*j}:{XR+1+2*j}], v9, s[8:11], s25 offen offset:{512*j}", ("X", j)) for j in range(5)]
    for _ in range(WT[2]): seq += wq.pop(0)
    for j in range(5):
        for r in range(4): seq.append(f"ds_bpermute_b32 v{GB+4*j+r}, v8, v{14 if j < 4 else 15} offset:{64*(j%4) + 4*r}")
        if j == 2: seq.append("s_waitcnt lgkmcnt(0)")
    resolve(seq)
    for it in seq:
        if it == "STAMPFLUSH": a.stamp_flush2(2, 8)
        else: emit(a, [it])
    a.srd(12, "out")
    poll_loop(a, "GM_P", ["buffer_load_dword v11, v10, s[8:11], s23 offen sc1"], [11], None)
    a(a.stamp(3))
    done = [VM("; ", x.tag) for x in seq if isinstance(x, VM) and x.tag[0] == "W"]
    def p_loads(k):
        if k >= 18: return []
        r = PR + (k % DEP)*16
        if k % 9 != 8: o = [VM(f"buffer_load_dwordx4 v[{r+4*u}:{r+4*u+3}], v{PV+u}, s[8:11], s20 offen offset:{1024*(k%4)} sc1", ("P", k, u)) for u in range(4)]
        else:
            o = []
            for u in range(4):
                o += [f"v_sub_u32 v11, v{PV+u}, v9", VM(f"buffer_load_dwordx2 v[{r+4*u}:{r+4*u+1}], v11, s[8:11], s20 offen offset:{1024*(k%4)} sc1", ("Ph", k, u)),
                      VM(f"buffer_load_dwordx2 v[{r+4*u+2}:{r+4*u+3}], v11, s[8:11], s20 offen offset:{1024*(k%4)+512} sc1", ("P", k, u))]
        if k % 4 == 3: o.append("s_add_u32 s20, s20, 4096")
        return o
    def w_rd(k): return [f"ds_read_b128 a[{w_reg(k)+4*j}:{w_reg(k)+4*j+3}], v249 offset:{(k-NWR)*5120 + 1024*j}" for j in range(5)]
    seq = list(done)
    for k in range(DEP-1): seq += p_loads(k)
    for k in range(18):
        kr = k + 4
        need = [("P", k, 3)] + ([("W", k, 4)] if (k < NWR or k == 17) else []) + ([("W", kr, 4)] if NWR <= kr < 17 else [])
        seq.append(WAIT(need, lgkm=(NWR <= k < 17)))
        if k == 0: seq.append(a.stamp(4))
        r = PR + (k % DEP)*16
        mm = []
        for u in range(4):
            for j in range(5):
                c = AC3 + (u*5+j)*4
                mm.append(f"{MF} v[{c}:{c+3}], a[{w_reg(k)+4*j}:{w_reg(k)+4*j+3}], v[{r+4*u}:{r+4*u+3}], {'0' if k == 0 else f'v[{c}:{c+3}]'}")
        f = p_loads(k+DEP-1) + (wq.pop(0) if wq else []) + (w_rd(kr) if NWR <= kr < 17 else []) + (xl if k == 13 else [])
        ds = [x for x in f if isinstance(x, str) and x.startswith("ds_")]
        gs_, rest = vgroups([x for x in f if not (isinstance(x, str) and x.startswith("ds_"))])
        seq += (interleave(mm, f) if 'nosch' in X else sched(mm, ds, gs_, vm_start=1) + rest)
    seq += [a.stamp(5), "s_mul_i32 s7, s3, 15360", "v_add_u32 v11, s7, v1", "s_nop 4", "s_barrier"]
    for u in range(1, 4):
        for j in range(5):
            c = AC3 + (u*5+j)*4
            seq.append(f"ds_write_b128 v{LW+u}, v[{c}:{c+3}] offset:{1024*j}")
    seq += ["v_mul_u32_u24 v4, 1152, v248",
            "v_lshl_add_u32 v4, v12, 3, v4", "s_lshr_b32 s25, s22, 1", f"s_mul_i32 s25, s25, {32*1152}", "s_and_b32 s26, s22, 1", f"s_mul_i32 s26, s26, {4*1152}",
            "s_add_u32 s25, s25, s26", "s_lshl_b32 s26, s33, 5", "s_add_u32 s25, s25, s26",
            "s_waitcnt lgkmcnt(0)", "s_barrier"]
    for i in range(15):
        c = AC3 + 20 + 4*i
        seq.append(f"ds_read_b128 v[{c}:{c+3}], v11 offset:{1024*i}")
        if i == 13: seq.append("s_waitcnt lgkmcnt(8)")
    seq += [WAIT([("X", 4)], lgkm=True)]
    for j in range(5):
        for h in range(2):
            x = AC3 + 4*j + 2*h
            seq += [f"v_pk_add_f32 {P(x)}, {P(x)}, {P(x+20)}", f"v_pk_add_f32 {P(x+40)}, {P(x+40)}, {P(x+60)}",
                    f"v_lshlrev_b32 v{x+20}, 16, v{XR+2*j+h}", f"v_and_b32 v{x+21}, 0xffff0000, v{XR+2*j+h}",
                    f"v_pk_add_f32 {P(x)}, {P(x)}, {P(x+40)}",
                    f"v_pk_fma_f32 {P(x)}, {P(x)}, {P(GB+4*j+2*h)}, {P(x+20)}",
                    f"v_cvt_pk_bf16_f32 v{XR+2*j+h}, v{x}, v{x+1}"]
        seq.append(VM(f"buffer_store_dwordx2 v[{XR+2*j}:{XR+1+2*j}], v4, s[12:15], s25 offen offset:{32*j}", ("O", j)))
    resolve(seq); emit(a, seq)
    a(a.stamp(6))
    a.stamp_end(3, 8)
    a("GM_END:\ns_endpgm\nGM_CODE_END:")
    a.desc("gm_kernel", 512, 256)
```

```python
from gen_common import *
import os
X = os.environ.get('X', '').split(',')
F_GRID = 256
CH_LDS = 25792; KCS = 4160; URO = 16640; URS = 4576; YO = 4*CH_LDS; YS = 9216
QO = YO + 4*YS
F_LDS = QO + 18432 + 16
BIG = 0x7fffff00
FU, FH2, FM = FLF, FLF + 576*128, FLF + 720*128
CNT = QO + 18432

def poll(a, name, addr, dst, nonce="s42", pair=None):
    a(f"""
      s_mov_b32 s43, 0
    {name}_POLL:
      {f"buffer_load_dwordx2 {pair}" if pair else f"buffer_load_dword {dst}"}, {addr}, s[8:11], 0 offen sc1
      s_waitcnt vmcnt(0)
      v_cmp_ne_u32 vcc, {nonce}, {dst}
      s_add_u32 s43, s43, 1
      s_cmp_ge_u32 s43, 0x80000
      s_cbranch_scc1 {name}_GO
      s_nop 2
      s_cbranch_vccz {name}_GO
      s_sleep {SLP}
      s_branch {name}_POLL
    {name}_GO:
    """)
def get_nonce(a, name, tmp):
    a(f"""
      s_mov_b32 s43, 0
      v_mov_b32 {tmp}, 0
    {name}_NP:
      buffer_load_dword {tmp}, {tmp}, s[28:31], 0 offen sc1
      s_waitcnt vmcnt(0)
      v_readfirstlane_b32 s42, {tmp}
      s_add_u32 s43, s43, 1
      s_cmp_ge_u32 s43, 0x80000
      s_cbranch_scc1 {name}_NG
      s_cmp_lg_u32 s42, 0
      s_cbranch_scc1 {name}_NG
      s_sleep {SLP}
      s_branch {name}_NP
    {name}_NG:
    """)
def check_nonce(a, name, reg):
    a(f"""
      v_readfirstlane_b32 s42, {reg}
      s_nop 3
      s_cmp_lg_u32 s42, 0
      s_cbranch_scc1 {name}_NG
    """)
    get_nonce(a, name, reg)
def red32(a, r, t):
    a(f"""
      s_nop 1
      v_add_f32_dpp {r}, {r}, {r} quad_perm:[1,0,3,2] row_mask:0xf bank_mask:0xf
      s_nop 1
      v_add_f32_dpp {r}, {r}, {r} quad_perm:[2,3,0,1] row_mask:0xf bank_mask:0xf
      s_nop 1
      v_add_f32_dpp {r}, {r}, {r} row_half_mirror row_mask:0xf bank_mask:0xf
      s_nop 1
      v_add_f32_dpp {r}, {r}, {r} row_mirror row_mask:0xf bank_mask:0xf
      s_nop 0
      v_mov_b32 {t}, {r}
      s_nop 1
      v_permlane16_swap_b32 {r}, {t}
      s_nop 1
      v_add_f32 {r}, {r}, {t}
    """)
def wsp_loads(a, R):
    a.srd(12, "wsp")
    a(f"""
      s_lshr_b32 s18, s2, 2               ; blk
      s_and_b32 s19, s2, 3
      s_lshl_b32 s19, s19, 2
      s_and_b32 s16, s3, 3
      s_add_u32 s19, s19, s16             ; ks/4
      v_lshrrev_b32 v6, 2, v4
      v_lshlrev_b32 v6, 3, v6
      v_and_b32 v7, 3, v4
      v_add_u32 v6, v6, v7
      v_lshlrev_b32 v6, 12, v6
      v_lshl_add_u32 v6, v5, 4, v6
      v_add_u32 v7, 16384, v6
      s_lshl_b32 s18, s18, 17
      s_lshl_b32 s16, s19, 8
      s_add_u32 s16, s16, s18
      s_lshl_b32 s17, s19, 13
      s_add_u32 s17, s17, s18
      s_add_u32 s17, s17, {WSPF}
    """)
    for i in range(8):
        a(f"buffer_load_dwordx4 v[{R+4*i}:{R+4*i+3}], {['v6','v7'][i%2]}, s[12:15], s16 offen offset:{64*(i//2)}")
    a("v_add_u32 v6, 4096, v3")
def wsp_stores(a, R):
    for i in range(8):
        a(f"s_waitcnt vmcnt(7)")
        a(f"buffer_store_dwordx4 v[{R+4*i}:{R+4*i+3}], {['v3','v6'][i//4]}, s[8:11], s17 offen offset:{1024*(i%4)} sc1")

def touch_wsp(a, R, nw):
    if 'ftouch' not in X: return
    a.srd(16, "wsp")
    n = 32 // nw
    a(f"s_lshl_b32 s46, s2, 15\ns_and_b32 s47, s3, {nw-1}\ns_mul_i32 s47, s47, {n*1024}\ns_add_u32 s46, s46, s47")
    for i in range(n):
        if i == 4: a("s_add_u32 s46, s46, 4096")
        a(f"buffer_load_dwordx4 v[{R}:{R+3}], v3, s[16:19], s46 offen offset:{1024*(i%4)}")
def gen_f(a):
    fine = 'fine' in X
    st0 = a.stamp
    FS = (lambda i: st0(i) + "\ns_waitcnt lgkmcnt(0)") if (fine and Asm.STAMPS) else (lambda i: "; ")
    if fine: a.stamp = lambda i: st0(i) if i in (0, 1, 6) else "; "
    a.begin("f_kernel")
    a(f"s_cmp_ge_u32 s2, {F_GRID}\ns_cbranch_scc1 F_END")
    a(a.stamp(0))
    a.load_args()
    a("""
      s_memrealtime s[40:41]
      v_lshrrev_b32 v1, 6, v0
      v_and_b32 v2, 63, v0                ; lane
      v_readfirstlane_b32 s3, v1          ; wave
      v_lshlrev_b32 v3, 4, v2             ; lane*16
      v_and_b32 v4, 15, v2                ; l&15
      v_lshrrev_b32 v5, 4, v2             ; g
      s_and_b32 s4, s2, 7
      s_mul_i32 s4, s4, 18
      s_lshr_b32 s5, s2, 3
      s_add_u32 s4, s4, s5
      s_waitcnt lgkmcnt(0)
    """)
    a.srd(8, "ws"); a.srd(28, "dbg", 256)
    a(f"v_cmp_eq_u32 vcc, 0, v2\nv_mov_b32 v122, {BIG}\ns_nop 0\nv_cndmask_b32 v122, v122, 0, vcc")
    a(f"""
      s_cmp_lg_u32 s2, 255
      s_cbranch_scc1 F_NOTAG
      s_cmp_lg_u32 s3, 0
      s_cbranch_scc1 F_NOTAG
      s_mul_i32 s41, s41, 0x9e3779b1
      s_xor_b32 s40, s40, s41
      s_or_b32 s40, s40, 1
      v_mov_b32 v8, s40
      v_lshlrev_b32 v9, 8, v2
      buffer_store_dword v8, v9, s[28:31], 0 offen sc1
    F_NOTAG:
      s_cmp_ge_u32 s2, 144
      s_cbranch_scc1 F_OTHER
    """)
    a(f"""
      s_and_b32 s5, s4, 15                ; rb
      s_lshr_b32 s6, s4, 4                ; cb
      v_lshrrev_b32 v6, 5, v0             ; rg 0..15
      v_and_b32 v7, 31, v0                ; cp
      s_lshl_b32 s7, s5, 7
      v_lshl_add_u32 v8, v6, 3, s7        ; s0
      s_lshl_b32 s7, s6, 7
      v_lshl_add_u32 v9, v7, 2, s7
      v_mul_u32_u24 v10, 1152, v8
      v_add_u32 v10, v10, v9              ; row s0
      v_subrev_u32 v11, 4608, v10         ; row s0-4
      v_add_u32 v12, 4608, v10            ; row s0+4
      v_lshlrev_b32 v13, 2, v9
    """)
    a.srd(12, "k"); a.srd(16, "v"); a.srd(20, "shk"); a.srd(24, "q"); a.srd(32, "ssmk")
    KR, VR, QR, SQ, TK = 20, 32, 104, 124, 144
    a("buffer_load_dwordx4 v[16:19], v13, s[20:23], 0 offen")
    for i in range(1, 12):
        a(f"buffer_load_dword v{KR+i}, {['v11','v10','v12'][i//4]}, s[12:15], 0 offen offset:{1152*(i%4)}")
        if i >= 4: a(f"buffer_load_dword v{VR+i-3}, {['v11','v10','v12'][i//4]}, s[16:19], 0 offen offset:{1152*(i%4)}")
    def zero_gm():
        a(f"""
          v_mov_b32 v120, 0
          v_lshlrev_b32 v121, 1, v0
          s_lshl_b32 s46, s2, 10
          s_add_u32 s46, s46, {ST2}
          buffer_store_short v120, v121, s[8:11], s46 offen
          s_and_b32 s46, s3, 3
          s_lshl_b32 s47, s2, 2
          s_add_u32 s46, s46, s47
          s_lshl_b32 s46, s46, 7
          s_lshr_b32 s47, s3, 2
          s_mul_i32 s47, s47, {FLP-FLB}
          s_add_u32 s46, s46, s47
          s_add_u32 s46, s46, {FLB}
          buffer_store_dword v120, v122, s[8:11], s46 offen
        """)
    a(f"""
      s_and_b32 s36, s3, 3
      s_mul_i32 s38, s36, {CH_LDS}
      s_lshl_b32 s7, s4, 2
      s_add_u32 s7, s7, s36               ; channel
      s_lshl_b32 s44, s7, 12
      s_add_u32 s45, s44, {UR}
      v_sub_u32 v13, 15, v6
      v_and_b32 v11, 7, v7
      v_xor_b32 v13, v13, v11
      v_lshlrev_b32 v13, 4, v13
      v_lshl_add_u32 v13, v7, 9, v13
      v_add_u32 v13, {YO}, v13
      v_mov_b32 v123, 0
      v_mov_b32 v15, {CNT}
      ds_write2_b32 v15, v123, v123 offset1:1
      buffer_load_dword v123, v123, s[28:31], 0 offen sc1
      s_lshl_b32 s46, s4, 4
      s_lshl_b32 s47, s36, 2
      s_add_u32 s46, s46, s47
      v_lshrrev_b32 v14, 5, v2
      v_add_u32 v14, s46, v14
      v_mul_u32_u24 v15, 1152, v14
      v_lshl_add_u32 v15, v7, 2, v15
      s_waitcnt vmcnt(1)
      s_cmp_lt_u32 s3, 4
      s_cbranch_scc1 F_P1_K
    """)
    for r in range(2):
        for i in range(9):
            a(f"buffer_load_dword v{SQ+9*r+i}, v15, s[24:27], 0 offen offset:{128*i + 2304*r}")
    a("s_branch F_P1_C\nF_P1_K:")
    def kcopy(t):
        a(f"s_add_u32 m0, s38, {t*KCS + 60 - 4*t}\ns_nop 0")
        for i in range(4):
            a(f"buffer_load_dwordx4 v3, s[32:35], s44 offen offset:{1024*i} lds")
    kcopy(0)
    a("F_P1_C:")
    a(a.stamp(1))
    SH, KU, VU = 50, 58, 82
    for j in range(4):
        op = "v_lshlrev_b32 {d}, 16, {s}" if j % 2 == 0 else "v_and_b32 {d}, 0xffff0000, {s}"
        a(op.format(d=f"v{SH+2*j}", s=f"v{16+j//2}"))
        a(op.format(d=f"v{SH+1+2*j}", s=f"v{18+j//2}"))
    for i in range(1, 12): a(f"v_lshlrev_b32 v{KU+2*i}, 16, v{KR+i}\nv_and_b32 v{KU+1+2*i}, 0xffff0000, v{KR+i}")
    for i in range(1, 9): a(f"v_lshlrev_b32 v{VU+2*i}, 16, v{VR+i}\nv_and_b32 v{VU+1+2*i}, 0xffff0000, v{VR+i}")
    RES = 20
    for i in range(1, 9):
        d = f"v[{RES+2*i}:{RES+1+2*i}]"
        kk = lambda j: f"v[{KU+2*(i+3-j)}:{KU+1+2*(i+3-j)}]"
        a(f"v_pk_mul_f32 {d}, {kk(3)}, v[{SH+6}:{SH+7}]")
        for j in (2, 1, 0): a(f"v_pk_fma_f32 {d}, {kk(j)}, v[{SH+2*j}:{SH+1+2*j}], {d}")
        a(f"v_pk_mul_f32 {d}, {d}, v[{VU+2*i}:{VU+1+2*i}]")
    o = 60
    for ch in range(2):
        for dd in range(4):
            a(f"v_cvt_pk_bf16_f32 v{o+dd}, v{RES+2*(8-2*dd)+ch}, v{RES+2*(7-2*dd)+ch}")
        a(f"ds_write_b128 v13, v[{o}:{o+3}] offset:{ch*256}")
        o += 4
    a(f"""
      v_lshrrev_b32 v11, 4, v0
      v_and_b32 v12, 7, v6
      v_xor_b32 v12, v4, v12
      v_lshlrev_b32 v12, 4, v12
      v_lshl_add_u32 v12, v11, 8, v12
      v_add_u32 v12, {YO}, v12
      v_lshlrev_b32 v11, 12, v11
      v_lshl_add_u32 v11, v4, 4, v11
      s_lshl_b32 s46, s6, 18
      s_sub_u32 s47, 15, s5
      s_lshl_b32 s47, s47, 8
      s_add_u32 s46, s46, s47
      s_add_u32 s46, s46, {UR}
      s_waitcnt lgkmcnt(0)
      {FS(2)}
      s_barrier
      {FS(3)}
      s_cmp_ge_u32 s3, 4
      s_cbranch_scc1 F_HELP
    """)
    for i in range(4): a(f"ds_read_b128 v[{60+4*i}:{63+4*i}], v12 offset:{4096*i}")
    for i in range(4):
        a(f"s_waitcnt lgkmcnt({3-i})")
        a(f"buffer_store_dwordx4 v[{60+4*i}:{63+4*i}], v11, s[8:11], s46 offen sc1")
        if i < 3: a(f"s_add_u32 s46, s46, {16*4096}")
    KC = range(1, 4)
    for t in KC: kcopy(t)
    a(FS(4))
    a(f"s_waitcnt vmcnt({4*len(KC)})")
    a(FS(5))
    check_nonce(a, "F_C", "v123")
    a(f"""
      {a.stamp(2)}
      v_mov_b32 v14, s42
      s_lshr_b32 s7, s44, 5
      s_add_u32 s7, s7, {FU}
      buffer_store_dword v14, v122, s[8:11], s7 offen sc1
    """)
    if 'klate' in X:
        for t in range(1, 4): kcopy(t)
    p = a.ptr("ssmD"); w = a.ptr("ws")
    a(f"""
      s_lshl_b32 s7, s4, 3
      s_load_dwordx2 s[20:21], s[{p}:{p+1}], s7
      s_lshl_b32 s7, s6, 6
      s_and_b32 s22, s4, 3
      s_add_u32 s7, s7, s22
      v_lshl_add_u32 v14, v4, 2, s7
      v_lshlrev_b32 v14, 7, v14
      v_add_u32 v14, {FU}, v14
      v_mov_b32 v8, 0
      v_mov_b32 v9, 0
      v_mov_b32 v10, 0
      v_mov_b32 v11, 0
      v_mul_u32_u24 v12, {KCS}, v5
      v_lshl_add_u32 v12, v4, 2, v12
      v_add_u32 v12, s38, v12
      v_add_u32 v13, v4, v5
      v_lshrrev_b32 v16, 5, v2
      v_mul_u32_u24 v16, {URS}, v16
      v_and_b32 v15, 31, v2
      v_lshl_add_u32 v16, v15, 4, v16
      v_add_u32 v16, s38, v16
      v_cmp_gt_u32 vcc, 15, v13
      s_and_saveexec_b64 s[46:47], vcc
      ds_write_b32 v12, v8
      s_mov_b64 exec, s[46:47]
      v_cmp_gt_u32 vcc, 28, v15
      s_and_saveexec_b64 s[46:47], vcc
      ds_write_b128 v16, v[8:11] offset:{URO+4096}
      s_mov_b64 exec, s[46:47]
      v_and_b32 v12, 3, v4
      v_mul_u32_u24 v12, {KCS}, v12
      v_lshrrev_b32 v13, 2, v4
      v_add_u32 v13, v13, v5
      v_lshl_add_u32 v12, v13, 4, v12
      v_add_u32 v12, s38, v12
      v_lshrrev_b32 v13, 3, v4            ; p
      v_mul_u32_u24 v13, {URS}, v13
      v_lshl_add_u32 v13, v5, 4, v13
      v_and_b32 v16, 7, v4                ; a'
      v_lshlrev_b32 v16, 6, v16
      v_sub_u32 v13, v13, v16
      s_add_u32 s7, s38, {URO + 448}
      v_add_u32 v13, s7, v13
      v_and_b32 v6, 7, v4
      v_mul_u32_u24 v6, 144, v6
      v_lshl_add_u32 v6, v5, 5, v6
      v_lshrrev_b32 v15, 3, v4
      v_lshl_add_u32 v6, v15, 4, v6
      s_mul_i32 s7, s3, {YS}
      s_add_u32 s7, s7, {YO}
      v_add_u32 v6, s7, v6
      s_waitcnt lgkmcnt(0)
      s_cmp_ge_u32 s3, 2
      s_cselect_b32 s7, s21, s20
      s_and_b32 s22, s3, 1
      s_lshl_b32 s22, s22, 4
      s_lshr_b32 s7, s7, s22
      s_and_b32 s7, s7, 0xffff
      v_mov_b32 v15, s7
      v_lshl_add_u32 v16, v5, 2, v4       ; m + 4g
    """)
    for dd in range(4):
        a(f"v_cmp_eq_u32 vcc, {15-dd}, v16\ns_nop 1\nv_cndmask_b32 v{8+dd}, 0, v15, vcc")
    poll(a, "F_U", "v14", "v15")
    a(a.stamp(3))
    UB = 112
    for i in range(4):
        a(f"buffer_load_dwordx4 v[{UB+8*i}:{UB+8*i+3}], v3, s[8:11], s45 offen offset:{1024*i} sc1")
        a(f"buffer_load_dword v{UB+8*i+4}, v3, s[8:11], s45 offen offset:{1024*i+16} sc1")
    a(f"s_add_u32 s7, s38, {URO}\nv_add_u32 v14, s7, v3\nv_cmp_eq_u32 vcc, 63, v2")
    ACC = 16; FR = [48, 112]
    def reads(buf, r, which="AB"):
        out = []
        for i in range(8):
            if "B" in which: out.append(f"ds_read_b128 v[{FR[buf]+32+4*i}:{FR[buf]+35+4*i}], v13 offset:{64*r + 512*(7-i)}")
            if "A" in which: out.append(f"ds_read_b128 v[{FR[buf]+4*i}:{FR[buf]+3+4*i}], v12 offset:{64*r + 512*i}")
        return out
    def mfmas(buf):
        out = []
        for p_ in range(8):
            for q_ in range(8 - p_):
                j = p_ + q_
                out.append(f"v_mfma_f32_16x16x32_bf16 v[{ACC+4*j}:{ACC+4*j+3}], v[{FR[buf]+4*p_}:{FR[buf]+4*p_+3}], v[{FR[buf]+32+4*q_}:{FR[buf]+35+4*q_}], v[{ACC+4*j}:{ACC+4*j+3}]")
        return out
    for x in reads(0, 0, "A"): a(x)
    for i in range(4):
        b = UB + 8*i
        a(f"s_waitcnt vmcnt({6-2*i})")
        if i == 3: a(f"v_cndmask_b32 v{b+4}, v{b+4}, 0, vcc")
        a(f"ds_write_b128 v14, v[{b}:{b+3}] offset:{URS + 1024*i}")
        for d_ in range(4): a(f"v_alignbit_b32 v{144+4*i+d_}, v{b+d_+1}, v{b+d_}, 16")
        a(f"ds_write_b128 v14, v[{144+4*i}:{147+4*i}] offset:{1024*i}")
        if i == 1: a("s_waitcnt lgkmcnt(0)")
    a("s_waitcnt lgkmcnt(0)")
    a(a.stamp(4))
    for x in reads(0, 0, "B"): a(x)
    touch_wsp(a, 176, 4)
    a("s_waitcnt lgkmcnt(0)")
    for q_ in range(8):
        a(f"v_mfma_f32_16x16x32_bf16 v[{ACC+4*q_}:{ACC+4*q_+3}], v[8:11], v[{FR[0]+32+4*q_}:{FR[0]+35+4*q_}], 0")
    a("s_mov_b32 s7, 0\nF_CLOOP:")
    for x in interleave(mfmas(0), reads(1, 1), per=1): a(x)
    a("s_waitcnt lgkmcnt(0)")
    for x in interleave(mfmas(1), reads(0, 2), per=1): a(x)
    a("""
      v_add_u32 v12, 128, v12
      v_add_u32 v13, 128, v13
      s_add_u32 s7, s7, 1
      s_cmp_lt_u32 s7, 4
      s_waitcnt lgkmcnt(0)
      s_cbranch_scc1 F_CLOOP
      s_nop 3
    """)
    a(a.stamp(5))
    for j in range(8):
        a(f"ds_write_b128 v6, v[{ACC+4*j}:{ACC+4*j+3}] offset:{j*8*144}")
    a("s_waitcnt lgkmcnt(0)\ns_barrier")
    a(f"v_cmp_eq_u32 vcc, 0, v2\nv_mov_b32 v122, {BIG}\ns_nop 0\nv_cndmask_b32 v122, v122, 0, vcc")
    zero_gm()
    a.stamp_end(0, 7)
    a("s_endpgm")

    a("F_HELP:")
    a(f"""
      s_cmp_ge_u32 s4, 128
      s_cbranch_scc1 F_H_SKIP
      v_lshrrev_b32 v8, 1, v7             ; c>>1
      v_and_b32 v9, 7, v8
      s_lshl_b32 s7, s36, 1
      v_xor_b32 v9, s7, v9
      v_lshlrev_b32 v8, 7, v8
      v_lshrrev_b32 v10, 5, v2
      v_lshl_add_u32 v8, v10, 3, v8
      v_and_b32 v10, 1, v7
      v_lshl_add_u32 v8, v10, 2, v8
      v_add_u32 v8, {QO}, v8
      v_lshl_add_u32 v10, v9, 4, v8       ; r = 0
      v_xor_b32 v9, 1, v9
      v_lshl_add_u32 v11, v9, 4, v8       ; r = 1
      s_waitcnt vmcnt(0)
      {FS(4)}
    """)
    for r in range(2):
        for i in range(9): a(f"ds_write_b32 v{10+r}, v{SQ+9*r+i} offset:{2048*i}")
        a("s_waitcnt lgkmcnt(0)")
    a(f"""
      v_mov_b32 v8, 1
      v_mov_b32 v9, {CNT}
      s_mov_b64 exec, 1
      ds_add_u32 v9, v8 offset:4
      s_mov_b64 exec, -1
      v_cmp_eq_u32 vcc, 0, v7
      v_lshlrev_b32 v15, 3, v14
      v_mov_b32 v14, {BIG}
      s_mov_b32 s7, {ST1}
      v_cndmask_b32 v15, v14, v15, vcc
    """)
    a(f"""
      v_and_b32 v1, 255, v0
      v_lshrrev_b32 v10, 3, v1            ; cg (+32 i)
      v_and_b32 v11, 7, v2
      v_xor_b32 v12, v11, v10
      v_and_b32 v12, 7, v12
      v_lshlrev_b32 v12, 4, v12
      v_lshl_add_u32 v12, v10, 7, v12
      v_add_u32 v12, {QO}, v12
      v_lshlrev_b32 v10, 14, v10
      v_lshl_add_u32 v10, v11, 4, v10
      s_lshl_b32 s47, s4, 7
      s_add_u32 s47, s47, {QP}
    F_H_SYNC:
      ds_read_b32 v8, v9 offset:4
      s_waitcnt lgkmcnt(0)
      v_readfirstlane_b32 s46, v8
      s_nop 3
      s_cmp_lt_u32 s46, 4
      s_cbranch_scc1 F_H_SYNC
    """)
    for i in range(4): a(f"ds_read_b128 v[{60+4*i}:{63+4*i}], v12 offset:{4096*i}")
    for i in range(4):
        a(f"s_waitcnt lgkmcnt({3-i})")
        a(f"buffer_store_dwordx4 v[{60+4*i}:{63+4*i}], v10, s[8:11], s47 offen sc1")
        a(f"s_add_u32 s47, s47, {32*16384}")
    a(f"""
      s_cmp_ge_u32 s36, 2
      s_cbranch_scc1 F_H_ST
      ds_read_b128 v[76:79], v12 offset:16384
      s_waitcnt lgkmcnt(0)
      buffer_store_dwordx4 v[76:79], v10, s[8:11], s47 offen sc1
    F_H_ST:
      {FS(5)}
    """)
    U = 20
    for r in range(2):
        for i in range(9): a(f"v_lshlrev_b32 v{U+2*i}, 16, v{SQ+9*r+i}\nv_and_b32 v{U+1+2*i}, 0xffff0000, v{SQ+9*r+i}")
        a(f"v_pk_add_f32 v[16:17], v[{U}:{U+1}], v[{U+2}:{U+3}]")
        for i in range(2, 9): a(f"v_pk_add_f32 v[16:17], v[16:17], v[{U+2*i}:{U+1+2*i}]")
        a("v_add_f32 v16, v16, v17")
        red32(a, "v16", "v17")
        a(f"v_mul_f32 v16, {float_hex(1.0/576)}, v16")
        for i in range(18): a(f"v_sub_f32 v{U+i}, v{U+i}, v16")
        R = 40 + 2*r
        a(f"v_pk_mul_f32 v[{R}:{R+1}], v[{U}:{U+1}], v[{U}:{U+1}]")
        for i in range(1, 9): a(f"v_pk_fma_f32 v[{R}:{R+1}], v[{U+2*i}:{U+1+2*i}], v[{U+2*i}:{U+1+2*i}], v[{R}:{R+1}]")
        a(f"v_add_f32 v{R}, v{R}, v{R+1}")
        red32(a, f"v{R}", f"v{R+1}")
        a(f"""
          v_mov_b32 v{R+1}, {float_hex(1e-5)}
          v_fmac_f32 v{R+1}, {float_hex(1.0/576)}, v{R}
          v_rsq_f32 v{R}, v{R+1}
          s_nop 0
          v_mul_f32 v{R+1}, v16, v{R}
          v_sub_f32 v{R+1}, 0, v{R+1}
          buffer_store_dwordx2 v[{R}:{R+1}], v15, s[8:11], s7 offen offset:{16*r} sc1
        """)
    a(f"""
    F_H_SKIP:
      s_waitcnt vmcnt(0)
    """)
    check_nonce(a, "F_H", "v123")
    a(f"""
      {a.stamp(2)}
      v_mov_b32 v14, 1
      v_mov_b32 v15, {CNT}
      s_mov_b64 exec, 1
      ds_add_rtn_u32 v14, v15, v14
      s_waitcnt lgkmcnt(0)
      v_readfirstlane_b32 s7, v14
      s_mov_b64 exec, -1
      s_cmp_lg_u32 s7, 3
      s_cbranch_scc1 F_H_NOF
      v_mov_b32 v14, s42
      s_lshl_b32 s7, s4, 7
      s_add_u32 s7, s7, {FH2}
      buffer_store_dword v14, v122, s[8:11], s7 offen offset:4 sc1
    F_H_NOF:
    """)
    zero_gm()
    a(f"""
      v_and_b32 v1, 255, v0               ; t
      v_lshrrev_b32 v15, 2, v2
      v_lshlrev_b32 v15, 4, v15
      v_and_b32 v16, 3, v2
      s_lshl_b32 s7, s36, 2
      v_add3_u32 v15, v15, v16, s7
      v_lshlrev_b32 v15, 7, v15
      v_add_u32 v15, {FH2}, v15
      v_bfe_u32 v17, v2, 3, 2
      v_min_u32 v17, 2, v17
      v_mul_u32_u24 v17, 576, v17
      v_bfe_u32 v18, v2, 2, 1
      v_mul_u32_u24 v18, 3456, v18
      s_lshl_b32 s7, s4, 2
      v_add3_u32 v16, v16, v17, v18
      v_add_u32 v16, s7, v16
      v_lshlrev_b32 v16, 3, v16
      v_add_u32 v16, {MODP}, v16
      v_cmp_gt_u32 vcc, 32, v2
      s_nop 1
      v_cndmask_b32 v15, v16, v15, vcc
      v_lshlrev_b32 v9, 3, v1             ; t*8
      s_lshl_b32 s38, s4, 14
      s_add_u32 s38, s38, {QP}
      s_mov_b32 s39, {ST1}
      v_lshrrev_b32 v12, 5, v1
      v_mul_u32_u24 v13, 144, v12
      v_and_b32 v14, 24, v1
      v_and_b32 v16, 1, v1
      v_lshl_add_u32 v14, v16, 2, v14
      v_bfe_u32 v16, v1, 1, 2
      v_add_u32 v14, v14, v16
      v_lshl_add_u32 v13, v14, 2, v13
      v_add_u32 v13, {YO}, v13
      v_mul_u32_u24 v12, 36864, v12
      v_bfe_u32 v14, v1, 2, 1
      v_mul_u32_u24 v14, 18432, v14
      v_add_u32 v12, v12, v14
      v_bfe_u32 v14, v1, 3, 2
      v_lshl_add_u32 v12, v14, 5, v12
      v_and_b32 v14, 3, v1
      v_lshl_add_u32 v12, v14, 3, v12
      s_lshl_b32 s7, s4, 7
      s_add_u32 s7, s7, {X1F}
    """)
    poll(a, "F_HP", "v15", "v11", pair="v[10:11]")
    a(a.stamp(3))
    Q, STT, Y, H, MD, WR = 16, 32, 48, 80, 144, 160
    for i in range(8):
        a(f"buffer_load_dwordx2 v[{STT+2*i}:{STT+1+2*i}], v9, s[8:11], s39 offen offset:{2048*(i%2)} sc1")
        a(f"buffer_load_dwordx2 v[{Q+2*i}:{Q+1+2*i}], v9, s[8:11], s38 offen offset:{2048*(i%2)} sc1")
        if i % 2 == 1 and i < 7: a("s_add_u32 s39, s39, 4096\ns_add_u32 s38, s38, 4096")
    a("""
      v_add_f32_dpp v10, v10, v10 row_shl:4 row_mask:0xf bank_mask:0xf
      v_bfe_u32 v11, v2, 3, 2
      v_cmp_eq_u32 vcc, 1, v11
      v_cvt_pk_bf16_f32 v10, v10, v10
      v_lshlrev_b32 v10, 16, v10
      v_cndmask_b32 v11, 0, 1.0, vcc
      v_add_f32 v10, v10, v11
      v_cvt_pk_bf16_f32 v10, v10, v10
      v_lshlrev_b32 v10, 16, v10
      s_nop 0
    """)
    for i in range(12): a(f"v_readlane_b32 s{12+i}, v10, {32 + 8*(i//4) + i%4}")
    a("s_nop 1")
    for i in range(12): a(f"v_mov_b32 v{MD+i}, s{12+i}")
    for i in range(8):
        q0, q1 = Q+2*i, Q+1+2*i
        t = H + 8*i
        a(f"""
          s_waitcnt vmcnt({14-2*i})
          v_lshlrev_b32 v{t}, 16, v{q0}
          v_and_b32 v{t+1}, 0xffff0000, v{q0}
          v_lshlrev_b32 v{t+2}, 16, v{q1}
          v_and_b32 v{t+3}, 0xffff0000, v{q1}
        """)
        for c in range(4): a(f"v_fma_f32 v{t+4+c}, v{t+c}, v{STT+2*i}, v{STT+2*i+1}")
        for c in range(4): a(f"v_fma_f32 v{t+4+c}, v{t+4+c}, v{MD+4+c}, v{MD+c}")
        for c in range(4): a(f"v_mul_f32 v{t+4+c}, v{t+4+c}, v{MD+8+c}")
    a(a.stamp(4))
    a("s_barrier")
    a(a.stamp(5))
    def yrd(i):
        for c in range(4):
            a(f"ds_read_b32 v{Y+4*i+c}, v13 offset:{c*YS + i*8*144}")
    if Asm.STAMPS: a("s_waitcnt lgkmcnt(0)")
    for i in range(3): yrd(i)
    for i in range(8):
        t = H + 8*i
        a(f"s_waitcnt lgkmcnt({min(8, 28-4*i)})")
        if i + 3 < 8: yrd(i+3)
        a(f"""
          v_pk_fma_f32 v[{t}:{t+1}], v[{t+4}:{t+5}], v[{Y+4*i}:{Y+1+4*i}], v[{t}:{t+1}]
          v_pk_fma_f32 v[{t+2}:{t+3}], v[{t+6}:{t+7}], v[{Y+2+4*i}:{Y+3+4*i}], v[{t+2}:{t+3}]
          v_cvt_pk_bf16_f32 v{Q+2*i}, v{t}, v{t+1}
          v_cvt_pk_bf16_f32 v{Q+1+2*i}, v{t+2}, v{t+3}
          buffer_store_dwordx2 v[{Q+2*i}:{Q+1+2*i}], v12, s[8:11], s7 offen sc1
        """)
        if i < 7: a(f"s_add_u32 s7, s7, {8*36864}")
    a.stamp_end(0, 7)
    a("s_endpgm")

    a("F_OTHER:")
    a("s_cmp_ge_u32 s2, 252\ns_cbranch_scc1 F_LAST")
    a("s_cmp_lt_u32 s2, 216\ns_cbranch_scc1 F_WIN")
    a.srd(12, "wmod"); a.srd(16, "c")
    a(f"""
      s_sub_u32 s4, s2, 216
      s_and_b32 s5, s4, 1                 ; half
      s_lshr_b32 s4, s4, 1                ; cbk
      s_mul_i32 s6, s5, 288
      v_and_b32 v6, 7, v0                 ; chunk
      v_lshrrev_b32 v7, 3, v0
      v_add_u32 v10, s6, v7
      v_mul_u32_u24 v8, 6912, v10
      v_lshl_add_u32 v8, v6, 4, v8
      v_lshlrev_b32 v9, 1, v10
      s_cmp_lt_u32 s3, 4
      s_cselect_b32 s7, 0, {BIG}
      v_add_u32 v11, s7, v8
      v_add_u32 v12, s7, v9
      s_add_u32 s20, s4, 27
      s_mov_b32 s21, s4
      s_add_u32 s22, s4, 18
      s_add_u32 s23, s4, 36
      s_cmp_lt_u32 s4, 9
      s_cselect_b32 s22, s22, s23
      v_mov_b32 v123, 0
    """)
    C, T, AC = 16, 24, 32
    for i in range(5): a(f"buffer_load_ushort v{C+i}, {'v9' if i < 4 else 'v12'}, s[16:19], 0 offen offset:{128*i}")
    def mloads(r):
        b = 48 + 20*(r % 2)
        a(f"s_lshl_b32 s24, s{20+r}, 7")
        for i in range(5):
            a(f"buffer_load_dwordx4 v[{b+4*i}:{b+3+4*i}], {'v8' if i < 4 else 'v11'}, s[12:15], s24 offen")
            if i < 4: a(f"s_add_u32 s24, s24, {64*6912}")
    mloads(0)
    a("buffer_load_dword v123, v123, s[28:31], 0 offen sc1")
    a("s_waitcnt vmcnt(6)")
    a("\n".join(f"v_lshlrev_b32 v{C+i}, 16, v{C+i}" for i in range(5)))
    a("\n".join(f"v_mul_f32 v{T+i}, {float_hex(-1.4426950408889634)}, v{C+i}" for i in range(5)))
    a("\n".join(f"v_exp_f32 v{T+i}, v{T+i}" for i in range(5)))
    a("\n".join(f"v_add_f32 v{T+i}, 1.0, v{T+i}" for i in range(5)))
    a("\n".join(f"v_rcp_f32 v{T+i}, v{T+i}" for i in range(5)))
    a("\n".join(f"v_mul_f32 v{C+i}, v{C+i}, v{T+i}" for i in range(5)))
    a("\n".join(f"v_cvt_pk_bf16_f32 v{C+i}, v{C+i}, v{C+i}" for i in range(5)))
    a("\n".join(f"v_lshlrev_b32 v{C+i}, 16, v{C+i}" for i in range(5)))
    a(f"""
      v_lshlrev_b32 v13, 8, v1
      v_lshl_add_u32 v13, v6, 5, v13
      v_lshlrev_b32 v14, 2, v2
      v_lshlrev_b32 v15, 3, v2
      s_mul_i32 s25, s5, {3456*8}
      s_add_u32 s25, s25, {MODP}
      s_waitcnt vmcnt(0)
    """)
    check_nonce(a, "F_M", "v123")
    for r in range(3):
        b = 48 + 20*(r % 2)
        if r > 0: a("s_waitcnt vmcnt(0)")
        if r < 2: mloads(r+1)
        for i in range(5):
            for dd in range(4):
                src = f"v{b+4*i+dd}"
                a(f"v_lshlrev_b32 v24, 16, {src}\nv_and_b32 v25, 0xffff0000, {src}")
                if i == 0: a(f"v_mul_f32 v{AC+2*dd}, v{C}, v24\nv_mul_f32 v{AC+1+2*dd}, v{C}, v25")
                else: a(f"v_fmac_f32 v{AC+2*dd}, v{C+i}, v24\nv_fmac_f32 v{AC+1+2*dd}, v{C+i}, v25")
        a("s_nop 1")
        for j in range(8): a(f"v_add_f32_dpp v{AC+j}, v{AC+j}, v{AC+j} row_ror:8 row_mask:0xf bank_mask:0xf")
        for sw in ("16", "32"):
            for j in range(8): a(f"v_mov_b32 v{40+j}, v{AC+j}")
            a("s_nop 1")
            for j in range(8): a(f"v_permlane{sw}_swap_b32 v{AC+j}, v{40+j}")
            a("s_nop 1")
            for j in range(8): a(f"v_add_f32 v{AC+j}, v{AC+j}, v{40+j}")
        a(f"""
          s_mov_b64 exec, 0xff
          ds_write_b128 v13, v[{AC}:{AC+3}] offset:{2048*r}
          ds_write_b128 v13, v[{AC+4}:{AC+7}] offset:{2048*r+16}
          s_mov_b64 exec, -1
          s_waitcnt lgkmcnt(0)
          s_barrier
          s_cmp_lg_u32 s3, {7-r}
          s_cbranch_scc1 F_MOD_N{r}
        """)
        for i in range(8): a(f"ds_read_b32 v{AC+i}, v14 offset:{2048*r + 256*i}")
        a(f"s_lshl_b32 s24, s{20+r}, 9\ns_add_u32 s24, s24, s25\ns_waitcnt lgkmcnt(0)")
        for i in range(4): a(f"v_add_f32 v{AC+i}, v{AC+i}, v{AC+4+i}")
        a(f"""
          v_add_f32 v{AC}, v{AC}, v{AC+1}
          v_add_f32 v{AC+2}, v{AC+2}, v{AC+3}
          v_add_f32 v{AC}, v{AC}, v{AC+2}
          v_mov_b32 v{AC+1}, s42
          buffer_store_dwordx2 v[{AC}:{AC+1}], v15, s[8:11], s24 offen sc1
          s_nop 1
        F_MOD_N{r}:
        """)
        a(a.stamp(1+r))
    a(a.stamp(4))
    a("s_branch F_LAST")
    TB = 73728; WO = 81920
    a("F_WIN:")
    a.srd(20, "win"); a.srd(12, "wout")
    a(f"""
      s_sub_u32 s4, s2, 144
      s_lshr_b32 s5, s4, 3
      s_and_b32 s4, s4, 7
      s_mul_i32 s4, s4, 9
      s_add_u32 s4, s4, s5                ; unit
      s_and_b32 s24, s3, 3                ; jn
      s_lshr_b32 s25, s3, 2               ; K half
      v_lshrrev_b32 v10, 3, v2
      v_and_b32 v11, 7, v2
      v_and_b32 v12, 6, v10
      v_xor_b32 v11, v11, v12
      v_lshlrev_b32 v11, 4, v11           ; chunk*16
      v_lshrrev_b32 v8, 2, v2
      v_lshlrev_b32 v8, 7, v8
      v_and_b32 v12, 3, v10
      v_xor_b32 v12, s24, v12
      v_lshl_add_u32 v8, v12, 5, v8
      v_and_b32 v12, 3, v2
      v_lshl_add_u32 v8, v12, 3, v8
      s_mul_i32 s26, s25, 36864
      v_add_u32 v9, s26, v8
      s_mul_i32 s26, s25, {144*128}
      s_add_u32 s26, s26, {WO}
      v_add_u32 v8, s26, v8
      s_mul_i32 s6, s3, 9216
      s_mul_i32 s7, s3, {72*9216}
      s_lshl_b32 s5, s4, 7
      s_add_u32 s7, s7, s5
      v_mul_u32_u24 v7, 1152, v10
      v_add_u32 v7, v7, v11
      v_mul_u32_u24 v10, 9216, v10
      v_add_u32 v11, v11, v10
      s_mul_i32 s33, s4, 7282
      s_lshr_b32 s33, s33, 16             ; q8
      s_mul_i32 s5, s33, 9
      s_sub_u32 s32, s4, s5               ; cblk
    """)
    a.srd(16, "ssmk")
    a("v_lshlrev_b32 v14, 4, v0\ns_lshl_b32 s5, s4, 15")
    for i in range(4 if 'notk' not in X else 0):
        a(f"buffer_load_dwordx4 v[{16+4*i}:{19+4*i}], v14, s[16:19], s5 offen")
        if i < 3: a("s_add_u32 s5, s5, 8192")
    for i in range(9):
        a(f"s_add_u32 m0, s6, {1024*i}\ns_nop 0")
        a(f"buffer_load_dwordx4 v11, s[20:23], s7 offen lds")
        if i < 8: a(f"s_add_u32 s7, s7, {8*9216}")
    zero_gm()
    get_nonce(a, "F_W", "v14")
    a(f"""
      v_min_u32 v6, 287, v0
      v_lshlrev_b32 v12, 4, v6
      s_mov_b32 s16, {MODP + 3*576*8}
      s_mov_b32 s17, {MODP + 3*576*8 + 3456*8}
      s_mov_b32 s18, {MODP + 4*576*8}
      s_mov_b32 s19, {MODP + 4*576*8 + 3456*8}
      s_mov_b32 s43, 0
      s_cmp_ge_u32 s3, 5
      s_cbranch_scc1 F_WG_SKIP
    F_WG_POLL:
    """)
    for i in range(4): a(f"buffer_load_dwordx4 v[{16+4*i}:{19+4*i}], v12, s[8:11], s{16+i} offen sc1")
    a("s_waitcnt vmcnt(0)\nv_xor_b32 v13, s42, v17")
    for r_ in (19, 21, 23, 25, 27, 29, 31): a(f"v_xor_b32 v14, s42, v{r_}\nv_or_b32 v13, v13, v14")
    a(f"""
      v_cmp_ne_u32 vcc, 0, v13
      s_add_u32 s43, s43, 1
      s_cmp_ge_u32 s43, 0x80000
      s_cbranch_scc1 F_WG_GO
      s_nop 2
      s_cbranch_vccz F_WG_GO
      s_sleep {SLP}
      s_branch F_WG_POLL
    F_WG_GO:
      v_add_f32 v16, v16, v20
      v_add_f32 v18, v18, v22
      v_add_f32 v24, v24, v28
      v_add_f32 v26, v26, v30
      v_cvt_pk_bf16_f32 v16, v16, v18
      v_cvt_pk_bf16_f32 v24, v24, v26
      v_and_b32 v25, 0xffff0000, v24
      v_lshlrev_b32 v24, 16, v24
      v_add_f32 v24, 1.0, v24
      v_add_f32 v25, 1.0, v25
      v_cvt_pk_bf16_f32 v24, v24, v25
      v_and_b32 v25, 0xffff0000, v24
      v_lshlrev_b32 v24, 16, v24
      v_lshlrev_b32 v13, 3, v6
      v_lshlrev_b32 v14, 2, v6
      v_add_u32 v13, {TB}, v13
      v_add_u32 v14, {TB+3072}, v14
      ds_write_b64 v13, v[24:25]
      ds_write_b32 v14, v16
    F_WG_SKIP:
      {a.stamp(1)}
      s_lshl_b32 s16, s4, 2
      s_add_u32 s16, s16, s24             ; fc
      s_cmp_ge_u32 s16, 144
      s_cselect_b32 s17, 144, 0
      s_cselect_b32 s18, 0, {18*9216}
      s_cselect_b32 s23, 1, 0             ; is z2
      s_sub_u32 s34, s16, s17             ; fcl
      s_mul_i32 s19, s34, 7282
      s_lshr_b32 s19, s19, 16             ; nt
      s_mul_i32 s20, s19, 9
      s_sub_u32 s20, s34, s20             ; j
      s_mul_i32 s19, s19, {36*9216}
      s_lshl_b32 s20, s20, 10
      s_add_u32 s19, s19, s20
      s_add_u32 s19, s19, s18
      s_mul_i32 s20, s25, {9*9216}
      s_add_u32 s19, s19, s20
      s_add_u32 s35, s19, {WINF}
      s_mul_i32 s20, s25, 1152
      s_add_u32 s20, s20, {TB}
      v_lshl_add_u32 v12, v5, 4, s20
      s_mul_i32 s20, s25, 576
      s_add_u32 s20, s20, {TB+3072}
      v_lshl_add_u32 v13, v5, 3, s20
      v_mov_b32 v14, 0                    ; u
      v_mov_b32 v15, 0                    ; v
      s_mov_b32 s21, 0x3f803f80
      s_mul_i32 s7, s33, {288*1152}
      s_mul_i32 s5, s3, {8*1152}
      s_add_u32 s7, s7, s5
      s_lshl_b32 s5, s32, 7
      s_add_u32 s7, s7, s5
      s_lshl_b32 s6, s3, 10
      s_waitcnt vmcnt(0) lgkmcnt(0)
      s_barrier
      {a.stamp(2)}
    """)
    for i in range(5):
        if i == 4: a("s_cmp_ge_u32 s3, 4\ns_cbranch_scc1 F_WO_I")
        a(f"s_add_u32 m0, s6, {WO + 8192*i}\ns_nop 0")
        a(f"buffer_load_dwordx4 v7, s[12:15], s7 offen lds")
        if i < 4: a(f"s_add_u32 s7, s7, {64*1152}")
    a("F_WO_I:")
    touch_wsp(a, 176, 8)
    def rd(ks):
        b = 16 + 16*(ks % 3)
        a(f"""
          ds_read_b64_tr_b16 v[{b}:{b+1}], v9 offset:{4096*ks}
          ds_read_b64_tr_b16 v[{b+2}:{b+3}], v9 offset:{4096*ks+2048}
          ds_read_b128 v[{b+4}:{b+7}], v12 offset:{128*ks}
          ds_read_b128 v[{b+8}:{b+11}], v12 offset:{128*ks+64}
          ds_read_b64 v[{b+12}:{b+13}], v13 offset:{64*ks}
          ds_read_b64 v[{b+14}:{b+15}], v13 offset:{64*ks+32}
        """)
    if Asm.STAMPS: a("s_waitcnt lgkmcnt(0)")
    rd(0); rd(1)
    for ks in range(9):
        b = 16 + 16*(ks % 3); t = 64; o = 72 + 4*(ks % 2)
        if ks + 2 < 9:
            a("s_waitcnt lgkmcnt(6)"); rd(ks+2)
        else: a(f"s_waitcnt lgkmcnt({6 if ks + 1 < 9 else 0})")
        for dd in range(4):
            a(f"v_lshlrev_b32 v{t+2*dd}, 16, v{b+dd}\nv_and_b32 v{t+1+2*dd}, 0xffff0000, v{b+dd}")
        for dd in range(4): a(f"v_dot2c_f32_bf16 v15, v{b+dd}, v{b+12+dd}")
        for dd in range(4): a(f"v_pk_mul_f32 v[{t+2*dd}:{t+1+2*dd}], v[{t+2*dd}:{t+1+2*dd}], v[{b+4+2*dd}:{b+5+2*dd}]")
        for dd in range(4): a(f"v_cvt_pk_bf16_f32 v{o+dd}, v{t+2*dd}, v{t+1+2*dd}")
        a(f"buffer_store_dwordx4 v[{o}:{o+3}], v3, s[8:11], s35 offen sc1")
        for dd in range(4): a(f"v_dot2c_f32_bf16 v14, s21, v{o+dd}")
        if ks < 8: a("s_add_u32 s35, s35, 9216")
    a("s_nop 2")
    for sw in ("16", "32"):
        a(f"""
          v_mov_b32 v16, v14
          v_mov_b32 v17, v15
          s_nop 1
          v_permlane{sw}_swap_b32 v14, v16
          v_permlane{sw}_swap_b32 v15, v17
          s_nop 1
          v_add_f32 v14, v14, v16
          v_add_f32 v15, v15, v17
        """)
    a(f"""
      {a.stamp(3)}
      s_lshl_b32 s20, s24, 7
      s_add_u32 s20, s20, {TB+5120}
      v_lshl_add_u32 v18, v4, 3, s20
      v_lshlrev_b32 v16, 2, v4
      v_lshlrev_b32 v17, 3, v4
      s_cmp_lt_u32 s3, 4
      s_cbranch_scc1 F_WIN_NW
      ds_write_b64 v18, v[14:15]
    F_WIN_NW:
      s_mul_i32 s19, s33, 9
      s_lshl_b32 s16, s25, 2
      s_add_u32 s19, s19, s16
      s_mul_i32 s19, s19, 36864
      s_lshl_b32 s16, s32, 2
      s_add_u32 s16, s16, s24
      s_lshl_b32 s16, s16, 10
      s_add_u32 s19, s19, s16
      s_add_u32 s35, s19, {WOUTF}
      s_waitcnt vmcnt({13 if 'ftouch' in X else 9}) lgkmcnt(0)
      s_barrier
      {a.stamp(4)}
    """)
    for i in range(4):
        r = 24 + 4*i
        a(f"ds_read_b64_tr_b16 v[{r}:{r+1}], v8 offset:{32*i*128}")
        a(f"ds_read_b64_tr_b16 v[{r+2}:{r+3}], v8 offset:{(32*i+16)*128}")
    a("s_waitcnt lgkmcnt(0)")
    for i in range(4):
        r = 24 + 4*i
        a(f"buffer_store_dwordx4 v[{r}:{r+3}], v3, s[8:11], s35 offen sc1")
        a("s_add_u32 s35, s35, 36864")
    a(f"""
      s_cmp_ge_u32 s3, 4
      s_cbranch_scc1 F_FIN
      ds_read_b64_tr_b16 v[40:41], v8 offset:{128*128}
      ds_read_b64_tr_b16 v[42:43], v8 offset:{272*128}
      ds_read_b64 v[20:21], v18
      s_add_u32 s35, s35, {4*36864}
      s_waitcnt lgkmcnt(0)
      buffer_store_dwordx4 v[40:43], v3, s[8:11], s35 offen sc1
      v_add_f32 v14, v14, v20
      v_add_f32 v15, v15, v21
      s_mov_b64 exec, 0xffff
      s_cmp_eq_u32 s23, 1
      s_cbranch_scc1 F_WIN_Z2
      s_lshl_b32 s16, s34, 6
      s_add_u32 s16, s16, {UV1}
      buffer_store_dword v14, v16, s[8:11], s16 offen
      s_add_u32 s16, s16, 9216
      buffer_store_dword v15, v16, s[8:11], s16 offen
      s_branch F_FIN
    F_WIN_Z2:
      s_lshl_b32 s16, s34, 7
      s_add_u32 s16, s16, {UV2}
      buffer_store_dwordx2 v[14:15], v17, s[8:11], s16 offen
      s_branch F_FIN
    """)
    a("F_LAST:")
    zero_gm()
    touch_wsp(a, 176, 8)
    a("""
    F_WARM:
      s_getpc_b64 s[12:13]
    F_PC:
      s_add_u32 s12, s12, gm_kernel-F_PC
      s_addc_u32 s13, s13, 0
      s_and_b32 s13, s13, 0xffff
      s_mov_b32 s14, GM_CODE_END-gm_kernel
      s_mov_b32 s15, 0x20000
      v_lshlrev_b32 v6, 7, v0
      buffer_load_dword v7, v6, s[12:15], 0 offen
    F_FIN:
    """)
    a.stamp_end(0, 6)
    a("F_END:\ns_endpgm")
    a.stamp = st0
    a.desc("f_kernel", 180, 180)
```

```python
from gen_common import *
from gen_g import *
P = lambda r: f"v[{r}:{r+1}]"
BIG = 0x7fffff00

def poll_loop(a, name, loads, regs, tmp):
    a(f"s_mov_b32 s27, 0\n{name}_POLL:")
    for x in loads: a(x)
    a("s_waitcnt vmcnt(0)")
    if len(regs) == 1: a(f"v_cmp_eq_u32 vcc, 0, v{regs[0]}")
    else:
        a(f"v_min_u32 v{tmp}, v{regs[0]}, v{regs[1]}")
        for r in regs[2:]: a(f"v_min_u32 v{tmp}, v{tmp}, v{r}")
        a(f"v_cmp_eq_u32 vcc, 0, v{tmp}")
    a(f"""
      s_add_u32 s27, s27, 1
      s_cmp_ge_u32 s27, 0x80000
      s_cbranch_scc1 {name}_GO
      s_nop 2
      s_cbranch_vccz {name}_GO
      s_sleep {SLP}
      s_branch {name}_POLL
    {name}_GO:
    """)

def gen_gm(a):
    a.begin("gm_kernel")
    a("s_cmp_ge_u32 s2, 256\ns_cbranch_scc1 GM_END")
    a(a.stamp(0))
    a.load_args()
    tile_ids(a)
    SL = 252
    a(f"""
      s_mul_i32 s20, s5, {36*9216}
      s_add_u32 s20, s20, s7
      s_add_u32 s20, s20, {WINF}
      s_mul_i32 s21, s6, 36864
      s_add_u32 s21, s21, {X1F}           ; A soffset
      s_mul_i32 s30, s3, 12288
      s_add_u32 s30, s30, {3*36864}
      v_lshl_add_u32 v13, v2, 3, s30
      v_add_u32 v8, {18432-1024}, v1
      s_mul_i32 s28, s5, {64*9216}
      s_add_u32 s28, s28, {Z2F}
      s_lshl_b32 s29, s6, 17
      s_waitcnt lgkmcnt(0)
    """)
    a.srd(8, "ws")
    AB, BB = 0, 144
    ACC2, ACC1, ST = 16, 88, 160
    ALDS = 3*36864
    def a_dma(ks):
        if ks >= 18: return []
        o = [f"s_add_u32 m0, s30, {(ks % 6)*2048}", "s_nop 0",
             VM(f"buffer_load_dwordx4 v1, s[8:11], s21 offen lds", ("A", ks, 0)),
             VM(f"buffer_load_dwordx4 v8, s[8:11], s21 offen offset:1024 lds", ("A", ks, 1)),
             "s_add_u32 s21, s21, 1024"]
        return o
    def a_reads(ks):
        if ks >= 18: return []
        return [f"ds_read_b64 a[{AB+(ks*2+t)*4+2*h}:{AB+(ks*2+t)*4+2*h+1}], v13 offset:{(ks % 6)*2048 + t*1024 + h*512}" for t in range(2) for h in range(2)]
    def atags(ks): return [("A", ks, t) for t in range(2)] if ks < 18 else []
    def b1_group(k):
        T = (k+1)//4 + 2
        if T >= 9: return []
        p0, cnt = P0[k % 4]
        o = [f"s_add_u32 m0, s7, {(T % 3)*36864 + p0*1024}", "s_nop 0"]
        for i in range(cnt): o.append(VM(f"buffer_load_dwordx4 v1, s[8:11], s20 offen offset:{1024*i} lds", ("B", T, p0+i)))
        o.append(f"s_add_u32 s20, s20, {cnt*1024 if k % 4 != 2 else 36864 - 7168}")
        return o
    def b1_reads(k):
        return [f"ds_read_b128 a[{BB + (k%2)*36 + 4*j}:{BB + (k%2)*36 + 4*j + 3}], v{SL + (k//4) % 3} offset:{(k%4)*9216 + j*1024}" for j in range(9)]
    seq = []
    seq += a_dma(0)
    for k in range(-9, -5): seq += b1_group(k)
    for ks in range(1, 4): seq += a_dma(ks)
    seq += ["s_getpc_b64 s[32:33]", "GM_PC:", "s_sub_u32 s32, s32, GM_PC-gm_kernel", "s_subb_u32 s33, s33, 0", "s_and_b32 s33, s33, 0xffff",
            "s_mov_b32 s34, GM_CODE_END-gm_kernel", "s_mov_b32 s35, 0x20000", "s_lshr_b32 s31, s2, 3", "s_lshl_b32 s31, s31, 7",
            "v_lshlrev_b32 v255, 12, v0", "v_add_u32 v255, s31, v255", VM("buffer_load_dword v11, v255, s[32:35], 0 offen", "CW")]
    resolve(seq); emit(a, seq); pre = seq; seq = []
    NPB = int(os.environ.get('NPB', '2'))
    late_pro = []
    for k in range(-5, -5+NPB): late_pro += b1_group(k)
    e0 = []
    for k in range(-5+NPB, -1): e0 += b1_group(k)
    early = {0: e0 + a_dma(4) + (a_dma(5) + b1_group(-1) if NPB >= 2 else []), 1: (a_dma(5) + b1_group(-1) if NPB < 2 else []) + a_dma(6) + b1_group(0) + b1_group(1)}
    a.srd(12, "ws", 64*9216, "s28"); a.srd(16, "wsp"); a.srd(36, "bsp")
    a(f"""
      v_mov_b32 v{SL}, v1
      v_add_u32 v{SL+1}, 36864, v1
      v_add_u32 v{SL+2}, {2*36864}, v1
      v_mov_b32 v4, 0x3f803f80
      v_mov_b32 v5, 0x3f803f80
      v_mov_b32 v6, 0x3f803f80
      v_mov_b32 v7, 0x3f803f80
      s_mov_b32 s40, {float_hex(C1)}
      s_mov_b32 s41, {float_hex(C1)}
      v_mov_b32 v14, {float_hex(C0)}
      v_mov_b32 v15, {float_hex(C0)}
      s_mul_i32 s22, s5, {144*8}
      s_add_u32 s22, s22, {UV2}
      v_lshlrev_b32 v9, 3, v3             ; n*8
      v_lshrrev_b32 v248, 2, v3
      v_lshlrev_b32 v248, 3, v248
      v_and_b32 v249, 3, v3
      v_add_u32 v248, v248, v249
      v_add_u32 v251, 4096, v1
    """)
    seq += late_pro + [WAIT(btags(0)), "s_barrier", a.stamp(1)]
    seq += a_reads(0) + b1_reads(0)
    def kstep(kk, extra=[], need_extra=[]):
        ks = kk % 18; ps = kk // 18
        o = []
        need = (atags(ks+1) if ps == 0 else []) + need_extra
        bar = (kk % 4 == 3 and kk < 35)
        if bar: need = need + btags((kk+1)//4)
        o.append(WAIT(need, lgkm=True))
        if bar: o.append("s_barrier")
        m = []
        for j in range(9):
            for t in range(2):
                A = f"a[{AB+(ks*2+t)*4}:{AB+(ks*2+t)*4+3}]"
                B = f"a[{BB+(kk%2)*36+4*j}:{BB+(kk%2)*36+4*j+3}]"
                r = (ACC2 if ps == 0 else ACC1) + (j*2+t)*4
                C = "0" if ks == 0 else f"v[{r}:{r+3}]"
                m.append(f"{MF} v[{r}:{r+3}], {A}, {B}, {C}" if ps == 0 else f"{MF} v[{r}:{r+3}], {B}, {A}, {C}")
        if ps == 0 and ('nostat' not in X or ks == 0):
            for t in range(2):
                A = f"a[{AB+(ks*2+t)*4}:{AB+(ks*2+t)*4+3}]"
                r = ST + 4*t
                m.append(f"{MF} v[{r}:{r+3}], {A}, v[4:7], {'0' if ks == 0 else f'v[{r}:{r+3}]'}")
                r = ST + 8 + 4*t
                m.append(f"{MF} v[{r}:{r+3}], {A}, {A}, {'0' if ks == 0 else f'v[{r}:{r+3}]'}")
        f = (a_reads(kk+1) if ps == 0 else []) + (b1_reads(kk+1) if kk < 35 else []) + early.get(kk, []) + (a_dma(kk+5) + (b1_group(kk) if not (int(os.environ.get('DL0', '18')) <= kk < 18) else []) if kk >= 2 else []) + extra
        if 'nosch' in X: return o + interleave(m, f)
        ds = [x for x in f if isinstance(x, str) and x.startswith("ds_")]
        base = [x for x in f[:len(f)-len(extra)] if not (isinstance(x, str) and x.startswith("ds_"))]
        if any(isinstance(x, str) and x.startswith("v_") for x in extra):
            gs_, rest = vgroups(base)
            mo = [i for i, x in enumerate(extra) if isinstance(x, str) and "m0" in x]
            cut = mo[0] if mo else len(extra)
            g2_, rest2 = vgroups(rest + extra[cut:])
            o += sched(m, ds, gs_ + g2_, extra[:cut]) + rest2
        else:
            gs_, rest = vgroups(base + extra)
            o += sched(m, ds, gs_) + rest
        return o
    UV = 176; WS = 216
    uv2 = [VM(f"buffer_load_dwordx2 v[{UV+2*j}:{UV+2*j+1}], v9, s[8:11], s22 offen offset:{128*j}", ("UV2", j)) for j in range(9)]
    for kk in range(18):
        ex = []
        ne = []
        if kk == 14: ex = uv2[:5]
        if kk == 15: ex = uv2[5:]
        seq += kstep(kk, ex, ne)
    seq += [a.stamp(2), "v_mul_u32_u24 v10, 80, v12", "s_nop 7"]
    for t in range(2):
        for r in range(4):
            seq.append(f"ds_bpermute_b32 v{ST+8+4*t+r}, v10, v{ST+8+4*t+r} offset:{4*r}")
    seq.append("s_waitcnt lgkmcnt(0)")
    s1 = [ST+i for i in range(8)]; s2 = [ST+8+i for i in range(8)]
    seq += ln_finish(s1, s2, 576, 8, None)
    ZR = [240, 244]; ZN = [242, 246]
    seq += ["v_and_b32 v10, 3, v3", "v_lshrrev_b32 v11, 2, v3", "v_lshl_add_u32 v11, v11, 4, v3", "v_lshlrev_b32 v11, 2, v11"]
    for t in range(2):
        seq += [f"v_mov_b32 v{ZR[t]}, v{ST+8+4*t}", f"v_mov_b32 v{ZN[t]}, v{ST+4*t}"]
    for r in range(1, 4):
        seq += [f"v_cmp_eq_u32 vcc, {r}, v10", "s_nop 1"]
        for t in range(2):
            seq += [f"v_cndmask_b32 v{ZR[t]}, v{ZR[t]}, v{ST+8+4*t+r}, vcc", f"v_cndmask_b32 v{ZN[t]}, v{ZN[t]}, v{ST+4*t+r}, vcc"]
    for r in ZR + ZN: seq.append(f"ds_bpermute_b32 v{r}, v11, v{r}")
    seq.append(WAIT([("UV2", j) for j in range(9)]))
    touch = ["v_lshlrev_b32 v13, 12, v12", "v_lshl_add_u32 v13, v3, 4, v13", "s_lshl_b32 s31, s5, 8", "s_add_u32 s31, s31, s29"]
    for i in range(8):
        touch += [VM(f"buffer_load_dwordx4 a[{WS+4*i}:{WS+4*i+3}], v13, s[16:19], s31 offen {'nt' if 'tnt' in X else ''}", ("WL", i)), "s_add_u32 s31, s31, 16384"]
    DL0 = int(os.environ.get('DL0', '18'))
    dlist = []
    for kk in range(DL0, 18): dlist += b1_group(kk)
    dlist += touch
    g2start = len(seq)
    Z1S, Z2S, TMP, GR = 196, 204, 212, 220
    for j in range(9):
        xs = [ACC2 + j*8 + 2*i for i in range(4)]; ts = [TMP + 2*i for i in range(4)]
        uv = P(UV + 2*j)
        seq.append(f"v_mov_b32 v194, v{UV+2*j+1}")
        for i in range(4): seq.append(f"v_pk_fma_f32 {P(ts[i])}, {P(ST+2*i)}, {uv}, v[194:195] op_sel_hi:[1,0,0]")
        for i in range(4): seq.append(f"v_pk_fma_f32 {P(xs[i])}, {P(xs[i])}, {P(ST+8+2*i)}, {P(ts[i])}")
        seq += gelu_pairs(xs, ts)
        for i in range(4):
            if j == 0: seq += [f"v_pk_mul_f32 {P(Z2S+2*i)}, {P(xs[i])}, {P(xs[i])}"]
            elif j == 1: seq += [f"v_pk_add_f32 {P(Z1S+2*i)}, {P(xs[i])}, {P(ACC2+2*i)}", f"v_pk_fma_f32 {P(Z2S+2*i)}, {P(xs[i])}, {P(xs[i])}, {P(Z2S+2*i)}"]
            else: seq += [f"v_pk_add_f32 {P(Z1S+2*i)}, {P(xs[i])}, {P(Z1S+2*i)}", f"v_pk_fma_f32 {P(Z2S+2*i)}, {P(xs[i])}, {P(xs[i])}, {P(Z2S+2*i)}"]
    NG = int(os.environ.get('NG', '60'))
    seq = seq[:g2start] + interleave(seq[g2start:g2start+NG], dlist) + seq[g2start+NG:]
    seq += ror_reduce([Z1S+i for i in range(8)] + [Z2S+i for i in range(8)], [GR+2*i for i in range(8)] + [GR+2*i+1 for i in range(8)])
    for i in range(8): seq.append(f"v_or_b32 v{GR+2*i+1}, 1, v{GR+2*i+1}")
    seq += [f"s_lshl_b32 s23, s6, 12", f"s_add_u32 s23, s23, {ST2}", "s_lshl_b32 s24, s5, 8", "s_add_u32 s24, s24, s23",
            "v_lshlrev_b32 v10, 6, v12", "v_lshl_add_u32 v11, v3, 8, v10",
            "v_cmp_eq_u32 vcc, 0, v3", f"v_mov_b32 v4, {BIG}", "s_nop 0", "v_cndmask_b32 v10, v4, v10, vcc",
            f"s_mul_i32 s22, s5, {144*4}", f"s_add_u32 s22, s22, {UV1}", "s_add_u32 s25, s22, 9216", "v_lshlrev_b32 v9, 4, v12", a.stamp(3)]
    gs = [VM(f"buffer_store_dwordx4 v[{GR+4*i}:{GR+4*i+3}], v10, s[8:11], s24 offen offset:{16*i} sc1", ("GS", i)) for i in range(4)]
    seq += gs
    U1 = 160
    uv1 = []
    for j in range(9):
        uv1.append(VM(f"buffer_load_dwordx4 v[{U1+8*j}:{U1+8*j+3}], v9, s[8:11], s22 offen offset:{64*j}", ("U1", j)))
        uv1.append(VM(f"buffer_load_dwordx4 v[{U1+8*j+4}:{U1+8*j+7}], v9, s[8:11], s25 offen offset:{64*j}", ("V1", j)))
    PL = 176; R1 = [200+i for i in range(8)]; R2 = [192+i for i in range(8)]
    pl = [f"buffer_load_dwordx4 v[{PL+4*i}:{PL+4*i+3}], v11, s[8:11], s23 offen offset:{16*i} sc1" for i in range(4)]
    bl = [VM("buffer_load_ushort v6, v5, s[36:39], s26 offen", "b0"), VM("buffer_load_ushort v7, v5, s[36:39], s26 offen offset:8", "b1")]
    chk = [f"v_min_u32 v4, v{PL+1}, v{PL+3}"] + [f"v_min_u32 v4, v4, v{PL+2*i+1}" for i in range(2, 8)] + ["v_cmp_eq_u32 vcc, 0, v4"]
    pollS = [WAIT([("PL", 3)])] + chk + ["s_mov_b32 s27, 0", "s_nop 3", "s_cbranch_vccz GM_S_GO", "GM_S_POLL:"] + pl + ["s_waitcnt vmcnt(0)"] + chk + \
            ["s_add_u32 s27, s27, 1", "s_cmp_ge_u32 s27, 0x80000", "s_cbranch_scc1 GM_S_GO", "s_nop 2", "s_cbranch_vccz GM_S_GO", f"s_sleep {SLP}", "s_branch GM_S_POLL", "GM_S_GO:", a.stamp(4)]
    nrm = ror_reduce([PL+i for i in range(16)], [(R1 if i % 2 == 0 else R2)[i//2] for i in range(16)])[1:]
    nrm += ln_finish(R1, R2, FH, 8, None)
    nrm += ["s_mul_i32 s26, s6, 9216", "v_add_u32 v8, 8192, v1"]
    nrm0 = nrm; nrm = []
    for j in range(9):
        for i in range(8): nrm.append(f"v_fma_f32 v{ACC2+8*j+i}, v{ACC2+8*j+i}, v{R2[i]}, v{R1[i]}")
        for i in range(4): nrm.append(f"v_cvt_pk_bf16_f32 v{ACC2+8*j+i}, v{ACC2+8*j+2*i}, v{ACC2+8*j+2*i+1}")
        nrm.append(VM(f"buffer_store_dwordx4 v[{ACC2+8*j}:{ACC2+8*j+3}], {['v1','v251','v8'][j//4]}, s[12:15], s26 offen offset:{1024*(j%4)} sc1", ("Z2", j)))
    KT = -1
    KP, KN0, KN1, JPK, KF = [int(x) for x in os.environ.get('P2', '21,23,25,2,32').split(',')]
    per = (len(nrm0) + (KN1-KN0) - 1) // (KN1-KN0)
    pb = "buffer_load_dword v11, v10, s[8:11], s23 offen sc1"
    flagprep = ["s_lshl_b32 s24, s6, 4", "s_add_u32 s24, s24, s5", "s_lshl_b32 s24, s24, 7", f"s_add_u32 s24, s24, {FLB}",
            "v_cmp_eq_u32 vcc, 0, v2", f"v_mov_b32 v13, {BIG}", "v_mov_b32 v5, 1", "v_cndmask_b32 v13, v13, 0, vcc"]
    ACC, B2V = 16, 88
    AV = [241, 243, 245, 247]
    aprep = ["v_lshrrev_b32 v4, 3, v2", "v_lshrrev_b32 v249, 2, v4", "v_lshlrev_b32 v249, 3, v249", "v_and_b32 v250, 3, v4", "v_add_u32 v249, v249, v250", "v_lshlrev_b32 v249, 12, v249",
            "v_lshrrev_b32 v4, 1, v4", "v_and_b32 v250, 7, v2", "v_xor_b32 v4, v4, v250",
            f"v_lshl_add_u32 v{AV[0]}, v4, 4, v249", "v_xor_b32 v4, 4, v4", f"v_lshl_add_u32 v{AV[1]}, v4, 4, v249", f"v_add_u32 v{AV[1]}, {65536-1024}, v{AV[1]}",
            f"v_add_u32 v{AV[2]}, {16384-2048}, v{AV[0]}", f"v_add_u32 v{AV[3]}, {16384-2048}, v{AV[1]}", "s_mov_b32 s21, s29"]
    aprep2 = ["v_lshrrev_b32 v4, 1, v3", "v_xor_b32 v4, v4, v12", "v_lshlrev_b32 v4, 4, v4", "v_lshl_add_u32 v4, v3, 7, v4",
            "v_add_u32 v249, s7, v4", "v_xor_b32 v250, 64, v249", "v_add_u32 v4, s30, v4", "v_xor_b32 v8, 64, v4"]
    PLACE = {"R0": ("s30", 0), "R1": ("s30", 4096), "R2": ("s30", 8192), "S0a": ("s7", 0), "S0b": ("s7", 4096), "S1a": ("s7", 36864), "S1b": ("s7", 36864+4096)}
    def a2_dma(Pp, pl):
        b, off = PLACE[pl]
        return [f"s_add_u32 m0, {b}, {off}", "s_nop 0"] + \
               [VM(f"buffer_load_dwordx4 v{AV[i]}, s[16:19], s21 offen offset:{1024*i} lds", ("A2", Pp, i)) for i in range(4)] + ["s_add_u32 s21, s21, 128"]
    def a2_rd(Pp, pl):
        b, off = PLACE[pl]
        regs = ("v4", "v8") if b == "s30" else ("v249", "v250")
        return [f"ds_read_b128 a[{8*((2*Pp+e) % 32)+4*t}:{8*((2*Pp+e) % 32)+4*t+3}], {regs[e]} offset:{off + t*2048}" for e in range(2) for t in range(2)]
    def a2tags(Pp): return [("A2", Pp, i) for i in range(4)]
    r1 = {22: [(0, "R0")], 23: [(1, "R1")], 24: [(2, "R2")], 30: [(3, "S0a")], 31: [(4, "S0b")], 32: [(5, "S1a")], 33: [(6, "S1b")], 34: [(7, "R0")], 35: [(8, "R1")]}
    rr1 = {31: [(0, "R0")], 32: [(1, "R1")], 33: [(2, "R2")], 34: [(3, "S0a")], 35: [(4, "S0b"), (5, "S1a")]}
    for kk in range(18, 36):
        ex = []; ne = []
        if kk == 19: ex = [VM("buffer_load_dword v10, v255, s[32:35], 0 offen", "CW2")]
        if kk == 18: ex = ["v_lshlrev_b32 v5, 1, v248", "s_lshl_b32 s26, s6, 6"] + bl
        if kk == 20: ex = aprep
        if kk == KP: ex = [VM(x, ("PL", i)) for i, x in enumerate(pl)]
        if kk == KN0: seq += pollS
        if KN0 <= kk < KN1: ex = nrm0[per*(kk-KN0):per*(kk-KN0+1)]
        if kk >= KN1: ex = nrm[13*JPK*(kk-KN1):13*JPK*(kk-KN1+1)]
        if kk == 30:
            assert not ex
            ex = aprep2 + flagprep + ["s_lshl_b32 s23, s3, 4", "s_add_u32 s23, s23, s5", "s_lshl_b32 s23, s23, 7", f"s_add_u32 s23, s23, {FLB}", "v_lshlrev_b32 v10, 13, v3"]
        if kk == KF: ex = [VM("buffer_store_dword v5, v13, s[8:11], s24 offen sc1", "FB")] + ex; ne = [("Z2", 8)]
        if kk in (31, 32, 33, 34): ex = ex + uv1[5*(kk-31):5*(kk-31)+5]
        for Pp, pl_ in r1.get(kk, []): ex = ex + a2_dma(Pp, pl_)
        for Pp, pl_ in rr1.get(kk, []): early[kk] = early.get(kk, []) + a2_rd(Pp, pl_); ne = ne + a2tags(Pp)
        if kk == 35: ex = [VM(pb, "PB")] + ex
        seq += kstep(kk, ex, ne)
    seq += [a.stamp(5)]
    TM1 = 232
    JF = int(os.environ.get('JF', '0'))
    def z1g(j):
        o = []
        xs = [ACC1 + j*8 + 2*i for i in range(4)]; ts = [TM1 + 2*i for i in range(4)]
        for i in range(4):
            o.append(f"v_pk_fma_f32 {P(ts[i])}, {P(U1+8*j+2*(i%2))}, {P(ZN[i//2])}, {P(U1+8*j+4+2*(i%2))} op_sel_hi:[1,0,1]")
        for i in range(4):
            o.append(f"v_pk_fma_f32 {P(xs[i])}, {P(xs[i])}, {P(ZR[i//2])}, {P(ts[i])} op_sel_hi:[1,0,1]")
        if j < JF: o += gelu_pairs(xs, ts)
        for i in range(4): o.append(f"v_cvt_pk_bf16_f32 v{U1+8*j+i}, v{xs[i]}, v{xs[i]+1}")
        return o
    def late_gelu(j, hf):
        xs = [(U1+8*j+4+i) if hf == 1 else (236+i) for i in range(4)]; ts = [232+i for i in range(4)]
        o = []
        for d in range(2): o += [f"v_lshlrev_b32 v{xs[2*d]}, 16, v{U1+8*j+2*hf+d}", f"v_and_b32 v{xs[2*d+1]}, 0xffff0000, v{U1+8*j+2*hf+d}"]
        for x, t in zip(xs, ts): o.append(f"v_mul_f32 v{t}, v{x}, v{x}")
        for x, t in zip(xs, ts): o.append(f"v_fma_f32 v{t}, v{t}, s40, v14")
        for x, t in zip(xs, ts): o.append(f"v_mul_f32 v{t}, v{t}, v{x}")
        for x, t in zip(xs, ts): o.append(f"v_exp_f32 v{t}, v{t}")
        for x, t in zip(xs, ts): o.append(f"v_add_f32 v{t}, 1.0, v{t}")
        for x, t in zip(xs, ts): o.append(f"v_rcp_f32 v{t}, v{t}")
        for i, (x, t) in enumerate(zip(xs, ts)): o.append(f"v_mul_f32 v{U1+8*j+4*hf+i}, v{x}, v{t}")
        return o
    def b2_group(k):
        T = (k+1)//4 + 2
        if T >= 15: return []
        p0, cnt = P0[k % 4]
        o = [f"s_add_u32 m0, s7, {(T % 3)*36864 + p0*1024}", "s_nop 0"]
        for i in range(cnt): o.append(VM(f"buffer_load_dwordx4 v1, s[12:15], s20 offen offset:{1024*i} sc1 lds", ("B2", T, p0+i)))
        o.append(f"s_add_u32 s20, s20, {cnt*1024 if k % 4 != 2 else 36864 - 7168}")
        return o
    def b2tags(T): return [("B2", T, p) for p in range(9)]
    def b2_reads(k):
        return [f"ds_read_b128 v[{B2V + (k%2)*36 + 4*j}:{B2V + (k%2)*36 + 4*j + 3}], v{SL + (k//4) % 3} offset:{(k%4)*9216 + j*1024}" for j in range(9)]
    seq += ["s_mov_b32 s20, s7", WAIT(a2tags(6) + [("V1", 8)])] + a2_rd(6, "S1b") + ["s_nop 3"]
    J2 = int(os.environ.get('J2', '4'))
    for j in range(J2): seq += z1g(j)
    seq += [WAIT(["PB"]), "v_cmp_eq_u32 vcc, 0, v11", "s_barrier", "s_waitcnt lgkmcnt(0)", "s_nop 2", "s_cbranch_vccz GM_B_GO"]
    resolve(pre + seq); emit(a, seq); pre2 = [VM("; ", x.tag) for x in seq if isinstance(x, VM) and x.tag[0] == "A2" and x.tag[1] >= 7]
    poll_loop(a, "GM_B", [pb], [11], None)
    a(a.stamp(6))
    seq = list(pre2)
    for k in range(-9, -5): seq += b2_group(k)
    fl = []
    for k in range(-5, -3): fl += b2_group(k)
    val = []
    for j in range(J2, 9): val += z1g(j)
    seq += interleave(val, fl)
    if Asm.STAMPS: seq += [a.stamp(7), "STAMPFLUSH"]
    seq += [f"v_lshlrev_b32 v{232+i}, 16, v{6 + i//4}" for i in range(8)]
    seq += [WAIT(b2tags(0)), "s_barrier"] + b2_reads(0)
    KA = 46
    RP = lambda Pp: 2 + ((KA-2)*(Pp-7))//24
    KT0 = 52
    rd_at = {RP(Pp): Pp for Pp in range(7, 32)}
    assert len(rd_at) == 25 and all(RP(p_) <= 2*p_-1 and RP(p_) >= 2*(p_-16)+2 for p_ in range(7, 32))
    dma_at = {2: 9}
    for Pp in range(10, 32): dma_at[RP(Pp-3)+1] = Pp
    def areg(k, t): return f"a[{8*(k%32)+4*t}:{8*(k%32)+4*t+3}]"
    def mf2(k, j, t, breg):
        r = ACC + (j*2+t)*4
        return f"{MF} v[{r}:{r+3}], v[{breg}:{breg+3}], {areg(k, t)}, {f'v[{232+4*t}:{235+4*t}]' if k == 0 else f'v[{r}:{r+3}]'}"
    g3prep = f"""
      s_and_b32 s32, s2, 7
      s_lshl_b32 s32, s32, 2
      s_lshr_b32 s33, s2, 3
      s_and_b32 s34, s33, 3
      s_add_u32 s32, s32, s34             ; mb
      s_lshr_b32 s33, s33, 2
      s_mul_i32 s33, s33, 9
      s_lshr_b32 s33, s33, 1              ; n0
      s_mul_i32 s35, s3, {18*36864}
      s_lshl_b32 s34, s33, 10
      s_add_u32 s35, s35, s34
      s_add_u32 s35, s35, {WOUTF}         ; W soffset (registers part)
      s_add_u32 s36, s35, {11*36864}      ; W soffset (lds part)
      s_mul_i32 s37, s3, 30720
      s_add_u32 s37, s37, 36864           ; lds W area""".split("\n")
    NWR = 11
    def w_reg(k): return 20*k if k < NWR else (20*(k-NWR) if k < 17 else 224)
    def w_loads(k, so="s35"):
        r = w_reg(k)
        return [VM(f"buffer_load_dwordx4 a[{r+4*j}:{r+4*j+3}], {'v1' if j < 4 else 'v251'}, s[8:11], {so} offen offset:{1024*(j%4)}", ("W", k, j)) for j in range(5)] + [f"s_add_u32 {so}, {so}, 36864"]
    def w_dma(k):
        o = [f"s_add_u32 m0, s37, {(k-NWR)*5120}", "s_nop 0"]
        o += [VM(f"buffer_load_dwordx4 v1, s[8:11], s36 offen offset:{1024*j} lds", ("W", k, j)) for j in range(4)]
        o += [f"s_add_u32 m0, s37, {(k-NWR)*5120 + 4096}", "s_nop 0", VM(f"buffer_load_dwordx4 v251, s[8:11], s36 offen lds", ("W", k, 4)), "s_add_u32 s36, s36, 36864"]
        return o
    apieces = {}
    for k0, Pp in dma_at.items():
        b, off = PLACE[f"R{(Pp-7) % 3}"]
        ks_ = [k0, k0, k0+1, k0+1] if (k0+1) not in dma_at else [k0]*4
        for i in range(4):
            gr = [f"s_add_u32 m0, {b}, {off}", VM(f"buffer_load_dwordx4 v{AV[i]}, s[16:19], s21 offen offset:{1024*i} lds", ("A2", Pp, i))]
            if i > 0 and ks_[i] == ks_[i-1]: gr = gr[1:]
            apieces.setdefault(ks_[i], []).append(gr)
            if i == 3: apieces[ks_[i]].append(["s_add_u32 s21, s21, 128"])
    CWK = [int(x) for x in os.environ.get('CWK', '1,9,17,25,33,41,49').split(',')]
    def t15_group(k):
        p0, cnt = P0[k % 4]
        o = [f"s_add_u32 m0, s7, {ALDS + p0*1024}"]
        for i in range(cnt): o.append(VM(f"buffer_load_dwordx4 v1, s[12:15], s21 offen offset:{1024*i} sc1 lds", ("B2", 15, p0+i)))
        o.append(f"s_add_u32 s21, s21, {cnt*1024}")
        return o
    tailprep = f"""
      v_add_u32 v4, {ALDS}, v1
      v_lshlrev_b32 v8, 3, v2
      s_lshr_b32 s22, s5, 1
      s_mul_i32 s22, s22, 9216
      s_mul_i32 s23, s6, {2*73728}
      s_add_u32 s22, s22, s23
      s_add_u32 s22, s22, {PF}
      s_and_b32 s23, s5, 1
      s_lshl_b32 s28, s23, 12
      s_add_u32 s28, s28, s22
      s_add_u32 s29, s28, 73728
      s_lshl_b32 s23, s23, 9
      s_add_u32 s30, s22, s23
      s_add_u32 s30, s30, 8192
      s_add_u32 s31, s30, 73728
      s_add_u32 s24, s24, {FLP-FLB}""".split("\n")
    TK = [52, 53, 54, 55, 60, 61, 62, 63, 56, 57, 58, 59]
    def ureg(u): return B2V + 24*(u % 3)
    def u_reads(u):
        if u >= 18: return []
        j, hf = divmod(u, 2)
        o = []
        for i, k in enumerate(TK[6*hf:6*hf+6]):
            ad = "v4" if k >= 60 else f"v{SL + (k//4) % 3}"
            o.append(f"ds_read_b128 v[{ureg(u)+4*i}:{ureg(u)+4*i+3}], {ad} offset:{(k%4)*9216 + j*1024}")
        return o
    lg = []
    for j in range(JF, 9): lg += late_gelu(j, 1) + late_gelu(j, 0)
    LG0, LG1 = 2, 44
    for k in range(KT0):
        need = []
        if k in rd_at: need += a2tags(rd_at[k])
        if k % 4 == 3: need += b2tags((k+1)//4)
        if k == KT0-1: need += b2tags(15)
        if k == 51: need += [("G", 3)]
        seq.append(WAIT(need, lgkm=True))
        if k % 4 == 3: seq.append("s_barrier")
        mm = [mf2(k, j, t, B2V + (k%2)*36 + 4*j) for j in range(9) for t in range(2)]
        ds = b2_reads(k+1) if k+1 < KT0 else u_reads(0)
        if k in rd_at: ds += a2_rd(rd_at[k], f"R{(rd_at[k]-7) % 3}")
        f = {0: b2_group(-3) + b2_group(-2), 1: b2_group(-1) + b2_group(0), 2: b2_group(1) + b2_group(2)}.get(k, None)
        if f is None: f = b2_group(k)
        f = f + [y for x in apieces.get(k, []) for y in x]
        if 47 <= k < 49: f = t15_group(2*k-47) + t15_group(2*k-46) + f
        if k in CWK: f += [VM("buffer_load_dword v11, v255, s[32:35], 0 offen", ("CW", k))]
        oth = []
        if k == 46: oth = [f"s_add_u32 s21, s7, {15*36864}"]
        if k == 48: oth = tailprep
        if k == 44: oth = ["s_lshr_b32 s42, s2, 5", "s_mul_i32 s42, s42, 9", "s_lshr_b32 s42, s42, 1", "s_lshl_b32 s42, s42, 7",
                           f"s_add_u32 s42, s42, {MODP + 5*576*8}", f"s_add_u32 s43, s42, {3456*8}", "v_lshlrev_b32 v9, 3, v2"]
        if k == 45: f += [VM(f"buffer_load_dwordx2 v[{232+2*i}:{233+2*i}], v9, s[8:11], s{42 + i%2} offen offset:{512*(i//2)}", ("G", i)) for i in range(4)]
        if k == 51: oth = ["v_add_f32 v14, v232, v234", "v_add_f32 v15, v236, v238", "v_cvt_pk_bf16_f32 v14, v14, v15", "v_and_b32 v15, 0xffff0000, v14", "v_lshlrev_b32 v14, 16, v14"]
        if k == 50: oth = g3prep
        if LG0 <= k < LG1: oth = oth + lg[len(lg)*(k-LG0)//(LG1-LG0):len(lg)*(k+1-LG0)//(LG1-LG0)]
        gs_, rest = vgroups(f)
        seq += sched(mm, ds, gs_, oth) + rest
    seq.append(a.stamp(0))
    def epi(j):
        o = []
        for t in range(2):
            x = ACC + (j*2+t)*4; z = U1 + 8*j + 4*t
            od = ACC + ((j & ~1)*2+t)*4
            for r in range(4): o.append(f"v_mul_f32 v{x+r}, v{x+r}, v{z+r}")
            for h in range(2): o.append(f"v_cvt_pk_bf16_f32 v{od + (j%2)*2 + h}, v{x+2*h}, v{x+2*h+1}")
            if j % 2 == 1: o.append(VM(f"buffer_store_dwordx4 v[{od}:{od+3}], v1, s[8:11], s{28+t} offen offset:{1024*(j//2)} sc1", ("PS", j, t)))
            if j == 8: o.append(VM(f"buffer_store_dwordx2 v[{od}:{od+1}], v8, s[8:11], s{30+t} offen sc1", ("PS", 9, t)))
        return o
    WT = [int(x) for x in os.environ.get('WT', '8,1,6').split(',')]
    wq = [w_loads(k) for k in range(0, NWR)] + [w_dma(k) for k in range(NWR, 17)] + [w_loads(17, "s36")]
    seq += [WAIT(b2tags(14), lgkm=True), "s_barrier"] + u_reads(1)
    for u in range(18):
        j, hf = divmod(u, 2)
        m_ = [mf2(k, j, t, ureg(u) + 4*i) for i, k in enumerate(TK[6*hf:6*hf+6]) for t in range(2)]
        if u > 0: seq.append(f"s_waitcnt lgkmcnt({6 if u < 17 else 0})")
        e = epi(j-1) if j >= 1 else []
        if hf == 0:
            seq += interleave(m_[:6], u_reads(u+2) if u < 16 else ["s_nop 1"]) + interleave(m_[6:], e)
        else:
            gs_, rest = vgroups(wq.pop(0) if j < WT[0] else [])
            seq += sched(m_, u_reads(u+2), gs_, vm_start=1) + rest
    seq += ["s_nop 7"] + epi(8) + ["s_barrier"]
    PV, LW = 240, 244
    seq += f"""
      s_mul_i32 s20, s32, {4*73728}
      s_mul_i32 s6, s3, {18*1024}
      s_add_u32 s20, s20, s6
      s_add_u32 s20, s20, {PF}            ; P soffset
      s_lshl_b32 s23, s32, 12
      s_lshl_b32 s6, s3, 9
      s_add_u32 s23, s23, s6
      s_add_u32 s23, s23, {FLP}           ; poll address
      v_and_b32 v10, 3, v2
      v_bfe_u32 v11, v2, 2, 1
      v_lshl_add_u32 v10, v11, 4, v10
      v_lshlrev_b32 v10, 7, v10
      v_add_u32 v249, s37, v1""".split("\n")
    for u in range(4):
        seq += [f"s_add_u32 s6, s3, {u}", "s_and_b32 s6, s6, 3", "s_mul_i32 s7, s6, 73728", f"v_add_u32 v{PV+u}, s7, v1"]
        if u > 0: seq += ["s_mul_i32 s7, s6, 15360", f"s_add_u32 s7, s7, {(u-1)*5120}", f"v_add_u32 v{LW+u}, s7, v1"]
    for _ in range(WT[1]): seq += wq.pop(0)
    seq += [a.stamp(1), WAIT([("PS", 9, 1)]), VM("buffer_store_dword v5, v13, s[8:11], s24 offen sc1", "FP"), a.stamp(2)]
    DEP = 6; AC3 = 16; PR = 96; XR, GB, GR_ = 192, 204, 96
    seq += [f"s_lshl_b32 s22, s32, 2", "s_add_u32 s22, s22, s3", "s_mul_i32 s25, s22, 18432", "s_lshl_b32 s24, s33, 9", "s_add_u32 s25, s25, s24", f"s_add_u32 s25, s25, {X1F}",
            "v_lshlrev_b32 v8, 4, v12"]
    xl = [VM(f"buffer_load_dwordx2 v[{XR+2*j}:{XR+1+2*j}], v9, s[8:11], s25 offen offset:{512*j}", ("X", j)) for j in range(5)]
    for _ in range(WT[2]): seq += wq.pop(0)
    for j in range(5):
        for r in range(4): seq.append(f"ds_bpermute_b32 v{GB+4*j+r}, v8, v{14 if j < 4 else 15} offset:{64*(j%4) + 4*r}")
        if j == 2: seq.append("s_waitcnt lgkmcnt(0)")
    resolve(seq)
    for it in seq:
        if it == "STAMPFLUSH": a.stamp_flush2(2, 8)
        else: emit(a, [it])
    a.srd(12, "out")
    poll_loop(a, "GM_P", ["buffer_load_dword v11, v10, s[8:11], s23 offen sc1"], [11], None)
    a(a.stamp(3))
    done = [VM("; ", x.tag) for x in seq if isinstance(x, VM) and x.tag[0] == "W"]
    def p_loads(k):
        if k >= 18: return []
        r = PR + (k % DEP)*16
        if k % 9 != 8: o = [VM(f"buffer_load_dwordx4 v[{r+4*u}:{r+4*u+3}], v{PV+u}, s[8:11], s20 offen offset:{1024*(k%4)} sc1", ("P", k, u)) for u in range(4)]
        else:
            o = []
            for u in range(4):
                o += [f"v_sub_u32 v11, v{PV+u}, v9", VM(f"buffer_load_dwordx2 v[{r+4*u}:{r+4*u+1}], v11, s[8:11], s20 offen offset:{1024*(k%4)} sc1", ("Ph", k, u)),
                      VM(f"buffer_load_dwordx2 v[{r+4*u+2}:{r+4*u+3}], v11, s[8:11], s20 offen offset:{1024*(k%4)+512} sc1", ("P", k, u))]
        if k % 4 == 3: o.append("s_add_u32 s20, s20, 4096")
        return o
    def w_rd(k): return [f"ds_read_b128 a[{w_reg(k)+4*j}:{w_reg(k)+4*j+3}], v249 offset:{(k-NWR)*5120 + 1024*j}" for j in range(5)]
    seq = list(done)
    for k in range(DEP-1): seq += p_loads(k)
    for k in range(18):
        kr = k + 4
        need = [("P", k, 3)] + ([("W", k, 4)] if (k < NWR or k == 17) else []) + ([("W", kr, 4)] if NWR <= kr < 17 else [])
        seq.append(WAIT(need, lgkm=(NWR <= k < 17)))
        if k == 0: seq.append(a.stamp(4))
        if k == 14: seq.append("s_barrier")
        r = PR + (k % DEP)*16
        mm = []
        for u in ((1, 2, 3, 0) if k == 17 else range(4)):
            for j in range(5):
                c = AC3 + (u*5+j)*4
                mm.append(f"{MF} v[{c}:{c+3}], a[{w_reg(k)+4*j}:{w_reg(k)+4*j+3}], v[{r+4*u}:{r+4*u+3}], {'0' if k == 0 else f'v[{c}:{c+3}]'}")
        f = p_loads(k+DEP-1) + (wq.pop(0) if wq else []) + (w_rd(kr) if NWR <= kr < 17 else []) + (xl if k == 13 else [])
        ds = [x for x in f if isinstance(x, str) and x.startswith("ds_")]
        gs_, rest = vgroups([x for x in f if not (isinstance(x, str) and x.startswith("ds_"))])
        if k < 17: seq += sched(mm, ds, gs_, vm_start=1) + rest
        else:
            wr = [f"ds_write_b128 v{LW+u}, v[{AC3+(u*5+j)*4}:{AC3+(u*5+j)*4+3}] offset:{1024*j}" for u in range(1, 4) for j in range(5)]
            seq += mm[:9] + interleave(mm[9:], wr[:11]) + [a.stamp(5), "s_mul_i32 s7, s3, 15360", "v_add_u32 v11, s7, v1"] + wr[11:]
    seq += ["v_mul_u32_u24 v4, 1152, v248",
            "v_lshl_add_u32 v4, v12, 3, v4", "s_lshr_b32 s25, s22, 1", f"s_mul_i32 s25, s25, {32*1152}", "s_and_b32 s26, s22, 1", f"s_mul_i32 s26, s26, {4*1152}",
            "s_add_u32 s25, s25, s26", "s_lshl_b32 s26, s33, 5", "s_add_u32 s25, s25, s26",
            "s_waitcnt lgkmcnt(0)", "s_barrier"]
    for i in range(15):
        c = AC3 + 20 + 4*i
        seq.append(f"ds_read_b128 v[{c}:{c+3}], v11 offset:{1024*i}")
        if i == 13: seq.append("s_waitcnt lgkmcnt(8)")
    seq += [WAIT([("X", 4)], lgkm=True)]
    for j in range(5):
        for h in range(2):
            x = AC3 + 4*j + 2*h
            seq += [f"v_pk_add_f32 {P(x)}, {P(x)}, {P(x+20)}", f"v_pk_add_f32 {P(x+40)}, {P(x+40)}, {P(x+60)}",
                    f"v_lshlrev_b32 v{x+20}, 16, v{XR+2*j+h}", f"v_and_b32 v{x+21}, 0xffff0000, v{XR+2*j+h}",
                    f"v_pk_add_f32 {P(x)}, {P(x)}, {P(x+40)}",
                    f"v_pk_fma_f32 {P(x)}, {P(x)}, {P(GB+4*j+2*h)}, {P(x+20)}",
                    f"v_cvt_pk_bf16_f32 v{XR+2*j+h}, v{x}, v{x+1}"]
        seq.append(VM(f"buffer_store_dwordx2 v[{XR+2*j}:{XR+1+2*j}], v4, s[12:15], s25 offen offset:{32*j}", ("O", j)))
    resolve(seq); emit(a, seq)
    a(a.stamp(6))
    a.stamp_end(3, 8)
    a("GM_END:\ns_endpgm\nGM_CODE_END:")
    a.desc("gm_kernel", 512, 256)
```

```python
from gen_common import *
K2_GRID = 256
CH_LDS = 25792; KCS = 4160; URO = 16640; URS = 4576; YO = 4*CH_LDS; YS = 9216
K2_LDS = YO + 4*YS

def gen_k2(a):
    a.begin("k2_kernel")
    a(f"s_cmp_ge_u32 s2, {K2_GRID}\ns_cbranch_scc1 K2_END")
    a(a.stamp(0))
    a.load_args()
    a("""
      v_lshrrev_b32 v1, 6, v0
      v_and_b32 v2, 63, v0                ; lane
      v_readfirstlane_b32 s3, v1          ; wave
      v_lshlrev_b32 v3, 4, v2             ; lane*16
      v_and_b32 v4, 15, v2                ; l&15
      v_lshrrev_b32 v5, 4, v2             ; g
      s_waitcnt lgkmcnt(0)
    """)
    a.srd(8, "ws")
    a("s_cmp_ge_u32 s3, 4\ns_cbranch_scc1 K2_WSP")
    a("s_cmp_ge_u32 s2, 252\ns_cbranch_scc1 K2_END")
    a("s_cmp_ge_u32 s2, 144\ns_cbranch_scc1 K2_REPACK")
    a(f"""
      s_and_b32 s4, s2, 7
      s_mul_i32 s4, s4, 18
      s_lshr_b32 s5, s2, 3
      s_add_u32 s4, s4, s5                ; cg
      s_lshl_b32 s5, s4, 2
      s_add_u32 s5, s5, s3                ; channel
      s_mul_i32 s6, s3, {CH_LDS}
    """)
    a.srd(12, "ssmk"); a.srd(16, "q")
    p = a.ptr("ssmD"); w = a.ptr("ws")
    a(f"""
      s_lshl_b32 s7, s4, 3
      s_load_dwordx2 s[20:21], s[{p}:{p+1}], s7
      s_lshl_b32 s7, s4, 4
      s_add_u32 s22, s7, {MOD}
      s_load_dwordx4 s[24:27], s[{w}:{w+1}], s22       ; sa
      s_add_u32 s22, s7, {MOD+576*4}
      s_load_dwordx4 s[28:31], s[{w}:{w+1}], s22       ; 1+ca
      s_add_u32 s22, s7, {MOD+2*576*4}
      s_load_dwordx4 s[32:35], s[{w}:{w+1}], s22       ; ga
      s_lshl_b32 s36, s5, 12
      s_lshl_b32 s37, s5, 13
      s_add_u32 s37, s37, {UR}
    """)
    for p_ in range(2):
        a(f"s_add_u32 m0, s6, {URO + p_*URS}")
        if p_ == 1: a("s_add_u32 s37, s37, 4096")
        else: a("s_nop 0")
        for i in range(4):
            a(f"buffer_load_dwordx4 v3, s[8:11], s37 offen offset:{1024*i} lds")
    for t in range(4):
        a(f"s_add_u32 m0, s6, {t*KCS + 60 - 4*t}\ns_nop 0")
        for i in range(4):
            a(f"buffer_load_dwordx4 v3, s[12:15], s36 offen offset:{1024*i} lds")
    a(f"""
      v_mul_u32_u24 v6, 1152, v0
      s_lshl_b32 s38, s4, 3
      v_lshlrev_b32 v7, 3, v0
      s_mov_b32 s39, {ST1}
    """)
    for i in range(8):
        a(f"buffer_load_dwordx2 v[{176+2*i}:{177+2*i}], v6, s[16:19], s38 offen")
        if i < 7: a(f"s_add_u32 s38, s38, {256*1152}")
    for i in range(8):
        a(f"buffer_load_dwordx2 v[{192+2*i}:{193+2*i}], v7, s[8:11], s39 offen offset:{2048*(i%2)}")
        if i % 2 == 1 and i < 7: a("s_add_u32 s39, s39, 4096")
    a(f"""
      v_mov_b32 v8, 0
      v_mov_b32 v9, 0
      v_mov_b32 v10, 0
      v_mov_b32 v11, 0
      v_mul_u32_u24 v12, {KCS}, v5
      v_lshl_add_u32 v12, v4, 2, v12
      v_add_u32 v12, s6, v12
      v_add_u32 v13, v4, v5
      v_lshrrev_b32 v14, 5, v2
      v_mul_u32_u24 v14, {URS}, v14
      v_and_b32 v15, 31, v2
      v_lshl_add_u32 v14, v15, 4, v14
      v_add_u32 v14, s6, v14
      v_cmp_gt_u32 vcc, 15, v13
      s_and_saveexec_b64 s[40:41], vcc
      ds_write_b32 v12, v8
      s_mov_b64 exec, s[40:41]
      v_cmp_gt_u32 vcc, 28, v15
      s_and_saveexec_b64 s[40:41], vcc
      ds_write_b128 v14, v[8:11] offset:{URO+4096}
      s_mov_b64 exec, s[40:41]
    """)
    a(f"""
      v_and_b32 v12, 3, v4
      v_mul_u32_u24 v12, {KCS}, v12
      v_lshrrev_b32 v13, 2, v4
      v_add_u32 v13, v13, v5
      v_lshl_add_u32 v12, v13, 4, v12
      v_add_u32 v12, s6, v12
      v_lshrrev_b32 v13, 3, v4            ; p
      v_mul_u32_u24 v13, {URS}, v13
      v_lshl_add_u32 v13, v5, 4, v13
      v_and_b32 v14, 7, v4                ; a'
      v_lshlrev_b32 v14, 6, v14
      v_sub_u32 v13, v13, v14
      s_add_u32 s7, s6, {URO + 448}
      v_add_u32 v13, s7, v13
    """)
    a("""
      s_waitcnt lgkmcnt(0)
      s_cmp_ge_u32 s3, 2
      s_cselect_b32 s7, s21, s20
      s_and_b32 s22, s3, 1
      s_lshl_b32 s22, s22, 4
      s_lshr_b32 s7, s7, s22
      s_and_b32 s7, s7, 0xffff
      v_mov_b32 v15, s7
      v_lshl_add_u32 v14, v5, 2, v4       ; m + 4g
    """)
    for dd in range(4):
        a(f"v_cmp_eq_u32 vcc, {15-dd}, v14\ns_nop 1\nv_cndmask_b32 v{8+dd}, 0, v15, vcc")
    ACC = 16; FR = [48, 112]
    def reads(buf, r):
        out = []
        for i in range(8):
            out.append(f"ds_read_b128 v[{FR[buf]+32+4*i}:{FR[buf]+35+4*i}], v13 offset:{64*r + 512*(7-i)}")
            out.append(f"ds_read_b128 v[{FR[buf]+4*i}:{FR[buf]+3+4*i}], v12 offset:{64*r + 512*i}")
        return out
    def mfmas(buf):
        out = []
        for p_ in range(8):
            for q_ in range(8 - p_):
                j = p_ + q_
                out.append(f"v_mfma_f32_16x16x32_bf16 v[{ACC+4*j}:{ACC+4*j+3}], v[{FR[buf]+4*p_}:{FR[buf]+4*p_+3}], v[{FR[buf]+32+4*q_}:{FR[buf]+35+4*q_}], v[{ACC+4*j}:{ACC+4*j+3}]")
        return out
    a(a.stamp(1))
    a("s_waitcnt vmcnt(16)")
    a(a.stamp(2))
    for x in reads(0, 0): a(x)
    a("s_waitcnt lgkmcnt(0)")
    for q_ in range(8):
        a(f"v_mfma_f32_16x16x32_bf16 v[{ACC+4*q_}:{ACC+4*q_+3}], v[8:11], v[{FR[0]+32+4*q_}:{FR[0]+35+4*q_}], 0")
    a("s_mov_b32 s7, 0\nK2_CLOOP:")
    for x in interleave(mfmas(0), reads(1, 1), per=1): a(x)
    a("s_waitcnt lgkmcnt(0)")
    for x in interleave(mfmas(1), reads(0, 2), per=1): a(x)
    a("""
      v_add_u32 v12, 128, v12
      v_add_u32 v13, 128, v13
      s_add_u32 s7, s7, 1
      s_cmp_lt_u32 s7, 4
      s_waitcnt lgkmcnt(0)
      s_cbranch_scc1 K2_CLOOP
    """)
    a(a.stamp(3))
    a(f"""
      v_and_b32 v14, 7, v4
      v_mul_u32_u24 v14, 144, v14
      v_lshl_add_u32 v14, v5, 5, v14
      v_lshrrev_b32 v15, 3, v4
      v_lshl_add_u32 v14, v15, 4, v14
      s_mul_i32 s7, s3, {YS}
      s_add_u32 s7, s7, {YO}
      v_add_u32 v14, s7, v14
      s_nop 4
    """)
    for j in range(8):
        a(f"ds_write_b128 v14, v[{ACC+4*j}:{ACC+4*j+3}] offset:{j*8*144}")
    a(f"""
      v_lshrrev_b32 v12, 5, v0
      v_mul_u32_u24 v13, 144, v12
      v_and_b32 v14, 24, v0
      v_and_b32 v15, 1, v0
      v_lshl_add_u32 v14, v15, 2, v14
      v_bfe_u32 v15, v0, 1, 2
      v_add_u32 v14, v14, v15
      v_lshl_add_u32 v13, v14, 2, v13
      v_add_u32 v13, {YO}, v13
      v_mul_u32_u24 v12, 36864, v12
      v_bfe_u32 v14, v0, 2, 1
      v_mul_u32_u24 v14, 18432, v14
      v_add_u32 v12, v12, v14
      v_bfe_u32 v14, v0, 3, 2
      v_lshl_add_u32 v12, v14, 5, v12
      v_and_b32 v14, 3, v0
      v_lshl_add_u32 v12, v14, 3, v12
      s_lshl_b32 s7, s4, 7
      s_add_u32 s7, s7, {X1F}
    """)
    for c in range(4): a(f"v_mov_b32 v{8+c}, s{24+c}")
    a("s_waitcnt lgkmcnt(0)\ns_barrier")
    a(a.stamp(4))
    for half in range(2):
        for i in range(4*half, 4*half+4):
            for c in range(4):
                a(f"ds_read_b32 v{48+4*i+c}, v13 offset:{c*YS + i*8*144}")
        if half == 0: a("s_waitcnt lgkmcnt(0)")
    a("s_waitcnt vmcnt(0)")
    for i in range(8):
        if i == 4: a("s_waitcnt lgkmcnt(0)")
        q0, q1 = 176+2*i, 177+2*i
        st = f"v[{192+2*i}:{193+2*i}]"
        t = 96 + 8*(i%2)
        a(f"""
          v_lshlrev_b32 v{t}, 16, v{q0}
          v_and_b32 v{t+1}, 0xffff0000, v{q0}
          v_lshlrev_b32 v{t+2}, 16, v{q1}
          v_and_b32 v{t+3}, 0xffff0000, v{q1}
          v_pk_fma_f32 v[{t+4}:{t+5}], v[{t}:{t+1}], {st}, {st} op_sel:[0,0,1] op_sel_hi:[1,0,1]
          v_pk_fma_f32 v[{t+6}:{t+7}], v[{t+2}:{t+3}], {st}, {st} op_sel:[0,0,1] op_sel_hi:[1,0,1]
          v_pk_fma_f32 v[{t+4}:{t+5}], v[{t+4}:{t+5}], s[28:29], v[8:9]
          v_pk_fma_f32 v[{t+6}:{t+7}], v[{t+6}:{t+7}], s[30:31], v[10:11]
          v_pk_mul_f32 v[{t+4}:{t+5}], v[{t+4}:{t+5}], v[{48+4*i}:{49+4*i}]
          v_pk_mul_f32 v[{t+6}:{t+7}], v[{t+6}:{t+7}], v[{50+4*i}:{51+4*i}]
          v_pk_fma_f32 v[{t+4}:{t+5}], v[{t+4}:{t+5}], s[32:33], v[{t}:{t+1}]
          v_pk_fma_f32 v[{t+6}:{t+7}], v[{t+6}:{t+7}], s[34:35], v[{t+2}:{t+3}]
          v_cvt_pk_bf16_f32 v{q0}, v{t+4}, v{t+5}
          v_cvt_pk_bf16_f32 v{q1}, v{t+6}, v{t+7}
          buffer_store_dwordx2 v[{q0}:{q1}], v12, s[8:11], s7 offen
        """)
        if i < 7: a(f"s_add_u32 s7, s7, {8*36864}")
    a(a.stamp(5))
    a.stamp_end(1, 7)
    a("s_endpgm")

    a("K2_WSP:")
    a.srd(12, "wsp")
    a(f"""
      s_lshr_b32 s4, s2, 2                ; blk
      s_and_b32 s5, s2, 3
      s_lshl_b32 s5, s5, 2
      s_add_u32 s5, s5, s3
      s_sub_u32 s5, s5, 4                 ; ks/4
      v_lshrrev_b32 v6, 2, v4
      v_lshlrev_b32 v6, 3, v6
      v_and_b32 v7, 3, v4
      v_add_u32 v6, v6, v7
      v_lshlrev_b32 v6, 12, v6
      v_lshl_add_u32 v6, v5, 4, v6        ; + g*16
      v_add_u32 v7, 16384, v6             ; tau=1
      s_lshl_b32 s6, s4, 17               ; blk*32*4096
      s_lshl_b32 s7, s5, 8
      s_add_u32 s7, s7, s6
      s_lshl_b32 s16, s5, 13
      s_add_u32 s16, s16, s6
      s_add_u32 s16, s16, {WSPF}
      v_add_u32 v8, 4096, v3
    """)
    for kk in range(4):
        for t in range(2):
            r = 16 + (kk*2+t)*4
            a(f"buffer_load_dwordx4 v[{r}:{r+3}], {['v6','v7'][t]}, s[12:15], s7 offen offset:{64*kk}")
    for i in range(8):
        r = 16 + 4*i
        a(f"s_waitcnt vmcnt(7)")
        a(f"buffer_store_dwordx4 v[{r}:{r+3}], {['v3','v8'][i//4]}, s[8:11], s16 offen offset:{1024*(i%4)}")
        if i == 0: a(a.stamp(1))
    a.stamp_end(1, 3)
    a("s_endpgm")

    a("K2_REPACK:")
    a("""
      v_lshrrev_b32 v6, 3, v2
      v_and_b32 v7, 7, v2
      v_and_b32 v8, 6, v6                 ; ((row>>1)&3)<<1
      v_xor_b32 v7, v7, v8
      v_lshlrev_b32 v7, 4, v7             ; chunk*16
      v_lshrrev_b32 v9, 2, v2
      v_lshlrev_b32 v9, 7, v9
      v_and_b32 v10, 3, v6
      v_xor_b32 v10, s3, v10
      v_lshl_add_u32 v9, v10, 5, v9
      v_and_b32 v10, 3, v2
      v_lshl_add_u32 v9, v10, 3, v9
      s_mul_i32 s6, s3, 18432
      s_cmp_ge_u32 s2, 216
      s_cbranch_scc1 K2_WOUT
    """)
    a.srd(12, "win")
    TB = 73728
    a(f"""
      s_sub_u32 s4, s2, 144               ; unit
      v_mul_u32_u24 v11, 9216, v6
      v_add_u32 v11, v11, v7
      s_mul_i32 s7, s3, {144*9216}
      s_lshl_b32 s5, s4, 7
      s_add_u32 s7, s7, s5
      s_lshl_b32 s16, s3, 10
      s_add_u32 s17, s16, {MOD + 4*576*4}
      s_add_u32 s16, s16, {TB}
      s_cmp_eq_u32 s3, 3
      s_cselect_b32 s17, {MODH + 3*576*2}, s17
      s_mov_b32 m0, s16
      s_nop 0
      buffer_load_dwordx4 v3, s[8:11], s17 offen lds
      s_cbranch_scc0 K2_WIN_T
      buffer_load_dwordx4 v3, s[8:11], s17 offen offset:1024 lds
    K2_WIN_T:
    """)
    for i in range(18):
        a(f"s_add_u32 m0, s6, {1024*i}\ns_nop 0")
        a(f"buffer_load_dwordx4 v11, s[12:15], s7 offen lds")
        if i < 17: a(f"s_add_u32 s7, s7, {8*9216}")
    a(f"""
      s_lshl_b32 s16, s4, 2
      s_add_u32 s16, s16, s3              ; fc
      s_cmp_ge_u32 s16, 144
      s_cselect_b32 s17, 144, 0
      s_cselect_b32 s18, 0, {18*9216}
      s_cselect_b32 s23, 1, 0             ; is z2
      s_sub_u32 s16, s16, s17             ; fcl
      s_mul_i32 s19, s16, 7282
      s_lshr_b32 s19, s19, 16             ; nt
      s_mul_i32 s20, s19, 9
      s_sub_u32 s20, s16, s20             ; j
      s_mul_i32 s19, s19, {36*9216}
      s_lshl_b32 s20, s20, 10
      s_add_u32 s19, s19, s20
      s_add_u32 s19, s19, s18
      s_add_u32 s19, s19, {WINF}
      v_lshlrev_b32 v12, 4, v5
      v_add_u32 v12, {TB}, v12
      v_lshlrev_b32 v13, 3, v5
      v_add_u32 v13, {TB+3072}, v13
      v_mov_b32 v14, 0                    ; u
      v_mov_b32 v15, 0                    ; v
      s_mov_b32 s21, 0x3f803f80
      s_mov_b32 s22, 0
      s_waitcnt vmcnt(0)
      {a.stamp(1)}
      s_barrier
      {a.stamp(2)}
    K2_WIN_L:
      ds_read_b64_tr_b16 v[16:17], v9
      ds_read_b64_tr_b16 v[18:19], v9 offset:2048
      ds_read_b128 v[20:23], v12
      ds_read_b128 v[24:27], v12 offset:64
      ds_read_b64 v[28:29], v13
      ds_read_b64 v[30:31], v13 offset:32
      v_add_u32 v9, 4096, v9
      v_add_u32 v12, 128, v12
      v_add_u32 v13, 64, v13
      s_waitcnt lgkmcnt(0)
    """)
    for dd in range(4):
        a(f"v_lshlrev_b32 v{32+2*dd}, 16, v{16+dd}\nv_and_b32 v{33+2*dd}, 0xffff0000, v{16+dd}")
    for dd in range(4):
        a(f"v_dot2c_f32_bf16 v15, v{16+dd}, v{28+dd}")
    for dd in range(4):
        a(f"v_pk_mul_f32 v[{32+2*dd}:{33+2*dd}], v[{32+2*dd}:{33+2*dd}], v[{20+2*dd}:{21+2*dd}]")
    for dd in range(4):
        a(f"v_cvt_pk_bf16_f32 v{40+dd}, v{32+2*dd}, v{33+2*dd}")
    a("buffer_store_dwordx4 v[40:43], v3, s[8:11], s19 offen")
    for dd in range(4):
        a(f"v_dot2c_f32_bf16 v14, s21, v{40+dd}")
    a(f"""
      s_add_u32 s19, s19, 9216
      s_add_u32 s22, s22, 1
      s_cmp_lt_u32 s22, 18
      s_cbranch_scc1 K2_WIN_L
      s_nop 2
    """)
    for sw in ("16", "32"):
        a(f"""
          v_mov_b32 v16, v14
          v_mov_b32 v17, v15
          s_nop 1
          v_permlane{sw}_swap_b32 v14, v16
          v_permlane{sw}_swap_b32 v15, v17
          s_nop 1
          v_add_f32 v14, v14, v16
          v_add_f32 v15, v15, v17
        """)
    a(f"""
      v_lshlrev_b32 v16, 2, v4
      v_lshlrev_b32 v17, 3, v4
      v_cmp_gt_u32 vcc, 16, v2
      s_and_saveexec_b64 s[40:41], vcc
      s_cmp_eq_u32 s23, 1
      s_cbranch_scc1 K2_WIN_Z2
      s_lshl_b32 s16, s16, 6
      s_add_u32 s16, s16, {UV1}
      buffer_store_dword v14, v16, s[8:11], s16 offen
      s_add_u32 s16, s16, 9216
      buffer_store_dword v15, v16, s[8:11], s16 offen
    """)
    a.stamp_end(1, 4)
    a(f"""
      s_endpgm
    K2_WIN_Z2:
      s_lshl_b32 s16, s16, 7
      s_add_u32 s16, s16, {UV2}
      buffer_store_dwordx2 v[14:15], v17, s[8:11], s16 offen
    """)
    a.stamp_end(1, 4)
    a("s_endpgm")
    a("K2_WOUT:")
    a.srd(12, "wout")
    a(f"""
      s_sub_u32 s4, s2, 216               ; unit 0..35
      s_mul_i32 s5, s4, 7282
      s_lshr_b32 s5, s5, 16               ; kq
      s_mul_i32 s16, s5, 9
      s_sub_u32 s4, s4, s16               ; cblk
      v_mul_u32_u24 v11, 1152, v6
      v_add_u32 v11, v11, v7
      s_lshl_b32 s7, s5, 2
      s_add_u32 s7, s7, s3
      s_mul_i32 s7, s7, {144*1152}
      s_lshl_b32 s16, s4, 7
      s_add_u32 s7, s7, s16
    """)
    for i in range(18):
        a(f"s_add_u32 m0, s6, {1024*i}\ns_nop 0")
        a(f"buffer_load_dwordx4 v11, s[12:15], s7 offen lds")
        if i < 17: a(f"s_add_u32 s7, s7, {8*1152}")
    a(f"""
      s_mul_i32 s19, s5, {18*36864}
      s_lshl_b32 s16, s4, 2
      s_add_u32 s16, s16, s3
      s_lshl_b32 s16, s16, 10
      s_add_u32 s19, s19, s16
      s_add_u32 s19, s19, {WOUTF}
      v_add_u32 v10, {288*128}, v9
      s_waitcnt vmcnt(0)
      {a.stamp(1)}
      s_barrier
      {a.stamp(2)}
    """)
    for q_ in range(2):
        base = ['v9', 'v10'][q_]
        for i in range(9):
            b1, b2 = (32*i, 32*i+16) if i < 4 else ((144+32*(i-4), 144+32*(i-4)+16) if i < 8 else (128, 272))
            r = 16 + 4*i
            a(f"ds_read_b64_tr_b16 v[{r}:{r+1}], {base} offset:{b1*128}")
            a(f"ds_read_b64_tr_b16 v[{r+2}:{r+3}], {base} offset:{b2*128}")
            if i == 6: a("s_waitcnt lgkmcnt(0)")
        a("s_waitcnt lgkmcnt(0)")
        for i in range(9):
            r = 16 + 4*i
            a(f"buffer_store_dwordx4 v[{r}:{r+3}], v3, s[8:11], s19 offen")
            a("s_add_u32 s19, s19, 36864")
        if q_ == 0: a("s_waitcnt vmcnt(0)")
    a.stamp_end(1, 4)
    a("K2_END:\ns_endpgm")
    a.desc("k2_kernel", 208, 208)
```

```python
from gen_common import *
from gen_g import *
P = lambda r: f"v[{r}:{r+1}]"
BIG = 0x7fffff00

def poll_loop(a, name, loads, regs, tmp):
    a(f"s_mov_b32 s27, 0\n{name}_POLL:")
    for x in loads: a(x)
    a("s_waitcnt vmcnt(0)")
    if len(regs) == 1: a(f"v_cmp_eq_u32 vcc, 0, v{regs[0]}")
    else:
        a(f"v_min_u32 v{tmp}, v{regs[0]}, v{regs[1]}")
        for r in regs[2:]: a(f"v_min_u32 v{tmp}, v{tmp}, v{r}")
        a(f"v_cmp_eq_u32 vcc, 0, v{tmp}")
    a(f"""
      s_add_u32 s27, s27, 1
      s_cmp_ge_u32 s27, 0x80000
      s_cbranch_scc1 {name}_GO
      s_nop 2
      s_cbranch_vccz {name}_GO
      s_sleep {SLP}
      s_branch {name}_POLL
    {name}_GO:
    """)

def gen_gm(a):
    a.begin("gm_kernel")
    a("s_cmp_ge_u32 s2, 256\ns_cbranch_scc1 GM_END")
    a(a.stamp(0))
    a.load_args()
    tile_ids(a)
    SL = 252
    a(f"""
      s_mul_i32 s20, s5, {36*9216}
      s_add_u32 s20, s20, s7
      s_add_u32 s20, s20, {WINF}
      s_mul_i32 s21, s6, 36864
      s_add_u32 s21, s21, {X1F}           ; A soffset
      s_mul_i32 s30, s3, 12288
      s_add_u32 s30, s30, {3*36864}
      v_lshl_add_u32 v13, v2, 3, s30
      v_add_u32 v8, {18432-1024}, v1
      s_mul_i32 s28, s5, {64*9216}
      s_add_u32 s28, s28, {Z2F}
      s_lshl_b32 s29, s6, 17
      s_waitcnt lgkmcnt(0)
    """)
    a.srd(8, "ws")
    AB, BB = 0, 144
    ACC2, ACC1, ST = 16, 88, 160
    ALDS = 3*36864
    def a_dma(ks):
        if ks >= 18: return []
        o = [f"s_add_u32 m0, s30, {(ks % 6)*2048}", "s_nop 0",
             VM(f"buffer_load_dwordx4 v1, s[8:11], s21 offen lds", ("A", ks, 0)),
             VM(f"buffer_load_dwordx4 v8, s[8:11], s21 offen offset:1024 lds", ("A", ks, 1)),
             "s_add_u32 s21, s21, 1024"]
        return o
    def a_reads(ks):
        if ks >= 18: return []
        return [f"ds_read_b64 a[{AB+(ks*2+t)*4+2*h}:{AB+(ks*2+t)*4+2*h+1}], v13 offset:{(ks % 6)*2048 + t*1024 + h*512}" for t in range(2) for h in range(2)]
    def atags(ks): return [("A", ks, t) for t in range(2)] if ks < 18 else []
    def b1_group(k):
        T = (k+1)//4 + 2
        if T >= 9: return []
        p0, cnt = P0[k % 4]
        o = [f"s_add_u32 m0, s7, {(T % 3)*36864 + p0*1024}", "s_nop 0"]
        for i in range(cnt): o.append(VM(f"buffer_load_dwordx4 v1, s[8:11], s20 offen offset:{1024*i} lds", ("B", T, p0+i)))
        o.append(f"s_add_u32 s20, s20, {cnt*1024 if k % 4 != 2 else 36864 - 7168}")
        return o
    def b1_reads(k):
        return [f"ds_read_b128 a[{BB + (k%2)*36 + 4*j}:{BB + (k%2)*36 + 4*j + 3}], v{SL + (k//4) % 3} offset:{(k%4)*9216 + j*1024}" for j in range(9)]
    seq = []
    seq += a_dma(0)
    for k in range(-9, -5): seq += b1_group(k)
    for ks in range(1, 4): seq += a_dma(ks)
    seq += ["s_getpc_b64 s[32:33]", "GM_PC:", "s_sub_u32 s32, s32, GM_PC-gm_kernel", "s_subb_u32 s33, s33, 0", "s_and_b32 s33, s33, 0xffff",
            "s_mov_b32 s34, GM_CODE_END-gm_kernel", "s_mov_b32 s35, 0x20000", "s_lshr_b32 s31, s2, 3", "s_lshl_b32 s31, s31, 7",
            "v_lshlrev_b32 v255, 12, v0", "v_add_u32 v255, s31, v255", VM("buffer_load_dword v11, v255, s[32:35], 0 offen", "CW")]
    resolve(seq); emit(a, seq); pre = seq; seq = []
    NPB = int(os.environ.get('NPB', '2'))
    late_pro = []
    for k in range(-5, -5+NPB): late_pro += b1_group(k)
    e0 = []
    for k in range(-5+NPB, -1): e0 += b1_group(k)
    early = {0: e0 + a_dma(4) + (a_dma(5) + b1_group(-1) if NPB >= 2 else []), 1: (a_dma(5) + b1_group(-1) if NPB < 2 else []) + a_dma(6) + b1_group(0) + b1_group(1)}
    a.srd(12, "ws", 64*9216, "s28"); a.srd(16, "wsp"); a.srd(36, "bsp")
    a(f"""
      v_mov_b32 v{SL}, v1
      v_add_u32 v{SL+1}, 36864, v1
      v_add_u32 v{SL+2}, {2*36864}, v1
      v_mov_b32 v4, 0x3f803f80
      v_mov_b32 v5, 0x3f803f80
      v_mov_b32 v6, 0x3f803f80
      v_mov_b32 v7, 0x3f803f80
      s_mov_b32 s40, {float_hex(C1)}
      s_mov_b32 s41, {float_hex(C1)}
      v_mov_b32 v14, {float_hex(C0)}
      v_mov_b32 v15, {float_hex(C0)}
      s_mul_i32 s22, s5, {144*8}
      s_add_u32 s22, s22, {UV2}
      v_lshlrev_b32 v9, 3, v3             ; n*8
      v_lshrrev_b32 v248, 2, v3
      v_lshlrev_b32 v248, 3, v248
      v_and_b32 v249, 3, v3
      v_add_u32 v248, v248, v249
      v_add_u32 v251, 4096, v1
    """)
    seq += late_pro + [WAIT(btags(0)), "s_barrier", a.stamp(1)]
    seq += a_reads(0) + b1_reads(0)
    def kstep(kk, extra=[], need_extra=[]):
        ks = kk % 18; ps = kk // 18
        o = []
        need = (atags(ks+1) if ps == 0 else []) + need_extra
        bar = (kk % 4 == 3 and kk < 35)
        if bar: need = need + btags((kk+1)//4)
        o.append(WAIT(need, lgkm=True))
        if bar: o.append("s_barrier")
        m = []
        for j in range(9):
            for t in range(2):
                A = f"a[{AB+(ks*2+t)*4}:{AB+(ks*2+t)*4+3}]"
                B = f"a[{BB+(kk%2)*36+4*j}:{BB+(kk%2)*36+4*j+3}]"
                r = (ACC2 if ps == 0 else ACC1) + (j*2+t)*4
                C = "0" if ks == 0 else f"v[{r}:{r+3}]"
                m.append(f"{MF} v[{r}:{r+3}], {A}, {B}, {C}" if ps == 0 else f"{MF} v[{r}:{r+3}], {B}, {A}, {C}")
        if ps == 0 and ('nostat' not in X or ks == 0):
            for t in range(2):
                A = f"a[{AB+(ks*2+t)*4}:{AB+(ks*2+t)*4+3}]"
                r = ST + 4*t
                m.append(f"{MF} v[{r}:{r+3}], {A}, v[4:7], {'0' if ks == 0 else f'v[{r}:{r+3}]'}")
                r = ST + 8 + 4*t
                m.append(f"{MF} v[{r}:{r+3}], {A}, {A}, {'0' if ks == 0 else f'v[{r}:{r+3}]'}")
        f = (a_reads(kk+1) if ps == 0 else []) + (b1_reads(kk+1) if kk < 35 else []) + early.get(kk, []) + (a_dma(kk+5) + (b1_group(kk) if not (int(os.environ.get('DL0', '18')) <= kk < 18) else []) if kk >= 2 else []) + extra
        if 'nosch' in X: return o + interleave(m, f)
        ds = [x for x in f if isinstance(x, str) and x.startswith("ds_")]
        base = [x for x in f[:len(f)-len(extra)] if not (isinstance(x, str) and x.startswith("ds_"))]
        if any(isinstance(x, str) and x.startswith("v_") for x in extra):
            gs_, rest = vgroups(base)
            mo = [i for i, x in enumerate(extra) if isinstance(x, str) and "m0" in x]
            cut = mo[0] if mo else len(extra)
            g2_, rest2 = vgroups(rest + extra[cut:])
            o += sched(m, ds, gs_ + g2_, extra[:cut]) + rest2
        else:
            gs_, rest = vgroups(base + extra)
            o += sched(m, ds, gs_) + rest
        return o
    UV = 176; WS = 216
    uv2 = [VM(f"buffer_load_dwordx2 v[{UV+2*j}:{UV+2*j+1}], v9, s[8:11], s22 offen offset:{128*j}", ("UV2", j)) for j in range(9)]
    for kk in range(18):
        ex = []
        ne = []
        if kk == 14: ex = uv2[:5]
        if kk == 15: ex = uv2[5:]
        seq += kstep(kk, ex, ne)
    seq += [a.stamp(2), "v_mul_u32_u24 v10, 80, v12", "s_nop 7"]
    for t in range(2):
        for r in range(4):
            seq.append(f"ds_bpermute_b32 v{ST+8+4*t+r}, v10, v{ST+8+4*t+r} offset:{4*r}")
    seq.append("s_waitcnt lgkmcnt(0)")
    s1 = [ST+i for i in range(8)]; s2 = [ST+8+i for i in range(8)]
    seq += ln_finish(s1, s2, 576, 8, None)
    ZR = [240, 244]; ZN = [242, 246]
    seq += ["v_and_b32 v10, 3, v3", "v_lshrrev_b32 v11, 2, v3", "v_lshl_add_u32 v11, v11, 4, v3", "v_lshlrev_b32 v11, 2, v11"]
    for t in range(2):
        seq += [f"v_mov_b32 v{ZR[t]}, v{ST+8+4*t}", f"v_mov_b32 v{ZN[t]}, v{ST+4*t}"]
    for r in range(1, 4):
        seq += [f"v_cmp_eq_u32 vcc, {r}, v10", "s_nop 1"]
        for t in range(2):
            seq += [f"v_cndmask_b32 v{ZR[t]}, v{ZR[t]}, v{ST+8+4*t+r}, vcc", f"v_cndmask_b32 v{ZN[t]}, v{ZN[t]}, v{ST+4*t+r}, vcc"]
    for r in ZR + ZN: seq.append(f"ds_bpermute_b32 v{r}, v11, v{r}")
    seq.append(WAIT([("UV2", j) for j in range(9)]))
    touch = ["v_lshlrev_b32 v13, 12, v12", "v_lshl_add_u32 v13, v3, 4, v13", "s_lshl_b32 s31, s5, 8", "s_add_u32 s31, s31, s29"]
    for i in range(8):
        touch += [VM(f"buffer_load_dwordx4 a[{WS+4*i}:{WS+4*i+3}], v13, s[16:19], s31 offen {'nt' if 'tnt' in X else ''}", ("WL", i)), "s_add_u32 s31, s31, 16384"]
    DL0 = int(os.environ.get('DL0', '18'))
    dlist = []
    for kk in range(DL0, 18): dlist += b1_group(kk)
    dlist += touch
    g2start = len(seq)
    Z1S, Z2S, TMP, GR = 196, 204, 212, 220
    for j in range(9):
        xs = [ACC2 + j*8 + 2*i for i in range(4)]; ts = [TMP + 2*i for i in range(4)]
        uv = P(UV + 2*j)
        seq.append(f"v_mov_b32 v194, v{UV+2*j+1}")
        for i in range(4): seq.append(f"v_pk_fma_f32 {P(ts[i])}, {P(ST+2*i)}, {uv}, v[194:195] op_sel_hi:[1,0,0]")
        for i in range(4): seq.append(f"v_pk_fma_f32 {P(xs[i])}, {P(xs[i])}, {P(ST+8+2*i)}, {P(ts[i])}")
        seq += gelu_pairs(xs, ts)
        for i in range(4):
            if j == 0: seq += [f"v_pk_mul_f32 {P(Z2S+2*i)}, {P(xs[i])}, {P(xs[i])}"]
            elif j == 1: seq += [f"v_pk_add_f32 {P(Z1S+2*i)}, {P(xs[i])}, {P(ACC2+2*i)}", f"v_pk_fma_f32 {P(Z2S+2*i)}, {P(xs[i])}, {P(xs[i])}, {P(Z2S+2*i)}"]
            else: seq += [f"v_pk_add_f32 {P(Z1S+2*i)}, {P(xs[i])}, {P(Z1S+2*i)}", f"v_pk_fma_f32 {P(Z2S+2*i)}, {P(xs[i])}, {P(xs[i])}, {P(Z2S+2*i)}"]
    NG = int(os.environ.get('NG', '60'))
    seq = seq[:g2start] + interleave(seq[g2start:g2start+NG], dlist) + seq[g2start+NG:]
    gspos = len(seq)
    seq += ror_reduce([Z1S+i for i in range(8)] + [Z2S+i for i in range(8)], [GR+2*i for i in range(8)] + [GR+2*i+1 for i in range(8)])
    for i in range(8): seq.append(f"v_or_b32 v{GR+2*i+1}, 1, v{GR+2*i+1}")
    seq += [f"s_lshl_b32 s23, s6, 12", f"s_add_u32 s23, s23, {ST2}", "s_lshl_b32 s24, s5, 8", "s_add_u32 s24, s24, s23",
            "v_lshlrev_b32 v10, 6, v12", "v_lshl_add_u32 v11, v3, 8, v10",
            "v_cmp_eq_u32 vcc, 0, v3", f"v_mov_b32 v194, {BIG}", "s_nop 0", "v_cndmask_b32 v10, v194, v10, vcc",
            f"s_mul_i32 s22, s5, {144*4}", f"s_add_u32 s22, s22, {UV1}", "s_add_u32 s25, s22, 9216", "v_lshlrev_b32 v9, 4, v12", a.stamp(3)]
    gs = [VM(f"buffer_store_dwordx4 v[{GR+4*i}:{GR+4*i+3}], v10, s[8:11], s24 offen offset:{16*i} sc1", ("GS", i)) for i in range(4)]
    seq += gs
    U1 = 160
    uv1 = []
    for j in range(9):
        uv1.append(VM(f"buffer_load_dwordx4 v[{U1+8*j}:{U1+8*j+3}], v9, s[8:11], s22 offen offset:{64*j}", ("U1", j)))
        uv1.append(VM(f"buffer_load_dwordx4 v[{U1+8*j+4}:{U1+8*j+7}], v9, s[8:11], s25 offen offset:{64*j}", ("V1", j)))
    PL = 176; R1 = [200+i for i in range(8)]; R2 = [192+i for i in range(8)]
    pl = [f"buffer_load_dwordx4 v[{PL+4*i}:{PL+4*i+3}], v11, s[8:11], s23 offen offset:{16*i} sc1" for i in range(4)]
    bl = [VM("buffer_load_ushort v6, v5, s[36:39], s26 offen", "b0"), VM("buffer_load_ushort v7, v5, s[36:39], s26 offen offset:8", "b1")]
    chk = [f"v_min_u32 v209, v{PL+1}, v{PL+3}"] + [f"v_min_u32 v209, v209, v{PL+2*i+1}" for i in range(2, 8)] + ["v_cmp_eq_u32 vcc, 0, v209"]
    pollS = [WAIT([("PL", 3)])] + chk + ["s_mov_b32 s27, 0", "s_nop 3", "s_cbranch_vccz GM_S_GO", "GM_S_POLL:"] + pl + ["s_waitcnt vmcnt(0)"] + chk + \
            ["s_add_u32 s27, s27, 1", "s_cmp_ge_u32 s27, 0x80000", "s_cbranch_scc1 GM_S_GO", "s_nop 2", "s_cbranch_vccz GM_S_GO", f"s_sleep {SLP}", "s_branch GM_S_POLL", "GM_S_GO:", a.stamp(4)]
    nrm = ror_reduce([PL+i for i in range(16)], [(R1 if i % 2 == 0 else R2)[i//2] for i in range(16)])[1:]
    nrm += ln_finish(R1, R2, FH, 8, None)
    nrm += ["s_mul_i32 s26, s6, 9216", "v_add_u32 v208, 8192, v1"]
    nrm0 = nrm; nrm = []
    for j in range(9):
        for i in range(8): nrm.append(f"v_fma_f32 v{ACC2+8*j+i}, v{ACC2+8*j+i}, v{R2[i]}, v{R1[i]}")
        for i in range(4): nrm.append(f"v_cvt_pk_bf16_f32 v{ACC2+8*j+i}, v{ACC2+8*j+2*i}, v{ACC2+8*j+2*i+1}")
        nrm.append(VM(f"buffer_store_dwordx4 v[{ACC2+8*j}:{ACC2+8*j+3}], {['v1','v251','v208'][j//4]}, s[12:15], s26 offen offset:{1024*(j%4)} sc1", ("Z2", j)))
    KT = -1
    KP, KN0, KN1, JPK, KF = [int(x) for x in os.environ.get('P2', '21,23,25,2,32').split(',')]
    per = (len(nrm0) + (KN1-KN0) - 1) // (KN1-KN0)
    pb = "buffer_load_dword v11, v10, s[8:11], s23 offen sc1"
    flagprep = ["s_lshl_b32 s24, s6, 4", "s_add_u32 s24, s24, s5", "s_lshl_b32 s24, s24, 7", f"s_add_u32 s24, s24, {FLB}",
            "v_cmp_eq_u32 vcc, 0, v2", f"v_mov_b32 v13, {BIG}", "v_mov_b32 v5, 1", "v_cndmask_b32 v13, v13, 0, vcc"]
    ACC, B2V = 16, 88
    AV = [241, 243, 245, 247]
    aprep = ["v_lshrrev_b32 v4, 3, v2", "v_lshrrev_b32 v249, 2, v4", "v_lshlrev_b32 v249, 3, v249", "v_and_b32 v250, 3, v4", "v_add_u32 v249, v249, v250", "v_lshlrev_b32 v249, 12, v249",
            "v_lshrrev_b32 v4, 1, v4", "v_and_b32 v250, 7, v2", "v_xor_b32 v4, v4, v250",
            f"v_lshl_add_u32 v{AV[0]}, v4, 4, v249", "v_xor_b32 v4, 4, v4", f"v_lshl_add_u32 v{AV[1]}, v4, 4, v249", f"v_add_u32 v{AV[1]}, {65536-1024}, v{AV[1]}",
            f"v_add_u32 v{AV[2]}, {16384-2048}, v{AV[0]}", f"v_add_u32 v{AV[3]}, {16384-2048}, v{AV[1]}"]
    aprep2 = ["v_lshrrev_b32 v4, 1, v3", "v_xor_b32 v4, v4, v12", "v_lshlrev_b32 v4, 4, v4", "v_lshl_add_u32 v4, v3, 7, v4",
            "v_add_u32 v249, s7, v4", "v_xor_b32 v250, 64, v249", "v_add_u32 v4, s30, v4", "v_xor_b32 v8, 64, v4"]
    PLACE = {"R0": ("s30", 0), "R1": ("s30", 4096), "R2": ("s30", 8192), "S0a": ("s7", 0), "S0b": ("s7", 4096), "S1a": ("s7", 36864), "S1b": ("s7", 36864+4096)}
    def a2_dma(Pp, pl):
        b, off = PLACE[pl]
        return [f"s_add_u32 m0, {b}, {off}", f"s_add_u32 s21, s29, {128*Pp}"] + \
               [VM(f"buffer_load_dwordx4 v{AV[i]}, s[16:19], s21 offen offset:{1024*i} lds", ("A2", Pp, i)) for i in range(4)]
    def a2_rd(Pp, pl):
        b, off = PLACE[pl]
        regs = ("v4", "v8") if b == "s30" else ("v249", "v250")
        return [f"ds_read_b128 a[{8*((2*Pp+e) % 32)+4*t}:{8*((2*Pp+e) % 32)+4*t+3}], {regs[e]} offset:{off + t*2048}" for e in range(2) for t in range(2)]
    def a2tags(Pp): return [("A2", Pp, i) for i in range(4)]
    r1 = {18: [(0, "R2")], 20: [(1, "R0")], 21: [(2, "R1")], 22: [(3, "R2")], 25: [(4, "R0")], 26: [(5, "R1")], 27: [(6, "R2")], 28: [(7, "S0a")], 29: [(8, "S0b")],
          31: [(9, "S1a")], 32: [(10, "S1b")], 33: [(11, "R0")], 34: [(12, "R1")], 35: [(13, "R2")]}
    rr1 = {19: [(14, "R0")], 20: [(15, "R1")], 21: [(0, "R2")], 24: [(1, "R0")], 25: [(2, "R1")], 26: [(3, "R2")], 32: [(4, "R0")], 33: [(5, "R1")], 34: [(6, "R2")], 35: [(7, "S0a")]}
    seq = seq[:gspos] + aprep + aprep2 + a2_dma(14, "R0") + a2_dma(15, "R1") + seq[gspos:]
    for kk in range(18, 36):
        ex = []; ne = []
        if kk == 19: ex = [VM("buffer_load_dword v10, v255, s[32:35], 0 offen", "CW2")]
        if kk == 18: ex = ["v_lshlrev_b32 v5, 1, v248", "s_lshl_b32 s26, s6, 6"] + bl
        if kk == KP: ex = [VM(x, ("PL", i)) for i, x in enumerate(pl)]
        if kk == KN0: seq += pollS
        if KN0 <= kk < KN1: ex = nrm0[per*(kk-KN0):per*(kk-KN0+1)]
        if kk >= KN1: ex = nrm[13*JPK*(kk-KN1):13*JPK*(kk-KN1+1)]
        if kk == 30:
            assert not ex
            ex = flagprep + ["s_lshl_b32 s23, s3, 4", "s_add_u32 s23, s23, s5", "s_lshl_b32 s23, s23, 7", f"s_add_u32 s23, s23, {FLB}", "v_lshlrev_b32 v10, 13, v3"]
        if kk == KF: ex = [VM("buffer_store_dword v5, v13, s[8:11], s24 offen sc1", "FB")] + ex; ne = [("Z2", 8)]
        if kk in (31, 32, 33, 34): ex = ex + uv1[5*(kk-31):5*(kk-31)+5]
        for Pp, pl_ in r1.get(kk, []): ex = ex + a2_dma(Pp, pl_)
        for Pp, pl_ in rr1.get(kk, []): early[kk] = early.get(kk, []) + a2_rd(Pp, pl_); ne = ne + a2tags(Pp)
        if kk == 35: ex = [VM(pb, "PB")] + ex
        seq += kstep(kk, ex, ne)
    seq += [a.stamp(5)]
    TM1 = 232
    JF = int(os.environ.get('JF', '0'))
    def z1g(j):
        o = []
        xs = [ACC1 + j*8 + 2*i for i in range(4)]; ts = [TM1 + 2*i for i in range(4)]
        for i in range(4):
            o.append(f"v_pk_fma_f32 {P(ts[i])}, {P(U1+8*j+2*(i%2))}, {P(ZN[i//2])}, {P(U1+8*j+4+2*(i%2))} op_sel_hi:[1,0,1]")
        for i in range(4):
            o.append(f"v_pk_fma_f32 {P(xs[i])}, {P(xs[i])}, {P(ZR[i//2])}, {P(ts[i])} op_sel_hi:[1,0,1]")
        if j < JF: o += gelu_pairs(xs, ts)
        for i in range(4): o.append(f"v_cvt_pk_bf16_f32 v{U1+8*j+i}, v{xs[i]}, v{xs[i]+1}")
        return o
    def late_gelu(j, hf):
        xs = [(U1+8*j+4+i) if hf == 1 else (236+i) for i in range(4)]; ts = [232+i for i in range(4)]
        o = []
        for d in range(2): o += [f"v_lshlrev_b32 v{xs[2*d]}, 16, v{U1+8*j+2*hf+d}", f"v_and_b32 v{xs[2*d+1]}, 0xffff0000, v{U1+8*j+2*hf+d}"]
        for x, t in zip(xs, ts): o.append(f"v_mul_f32 v{t}, v{x}, v{x}")
        for x, t in zip(xs, ts): o.append(f"v_fma_f32 v{t}, v{t}, s40, v14")
        for x, t in zip(xs, ts): o.append(f"v_mul_f32 v{t}, v{t}, v{x}")
        for x, t in zip(xs, ts): o.append(f"v_exp_f32 v{t}, v{t}")
        for x, t in zip(xs, ts): o.append(f"v_add_f32 v{t}, 1.0, v{t}")
        for x, t in zip(xs, ts): o.append(f"v_rcp_f32 v{t}, v{t}")
        for i, (x, t) in enumerate(zip(xs, ts)): o.append(f"v_mul_f32 v{U1+8*j+4*hf+i}, v{x}, v{t}")
        return o
    def b2_group(k):
        T = (k+1)//4 + 2
        if T >= 15: return []
        p0, cnt = P0[k % 4]
        o = [f"s_add_u32 m0, s7, {(T % 3)*36864 + p0*1024}", "s_nop 0"]
        for i in range(cnt): o.append(VM(f"buffer_load_dwordx4 v1, s[12:15], s20 offen offset:{1024*i} sc1 lds", ("B2", T, p0+i)))
        o.append(f"s_add_u32 s20, s20, {cnt*1024 if k % 4 != 2 else 36864 - 7168}")
        return o
    def b2tags(T): return [("B2", T, p) for p in range(9)]
    def b2_reads(k):
        return [f"ds_read_b128 v[{B2V + (k%2)*36 + 4*j}:{B2V + (k%2)*36 + 4*j + 3}], v{SL + (k//4) % 3} offset:{(k%4)*9216 + j*1024}" for j in range(9)]
    seq += ["s_mov_b32 s20, s7", WAIT(a2tags(10) + [("V1", 8)], lgkm=True)] + a2_rd(8, "S0b") + a2_rd(9, "S1a") + a2_rd(10, "S1b")
    J2 = int(os.environ.get('J2', '4'))
    for j in range(J2): seq += z1g(j)
    seq += [WAIT(["PB"]), "v_cmp_eq_u32 vcc, 0, v11", "s_barrier", "s_waitcnt lgkmcnt(0)", "s_nop 2", "s_cbranch_vccz GM_B_GO"]
    resolve(pre + seq); emit(a, seq); pre2 = [VM("; ", x.tag) for x in seq if isinstance(x, VM) and x.tag[0] == "A2" and x.tag[1] in (11, 12, 13)]
    poll_loop(a, "GM_B", [pb], [11], None)
    a(a.stamp(6))
    seq = list(pre2)
    for k in range(-9, -5): seq += b2_group(k)
    fl = []
    for k in range(-5, -3): fl += b2_group(k)
    val = []
    for j in range(J2, 9): val += z1g(j)
    seq += interleave(val, fl)
    if Asm.STAMPS: seq += [a.stamp(7), "STAMPFLUSH"]
    seq += [f"v_lshlrev_b32 v{232+i}, 16, v{6 + i//4}" for i in range(8)]
    seq += [WAIT(b2tags(0)), "s_barrier"] + b2_reads(0)
    KA = 46
    PS_ = [11, 12, 13] + list(range(16, 32))
    RPi = lambda i: 2 + ((KA-2)*i)//(len(PS_)-1)
    KT0 = 52
    rd_at = {RPi(i): (Pp, f"R{i % 3}") for i, Pp in enumerate(PS_)}
    assert len(rd_at) == len(PS_) and all(RPi(i) <= 2*p_-1 and RPi(i) >= 2*(p_-16)+2 for i, p_ in enumerate(PS_))
    dma_at = {RPi(i-3)+1: (PS_[i], f"R{i % 3}") for i in range(3, len(PS_))}
    def areg(k, t): return f"a[{8*(k%32)+4*t}:{8*(k%32)+4*t+3}]"
    def mf2(k, j, t, breg):
        r = ACC + (j*2+t)*4
        return f"{MF} v[{r}:{r+3}], v[{breg}:{breg+3}], {areg(k, t)}, {f'v[{232+4*t}:{235+4*t}]' if k == 0 else f'v[{r}:{r+3}]'}"
    g3prep = f"""
      s_and_b32 s44, s2, 7
      s_lshl_b32 s44, s44, 2
      s_lshr_b32 s45, s2, 3
      s_and_b32 s38, s45, 3
      s_add_u32 s44, s44, s38             ; mb
      s_lshr_b32 s45, s45, 2
      s_mul_i32 s45, s45, 9
      s_lshr_b32 s45, s45, 1              ; n0
      s_mul_i32 s39, s3, {18*36864}
      s_lshl_b32 s38, s45, 10
      s_add_u32 s39, s39, s38
      s_add_u32 s39, s39, {WOUTF}         ; W soffset (registers part)
      s_add_u32 s36, s39, {11*36864}      ; W soffset (lds part)
      s_mul_i32 s37, s3, 30720
      s_add_u32 s37, s37, 36864           ; lds W area""".split("\n")
    NWR = 11
    def w_reg(k): return 20*k if k < NWR else (20*(k-NWR) if k < 17 else 224)
    def w_loads(k, so="s39"):
        r = w_reg(k)
        return [VM(f"buffer_load_dwordx4 a[{r+4*j}:{r+4*j+3}], {'v1' if j < 4 else 'v251'}, s[8:11], {so} offen offset:{1024*(j%4)}", ("W", k, j)) for j in range(5)] + [f"s_add_u32 {so}, {so}, 36864"]
    def w_dma(k):
        o = [f"s_add_u32 m0, s37, {(k-NWR)*5120}", "s_nop 0"]
        o += [VM(f"buffer_load_dwordx4 v1, s[8:11], s36 offen offset:{1024*j} lds", ("W", k, j)) for j in range(4)]
        o += [f"s_add_u32 m0, s37, {(k-NWR)*5120 + 4096}", "s_nop 0", VM(f"buffer_load_dwordx4 v251, s[8:11], s36 offen lds", ("W", k, 4)), "s_add_u32 s36, s36, 36864"]
        return o
    apieces = {}
    for k0, (Pp, pl_) in dma_at.items():
        b, off = PLACE[pl_]
        ks_ = [k0, k0, k0+1, k0+1] if (k0+1) not in dma_at else [k0]*4
        for i in range(4):
            gr = [f"s_add_u32 m0, {b}, {off}", VM(f"buffer_load_dwordx4 v{AV[i]}, s[16:19], s21 offen offset:{1024*i} lds", ("A2", Pp, i))]
            if i > 0 and ks_[i] == ks_[i-1]: gr = gr[1:]
            if i == 0: gr = [f"s_add_u32 s21, s29, {128*Pp}"] + gr
            apieces.setdefault(ks_[i], []).append(gr)
    CWK = [int(x) for x in os.environ.get('CWK', '1,9,17,25,33,41,49').split(',')]
    def t15_group(k):
        p0, cnt = P0[k % 4]
        o = [f"s_add_u32 m0, s7, {ALDS + p0*1024}"]
        for i in range(cnt): o.append(VM(f"buffer_load_dwordx4 v1, s[12:15], s21 offen offset:{1024*i} sc1 lds", ("B2", 15, p0+i)))
        o.append(f"s_add_u32 s21, s21, {cnt*1024}")
        return o
    tailprep = f"""
      v_add_u32 v4, {ALDS}, v1
      v_lshlrev_b32 v8, 3, v2
      s_lshr_b32 s22, s5, 1
      s_mul_i32 s22, s22, 9216
      s_mul_i32 s23, s6, {2*73728}
      s_add_u32 s22, s22, s23
      s_add_u32 s22, s22, {PF}
      s_and_b32 s23, s5, 1
      s_lshl_b32 s28, s23, 12
      s_add_u32 s28, s28, s22
      s_add_u32 s29, s28, 73728
      s_lshl_b32 s23, s23, 9
      s_add_u32 s30, s22, s23
      s_add_u32 s30, s30, 8192
      s_add_u32 s31, s30, 73728
      s_add_u32 s24, s24, {FLP-FLB}""".split("\n")
    TK = [52, 53, 54, 55, 60, 61, 62, 63, 56, 57, 58, 59]
    def ureg(u): return B2V + 24*(u % 3)
    def u_reads(u):
        if u >= 18: return []
        j, hf = divmod(u, 2)
        o = []
        for i, k in enumerate(TK[6*hf:6*hf+6]):
            ad = "v4" if k >= 60 else f"v{SL + (k//4) % 3}"
            o.append(f"ds_read_b128 v[{ureg(u)+4*i}:{ureg(u)+4*i+3}], {ad} offset:{(k%4)*9216 + j*1024}")
        return o
    WE = [int(x) for x in os.environ.get('WE', '43,45').split(',')]
    wq = [w_loads(k) for k in range(0, NWR)] + [w_dma(k) for k in range(NWR, 17)] + [w_loads(17, "s36")]
    lg = []
    for j in range(JF, 9): lg += late_gelu(j, 1) + late_gelu(j, 0)
    LG0, LG1 = 2, 44
    for k in range(KT0):
        need = []
        if k in rd_at: need += a2tags(rd_at[k][0])
        if k % 4 == 3: need += b2tags((k+1)//4)
        if k == KT0-1: need += b2tags(15)
        if k == 51: need += [("G", 3)]
        seq.append(WAIT(need, lgkm=True))
        if k % 4 == 3: seq.append("s_barrier")
        mm = [mf2(k, j, t, B2V + (k%2)*36 + 4*j) for j in range(9) for t in range(2)]
        ds = b2_reads(k+1) if k+1 < KT0 else u_reads(0)
        if k in rd_at: ds += a2_rd(*rd_at[k])
        f = {0: b2_group(-3) + b2_group(-2), 1: b2_group(-1) + b2_group(0), 2: b2_group(1) + b2_group(2)}.get(k, None)
        if f is None: f = b2_group(k)
        f = f + [y for x in apieces.get(k, []) for y in x]
        if 47 <= k < 49: f = t15_group(2*k-47) + t15_group(2*k-46) + f
        if k in CWK: f += [VM("buffer_load_dword v11, v255, s[32:35], 0 offen", ("CW", k))]
        oth = []
        if k == 46: oth = [f"s_add_u32 s21, s7, {15*36864}"]
        if k == 48: oth = tailprep
        if k == 44: oth = ["s_lshr_b32 s42, s2, 5", "s_mul_i32 s42, s42, 9", "s_lshr_b32 s42, s42, 1", "s_lshl_b32 s42, s42, 7",
                           f"s_add_u32 s42, s42, {MODP + 5*576*8}", f"s_add_u32 s43, s42, {3456*8}", "v_lshlrev_b32 v9, 3, v2"]
        if k == 45: f += [VM(f"buffer_load_dwordx2 v[{232+2*i}:{233+2*i}], v9, s[8:11], s{42 + i%2} offen offset:{512*(i//2)}", ("G", i)) for i in range(4)]
        if k == 51: oth = ["v_add_f32 v14, v232, v234", "v_add_f32 v15, v236, v238", "v_cvt_pk_bf16_f32 v14, v14, v15", "v_and_b32 v15, 0xffff0000, v14", "v_lshlrev_b32 v14, 16, v14"]
        if k == 0: oth = g3prep
        if k in WE: f += wq.pop(0)
        if LG0 <= k < LG1: oth = oth + lg[len(lg)*(k-LG0)//(LG1-LG0):len(lg)*(k+1-LG0)//(LG1-LG0)]
        gs_, rest = vgroups(f)
        seq += sched(mm, ds, gs_, oth) + rest
    seq.append(a.stamp(0))
    def epi(j):
        o = []
        for t in range(2):
            x = ACC + (j*2+t)*4; z = U1 + 8*j + 4*t
            od = ACC + ((j & ~1)*2+t)*4
            for r in range(4): o.append(f"v_mul_f32 v{x+r}, v{x+r}, v{z+r}")
            for h in range(2): o.append(f"v_cvt_pk_bf16_f32 v{od + (j%2)*2 + h}, v{x+2*h}, v{x+2*h+1}")
            if j % 2 == 1: o.append(VM(f"buffer_store_dwordx4 v[{od}:{od+3}], v1, s[8:11], s{28+t} offen offset:{1024*(j//2)} sc1", ("PS", j, t)))
            if j == 8: o.append(VM(f"buffer_store_dwordx2 v[{od}:{od+1}], v8, s[8:11], s{30+t} offen sc1", ("PS", 9, t)))
        return o
    WT = [int(x) for x in os.environ.get('WT', '8,1,6').split(',')]
    nleft = 8 - (18 - len(wq))
    tailw = set((i*8)//nleft for i in range(nleft)) if nleft else set()
    seq += [WAIT(b2tags(14), lgkm=True), "s_barrier"] + u_reads(1)
    for u in range(18):
        j, hf = divmod(u, 2)
        m_ = [mf2(k, j, t, ureg(u) + 4*i) for i, k in enumerate(TK[6*hf:6*hf+6]) for t in range(2)]
        if u > 0: seq.append(f"s_waitcnt lgkmcnt({6 if u < 17 else 0})")
        e = epi(j-1) if j >= 1 else []
        if hf == 0:
            seq += interleave(m_[:6], u_reads(u+2) if u < 16 else ["s_nop 1"]) + interleave(m_[6:], e)
        else:
            gs_, rest = vgroups(wq.pop(0) if j in tailw else [])
            seq += sched(m_, u_reads(u+2), gs_, vm_start=1) + rest
    seq += ["s_nop 7"] + epi(8) + ["s_barrier"]
    PV, LW = 240, 244
    seq += f"""
      s_mul_i32 s20, s44, {4*73728}
      s_mul_i32 s6, s3, {18*1024}
      s_add_u32 s20, s20, s6
      s_add_u32 s20, s20, {PF}            ; P soffset
      s_lshl_b32 s23, s44, 12
      s_lshl_b32 s6, s3, 9
      s_add_u32 s23, s23, s6
      s_add_u32 s23, s23, {FLP}           ; poll address
      v_and_b32 v10, 3, v2
      v_bfe_u32 v11, v2, 2, 1
      v_lshl_add_u32 v10, v11, 4, v10
      v_lshlrev_b32 v10, 7, v10
      v_add_u32 v249, s37, v1""".split("\n")
    for u in range(4):
        seq += [f"s_add_u32 s6, s3, {u}", "s_and_b32 s6, s6, 3", "s_mul_i32 s7, s6, 73728", f"v_add_u32 v{PV+u}, s7, v1"]
        if u > 0: seq += ["s_mul_i32 s7, s6, 15360", f"s_add_u32 s7, s7, {(u-1)*5120}", f"v_add_u32 v{LW+u}, s7, v1"]
    for _ in range(WT[1]): seq += wq.pop(0)
    seq += [a.stamp(1), WAIT([("PS", 9, 1)]), VM("buffer_store_dword v5, v13, s[8:11], s24 offen sc1", "FP"), a.stamp(2)]
    DEP = 6; AC3 = 16; PR = 96; XR, GB, GR_ = 192, 204, 96
    seq += [f"s_lshl_b32 s22, s44, 2", "s_add_u32 s22, s22, s3", "s_mul_i32 s25, s22, 18432", "s_lshl_b32 s24, s45, 9", "s_add_u32 s25, s25, s24", f"s_add_u32 s25, s25, {X1F}",
            "v_lshlrev_b32 v8, 4, v12"]
    xl = [VM(f"buffer_load_dwordx2 v[{XR+2*j}:{XR+1+2*j}], v9, s[8:11], s25 offen offset:{512*j}", ("X", j)) for j in range(5)]
    for _ in range(WT[2]): seq += wq.pop(0)
    for j in range(5):
        for r in range(4): seq.append(f"ds_bpermute_b32 v{GB+4*j+r}, v8, v{14 if j < 4 else 15} offset:{64*(j%4) + 4*r}")
        if j == 2: seq.append("s_waitcnt lgkmcnt(0)")
    resolve(seq)
    for it in seq:
        if it == "STAMPFLUSH": a.stamp_flush2(2, 8)
        else: emit(a, [it])
    a.srd(12, "out")
    poll_loop(a, "GM_P", ["buffer_load_dword v11, v10, s[8:11], s23 offen sc1"], [11], None)
    a(a.stamp(3))
    done = [VM("; ", x.tag) for x in seq if isinstance(x, VM) and x.tag[0] == "W"]
    def p_loads(k):
        if k >= 18: return []
        r = PR + (k % DEP)*16
        if k % 9 != 8: o = [VM(f"buffer_load_dwordx4 v[{r+4*u}:{r+4*u+3}], v{PV+u}, s[8:11], s20 offen offset:{1024*(k%4)} sc1", ("P", k, u)) for u in range(4)]
        else:
            o = []
            for u in range(4):
                o += [f"v_sub_u32 v11, v{PV+u}, v9", VM(f"buffer_load_dwordx2 v[{r+4*u}:{r+4*u+1}], v11, s[8:11], s20 offen offset:{1024*(k%4)} sc1", ("Ph", k, u)),
                      VM(f"buffer_load_dwordx2 v[{r+4*u+2}:{r+4*u+3}], v11, s[8:11], s20 offen offset:{1024*(k%4)+512} sc1", ("P", k, u))]
        if k % 4 == 3: o.append("s_add_u32 s20, s20, 4096")
        return o
    def w_rd(k): return [f"ds_read_b128 a[{w_reg(k)+4*j}:{w_reg(k)+4*j+3}], v249 offset:{(k-NWR)*5120 + 1024*j}" for j in range(5)]
    seq = list(done)
    for k in range(DEP-1): seq += p_loads(k)
    for k in range(18):
        kr = k + 4
        need = [("P", k, 3)] + ([("W", k, 4)] if (k < NWR or k == 17) else []) + ([("W", kr, 4)] if NWR <= kr < 17 else [])
        seq.append(WAIT(need, lgkm=(NWR <= k < 17)))
        if k == 0: seq.append(a.stamp(4))
        if k == 14: seq.append("s_barrier")
        r = PR + (k % DEP)*16
        mm = []
        for u in ((1, 2, 3, 0) if k == 17 else range(4)):
            for j in range(5):
                c = AC3 + (u*5+j)*4
                mm.append(f"{MF} v[{c}:{c+3}], a[{w_reg(k)+4*j}:{w_reg(k)+4*j+3}], v[{r+4*u}:{r+4*u+3}], {'0' if k == 0 else f'v[{c}:{c+3}]'}")
        f = p_loads(k+DEP-1) + (wq.pop(0) if wq else []) + (w_rd(kr) if NWR <= kr < 17 else []) + (xl if k == 13 else [])
        ds = [x for x in f if isinstance(x, str) and x.startswith("ds_")]
        gs_, rest = vgroups([x for x in f if not (isinstance(x, str) and x.startswith("ds_"))])
        if k < 17: seq += sched(mm, ds, gs_, vm_start=1) + rest
        else:
            wr = [f"ds_write_b128 v{LW+u}, v[{AC3+(u*5+j)*4}:{AC3+(u*5+j)*4+3}] offset:{1024*j}" for u in range(1, 4) for j in range(5)]
            seq += mm[:9] + interleave(mm[9:], wr[:11]) + [a.stamp(5), "s_mul_i32 s7, s3, 15360", "v_add_u32 v11, s7, v1"] + wr[11:]
    seq += ["v_mul_u32_u24 v4, 1152, v248",
            "v_lshl_add_u32 v4, v12, 3, v4", "s_lshr_b32 s25, s22, 1", f"s_mul_i32 s25, s25, {32*1152}", "s_and_b32 s26, s22, 1", f"s_mul_i32 s26, s26, {4*1152}",
            "s_add_u32 s25, s25, s26", "s_lshl_b32 s26, s45, 5", "s_add_u32 s25, s25, s26",
            "s_waitcnt lgkmcnt(0)", "s_barrier"]
    for i in range(15):
        c = AC3 + 20 + 4*i
        seq.append(f"ds_read_b128 v[{c}:{c+3}], v11 offset:{1024*i}")
        if i == 13: seq.append("s_waitcnt lgkmcnt(8)")
    seq += [WAIT([("X", 4)], lgkm=True)]
    for j in range(5):
        for h in range(2):
            x = AC3 + 4*j + 2*h
            seq += [f"v_pk_add_f32 {P(x)}, {P(x)}, {P(x+20)}", f"v_pk_add_f32 {P(x+40)}, {P(x+40)}, {P(x+60)}",
                    f"v_lshlrev_b32 v{x+20}, 16, v{XR+2*j+h}", f"v_and_b32 v{x+21}, 0xffff0000, v{XR+2*j+h}",
                    f"v_pk_add_f32 {P(x)}, {P(x)}, {P(x+40)}",
                    f"v_pk_fma_f32 {P(x)}, {P(x)}, {P(GB+4*j+2*h)}, {P(x+20)}",
                    f"v_cvt_pk_bf16_f32 v{XR+2*j+h}, v{x}, v{x+1}"]
        seq.append(VM(f"buffer_store_dwordx2 v[{XR+2*j}:{XR+1+2*j}], v4, s[12:15], s25 offen offset:{32*j}", ("O", j)))
    resolve(seq); emit(a, seq)
    a(a.stamp(6))
    a.stamp_end(3, 8)
    a("GM_END:\ns_endpgm\nGM_CODE_END:")
    a.desc("gm_kernel", 512, 256)
```

```python
import re, sys
from gen_common import *
import gen_k1, gen_k2_v1, gen_m
NAME = "adaLN_cond__ssm_conv_h3__mixer_gmlp__prompt_kernel"
def body(gen):
    a = Asm(); gen(a)
    t = "\n".join(a.L)
    t = t[:t.index('.section .rodata')]
    t = t[t.index("_kernel:\n")+len("_kernel:\n"):]
    return t
k1 = body(gen_k1.gen_k1); k2 = body(gen_k2_v1.gen_k2); gm = body(gen_m.gen_gm)
k1 = k1.replace("s_endpgm", "s_branch K1_NEXT")
k1 = k1.replace("  buffer_store_dword v4, v5, s[12:15], s5 offen\n  s_waitcnt vmcnt(1)", f"  buffer_store_dword v4, v5, s[12:15], s5 offen\n  s_add_u32 s5, s5, {FLB-ST2}\n  buffer_store_dword v4, v5, s[12:15], s5 offen\n  s_waitcnt vmcnt(2)")
k1 = k1.replace("  buffer_store_short v9, v6, s[16:19], s6 offen", f"""  buffer_store_short v9, v6, s[16:19], s6 offen
  v_lshlrev_b32 v6, 3, v0
  s_lshl_b32 s6, s2, 8
  s_add_u32 s6, s6, {MODP}
  buffer_store_dword v8, v6, s[16:19], s6 offen
  v_mov_b32 v10, 0
  s_add_u32 s6, s6, {3456*8}
  buffer_store_dword v10, v6, s[16:19], s6 offen""")
k2 = k2.replace("s_endpgm", "s_branch K2_NEXT").replace("op_sel:[0,0,1] op_sel_hi:[1,0,1]", "op_sel:[0,0,1] op_sel_hi:[1,0,1]")
def gbar(n, target):
    return f"""
  s_mov_b64 exec, -1
  s_waitcnt vmcnt(0) lgkmcnt(0)
  s_barrier
  s_load_dwordx2 s[4:5], s[0:1], 112
  v_readfirstlane_b32 s3, v0
  s_waitcnt lgkmcnt(0)
  s_mov_b32 s8, s4
  s_and_b32 s9, s5, 0xffff
  s_mov_b32 s10, 256
  s_mov_b32 s11, 0x20000
  s_cmp_lg_u32 s3, 0
  s_cbranch_scc1 GB{n}_W
  buffer_wbl2 sc1
  s_waitcnt vmcnt(0)
  v_mov_b32 v1, 1
  v_lshlrev_b32 v2, 8, v0
  buffer_atomic_add v1, v2, s[8:11], 0 offen offset:{64*n} sc1
  s_mov_b32 s12, 0
  v_mov_b32 v2, 0
GB{n}_P:
  buffer_load_dword v1, v2, s[8:11], 0 offen offset:{64*n} sc1
  s_waitcnt vmcnt(0)
  v_readfirstlane_b32 s13, v1
  s_add_u32 s12, s12, 1
  s_cmp_ge_u32 s12, 0x100000
  s_cbranch_scc1 GB{n}_G
  s_cmp_ge_u32 s13, {target}
  s_cbranch_scc1 GB{n}_G
  s_sleep 2
  s_branch GB{n}_P
GB{n}_G:
  buffer_inv sc1
  s_waitcnt vmcnt(0)
GB{n}_W:
  s_barrier
"""
T = int(sys.argv[2])
spin = f"""
  s_cmp_lg_u32 s2, 0
  s_cbranch_scc1 GM_END
XX_SPIN:
  s_memrealtime s[48:49]
  s_waitcnt lgkmcnt(0)
  s_sub_u32 s48, s48, s98
  s_cmp_lt_u32 s48, {T}
  s_cbranch_scc1 XX_SPIN
"""
i = gm.rindex("GM_END:")
gm = gm[:i] + spin + gm[i:]
hdr = open("adaLN_cond__ssm_conv_h3__mixer_gmlp__prompt.s.ref").read().split("; Override launch")[0]
launch = "; @launch grid=(256,1,1) block=(256,1,1) lds=159744" if sys.argv[3] == "single" else f"; @launch kernel={NAME} grid=(256,1,1) block=(256,1,1) lds=159744"
out = hdr + launch + f"""
.amdgcn_target "amdgcn-amd-amdhsa--gfx950"
.text
.globl {NAME}
.p2align 8
.type {NAME},@function
{NAME}:
  s_cmp_ge_u32 s2, 256
  s_cbranch_scc1 GM_END
  s_memrealtime s[98:99]
  s_mov_b32 s97, s2
  s_waitcnt lgkmcnt(0)
K1_TOP:
{k1}
K1_NEXT:
  s_mov_b64 exec, -1
  s_waitcnt vmcnt(0) lgkmcnt(0)
  s_barrier
  s_add_u32 s2, s2, 256
  s_cmp_lt_u32 s2, 652
  s_cbranch_scc1 K1_TOP
  s_mov_b32 s2, s97
{gbar(0, 256)}
{k2}
K2_NEXT:
{gbar(1, 256)}
gm_kernel:
{gm}
.section .rodata,"a"
.p2align 6
.amdhsa_kernel {NAME}
  .amdhsa_next_free_vgpr 512
  .amdhsa_next_free_sgpr 102
  .amdhsa_accum_offset 256
  .amdhsa_group_segment_fixed_size 0
  .amdhsa_kernarg_size 128
  .amdhsa_user_sgpr_count 2
  .amdhsa_user_sgpr_kernarg_segment_ptr 1
  .amdhsa_system_sgpr_workgroup_id_x 1
.end_amdhsa_kernel
"""
open(sys.argv[1], "w").write(out)
```

```python
from gen_common import *
import os
X = os.environ.get('X', '').split(',')
F_GRID = 256
CH_LDS = 25792; KCS = 4160; URO = 16640; URS = 4576; YO = 4*CH_LDS; YS = 9216
QO = YO + 4*YS
F_LDS = QO + 18432 + 16
BIG = 0x7fffff00
FU, FH2, FM = FLF, FLF + 576*128, FLF + 720*128
CNT = QO + 18432

def poll(a, name, addr, dst, nonce="s42", pair=None, slp=SLP):
    a(f"""
      s_mov_b32 s43, 0
    {name}_POLL:
      {f"buffer_load_dwordx2 {pair}" if pair else f"buffer_load_dword {dst}"}, {addr}, s[8:11], 0 offen sc1
      s_waitcnt vmcnt(0)
      v_cmp_ne_u32 vcc, {nonce}, {dst}
      s_add_u32 s43, s43, 1
      s_cmp_ge_u32 s43, 0x80000
      s_cbranch_scc1 {name}_GO
      s_nop 2
      s_cbranch_vccz {name}_GO
      s_sleep {slp}
      s_branch {name}_POLL
    {name}_GO:
    """)
def get_nonce(a, name, tmp):
    a(f"""
      s_mov_b32 s43, 0
      v_mov_b32 {tmp}, 0
    {name}_NP:
      buffer_load_dword {tmp}, {tmp}, s[28:31], 0 offen sc1
      s_waitcnt vmcnt(0)
      v_readfirstlane_b32 s42, {tmp}
      s_add_u32 s43, s43, 1
      s_cmp_ge_u32 s43, 0x80000
      s_cbranch_scc1 {name}_NG
      s_cmp_lg_u32 s42, 0
      s_cbranch_scc1 {name}_NG
      s_sleep {SLP}
      s_branch {name}_NP
    {name}_NG:
    """)
def check_nonce(a, name, reg):
    a(f"""
      v_readfirstlane_b32 s42, {reg}
      s_nop 3
      s_cmp_lg_u32 s42, 0
      s_cbranch_scc1 {name}_NG
    """)
    get_nonce(a, name, reg)
def red32(a, r, t):
    a(f"""
      s_nop 1
      v_add_f32_dpp {r}, {r}, {r} quad_perm:[1,0,3,2] row_mask:0xf bank_mask:0xf
      s_nop 1
      v_add_f32_dpp {r}, {r}, {r} quad_perm:[2,3,0,1] row_mask:0xf bank_mask:0xf
      s_nop 1
      v_add_f32_dpp {r}, {r}, {r} row_half_mirror row_mask:0xf bank_mask:0xf
      s_nop 1
      v_add_f32_dpp {r}, {r}, {r} row_mirror row_mask:0xf bank_mask:0xf
      s_nop 0
      v_mov_b32 {t}, {r}
      s_nop 1
      v_permlane16_swap_b32 {r}, {t}
      s_nop 1
      v_add_f32 {r}, {r}, {t}
    """)
def wsp_loads(a, R):
    a.srd(12, "wsp")
    a(f"""
      s_lshr_b32 s18, s2, 2               ; blk
      s_and_b32 s19, s2, 3
      s_lshl_b32 s19, s19, 2
      s_and_b32 s16, s3, 3
      s_add_u32 s19, s19, s16             ; ks/4
      v_lshrrev_b32 v6, 2, v4
      v_lshlrev_b32 v6, 3, v6
      v_and_b32 v7, 3, v4
      v_add_u32 v6, v6, v7
      v_lshlrev_b32 v6, 12, v6
      v_lshl_add_u32 v6, v5, 4, v6
      v_add_u32 v7, 16384, v6
      s_lshl_b32 s18, s18, 17
      s_lshl_b32 s16, s19, 8
      s_add_u32 s16, s16, s18
      s_lshl_b32 s17, s19, 13
      s_add_u32 s17, s17, s18
      s_add_u32 s17, s17, {WSPF}
    """)
    for i in range(8):
        a(f"buffer_load_dwordx4 v[{R+4*i}:{R+4*i+3}], {['v6','v7'][i%2]}, s[12:15], s16 offen offset:{64*(i//2)}")
    a("v_add_u32 v6, 4096, v3")
def wsp_stores(a, R):
    for i in range(8):
        a(f"s_waitcnt vmcnt(7)")
        a(f"buffer_store_dwordx4 v[{R+4*i}:{R+4*i+3}], {['v3','v6'][i//4]}, s[8:11], s17 offen offset:{1024*(i%4)} sc1")

def touch_wsp(a, R, nw):
    if 'ftouch' not in X: return
    a.srd(16, "wsp")
    n = 32 // nw
    a(f"s_lshl_b32 s46, s2, 15\ns_and_b32 s47, s3, {nw-1}\ns_mul_i32 s47, s47, {n*1024}\ns_add_u32 s46, s46, s47")
    for i in range(n):
        if i == 4: a("s_add_u32 s46, s46, 4096")
        a(f"buffer_load_dwordx4 v[{R}:{R+3}], v3, s[16:19], s46 offen offset:{1024*(i%4)}")
def gen_f(a):
    fine = 'fine' in X
    st0 = a.stamp
    FS = (lambda i: st0(i) + "\ns_waitcnt lgkmcnt(0)") if (fine and Asm.STAMPS) else (lambda i: "; ")
    if fine: a.stamp = lambda i: st0(i) if i in (0, 1, 6) else "; "
    a.begin("f_kernel")
    a(f"s_cmp_ge_u32 s2, {F_GRID}\ns_cbranch_scc1 F_END")
    a(a.stamp(0))
    a.load_args()
    a("""
      s_memrealtime s[40:41]
      v_lshrrev_b32 v1, 6, v0
      v_and_b32 v2, 63, v0                ; lane
      v_readfirstlane_b32 s3, v1          ; wave
      v_lshlrev_b32 v3, 4, v2             ; lane*16
      v_and_b32 v4, 15, v2                ; l&15
      v_lshrrev_b32 v5, 4, v2             ; g
      s_and_b32 s4, s2, 7
      s_mul_i32 s4, s4, 18
      s_lshr_b32 s5, s2, 3
      s_add_u32 s4, s4, s5
      s_waitcnt lgkmcnt(0)
    """)
    a.srd(8, "ws"); a.srd(28, "dbg", 256)
    a(f"v_cmp_eq_u32 vcc, 0, v2\nv_mov_b32 v122, {BIG}\ns_nop 0\nv_cndmask_b32 v122, v122, 0, vcc")
    a(f"""
      s_cmp_lg_u32 s2, 0
      s_cbranch_scc1 F_NOTAG
      s_cmp_lg_u32 s3, 0
      s_cbranch_scc1 F_NOTAG
      s_mul_i32 s41, s41, 0x9e3779b1
      s_xor_b32 s40, s40, s41
      s_or_b32 s40, s40, 1
      v_mov_b32 v8, s40
      v_lshlrev_b32 v9, 8, v2
      buffer_store_dword v8, v9, s[28:31], 0 offen sc1
    F_NOTAG:
      s_cmp_ge_u32 s2, 144
      s_cbranch_scc1 F_OTHER
    """)
    a(f"""
      s_and_b32 s5, s4, 15                ; rb
      s_lshr_b32 s6, s4, 4                ; cb
      v_lshrrev_b32 v6, 5, v0             ; rg 0..15
      v_and_b32 v7, 31, v0                ; cp
      s_lshl_b32 s7, s5, 7
      v_lshl_add_u32 v8, v6, 3, s7        ; s0
      s_lshl_b32 s7, s6, 7
      v_lshl_add_u32 v9, v7, 2, s7
      v_mul_u32_u24 v10, 1152, v8
      v_add_u32 v10, v10, v9              ; row s0
      v_subrev_u32 v11, 4608, v10         ; row s0-4
      v_add_u32 v12, 4608, v10            ; row s0+4
      v_lshlrev_b32 v13, 2, v9
    """)
    a.srd(12, "k"); a.srd(16, "v"); a.srd(20, "shk"); a.srd(24, "q"); a.srd(32, "ssmk")
    KR, VR, QR, SQ, TK = 20, 32, 104, 124, 144
    a("buffer_load_dwordx4 v[16:19], v13, s[20:23], 0 offen")
    for i in range(1, 12):
        a(f"buffer_load_dword v{KR+i}, {['v11','v10','v12'][i//4]}, s[12:15], 0 offen offset:{1152*(i%4)}")
        if i >= 4: a(f"buffer_load_dword v{VR+i-3}, {['v11','v10','v12'][i//4]}, s[16:19], 0 offen offset:{1152*(i%4)}")
    def zero_gm():
        a(f"""
          v_mov_b32 v120, 0
          v_lshlrev_b32 v121, 1, v0
          s_lshl_b32 s46, s2, 10
          s_add_u32 s46, s46, {ST2}
          buffer_store_short v120, v121, s[8:11], s46 offen
          s_and_b32 s46, s3, 3
          s_lshl_b32 s47, s2, 2
          s_add_u32 s46, s46, s47
          s_lshl_b32 s46, s46, 7
          s_lshr_b32 s47, s3, 2
          s_mul_i32 s47, s47, {FLP-FLB}
          s_add_u32 s46, s46, s47
          s_add_u32 s46, s46, {FLB}
          buffer_store_dword v120, v122, s[8:11], s46 offen
        """)
    a(f"""
      s_and_b32 s36, s3, 3
      s_mul_i32 s38, s36, {CH_LDS}
      s_lshl_b32 s7, s4, 2
      s_add_u32 s7, s7, s36               ; channel
      s_lshl_b32 s44, s7, 12
      s_add_u32 s45, s44, {UR}
      v_sub_u32 v13, 15, v6
      v_and_b32 v11, 7, v7
      v_xor_b32 v13, v13, v11
      v_lshlrev_b32 v13, 4, v13
      v_lshl_add_u32 v13, v7, 9, v13
      v_add_u32 v13, {YO}, v13
      v_mov_b32 v123, 0
      v_mov_b32 v15, {CNT}
      ds_write2_b32 v15, v123, v123 offset1:1
      ds_write2_b32 v15, v123, v123 offset0:2 offset1:3
      buffer_load_dword v123, v123, s[28:31], 0 offen sc1
      s_lshl_b32 s46, s4, 4
      s_lshl_b32 s47, s36, 2
      s_add_u32 s46, s46, s47
      v_lshrrev_b32 v14, 5, v2
      v_add_u32 v14, s46, v14
      v_mul_u32_u24 v15, 1152, v14
      v_lshl_add_u32 v15, v7, 2, v15
      s_waitcnt vmcnt(1)
      s_cmp_lt_u32 s3, 4
      s_cbranch_scc1 F_P1_K
    """)
    for r in range(2):
        for i in range(9):
            a(f"buffer_load_dword v{SQ+9*r+i}, v15, s[24:27], 0 offen offset:{128*i + 2304*r}")
    a("s_branch F_P1_C\nF_P1_K:")
    def kcopy(t):
        a(f"s_add_u32 m0, s38, {t*KCS + 60 - 4*t}\ns_nop 0")
        for i in range(4):
            a(f"buffer_load_dwordx4 v3, s[32:35], s44 offen offset:{1024*i} lds")
    kcopy(0)
    a("F_P1_C:")
    a(a.stamp(1))
    SH, KU, VU = 50, 58, 82
    for j in range(4):
        op = "v_lshlrev_b32 {d}, 16, {s}" if j % 2 == 0 else "v_and_b32 {d}, 0xffff0000, {s}"
        a(op.format(d=f"v{SH+2*j}", s=f"v{16+j//2}"))
        a(op.format(d=f"v{SH+1+2*j}", s=f"v{18+j//2}"))
    for i in range(1, 12): a(f"v_lshlrev_b32 v{KU+2*i}, 16, v{KR+i}\nv_and_b32 v{KU+1+2*i}, 0xffff0000, v{KR+i}")
    for i in range(1, 9): a(f"v_lshlrev_b32 v{VU+2*i}, 16, v{VR+i}\nv_and_b32 v{VU+1+2*i}, 0xffff0000, v{VR+i}")
    RES = 20
    for i in range(1, 9):
        d = f"v[{RES+2*i}:{RES+1+2*i}]"
        kk = lambda j: f"v[{KU+2*(i+3-j)}:{KU+1+2*(i+3-j)}]"
        a(f"v_pk_mul_f32 {d}, {kk(3)}, v[{SH+6}:{SH+7}]")
        for j in (2, 1, 0): a(f"v_pk_fma_f32 {d}, {kk(j)}, v[{SH+2*j}:{SH+1+2*j}], {d}")
        a(f"v_pk_mul_f32 {d}, {d}, v[{VU+2*i}:{VU+1+2*i}]")
    o = 60
    for ch in range(2):
        for dd in range(4):
            a(f"v_cvt_pk_bf16_f32 v{o+dd}, v{RES+2*(8-2*dd)+ch}, v{RES+2*(7-2*dd)+ch}")
        a(f"ds_write_b128 v13, v[{o}:{o+3}] offset:{ch*256}")
        o += 4
    a(f"""
      v_lshrrev_b32 v11, 4, v0
      v_and_b32 v12, 7, v6
      v_xor_b32 v12, v4, v12
      v_lshlrev_b32 v12, 4, v12
      v_lshl_add_u32 v12, v11, 8, v12
      v_add_u32 v12, {YO}, v12
      v_lshlrev_b32 v11, 12, v11
      v_lshl_add_u32 v11, v4, 4, v11
      s_lshl_b32 s46, s6, 18
      s_sub_u32 s47, 15, s5
      s_lshl_b32 s47, s47, 8
      s_add_u32 s46, s46, s47
      s_add_u32 s46, s46, {UR}
      s_waitcnt lgkmcnt(0)
      {FS(2)}
      s_barrier
      {FS(3)}
      s_cmp_ge_u32 s3, 4
      s_cbranch_scc1 F_HELP
    """)
    for i in range(4): a(f"ds_read_b128 v[{60+4*i}:{63+4*i}], v12 offset:{4096*i}")
    for i in range(4):
        a(f"s_waitcnt lgkmcnt({3-i})")
        a(f"buffer_store_dwordx4 v[{60+4*i}:{63+4*i}], v11, s[8:11], s46 offen sc1")
        if i < 3: a(f"s_add_u32 s46, s46, {16*4096}")
    KC = range(1, 4)
    for t in KC: kcopy(t)
    a(FS(4))
    a(f"s_waitcnt vmcnt({4*len(KC)})")
    a(FS(5))
    check_nonce(a, "F_C", "v123")
    a(f"""
      {a.stamp(2)}
      v_mov_b32 v14, s42
      s_lshr_b32 s7, s44, 5
      s_add_u32 s7, s7, {FU}
      buffer_store_dword v14, v122, s[8:11], s7 offen sc1
    """)
    if 'klate' in X:
        for t in range(1, 4): kcopy(t)
    p = a.ptr("ssmD"); w = a.ptr("ws")
    a(f"""
      s_lshl_b32 s7, s4, 3
      s_load_dwordx2 s[20:21], s[{p}:{p+1}], s7
      s_lshl_b32 s7, s6, 6
      s_and_b32 s22, s4, 3
      s_add_u32 s7, s7, s22
      v_lshl_add_u32 v14, v4, 2, s7
      v_lshlrev_b32 v14, 7, v14
      v_add_u32 v14, {FU}, v14
      v_mov_b32 v8, 0
      v_mov_b32 v9, 0
      v_mov_b32 v10, 0
      v_mov_b32 v11, 0
      v_mul_u32_u24 v12, {KCS}, v5
      v_lshl_add_u32 v12, v4, 2, v12
      v_add_u32 v12, s38, v12
      v_add_u32 v13, v4, v5
      v_lshrrev_b32 v16, 5, v2
      v_mul_u32_u24 v16, {URS}, v16
      v_and_b32 v15, 31, v2
      v_lshl_add_u32 v16, v15, 4, v16
      v_add_u32 v16, s38, v16
      v_cmp_gt_u32 vcc, 15, v13
      s_and_saveexec_b64 s[46:47], vcc
      ds_write_b32 v12, v8
      s_mov_b64 exec, s[46:47]
      v_cmp_gt_u32 vcc, 28, v15
      s_and_saveexec_b64 s[46:47], vcc
      ds_write_b128 v16, v[8:11] offset:{URO+4096}
      s_mov_b64 exec, s[46:47]
      v_and_b32 v12, 3, v4
      v_mul_u32_u24 v12, {KCS}, v12
      v_lshrrev_b32 v13, 2, v4
      v_add_u32 v13, v13, v5
      v_lshl_add_u32 v12, v13, 4, v12
      v_add_u32 v12, s38, v12
      v_lshrrev_b32 v13, 3, v4            ; p
      v_mul_u32_u24 v13, {URS}, v13
      v_lshl_add_u32 v13, v5, 4, v13
      v_and_b32 v16, 7, v4                ; a'
      v_lshlrev_b32 v16, 6, v16
      v_sub_u32 v13, v13, v16
      s_add_u32 s7, s38, {URO + 448}
      v_add_u32 v13, s7, v13
      v_and_b32 v6, 7, v4
      v_mul_u32_u24 v6, 144, v6
      v_lshl_add_u32 v6, v5, 5, v6
      v_lshrrev_b32 v15, 3, v4
      v_lshl_add_u32 v6, v15, 4, v6
      s_mul_i32 s7, s3, {YS}
      s_add_u32 s7, s7, {YO}
      v_add_u32 v6, s7, v6
      s_waitcnt lgkmcnt(0)
      s_cmp_ge_u32 s3, 2
      s_cselect_b32 s7, s21, s20
      s_and_b32 s22, s3, 1
      s_lshl_b32 s22, s22, 4
      s_lshr_b32 s7, s7, s22
      s_and_b32 s7, s7, 0xffff
      v_mov_b32 v15, s7
      v_lshl_add_u32 v16, v5, 2, v4       ; m + 4g
    """)
    for dd in range(4):
        a(f"v_cmp_eq_u32 vcc, {15-dd}, v16\ns_nop 1\nv_cndmask_b32 v{8+dd}, 0, v15, vcc")
    if 'allpoll' in X: poll(a, "F_U", "v14", "v15")
    else:
        a(f"v_mov_b32 v16, {CNT}\ns_cmp_lg_u32 s3, 0\ns_cbranch_scc1 F_U_W")
        poll(a, "F_U", "v14", "v15")
        a("""
          v_mov_b32 v15, 1
          ds_write_b32 v16, v15 offset:12
          s_branch F_U_J
        F_U_W:
          ds_read_b32 v15, v16 offset:12
          s_waitcnt lgkmcnt(0)
          v_readfirstlane_b32 s46, v15
          s_nop 3
          s_cmp_eq_u32 s46, 0
          s_cbranch_scc1 F_U_W
          s_waitcnt vmcnt(0)
        F_U_J:
        """)
    a(a.stamp(3))
    UB = 112
    for i in range(4):
        a(f"buffer_load_dwordx4 v[{UB+8*i}:{UB+8*i+3}], v3, s[8:11], s45 offen offset:{1024*i} sc1")
        a(f"buffer_load_dword v{UB+8*i+4}, v3, s[8:11], s45 offen offset:{1024*i+16} sc1")
    a(f"s_add_u32 s7, s38, {URO}\nv_add_u32 v14, s7, v3\nv_cmp_eq_u32 vcc, 63, v2")
    ACC = 16; FR = [48, 112]
    def reads(buf, r, which="AB"):
        out = []
        for i in range(8):
            if "B" in which: out.append(f"ds_read_b128 v[{FR[buf]+32+4*i}:{FR[buf]+35+4*i}], v13 offset:{64*r + 512*(7-i)}")
            if "A" in which: out.append(f"ds_read_b128 v[{FR[buf]+4*i}:{FR[buf]+3+4*i}], v12 offset:{64*r + 512*i}")
        return out
    def mfmas(buf):
        out = []
        for p_ in range(8):
            for q_ in range(8 - p_):
                j = p_ + q_
                out.append(f"v_mfma_f32_16x16x32_bf16 v[{ACC+4*j}:{ACC+4*j+3}], v[{FR[buf]+4*p_}:{FR[buf]+4*p_+3}], v[{FR[buf]+32+4*q_}:{FR[buf]+35+4*q_}], v[{ACC+4*j}:{ACC+4*j+3}]")
        return out
    for x in reads(0, 0, "A"): a(x)
    for i in range(4):
        b = UB + 8*i
        a(f"s_waitcnt vmcnt({6-2*i})")
        if i == 3: a(f"v_cndmask_b32 v{b+4}, v{b+4}, 0, vcc")
        a(f"ds_write_b128 v14, v[{b}:{b+3}] offset:{URS + 1024*i}")
        for d_ in range(4): a(f"v_alignbit_b32 v{144+4*i+d_}, v{b+d_+1}, v{b+d_}, 16")
        a(f"ds_write_b128 v14, v[{144+4*i}:{147+4*i}] offset:{1024*i}")
        if i == 1: a("s_waitcnt lgkmcnt(0)")
    a(f"v_mov_b32 v14, 1\nv_mov_b32 v15, {CNT}\ns_mov_b64 exec, 1\nds_add_u32 v15, v14 offset:8\ns_mov_b64 exec, -1")
    a("s_waitcnt lgkmcnt(0)")
    a(a.stamp(4))
    for x in reads(0, 0, "B"): a(x)
    touch_wsp(a, 176, 4)
    a("s_waitcnt lgkmcnt(0)")
    for q_ in range(8):
        a(f"v_mfma_f32_16x16x32_bf16 v[{ACC+4*q_}:{ACC+4*q_+3}], v[8:11], v[{FR[0]+32+4*q_}:{FR[0]+35+4*q_}], 0")
    a("s_mov_b32 s7, 0\nF_CLOOP:")
    for x in interleave(mfmas(0), reads(1, 1), per=1): a(x)
    a("s_waitcnt lgkmcnt(0)")
    for x in interleave(mfmas(1), reads(0, 2), per=1): a(x)
    a("""
      v_add_u32 v12, 128, v12
      v_add_u32 v13, 128, v13
      s_add_u32 s7, s7, 1
      s_cmp_lt_u32 s7, 4
      s_waitcnt lgkmcnt(0)
      s_cbranch_scc1 F_CLOOP
      s_nop 3
    """)
    a(a.stamp(5))
    for j in range(8):
        a(f"ds_write_b128 v6, v[{ACC+4*j}:{ACC+4*j+3}] offset:{j*8*144}")
    a("s_waitcnt lgkmcnt(0)\ns_barrier")
    a(f"v_cmp_eq_u32 vcc, 0, v2\nv_mov_b32 v122, {BIG}\ns_nop 0\nv_cndmask_b32 v122, v122, 0, vcc")
    zero_gm()
    a.stamp_end(0, 7)
    a("s_endpgm")

    a("F_HELP:")
    a(f"""
      s_cmp_ge_u32 s4, 128
      s_cbranch_scc1 F_H_SKIP
      v_lshrrev_b32 v8, 1, v7             ; c>>1
      v_and_b32 v9, 7, v8
      s_lshl_b32 s7, s36, 1
      v_xor_b32 v9, s7, v9
      v_lshlrev_b32 v8, 7, v8
      v_lshrrev_b32 v10, 5, v2
      v_lshl_add_u32 v8, v10, 3, v8
      v_and_b32 v10, 1, v7
      v_lshl_add_u32 v8, v10, 2, v8
      v_add_u32 v8, {QO}, v8
      v_lshl_add_u32 v10, v9, 4, v8       ; r = 0
      v_xor_b32 v9, 1, v9
      v_lshl_add_u32 v11, v9, 4, v8       ; r = 1
      s_waitcnt vmcnt(0)
      {FS(4)}
    """)
    for r in range(2):
        for i in range(9): a(f"ds_write_b32 v{10+r}, v{SQ+9*r+i} offset:{2048*i}")
        a("s_waitcnt lgkmcnt(0)")
    a(f"""
      v_mov_b32 v8, 1
      v_mov_b32 v9, {CNT}
      s_mov_b64 exec, 1
      ds_add_u32 v9, v8 offset:4
      s_mov_b64 exec, -1
      v_cmp_eq_u32 vcc, 0, v7
      v_lshlrev_b32 v15, 3, v14
      v_mov_b32 v14, {BIG}
      s_mov_b32 s7, {ST1}
      v_cndmask_b32 v15, v14, v15, vcc
    """)
    a(f"""
      v_and_b32 v1, 255, v0
      v_lshrrev_b32 v10, 3, v1            ; cg (+32 i)
      v_and_b32 v11, 7, v2
      v_xor_b32 v12, v11, v10
      v_and_b32 v12, 7, v12
      v_lshlrev_b32 v12, 4, v12
      v_lshl_add_u32 v12, v10, 7, v12
      v_add_u32 v12, {QO}, v12
      v_lshlrev_b32 v10, 14, v10
      v_lshl_add_u32 v10, v11, 4, v10
      s_lshl_b32 s47, s4, 7
      s_add_u32 s47, s47, {QP}
    F_H_SYNC:
      ds_read_b32 v8, v9 offset:4
      s_waitcnt lgkmcnt(0)
      v_readfirstlane_b32 s46, v8
      s_nop 3
      s_cmp_lt_u32 s46, 4
      s_cbranch_scc1 F_H_SYNC
    """)
    for i in range(4): a(f"ds_read_b128 v[{60+4*i}:{63+4*i}], v12 offset:{4096*i}")
    for i in range(4):
        a(f"s_waitcnt lgkmcnt({3-i})")
        a(f"buffer_store_dwordx4 v[{60+4*i}:{63+4*i}], v10, s[8:11], s47 offen sc1")
        a(f"s_add_u32 s47, s47, {32*16384}")
    a(f"""
      s_cmp_ge_u32 s36, 2
      s_cbranch_scc1 F_H_ST
      ds_read_b128 v[76:79], v12 offset:16384
      s_waitcnt lgkmcnt(0)
      buffer_store_dwordx4 v[76:79], v10, s[8:11], s47 offen sc1
    F_H_ST:
      {FS(5)}
    """)
    U = 20
    for r in range(2):
        for i in range(9): a(f"v_lshlrev_b32 v{U+2*i}, 16, v{SQ+9*r+i}\nv_and_b32 v{U+1+2*i}, 0xffff0000, v{SQ+9*r+i}")
        a(f"v_pk_add_f32 v[16:17], v[{U}:{U+1}], v[{U+2}:{U+3}]")
        for i in range(2, 9): a(f"v_pk_add_f32 v[16:17], v[16:17], v[{U+2*i}:{U+1+2*i}]")
        a("v_add_f32 v16, v16, v17")
        red32(a, "v16", "v17")
        a(f"v_mul_f32 v16, {float_hex(1.0/576)}, v16")
        for i in range(18): a(f"v_sub_f32 v{U+i}, v{U+i}, v16")
        R = 40 + 2*r
        a(f"v_pk_mul_f32 v[{R}:{R+1}], v[{U}:{U+1}], v[{U}:{U+1}]")
        for i in range(1, 9): a(f"v_pk_fma_f32 v[{R}:{R+1}], v[{U+2*i}:{U+1+2*i}], v[{U+2*i}:{U+1+2*i}], v[{R}:{R+1}]")
        a(f"v_add_f32 v{R}, v{R}, v{R+1}")
        red32(a, f"v{R}", f"v{R+1}")
        a(f"""
          v_mov_b32 v{R+1}, {float_hex(1e-5)}
          v_fmac_f32 v{R+1}, {float_hex(1.0/576)}, v{R}
          v_rsq_f32 v{R}, v{R+1}
          s_nop 0
          v_mul_f32 v{R+1}, v16, v{R}
          v_sub_f32 v{R+1}, 0, v{R+1}
          buffer_store_dwordx2 v[{R}:{R+1}], v15, s[8:11], s7 offen offset:{16*r} sc1
        """)
    a(f"""
    F_H_SKIP:
      s_waitcnt vmcnt(0)
    """)
    check_nonce(a, "F_H", "v123")
    a(f"""
      {a.stamp(2)}
      v_mov_b32 v14, 1
      v_mov_b32 v15, {CNT}
      s_mov_b64 exec, 1
      ds_add_rtn_u32 v14, v15, v14
      s_waitcnt lgkmcnt(0)
      v_readfirstlane_b32 s7, v14
      s_mov_b64 exec, -1
      s_cmp_lg_u32 s7, 3
      s_cbranch_scc1 F_H_NOF
      v_mov_b32 v14, s42
      s_lshl_b32 s7, s4, 7
      s_add_u32 s7, s7, {FH2}
      buffer_store_dword v14, v122, s[8:11], s7 offen offset:4 sc1
    F_H_NOF:
    """)
    zero_gm()
    a(f"""
      v_and_b32 v1, 255, v0               ; t
      v_lshrrev_b32 v15, 2, v2
      v_lshlrev_b32 v15, 4, v15
      v_and_b32 v16, 3, v2
      s_lshl_b32 s7, s36, 2
      v_add3_u32 v15, v15, v16, s7
      v_lshlrev_b32 v15, 7, v15
      v_add_u32 v15, {FH2}, v15
      v_bfe_u32 v17, v2, 3, 2
      v_min_u32 v17, 2, v17
      v_mul_u32_u24 v17, 576, v17
      v_bfe_u32 v18, v2, 2, 1
      v_mul_u32_u24 v18, 3456, v18
      s_lshl_b32 s7, s4, 2
      v_add3_u32 v16, v16, v17, v18
      v_add_u32 v16, s7, v16
      v_lshlrev_b32 v16, 3, v16
      v_add_u32 v16, {MODP}, v16
      v_cmp_gt_u32 vcc, 32, v2
      s_nop 1
      v_cndmask_b32 v15, v16, v15, vcc
      v_lshlrev_b32 v9, 3, v1             ; t*8
      s_lshl_b32 s38, s4, 14
      s_add_u32 s38, s38, {QP}
      s_mov_b32 s39, {ST1}
      v_lshrrev_b32 v12, 5, v1
      v_mul_u32_u24 v13, 144, v12
      v_and_b32 v14, 24, v1
      v_and_b32 v16, 1, v1
      v_lshl_add_u32 v14, v16, 2, v14
      v_bfe_u32 v16, v1, 1, 2
      v_add_u32 v14, v14, v16
      v_lshl_add_u32 v13, v14, 2, v13
      v_add_u32 v13, {YO}, v13
      v_mul_u32_u24 v12, 36864, v12
      v_bfe_u32 v14, v1, 2, 1
      v_mul_u32_u24 v14, 18432, v14
      v_add_u32 v12, v12, v14
      v_bfe_u32 v14, v1, 3, 2
      v_lshl_add_u32 v12, v14, 5, v12
      v_and_b32 v14, 3, v1
      v_lshl_add_u32 v12, v14, 3, v12
      s_lshl_b32 s7, s4, 7
      s_add_u32 s7, s7, {X1F}
    """)
    if 'nohw' not in X: a(f"""
      v_mov_b32 v10, {CNT}
    F_H_W2:
      ds_read_b32 v11, v10 offset:8
      s_waitcnt lgkmcnt(0)
      v_readfirstlane_b32 s46, v11
      s_sleep 1
      s_cmp_lt_u32 s46, 4
      s_cbranch_scc1 F_H_W2
    """)
    poll(a, "F_HP", "v15", "v11", pair="v[10:11]")
    a(a.stamp(3))
    Q, STT, Y, H, MD, WR = 16, 32, 48, 80, 144, 160
    for i in range(8):
        a(f"buffer_load_dwordx2 v[{STT+2*i}:{STT+1+2*i}], v9, s[8:11], s39 offen offset:{2048*(i%2)} sc1")
        a(f"buffer_load_dwordx2 v[{Q+2*i}:{Q+1+2*i}], v9, s[8:11], s38 offen offset:{2048*(i%2)} sc1")
        if i % 2 == 1 and i < 7: a("s_add_u32 s39, s39, 4096\ns_add_u32 s38, s38, 4096")
    a("""
      v_add_f32_dpp v10, v10, v10 row_shl:4 row_mask:0xf bank_mask:0xf
      v_bfe_u32 v11, v2, 3, 2
      v_cmp_eq_u32 vcc, 1, v11
      v_cvt_pk_bf16_f32 v10, v10, v10
      v_lshlrev_b32 v10, 16, v10
      v_cndmask_b32 v11, 0, 1.0, vcc
      v_add_f32 v10, v10, v11
      v_cvt_pk_bf16_f32 v10, v10, v10
      v_lshlrev_b32 v10, 16, v10
      s_nop 0
    """)
    for i in range(12): a(f"v_readlane_b32 s{12+i}, v10, {32 + 8*(i//4) + i%4}")
    a("s_nop 1")
    for i in range(12): a(f"v_mov_b32 v{MD+i}, s{12+i}")
    for i in range(8):
        q0, q1 = Q+2*i, Q+1+2*i
        t = H + 8*i
        a(f"""
          s_waitcnt vmcnt({14-2*i})
          v_lshlrev_b32 v{t}, 16, v{q0}
          v_and_b32 v{t+1}, 0xffff0000, v{q0}
          v_lshlrev_b32 v{t+2}, 16, v{q1}
          v_and_b32 v{t+3}, 0xffff0000, v{q1}
        """)
        for c in range(4): a(f"v_fma_f32 v{t+4+c}, v{t+c}, v{STT+2*i}, v{STT+2*i+1}")
        for c in range(4): a(f"v_fma_f32 v{t+4+c}, v{t+4+c}, v{MD+4+c}, v{MD+c}")
        for c in range(4): a(f"v_mul_f32 v{t+4+c}, v{t+4+c}, v{MD+8+c}")
    a(a.stamp(4))
    a("s_barrier")
    a(a.stamp(5))
    def yrd(i):
        for c in range(4):
            a(f"ds_read_b32 v{Y+4*i+c}, v13 offset:{c*YS + i*8*144}")
    if Asm.STAMPS: a("s_waitcnt lgkmcnt(0)")
    for i in range(3): yrd(i)
    for i in range(8):
        t = H + 8*i
        a(f"s_waitcnt lgkmcnt({min(8, 28-4*i)})")
        if i + 3 < 8: yrd(i+3)
        a(f"""
          v_pk_fma_f32 v[{t}:{t+1}], v[{t+4}:{t+5}], v[{Y+4*i}:{Y+1+4*i}], v[{t}:{t+1}]
          v_pk_fma_f32 v[{t+2}:{t+3}], v[{t+6}:{t+7}], v[{Y+2+4*i}:{Y+3+4*i}], v[{t+2}:{t+3}]
          v_cvt_pk_bf16_f32 v{Q+2*i}, v{t}, v{t+1}
          v_cvt_pk_bf16_f32 v{Q+1+2*i}, v{t+2}, v{t+3}
          buffer_store_dwordx2 v[{Q+2*i}:{Q+1+2*i}], v12, s[8:11], s7 offen sc1
        """)
        if i < 7: a(f"s_add_u32 s7, s7, {8*36864}")
    a.stamp_end(0, 7)
    a("s_endpgm")

    a("F_OTHER:")
    a("s_cmp_ge_u32 s2, 252\ns_cbranch_scc1 F_LAST")
    a("s_cmp_lt_u32 s2, 216\ns_cbranch_scc1 F_WIN")
    a.srd(12, "wmod"); a.srd(16, "c")
    a(f"""
      s_sub_u32 s4, s2, 216
      s_and_b32 s5, s4, 1                 ; half
      s_lshr_b32 s4, s4, 1                ; cbk
      s_mul_i32 s6, s5, 288
      v_and_b32 v6, 7, v0                 ; chunk
      v_lshrrev_b32 v7, 3, v0
      v_add_u32 v10, s6, v7
      v_mul_u32_u24 v8, 6912, v10
      v_lshl_add_u32 v8, v6, 4, v8
      v_lshlrev_b32 v9, 1, v10
      s_cmp_lt_u32 s3, 4
      s_cselect_b32 s7, 0, {BIG}
      v_add_u32 v11, s7, v8
      v_add_u32 v12, s7, v9
      s_add_u32 s20, s4, 27
      s_mov_b32 s21, s4
      s_add_u32 s22, s4, 18
      s_add_u32 s23, s4, 36
      s_cmp_lt_u32 s4, 9
      s_cselect_b32 s22, s22, s23
      v_mov_b32 v123, 0
    """)
    C, T, AC = 16, 24, 32
    for i in range(5): a(f"buffer_load_ushort v{C+i}, {'v9' if i < 4 else 'v12'}, s[16:19], 0 offen offset:{128*i}")
    def mloads(r):
        b = 48 + 20*(r % 2)
        a(f"s_lshl_b32 s24, s{20+r}, 7")
        for i in range(5):
            a(f"buffer_load_dwordx4 v[{b+4*i}:{b+3+4*i}], {'v8' if i < 4 else 'v11'}, s[12:15], s24 offen")
            if i < 4: a(f"s_add_u32 s24, s24, {64*6912}")
    mloads(0)
    a("buffer_load_dword v123, v123, s[28:31], 0 offen sc1")
    a("s_waitcnt vmcnt(6)")
    a("\n".join(f"v_lshlrev_b32 v{C+i}, 16, v{C+i}" for i in range(5)))
    a("\n".join(f"v_mul_f32 v{T+i}, {float_hex(-1.4426950408889634)}, v{C+i}" for i in range(5)))
    a("\n".join(f"v_exp_f32 v{T+i}, v{T+i}" for i in range(5)))
    a("\n".join(f"v_add_f32 v{T+i}, 1.0, v{T+i}" for i in range(5)))
    a("\n".join(f"v_rcp_f32 v{T+i}, v{T+i}" for i in range(5)))
    a("\n".join(f"v_mul_f32 v{C+i}, v{C+i}, v{T+i}" for i in range(5)))
    a("\n".join(f"v_cvt_pk_bf16_f32 v{C+i}, v{C+i}, v{C+i}" for i in range(5)))
    a("\n".join(f"v_lshlrev_b32 v{C+i}, 16, v{C+i}" for i in range(5)))
    a(f"""
      v_lshlrev_b32 v13, 8, v1
      v_lshl_add_u32 v13, v6, 5, v13
      v_lshlrev_b32 v14, 2, v2
      v_lshlrev_b32 v15, 3, v2
      s_mul_i32 s25, s5, {3456*8}
      s_add_u32 s25, s25, {MODP}
      s_waitcnt vmcnt(0)
    """)
    check_nonce(a, "F_M", "v123")
    WO = 8192
    def wo_setup():
        a.srd(12, "wout")
        a(f"""
          s_sub_u32 s4, s2, 216
          s_mul_i32 s33, s4, 7282
          s_lshr_b32 s33, s33, 16             ; kq
          s_mul_i32 s5, s33, 9
          s_sub_u32 s32, s4, s5               ; cblk
          s_and_b32 s36, s3, 3                ; jn
          s_lshr_b32 s37, s3, 2               ; K half
          v_lshrrev_b32 v10, 3, v2
          v_and_b32 v11, 7, v2
          v_and_b32 v12, 6, v10
          v_xor_b32 v11, v11, v12
          v_lshlrev_b32 v11, 4, v11
          v_lshrrev_b32 v8, 2, v2
          v_lshlrev_b32 v8, 7, v8
          v_and_b32 v12, 3, v10
          v_xor_b32 v12, s36, v12
          v_lshl_add_u32 v8, v12, 5, v8
          v_and_b32 v12, 3, v2
          v_lshl_add_u32 v8, v12, 3, v8
          s_mul_i32 s26, s37, 36864
          s_add_u32 s26, s26, {WO}
          v_add_u32 v8, s26, v8
          v_mul_u32_u24 v7, 1152, v10
          v_add_u32 v7, v7, v11
          s_mul_i32 s6, s3, 9216
          s_lshl_b32 s7, s33, 3
          s_add_u32 s7, s7, s3
          s_mul_i32 s7, s7, {72*1152}
          s_lshl_b32 s5, s32, 7
          s_add_u32 s7, s7, s5
          s_lshl_b32 s38, s33, 1
          s_add_u32 s38, s38, s37
          s_mul_i32 s38, s38, {9*36864}
          s_lshl_b32 s39, s32, 2
          s_add_u32 s39, s39, s36
          s_lshl_b32 s39, s39, 10
          s_add_u32 s38, s38, s39
          s_add_u32 s35, s38, {WOUTF}
        """)
    def wo_dma(rng):
        for i in rng:
            a(f"s_add_u32 m0, s6, {WO + 1024*i}\ns_nop 0")
            a(f"buffer_load_dwordx4 v7, s[12:15], s7 offen lds")
            if i < 8: a(f"s_add_u32 s7, s7, {8*1152}")
    for r in range(3):
        b = 48 + 20*(r % 2)
        if r > 0: a("s_waitcnt vmcnt(0)")
        if r < 2: mloads(r+1)
        else: wo_setup(); wo_dma(range(4))
        for i in range(5):
            for dd in range(4):
                src = f"v{b+4*i+dd}"
                a(f"v_lshlrev_b32 v24, 16, {src}\nv_and_b32 v25, 0xffff0000, {src}")
                if i == 0: a(f"v_mul_f32 v{AC+2*dd}, v{C}, v24\nv_mul_f32 v{AC+1+2*dd}, v{C}, v25")
                else: a(f"v_fmac_f32 v{AC+2*dd}, v{C+i}, v24\nv_fmac_f32 v{AC+1+2*dd}, v{C+i}, v25")
        a("s_nop 1")
        for j in range(8): a(f"v_add_f32_dpp v{AC+j}, v{AC+j}, v{AC+j} row_ror:8 row_mask:0xf bank_mask:0xf")
        for sw in ("16", "32"):
            for j in range(8): a(f"v_mov_b32 v{40+j}, v{AC+j}")
            a("s_nop 1")
            for j in range(8): a(f"v_permlane{sw}_swap_b32 v{AC+j}, v{40+j}")
            a("s_nop 1")
            for j in range(8): a(f"v_add_f32 v{AC+j}, v{AC+j}, v{40+j}")
        a(f"""
          s_mov_b64 exec, 0xff
          ds_write_b128 v13, v[{AC}:{AC+3}] offset:{2048*r}
          ds_write_b128 v13, v[{AC+4}:{AC+7}] offset:{2048*r+16}
          s_mov_b64 exec, -1
          s_waitcnt lgkmcnt(0)
          s_barrier
          s_cmp_lg_u32 s3, {7-r}
          s_cbranch_scc1 F_MOD_N{r}
        """)
        for i in range(8): a(f"ds_read_b32 v{AC+i}, v14 offset:{2048*r + 256*i}")
        a(f"s_lshl_b32 s24, s{20+r}, 9\ns_add_u32 s24, s24, s25\ns_waitcnt lgkmcnt(0)")
        for i in range(4): a(f"v_add_f32 v{AC+i}, v{AC+i}, v{AC+4+i}")
        a(f"""
          v_add_f32 v{AC}, v{AC}, v{AC+1}
          v_add_f32 v{AC+2}, v{AC+2}, v{AC+3}
          v_add_f32 v{AC}, v{AC}, v{AC+2}
          v_mov_b32 v{AC+1}, s42
          buffer_store_dwordx2 v[{AC}:{AC+1}], v15, s[8:11], s24 offen sc1
          s_nop 1
        F_MOD_N{r}:
        """)
        a(a.stamp(1+r))
    a("""
      s_barrier
    """)
    wo_dma(range(4, 9))
    zero_gm()
    a("s_waitcnt vmcnt(2)\ns_barrier")
    a(a.stamp(4))
    for half in range(2):
        for i in (range(0, 5) if half == 0 else range(5, 9)):
            b1, b2 = (32*i, 32*i+16) if i < 4 else ((144+32*(i-4), 144+32*(i-4)+16) if i < 8 else (128, 272))
            r = 16 + 4*i
            a(f"ds_read_b64_tr_b16 v[{r}:{r+1}], v8 offset:{b1*128}")
            a(f"ds_read_b64_tr_b16 v[{r+2}:{r+3}], v8 offset:{b2*128}")
        a("s_waitcnt lgkmcnt(0)")
    for i in range(9):
        r = 16 + 4*i
        a(f"buffer_store_dwordx4 v[{r}:{r+3}], v3, s[8:11], s35 offen sc1")
        if i < 8: a("s_add_u32 s35, s35, 36864")
    a("s_branch F_FIN")
    TB = 73728; WO = 81920
    a("F_WIN:")
    a.srd(20, "win")
    a(f"""
      s_sub_u32 s4, s2, 144
      s_lshr_b32 s5, s4, 3
      s_and_b32 s4, s4, 7
      s_mul_i32 s4, s4, 9
      s_add_u32 s4, s4, s5                ; unit
      s_and_b32 s24, s3, 3                ; jn
      s_lshr_b32 s25, s3, 2               ; K half
      v_lshrrev_b32 v10, 3, v2
      v_and_b32 v11, 7, v2
      v_and_b32 v12, 6, v10
      v_xor_b32 v11, v11, v12
      v_lshlrev_b32 v11, 4, v11           ; chunk*16
      v_lshrrev_b32 v8, 2, v2
      v_lshlrev_b32 v8, 7, v8
      v_and_b32 v12, 3, v10
      v_xor_b32 v12, s24, v12
      v_lshl_add_u32 v8, v12, 5, v8
      v_and_b32 v12, 3, v2
      v_lshl_add_u32 v8, v12, 3, v8
      s_mul_i32 s26, s25, 36864
      v_add_u32 v9, s26, v8
      s_mul_i32 s26, s25, {144*128}
      s_add_u32 s26, s26, {WO}
      v_add_u32 v8, s26, v8
      s_mul_i32 s6, s3, 9216
      s_mul_i32 s7, s3, {72*9216}
      s_lshl_b32 s5, s4, 7
      s_add_u32 s7, s7, s5
      v_mul_u32_u24 v7, 1152, v10
      v_add_u32 v7, v7, v11
      v_mul_u32_u24 v10, 9216, v10
      v_add_u32 v11, v11, v10
      s_mul_i32 s33, s4, 7282
      s_lshr_b32 s33, s33, 16             ; q8
      s_mul_i32 s5, s33, 9
      s_sub_u32 s32, s4, s5               ; cblk
    """)
    a.srd(16, "ssmk")
    a("v_lshlrev_b32 v14, 4, v0\ns_lshl_b32 s5, s4, 15")
    for i in range(4 if 'notk' not in X else 0):
        a(f"buffer_load_dwordx4 v[{16+4*i}:{19+4*i}], v14, s[16:19], s5 offen")
        if i < 3: a("s_add_u32 s5, s5, 8192")
    for i in range(9):
        a(f"s_add_u32 m0, s6, {1024*i}\ns_nop 0")
        a(f"buffer_load_dwordx4 v11, s[20:23], s7 offen lds")
        if i < 8: a(f"s_add_u32 s7, s7, {8*9216}")
    zero_gm()
    get_nonce(a, "F_W", "v14")
    a(f"""
      v_min_u32 v6, 287, v0
      v_lshlrev_b32 v12, 4, v6
      s_mov_b32 s16, {MODP + 3*576*8}
      s_mov_b32 s17, {MODP + 3*576*8 + 3456*8}
      s_mov_b32 s18, {MODP + 4*576*8}
      s_mov_b32 s19, {MODP + 4*576*8 + 3456*8}
      s_mov_b32 s43, 0
      s_cmp_ge_u32 s3, 5
      s_cbranch_scc1 F_WG_SKIP
    F_WG_POLL:
    """)
    for i in range(4): a(f"buffer_load_dwordx4 v[{16+4*i}:{19+4*i}], v12, s[8:11], s{16+i} offen sc1")
    a("s_waitcnt vmcnt(0)\nv_xor_b32 v13, s42, v17")
    for r_ in (19, 21, 23, 25, 27, 29, 31): a(f"v_xor_b32 v14, s42, v{r_}\nv_or_b32 v13, v13, v14")
    a(f"""
      v_cmp_ne_u32 vcc, 0, v13
      s_add_u32 s43, s43, 1
      s_cmp_ge_u32 s43, 0x80000
      s_cbranch_scc1 F_WG_GO
      s_nop 2
      s_cbranch_vccz F_WG_GO
      s_sleep {SLP}
      s_branch F_WG_POLL
    F_WG_GO:
      v_add_f32 v16, v16, v20
      v_add_f32 v18, v18, v22
      v_add_f32 v24, v24, v28
      v_add_f32 v26, v26, v30
      v_cvt_pk_bf16_f32 v16, v16, v18
      v_cvt_pk_bf16_f32 v24, v24, v26
      v_and_b32 v25, 0xffff0000, v24
      v_lshlrev_b32 v24, 16, v24
      v_add_f32 v24, 1.0, v24
      v_add_f32 v25, 1.0, v25
      v_cvt_pk_bf16_f32 v24, v24, v25
      v_and_b32 v25, 0xffff0000, v24
      v_lshlrev_b32 v24, 16, v24
      v_lshlrev_b32 v13, 3, v6
      v_lshlrev_b32 v14, 2, v6
      v_add_u32 v13, {TB}, v13
      v_add_u32 v14, {TB+3072}, v14
      ds_write_b64 v13, v[24:25]
      ds_write_b32 v14, v16
    F_WG_SKIP:
      {a.stamp(1)}
      s_lshl_b32 s16, s4, 2
      s_add_u32 s16, s16, s24             ; fc
      s_cmp_ge_u32 s16, 144
      s_cselect_b32 s17, 144, 0
      s_cselect_b32 s18, 0, {18*9216}
      s_cselect_b32 s23, 1, 0             ; is z2
      s_sub_u32 s34, s16, s17             ; fcl
      s_mul_i32 s19, s34, 7282
      s_lshr_b32 s19, s19, 16             ; nt
      s_mul_i32 s20, s19, 9
      s_sub_u32 s20, s34, s20             ; j
      s_mul_i32 s19, s19, {36*9216}
      s_lshl_b32 s20, s20, 10
      s_add_u32 s19, s19, s20
      s_add_u32 s19, s19, s18
      s_mul_i32 s20, s25, {9*9216}
      s_add_u32 s19, s19, s20
      s_add_u32 s35, s19, {WINF}
      s_mul_i32 s20, s25, 1152
      s_add_u32 s20, s20, {TB}
      v_lshl_add_u32 v12, v5, 4, s20
      s_mul_i32 s20, s25, 576
      s_add_u32 s20, s20, {TB+3072}
      v_lshl_add_u32 v13, v5, 3, s20
      v_mov_b32 v14, 0                    ; u
      v_mov_b32 v15, 0                    ; v
      s_mov_b32 s21, 0x3f803f80
      s_waitcnt vmcnt(0) lgkmcnt(0)
      s_barrier
      {a.stamp(2)}
    """)
    def rd(ks):
        b = 16 + 16*(ks % 3)
        a(f"""
          ds_read_b64_tr_b16 v[{b}:{b+1}], v9 offset:{4096*ks}
          ds_read_b64_tr_b16 v[{b+2}:{b+3}], v9 offset:{4096*ks+2048}
          ds_read_b128 v[{b+4}:{b+7}], v12 offset:{128*ks}
          ds_read_b128 v[{b+8}:{b+11}], v12 offset:{128*ks+64}
          ds_read_b64 v[{b+12}:{b+13}], v13 offset:{64*ks}
          ds_read_b64 v[{b+14}:{b+15}], v13 offset:{64*ks+32}
        """)
    if Asm.STAMPS: a("s_waitcnt lgkmcnt(0)")
    rd(0); rd(1)
    for ks in range(9):
        b = 16 + 16*(ks % 3); t = 64; o = 72 + 4*(ks % 2)
        if ks + 2 < 9:
            a("s_waitcnt lgkmcnt(6)"); rd(ks+2)
        else: a(f"s_waitcnt lgkmcnt({6 if ks + 1 < 9 else 0})")
        for dd in range(4):
            a(f"v_lshlrev_b32 v{t+2*dd}, 16, v{b+dd}\nv_and_b32 v{t+1+2*dd}, 0xffff0000, v{b+dd}")
        for dd in range(4): a(f"v_dot2c_f32_bf16 v15, v{b+dd}, v{b+12+dd}")
        for dd in range(4): a(f"v_pk_mul_f32 v[{t+2*dd}:{t+1+2*dd}], v[{t+2*dd}:{t+1+2*dd}], v[{b+4+2*dd}:{b+5+2*dd}]")
        for dd in range(4): a(f"v_cvt_pk_bf16_f32 v{o+dd}, v{t+2*dd}, v{t+1+2*dd}")
        a(f"buffer_store_dwordx4 v[{o}:{o+3}], v3, s[8:11], s35 offen sc1")
        for dd in range(4): a(f"v_dot2c_f32_bf16 v14, s21, v{o+dd}")
        if ks < 8: a("s_add_u32 s35, s35, 9216")
    a("s_nop 2")
    for sw in ("16", "32"):
        a(f"""
          v_mov_b32 v16, v14
          v_mov_b32 v17, v15
          s_nop 1
          v_permlane{sw}_swap_b32 v14, v16
          v_permlane{sw}_swap_b32 v15, v17
          s_nop 1
          v_add_f32 v14, v14, v16
          v_add_f32 v15, v15, v17
        """)
    a(f"""
      {a.stamp(3)}
      s_lshl_b32 s20, s24, 7
      s_add_u32 s20, s20, {TB+5120}
      v_lshl_add_u32 v18, v4, 3, s20
      v_lshlrev_b32 v16, 2, v4
      v_lshlrev_b32 v17, 3, v4
      s_cmp_lt_u32 s3, 4
      s_cbranch_scc1 F_WIN_NW
      ds_write_b64 v18, v[14:15]
    F_WIN_NW:
      s_waitcnt lgkmcnt(0)
      s_barrier
      {a.stamp(4)}
      s_getpc_b64 s[12:13]
    F_PC:
      s_add_u32 s12, s12, gm_kernel-F_PC
      s_addc_u32 s13, s13, 0
      s_and_b32 s13, s13, 0xffff
      s_cmp_lt_u32 s2, 160
      s_cselect_b32 s14, GM_CODE_END-gm_kernel, 0
      s_mov_b32 s15, 0x20000
      v_lshlrev_b32 v6, 7, v0
      buffer_load_dword v7, v6, s[12:15], 0 offen
      s_cmp_ge_u32 s3, 4
      s_cbranch_scc1 F_FIN
      ds_read_b64 v[20:21], v18
      s_waitcnt lgkmcnt(0)
      v_add_f32 v14, v14, v20
      v_add_f32 v15, v15, v21
      s_mov_b64 exec, 0xffff
      s_cmp_eq_u32 s23, 1
      s_cbranch_scc1 F_WIN_Z2
      s_lshl_b32 s16, s34, 6
      s_add_u32 s16, s16, {UV1}
      buffer_store_dword v14, v16, s[8:11], s16 offen
      s_add_u32 s16, s16, 9216
      buffer_store_dword v15, v16, s[8:11], s16 offen
      s_branch F_FIN
    F_WIN_Z2:
      s_lshl_b32 s16, s34, 7
      s_add_u32 s16, s16, {UV2}
      buffer_store_dwordx2 v[14:15], v17, s[8:11], s16 offen
      s_branch F_FIN
    """)
    a("F_LAST:")
    zero_gm()
    touch_wsp(a, 176, 8)
    a("""
    F_FIN:
    """)
    a.stamp_end(0, 6)
    a("F_END:\ns_endpgm")
    a.stamp = st0
    a.desc("f_kernel", 180, 180)
```

```python
from gen_common import *
import os
X = os.environ.get('X', '').split(',')
G_LDS = 147456
MF = "v_mfma_f32_16x16x32_bf16"
C0 = -2*0.7978845608028654*1.4426950408889634
C1 = C0*0.044715

class VM:
    def __init__(self, text, tag): self.text, self.tag = text, tag
class WAIT:
    def __init__(self, tags, lgkm=False, key=None): self.tags, self.lgkm, self.key = tags, lgkm, key

def resolve(seq):
    issued = []; res = {}
    pos = {}
    for it in seq:
        if isinstance(it, VM):
            pos[it.tag] = len(issued); issued.append(it.tag)
        elif isinstance(it, WAIT):
            idx = [pos[t] for t in it.tags if t in pos]
            assert len(idx) == len(it.tags), ("missing", [t for t in it.tags if t not in pos])
            it.n = min(len(issued) - 1 - max(idx), 62) if idx else 63
            if it.key is not None: res[it.key] = min(res.get(it.key, 63), it.n)
    return res
def emit(a, seq, keyed=None):
    for it in seq:
        if isinstance(it, VM): a(it.text)
        elif isinstance(it, WAIT):
            n = keyed[it.key] if (keyed is not None and it.key is not None) else it.n
            s = []
            if n < 63: s.append(f"vmcnt({n})")
            if it.lgkm: s.append("lgkmcnt(0)")
            if s: a("s_waitcnt " + " ".join(s))
        else: a(it)

def spread(main, fill):
    groups = []; cur = []; other = []
    for x in fill:
        if isinstance(x, VM): groups.append(cur + [x]); cur = []
        elif isinstance(x, str) and x.startswith("s_") and not x.startswith("s_waitcnt"):
            if x != "s_nop 0": cur.append(x)
        else: other.append(x)
    tailops = cur
    n = len(main); slots = [[] for _ in range(n)]
    G = len(groups)
    for i, gr in enumerate(groups):
        pos = min(n-1, (i*n + n//2) // G) if G else 0
        pos = max(pos, 1)
        if len(gr) > 1:
            if i > 0 and slots[pos] : slots[pos] += gr[:-1] + ["s_nop 0"]
            else: slots[pos-1] += gr[:-1]
        slots[pos].append(gr[-1])
    slots[n-1] += tailops
    k = 0
    per = 1
    while k < len(other):
        free = [i for i in range(n) if len(slots[i]) < per]
        need = len(other) - k
        if len(free) >= need or per > 8:
            break
        per += 1
    out = []
    for i in range(n):
        out.append(main[i])
        room = max(0, per - len(slots[i]))
        out += other[k:k+room]; k += min(room, len(other)-k)
        out += slots[i]
    out += other[k:]
    return out
def sched(main, ds, vm_groups, other=[], ds_per=1, vm_start=2):
    n = len(main); slots = [[] for _ in range(n)]
    for i, x in enumerate(ds): slots[min(n-1, i // ds_per)].append(x)
    G = len(vm_groups)
    last = -1
    for i, gr in enumerate(vm_groups):
        pos = vm_start + (i * (n - vm_start)) // G
        pos = min(n-1, max(pos, last + 1)) if last + 1 < n else n-1
        pre = [x for x in gr if not isinstance(x, VM)]
        vm = [x for x in gr if isinstance(x, VM)]
        if vm and pre:
            if pos - 1 >= last and pos >= 1 and pos != last: slots[pos-1] += pre
            else: slots[pos] += pre + ["s_nop 0"]
        elif pre: slots[pos] += pre
        slots[pos] += vm
        last = pos
    def cost(x):
        if isinstance(x, VM): return 8
        if x.startswith(("v_exp", "v_rcp", "v_rsq")): return 8
        return 4
    base = [sum(cost(x) for x in s_) for s_ in slots]
    B = 8
    while True:
        k = 0; plan = []
        for i in range(n):
            c = base[i]; st = k
            while k < len(other) and c + cost(other[k]) <= B: c += cost(other[k]); k += 1
            plan.append((st, k))
        if k == len(other): break
        B += 4
    if B > 8:
        for first in range(n, -1, -1):
            k = 0; plan = []
            for i in range(n):
                c = base[i]; st = k; lim = B if i >= first else B - 4
                while k < len(other) and c + cost(other[k]) <= lim: c += cost(other[k]); k += 1
                plan.append((st, k))
            if k == len(other): break
    for i in range(n): slots[i] += other[plan[i][0]:plan[i][1]]
    out = []
    for i in range(n): out += [main[i]] + slots[i]
    return out
def vgroups(fill):
    groups = []; cur = []
    for x in fill:
        if x == "s_nop 0": continue
        cur.append(x)
        if isinstance(x, VM): groups.append(cur); cur = []
    return groups, cur
def tile_ids(a):
    a("""
      v_lshrrev_b32 v1, 6, v0
      v_and_b32 v2, 63, v0
      v_readfirstlane_b32 s3, v1
      v_lshlrev_b32 v1, 4, v2
      v_and_b32 v3, 15, v2
      v_lshrrev_b32 v12, 4, v2
      s_and_b32 s6, s2, 7
      s_lshr_b32 s7, s2, 3
      s_lshr_b32 s4, s6, 1
      s_lshl_b32 s4, s4, 2
      s_and_b32 s5, s7, 3
      s_add_u32 s4, s4, s5                ; mt
      s_and_b32 s5, s6, 1
      s_lshl_b32 s5, s5, 3
      s_lshr_b32 s7, s7, 2
      s_add_u32 s5, s5, s7                ; nt
    """)
    MAPX = os.environ.get('MAP', '4x8')
    if MAPX == '8x4': a("s_mov_b32 s6, s4\ns_mov_b32 s4, s5\ns_mov_b32 s5, s6")
    if MAPX == '16x2': a("s_lshr_b32 s7, s2, 3\ns_and_b32 s4, s7, 15\ns_lshr_b32 s7, s7, 4\ns_and_b32 s5, s2, 7\ns_lshl_b32 s5, s5, 1\ns_add_u32 s5, s5, s7")
    a("""
      s_lshl_b32 s6, s4, 2
      s_add_u32 s6, s6, s3
      s_mul_i32 s7, s3, 9216
    """)

P0 = {3: (0, 3), 0: (3, 2), 1: (5, 2), 2: (7, 2)}
def dma_group(k, srd, soff, ntiles=None, fl=''):
    T = (k + 1) // 4 + 3
    if ntiles is not None and T >= ntiles: return []
    p0, cnt = P0[k % 4]
    out = [f"s_add_u32 m0, s7, {(T % 4)*36864 + p0*1024}", "s_nop 0"]
    for i in range(cnt):
        out.append(VM(f"buffer_load_dwordx4 v1, {srd}, {soff} offen offset:{1024*i} {fl} lds", ("B", T, p0+i)))
    inc = cnt*1024 if k % 4 != 2 else 36864 - 7168
    out.append(f"s_add_u32 {soff}, {soff}, {inc}")
    return out
def dma_tile(T, srd, soff, fl=''):
    out = []
    for k in (3, 0, 1, 2):
        p0, cnt = P0[k]
        out += [f"s_add_u32 m0, s7, {(T % 4)*36864 + p0*1024}", "s_nop 0"]
        for i in range(cnt):
            out.append(VM(f"buffer_load_dwordx4 v1, {srd}, {soff} offen offset:{1024*i} {fl} lds", ("B", T, p0+i)))
        out.append(f"s_add_u32 {soff}, {soff}, {cnt*1024 if k != 2 else 36864-7168}")
    return out
def btags(T): return [("B", T, p) for p in range(9)]
def b_reads(k, bbase, slotv):
    T = k // 4
    return [f"ds_read_b128 a[{bbase + (k%2)*36 + 4*j}:{bbase + (k%2)*36 + 4*j + 3}], v{slotv + T % 4} offset:{(k%4)*9216 + j*1024}" for j in range(9)]

def gelu_pairs(xs, ts):
    o = []
    P = lambda r: f"v[{r}:{r+1}]"
    for x, t in zip(xs, ts): o.append(f"v_pk_mul_f32 {P(t)}, {P(x)}, {P(x)}")
    for x, t in zip(xs, ts): o.append(f"v_pk_fma_f32 {P(t)}, {P(t)}, s[40:41], v[14:15]")
    for x, t in zip(xs, ts): o.append(f"v_pk_mul_f32 {P(t)}, {P(t)}, {P(x)}")
    for x, t in zip(xs, ts): o += [f"v_exp_f32 v{t}, v{t}", f"v_exp_f32 v{t+1}, v{t+1}"]
    for x, t in zip(xs, ts): o.append(f"v_pk_add_f32 {P(t)}, {P(t)}, 1.0 op_sel_hi:[1,0]")
    for x, t in zip(xs, ts): o += [f"v_rcp_f32 v{t}, v{t}", f"v_rcp_f32 v{t+1}, v{t+1}"]
    for x, t in zip(xs, ts): o.append(f"v_pk_mul_f32 {P(x)}, {P(x)}, {P(t)}")
    return o
def ror_reduce(regs, final=None):
    o = ["s_nop 1"]
    for rot in (8, 4, 2, 1):
        for i, r in enumerate(regs):
            d = final[i] if (final and rot == 1) else r
            o.append(f"v_add_f32_dpp v{d}, v{r}, v{r} row_ror:{rot} row_mask:0xf bank_mask:0xf")
    return o
def ln_finish(s1, s2, n, cnt, t):
    o = []
    inv = float_hex(1.0/n)
    for x in s1: o.append(f"v_mul_f32 v{x}, {inv}, v{x}")
    for y in s2: o.append(f"v_mul_f32 v{y}, {inv}, v{y}")
    for x, y in zip(s1, s2): o.append(f"v_fma_f32 v{y}, -v{x}, v{x}, v{y}")
    for y in s2: o.append(f"v_max_f32 v{y}, 0, v{y}")
    for y in s2: o.append(f"v_add_f32 v{y}, {float_hex(1e-5)}, v{y}")
    for y in s2: o.append(f"v_rsq_f32 v{y}, v{y}")
    o.append("s_nop 0")
    for x, y in zip(s1, s2): o.append(f"v_mul_f32 v{x}, -v{x}, v{y}")
    return o

def gen_g1(a):
    a.begin("g1_kernel")
    a("s_cmp_ge_u32 s2, 256\ns_cbranch_scc1 G1_END")
    a(a.stamp(0))
    a.load_args()
    tile_ids(a)
    a("s_waitcnt lgkmcnt(0)")
    a.srd(8, "ws")
    SL = 252
    a(f"""
      s_mul_i32 s20, s5, {36*9216}
      s_add_u32 s20, s20, s7
      s_add_u32 s20, s20, {WINF}
      s_mul_i32 s21, s6, 36864
      s_add_u32 s21, s21, {X1F}           ; A soffset
      v_lshlrev_b32 v13, 3, v2            ; lane*8
      v_add_u32 v8, 18432, v13
      v_mov_b32 v{SL}, v1
      v_add_u32 v{SL+1}, 36864, v1
      v_add_u32 v{SL+2}, {2*36864}, v1
      v_add_u32 v{SL+3}, {3*36864}, v1
      v_mov_b32 v4, 0x3f803f80
      v_mov_b32 v5, 0x3f803f80
      v_mov_b32 v6, 0x3f803f80
      v_mov_b32 v7, 0x3f803f80
      s_mov_b32 s40, {float_hex(C1)}
      s_mov_b32 s41, {float_hex(C1)}
      v_mov_b32 v14, {float_hex(C0)}
      v_mov_b32 v15, {float_hex(C0)}
      s_mul_i32 s22, s5, {144*8}
      s_add_u32 s22, s22, {UV2}
      v_lshlrev_b32 v9, 3, v3             ; n*8
    """)
    AB, BB = 0, 144
    ACC2, ACC1, ST = 16, 88, 160
    def a_loads(ks):
        if ks >= 18: return []
        o = []
        for t in range(2):
            for h in range(2):
                r = AB + (ks*2+t)*4 + 2*h
                o.append(VM(f"buffer_load_dwordx2 a[{r}:{r+1}], {['v13','v8'][t]}, s[8:11], s21 offen offset:{(ks%4)*1024 + h*512}", ("A", ks, t, h)))
        if ks % 4 == 3: o.append("s_add_u32 s21, s21, 4096")
        return o
    def atags(ks): return [("A", ks, t, h) for t in range(2) for h in range(2)]
    seq = []
    seq += dma_tile(0, "s[8:11]", "s20")
    for ks in range(0, 4): seq += a_loads(ks)
    seq += dma_tile(1, "s[8:11]", "s20")
    for ks in range(4, 6): seq += a_loads(ks)
    seq += dma_tile(2, "s[8:11]", "s20")
    seq += dma_group(-1, "s[8:11]", "s20", 9)
    seq += [WAIT(btags(0)), "s_barrier", a.stamp(1)]
    seq += b_reads(0, BB, SL)
    def kstep(kk, extra=[]):
        ks = kk % 18; ps = kk // 18
        o = []
        need = atags(ks) if ps == 0 else []
        bar = (kk % 4 == 3 and kk < 35)
        if bar: need = need + btags((kk+1)//4)
        o.append(WAIT(need, lgkm=True))
        if bar: o.append("s_barrier")
        m = []
        for j in range(9):
            for t in range(2):
                A = f"a[{AB+(ks*2+t)*4}:{AB+(ks*2+t)*4+3}]"
                B = f"a[{BB+(kk%2)*36+4*j}:{BB+(kk%2)*36+4*j+3}]"
                r = (ACC2 if ps == 0 else ACC1) + (j*2+t)*4
                C = "0" if ks == 0 else f"v[{r}:{r+3}]"
                m.append(f"{MF} v[{r}:{r+3}], {A}, {B}, {C}" if ps == 0 else f"{MF} v[{r}:{r+3}], {B}, {A}, {C}")
        if ps == 0:
            for t in range(2):
                A = f"a[{AB+(ks*2+t)*4}:{AB+(ks*2+t)*4+3}]"
                r = ST + 4*t
                m.append(f"{MF} v[{r}:{r+3}], {A}, v[4:7], {'0' if ks == 0 else f'v[{r}:{r+3}]'}")
                r = ST + 8 + 4*t
                m.append(f"{MF} v[{r}:{r+3}], {A}, {A}, {'0' if ks == 0 else f'v[{r}:{r+3}]'}")
        f = (b_reads(kk+1, BB, SL) if kk < 35 else []) + dma_group(kk, "s[8:11]", "s20", 9) + (a_loads(ks+6) if ps == 0 else []) + extra
        o += interleave(m, f)
        return o
    UV = 176
    uv2 = [VM(f"buffer_load_dwordx2 v[{UV+2*j}:{UV+2*j+1}], v9, s[8:11], s22 offen offset:{128*j}", ("UV2", j)) for j in range(9)]
    for kk in range(18):
        seq += kstep(kk, uv2[3*(kk-12):3*(kk-12)+3] if 12 <= kk < 15 else [])
    seq += [a.stamp(2), "v_mul_u32_u24 v10, 80, v12", "s_nop 7"]
    for t in range(2):
        for r in range(4):
            seq.append(f"ds_bpermute_b32 v{ST+8+4*t+r}, v10, v{ST+8+4*t+r} offset:{4*r}")
    seq.append("s_waitcnt lgkmcnt(0)")
    s1 = [ST+i for i in range(8)]; s2 = [ST+8+i for i in range(8)]
    seq += ln_finish(s1, s2, 576, 8, None)
    ZS = 244
    seq += ["v_and_b32 v10, 3, v3", "v_lshrrev_b32 v11, 2, v3", "v_lshl_add_u32 v11, v11, 4, v3", "v_lshlrev_b32 v11, 2, v11"]
    for t in range(2):
        seq += [f"v_mov_b32 v{ZS+2*t}, v{ST+8+4*t}", f"v_mov_b32 v{ZS+2*t+1}, v{ST+4*t}"]
    for r in range(1, 4):
        seq += [f"v_cmp_eq_u32 vcc, {r}, v10", "s_nop 1"]
        for t in range(2):
            seq += [f"v_cndmask_b32 v{ZS+2*t}, v{ZS+2*t}, v{ST+8+4*t+r}, vcc", f"v_cndmask_b32 v{ZS+2*t+1}, v{ZS+2*t+1}, v{ST+4*t+r}, vcc"]
    for i in range(4): seq.append(f"ds_bpermute_b32 v{ZS+i}, v11, v{ZS+i}")
    seq.append(WAIT([("UV2", j) for j in range(9)]))
    Z1S, Z2S, TMP, GR = 196, 204, 212, 220
    P = lambda r: f"v[{r}:{r+1}]"
    for j in range(9):
        xs = [ACC2 + j*8 + 2*i for i in range(4)]; ts = [TMP + 2*i for i in range(4)]
        uv = P(UV + 2*j)
        for i in range(4): seq.append(f"v_pk_fma_f32 {P(ts[i])}, {P(ST+2*i)}, {uv}, {uv} op_sel:[0,0,1] op_sel_hi:[1,0,1]")
        for i in range(4): seq.append(f"v_pk_fma_f32 {P(xs[i])}, {P(xs[i])}, {P(ST+8+2*i)}, {P(ts[i])}")
        seq += gelu_pairs(xs, ts)
        for i in range(4):
            if j == 0: seq += [f"v_pk_mul_f32 {P(Z2S+2*i)}, {P(xs[i])}, {P(xs[i])}"]
            elif j == 1: seq += [f"v_pk_add_f32 {P(Z1S+2*i)}, {P(xs[i])}, {P(ACC2+2*i)}", f"v_pk_fma_f32 {P(Z2S+2*i)}, {P(xs[i])}, {P(xs[i])}, {P(Z2S+2*i)}"]
            else: seq += [f"v_pk_add_f32 {P(Z1S+2*i)}, {P(xs[i])}, {P(Z1S+2*i)}", f"v_pk_fma_f32 {P(Z2S+2*i)}, {P(xs[i])}, {P(xs[i])}, {P(Z2S+2*i)}"]
    seq += ror_reduce([Z1S+i for i in range(8)] + [Z2S+i for i in range(8)], [GR+2*i for i in range(8)] + [GR+2*i+1 for i in range(8)])
    for i in range(8): seq.append(f"v_or_b32 v{GR+2*i+1}, 1, v{GR+2*i+1}")
    seq += [f"s_lshl_b32 s23, s6, 12", f"s_add_u32 s23, s23, {ST2}", "s_lshl_b32 s24, s5, 8", "s_add_u32 s24, s24, s23",
            "v_lshlrev_b32 v10, 6, v12", "v_lshl_add_u32 v11, v3, 8, v10",
            "v_cmp_eq_u32 vcc, 0, v3", "s_and_saveexec_b64 s[30:31], vcc"]
    for i in range(4): seq.append(VM(f"buffer_store_dwordx4 v[{GR+4*i}:{GR+4*i+3}], v10, s[8:11], s24 offen offset:{16*i} sc1", ("GS", i)))
    seq += ["s_mov_b64 exec, s[30:31]",
            f"s_mul_i32 s22, s5, {144*4}", f"s_add_u32 s22, s22, {UV1}", "s_add_u32 s25, s22, 9216", "v_lshlrev_b32 v9, 4, v12", "s_nop 4"]
    seq.append(a.stamp(3))
    U1 = 160
    uv1 = []
    for j in range(9):
        uv1.append(VM(f"buffer_load_dwordx4 v[{U1+8*j}:{U1+8*j+3}], v9, s[8:11], s22 offen offset:{64*j}", ("U1", j)))
        uv1.append(VM(f"buffer_load_dwordx4 v[{U1+8*j+4}:{U1+8*j+7}], v9, s[8:11], s25 offen offset:{64*j}", ("V1", j)))
    for kk in range(18, 36):
        seq += kstep(kk, uv1[3*(kk-26):3*(kk-26)+3] if 26 <= kk < 32 else [])
    TM1 = 232
    seq.append(a.stamp(4))
    seq += [f"s_lshl_b32 s26, s4, 4", "s_add_u32 s26, s26, s5", "s_lshl_b32 s26, s26, 2", "s_add_u32 s26, s26, s3",
            "s_mul_i32 s26, s26, 9216", f"s_add_u32 s26, s26, {Z1F}", "v_add_u32 v8, 4096, v1", "v_add_u32 v9, 8192, v1", "s_nop 3"]
    seq.append(WAIT([("V1", 8)]))
    for j in range(9):
        xs = [ACC1 + j*8 + 2*i for i in range(4)]; ts = [TM1 + 2*i for i in range(4)]
        for i in range(4):
            zs = P(ZS + 2*(i//2))
            seq.append(f"v_pk_fma_f32 {P(ts[i])}, {P(U1+8*j+2*(i%2))}, {zs}, {P(U1+8*j+4+2*(i%2))} op_sel:[0,1,0] op_sel_hi:[1,1,1]")
        for i in range(4):
            zs = P(ZS + 2*(i//2))
            seq.append(f"v_pk_fma_f32 {P(xs[i])}, {P(xs[i])}, {zs}, {P(ts[i])} op_sel_hi:[1,0,1]")
        seq += gelu_pairs(xs, ts)
        for i in range(4): seq.append(f"v_cvt_pk_bf16_f32 v{U1+8*j+i}, v{xs[i]}, v{xs[i]+1}")
        seq.append(VM(f"buffer_store_dwordx4 v[{U1+8*j}:{U1+8*j+3}], {['v1','v8','v9'][j//4]}, s[8:11], s26 offen offset:{1024*(j%4)}", ("Z1", j)))
    resolve(seq); emit(a, seq)
    PL = 88
    a(a.stamp(5))
    a("s_mov_b32 s27, 0\nG1_POLL:")
    for i in range(4): a(f"buffer_load_dwordx4 v[{PL+4*i}:{PL+4*i+3}], v11, s[8:11], s23 offen offset:{16*i} sc1")
    a("s_waitcnt vmcnt(0)")
    a(f"v_min_u32 v10, v{PL+1}, v{PL+3}")
    for i in range(2, 8): a(f"v_min_u32 v10, v10, v{PL+2*i+1}")
    a("""
      v_cmp_eq_u32 vcc, 0, v10
      s_add_u32 s27, s27, 1
      s_cmp_ge_u32 s27, 0x100000
      s_cbranch_scc1 G1_GO
      s_nop 2
      s_cbranch_vccnz G1_POLL
    G1_GO:
    """)
    R1, R2 = 104, 112
    a(a.stamp(6))
    for x in ror_reduce([PL+i for i in range(16)], [(R1 if i % 2 == 0 else R2) + i//2 for i in range(16)]): a(x)
    for x in ln_finish([R1+i for i in range(8)], [R2+i for i in range(8)], FH, 8, None): a(x)
    a(f"""
      s_mul_i32 s26, s5, {64*9216}
      s_mul_i32 s27, s6, 9216
      s_add_u32 s26, s26, s27
      s_add_u32 s26, s26, {Z2F}
    """)
    for j in range(9):
        xs = [ACC2 + j*8 + 2*i for i in range(4)]
        for i in range(4): a(f"v_pk_fma_f32 {P(xs[i])}, {P(xs[i])}, {P(R2+2*i)}, {P(R1+2*i)}")
        o = 120 + 4*j
        for i in range(4): a(f"v_cvt_pk_bf16_f32 v{o+i}, v{xs[i]}, v{xs[i]+1}")
        a(f"buffer_store_dwordx4 v[{o}:{o+3}], {['v1','v8','v9'][j//4]}, s[8:11], s26 offen offset:{1024*(j%4)}")
    a.stamp_end(2, 8)
    a("G1_END:\ns_endpgm")
    a.desc("g1_kernel", 256+216, 256)

def gen_g2(a):
    a.begin("g2_kernel")
    a("s_cmp_ge_u32 s2, 256\ns_cbranch_scc1 G2_END")
    a(a.stamp(0))
    a.load_args()
    tile_ids(a)
    a(f"""
      s_mul_i32 s20, s5, {64*9216}
      s_add_u32 s20, s20, {Z2F}
      s_lshl_b32 s21, s6, 17
      s_add_u32 s21, s21, {WSPF}
      s_waitcnt lgkmcnt(0)
    """)
    a.srd(8, "ws"); a.srd(12, "ws", 64*9216, "s20"); a.srd(16, "ws", 131072, "s21"); a.srd(24, "bsp")
    SL = 8
    a(f"""
      s_mov_b32 s20, s7
      s_mov_b32 s21, 0
      v_mov_b32 v{SL}, v1
      v_add_u32 v{SL+1}, 36864, v1
      v_add_u32 v{SL+2}, {2*36864}, v1
      v_add_u32 v{SL+3}, {3*36864}, v1
      v_lshrrev_b32 v4, 2, v3
      v_lshlrev_b32 v4, 3, v4
      v_and_b32 v5, 3, v3
      v_add_u32 v4, v4, v5
      v_lshlrev_b32 v4, 1, v4
      s_lshl_b32 s22, s6, 6
      v_add_u32 v13, 4096, v1
      v_add_u32 v14, 8192, v1
      s_lshl_b32 s28, s4, 4
      s_add_u32 s28, s28, s5
      s_lshl_b32 s28, s28, 2
      s_add_u32 s28, s28, s3
      s_mul_i32 s28, s28, 9216
      s_add_u32 s28, s28, {Z1F}
    """)
    BB, AB, ACC, Z1 = 0, 72, 16, 96
    def a_loads(k):
        r = AB + (k % 8)*8
        return [VM(f"buffer_load_dwordx4 a[{r}:{r+3}], v1, s[16:19], s21 offen", ("A", k, 0)),
                VM(f"buffer_load_dwordx4 a[{r+4}:{r+7}], v1, s[16:19], s21 offen offset:1024", ("A", k, 1)),
                "s_add_u32 s21, s21, 2048"]
    pro = []
    pro += dma_tile(0, "s[12:15]", "s20")
    for k in range(0, 4): pro += a_loads(k)
    pro += dma_tile(1, "s[12:15]", "s20")
    for k in range(4, 7): pro += a_loads(k)
    pro += dma_tile(2, "s[12:15]", "s20")
    pro += dma_group(-1, "s[12:15]", "s20")
    pro += [VM("buffer_load_ushort v6, v4, s[24:27], s22 offen", "b0"), VM("buffer_load_ushort v7, v4, s[24:27], s22 offen offset:8", "b1")]
    for j in range(9):
        pro.append(VM(f"buffer_load_dwordx4 v[{Z1+4*j}:{Z1+4*j+3}], {['v1','v13','v14'][j//4]}, s[8:11], s28 offen offset:{1024*(j%4)}", ("Z1", j)))
    for i in range(72): pro.append(f"v_mov_b32 v{ACC+i}, 0")
    pro += [WAIT(btags(0)), "s_barrier", a.stamp(1)]
    pro += b_reads(0, BB, SL)
    def kstep(k):
        o = []
        need = [("A", k, 0), ("A", k, 1)]
        if k % 4 == 3: need += btags((k+1)//4)
        o.append(WAIT(need, lgkm=True, key=k % 16))
        if k % 4 == 3: o.append("s_barrier")
        m = []
        for j in range(9):
            for t in range(2):
                r = ACC + (j*2+t)*4
                m.append(f"{MF} v[{r}:{r+3}], a[{BB+(k%2)*36+4*j}:{BB+(k%2)*36+4*j+3}], a[{AB+(k%8)*8+4*t}:{AB+(k%8)*8+4*t+3}], v[{r}:{r+3}]")
        f = b_reads(k+1, BB, SL) + dma_group(k, "s[12:15]", "s20") + a_loads(k+7)
        if 'g2noload' in X:
            for x in f:
                if isinstance(x, VM): x.text = "s_nop 0"
        if 'g2nods' in X: f = [x for x in f if not (isinstance(x, str) and x.startswith("ds_read"))]
        if 'g2nomfma' in X: m = m[:1]
        if 'g2nobar' in X: o = [x for x in o if x != "s_barrier"]
        return o + interleave(m, f)
    steps = [kstep(k) for k in range(64)]
    keyed = resolve(pro + [x for s_ in steps for x in s_])
    emit(a, pro)
    a("s_mov_b32 s23, 0\nG2_LOOP:")
    for k in range(16): emit(a, steps[k], keyed)
    a("s_add_u32 s23, s23, 1\ns_cmp_lt_u32 s23, 4\ns_cbranch_scc1 G2_LOOP")
    a(a.stamp(2))
    a(f"""
      v_lshlrev_b32 v4, 16, v6
      v_lshlrev_b32 v6, 16, v7
      s_lshr_b32 s22, s5, 1
      s_mul_i32 s22, s22, 9216
      s_mul_i32 s23, s6, {2*73728}
      s_add_u32 s22, s22, s23
      s_add_u32 s22, s22, {PF}            ; + tau*73728
      s_and_b32 s23, s5, 1
      s_lshl_b32 s29, s23, 12
      s_add_u32 s29, s29, s22
      s_add_u32 s30, s29, 73728
      s_lshl_b32 s23, s23, 3
      s_add_u32 s31, s22, s23
      s_add_u32 s31, s31, 8192
      s_add_u32 s32, s31, 73728
    """)
    P = lambda r: f"v[{r}:{r+1}]"
    T = 136; O = 160
    for j in range(9):
        for t in range(2):
            b = P(4 if t == 0 else 6)
            for h in range(2):
                x = ACC + (j*2+t)*4 + 2*h; z = Z1 + 4*j + 2*t + h; tt = T + 2*((2*t+h) % 4)
                o = O + ((j//2)*2 + t)*4 + (j%2)*2 + h
                a(f"""
                  v_lshlrev_b32 v{tt}, 16, v{z}
                  v_and_b32 v{tt+1}, 0xffff0000, v{z}
                  v_pk_add_f32 {P(x)}, {P(x)}, {b} op_sel_hi:[1,0]
                  v_pk_mul_f32 {P(x)}, {P(x)}, {P(tt)}
                  v_cvt_pk_bf16_f32 v{o}, v{x}, v{x+1}
                """)
        if j % 2 == 1:
            for t in range(2):
                o = O + ((j//2)*2 + t)*4
                a(f"buffer_store_dwordx4 v[{o}:{o+3}], v1, s[8:11], s{29+t} offen offset:{1024*(j//2)}")
    for t in range(2):
        o = O + (8 + t)*4
        a(f"buffer_store_dwordx2 v[{o}:{o+1}], v1, s[8:11], s{31+t} offen")
    a(a.stamp(3))
    a.stamp_end(3, 5)
    a("G2_END:\ns_endpgm")
    a.desc("g2_kernel", 256+136, 256)

def gen_g3(a):
    a.begin("g3_kernel")
    a("s_cmp_ge_u32 s2, 256\ns_cbranch_scc1 G3_END")
    a(a.stamp(0))
    a.load_args()
    a(f"""
      v_lshrrev_b32 v1, 6, v0
      v_and_b32 v2, 63, v0
      v_readfirstlane_b32 s3, v1
      v_lshlrev_b32 v1, 4, v2
      v_and_b32 v3, 15, v2
      v_lshrrev_b32 v12, 4, v2
      s_and_b32 s4, s2, 7
      s_lshl_b32 s4, s4, 2
      s_lshr_b32 s5, s2, 3
      s_and_b32 s6, s5, 3
      s_add_u32 s4, s4, s6                ; mb
      s_lshr_b32 s5, s5, 2                ; nb
      s_mul_i32 s5, s5, 9
      s_lshr_b32 s5, s5, 1                ; n0
      s_mul_i32 s20, s4, {4*73728}
      s_mul_i32 s6, s3, {18*1024}
      s_add_u32 s20, s20, s6
      s_add_u32 s20, s20, {PF}            ; P soffset
      s_mul_i32 s21, s3, {18*36864}
      s_lshl_b32 s6, s5, 10
      s_add_u32 s21, s21, s6
      s_add_u32 s21, s21, {WOUTF}         ; W soffset
      v_add_u32 v8, 4096, v1
    """)
    for u in range(4):
        a(f"s_add_u32 s6, s3, {u}\ns_and_b32 s6, s6, 3\ns_mul_i32 s7, s6, 73728\nv_add_u32 v{4+u}, s7, v1")
        if u > 0: a(f"s_mul_i32 s7, s6, 15360\ns_add_u32 s7, s7, {(u-1)*5120}\nv_add_u32 v{12+u}, s7, v1")
    a("s_waitcnt lgkmcnt(0)")
    a.srd(8, "ws"); a.srd(12, "out")
    ACC = 16; DEP = 6
    def loads(k):
        if k >= 18: return []
        r = (k % DEP)*36
        o = []
        for j in range(5):
            o.append(VM(f"buffer_load_dwordx4 a[{r+16+4*j}:{r+19+4*j}], {'v1' if j < 4 else 'v8'}, s[8:11], s21 offen offset:{1024*(j%4)}", ("W", k, j)))
        for u in range(4):
            o.append(VM(f"buffer_load_dwordx4 a[{r+4*u}:{r+4*u+3}], v{4+u}, s[8:11], s20 offen offset:{1024*(k%4)}", ("P", k, u)))
        o.append("s_add_u32 s21, s21, 36864")
        if k % 4 == 3: o.append("s_add_u32 s20, s20, 4096")
        return o
    seq = []
    for k in range(DEP-1): seq += loads(k)
    ep = [f"s_lshl_b32 s22, s4, 2", "s_add_u32 s22, s22, s3", "s_mul_i32 s23, s22, 18432", "s_lshl_b32 s24, s5, 9", "s_add_u32 s23, s23, s24", f"s_add_u32 s23, s23, {X1F}",
          "v_lshlrev_b32 v9, 3, v2", "s_lshl_b32 s24, s5, 6", f"s_add_u32 s24, s24, {MOD + 5*576*4}", "v_lshlrev_b32 v10, 4, v12"]
    for j in range(5):
        ep.append(VM(f"buffer_load_dwordx2 v[{96+2*j}:{97+2*j}], v9, s[8:11], s23 offen offset:{512*j}", ("X", j)))
        ep.append(VM(f"buffer_load_dwordx4 v[{108+4*j}:{111+4*j}], v10, s[8:11], s24 offen offset:{64*j}", ("G", j)))
    for k in range(18):
        seq.append(WAIT([("P", k, 3)]))
        if k == 0: seq.append(a.stamp(1))
        r = (k % DEP)*36
        m = []
        for u in range(4):
            for j in range(5):
                c = ACC + (u*5+j)*4
                m.append(f"{MF} v[{c}:{c+3}], a[{r+16+4*j}:{r+19+4*j}], a[{r+4*u}:{r+4*u+3}], {'0' if k == 0 else f'v[{c}:{c+3}]'}")
        seq += interleave(m, loads(k+DEP-1) + (ep if k == 13 else []))
    seq += [a.stamp(2), "s_mul_i32 s7, s3, 15360", "v_add_u32 v11, s7, v1", "s_nop 6"]
    for u in range(1, 4):
        for j in range(5):
            c = ACC + (u*5+j)*4
            seq.append(f"ds_write_b128 v{12+u}, v[{c}:{c+3}] offset:{1024*j}")
    seq += ["v_lshrrev_b32 v4, 2, v3", "v_lshlrev_b32 v4, 3, v4", "v_and_b32 v5, 3, v3", "v_add_u32 v4, v4, v5", "v_mul_u32_u24 v4, 1152, v4",
            "v_lshl_add_u32 v4, v12, 3, v4", "s_lshr_b32 s25, s22, 1", f"s_mul_i32 s25, s25, {32*1152}", "s_and_b32 s26, s22, 1", f"s_mul_i32 s26, s26, {4*1152}",
            "s_add_u32 s25, s25, s26", "s_lshl_b32 s26, s5, 5", "s_add_u32 s25, s25, s26",
            "s_waitcnt lgkmcnt(0)", "s_barrier", a.stamp(3)]
    for i in range(15):
        c = ACC + 20 + 4*i
        seq.append(f"ds_read_b128 v[{c}:{c+3}], v11 offset:{1024*i}")
    seq += [WAIT([("G", 4)], lgkm=True)]
    P = lambda r: f"v[{r}:{r+1}]"
    for j in range(5):
        for h in range(2):
            x = ACC + 4*j + 2*h
            seq += [f"v_pk_add_f32 {P(x)}, {P(x)}, {P(x+20)}", f"v_pk_add_f32 {P(x+40)}, {P(x+40)}, {P(x+60)}",
                    f"v_lshlrev_b32 v{x+20}, 16, v{96+2*j+h}", f"v_and_b32 v{x+21}, 0xffff0000, v{96+2*j+h}",
                    f"v_pk_add_f32 {P(x)}, {P(x)}, {P(x+40)}",
                    f"v_pk_fma_f32 {P(x)}, {P(x)}, {P(108+4*j+2*h)}, {P(x+20)}",
                    f"v_cvt_pk_bf16_f32 v{96+2*j+h}, v{x}, v{x+1}"]
        seq.append(VM(f"buffer_store_dwordx2 v[{96+2*j}:{97+2*j}], v4, s[12:15], s25 offen offset:{32*j}", ("O", j)))
    resolve(seq); emit(a, seq)
    a(a.stamp(4))
    a.stamp_end(4, 6)
    a("G3_END:\ns_endpgm")
    a.desc("g3_kernel", 128+216, 128)

G_LAUNCH = {"g1": f"; @launch kernel=g1_kernel grid=(256,1,1) block=(256,1,1) lds={G_LDS}",
            "g2": f"; @launch kernel=g2_kernel grid=(256,1,1) block=(256,1,1) lds={G_LDS}",
            "g3": f"; @launch kernel=g3_kernel grid=(256,1,1) block=(256,1,1) lds=61440"}
G_GENS = {"g1": gen_g1, "g2": gen_g2, "g3": gen_g3}
```

```python
from gen_common import *
from gen_g import *
P = lambda r: f"v[{r}:{r+1}]"
BIG = 0x7fffff00

def poll_loop(a, name, loads, regs, tmp):
    a(f"s_mov_b32 s27, 0\n{name}_POLL:")
    for x in loads: a(x)
    a("s_waitcnt vmcnt(0)")
    if len(regs) == 1: a(f"v_cmp_eq_u32 vcc, 0, v{regs[0]}")
    else:
        a(f"v_min_u32 v{tmp}, v{regs[0]}, v{regs[1]}")
        for r in regs[2:]: a(f"v_min_u32 v{tmp}, v{tmp}, v{r}")
        a(f"v_cmp_eq_u32 vcc, 0, v{tmp}")
    a(f"""
      s_add_u32 s27, s27, 1
      s_cmp_ge_u32 s27, 0x80000
      s_cbranch_scc1 {name}_GO
      s_nop 2
      s_cbranch_vccz {name}_GO
      s_sleep {SLP}
      s_branch {name}_POLL
    {name}_GO:
    """)

def gen_gm(a):
    st0 = a.stamp
    fine2 = eval(os.environ.get('FINE2', '{}'))
    if fine2:
        phase = [0]
        a.stamp = lambda i: (st0(i) if phase[0] else "; ")
    a.begin("gm_kernel")
    a("s_cmp_ge_u32 s2, 256\ns_cbranch_scc1 GM_END")
    a(a.stamp(0))
    a.load_args()
    tile_ids(a)
    SL = 252
    a(f"""
      s_mul_i32 s20, s5, {36*9216}
      s_add_u32 s20, s20, s7
      s_add_u32 s20, s20, {WINF}
      s_mul_i32 s21, s6, 36864
      s_add_u32 s21, s21, {X1F}           ; A soffset
      s_mul_i32 s30, s3, 12288
      s_add_u32 s30, s30, {3*36864}
      v_lshl_add_u32 v13, v2, 3, s30
      v_add_u32 v8, {18432-1024}, v1
      s_mul_i32 s28, s5, {64*9216}
      s_add_u32 s28, s28, {Z2F}
      s_lshl_b32 s29, s6, 17
      s_waitcnt lgkmcnt(0)
    """)
    a.srd(8, "ws")
    AB, BB = 0, 144
    ACC2, ACC1, ST = 16, 88, 160
    ALDS = 3*36864
    def a_dma(ks):
        if ks >= 18: return []
        o = [f"s_add_u32 m0, s30, {(ks % 6)*2048}", "s_nop 0",
             VM(f"buffer_load_dwordx4 v1, s[8:11], s21 offen lds", ("A", ks, 0)),
             VM(f"buffer_load_dwordx4 v8, s[8:11], s21 offen offset:1024 lds", ("A", ks, 1)),
             "s_add_u32 s21, s21, 1024"]
        return o
    def a_reads(ks):
        if ks >= 18: return []
        return [f"ds_read_b64 a[{AB+(ks*2+t)*4+2*h}:{AB+(ks*2+t)*4+2*h+1}], v13 offset:{(ks % 6)*2048 + t*1024 + h*512}" for t in range(2) for h in range(2)]
    def atags(ks): return [("A", ks, t) for t in range(2)] if ks < 18 else []
    def b1_group(k):
        T = (k+1)//4 + 2
        if T >= 9: return []
        p0, cnt = P0[k % 4]
        o = [f"s_add_u32 m0, s7, {(T % 3)*36864 + p0*1024}", "s_nop 0"]
        for i in range(cnt): o.append(VM(f"buffer_load_dwordx4 v1, s[8:11], s20 offen offset:{1024*i} lds", ("B", T, p0+i)))
        o.append(f"s_add_u32 s20, s20, {cnt*1024 if k % 4 != 2 else 36864 - 7168}")
        return o
    def b1_reads(k):
        return [f"ds_read_b128 a[{BB + (k%2)*36 + 4*j}:{BB + (k%2)*36 + 4*j + 3}], v{SL + (k//4) % 3} offset:{(k%4)*9216 + j*1024}" for j in range(9)]
    seq = []
    seq += a_dma(0)
    for k in range(-9, -5): seq += b1_group(k)
    for ks in range(1, 4): seq += a_dma(ks)
    seq += ["s_getpc_b64 s[32:33]", "GM_PC:", "s_sub_u32 s32, s32, GM_PC-gm_kernel", "s_subb_u32 s33, s33, 0", "s_and_b32 s33, s33, 0xffff",
            "s_mov_b32 s34, GM_CODE_END-gm_kernel", "s_mov_b32 s35, 0x20000", "s_lshr_b32 s31, s2, 3", "s_lshl_b32 s31, s31, 7",
            "v_lshlrev_b32 v255, 12, v0", "v_add_u32 v255, s31, v255", VM("buffer_load_dword v11, v255, s[32:35], 0 offen", "CW")]
    resolve(seq); emit(a, seq); pre = seq; seq = []
    NPB = int(os.environ.get('NPB', '2'))
    late_pro = []
    for k in range(-5, -5+NPB): late_pro += b1_group(k)
    e0 = []
    for k in range(-5+NPB, -1): e0 += b1_group(k)
    early = {0: e0 + a_dma(4) + (a_dma(5) + b1_group(-1) if NPB >= 2 else []), 1: (a_dma(5) + b1_group(-1) if NPB < 2 else []) + a_dma(6) + b1_group(0) + b1_group(1)}
    a.srd(12, "ws", 64*9216, "s28"); a.srd(16, "wsp"); a.srd(36, "bsp")
    a(f"""
      v_mov_b32 v{SL}, v1
      v_add_u32 v{SL+1}, 36864, v1
      v_add_u32 v{SL+2}, {2*36864}, v1
      v_mov_b32 v4, 0x3f803f80
      v_mov_b32 v5, 0x3f803f80
      v_mov_b32 v6, 0x3f803f80
      v_mov_b32 v7, 0x3f803f80
      s_mov_b32 s40, {float_hex(C1)}
      s_mov_b32 s41, {float_hex(C1)}
      v_mov_b32 v14, {float_hex(C0)}
      v_mov_b32 v15, {float_hex(C0)}
      s_mul_i32 s22, s5, {144*8}
      s_add_u32 s22, s22, {UV2}
      v_lshlrev_b32 v9, 3, v3             ; n*8
      v_add_u32 v9, 159744, v9
      v_lshrrev_b32 v248, 2, v3
      v_lshlrev_b32 v248, 3, v248
      v_and_b32 v249, 3, v3
      v_add_u32 v248, v248, v249
      v_add_u32 v251, 4096, v1
    """)
    seq += late_pro + [WAIT(btags(0)), "s_barrier", a.stamp(1)]
    seq += a_reads(0) + b1_reads(0)
    ARD = {k_: [k_+1] for k_ in range(14)}; ARD[14] = [15]; ARD[15] = [16, 17]
    STK = {k_: [k_] for k_ in range(16)}; STK[16] = [16, 17]
    def kstep(kk, extra=[], need_extra=[]):
        ks = kk % 18; ps = kk // 18
        o = []
        need = [t_ for x in ARD.get(kk, []) for t_ in atags(x)] + need_extra
        bar = (kk % 4 == 3 and kk < 35)
        if bar: need = need + btags((kk+1)//4)
        o.append(WAIT(need, lgkm=True))
        if bar: o.append("s_barrier")
        m = []
        for j in range(9):
            for t in range(2):
                A = f"a[{AB+(ks*2+t)*4}:{AB+(ks*2+t)*4+3}]"
                B = f"a[{BB+(kk%2)*36+4*j}:{BB+(kk%2)*36+4*j+3}]"
                r = (ACC2 if ps == 0 else ACC1) + (j*2+t)*4
                C = "0" if ks == 0 else f"v[{r}:{r+3}]"
                m.append(f"{MF} v[{r}:{r+3}], {A}, {B}, {C}" if ps == 0 else f"{MF} v[{r}:{r+3}], {B}, {A}, {C}")
        sm = []
        for k2 in STK.get(kk, []):
            for t in range(2):
                A = f"a[{AB+(k2*2+t)*4}:{AB+(k2*2+t)*4+3}]"
                r = ST + 4*t
                sm.append(f"{MF} v[{r}:{r+3}], {A}, v[4:7], {'0' if k2 == 0 else f'v[{r}:{r+3}]'}")
                r = ST + 8 + 4*t
                sm.append(f"{MF} v[{r}:{r+3}], {A}, {A}, {'0' if k2 == 0 else f'v[{r}:{r+3}]'}")
        m = (sm + m) if kk == 16 else (m + sm)
        f = (b1_reads(kk+1) if kk < 35 else []) + [x for k2 in ARD.get(kk, []) for x in a_reads(k2)] + early.get(kk, []) + (a_dma(kk+5) + (b1_group(kk) if not (int(os.environ.get('DL0', '18')) <= kk < 18) else []) if kk >= 2 else []) + extra
        if 'nosch' in X: return o + interleave(m, f)
        ds = [x for x in f if isinstance(x, str) and x.startswith("ds_")]
        base = [x for x in f[:len(f)-len(extra)] if not (isinstance(x, str) and x.startswith("ds_"))]
        if any(isinstance(x, str) and x.startswith("v_") for x in extra):
            gs_, rest = vgroups(base)
            mo = [i for i, x in enumerate(extra) if isinstance(x, str) and "m0" in x]
            cut = mo[0] if mo else len(extra)
            g2_, rest2 = vgroups(rest + extra[cut:])
            o += sched(m, ds, gs_ + g2_, extra[:cut]) + rest2
        else:
            gs_, rest = vgroups(base + extra)
            o += sched(m, ds, gs_) + rest
        return o
    UV = 176; WS = 216
    UVL = 159744
    uvd = [f"s_mov_b32 m0, {UVL}", "s_nop 0", VM("buffer_load_dwordx4 v1, s[8:11], s22 offen lds", ("UVD", 0)), VM("buffer_load_dwordx4 v1, s[8:11], s22 offen offset:1024 lds", ("UVD", 1)),
           f"s_mul_i32 s22, s5, {144*4}", f"s_add_u32 s22, s22, {UV1}", f"s_mov_b32 m0, {UVL+2048}", "s_nop 0", VM("buffer_load_dwordx4 v1, s[8:11], s22 offen lds", ("UVD", 2)),
           f"s_add_u32 s22, s22, {9216-1024}", VM("buffer_load_dwordx4 v1, s[8:11], s22 offen offset:1024 lds", ("UVD", 3))]
    uv2 = [f"ds_read_b64 v[{UV+2*j}:{UV+2*j+1}], v9 offset:{128*j}" for j in range(9)]
    touch = ["v_lshlrev_b32 v10, 12, v12", "v_lshl_add_u32 v10, v3, 4, v10", "s_lshl_b32 s31, s5, 8", "s_add_u32 s31, s31, s29"]
    for i in range(8):
        touch += [VM(f"buffer_load_dwordx4 a[{WS}:{WS+3}], v10, s[16:19], s31 offen", ("WL", i)), "s_add_u32 s31, s31, 16384"]
    CW1 = [int(x) for x in os.environ.get('CW1', '-1').split(',')]
    TK0 = int(os.environ.get('TK0', '15'))
    for kk in range(18):
        ex = []
        ne = []
        if kk in CW1: ex = [VM("buffer_load_dword v194, v255, s[32:35], 0 offen", ("CW1", kk))]
        if kk == 13: ex = uvd
        if kk == TK0-1: ex = touch[:4]
        if kk == TK0: ex = touch[4:12]
        if kk == TK0+1: ex = touch[12:]
        if kk == 12: ex = ["v_mul_u32_u24 v11, 80, v12"]
        if kk == 16: early[16] = [f"ds_bpermute_b32 v{ST+8+4*t+r}, v11, v{ST+8+4*t+r} offset:{4*r}" for t in range(2) for r in range(4)]
        if kk == 17:
            ex = ln_finish([ST+i for i in range(8)], [ST+8+i for i in range(8)], 576, 8, None)
            early[17] = uv2[:5]; ne = [("UVD", 3)]
        seq += kstep(kk, ex, ne)
    seq += [a.stamp(2), "s_waitcnt lgkmcnt(0)"] + uv2[5:] + ["s_nop 3"]
    ZR = [240, 244]; ZN = [242, 246]
    zst = ["v_and_b32 v210, 3, v3", "v_lshrrev_b32 v211, 2, v3", "v_lshl_add_u32 v211, v211, 4, v3", "v_lshlrev_b32 v211, 2, v211"]
    for t in range(2):
        zst += [f"v_mov_b32 v{ZR[t]}, v{ST+8+4*t}", f"v_mov_b32 v{ZN[t]}, v{ST+4*t}"]
    for r in range(1, 4):
        zst += [f"v_cmp_eq_u32 vcc, {r}, v210", "s_nop 1"]
        for t in range(2):
            zst += [f"v_cndmask_b32 v{ZR[t]}, v{ZR[t]}, v{ST+8+4*t+r}, vcc", f"v_cndmask_b32 v{ZN[t]}, v{ZN[t]}, v{ST+4*t+r}, vcc"]
    zbp = [f"ds_bpermute_b32 v{r}, v211, v{r}" for r in ZR + ZN]
    DL0 = int(os.environ.get('DL0', '18'))
    dlist = []
    for kk in range(DL0, 18): dlist += b1_group(kk)
    g2start = len(seq)
    Z1S, Z2S, TMP, GR = 196, 204, 212, 220
    for j in range(9):
        xs = [ACC2 + j*8 + 2*i for i in range(4)]; ts = [TMP + 2*i for i in range(4)]
        uv = P(UV + 2*j)
        if j == 3: seq.append("s_waitcnt lgkmcnt(0)")
        seq.append(f"v_mov_b32 v194, v{UV+2*j+1}")
        for i in range(4): seq.append(f"v_pk_fma_f32 {P(ts[i])}, {P(ST+2*i)}, {uv}, v[194:195] op_sel_hi:[1,0,0]")
        for i in range(4): seq.append(f"v_pk_fma_f32 {P(xs[i])}, {P(xs[i])}, {P(ST+8+2*i)}, {P(ts[i])}")
        seq += gelu_pairs(xs, ts)
        for i in range(4):
            if j == 0: seq += [f"v_pk_mul_f32 {P(Z2S+2*i)}, {P(xs[i])}, {P(xs[i])}"]
            elif j == 1: seq += [f"v_pk_add_f32 {P(Z1S+2*i)}, {P(xs[i])}, {P(ACC2+2*i)}", f"v_pk_fma_f32 {P(Z2S+2*i)}, {P(xs[i])}, {P(xs[i])}, {P(Z2S+2*i)}"]
            else: seq += [f"v_pk_add_f32 {P(Z1S+2*i)}, {P(xs[i])}, {P(Z1S+2*i)}", f"v_pk_fma_f32 {P(Z2S+2*i)}, {P(xs[i])}, {P(xs[i])}, {P(Z2S+2*i)}"]
    NG = int(os.environ.get('NG', '60'))
    seq = seq[:g2start] + interleave(seq[g2start:g2start+NG], dlist) + seq[g2start+NG:]
    gspos = len(seq)
    V = [(Z1S if i % 2 == 0 else Z2S) + i//2 for i in range(16)]
    T0, T1 = TMP, TMP+4
    seq += ["v_and_b32 v11, 3, v3", "v_cmp_eq_u32 vcc, 0, v11"]
    for r in range(4):
        seq += [f"v_add_f32_dpp v{T0+r}, v{V[r]}, v{V[r]} row_ror:8 row_mask:0xf bank_mask:0x3", f"v_add_f32_dpp v{T0+r}, v{V[8+r]}, v{V[8+r]} row_ror:8 row_mask:0xf bank_mask:0xc"]
    for r in range(4):
        seq += [f"v_add_f32_dpp v{T1+r}, v{V[4+r]}, v{V[4+r]} row_ror:8 row_mask:0xf bank_mask:0x3", f"v_add_f32_dpp v{T1+r}, v{V[12+r]}, v{V[12+r]} row_ror:8 row_mask:0xf bank_mask:0xc"]
    for r in range(4): seq.append(f"v_add_f32_dpp v{GR+r}, v{T0+r}, v{T0+r} row_shl:4 row_mask:0xf bank_mask:0x5")
    for r in range(4): seq.append(f"v_add_f32_dpp v{GR+r}, v{T1+r}, v{T1+r} row_shr:4 row_mask:0xf bank_mask:0xa")
    for qp in ("[1,0,3,2]", "[2,3,0,1]"):
        for r in range(4): seq.append(f"v_add_f32_dpp v{GR+r}, v{GR+r}, v{GR+r} quad_perm:{qp} row_mask:0xf bank_mask:0xf")
    seq += [f"v_or_b32 v{GR+1}, 1, v{GR+1}", f"v_or_b32 v{GR+3}, 1, v{GR+3}",
            f"s_lshl_b32 s23, s6, 12", f"s_add_u32 s23, s23, {ST2}", "s_lshl_b32 s24, s5, 8", "s_add_u32 s24, s24, s23",
            "v_lshlrev_b32 v10, 2, v2", f"v_mov_b32 v194, {BIG}", "v_cndmask_b32 v10, v194, v10, vcc",
            "v_lshlrev_b32 v9, 4, v12", f"v_add_u32 v9, {UVL+2048}, v9", a.stamp(3)]
    gs = [VM(f"buffer_store_dwordx4 v[{GR}:{GR+3}], v10, s[8:11], s24 offen sc1", "GS")]
    seq += gs
    U1 = 160
    uv1 = []
    for j in range(9):
        uv1.append(f"ds_read_b128 v[{U1+8*j}:{U1+8*j+3}], v9 offset:{64*j}")
        uv1.append(f"ds_read_b128 v[{U1+8*j+4}:{U1+8*j+7}], v9 offset:{64*j+1024}")
    PL = 176; R1 = [200+i for i in range(8)]; R2 = [192+i for i in range(8)]
    pl = [f"buffer_load_dwordx4 v[{PL+4*i}:{PL+4*i+3}], v1, s[8:11], s23 offen offset:{1024*i} sc1" for i in range(4)]
    bl = [VM("buffer_load_ushort v6, v5, s[36:39], s26 offen", "b0"), VM("buffer_load_ushort v7, v5, s[36:39], s26 offen offset:8", "b1")]
    chk = [f"v_min_u32 v209, v{PL+1}, v{PL+3}"] + [f"v_min_u32 v209, v209, v{PL+2*i+1}" for i in range(2, 8)] + ["v_cmp_eq_u32 vcc, 0, v209"]
    pollS = [WAIT([("PL", 3)])] + chk + ["s_mov_b32 s27, 0", "s_nop 3", "s_cbranch_vccz GM_S_GO", "GM_S_POLL:"] + pl + ["s_waitcnt vmcnt(0)"] + chk + \
            ["s_add_u32 s27, s27, 1", "s_cmp_ge_u32 s27, 0x80000", "s_cbranch_scc1 GM_S_GO", "s_nop 2", "s_cbranch_vccz GM_S_GO", f"s_sleep {SLP}", "s_branch GM_S_POLL", "GM_S_GO:", a.stamp(4)]
    nrm = [f"v_add_f32 v{PL+r}, v{PL+r}, v{PL+4+r}" for r in range(4)] + [f"v_add_f32 v{PL+8+r}, v{PL+8+r}, v{PL+12+r}" for r in range(4)]
    nrm += [f"v_add_f32 v{PL+r}, v{PL+r}, v{PL+8+r}" for r in range(4)]
    for sw in ("16", "32"):
        nrm += [f"v_mov_b32 v{PL+4+r}, v{PL+r}" for r in range(4)] + ["s_nop 1"]
        nrm += [f"v_permlane{sw}_swap_b32 v{PL+r}, v{PL+4+r}" for r in range(4)] + ["s_nop 1"]
        nrm += [f"v_add_f32 v{PL+r}, v{PL+r}, v{PL+4+r}" for r in range(4)]
    nrm += ln_finish([PL, PL+2], [PL+1, PL+3], FH, 2, None)
    nrm += ["v_lshlrev_b32 v11, 4, v12"]
    bp = []
    for i in range(8):
        bp += [f"ds_bpermute_b32 v{R1[i]}, v11, v{PL+2*(i%2)} offset:{4*(i//2)}", f"ds_bpermute_b32 v{R2[i]}, v11, v{PL+2*(i%2)+1} offset:{4*(i//2)}"]
    nrm += ["s_mul_i32 s26, s6, 9216", "v_add_u32 v208, 8192, v1"]
    nrm0 = nrm; nrm = []
    for j in range(9):
        for i in range(8): nrm.append(f"v_fma_f32 v{ACC2+8*j+i}, v{ACC2+8*j+i}, v{R2[i]}, v{R1[i]}")
        for i in range(4): nrm.append(f"v_cvt_pk_bf16_f32 v{ACC2+8*j+i}, v{ACC2+8*j+2*i}, v{ACC2+8*j+2*i+1}")
        nrm.append(VM(f"buffer_store_dwordx4 v[{ACC2+8*j}:{ACC2+8*j+3}], {['v1','v251','v208'][j//4]}, s[12:15], s26 offen offset:{1024*(j%4)} sc1", ("Z2", j)))
    KT = -1
    KP, KN0, KN1, JPK, KF = [int(x) for x in os.environ.get('P2', '22,24,25,2,32').split(',')]
    per = (len(nrm0) + (KN1-KN0) - 1) // (KN1-KN0)
    pb = "buffer_load_dword v11, v10, s[8:11], s23 offen sc1"
    flagprep = ["s_lshl_b32 s24, s6, 4", "s_add_u32 s24, s24, s5", "s_lshl_b32 s24, s24, 7", f"s_add_u32 s24, s24, {FLB}",
            "v_cmp_eq_u32 vcc, 0, v2", f"v_mov_b32 v13, {BIG}", "v_mov_b32 v5, 1", "v_cndmask_b32 v13, v13, 0, vcc"]
    ACC, B2V = 16, 88
    AV = [241, 243, 245, 247]
    aprep = ["v_lshrrev_b32 v4, 3, v2", "v_lshrrev_b32 v249, 2, v4", "v_lshlrev_b32 v249, 3, v249", "v_and_b32 v250, 3, v4", "v_add_u32 v249, v249, v250", "v_lshlrev_b32 v249, 12, v249",
            "v_lshrrev_b32 v4, 1, v4", "v_and_b32 v250, 7, v2", "v_xor_b32 v4, v4, v250",
            f"v_lshl_add_u32 v{AV[0]}, v4, 4, v249", "v_xor_b32 v4, 4, v4", f"v_lshl_add_u32 v{AV[1]}, v4, 4, v249", f"v_add_u32 v{AV[1]}, {65536-1024}, v{AV[1]}",
            f"v_add_u32 v{AV[2]}, {16384-2048}, v{AV[0]}", f"v_add_u32 v{AV[3]}, {16384-2048}, v{AV[1]}"]
    aprep2 = ["v_lshrrev_b32 v4, 1, v3", "v_xor_b32 v4, v4, v12", "v_lshlrev_b32 v4, 4, v4", "v_lshl_add_u32 v4, v3, 7, v4",
            "v_add_u32 v249, s7, v4", "v_xor_b32 v250, 64, v249", "v_add_u32 v4, s30, v4", "v_xor_b32 v8, 64, v4"]
    PLACE = {"R0": ("s30", 0), "R1": ("s30", 4096), "R2": ("s30", 8192), "S0a": ("s7", 0), "S0b": ("s7", 4096), "S1a": ("s7", 36864), "S1b": ("s7", 36864+4096)}
    def a2_dma(Pp, pl):
        b, off = PLACE[pl]
        return [f"s_add_u32 m0, {b}, {off}", f"s_add_u32 s21, s29, {128*Pp}"] + \
               [VM(f"buffer_load_dwordx4 v{AV[i]}, s[16:19], s21 offen offset:{1024*i} lds", ("A2", Pp, i)) for i in range(4)]
    def a2_rd(Pp, pl):
        b, off = PLACE[pl]
        regs = ("v4", "v8") if b == "s30" else ("v249", "v250")
        return [f"ds_read_b128 a[{8*((2*Pp+e) % 32)+4*t}:{8*((2*Pp+e) % 32)+4*t+3}], {regs[e]} offset:{off + t*2048}" for e in range(2) for t in range(2)]
    def a2tags(Pp): return [("A2", Pp, i) for i in range(4)]
    r1 = {21: [(3, "R2")], 23: [(4, "R0")], 25: [(5, "R1")], 27: [(6, "R2")], 28: [(7, "S0a")], 29: [(8, "S0b")],
          31: [(9, "S1a")], 32: [(10, "S1b")], 33: [(11, "R0")], 34: [(12, "R1")], 35: [(13, "R2")]}
    rr1 = {20: [(0, "R2")], 22: [(1, "R0")], 24: [(2, "R1")], 26: [(3, "R2")], 28: [(4, "R0")], 33: [(5, "R1")], 34: [(6, "R2")], 35: [(7, "S0a")]}
    GA, GB_ = [int(x) for x in os.environ.get('GA', '200,380').split(',')]
    g2 = seq[g2start:gspos]
    g2 = g2[:GA] + aprep + aprep2 + interleave(g2[GA:GA+60], a2_dma(14, "R0") + a2_dma(15, "R1") + a2_dma(0, "R2")) + g2[GA+60:GB_] + \
         [WAIT(a2tags(15))] + a2_rd(14, "R0") + a2_rd(15, "R1") + g2[GB_:GB_+30] + ["s_waitcnt lgkmcnt(0)"] + interleave(g2[GB_+30:], a2_dma(1, "R0") + a2_dma(2, "R1"))
    seq = seq[:g2start] + g2 + seq[gspos:]
    for kk in range(18, 36):
        ex = []; ne = []
        if kk == 19: ex = [VM("buffer_load_dword v11, v255, s[32:35], 0 offen", "CW2")]
        if kk == 18: ex = ["v_lshlrev_b32 v5, 1, v248", "s_lshl_b32 s26, s6, 6"] + bl
        if kk == 20: ex = zst
        if kk == 21: early[kk] = early.get(kk, []) + zbp
        if kk == KP: ex = [VM(x, ("PL", i)) for i, x in enumerate(pl)]
        if kk in fine2: seq.append(st0(fine2[kk]))
        if kk == KN0: seq += pollS
        if kk == KN0: ex = nrm0
        if kk == KN0+1: seq += ["s_waitcnt lgkmcnt(0)"] + bp[:12] + ["s_waitcnt lgkmcnt(4)"] + bp[12:]
        if kk >= KN1: ex = nrm[13*JPK*(kk-KN1):13*JPK*(kk-KN1+1)]
        if kk == 30:
            assert not ex
            ex = flagprep + ["s_lshl_b32 s23, s3, 4", "s_add_u32 s23, s23, s5", "s_lshl_b32 s23, s23, 7", f"s_add_u32 s23, s23, {FLB}", "v_lshlrev_b32 v10, 13, v3"]
        if kk == KF: ex = [VM("buffer_store_dword v5, v13, s[8:11], s24 offen sc1", "FB")] + ex; ne = [("Z2", 8)]
        if kk in (30, 31): early[kk] = early.get(kk, []) + uv1[5*(kk-30):5*(kk-30)+5]
        if kk == 35: early[kk] = early.get(kk, []) + uv1[10:]
        for Pp, pl_ in r1.get(kk, []): ex = ex + a2_dma(Pp, pl_)
        for Pp, pl_ in rr1.get(kk, []): early[kk] = early.get(kk, []) + a2_rd(Pp, pl_); ne = ne + a2tags(Pp)
        if kk == 35: ex = [VM(pb, "PB")] + ex
        seq += kstep(kk, ex, ne)
    seq += [a.stamp(5)]
    TM1 = 232
    JF = int(os.environ.get('JF', '0'))
    def z1g(j):
        o = []
        xs = [ACC1 + j*8 + 2*i for i in range(4)]; ts = [TM1 + 2*i for i in range(4)]
        for i in range(4):
            o.append(f"v_pk_fma_f32 {P(ts[i])}, {P(U1+8*j+2*(i%2))}, {P(ZN[i//2])}, {P(U1+8*j+4+2*(i%2))} op_sel_hi:[1,0,1]")
        for i in range(4):
            o.append(f"v_pk_fma_f32 {P(xs[i])}, {P(xs[i])}, {P(ZR[i//2])}, {P(ts[i])} op_sel_hi:[1,0,1]")
        if j < JF: o += gelu_pairs(xs, ts)
        for i in range(4): o.append(f"v_cvt_pk_bf16_f32 v{U1+8*j+i}, v{xs[i]}, v{xs[i]+1}")
        return o
    def late_gelu(j, hf):
        xs = [(U1+8*j+4+i) if hf == 1 else (236+i) for i in range(4)]; ts = [232+i for i in range(4)]
        o = []
        for d in range(2): o += [f"v_lshlrev_b32 v{xs[2*d]}, 16, v{U1+8*j+2*hf+d}", f"v_and_b32 v{xs[2*d+1]}, 0xffff0000, v{U1+8*j+2*hf+d}"]
        for x, t in zip(xs, ts): o.append(f"v_mul_f32 v{t}, v{x}, v{x}")
        for x, t in zip(xs, ts): o.append(f"v_fma_f32 v{t}, v{t}, s40, v14")
        for x, t in zip(xs, ts): o.append(f"v_mul_f32 v{t}, v{t}, v{x}")
        for x, t in zip(xs, ts): o.append(f"v_exp_f32 v{t}, v{t}")
        for x, t in zip(xs, ts): o.append(f"v_add_f32 v{t}, 1.0, v{t}")
        for x, t in zip(xs, ts): o.append(f"v_rcp_f32 v{t}, v{t}")
        for i, (x, t) in enumerate(zip(xs, ts)): o.append(f"v_mul_f32 v{U1+8*j+4*hf+i}, v{x}, v{t}")
        return o
    def b2_group(k):
        T = (k+1)//4 + 2
        if T >= 15: return []
        p0, cnt = P0[k % 4]
        o = [f"s_add_u32 m0, s7, {(T % 3)*36864 + p0*1024}", "s_nop 0"]
        for i in range(cnt): o.append(VM(f"buffer_load_dwordx4 v1, s[12:15], s20 offen offset:{1024*i} sc1 lds", ("B2", T, p0+i)))
        o.append(f"s_add_u32 s20, s20, {cnt*1024 if k % 4 != 2 else 36864 - 7168}")
        return o
    def b2tags(T): return [("B2", T, p) for p in range(9)]
    def b2_reads(k):
        return [f"ds_read_b128 v[{B2V + (k%2)*36 + 4*j}:{B2V + (k%2)*36 + 4*j + 3}], v{SL + (k//4) % 3} offset:{(k%4)*9216 + j*1024}" for j in range(9)]
    seq += ["s_mov_b32 s20, s7", WAIT(a2tags(10), lgkm=True)] + a2_rd(8, "S0b") + a2_rd(9, "S1a") + a2_rd(10, "S1b")
    J2 = int(os.environ.get('J2', '4'))
    for j in range(J2): seq += z1g(j)
    seq += [WAIT(["PB"]), "v_cmp_eq_u32 vcc, 0, v11", "s_barrier", "s_waitcnt lgkmcnt(0)", "s_nop 2", "s_cbranch_vccz GM_B_GO"]
    resolve(pre + seq); emit(a, seq); pre2 = [VM("; ", x.tag) for x in seq if isinstance(x, VM) and x.tag[0] == "A2" and x.tag[1] in (11, 12, 13)]
    poll_loop(a, "GM_B", [pb], [11], None)
    a(a.stamp(6))
    seq = list(pre2)
    for k in range(-9, -5): seq += b2_group(k)
    fl = []
    for k in range(-5, -3): fl += b2_group(k)
    val = []
    for j in range(J2, 9): val += z1g(j)
    seq += interleave(val, fl)
    if fine2: phase[0] = 1
    if Asm.STAMPS: seq += [a.stamp(7), "STAMPFLUSH"]
    seq += [f"v_lshlrev_b32 v{232+i}, 16, v{6 + i//4}" for i in range(8)]
    seq += [WAIT(b2tags(0)), "s_barrier"] + b2_reads(0)
    KA = 46
    PS_ = [11, 12, 13] + list(range(16, 32))
    RPi = lambda i: 2 + ((KA-2)*i)//(len(PS_)-1)
    KT0 = 52
    rd_at = {RPi(i): (Pp, f"R{i % 3}") for i, Pp in enumerate(PS_)}
    assert len(rd_at) == len(PS_) and all(RPi(i) <= 2*p_-1 and RPi(i) >= 2*(p_-16)+2 for i, p_ in enumerate(PS_))
    dma_at = {RPi(i-3)+1: (PS_[i], f"R{i % 3}") for i in range(3, len(PS_))}
    def areg(k, t): return f"a[{8*(k%32)+4*t}:{8*(k%32)+4*t+3}]"
    def mf2(k, j, t, breg):
        r = ACC + (j*2+t)*4
        return f"{MF} v[{r}:{r+3}], v[{breg}:{breg+3}], {areg(k, t)}, {f'v[{232+4*t}:{235+4*t}]' if k == 0 else f'v[{r}:{r+3}]'}"
    g3prep = f"""
      s_and_b32 s44, s2, 7
      s_lshl_b32 s44, s44, 2
      s_lshr_b32 s45, s2, 3
      s_and_b32 s38, s45, 3
      s_add_u32 s44, s44, s38             ; mb
      s_lshr_b32 s45, s45, 2
      s_mul_i32 s45, s45, 9
      s_lshr_b32 s45, s45, 1              ; n0
      s_mul_i32 s39, s3, {18*36864}
      s_lshl_b32 s38, s45, 10
      s_add_u32 s39, s39, s38
      s_add_u32 s39, s39, {WOUTF}         ; W soffset (registers part)
      s_add_u32 s36, s39, {11*36864}      ; W soffset (lds part)
      s_mul_i32 s37, s3, 30720
      s_add_u32 s37, s37, 36864           ; lds W area""".split("\n")
    NWR = 11
    def w_reg(k): return 20*k if k < NWR else (20*(k-NWR) if k < 17 else 224)
    def w_loads(k, so="s39"):
        r = w_reg(k)
        return [VM(f"buffer_load_dwordx4 a[{r+4*j}:{r+4*j+3}], {'v1' if j < 4 else 'v251'}, s[8:11], {so} offen offset:{1024*(j%4)}", ("W", k, j)) for j in range(5)] + [f"s_add_u32 {so}, {so}, 36864"]
    def w_dma(k):
        o = [f"s_add_u32 m0, s37, {(k-NWR)*5120}", "s_nop 0"]
        o += [VM(f"buffer_load_dwordx4 v1, s[8:11], s36 offen offset:{1024*j} lds", ("W", k, j)) for j in range(4)]
        o += [f"s_add_u32 m0, s37, {(k-NWR)*5120 + 4096}", "s_nop 0", VM(f"buffer_load_dwordx4 v251, s[8:11], s36 offen lds", ("W", k, 4)), "s_add_u32 s36, s36, 36864"]
        return o
    apieces = {}
    for k0, (Pp, pl_) in dma_at.items():
        b, off = PLACE[pl_]
        ks_ = [k0, k0, k0+1, k0+1] if (k0+1) not in dma_at else [k0]*4
        for i in range(4):
            gr = [f"s_add_u32 m0, {b}, {off}", VM(f"buffer_load_dwordx4 v{AV[i]}, s[16:19], s21 offen offset:{1024*i} lds", ("A2", Pp, i))]
            if i > 0 and ks_[i] == ks_[i-1]: gr = gr[1:]
            if i == 0: gr = [f"s_add_u32 s21, s29, {128*Pp}"] + gr
            apieces.setdefault(ks_[i], []).append(gr)
    CWK = [int(x) for x in os.environ.get('CWK', '1,9,17,25,33,41,49').split(',')]
    def t15_group(k):
        p0, cnt = P0[k % 4]
        o = [f"s_add_u32 m0, s7, {ALDS + p0*1024}"]
        for i in range(cnt): o.append(VM(f"buffer_load_dwordx4 v1, s[12:15], s21 offen offset:{1024*i} sc1 lds", ("B2", 15, p0+i)))
        o.append(f"s_add_u32 s21, s21, {cnt*1024}")
        return o
    tailprep = f"""
      v_add_u32 v4, {ALDS}, v1
      v_lshlrev_b32 v8, 3, v2
      s_lshr_b32 s22, s5, 1
      s_mul_i32 s22, s22, 9216
      s_mul_i32 s23, s6, {2*73728}
      s_add_u32 s22, s22, s23
      s_add_u32 s22, s22, {PF}
      s_and_b32 s23, s5, 1
      s_lshl_b32 s28, s23, 12
      s_add_u32 s28, s28, s22
      s_add_u32 s29, s28, 73728
      s_lshl_b32 s23, s23, 9
      s_add_u32 s30, s22, s23
      s_add_u32 s30, s30, 8192
      s_add_u32 s31, s30, 73728
      s_add_u32 s24, s24, {FLP-FLB}""".split("\n")
    TK = [52, 53, 54, 55, 60, 61, 62, 63, 56, 57, 58, 59]
    def ureg(u): return B2V + 24*(u % 3)
    def u_reads(u):
        if u >= 18: return []
        j, hf = divmod(u, 2)
        o = []
        for i, k in enumerate(TK[6*hf:6*hf+6]):
            ad = "v4" if k >= 60 else f"v{SL + (k//4) % 3}"
            o.append(f"ds_read_b128 v[{ureg(u)+4*i}:{ureg(u)+4*i+3}], {ad} offset:{(k%4)*9216 + j*1024}")
        return o
    WE = [int(x) for x in os.environ.get('WE', '43,45').split(',')]
    wq = [w_loads(k) for k in range(0, NWR)] + [w_dma(k) for k in range(NWR, 17)] + [w_loads(17, "s36")]
    lg = []
    for j in range(JF, 9): lg += late_gelu(j, 1) + late_gelu(j, 0)
    LG0, LG1 = 2, int(os.environ.get('LG1', '52'))
    for k in range(KT0):
        need = []
        if k in rd_at: need += a2tags(rd_at[k][0])
        if k % 4 == 3: need += b2tags((k+1)//4)
        if k == KT0-1: need += b2tags(15)
        if k == 51: need += [("G", 3)]
        seq.append(WAIT(need, lgkm=True))
        if k % 4 == 3: seq.append("s_barrier")
        mm = [mf2(k, j, t, B2V + (k%2)*36 + 4*j) for j in range(9) for t in range(2)]
        ds = b2_reads(k+1) if k+1 < KT0 else u_reads(0)
        if k in rd_at: ds += a2_rd(*rd_at[k])
        f = {0: b2_group(-3) + b2_group(-2), 1: b2_group(-1) + b2_group(0), 2: b2_group(1) + b2_group(2)}.get(k, None)
        if f is None: f = b2_group(k)
        f = f + [y for x in apieces.get(k, []) for y in x]
        if 47 <= k < 49: f = t15_group(2*k-47) + t15_group(2*k-46) + f
        if k in CWK: f += [VM("buffer_load_dword v11, v255, s[32:35], 0 offen", ("CW", k))]
        oth = []
        if k == 46: oth = [f"s_add_u32 s21, s7, {15*36864}"]
        if k == 48: oth = tailprep
        if k == 1: oth = ["s_lshr_b32 s42, s2, 5", "s_mul_i32 s42, s42, 9", "s_lshr_b32 s42, s42, 1", "s_lshl_b32 s42, s42, 7",
                           f"s_add_u32 s42, s42, {MODP + 5*576*8}", f"s_add_u32 s43, s42, {3456*8}", "v_lshlrev_b32 v9, 3, v2"]
        if k == 44: f += [VM(f"buffer_load_dword v{240+2*i}, v9, s[8:11], s{42 + i%2} offen offset:{512*(i//2)}", ("G", i)) for i in range(4)]
        if k == 51: oth = ["v_add_f32 v6, v240, v242", "v_add_f32 v7, v244, v246", "v_cvt_pk_bf16_f32 v6, v6, v7", "v_and_b32 v7, 0xffff0000, v6", "v_lshlrev_b32 v6, 16, v6"]
        if k == 0: oth = g3prep
        if k in WE: f += wq.pop(0)
        if LG0 <= k < LG1 and 'nolg' not in X: oth = oth + lg[len(lg)*(k-LG0)//(LG1-LG0):len(lg)*(k+1-LG0)//(LG1-LG0)]
        gs_, rest = vgroups(f)
        if 'nov' in X and 3 < k < 43:
            for gr in gs_: gr[-1].text = 's_nop 0'
        seq += sched(mm, ds, gs_, oth) + rest
    seq.append(a.stamp(0))
    def epi(j):
        o = []
        for t in range(2):
            x = ACC + (j*2+t)*4; z = U1 + 8*j + 4*t
            od = ACC + ((j & ~1)*2+t)*4
            for r in range(4): o.append(f"v_mul_f32 v{x+r}, v{x+r}, v{z+r}")
            for h in range(2): o.append(f"v_cvt_pk_bf16_f32 v{od + (j%2)*2 + h}, v{x+2*h}, v{x+2*h+1}")
            if j % 2 == 1: o.append(VM(f"buffer_store_dwordx4 v[{od}:{od+3}], v1, s[8:11], s{28+t} offen offset:{1024*(j//2)} sc1", ("PS", j, t)))
            if j == 8: o.append(VM(f"buffer_store_dwordx2 v[{od}:{od+1}], v8, s[8:11], s{30+t} offen sc1", ("PS", 9, t)))
        return o
    WT = [int(x) for x in os.environ.get('WT', '8,1,6').split(',')]
    nleft = 8 - (18 - len(wq))
    tailw = set((i*8)//nleft for i in range(nleft)) if nleft else set()
    seq += [WAIT(b2tags(14), lgkm=True), "s_barrier"] + u_reads(1)
    for u in range(18):
        j, hf = divmod(u, 2)
        m_ = [mf2(k, j, t, ureg(u) + 4*i) for i, k in enumerate(TK[6*hf:6*hf+6]) for t in range(2)]
        if u > 0: seq.append(f"s_waitcnt lgkmcnt({6 if u < 17 else 0})")
        e = epi(j-1) if j >= 1 else []
        if hf == 0:
            seq += interleave(m_[:6], u_reads(u+2) if u < 16 else ["s_nop 1"]) + interleave(m_[6:], e)
        else:
            gs_, rest = vgroups(wq.pop(0) if j in tailw else [])
            seq += sched(m_, u_reads(u+2), gs_, vm_start=1) + rest
    seq += ["s_nop 7"] + epi(8) + ["s_barrier"]
    PV, LW = 240, 244
    seq += f"""
      s_mul_i32 s20, s44, {4*73728}
      s_mul_i32 s6, s3, {18*1024}
      s_add_u32 s20, s20, s6
      s_add_u32 s20, s20, {PF}            ; P soffset
      s_lshl_b32 s23, s44, 12
      s_lshl_b32 s6, s3, 9
      s_add_u32 s23, s23, s6
      s_add_u32 s23, s23, {FLP}           ; poll address
      v_and_b32 v10, 3, v2
      v_bfe_u32 v11, v2, 2, 1
      v_lshl_add_u32 v10, v11, 4, v10
      v_lshlrev_b32 v10, 7, v10
      v_add_u32 v249, s37, v1""".split("\n")
    for u in range(4):
        seq += [f"s_add_u32 s6, s3, {u}", "s_and_b32 s6, s6, 3", "s_mul_i32 s7, s6, 73728", f"v_add_u32 v{PV+u}, s7, v1"]
        if u > 0: seq += ["s_mul_i32 s7, s6, 15360", f"s_add_u32 s7, s7, {(u-1)*5120}", f"v_add_u32 v{LW+u}, s7, v1"]
    for _ in range(WT[1]): seq += wq.pop(0)
    seq += [a.stamp(1), WAIT([("PS", 9, 1)]), VM("buffer_store_dword v5, v13, s[8:11], s24 offen sc1", "FP"), a.stamp(2)]
    DEP = 6; AC3 = 16; PR = 96; XR, GB, GR_ = 192, 204, 96
    seq += [f"s_lshl_b32 s22, s44, 2", "s_add_u32 s22, s22, s3", "s_mul_i32 s25, s22, 18432", "s_lshl_b32 s24, s45, 9", "s_add_u32 s25, s25, s24", f"s_add_u32 s25, s25, {X1F}",
            "v_lshlrev_b32 v8, 4, v12"]
    xl = [VM(f"buffer_load_dwordx2 v[{XR+2*j}:{XR+1+2*j}], v9, s[8:11], s25 offen offset:{512*j}", ("X", j)) for j in range(5)]
    for _ in range(WT[2]): seq += wq.pop(0)
    for j in range(5):
        for r in range(4): seq.append(f"ds_bpermute_b32 v{GB+4*j+r}, v8, v{6 if j < 4 else 7} offset:{64*(j%4) + 4*r}")
        if j == 2: seq.append("s_waitcnt lgkmcnt(0)")
    resolve(seq)
    for it in seq:
        if it == "STAMPFLUSH": a.stamp_flush2(2, 8)
        else: emit(a, [it])
    a.srd(12, "out")
    poll_loop(a, "GM_P", ["buffer_load_dword v11, v10, s[8:11], s23 offen sc1"], [11], None)
    a(a.stamp(3))
    done = [VM("; ", x.tag) for x in seq if isinstance(x, VM) and x.tag[0] == "W"]
    def p_loads(k):
        if k >= 18: return []
        r = PR + (k % DEP)*16
        if k % 9 != 8: o = [VM(f"buffer_load_dwordx4 v[{r+4*u}:{r+4*u+3}], v{PV+u}, s[8:11], s20 offen offset:{1024*(k%4)} sc1", ("P", k, u)) for u in range(4)]
        else:
            o = []
            for u in range(4):
                o += [f"v_sub_u32 v11, v{PV+u}, v9", VM(f"buffer_load_dwordx2 v[{r+4*u}:{r+4*u+1}], v11, s[8:11], s20 offen offset:{1024*(k%4)} sc1", ("Ph", k, u)),
                      VM(f"buffer_load_dwordx2 v[{r+4*u+2}:{r+4*u+3}], v11, s[8:11], s20 offen offset:{1024*(k%4)+512} sc1", ("P", k, u))]
        if k % 4 == 3: o.append("s_add_u32 s20, s20, 4096")
        return o
    def w_rd(k): return [f"ds_read_b128 a[{w_reg(k)+4*j}:{w_reg(k)+4*j+3}], v249 offset:{(k-NWR)*5120 + 1024*j}" for j in range(5)]
    seq = list(done)
    for k in range(DEP-1): seq += p_loads(k)
    for k in range(18):
        kr = k + 4
        need = [("P", k, 3)] + ([("W", k, 4)] if (k < NWR or k == 17) else []) + ([("W", kr, 4)] if NWR <= kr < 17 else [])
        seq.append(WAIT(need, lgkm=(NWR <= k < 17)))
        if k == 0: seq.append(a.stamp(4))
        if k == 14: seq.append("s_barrier")
        r = PR + (k % DEP)*16
        mm = []
        for u in ((1, 2, 3, 0) if k == 17 else range(4)):
            for j in range(5):
                c = AC3 + (u*5+j)*4
                mm.append(f"{MF} v[{c}:{c+3}], a[{w_reg(k)+4*j}:{w_reg(k)+4*j+3}], v[{r+4*u}:{r+4*u+3}], {'0' if k == 0 else f'v[{c}:{c+3}]'}")
        f = p_loads(k+DEP-1) + (wq.pop(0) if wq else []) + (w_rd(kr) if NWR <= kr < 17 else []) + (xl if k == 13 else [])
        ds = [x for x in f if isinstance(x, str) and x.startswith("ds_")]
        gs_, rest = vgroups([x for x in f if not (isinstance(x, str) and x.startswith("ds_"))])
        if k < 17: seq += sched(mm, ds, gs_, vm_start=1) + rest
        else:
            wr = [f"ds_write_b128 v{LW+u}, v[{AC3+(u*5+j)*4}:{AC3+(u*5+j)*4+3}] offset:{1024*j}" for u in range(1, 4) for j in range(5)]
            seq += mm[:9] + interleave(mm[9:], wr[:11]) + [a.stamp(5), "s_mul_i32 s7, s3, 15360", "v_add_u32 v11, s7, v1"] + wr[11:]
    seq += ["v_mul_u32_u24 v4, 1152, v248",
            "v_lshl_add_u32 v4, v12, 3, v4", "s_lshr_b32 s25, s22, 1", f"s_mul_i32 s25, s25, {32*1152}", "s_and_b32 s26, s22, 1", f"s_mul_i32 s26, s26, {4*1152}",
            "s_add_u32 s25, s25, s26", "s_lshl_b32 s26, s45, 5", "s_add_u32 s25, s25, s26",
            "s_waitcnt lgkmcnt(0)", "s_barrier"]
    for i in range(15):
        c = AC3 + 20 + 4*i
        seq.append(f"ds_read_b128 v[{c}:{c+3}], v11 offset:{1024*i}")
        if i == 13: seq.append("s_waitcnt lgkmcnt(8)")
    seq += [WAIT([("X", 4)], lgkm=True)]
    for j in range(5):
        for h in range(2):
            x = AC3 + 4*j + 2*h
            seq += [f"v_pk_add_f32 {P(x)}, {P(x)}, {P(x+20)}", f"v_pk_add_f32 {P(x+40)}, {P(x+40)}, {P(x+60)}",
                    f"v_lshlrev_b32 v{x+20}, 16, v{XR+2*j+h}", f"v_and_b32 v{x+21}, 0xffff0000, v{XR+2*j+h}",
                    f"v_pk_add_f32 {P(x)}, {P(x)}, {P(x+40)}",
                    f"v_pk_fma_f32 {P(x)}, {P(x)}, {P(GB+4*j+2*h)}, {P(x+20)}",
                    f"v_cvt_pk_bf16_f32 v{XR+2*j+h}, v{x}, v{x+1}"]
        seq.append(VM(f"buffer_store_dwordx2 v[{XR+2*j}:{XR+1+2*j}], v4, s[12:15], s25 offen offset:{32*j}", ("O", j)))
    resolve(seq); emit(a, seq)
    a(a.stamp(6))
    a.stamp_end(3, 8)
    a("GM_END:\ns_endpgm\nGM_CODE_END:")
    a.stamp = st0
    a.desc("gm_kernel", 512, 256)
```

```python
from gen_common import *
from gen_g import *
P = lambda r: f"v[{r}:{r+1}]"
BIG = 0x7fffff00

def poll_loop(a, name, loads, regs, tmp):
    a(f"s_mov_b32 s27, 0\n{name}_POLL:")
    for x in loads: a(x)
    a("s_waitcnt vmcnt(0)")
    if len(regs) == 1: a(f"v_cmp_eq_u32 vcc, 0, v{regs[0]}")
    else:
        a(f"v_min_u32 v{tmp}, v{regs[0]}, v{regs[1]}")
        for r in regs[2:]: a(f"v_min_u32 v{tmp}, v{tmp}, v{r}")
        a(f"v_cmp_eq_u32 vcc, 0, v{tmp}")
    a(f"""
      s_add_u32 s27, s27, 1
      s_cmp_ge_u32 s27, 0x80000
      s_cbranch_scc1 {name}_GO
      s_nop 2
      s_cbranch_vccz {name}_GO
      s_sleep {SLP}
      s_branch {name}_POLL
    {name}_GO:
    """)

def gen_gm(a):
    st0 = a.stamp
    fine2 = eval(os.environ.get('FINE2', '{}'))
    if fine2:
        phase = [0]
        a.stamp = lambda i: (st0(i) if phase[0] else "; ")
    a.begin("gm_kernel")
    a("s_cmp_ge_u32 s2, 256\ns_cbranch_scc1 GM_END")
    a(a.stamp(0))
    a.load_args()
    tile_ids(a)
    SL = 252
    a(f"""
      s_mul_i32 s20, s5, {36*9216}
      s_add_u32 s20, s20, s7
      s_add_u32 s20, s20, {WINF}
      s_mul_i32 s21, s6, 36864
      s_add_u32 s21, s21, {X1F}           ; A soffset
      s_mul_i32 s30, s3, 12288
      s_add_u32 s30, s30, {3*36864}
      v_lshl_add_u32 v13, v2, 3, s30
      v_add_u32 v8, {18432-1024}, v1
      s_mul_i32 s28, s5, {64*9216}
      s_add_u32 s28, s28, {Z2F}
      s_lshl_b32 s29, s6, 17
      s_waitcnt lgkmcnt(0)
    """)
    a.srd(8, "ws")
    AB, BB = 0, 144
    ACC2, ACC1, ST = 16, 88, 160
    ALDS = 3*36864
    def a_dma(ks):
        if ks >= 18: return []
        o = [f"s_add_u32 m0, s30, {(ks % 6)*2048}", "s_nop 0",
             VM(f"buffer_load_dwordx4 v1, s[8:11], s21 offen lds", ("A", ks, 0)),
             VM(f"buffer_load_dwordx4 v8, s[8:11], s21 offen offset:1024 lds", ("A", ks, 1)),
             "s_add_u32 s21, s21, 1024"]
        return o
    def a_reads(ks):
        if ks >= 18: return []
        return [f"ds_read_b64 a[{AB+(ks*2+t)*4+2*h}:{AB+(ks*2+t)*4+2*h+1}], v13 offset:{(ks % 6)*2048 + t*1024 + h*512}" for t in range(2) for h in range(2)]
    def atags(ks): return [("A", ks, t) for t in range(2)] if ks < 18 else []
    def b1_group(k):
        T = (k+1)//4 + 2
        if T >= 9: return []
        p0, cnt = P0[k % 4]
        o = [f"s_add_u32 m0, s7, {(T % 3)*36864 + p0*1024}", "s_nop 0"]
        for i in range(cnt): o.append(VM(f"buffer_load_dwordx4 v1, s[8:11], s20 offen offset:{1024*i} lds", ("B", T, p0+i)))
        o.append(f"s_add_u32 s20, s20, {cnt*1024 if k % 4 != 2 else 36864 - 7168}")
        return o
    def b1_reads(k):
        return [f"ds_read_b128 a[{BB + (k%2)*36 + 4*j}:{BB + (k%2)*36 + 4*j + 3}], v{SL + (k//4) % 3} offset:{(k%4)*9216 + j*1024}" for j in range(9)]
    seq = []
    seq += a_dma(0)
    for k in range(-9, -5): seq += b1_group(k)
    for ks in range(1, 4): seq += a_dma(ks)
    seq += ["s_getpc_b64 s[32:33]", "GM_PC:", "s_sub_u32 s32, s32, GM_PC-gm_kernel", "s_subb_u32 s33, s33, 0", "s_and_b32 s33, s33, 0xffff",
            "s_mov_b32 s34, GM_CODE_END-gm_kernel", "s_mov_b32 s35, 0x20000", "s_lshr_b32 s31, s2, 3", "s_lshl_b32 s31, s31, 7",
            "v_lshlrev_b32 v255, 12, v0", "v_add_u32 v255, s31, v255", VM("buffer_load_dword v11, v255, s[32:35], 0 offen", "CW")]
    resolve(seq); emit(a, seq); pre = seq; seq = []
    NPB = int(os.environ.get('NPB', '2'))
    late_pro = []
    for k in range(-5, -5+NPB): late_pro += b1_group(k)
    e0 = []
    for k in range(-5+NPB, -1): e0 += b1_group(k)
    early = {0: e0 + a_dma(4) + (a_dma(5) + b1_group(-1) if NPB >= 2 else []), 1: (a_dma(5) + b1_group(-1) if NPB < 2 else []) + a_dma(6) + b1_group(0) + b1_group(1)}
    a.srd(12, "ws", 64*9216, "s28"); a.srd(16, "wsp"); a.srd(36, "bsp")
    a(f"""
      v_mov_b32 v{SL}, v1
      v_add_u32 v{SL+1}, 36864, v1
      v_add_u32 v{SL+2}, {2*36864}, v1
      v_mov_b32 v4, 0x3f803f80
      v_mov_b32 v5, 0x3f803f80
      v_mov_b32 v6, 0x3f803f80
      v_mov_b32 v7, 0x3f803f80
      s_mov_b32 s40, {float_hex(C1)}
      s_mov_b32 s41, {float_hex(C1)}
      v_mov_b32 v14, {float_hex(C0)}
      v_mov_b32 v15, {float_hex(C0)}
      s_mul_i32 s22, s5, {144*8}
      s_add_u32 s22, s22, {UV2}
      v_lshlrev_b32 v9, 3, v3             ; n*8
      v_add_u32 v9, 159744, v9
      v_lshrrev_b32 v248, 2, v3
      v_lshlrev_b32 v248, 3, v248
      v_and_b32 v249, 3, v3
      v_add_u32 v248, v248, v249
      v_add_u32 v251, 4096, v1
    """)
    seq += late_pro + [WAIT(btags(0)), "s_barrier", a.stamp(1)]
    seq += a_reads(0) + b1_reads(0)
    ARD = {k_: [k_+1] for k_ in range(14)}; ARD[14] = [15]; ARD[15] = [16, 17]
    STK = {k_: [k_] for k_ in range(16)}; STK[16] = [16, 17]
    def kstep(kk, extra=[], need_extra=[]):
        ks = kk % 18; ps = kk // 18
        o = []
        need = [t_ for x in ARD.get(kk, []) for t_ in atags(x)] + need_extra
        bar = (kk % 4 == 3 and kk < 35)
        if bar: need = need + btags((kk+1)//4)
        o.append(WAIT(need, lgkm=True))
        if bar: o.append("s_barrier")
        m = []
        for j in range(9):
            for t in range(2):
                A = f"a[{AB+(ks*2+t)*4}:{AB+(ks*2+t)*4+3}]"
                B = f"a[{BB+(kk%2)*36+4*j}:{BB+(kk%2)*36+4*j+3}]"
                r = (ACC2 if ps == 0 else ACC1) + (j*2+t)*4
                C = "0" if ks == 0 else f"v[{r}:{r+3}]"
                m.append(f"{MF} v[{r}:{r+3}], {A}, {B}, {C}" if ps == 0 else f"{MF} v[{r}:{r+3}], {B}, {A}, {C}")
        sm = []
        for k2 in STK.get(kk, []):
            for t in range(2):
                A = f"a[{AB+(k2*2+t)*4}:{AB+(k2*2+t)*4+3}]"
                r = ST + 4*t
                sm.append(f"{MF} v[{r}:{r+3}], {A}, v[4:7], {'0' if k2 == 0 else f'v[{r}:{r+3}]'}")
                r = ST + 8 + 4*t
                sm.append(f"{MF} v[{r}:{r+3}], {A}, {A}, {'0' if k2 == 0 else f'v[{r}:{r+3}]'}")
        m = (sm + m) if kk == 16 else (m + sm)
        f = (b1_reads(kk+1) if kk < 35 else []) + [x for k2 in ARD.get(kk, []) for x in a_reads(k2)] + early.get(kk, []) + (a_dma(kk+5) + (b1_group(kk) if not (int(os.environ.get('DL0', '18')) <= kk < 18) else []) if kk >= 2 else []) + extra
        if 'nosch' in X: return o + interleave(m, f)
        ds = [x for x in f if isinstance(x, str) and x.startswith("ds_")]
        base = [x for x in f[:len(f)-len(extra)] if not (isinstance(x, str) and x.startswith("ds_"))]
        if any(isinstance(x, str) and x.startswith("v_") for x in extra):
            gs_, rest = vgroups(base)
            mo = [i for i, x in enumerate(extra) if isinstance(x, str) and "m0" in x]
            cut = mo[0] if mo else len(extra)
            g2_, rest2 = vgroups(rest + extra[cut:])
            o += sched(m, ds, gs_ + g2_, extra[:cut]) + rest2
        else:
            gs_, rest = vgroups(base + extra)
            o += sched(m, ds, gs_) + rest
        return o
    UV = 176; WS = 216
    UVL = 159744
    uvd = [f"s_mov_b32 m0, {UVL}", "s_nop 0", VM("buffer_load_dwordx4 v1, s[8:11], s22 offen lds", ("UVD", 0)), VM("buffer_load_dwordx4 v1, s[8:11], s22 offen offset:1024 lds", ("UVD", 1)),
           f"s_mul_i32 s22, s5, {144*4}", f"s_add_u32 s22, s22, {UV1}", f"s_mov_b32 m0, {UVL+2048}", "s_nop 0", VM("buffer_load_dwordx4 v1, s[8:11], s22 offen lds", ("UVD", 2)),
           f"s_add_u32 s22, s22, {9216-1024}", VM("buffer_load_dwordx4 v1, s[8:11], s22 offen offset:1024 lds", ("UVD", 3))]
    uv2 = [f"ds_read_b64 v[{UV+2*j}:{UV+2*j+1}], v9 offset:{128*j}" for j in range(9)]
    touch = ["v_lshlrev_b32 v10, 12, v12", "v_lshl_add_u32 v10, v3, 4, v10", "s_lshl_b32 s31, s5, 8", "s_add_u32 s31, s31, s29"]
    for i in range(8):
        touch += [VM(f"buffer_load_dwordx4 a[{WS}:{WS+3}], v10, s[16:19], s31 offen", ("WL", i)), "s_add_u32 s31, s31, 16384"]
    CW1 = [int(x) for x in os.environ.get('CW1', '-1').split(',')]
    TK0 = int(os.environ.get('TK0', '13'))
    for kk in range(18):
        ex = []
        ne = []
        if kk in CW1: ex = [VM("buffer_load_dword v194, v255, s[32:35], 0 offen", ("CW1", kk))]
        if kk == min(13, TK0-2): ex = uvd
        if kk == TK0-1: ex = touch[:4]
        if kk == TK0: ex = touch[4:12]
        if kk == TK0+1: ex = touch[12:]
        if kk == 6: ex = ["v_mul_u32_u24 v11, 80, v12"]
        if kk == 16: early[16] = [f"ds_bpermute_b32 v{ST+8+4*t+r}, v11, v{ST+8+4*t+r} offset:{4*r}" for t in range(2) for r in range(4)]
        if kk == 17:
            ex = ln_finish([ST+i for i in range(8)], [ST+8+i for i in range(8)], 576, 8, None)
            early[17] = uv2[:5]; ne = [("UVD", 3)]
        seq += kstep(kk, ex, ne)
    seq += [a.stamp(2), "s_waitcnt lgkmcnt(0)"] + uv2[5:] + ["s_nop 3"]
    ZR = [240, 244]; ZN = [242, 246]
    zst = ["v_and_b32 v210, 3, v3", "v_lshrrev_b32 v211, 2, v3", "v_lshl_add_u32 v211, v211, 4, v3", "v_lshlrev_b32 v211, 2, v211"]
    for t in range(2):
        zst += [f"v_mov_b32 v{ZR[t]}, v{ST+8+4*t}", f"v_mov_b32 v{ZN[t]}, v{ST+4*t}"]
    for r in range(1, 4):
        zst += [f"v_cmp_eq_u32 vcc, {r}, v210", "s_nop 1"]
        for t in range(2):
            zst += [f"v_cndmask_b32 v{ZR[t]}, v{ZR[t]}, v{ST+8+4*t+r}, vcc", f"v_cndmask_b32 v{ZN[t]}, v{ZN[t]}, v{ST+4*t+r}, vcc"]
    zbp = [f"ds_bpermute_b32 v{r}, v211, v{r}" for r in ZR + ZN]
    DL0 = int(os.environ.get('DL0', '18'))
    dlist = []
    for kk in range(DL0, 18): dlist += b1_group(kk)
    g2start = len(seq)
    Z1S, Z2S, TMP, GR = 196, 204, 212, 220
    for j in range(9):
        xs = [ACC2 + j*8 + 2*i for i in range(4)]; ts = [TMP + 2*i for i in range(4)]
        uv = P(UV + 2*j)
        if j == 3: seq.append("s_waitcnt lgkmcnt(0)")
        seq.append(f"v_mov_b32 v194, v{UV+2*j+1}")
        for i in range(4): seq.append(f"v_pk_fma_f32 {P(ts[i])}, {P(ST+2*i)}, {uv}, v[194:195] op_sel_hi:[1,0,0]")
        for i in range(4): seq.append(f"v_pk_fma_f32 {P(xs[i])}, {P(xs[i])}, {P(ST+8+2*i)}, {P(ts[i])}")
        seq += gelu_pairs(xs, ts)
        for i in range(4):
            if j == 0: seq += [f"v_pk_mul_f32 {P(Z2S+2*i)}, {P(xs[i])}, {P(xs[i])}"]
            elif j == 1: seq += [f"v_pk_add_f32 {P(Z1S+2*i)}, {P(xs[i])}, {P(ACC2+2*i)}", f"v_pk_fma_f32 {P(Z2S+2*i)}, {P(xs[i])}, {P(xs[i])}, {P(Z2S+2*i)}"]
            else: seq += [f"v_pk_add_f32 {P(Z1S+2*i)}, {P(xs[i])}, {P(Z1S+2*i)}", f"v_pk_fma_f32 {P(Z2S+2*i)}, {P(xs[i])}, {P(xs[i])}, {P(Z2S+2*i)}"]
    NG = int(os.environ.get('NG', '60'))
    seq = seq[:g2start] + interleave(seq[g2start:g2start+NG], dlist) + seq[g2start+NG:]
    gspos = len(seq)
    V = [(Z1S if i % 2 == 0 else Z2S) + i//2 for i in range(16)]
    T0, T1 = TMP, TMP+4
    seq += ["v_and_b32 v11, 3, v3", "v_cmp_eq_u32 vcc, 0, v11"]
    for r in range(4):
        seq += [f"v_add_f32_dpp v{T0+r}, v{V[r]}, v{V[r]} row_ror:8 row_mask:0xf bank_mask:0x3", f"v_add_f32_dpp v{T0+r}, v{V[8+r]}, v{V[8+r]} row_ror:8 row_mask:0xf bank_mask:0xc"]
    for r in range(4):
        seq += [f"v_add_f32_dpp v{T1+r}, v{V[4+r]}, v{V[4+r]} row_ror:8 row_mask:0xf bank_mask:0x3", f"v_add_f32_dpp v{T1+r}, v{V[12+r]}, v{V[12+r]} row_ror:8 row_mask:0xf bank_mask:0xc"]
    for r in range(4): seq.append(f"v_add_f32_dpp v{GR+r}, v{T0+r}, v{T0+r} row_shl:4 row_mask:0xf bank_mask:0x5")
    for r in range(4): seq.append(f"v_add_f32_dpp v{GR+r}, v{T1+r}, v{T1+r} row_shr:4 row_mask:0xf bank_mask:0xa")
    for qp in ("[1,0,3,2]", "[2,3,0,1]"):
        for r in range(4): seq.append(f"v_add_f32_dpp v{GR+r}, v{GR+r}, v{GR+r} quad_perm:{qp} row_mask:0xf bank_mask:0xf")
    seq += [f"v_or_b32 v{GR+1}, 1, v{GR+1}", f"v_or_b32 v{GR+3}, 1, v{GR+3}",
            f"s_lshl_b32 s23, s6, 12", f"s_add_u32 s23, s23, {ST2}", "s_lshl_b32 s24, s5, 8", "s_add_u32 s24, s24, s23",
            "v_lshlrev_b32 v10, 2, v2", f"v_mov_b32 v194, {BIG}", "v_cndmask_b32 v10, v194, v10, vcc",
            "v_lshlrev_b32 v9, 4, v12", f"v_add_u32 v9, {UVL+2048}, v9", a.stamp(3)]
    gs = [VM(f"buffer_store_dwordx4 v[{GR}:{GR+3}], v10, s[8:11], s24 offen sc1", "GS")]
    seq += gs
    U1 = 160
    uv1 = []
    for j in range(9):
        uv1.append(f"ds_read_b128 v[{U1+8*j}:{U1+8*j+3}], v9 offset:{64*j}")
        uv1.append(f"ds_read_b128 v[{U1+8*j+4}:{U1+8*j+7}], v9 offset:{64*j+1024}")
    PL = 176; R1 = [200+i for i in range(8)]; R2 = [192+i for i in range(8)]
    pl = [f"buffer_load_dwordx4 v[{PL+4*i}:{PL+4*i+3}], v1, s[8:11], s23 offen offset:{1024*i} sc1" for i in range(4)]
    bl = [VM("buffer_load_ushort v6, v5, s[36:39], s26 offen", "b0"), VM("buffer_load_ushort v7, v5, s[36:39], s26 offen offset:8", "b1")]
    chk = [f"v_min_u32 v209, v{PL+1}, v{PL+3}"] + [f"v_min_u32 v209, v209, v{PL+2*i+1}" for i in range(2, 8)] + ["v_cmp_eq_u32 vcc, 0, v209"]
    pollS = [WAIT([("PL", 3)])] + chk + ["s_mov_b32 s27, 0", "s_nop 3", "s_cbranch_vccz GM_S_GO", "GM_S_POLL:"] + pl + ["s_waitcnt vmcnt(0)"] + chk + \
            ["s_add_u32 s27, s27, 1", "s_cmp_ge_u32 s27, 0x80000", "s_cbranch_scc1 GM_S_GO", "s_nop 2", "s_cbranch_vccz GM_S_GO", f"s_sleep {SLP}", "s_branch GM_S_POLL", "GM_S_GO:", a.stamp(4)]
    nrm = [f"v_add_f32 v{PL+r}, v{PL+r}, v{PL+4+r}" for r in range(4)] + [f"v_add_f32 v{PL+8+r}, v{PL+8+r}, v{PL+12+r}" for r in range(4)]
    nrm += [f"v_add_f32 v{PL+r}, v{PL+r}, v{PL+8+r}" for r in range(4)]
    for sw in ("16", "32"):
        nrm += [f"v_mov_b32 v{PL+4+r}, v{PL+r}" for r in range(4)] + ["s_nop 1"]
        nrm += [f"v_permlane{sw}_swap_b32 v{PL+r}, v{PL+4+r}" for r in range(4)] + ["s_nop 1"]
        nrm += [f"v_add_f32 v{PL+r}, v{PL+r}, v{PL+4+r}" for r in range(4)]
    nrm += ln_finish([PL, PL+2], [PL+1, PL+3], FH, 2, None)
    nrm += ["v_lshlrev_b32 v11, 4, v12"]
    bp = []
    for i in range(8):
        bp += [f"ds_bpermute_b32 v{R1[i]}, v11, v{PL+2*(i%2)} offset:{4*(i//2)}", f"ds_bpermute_b32 v{R2[i]}, v11, v{PL+2*(i%2)+1} offset:{4*(i//2)}"]
    nrm += ["s_mul_i32 s26, s6, 9216", "v_add_u32 v208, 8192, v1"]
    nrm0 = nrm; nrm = []
    for j in range(9):
        for i in range(8): nrm.append(f"v_fma_f32 v{ACC2+8*j+i}, v{ACC2+8*j+i}, v{R2[i]}, v{R1[i]}")
        for i in range(4): nrm.append(f"v_cvt_pk_bf16_f32 v{ACC2+8*j+i}, v{ACC2+8*j+2*i}, v{ACC2+8*j+2*i+1}")
        nrm.append(VM(f"buffer_store_dwordx4 v[{ACC2+8*j}:{ACC2+8*j+3}], {['v1','v251','v208'][j//4]}, s[12:15], s26 offen offset:{1024*(j%4)} sc1", ("Z2", j)))
    KT = -1
    KP, KN0, KN1, JPK, KF = [int(x) for x in os.environ.get('P2', '22,24,25,3,31').split(',')]
    per = (len(nrm0) + (KN1-KN0) - 1) // (KN1-KN0)
    pb = "buffer_load_dword v11, v10, s[8:11], s23 offen sc1"
    flagprep = ["s_lshl_b32 s24, s6, 4", "s_add_u32 s24, s24, s5", "s_lshl_b32 s24, s24, 7", f"s_add_u32 s24, s24, {FLB}",
            "v_cmp_eq_u32 vcc, 0, v2", f"v_mov_b32 v13, {BIG}", "v_mov_b32 v5, 1", "v_cndmask_b32 v13, v13, 0, vcc"]
    ACC, B2V = 16, 88
    AV = [241, 243, 245, 247]
    aprep = ["v_lshrrev_b32 v4, 3, v2", "v_lshrrev_b32 v249, 2, v4", "v_lshlrev_b32 v249, 3, v249", "v_and_b32 v250, 3, v4", "v_add_u32 v249, v249, v250", "v_lshlrev_b32 v249, 12, v249",
            "v_lshrrev_b32 v4, 1, v4", "v_and_b32 v250, 7, v2", "v_xor_b32 v4, v4, v250",
            f"v_lshl_add_u32 v{AV[0]}, v4, 4, v249", "v_xor_b32 v4, 4, v4", f"v_lshl_add_u32 v{AV[1]}, v4, 4, v249", f"v_add_u32 v{AV[1]}, {65536-1024}, v{AV[1]}",
            f"v_add_u32 v{AV[2]}, {16384-2048}, v{AV[0]}", f"v_add_u32 v{AV[3]}, {16384-2048}, v{AV[1]}"]
    aprep2 = ["v_lshrrev_b32 v4, 1, v3", "v_xor_b32 v4, v4, v12", "v_lshlrev_b32 v4, 4, v4", "v_lshl_add_u32 v4, v3, 7, v4",
            "v_add_u32 v249, s7, v4", "v_xor_b32 v250, 64, v249", "v_add_u32 v4, s30, v4", "v_xor_b32 v8, 64, v4"]
    PLACE = {"R0": ("s30", 0), "R1": ("s30", 4096), "R2": ("s30", 8192), "S0a": ("s7", 0), "S0b": ("s7", 4096), "S1a": ("s7", 36864), "S1b": ("s7", 36864+4096)}
    def a2_dma(Pp, pl):
        b, off = PLACE[pl]
        return [f"s_add_u32 m0, {b}, {off}", f"s_add_u32 s21, s29, {128*Pp}"] + \
               [VM(f"buffer_load_dwordx4 v{AV[i]}, s[16:19], s21 offen offset:{1024*i} lds", ("A2", Pp, i)) for i in range(4)]
    def a2_rd(Pp, pl):
        b, off = PLACE[pl]
        regs = ("v4", "v8") if b == "s30" else ("v249", "v250")
        return [f"ds_read_b128 a[{8*((2*Pp+e) % 32)+4*t}:{8*((2*Pp+e) % 32)+4*t+3}], {regs[e]} offset:{off + t*2048}" for e in range(2) for t in range(2)]
    def a2tags(Pp): return [("A2", Pp, i) for i in range(4)]
    r1 = {21: [(3, "R2")], 23: [(4, "R0")], 25: [(5, "R1")], 27: [(6, "R2")], 28: [(7, "S0a")], 29: [(8, "S0b")],
          31: [(9, "S1a")], 32: [(10, "S1b")], 33: [(11, "R0")], 34: [(12, "R1")], 35: [(13, "R2")]}
    rr1 = {20: [(0, "R2")], 22: [(1, "R0")], 24: [(2, "R1")], 26: [(3, "R2")], 28: [(4, "R0")], 33: [(5, "R1")], 34: [(6, "R2")], 35: [(7, "S0a")]}
    if 'r1b' in X:
        r1 = {21: [(3, "R2")], 23: [(4, "R0")], 29: [(5, "R1")], 30: [(6, "R2"), (7, "S0a")], 31: [(8, "S0b"), (9, "S1a")], 32: [(10, "S1b")], 33: [(11, "R0")], 34: [(12, "R1")], 35: [(13, "R2")]}
    if 'r1a' not in X:
        r1 = {21: [(3, "R2")], 23: [(4, "R0")], 28: [(5, "R1")], 29: [(6, "R2")], 30: [(7, "S0a"), (8, "S0b")], 31: [(9, "S1a")], 32: [(10, "S1b")], 33: [(11, "R0")], 34: [(12, "R1")], 35: [(13, "R2")]}
    GA, GB_ = [int(x) for x in os.environ.get('GA', '300,440').split(',')]
    g2 = seq[g2start:gspos]
    g2 = g2[:GA] + aprep + aprep2 + interleave(g2[GA:GA+60], a2_dma(14, "R0") + a2_dma(15, "R1") + a2_dma(0, "R2")) + g2[GA+60:GB_] + \
         [WAIT(a2tags(15))] + a2_rd(14, "R0") + a2_rd(15, "R1") + g2[GB_:GB_+30] + ["s_waitcnt lgkmcnt(0)"] + interleave(g2[GB_+30:], a2_dma(1, "R0") + a2_dma(2, "R1"))
    seq = seq[:g2start] + g2 + seq[gspos:]
    for kk in range(18, 36):
        ex = []; ne = []
        if kk == 19: ex = [VM("buffer_load_dword v11, v255, s[32:35], 0 offen", "CW2")]
        if kk == 18: ex = ["v_lshlrev_b32 v5, 1, v248", "s_lshl_b32 s26, s6, 6"] + bl
        if kk == 20: ex = zst
        if kk == 21: early[kk] = early.get(kk, []) + zbp
        if kk == KP: ex = [VM(x, ("PL", i)) for i, x in enumerate(pl)]
        if kk in fine2: seq.append(st0(fine2[kk]))
        if kk == KN0: seq += pollS
        if kk == KN0: ex = nrm0
        if kk == KN0+1: seq += ["s_waitcnt lgkmcnt(0)"] + bp[:12] + ["s_waitcnt lgkmcnt(4)"] + bp[12:]
        if kk >= KN1: ex = nrm[13*JPK*(kk-KN1):13*JPK*(kk-KN1+1)]
        if kk == 30:
            assert not ex
            ex = flagprep + ["s_lshl_b32 s23, s3, 4", "s_add_u32 s23, s23, s5", "s_lshl_b32 s23, s23, 7", f"s_add_u32 s23, s23, {FLB}", "v_lshlrev_b32 v10, 13, v3"]
        if kk == KF: ex = [VM("buffer_store_dword v5, v13, s[8:11], s24 offen sc1", "FB")] + ex; ne = [("Z2", 8)]
        if kk in (30, 31): early[kk] = early.get(kk, []) + uv1[5*(kk-30):5*(kk-30)+5]
        if kk == 35: early[kk] = early.get(kk, []) + uv1[10:]
        for Pp, pl_ in r1.get(kk, []): ex = ex + a2_dma(Pp, pl_)
        for Pp, pl_ in rr1.get(kk, []): early[kk] = early.get(kk, []) + a2_rd(Pp, pl_); ne = ne + a2tags(Pp)
        if kk == 35: ex = [VM(pb, "PB")] + ex
        seq += kstep(kk, ex, ne)
    seq += [a.stamp(5)]
    TM1 = 232
    JF = int(os.environ.get('JF', '0'))
    def z1g(j):
        o = []
        xs = [ACC1 + j*8 + 2*i for i in range(4)]; ts = [TM1 + 2*i for i in range(4)]
        for i in range(4):
            o.append(f"v_pk_fma_f32 {P(ts[i])}, {P(U1+8*j+2*(i%2))}, {P(ZN[i//2])}, {P(U1+8*j+4+2*(i%2))} op_sel_hi:[1,0,1]")
        for i in range(4):
            o.append(f"v_pk_fma_f32 {P(xs[i])}, {P(xs[i])}, {P(ZR[i//2])}, {P(ts[i])} op_sel_hi:[1,0,1]")
        if j < JF: o += gelu_pairs(xs, ts)
        for i in range(4): o.append(f"v_cvt_pk_bf16_f32 v{U1+8*j+i}, v{xs[i]}, v{xs[i]+1}")
        return o
    def late_gelu(j, hf):
        xs = [(U1+8*j+4+i) if hf == 1 else (236+i) for i in range(4)]; ts = [232+i for i in range(4)]
        o = []
        for d in range(2): o += [f"v_lshlrev_b32 v{xs[2*d]}, 16, v{U1+8*j+2*hf+d}", f"v_and_b32 v{xs[2*d+1]}, 0xffff0000, v{U1+8*j+2*hf+d}"]
        for x, t in zip(xs, ts): o.append(f"v_mul_f32 v{t}, v{x}, v{x}")
        for x, t in zip(xs, ts): o.append(f"v_fma_f32 v{t}, v{t}, s40, v14")
        for x, t in zip(xs, ts): o.append(f"v_mul_f32 v{t}, v{t}, v{x}")
        for x, t in zip(xs, ts): o.append(f"v_exp_f32 v{t}, v{t}")
        for x, t in zip(xs, ts): o.append(f"v_add_f32 v{t}, 1.0, v{t}")
        for x, t in zip(xs, ts): o.append(f"v_rcp_f32 v{t}, v{t}")
        for i, (x, t) in enumerate(zip(xs, ts)): o.append(f"v_mul_f32 v{U1+8*j+4*hf+i}, v{x}, v{t}")
        return o
    def b2_group(k):
        T = (k+1)//4 + 2
        if T >= 15: return []
        p0, cnt = P0[k % 4]
        o = [f"s_add_u32 m0, s7, {(T % 3)*36864 + p0*1024}", "s_nop 0"]
        for i in range(cnt): o.append(VM(f"buffer_load_dwordx4 v1, s[12:15], s20 offen offset:{1024*i} sc1 lds", ("B2", T, p0+i)))
        o.append(f"s_add_u32 s20, s20, {cnt*1024 if k % 4 != 2 else 36864 - 7168}")
        return o
    def b2tags(T): return [("B2", T, p) for p in range(9)]
    def b2_reads(k):
        return [f"ds_read_b128 v[{B2V + (k%2)*36 + 4*j}:{B2V + (k%2)*36 + 4*j + 3}], v{SL + (k//4) % 3} offset:{(k%4)*9216 + j*1024}" for j in range(9)]
    seq += ["s_mov_b32 s20, s7", WAIT(a2tags(10), lgkm=True)] + a2_rd(8, "S0b") + a2_rd(9, "S1a") + a2_rd(10, "S1b")
    J2 = int(os.environ.get('J2', '4'))
    for j in range(J2): seq += z1g(j)
    seq += [WAIT(["PB"]), "v_cmp_eq_u32 vcc, 0, v11", "s_barrier", "s_waitcnt lgkmcnt(0)", "s_nop 2", "s_cbranch_vccz GM_B_GO"]
    resolve(pre + seq); emit(a, seq); pre2 = [VM("; ", x.tag) for x in seq if isinstance(x, VM) and x.tag[0] == "A2" and x.tag[1] in (11, 12, 13)]
    poll_loop(a, "GM_B", [pb], [11], None)
    a(a.stamp(6))
    seq = list(pre2)
    for k in range(-9, -5): seq += b2_group(k)
    fl = []
    for k in range(-5, -3): fl += b2_group(k)
    val = []
    for j in range(J2, 9): val += z1g(j)
    seq += interleave(val, fl)
    if fine2: phase[0] = 1
    if Asm.STAMPS: seq += [a.stamp(7), "STAMPFLUSH"]
    seq += [f"v_lshlrev_b32 v{232+i}, 16, v{6 + i//4}" for i in range(8)]
    seq += [WAIT(b2tags(0)), "s_barrier"] + b2_reads(0)
    KA = 46
    PS_ = [11, 12, 13] + list(range(16, 32))
    RPi = lambda i: 2 + ((KA-2)*i)//(len(PS_)-1)
    KT0 = 52
    rd_at = {RPi(i): (Pp, f"R{i % 3}") for i, Pp in enumerate(PS_)}
    assert len(rd_at) == len(PS_) and all(RPi(i) <= 2*p_-1 and RPi(i) >= 2*(p_-16)+2 for i, p_ in enumerate(PS_))
    dma_at = {RPi(i-3)+1: (PS_[i], f"R{i % 3}") for i in range(3, len(PS_))}
    def areg(k, t): return f"a[{8*(k%32)+4*t}:{8*(k%32)+4*t+3}]"
    def mf2(k, j, t, breg):
        r = ACC + (j*2+t)*4
        return f"{MF} v[{r}:{r+3}], v[{breg}:{breg+3}], {areg(k, t)}, {f'v[{232+4*t}:{235+4*t}]' if k == 0 else f'v[{r}:{r+3}]'}"
    g3prep = f"""
      s_and_b32 s44, s2, 7
      s_lshl_b32 s44, s44, 2
      s_lshr_b32 s45, s2, 3
      s_and_b32 s38, s45, 3
      s_add_u32 s44, s44, s38             ; mb
      s_lshr_b32 s45, s45, 2
      s_mul_i32 s45, s45, 9
      s_lshr_b32 s45, s45, 1              ; n0
      s_mul_i32 s39, s3, {18*36864}
      s_lshl_b32 s38, s45, 10
      s_add_u32 s39, s39, s38
      s_add_u32 s39, s39, {WOUTF}         ; W soffset (registers part)
      s_add_u32 s36, s39, {11*36864}      ; W soffset (lds part)
      s_mul_i32 s37, s3, 30720
      s_add_u32 s37, s37, 36864           ; lds W area""".split("\n")
    NWR = 11
    def w_reg(k): return 20*k if k < NWR else (20*(k-NWR) if k < 17 else 224)
    def w_loads(k, so="s39"):
        r = w_reg(k)
        return [VM(f"buffer_load_dwordx4 a[{r+4*j}:{r+4*j+3}], {'v1' if j < 4 else 'v251'}, s[8:11], {so} offen offset:{1024*(j%4)}", ("W", k, j)) for j in range(5)] + [f"s_add_u32 {so}, {so}, 36864"]
    def w_dma(k):
        o = [f"s_add_u32 m0, s37, {(k-NWR)*5120}", "s_nop 0"]
        o += [VM(f"buffer_load_dwordx4 v1, s[8:11], s36 offen offset:{1024*j} lds", ("W", k, j)) for j in range(4)]
        o += [f"s_add_u32 m0, s37, {(k-NWR)*5120 + 4096}", "s_nop 0", VM(f"buffer_load_dwordx4 v251, s[8:11], s36 offen lds", ("W", k, 4)), "s_add_u32 s36, s36, 36864"]
        return o
    apieces = {}
    for k0, (Pp, pl_) in dma_at.items():
        b, off = PLACE[pl_]
        ks_ = [k0, k0, k0+1, k0+1] if (k0+1) not in dma_at else [k0]*4
        for i in range(4):
            gr = [f"s_add_u32 m0, {b}, {off}", VM(f"buffer_load_dwordx4 v{AV[i]}, s[16:19], s21 offen offset:{1024*i} lds", ("A2", Pp, i))]
            if i > 0 and ks_[i] == ks_[i-1]: gr = gr[1:]
            if i == 0: gr = [f"s_add_u32 s21, s29, {128*Pp}"] + gr
            apieces.setdefault(ks_[i], []).append(gr)
    CWK = [int(x) for x in os.environ.get('CWK', '1,9,17,25,33,41,49').split(',')]
    def t15_group(k):
        p0, cnt = P0[k % 4]
        o = [f"s_add_u32 m0, s7, {ALDS + p0*1024}"]
        for i in range(cnt): o.append(VM(f"buffer_load_dwordx4 v1, s[12:15], s21 offen offset:{1024*i} sc1 lds", ("B2", 15, p0+i)))
        o.append(f"s_add_u32 s21, s21, {cnt*1024}")
        return o
    tailprep = f"""
      v_add_u32 v4, {ALDS}, v1
      v_lshlrev_b32 v8, 3, v2
      s_lshr_b32 s22, s5, 1
      s_mul_i32 s22, s22, 9216
      s_mul_i32 s23, s6, {2*73728}
      s_add_u32 s22, s22, s23
      s_add_u32 s22, s22, {PF}
      s_and_b32 s23, s5, 1
      s_lshl_b32 s28, s23, 12
      s_add_u32 s28, s28, s22
      s_add_u32 s29, s28, 73728
      s_lshl_b32 s23, s23, 9
      s_add_u32 s30, s22, s23
      s_add_u32 s30, s30, 8192
      s_add_u32 s31, s30, 73728
      s_add_u32 s24, s24, {FLP-FLB}""".split("\n")
    TK = [52, 53, 54, 55, 60, 61, 62, 63, 56, 57, 58, 59]
    def ureg(u): return B2V + 24*(u % 3)
    def u_reads(u):
        if u >= 18: return []
        j, hf = divmod(u, 2)
        o = []
        for i, k in enumerate(TK[6*hf:6*hf+6]):
            ad = "v4" if k >= 60 else f"v{SL + (k//4) % 3}"
            o.append(f"ds_read_b128 v[{ureg(u)+4*i}:{ureg(u)+4*i+3}], {ad} offset:{(k%4)*9216 + j*1024}")
        return o
    WE = [int(x) for x in os.environ.get('WE', '43,45').split(',')]
    wq = [w_loads(k) for k in range(0, NWR)] + [w_dma(k) for k in range(NWR, 17)] + [w_loads(17, "s36")]
    lg = []
    for j in range(JF, 9): lg += late_gelu(j, 1) + late_gelu(j, 0)
    LG0, LG1 = 2, int(os.environ.get('LG1', '52'))
    for k in range(KT0):
        need = []
        if k in rd_at: need += a2tags(rd_at[k][0])
        if k % 4 == 3: need += b2tags((k+1)//4)
        if k == KT0-1: need += b2tags(15)
        if k == 51: need += [("G", 3)]
        seq.append(WAIT(need, lgkm=True))
        if k % 4 == 3: seq.append("s_barrier")
        mm = [mf2(k, j, t, B2V + (k%2)*36 + 4*j) for j in range(9) for t in range(2)]
        ds = b2_reads(k+1) if k+1 < KT0 else u_reads(0)
        if k in rd_at: ds += a2_rd(*rd_at[k])
        f = {0: b2_group(-3) + b2_group(-2), 1: b2_group(-1) + b2_group(0), 2: b2_group(1) + b2_group(2)}.get(k, None)
        if f is None: f = b2_group(k)
        f = f + [y for x in apieces.get(k, []) for y in x]
        if 47 <= k < 49: f = t15_group(2*k-47) + t15_group(2*k-46) + f
        if k in CWK: f += [VM("buffer_load_dword v11, v255, s[32:35], 0 offen", ("CW", k))]
        oth = []
        if k == 46: oth = [f"s_add_u32 s21, s7, {15*36864}"]
        if k == 48: oth = tailprep
        if k == 1: oth = ["s_lshr_b32 s42, s2, 5", "s_mul_i32 s42, s42, 9", "s_lshr_b32 s42, s42, 1", "s_lshl_b32 s42, s42, 7",
                           f"s_add_u32 s42, s42, {MODP + 5*576*8}", f"s_add_u32 s43, s42, {3456*8}", "v_lshlrev_b32 v9, 3, v2"]
        if k == 44: f += [VM(f"buffer_load_dword v{240+2*i}, v9, s[8:11], s{42 + i%2} offen offset:{512*(i//2)}", ("G", i)) for i in range(4)]
        if k == 51: oth = ["v_add_f32 v6, v240, v242", "v_add_f32 v7, v244, v246", "v_cvt_pk_bf16_f32 v6, v6, v7", "v_and_b32 v7, 0xffff0000, v6", "v_lshlrev_b32 v6, 16, v6"]
        if k == 0: oth = g3prep
        if k in WE: f += wq.pop(0)
        if LG0 <= k < LG1 and 'nolg' not in X: oth = oth + lg[len(lg)*(k-LG0)//(LG1-LG0):len(lg)*(k+1-LG0)//(LG1-LG0)]
        gs_, rest = vgroups(f)
        if 'nov' in X and 3 < k < 43:
            for gr in gs_: gr[-1].text = 's_nop 0'
        seq += sched(mm, ds, gs_, oth) + rest
    seq.append(a.stamp(0))
    def epi(j):
        o = []
        for t in range(2):
            x = ACC + (j*2+t)*4; z = U1 + 8*j + 4*t
            od = ACC + ((j & ~1)*2+t)*4
            for r in range(4): o.append(f"v_mul_f32 v{x+r}, v{x+r}, v{z+r}")
            for h in range(2): o.append(f"v_cvt_pk_bf16_f32 v{od + (j%2)*2 + h}, v{x+2*h}, v{x+2*h+1}")
            if j % 2 == 1: o.append(VM(f"buffer_store_dwordx4 v[{od}:{od+3}], v1, s[8:11], s{28+t} offen offset:{1024*(j//2)} sc1", ("PS", j, t)))
            if j == 8: o.append(VM(f"buffer_store_dwordx2 v[{od}:{od+1}], v8, s[8:11], s{30+t} offen sc1", ("PS", 9, t)))
        return o
    WT = [int(x) for x in os.environ.get('WT', '8,1,6').split(',')]
    nleft = 8 - (18 - len(wq))
    tailw = set((i*8)//nleft for i in range(nleft)) if nleft else set()
    seq += [WAIT(b2tags(14), lgkm=True), "s_barrier"] + u_reads(1)
    for u in range(18):
        j, hf = divmod(u, 2)
        m_ = [mf2(k, j, t, ureg(u) + 4*i) for i, k in enumerate(TK[6*hf:6*hf+6]) for t in range(2)]
        if u > 0: seq.append(f"s_waitcnt lgkmcnt({6 if u < 17 else 0})")
        e = epi(j-1) if j >= 1 else []
        if hf == 0:
            seq += interleave(m_[:6], u_reads(u+2) if u < 16 else ["s_nop 1"]) + interleave(m_[6:], e)
        else:
            gs_, rest = vgroups(wq.pop(0) if j in tailw else [])
            seq += sched(m_, u_reads(u+2), gs_, vm_start=1) + rest
    seq += ["s_nop 7"] + epi(8) + ["s_barrier"]
    PV, LW = 240, 244
    seq += f"""
      s_mul_i32 s20, s44, {4*73728}
      s_mul_i32 s6, s3, {18*1024}
      s_add_u32 s20, s20, s6
      s_add_u32 s20, s20, {PF}            ; P soffset
      s_lshl_b32 s23, s44, 12
      s_lshl_b32 s6, s3, 9
      s_add_u32 s23, s23, s6
      s_add_u32 s23, s23, {FLP}           ; poll address
      v_and_b32 v10, 3, v2
      v_bfe_u32 v11, v2, 2, 1
      v_lshl_add_u32 v10, v11, 4, v10
      v_lshlrev_b32 v10, 7, v10
      v_add_u32 v249, s37, v1""".split("\n")
    for u in range(4):
        seq += [f"s_add_u32 s6, s3, {u}", "s_and_b32 s6, s6, 3", "s_mul_i32 s7, s6, 73728", f"v_add_u32 v{PV+u}, s7, v1"]
        if u > 0: seq += ["s_mul_i32 s7, s6, 15360", f"s_add_u32 s7, s7, {(u-1)*5120}", f"v_add_u32 v{LW+u}, s7, v1"]
    for _ in range(WT[1]): seq += wq.pop(0)
    seq += [a.stamp(1), WAIT([("PS", 9, 1)]), VM("buffer_store_dword v5, v13, s[8:11], s24 offen sc1", "FP"), a.stamp(2)]
    DEP = 6; AC3 = 16; PR = 96; XR, GB, GR_ = 192, 204, 96
    seq += [f"s_lshl_b32 s22, s44, 2", "s_add_u32 s22, s22, s3", "s_mul_i32 s25, s22, 18432", "s_lshl_b32 s24, s45, 9", "s_add_u32 s25, s25, s24", f"s_add_u32 s25, s25, {X1F}",
            "v_lshlrev_b32 v8, 4, v12"]
    xl = [VM(f"buffer_load_dwordx2 v[{XR+2*j}:{XR+1+2*j}], v9, s[8:11], s25 offen offset:{512*j}", ("X", j)) for j in range(5)]
    for _ in range(WT[2]): seq += wq.pop(0)
    for j in range(5):
        for r in range(4): seq.append(f"ds_bpermute_b32 v{GB+4*j+r}, v8, v{6 if j < 4 else 7} offset:{64*(j%4) + 4*r}")
        if j == 2: seq.append("s_waitcnt lgkmcnt(0)")
    resolve(seq)
    for it in seq:
        if it == "STAMPFLUSH": a.stamp_flush2(2, 8)
        else: emit(a, [it])
    a.srd(12, "out")
    poll_loop(a, "GM_P", ["buffer_load_dword v11, v10, s[8:11], s23 offen sc1"], [11], None)
    a(a.stamp(3))
    done = [VM("; ", x.tag) for x in seq if isinstance(x, VM) and x.tag[0] == "W"]
    def p_loads(k):
        if k >= 18: return []
        r = PR + (k % DEP)*16
        if k % 9 != 8: o = [VM(f"buffer_load_dwordx4 v[{r+4*u}:{r+4*u+3}], v{PV+u}, s[8:11], s20 offen offset:{1024*(k%4)} sc1", ("P", k, u)) for u in range(4)]
        else:
            o = []
            for u in range(4):
                o += [f"v_sub_u32 v11, v{PV+u}, v9", VM(f"buffer_load_dwordx2 v[{r+4*u}:{r+4*u+1}], v11, s[8:11], s20 offen offset:{1024*(k%4)} sc1", ("Ph", k, u)),
                      VM(f"buffer_load_dwordx2 v[{r+4*u+2}:{r+4*u+3}], v11, s[8:11], s20 offen offset:{1024*(k%4)+512} sc1", ("P", k, u))]
        if k % 4 == 3: o.append("s_add_u32 s20, s20, 4096")
        return o
    def w_rd(k): return [f"ds_read_b128 a[{w_reg(k)+4*j}:{w_reg(k)+4*j+3}], v249 offset:{(k-NWR)*5120 + 1024*j}" for j in range(5)]
    seq = list(done)
    for k in range(DEP-1): seq += p_loads(k)
    for k in range(18):
        kr = k + 4
        need = [("P", k, 3)] + ([("W", k, 4)] if (k < NWR or k == 17) else []) + ([("W", kr, 4)] if NWR <= kr < 17 else [])
        seq.append(WAIT(need, lgkm=(NWR <= k < 17)))
        if k == 0: seq.append(a.stamp(4))
        if k == 14: seq.append("s_barrier")
        r = PR + (k % DEP)*16
        mm = []
        for u in ((1, 2, 3, 0) if k == 17 else range(4)):
            for j in range(5):
                c = AC3 + (u*5+j)*4
                mm.append(f"{MF} v[{c}:{c+3}], a[{w_reg(k)+4*j}:{w_reg(k)+4*j+3}], v[{r+4*u}:{r+4*u+3}], {'0' if k == 0 else f'v[{c}:{c+3}]'}")
        f = p_loads(k+DEP-1) + (wq.pop(0) if wq else []) + (w_rd(kr) if NWR <= kr < 17 else []) + (xl if k == 13 else [])
        ds = [x for x in f if isinstance(x, str) and x.startswith("ds_")]
        gs_, rest = vgroups([x for x in f if not (isinstance(x, str) and x.startswith("ds_"))])
        if k < 17: seq += sched(mm, ds, gs_, vm_start=1) + rest
        else:
            wr = [f"ds_write_b128 v{LW+u}, v[{AC3+(u*5+j)*4}:{AC3+(u*5+j)*4+3}] offset:{1024*j}" for u in range(1, 4) for j in range(5)]
            seq += mm[:9] + interleave(mm[9:], wr[:11]) + [a.stamp(5), "s_mul_i32 s7, s3, 15360", "v_add_u32 v11, s7, v1"] + wr[11:]
    seq += ["v_mul_u32_u24 v4, 1152, v248",
            "v_lshl_add_u32 v4, v12, 3, v4", "s_lshr_b32 s25, s22, 1", f"s_mul_i32 s25, s25, {32*1152}", "s_and_b32 s26, s22, 1", f"s_mul_i32 s26, s26, {4*1152}",
            "s_add_u32 s25, s25, s26", "s_lshl_b32 s26, s45, 5", "s_add_u32 s25, s25, s26",
            "s_waitcnt lgkmcnt(0)", "s_barrier"]
    for i in range(15):
        c = AC3 + 20 + 4*i
        seq.append(f"ds_read_b128 v[{c}:{c+3}], v11 offset:{1024*i}")
        if i == 13: seq.append("s_waitcnt lgkmcnt(8)")
    seq += [WAIT([("X", 4)], lgkm=True)]
    for j in range(5):
        for h in range(2):
            x = AC3 + 4*j + 2*h
            seq += [f"v_pk_add_f32 {P(x)}, {P(x)}, {P(x+20)}", f"v_pk_add_f32 {P(x+40)}, {P(x+40)}, {P(x+60)}",
                    f"v_lshlrev_b32 v{x+20}, 16, v{XR+2*j+h}", f"v_and_b32 v{x+21}, 0xffff0000, v{XR+2*j+h}",
                    f"v_pk_add_f32 {P(x)}, {P(x)}, {P(x+40)}",
                    f"v_pk_fma_f32 {P(x)}, {P(x)}, {P(GB+4*j+2*h)}, {P(x+20)}",
                    f"v_cvt_pk_bf16_f32 v{XR+2*j+h}, v{x}, v{x+1}"]
        seq.append(VM(f"buffer_store_dwordx2 v[{XR+2*j}:{XR+1+2*j}], v4, s[12:15], s25 offen offset:{32*j}", ("O", j)))
    resolve(seq); emit(a, seq)
    a(a.stamp(6))
    a.stamp_end(3, 8)
    a("GM_END:\ns_endpgm\nGM_CODE_END:")
    a.stamp = st0
    a.desc("gm_kernel", 512, 256)
```

```python
from gen_common import *
from gen_g import *
P = lambda r: f"v[{r}:{r+1}]"
BIG = 0x7fffff00

def poll_loop(a, name, loads, regs, tmp):
    a(f"s_mov_b32 s27, 0\n{name}_POLL:")
    for x in loads: a(x)
    a("s_waitcnt vmcnt(0)")
    if len(regs) == 1: a(f"v_cmp_eq_u32 vcc, 0, v{regs[0]}")
    else:
        a(f"v_min_u32 v{tmp}, v{regs[0]}, v{regs[1]}")
        for r in regs[2:]: a(f"v_min_u32 v{tmp}, v{tmp}, v{r}")
        a(f"v_cmp_eq_u32 vcc, 0, v{tmp}")
    a(f"""
      s_add_u32 s27, s27, 1
      s_cmp_ge_u32 s27, 0x80000
      s_cbranch_scc1 {name}_GO
      s_nop 2
      s_cbranch_vccz {name}_GO
      s_sleep {SLP}
      s_branch {name}_POLL
    {name}_GO:
    """)

def gen_gm(a, merged=False):
    SC = ' sc1' if merged else ''
    st0 = a.stamp
    fine2 = eval(os.environ.get('FINE2', '{}'))
    if fine2:
        phase = [0]
        a.stamp = lambda i: (st0(i) if phase[0] else "; ")
    if not merged:
        a.begin("gm_kernel")
        a("s_cmp_ge_u32 s2, 256\ns_cbranch_scc1 GM_END")
        a(a.stamp(0))
        a.load_args()
    else: a("gm_kernel:")
    tile_ids(a)
    SL = 252
    a(f"""
      s_mul_i32 s20, s5, {36*9216}
      s_add_u32 s20, s20, s7
      s_add_u32 s20, s20, {WINF}
      s_mul_i32 s21, s6, 36864
      s_add_u32 s21, s21, {X1F}           ; A soffset
      s_mul_i32 s30, s3, 12288
      s_add_u32 s30, s30, {3*36864}
      v_lshl_add_u32 v13, v2, 3, s30
      v_add_u32 v8, {18432-1024}, v1
      s_mul_i32 s28, s5, {64*9216}
      s_add_u32 s28, s28, {Z2F}
      s_lshl_b32 s29, s6, 17
      s_waitcnt lgkmcnt(0)
    """)
    if not merged: a.srd(8, "ws")
    AB, BB = 0, 144
    ACC2, ACC1, ST = 16, 88, 160
    ALDS = 3*36864
    def a_dma(ks):
        if ks >= 18: return []
        o = [f"s_add_u32 m0, s30, {(ks % 6)*2048}", "s_nop 0",
             VM(f"buffer_load_dwordx4 v1, s[8:11], s21 offen{SC} lds", ("A", ks, 0)),
             VM(f"buffer_load_dwordx4 v8, s[8:11], s21 offen offset:1024{SC} lds", ("A", ks, 1)),
             "s_add_u32 s21, s21, 1024"]
        return o
    def a_reads(ks):
        if ks >= 18: return []
        return [f"ds_read_b64 a[{AB+(ks*2+t)*4+2*h}:{AB+(ks*2+t)*4+2*h+1}], v13 offset:{(ks % 6)*2048 + t*1024 + h*512}" for t in range(2) for h in range(2)]
    def atags(ks): return [("A", ks, t) for t in range(2)] if ks < 18 else []
    def b1_group(k):
        T = (k+1)//4 + 2
        if T >= 9: return []
        p0, cnt = P0[k % 4]
        o = [f"s_add_u32 m0, s7, {(T % 3)*36864 + p0*1024}", "s_nop 0"]
        for i in range(cnt): o.append(VM(f"buffer_load_dwordx4 v1, s[8:11], s20 offen offset:{1024*i}{SC} lds", ("B", T, p0+i)))
        o.append(f"s_add_u32 s20, s20, {cnt*1024 if k % 4 != 2 else 36864 - 7168}")
        return o
    def b1_reads(k):
        return [f"ds_read_b128 a[{BB + (k%2)*36 + 4*j}:{BB + (k%2)*36 + 4*j + 3}], v{SL + (k//4) % 3} offset:{(k%4)*9216 + j*1024}" for j in range(9)]
    if not merged:
        seq = []
        seq += a_dma(0)
        for k in range(-9, -5): seq += b1_group(k)
        for ks in range(1, 4): seq += a_dma(ks)
        seq += ["s_getpc_b64 s[32:33]", "GM_PC:", "s_sub_u32 s32, s32, GM_PC-gm_kernel", "s_subb_u32 s33, s33, 0", "s_and_b32 s33, s33, 0xffff",
                "s_mov_b32 s34, GM_CODE_END-gm_kernel", "s_mov_b32 s35, 0x20000", "s_lshr_b32 s31, s2, 3", "s_lshl_b32 s31, s31, 7",
                "v_lshlrev_b32 v255, 12, v0", "v_add_u32 v255, s31, v255", VM("buffer_load_dword v11, v255, s[32:35], 0 offen", "CW")]
        resolve(seq); emit(a, seq); pre = seq; seq = []
        NPB = int(os.environ.get('NPB', '2'))
        late_pro = []
        for k in range(-5, -5+NPB): late_pro += b1_group(k)
        e0 = []
        for k in range(-5+NPB, -1): e0 += b1_group(k)
        early = {0: e0 + a_dma(4) + (a_dma(5) + b1_group(-1) if NPB >= 2 else []), 1: (a_dma(5) + b1_group(-1) if NPB < 2 else []) + a_dma(6) + b1_group(0) + b1_group(1)}
    else:
        from gen_s import FD
        from gen_f import poll
        a(f"""
          s_mul_i32 s22, s5, 9
          s_lshr_b32 s22, s22, 2
          s_add_u32 s22, s22, 36
          v_and_b32 v4, 3, v2
          v_add_u32 v4, s22, v4
          v_min_u32 v4, 71, v4
          v_mul_u32_u24 v5, 7282, v4
          v_lshrrev_b32 v5, 16, v5
          v_mul_u32_u24 v6, 9, v5
          v_sub_u32 v4, v4, v6
          v_lshl_add_u32 v4, v4, 3, v5
          v_lshlrev_b32 v4, 7, v4
          v_add_u32 v4, {FD + 144*128}, v4
          v_lshlrev_b32 v5, 7, v0
          v_add_u32 v5, {FD}, v5
          buffer_load_dword v6, v4, s[8:11], 0 offen sc1
          v_mov_b32 v7, s42
          s_lshl_b32 s22, s2, 7
          s_add_u32 s22, s22, {FD}
          s_waitcnt vmcnt(0)
          s_barrier
          s_cmp_lg_u32 s3, 0
          s_cbranch_scc1 GM_NOD
          buffer_store_dword v7, v250, s[8:11], s22 offen sc1
        GM_NOD:
          {st0(7)}
          v_cmp_ne_u32 vcc, s42, v6
        """)
        if Asm.STAMPS: a.stamp_flush2(0, 8); a(a.stamp(0))
        if 'noft' not in X:
            a.srd(16, "wsp")
            a("s_cmp_ge_u32 s96, 64\ns_cbranch_scc1 GM_NOFT\ns_lshl_b32 s96, s96, 2\ns_add_u32 s96, s96, s3\ns_lshl_b32 s96, s96, 15")
            for i in range(16):
                a(f"buffer_load_dwordx4 a[216:219], v1, s[16:19], s96 offen offset:{1024*(i%2)}")
                if i % 2 == 1: a("s_add_u32 s96, s96, 4096")
            a("GM_NOFT:")
        a("s_nop 4\ns_cbranch_vccz GM_W_GO")
        poll(a, "GM_W", "v4", "v6", slp=8)
        seq = ["s_getpc_b64 s[32:33]", "GM_PC:", "s_sub_u32 s32, s32, GM_PC-gm_kernel", "s_subb_u32 s33, s33, 0", "s_and_b32 s33, s33, 0xffff",
            "s_mov_b32 s34, GM_CODE_END-gm_kernel", "s_mov_b32 s35, 0x20000", "s_lshr_b32 s31, s2, 3", "s_lshl_b32 s31, s31, 7",
            "v_lshlrev_b32 v255, 12, v0", "v_add_u32 v255, s31, v255"]
        for k in range(-9, -5): seq += b1_group(k)
        seq += [VM("buffer_load_dword v6, v5, s[8:11], 0 offen sc1", "DN")]
        NPF = int(os.environ.get('NPF', '2'))
        for k in range(-5, -5+NPF): seq += b1_group(k)
        seq += [VM("buffer_load_dword v11, v255, s[32:35], 0 offen", "CW"), WAIT(["DN"]), "v_cmp_ne_u32 vcc, s42, v6", "s_nop 4", "s_cbranch_vccz GM_D_GO"]
        resolve(seq); emit(a, seq); pre = seq; seq = []
        poll(a, "GM_D", "v5", "v6", slp=int(os.environ.get('DSL', '1')))
        a("s_barrier")
        late_pro = []
        for ks in range(6): late_pro += a_dma(ks)
        emit(a, late_pro); pre = pre + late_pro; late_pro = [WAIT(atags(0))]
        rem = list(range(-5+NPF, 3))
        early = {0: [], 1: a_dma(6), 2: []}
        for i, k in enumerate(rem): early[(3*i)//len(rem)] += b1_group(k)
    a.srd(12, "ws", 64*9216, "s28"); a.srd(16, "wsp"); a.srd(36, "bsp")
    a(f"""
      v_mov_b32 v{SL}, v1
      v_add_u32 v{SL+1}, 36864, v1
      v_add_u32 v{SL+2}, {2*36864}, v1
      v_mov_b32 v4, 0x3f803f80
      v_mov_b32 v5, 0x3f803f80
      v_mov_b32 v6, 0x3f803f80
      v_mov_b32 v7, 0x3f803f80
      s_mov_b32 s40, {float_hex(C1)}
      s_mov_b32 s41, {float_hex(C1)}
      v_mov_b32 v14, {float_hex(C0)}
      v_mov_b32 v15, {float_hex(C0)}
      s_mul_i32 s22, s5, {144*8}
      s_add_u32 s22, s22, {UV2}
      v_lshlrev_b32 v9, 3, v3             ; n*8
      v_add_u32 v9, 159744, v9
      v_lshrrev_b32 v248, 2, v3
      v_lshlrev_b32 v248, 3, v248
      v_and_b32 v249, 3, v3
      v_add_u32 v248, v248, v249
      v_add_u32 v251, 4096, v1
    """)
    seq += late_pro + [WAIT(btags(0)), "s_barrier", a.stamp(1)]
    seq += a_reads(0) + b1_reads(0)
    ARD = {k_: [k_+1] for k_ in range(14)}; ARD[14] = [15]; ARD[15] = [16, 17]
    STK = {k_: [k_] for k_ in range(16)}; STK[16] = [16, 17]
    def kstep(kk, extra=[], need_extra=[]):
        ks = kk % 18; ps = kk // 18
        o = []
        need = [t_ for x in ARD.get(kk, []) for t_ in atags(x)] + need_extra
        bar = (kk % 4 == 3 and kk < 35)
        if bar: need = need + btags((kk+1)//4)
        o.append(WAIT(need, lgkm=True))
        if bar: o.append("s_barrier")
        m = []
        for j in range(9):
            for t in range(2):
                A = f"a[{AB+(ks*2+t)*4}:{AB+(ks*2+t)*4+3}]"
                B = f"a[{BB+(kk%2)*36+4*j}:{BB+(kk%2)*36+4*j+3}]"
                r = (ACC2 if ps == 0 else ACC1) + (j*2+t)*4
                C = "0" if ks == 0 else f"v[{r}:{r+3}]"
                m.append(f"{MF} v[{r}:{r+3}], {A}, {B}, {C}" if ps == 0 else f"{MF} v[{r}:{r+3}], {B}, {A}, {C}")
        sm = []
        for k2 in STK.get(kk, []):
            for t in range(2):
                A = f"a[{AB+(k2*2+t)*4}:{AB+(k2*2+t)*4+3}]"
                r = ST + 4*t
                sm.append(f"{MF} v[{r}:{r+3}], {A}, v[4:7], {'0' if k2 == 0 else f'v[{r}:{r+3}]'}")
                r = ST + 8 + 4*t
                sm.append(f"{MF} v[{r}:{r+3}], {A}, {A}, {'0' if k2 == 0 else f'v[{r}:{r+3}]'}")
        m = (sm + m) if kk == 16 else (m + sm)
        f = (b1_reads(kk+1) if kk < 35 else []) + [x for k2 in ARD.get(kk, []) for x in a_reads(k2)] + early.get(kk, []) + (a_dma(kk+5) + (b1_group(kk) if not (merged and kk < 3) else []) if kk >= 2 else []) + extra
        if 'nosch' in X: return o + interleave(m, f)
        ds = [x for x in f if isinstance(x, str) and x.startswith("ds_")]
        base = [x for x in f[:len(f)-len(extra)] if not (isinstance(x, str) and x.startswith("ds_"))]
        if any(isinstance(x, str) and x.startswith("v_") for x in extra):
            gs_, rest = vgroups(base)
            mo = [i for i, x in enumerate(extra) if isinstance(x, str) and "m0" in x]
            cut = mo[0] if mo else len(extra)
            g2_, rest2 = vgroups(rest + extra[cut:])
            o += sched(m, ds, gs_ + g2_, extra[:cut]) + rest2
        else:
            gs_, rest = vgroups(base + extra)
            o += sched(m, ds, gs_) + rest
        return o
    UV = 176; WS = 216
    UVL = 159744
    uvd = [f"s_mov_b32 m0, {UVL}", "s_nop 0", VM(f"buffer_load_dwordx4 v1, s[8:11], s22 offen{SC} lds", ("UVD", 0)), VM(f"buffer_load_dwordx4 v1, s[8:11], s22 offen offset:1024{SC} lds", ("UVD", 1)),
           f"s_mul_i32 s22, s5, {144*4}", f"s_add_u32 s22, s22, {UV1}", f"s_mov_b32 m0, {UVL+2048}", "s_nop 0", VM(f"buffer_load_dwordx4 v1, s[8:11], s22 offen{SC} lds", ("UVD", 2)),
           f"s_add_u32 s22, s22, {9216-1024}", VM(f"buffer_load_dwordx4 v1, s[8:11], s22 offen offset:1024{SC} lds", ("UVD", 3))]
    uv2 = [f"ds_read_b64 v[{UV+2*j}:{UV+2*j+1}], v9 offset:{128*j}" for j in range(9)]
    touch = ["v_lshlrev_b32 v10, 12, v12", "v_lshl_add_u32 v10, v3, 4, v10", "s_lshl_b32 s31, s5, 8", "s_add_u32 s31, s31, s29"]
    for i in range(8):
        touch += [VM(f"buffer_load_dwordx4 a[{WS}:{WS+3}], v10, s[16:19], s31 offen", ("WL", i)), "s_add_u32 s31, s31, 16384"]
    CW1 = [int(x) for x in os.environ.get('CW1', '-1').split(',')]
    if merged and 'noft' not in X:
        touch = ["v_lshrrev_b32 v10, 3, v2", "v_lshlrev_b32 v10, 12, v10", "v_and_b32 v194, 7, v2", "v_lshl_add_u32 v10, v194, 4, v10"]
        t2 = ["s_lshl_b32 s31, s5, 7", "s_add_u32 s31, s31, s29"]
        for i in range(4): t2 += [VM(f"buffer_load_dwordx4 a[{WS}:{WS+3}], v10, s[16:19], s31 offen offset:2048", ("WL", i)), "s_add_u32 s31, s31, 32768"]
        touch += t2[:8] + t2[8:]
    TK0 = int(os.environ.get('TK0', '13'))
    for kk in range(18):
        ex = []
        ne = []
        if kk in CW1: ex = [VM("buffer_load_dword v194, v255, s[32:35], 0 offen", ("CW1", kk))]
        if kk == min(13, TK0-2): ex = uvd
        if kk == TK0-1: ex = touch[:4]
        if kk == TK0: ex = touch[4:12]
        if kk == TK0+1: ex = touch[12:]
        if kk == 6: ex = ["v_mul_u32_u24 v11, 80, v12"]
        if kk == 16: early[16] = [f"ds_bpermute_b32 v{ST+8+4*t+r}, v11, v{ST+8+4*t+r} offset:{4*r}" for t in range(2) for r in range(4)]
        if kk == 17:
            ex = ln_finish([ST+i for i in range(8)], [ST+8+i for i in range(8)], 576, 8, None)
            early[17] = uv2[:5]; ne = [("UVD", 3)]
        seq += kstep(kk, ex, ne)
    seq += [a.stamp(2), "s_waitcnt lgkmcnt(0)"] + uv2[5:] + ["s_nop 3"]
    ZR = [240, 244]; ZN = [242, 246]
    zst = ["v_and_b32 v210, 3, v3", "v_lshrrev_b32 v211, 2, v3", "v_lshl_add_u32 v211, v211, 4, v3", "v_lshlrev_b32 v211, 2, v211"]
    for t in range(2):
        zst += [f"v_mov_b32 v{ZR[t]}, v{ST+8+4*t}", f"v_mov_b32 v{ZN[t]}, v{ST+4*t}"]
    for r in range(1, 4):
        zst += [f"v_cmp_eq_u32 vcc, {r}, v210", "s_nop 1"]
        for t in range(2):
            zst += [f"v_cndmask_b32 v{ZR[t]}, v{ZR[t]}, v{ST+8+4*t+r}, vcc", f"v_cndmask_b32 v{ZN[t]}, v{ZN[t]}, v{ST+4*t+r}, vcc"]
    zbp = [f"ds_bpermute_b32 v{r}, v211, v{r}" for r in ZR + ZN]
    DL0 = int(os.environ.get('DL0', '18'))
    dlist = []
    for kk in range(DL0, 18): dlist += b1_group(kk)
    g2start = len(seq)
    Z1S, Z2S, TMP, GR = 196, 204, 212, 220
    for j in range(9):
        xs = [ACC2 + j*8 + 2*i for i in range(4)]; ts = [TMP + 2*i for i in range(4)]
        uv = P(UV + 2*j)
        if j == 3: seq.append("s_waitcnt lgkmcnt(0)")
        seq.append(f"v_mov_b32 v194, v{UV+2*j+1}")
        for i in range(4): seq.append(f"v_pk_fma_f32 {P(ts[i])}, {P(ST+2*i)}, {uv}, v[194:195] op_sel_hi:[1,0,0]")
        for i in range(4): seq.append(f"v_pk_fma_f32 {P(xs[i])}, {P(xs[i])}, {P(ST+8+2*i)}, {P(ts[i])}")
        seq += gelu_pairs(xs, ts)
        for i in range(4):
            if j == 0: seq += [f"v_pk_mul_f32 {P(Z2S+2*i)}, {P(xs[i])}, {P(xs[i])}"]
            elif j == 1: seq += [f"v_pk_add_f32 {P(Z1S+2*i)}, {P(xs[i])}, {P(ACC2+2*i)}", f"v_pk_fma_f32 {P(Z2S+2*i)}, {P(xs[i])}, {P(xs[i])}, {P(Z2S+2*i)}"]
            else: seq += [f"v_pk_add_f32 {P(Z1S+2*i)}, {P(xs[i])}, {P(Z1S+2*i)}", f"v_pk_fma_f32 {P(Z2S+2*i)}, {P(xs[i])}, {P(xs[i])}, {P(Z2S+2*i)}"]
    NG = int(os.environ.get('NG', '60'))
    seq = seq[:g2start] + interleave(seq[g2start:g2start+NG], dlist) + seq[g2start+NG:]
    gspos = len(seq)
    V = [(Z1S if i % 2 == 0 else Z2S) + i//2 for i in range(16)]
    T0, T1 = TMP, TMP+4
    seq += ["v_and_b32 v11, 3, v3", "v_cmp_eq_u32 vcc, 0, v11"]
    for r in range(4):
        seq += [f"v_add_f32_dpp v{T0+r}, v{V[r]}, v{V[r]} row_ror:8 row_mask:0xf bank_mask:0x3", f"v_add_f32_dpp v{T0+r}, v{V[8+r]}, v{V[8+r]} row_ror:8 row_mask:0xf bank_mask:0xc"]
    for r in range(4):
        seq += [f"v_add_f32_dpp v{T1+r}, v{V[4+r]}, v{V[4+r]} row_ror:8 row_mask:0xf bank_mask:0x3", f"v_add_f32_dpp v{T1+r}, v{V[12+r]}, v{V[12+r]} row_ror:8 row_mask:0xf bank_mask:0xc"]
    for r in range(4): seq.append(f"v_add_f32_dpp v{GR+r}, v{T0+r}, v{T0+r} row_shl:4 row_mask:0xf bank_mask:0x5")
    for r in range(4): seq.append(f"v_add_f32_dpp v{GR+r}, v{T1+r}, v{T1+r} row_shr:4 row_mask:0xf bank_mask:0xa")
    for qp in ("[1,0,3,2]", "[2,3,0,1]"):
        for r in range(4): seq.append(f"v_add_f32_dpp v{GR+r}, v{GR+r}, v{GR+r} quad_perm:{qp} row_mask:0xf bank_mask:0xf")
    seq += [f"v_or_b32 v{GR+1}, 1, v{GR+1}", f"v_or_b32 v{GR+3}, 1, v{GR+3}",
            f"s_lshl_b32 s23, s6, 12", f"s_add_u32 s23, s23, {ST2}", "s_lshl_b32 s24, s5, 8", "s_add_u32 s24, s24, s23",
            "v_lshlrev_b32 v10, 2, v2", f"v_mov_b32 v194, {BIG}", "v_cndmask_b32 v10, v194, v10, vcc",
            "v_lshlrev_b32 v9, 4, v12", f"v_add_u32 v9, {UVL+2048}, v9", a.stamp(3)]
    gs = [VM(f"buffer_store_dwordx4 v[{GR}:{GR+3}], v10, s[8:11], s24 offen sc1", "GS")]
    seq += gs
    U1 = 160
    uv1 = []
    for j in range(9):
        uv1.append(f"ds_read_b128 v[{U1+8*j}:{U1+8*j+3}], v9 offset:{64*j}")
        uv1.append(f"ds_read_b128 v[{U1+8*j+4}:{U1+8*j+7}], v9 offset:{64*j+1024}")
    PL = 176; R1 = [200+i for i in range(8)]; R2 = [192+i for i in range(8)]
    pl = [f"buffer_load_dwordx4 v[{PL+4*i}:{PL+4*i+3}], v1, s[8:11], s23 offen offset:{1024*i} sc1" for i in range(4)]
    bl = [VM("buffer_load_ushort v6, v5, s[36:39], s26 offen", "b0"), VM("buffer_load_ushort v7, v5, s[36:39], s26 offen offset:8", "b1")]
    chk = [f"v_min_u32 v209, v{PL+1}, v{PL+3}"] + [f"v_min_u32 v209, v209, v{PL+2*i+1}" for i in range(2, 8)] + ["v_cmp_eq_u32 vcc, 0, v209"]
    pollS = [WAIT([("PL", 3)])] + chk + ["s_mov_b32 s27, 0", "s_nop 3", "s_cbranch_vccz GM_S_GO", "GM_S_POLL:"] + pl + ["s_waitcnt vmcnt(0)"] + chk + \
            ["s_add_u32 s27, s27, 1", "s_cmp_ge_u32 s27, 0x80000", "s_cbranch_scc1 GM_S_GO", "s_nop 2", "s_cbranch_vccz GM_S_GO", f"s_sleep {SLP}", "s_branch GM_S_POLL", "GM_S_GO:", a.stamp(4)]
    nrm = [f"v_add_f32 v{PL+r}, v{PL+r}, v{PL+4+r}" for r in range(4)] + [f"v_add_f32 v{PL+8+r}, v{PL+8+r}, v{PL+12+r}" for r in range(4)]
    nrm += [f"v_add_f32 v{PL+r}, v{PL+r}, v{PL+8+r}" for r in range(4)]
    for sw in ("16", "32"):
        nrm += [f"v_mov_b32 v{PL+4+r}, v{PL+r}" for r in range(4)] + ["s_nop 1"]
        nrm += [f"v_permlane{sw}_swap_b32 v{PL+r}, v{PL+4+r}" for r in range(4)] + ["s_nop 1"]
        nrm += [f"v_add_f32 v{PL+r}, v{PL+r}, v{PL+4+r}" for r in range(4)]
    nrm += ln_finish([PL, PL+2], [PL+1, PL+3], FH, 2, None)
    nrm += ["v_lshlrev_b32 v11, 4, v12"]
    bp = []
    for i in range(8):
        bp += [f"ds_bpermute_b32 v{R1[i]}, v11, v{PL+2*(i%2)} offset:{4*(i//2)}", f"ds_bpermute_b32 v{R2[i]}, v11, v{PL+2*(i%2)+1} offset:{4*(i//2)}"]
    nrm += ["s_mul_i32 s26, s6, 9216", "v_add_u32 v208, 8192, v1"]
    nrm0 = nrm; nrm = []
    for j in range(9):
        for i in range(8): nrm.append(f"v_fma_f32 v{ACC2+8*j+i}, v{ACC2+8*j+i}, v{R2[i]}, v{R1[i]}")
        for i in range(4): nrm.append(f"v_cvt_pk_bf16_f32 v{ACC2+8*j+i}, v{ACC2+8*j+2*i}, v{ACC2+8*j+2*i+1}")
        nrm.append(VM(f"buffer_store_dwordx4 v[{ACC2+8*j}:{ACC2+8*j+3}], {['v1','v251','v208'][j//4]}, s[12:15], s26 offen offset:{1024*(j%4)} sc1", ("Z2", j)))
    KT = -1
    KP, KN0, KN1, JPK, KF = [int(x) for x in os.environ.get('P2', '22,24,25,3,31').split(',')]
    per = (len(nrm0) + (KN1-KN0) - 1) // (KN1-KN0)
    pb = "buffer_load_dword v11, v10, s[8:11], s23 offen sc1"
    flagprep = ["s_lshl_b32 s24, s6, 4", "s_add_u32 s24, s24, s5", "s_lshl_b32 s24, s24, 7", f"s_add_u32 s24, s24, {FLB}",
            "v_cmp_eq_u32 vcc, 0, v2", f"v_mov_b32 v13, {BIG}", "v_mov_b32 v5, 1", "v_cndmask_b32 v13, v13, 0, vcc"]
    ACC, B2V = 16, 88
    AV = [241, 243, 245, 247]
    aprep = ["v_lshrrev_b32 v4, 3, v2", "v_lshrrev_b32 v249, 2, v4", "v_lshlrev_b32 v249, 3, v249", "v_and_b32 v250, 3, v4", "v_add_u32 v249, v249, v250", "v_lshlrev_b32 v249, 12, v249",
            "v_lshrrev_b32 v4, 1, v4", "v_and_b32 v250, 7, v2", "v_xor_b32 v4, v4, v250",
            f"v_lshl_add_u32 v{AV[0]}, v4, 4, v249", "v_xor_b32 v4, 4, v4", f"v_lshl_add_u32 v{AV[1]}, v4, 4, v249", f"v_add_u32 v{AV[1]}, {65536-1024}, v{AV[1]}",
            f"v_add_u32 v{AV[2]}, {16384-2048}, v{AV[0]}", f"v_add_u32 v{AV[3]}, {16384-2048}, v{AV[1]}"]
    aprep2 = ["v_lshrrev_b32 v4, 1, v3", "v_xor_b32 v4, v4, v12", "v_lshlrev_b32 v4, 4, v4", "v_lshl_add_u32 v4, v3, 7, v4",
            "v_add_u32 v249, s7, v4", "v_xor_b32 v250, 64, v249", "v_add_u32 v4, s30, v4", "v_xor_b32 v8, 64, v4"]
    PLACE = {"R0": ("s30", 0), "R1": ("s30", 4096), "R2": ("s30", 8192), "S0a": ("s7", 0), "S0b": ("s7", 4096), "S1a": ("s7", 36864), "S1b": ("s7", 36864+4096)}
    def a2_dma(Pp, pl):
        b, off = PLACE[pl]
        return [f"s_add_u32 m0, {b}, {off}", f"s_add_u32 s21, s29, {128*Pp}"] + \
               [VM(f"buffer_load_dwordx4 v{AV[i]}, s[16:19], s21 offen offset:{1024*i} lds", ("A2", Pp, i)) for i in range(4)]
    def a2_rd(Pp, pl):
        b, off = PLACE[pl]
        regs = ("v4", "v8") if b == "s30" else ("v249", "v250")
        return [f"ds_read_b128 a[{8*((2*Pp+e) % 32)+4*t}:{8*((2*Pp+e) % 32)+4*t+3}], {regs[e]} offset:{off + t*2048}" for e in range(2) for t in range(2)]
    def a2tags(Pp): return [("A2", Pp, i) for i in range(4)]
    r1 = {21: [(3, "R2")], 23: [(4, "R0")], 25: [(5, "R1")], 27: [(6, "R2")], 28: [(7, "S0a")], 29: [(8, "S0b")],
          31: [(9, "S1a")], 32: [(10, "S1b")], 33: [(11, "R0")], 34: [(12, "R1")], 35: [(13, "R2")]}
    rr1 = {20: [(0, "R2")], 22: [(1, "R0")], 24: [(2, "R1")], 26: [(3, "R2")], 28: [(4, "R0")], 33: [(5, "R1")], 34: [(6, "R2")], 35: [(7, "S0a")]}
    if 'r1b' in X:
        r1 = {21: [(3, "R2")], 23: [(4, "R0")], 29: [(5, "R1")], 30: [(6, "R2"), (7, "S0a")], 31: [(8, "S0b"), (9, "S1a")], 32: [(10, "S1b")], 33: [(11, "R0")], 34: [(12, "R1")], 35: [(13, "R2")]}
    if 'r1a' not in X:
        r1 = {21: [(3, "R2")], 23: [(4, "R0")], 28: [(5, "R1")], 29: [(6, "R2")], 30: [(7, "S0a"), (8, "S0b")], 31: [(9, "S1a")], 32: [(10, "S1b")], 33: [(11, "R0")], 34: [(12, "R1")], 35: [(13, "R2")]}
    GA, GB_ = [int(x) for x in os.environ.get('GA', '300,440').split(',')]
    g2 = seq[g2start:gspos]
    g2 = g2[:GA] + aprep + aprep2 + interleave(g2[GA:GA+60], a2_dma(14, "R0") + a2_dma(15, "R1") + a2_dma(0, "R2")) + g2[GA+60:GB_] + \
         [WAIT(a2tags(15))] + a2_rd(14, "R0") + a2_rd(15, "R1") + g2[GB_:GB_+30] + ["s_waitcnt lgkmcnt(0)"] + interleave(g2[GB_+30:], a2_dma(1, "R0") + a2_dma(2, "R1"))
    seq = seq[:g2start] + g2 + seq[gspos:]
    for kk in range(18, 36):
        ex = []; ne = []
        if kk == 19: ex = [VM("buffer_load_dword v11, v255, s[32:35], 0 offen", "CW2")]
        if kk == 18: ex = ["v_lshlrev_b32 v5, 1, v248", "s_lshl_b32 s26, s6, 6"] + bl
        if kk == 20: ex = zst
        if kk == 21: early[kk] = early.get(kk, []) + zbp
        if kk == KP: ex = [VM(x, ("PL", i)) for i, x in enumerate(pl)]
        if kk in fine2: seq.append(st0(fine2[kk]))
        if kk == KN0: seq += pollS
        if kk == KN0: ex = nrm0
        if kk == KN0+1: seq += ["s_waitcnt lgkmcnt(0)"] + bp[:12] + ["s_waitcnt lgkmcnt(4)"] + bp[12:]
        if kk >= KN1: ex = nrm[13*JPK*(kk-KN1):13*JPK*(kk-KN1+1)]
        if kk == 30:
            assert not ex
            ex = flagprep + ["s_lshl_b32 s23, s3, 4", "s_add_u32 s23, s23, s5", "s_lshl_b32 s23, s23, 7", f"s_add_u32 s23, s23, {FLB}", "v_lshlrev_b32 v10, 13, v3"]
        if kk == KF: ex = [VM("buffer_store_dword v5, v13, s[8:11], s24 offen sc1", "FB")] + ex; ne = [("Z2", 8)]
        if kk in (30, 31): early[kk] = early.get(kk, []) + uv1[5*(kk-30):5*(kk-30)+5]
        if kk == 35: early[kk] = early.get(kk, []) + uv1[10:]
        for Pp, pl_ in r1.get(kk, []): ex = ex + a2_dma(Pp, pl_)
        for Pp, pl_ in rr1.get(kk, []): early[kk] = early.get(kk, []) + a2_rd(Pp, pl_); ne = ne + a2tags(Pp)
        if kk == 35: ex = [VM(pb, "PB")] + ex
        seq += kstep(kk, ex, ne)
    seq += [a.stamp(5)]
    TM1 = 232
    JF = int(os.environ.get('JF', '0'))
    def z1g(j):
        o = []
        xs = [ACC1 + j*8 + 2*i for i in range(4)]; ts = [TM1 + 2*i for i in range(4)]
        for i in range(4):
            o.append(f"v_pk_fma_f32 {P(ts[i])}, {P(U1+8*j+2*(i%2))}, {P(ZN[i//2])}, {P(U1+8*j+4+2*(i%2))} op_sel_hi:[1,0,1]")
        for i in range(4):
            o.append(f"v_pk_fma_f32 {P(xs[i])}, {P(xs[i])}, {P(ZR[i//2])}, {P(ts[i])} op_sel_hi:[1,0,1]")
        if j < JF: o += gelu_pairs(xs, ts)
        for i in range(4): o.append(f"v_cvt_pk_bf16_f32 v{U1+8*j+i}, v{xs[i]}, v{xs[i]+1}")
        return o
    def late_gelu(j, hf):
        xs = [(U1+8*j+4+i) if hf == 1 else (236+i) for i in range(4)]; ts = [232+i for i in range(4)]
        o = []
        for d in range(2): o += [f"v_lshlrev_b32 v{xs[2*d]}, 16, v{U1+8*j+2*hf+d}", f"v_and_b32 v{xs[2*d+1]}, 0xffff0000, v{U1+8*j+2*hf+d}"]
        for x, t in zip(xs, ts): o.append(f"v_mul_f32 v{t}, v{x}, v{x}")
        for x, t in zip(xs, ts): o.append(f"v_fma_f32 v{t}, v{t}, s40, v14")
        for x, t in zip(xs, ts): o.append(f"v_mul_f32 v{t}, v{t}, v{x}")
        for x, t in zip(xs, ts): o.append(f"v_exp_f32 v{t}, v{t}")
        for x, t in zip(xs, ts): o.append(f"v_add_f32 v{t}, 1.0, v{t}")
        for x, t in zip(xs, ts): o.append(f"v_rcp_f32 v{t}, v{t}")
        for i, (x, t) in enumerate(zip(xs, ts)): o.append(f"v_mul_f32 v{U1+8*j+4*hf+i}, v{x}, v{t}")
        return o
    def b2_group(k):
        T = (k+1)//4 + 2
        if T >= 15: return []
        p0, cnt = P0[k % 4]
        o = [f"s_add_u32 m0, s7, {(T % 3)*36864 + p0*1024}", "s_nop 0"]
        for i in range(cnt): o.append(VM(f"buffer_load_dwordx4 v1, s[12:15], s20 offen offset:{1024*i} sc1 lds", ("B2", T, p0+i)))
        o.append(f"s_add_u32 s20, s20, {cnt*1024 if k % 4 != 2 else 36864 - 7168}")
        return o
    def b2tags(T): return [("B2", T, p) for p in range(9)]
    def b2_reads(k):
        return [f"ds_read_b128 v[{B2V + (k%2)*36 + 4*j}:{B2V + (k%2)*36 + 4*j + 3}], v{SL + (k//4) % 3} offset:{(k%4)*9216 + j*1024}" for j in range(9)]
    seq += ["s_mov_b32 s20, s7", WAIT(a2tags(10), lgkm=True)] + a2_rd(8, "S0b") + a2_rd(9, "S1a") + a2_rd(10, "S1b")
    J2 = int(os.environ.get('J2', '4'))
    for j in range(J2): seq += z1g(j)
    seq += [WAIT(["PB"]), "v_cmp_eq_u32 vcc, 0, v11", "s_barrier", "s_waitcnt lgkmcnt(0)", "s_nop 2", "s_cbranch_vccz GM_B_GO"]
    resolve(pre + seq); emit(a, seq); pre2 = [VM("; ", x.tag) for x in seq if isinstance(x, VM) and x.tag[0] == "A2" and x.tag[1] in (11, 12, 13)]
    poll_loop(a, "GM_B", [pb], [11], None)
    a(a.stamp(6))
    seq = list(pre2)
    for k in range(-9, -5): seq += b2_group(k)
    fl = []
    for k in range(-5, -3): fl += b2_group(k)
    val = []
    for j in range(J2, 9): val += z1g(j)
    seq += interleave(val, fl)
    if fine2: phase[0] = 1
    if Asm.STAMPS: seq += [a.stamp(7), "STAMPFLUSH"]
    seq += [f"v_lshlrev_b32 v{232+i}, 16, v{6 + i//4}" for i in range(8)]
    seq += [WAIT(b2tags(0)), "s_barrier"] + b2_reads(0)
    KA = 46
    PS_ = [11, 12, 13] + list(range(16, 32))
    RPi = lambda i: 2 + ((KA-2)*i)//(len(PS_)-1)
    KT0 = 52
    rd_at = {RPi(i): (Pp, f"R{i % 3}") for i, Pp in enumerate(PS_)}
    assert len(rd_at) == len(PS_) and all(RPi(i) <= 2*p_-1 and RPi(i) >= 2*(p_-16)+2 for i, p_ in enumerate(PS_))
    dma_at = {RPi(i-3)+1: (PS_[i], f"R{i % 3}") for i in range(3, len(PS_))}
    def areg(k, t): return f"a[{8*(k%32)+4*t}:{8*(k%32)+4*t+3}]"
    def mf2(k, j, t, breg):
        r = ACC + (j*2+t)*4
        return f"{MF} v[{r}:{r+3}], v[{breg}:{breg+3}], {areg(k, t)}, {f'v[{232+4*t}:{235+4*t}]' if k == 0 else f'v[{r}:{r+3}]'}"
    g3prep = f"""
      s_and_b32 s44, s2, 7
      s_lshl_b32 s44, s44, 2
      s_lshr_b32 s45, s2, 3
      s_and_b32 s38, s45, 3
      s_add_u32 s44, s44, s38             ; mb
      s_lshr_b32 s45, s45, 2
      s_mul_i32 s45, s45, 9
      s_lshr_b32 s45, s45, 1              ; n0
      s_mul_i32 s39, s3, {18*36864}
      s_lshl_b32 s38, s45, 10
      s_add_u32 s39, s39, s38
      s_add_u32 s39, s39, {WOUTF}         ; W soffset (registers part)
      s_add_u32 s36, s39, {11*36864}      ; W soffset (lds part)
      s_mul_i32 s37, s3, 30720
      s_add_u32 s37, s37, 36864           ; lds W area""".split("\n")
    NWR = 11
    def w_reg(k): return 20*k if k < NWR else (20*(k-NWR) if k < 17 else 224)
    def w_loads(k, so="s39"):
        r = w_reg(k)
        return [VM(f"buffer_load_dwordx4 a[{r+4*j}:{r+4*j+3}], {'v1' if j < 4 else 'v251'}, s[8:11], {so} offen offset:{1024*(j%4)}{SC}", ("W", k, j)) for j in range(5)] + [f"s_add_u32 {so}, {so}, 36864"]
    def w_dma(k):
        o = [f"s_add_u32 m0, s37, {(k-NWR)*5120}", "s_nop 0"]
        o += [VM(f"buffer_load_dwordx4 v1, s[8:11], s36 offen offset:{1024*j}{SC} lds", ("W", k, j)) for j in range(4)]
        o += [f"s_add_u32 m0, s37, {(k-NWR)*5120 + 4096}", "s_nop 0", VM(f"buffer_load_dwordx4 v251, s[8:11], s36 offen{SC} lds", ("W", k, 4)), "s_add_u32 s36, s36, 36864"]
        return o
    apieces = {}
    for k0, (Pp, pl_) in dma_at.items():
        b, off = PLACE[pl_]
        ks_ = [k0, k0, k0+1, k0+1] if (k0+1) not in dma_at else [k0]*4
        for i in range(4):
            gr = [f"s_add_u32 m0, {b}, {off}", VM(f"buffer_load_dwordx4 v{AV[i]}, s[16:19], s21 offen offset:{1024*i} lds", ("A2", Pp, i))]
            if i > 0 and ks_[i] == ks_[i-1]: gr = gr[1:]
            if i == 0: gr = [f"s_add_u32 s21, s29, {128*Pp}"] + gr
            apieces.setdefault(ks_[i], []).append(gr)
    CWK = [int(x) for x in os.environ.get('CWK', '1,9,17,25,33,41,49').split(',')]
    def t15_group(k):
        p0, cnt = P0[k % 4]
        o = [f"s_add_u32 m0, s7, {ALDS + p0*1024}"]
        for i in range(cnt): o.append(VM(f"buffer_load_dwordx4 v1, s[12:15], s21 offen offset:{1024*i} sc1 lds", ("B2", 15, p0+i)))
        o.append(f"s_add_u32 s21, s21, {cnt*1024}")
        return o
    tailprep = f"""
      v_add_u32 v4, {ALDS}, v1
      v_lshlrev_b32 v8, 3, v2
      s_lshr_b32 s22, s5, 1
      s_mul_i32 s22, s22, 9216
      s_mul_i32 s23, s6, {2*73728}
      s_add_u32 s22, s22, s23
      s_add_u32 s22, s22, {PF}
      s_and_b32 s23, s5, 1
      s_lshl_b32 s28, s23, 12
      s_add_u32 s28, s28, s22
      s_add_u32 s29, s28, 73728
      s_lshl_b32 s23, s23, 9
      s_add_u32 s30, s22, s23
      s_add_u32 s30, s30, 8192
      s_add_u32 s31, s30, 73728
      s_add_u32 s24, s24, {FLP-FLB}""".split("\n")
    TK = [52, 53, 54, 55, 60, 61, 62, 63, 56, 57, 58, 59]
    def ureg(u): return B2V + 24*(u % 3)
    def u_reads(u):
        if u >= 18: return []
        j, hf = divmod(u, 2)
        o = []
        for i, k in enumerate(TK[6*hf:6*hf+6]):
            ad = "v4" if k >= 60 else f"v{SL + (k//4) % 3}"
            o.append(f"ds_read_b128 v[{ureg(u)+4*i}:{ureg(u)+4*i+3}], {ad} offset:{(k%4)*9216 + j*1024}")
        return o
    WE = [int(x) for x in os.environ.get('WE', '43,45').split(',')]
    wq = [w_loads(k) for k in range(0, NWR)] + [w_dma(k) for k in range(NWR, 17)] + [w_loads(17, "s36")]
    lg = []
    for j in range(JF, 9): lg += late_gelu(j, 1) + late_gelu(j, 0)
    LG0, LG1 = 2, int(os.environ.get('LG1', '52'))
    for k in range(KT0):
        need = []
        if k in rd_at: need += a2tags(rd_at[k][0])
        if k % 4 == 3: need += b2tags((k+1)//4)
        if k == KT0-1: need += b2tags(15)
        if k == 51: need += [("G", 3)]
        seq.append(WAIT(need, lgkm=True))
        if k % 4 == 3: seq.append("s_barrier")
        mm = [mf2(k, j, t, B2V + (k%2)*36 + 4*j) for j in range(9) for t in range(2)]
        ds = b2_reads(k+1) if k+1 < KT0 else u_reads(0)
        if k in rd_at: ds += a2_rd(*rd_at[k])
        f = {0: b2_group(-3) + b2_group(-2), 1: b2_group(-1) + b2_group(0), 2: b2_group(1) + b2_group(2)}.get(k, None)
        if f is None: f = b2_group(k)
        f = f + [y for x in apieces.get(k, []) for y in x]
        if 47 <= k < 49: f = t15_group(2*k-47) + t15_group(2*k-46) + f
        if k in CWK: f += [VM("buffer_load_dword v11, v255, s[32:35], 0 offen", ("CW", k))]
        oth = []
        if k == 46: oth = [f"s_add_u32 s21, s7, {15*36864}"]
        if k == 48: oth = tailprep
        if k == 1: oth = ["s_lshr_b32 s42, s2, 5", "s_mul_i32 s42, s42, 9", "s_lshr_b32 s42, s42, 1", "s_lshl_b32 s42, s42, 7",
                           f"s_add_u32 s42, s42, {MODP + 5*576*8}", f"s_add_u32 s43, s42, {3456*8}", "v_lshlrev_b32 v9, 3, v2"]
        if k == 44: f += [VM(f"buffer_load_dword v{240+2*i}, v9, s[8:11], s{42 + i%2} offen offset:{512*(i//2)}{SC}", ("G", i)) for i in range(4)]
        if k == 51: oth = ["v_add_f32 v6, v240, v242", "v_add_f32 v7, v244, v246", "v_cvt_pk_bf16_f32 v6, v6, v7", "v_and_b32 v7, 0xffff0000, v6", "v_lshlrev_b32 v6, 16, v6"]
        if k == 0: oth = g3prep
        if k in WE: f += wq.pop(0)
        if LG0 <= k < LG1 and 'nolg' not in X: oth = oth + lg[len(lg)*(k-LG0)//(LG1-LG0):len(lg)*(k+1-LG0)//(LG1-LG0)]
        gs_, rest = vgroups(f)
        if 'nov' in X and 3 < k < 43:
            for gr in gs_: gr[-1].text = 's_nop 0'
        seq += sched(mm, ds, gs_, oth) + rest
    seq.append(a.stamp(0))
    def epi(j):
        o = []
        for t in range(2):
            x = ACC + (j*2+t)*4; z = U1 + 8*j + 4*t
            od = ACC + ((j & ~1)*2+t)*4
            for r in range(4): o.append(f"v_mul_f32 v{x+r}, v{x+r}, v{z+r}")
            for h in range(2): o.append(f"v_cvt_pk_bf16_f32 v{od + (j%2)*2 + h}, v{x+2*h}, v{x+2*h+1}")
            if j % 2 == 1: o.append(VM(f"buffer_store_dwordx4 v[{od}:{od+3}], v1, s[8:11], s{28+t} offen offset:{1024*(j//2)} sc1", ("PS", j, t)))
            if j == 8: o.append(VM(f"buffer_store_dwordx2 v[{od}:{od+1}], v8, s[8:11], s{30+t} offen sc1", ("PS", 9, t)))
        return o
    WT = [int(x) for x in os.environ.get('WT', '8,1,6').split(',')]
    nleft = 8 - (18 - len(wq))
    tailw = set((i*8)//nleft for i in range(nleft)) if nleft else set()
    seq += [WAIT(b2tags(14), lgkm=True), "s_barrier"] + u_reads(1)
    for u in range(18):
        j, hf = divmod(u, 2)
        m_ = [mf2(k, j, t, ureg(u) + 4*i) for i, k in enumerate(TK[6*hf:6*hf+6]) for t in range(2)]
        if u > 0: seq.append(f"s_waitcnt lgkmcnt({6 if u < 17 else 0})")
        e = epi(j-1) if j >= 1 else []
        if hf == 0:
            seq += interleave(m_[:6], u_reads(u+2) if u < 16 else ["s_nop 1"]) + interleave(m_[6:], e)
        else:
            gs_, rest = vgroups(wq.pop(0) if j in tailw else [])
            seq += sched(m_, u_reads(u+2), gs_, vm_start=1) + rest
    seq += ["s_nop 7"] + epi(8) + ["s_barrier"]
    PV, LW = 240, 244
    seq += f"""
      s_mul_i32 s20, s44, {4*73728}
      s_mul_i32 s6, s3, {18*1024}
      s_add_u32 s20, s20, s6
      s_add_u32 s20, s20, {PF}            ; P soffset
      s_lshl_b32 s23, s44, 12
      s_lshl_b32 s6, s3, 9
      s_add_u32 s23, s23, s6
      s_add_u32 s23, s23, {FLP}           ; poll address
      v_and_b32 v10, 3, v2
      v_bfe_u32 v11, v2, 2, 1
      v_lshl_add_u32 v10, v11, 4, v10
      v_lshlrev_b32 v10, 7, v10
      v_add_u32 v249, s37, v1""".split("\n")
    for u in range(4):
        seq += [f"s_add_u32 s6, s3, {u}", "s_and_b32 s6, s6, 3", "s_mul_i32 s7, s6, 73728", f"v_add_u32 v{PV+u}, s7, v1"]
        if u > 0: seq += ["s_mul_i32 s7, s6, 15360", f"s_add_u32 s7, s7, {(u-1)*5120}", f"v_add_u32 v{LW+u}, s7, v1"]
    for _ in range(WT[1]): seq += wq.pop(0)
    seq += [a.stamp(1), WAIT([("PS", 9, 1)]), VM("buffer_store_dword v5, v13, s[8:11], s24 offen sc1", "FP"), a.stamp(2)]
    DEP = 6; AC3 = 16; PR = 96; XR, GB, GR_ = 192, 204, 96
    seq += [f"s_lshl_b32 s22, s44, 2", "s_add_u32 s22, s22, s3", "s_mul_i32 s25, s22, 18432", "s_lshl_b32 s24, s45, 9", "s_add_u32 s25, s25, s24", f"s_add_u32 s25, s25, {X1F}",
            "v_lshlrev_b32 v8, 4, v12"]
    xl = [VM(f"buffer_load_dwordx2 v[{XR+2*j}:{XR+1+2*j}], v9, s[8:11], s25 offen offset:{512*j}{SC}", ("X", j)) for j in range(5)]
    for _ in range(WT[2]): seq += wq.pop(0)
    for j in range(5):
        for r in range(4): seq.append(f"ds_bpermute_b32 v{GB+4*j+r}, v8, v{6 if j < 4 else 7} offset:{64*(j%4) + 4*r}")
        if j == 2: seq.append("s_waitcnt lgkmcnt(0)")
    resolve(seq)
    for it in seq:
        if it == "STAMPFLUSH": a.stamp_flush2(2, 8)
        else: emit(a, [it])
    a.srd(12, "out")
    poll_loop(a, "GM_P", ["buffer_load_dword v11, v10, s[8:11], s23 offen sc1"], [11], None)
    a(a.stamp(3))
    done = [VM("; ", x.tag) for x in seq if isinstance(x, VM) and x.tag[0] == "W"]
    def p_loads(k):
        if k >= 18: return []
        r = PR + (k % DEP)*16
        if k % 9 != 8: o = [VM(f"buffer_load_dwordx4 v[{r+4*u}:{r+4*u+3}], v{PV+u}, s[8:11], s20 offen offset:{1024*(k%4)} sc1", ("P", k, u)) for u in range(4)]
        else:
            o = []
            for u in range(4):
                o += [f"v_sub_u32 v11, v{PV+u}, v9", VM(f"buffer_load_dwordx2 v[{r+4*u}:{r+4*u+1}], v11, s[8:11], s20 offen offset:{1024*(k%4)} sc1", ("Ph", k, u)),
                      VM(f"buffer_load_dwordx2 v[{r+4*u+2}:{r+4*u+3}], v11, s[8:11], s20 offen offset:{1024*(k%4)+512} sc1", ("P", k, u))]
        if k % 4 == 3: o.append("s_add_u32 s20, s20, 4096")
        return o
    def w_rd(k): return [f"ds_read_b128 a[{w_reg(k)+4*j}:{w_reg(k)+4*j+3}], v249 offset:{(k-NWR)*5120 + 1024*j}" for j in range(5)]
    seq = list(done)
    for k in range(DEP-1): seq += p_loads(k)
    for k in range(18):
        kr = k + 4
        need = [("P", k, 3)] + ([("W", k, 4)] if (k < NWR or k == 17) else []) + ([("W", kr, 4)] if NWR <= kr < 17 else [])
        seq.append(WAIT(need, lgkm=(NWR <= k < 17)))
        if k == 0: seq.append(a.stamp(4))
        if k == 14: seq.append("s_barrier")
        r = PR + (k % DEP)*16
        mm = []
        for u in ((1, 2, 3, 0) if k == 17 else range(4)):
            for j in range(5):
                c = AC3 + (u*5+j)*4
                mm.append(f"{MF} v[{c}:{c+3}], a[{w_reg(k)+4*j}:{w_reg(k)+4*j+3}], v[{r+4*u}:{r+4*u+3}], {'0' if k == 0 else f'v[{c}:{c+3}]'}")
        f = p_loads(k+DEP-1) + (wq.pop(0) if wq else []) + (w_rd(kr) if NWR <= kr < 17 else []) + (xl if k == 13 else [])
        ds = [x for x in f if isinstance(x, str) and x.startswith("ds_")]
        gs_, rest = vgroups([x for x in f if not (isinstance(x, str) and x.startswith("ds_"))])
        if k < 17: seq += sched(mm, ds, gs_, vm_start=1) + rest
        else:
            wr = [f"ds_write_b128 v{LW+u}, v[{AC3+(u*5+j)*4}:{AC3+(u*5+j)*4+3}] offset:{1024*j}" for u in range(1, 4) for j in range(5)]
            seq += mm[:9] + interleave(mm[9:], wr[:11]) + [a.stamp(5), "s_mul_i32 s7, s3, 15360", "v_add_u32 v11, s7, v1"] + wr[11:]
    seq += ["v_mul_u32_u24 v4, 1152, v248",
            "v_lshl_add_u32 v4, v12, 3, v4", "s_lshr_b32 s25, s22, 1", f"s_mul_i32 s25, s25, {32*1152}", "s_and_b32 s26, s22, 1", f"s_mul_i32 s26, s26, {4*1152}",
            "s_add_u32 s25, s25, s26", "s_lshl_b32 s26, s45, 5", "s_add_u32 s25, s25, s26",
            "s_waitcnt lgkmcnt(0)", "s_barrier"]
    for i in range(15):
        c = AC3 + 20 + 4*i
        seq.append(f"ds_read_b128 v[{c}:{c+3}], v11 offset:{1024*i}")
        if i == 13: seq.append("s_waitcnt lgkmcnt(8)")
    seq += [WAIT([("X", 4)], lgkm=True)]
    for j in range(5):
        for h in range(2):
            x = AC3 + 4*j + 2*h
            seq += [f"v_pk_add_f32 {P(x)}, {P(x)}, {P(x+20)}", f"v_pk_add_f32 {P(x+40)}, {P(x+40)}, {P(x+60)}",
                    f"v_lshlrev_b32 v{x+20}, 16, v{XR+2*j+h}", f"v_and_b32 v{x+21}, 0xffff0000, v{XR+2*j+h}",
                    f"v_pk_add_f32 {P(x)}, {P(x)}, {P(x+40)}",
                    f"v_pk_fma_f32 {P(x)}, {P(x)}, {P(GB+4*j+2*h)}, {P(x+20)}",
                    f"v_cvt_pk_bf16_f32 v{XR+2*j+h}, v{x}, v{x+1}"]
        seq.append(VM(f"buffer_store_dwordx2 v[{XR+2*j}:{XR+1+2*j}], v4, s[12:15], s25 offen offset:{32*j}", ("O", j)))
    resolve(seq); emit(a, seq)
    a(a.stamp(6))
    a.stamp_end(3, 8)
    a("GM_END:\ns_endpgm\nGM_CODE_END:")
    a.stamp = st0
    if merged:
        from gen_s import KNAME
        a.desc(KNAME, 512, 256, 100)
    else: a.desc("gm_kernel", 512, 256)
```

```python
from gen_common import *
from gen_g import VM, WAIT, resolve, emit
from gen_f import poll, get_nonce, check_nonce, CH_LDS, KCS, URO, URS, YO, YS, QO, BIG, FU, FH2
import os
X = os.environ.get('X', '').split(',')
FD = FLF + 768*128
STL = QO + 18432
L0, NT = "v250", "v251"
KNAME = "adaLN_cond__ssm_conv_h3__mixer_gmlp__prompt_kernel"

def red32x2(a, r0, r1, t0, t1):
    for op in ("quad_perm:[1,0,3,2]", "quad_perm:[2,3,0,1]", "row_half_mirror", "row_mirror"):
        a(f"s_nop 0\nv_add_f32_dpp {r0}, {r0}, {r0} {op} row_mask:0xf bank_mask:0xf\nv_add_f32_dpp {r1}, {r1}, {r1} {op} row_mask:0xf bank_mask:0xf")
    a(f"""
      v_mov_b32 {t0}, {r0}
      v_mov_b32 {t1}, {r1}
      s_nop 1
      v_permlane16_swap_b32 {r0}, {t0}
      v_permlane16_swap_b32 {r1}, {t1}
      s_nop 1
      v_add_f32 {r0}, {r0}, {t0}
      v_add_f32 {r1}, {r1}, {t1}
    """)

def gen_front(a):
    a.begin(KNAME)
    a(f"s_cmp_ge_u32 s2, 256\ns_cbranch_scc1 GM_END")
    a(a.stamp(0))
    a.load_args()
    a("""
      s_memrealtime s[40:41]
      s_mov_b32 s96, 64
      v_lshrrev_b32 v1, 6, v0
      v_and_b32 v2, 63, v0                ; lane
      v_readfirstlane_b32 s3, v1          ; wave
      v_lshlrev_b32 v3, 4, v2             ; lane*16
      v_and_b32 v4, 15, v2                ; l&15
      v_lshrrev_b32 v5, 4, v2             ; g
      s_and_b32 s4, s2, 7
      s_mul_i32 s4, s4, 18
      s_lshr_b32 s5, s2, 3
      s_add_u32 s4, s4, s5
      s_waitcnt lgkmcnt(0)
    """)
    a.srd(8, "ws"); a.srd(28, "dbg", 256)
    a(f"v_cmp_eq_u32 vcc, 0, v2\nv_mov_b32 {L0}, {BIG}\nv_mov_b32 {NT}, 0\nv_cndmask_b32 {L0}, {L0}, 0, vcc")
    a(f"""
      s_or_b32 s5, s2, s3
      s_cmp_lg_u32 s5, 0
      s_cbranch_scc1 F_NOTAG
      s_mul_i32 s41, s41, 0x9e3779b1
      s_xor_b32 s40, s40, s41
      s_or_b32 s40, s40, 1
      v_mov_b32 v8, s40
      buffer_store_dword v8, {L0}, s[28:31], 0 offen sc1
    F_NOTAG:
      s_cmp_lt_u32 s2, {192 if 'cwo' in X else 0}
      s_cbranch_scc1 F_NOCW
      s_cmp_lg_u32 s3, {'s3' if 'cwo' in X else 3}
      s_cbranch_scc1 F_NOCW
      s_getpc_b64 s[12:13]
    F_PC:
      s_sub_u32 s12, s12, F_PC-{KNAME}
      s_subb_u32 s13, s13, 0
      s_and_b32 s13, s13, 0xffff
      s_mov_b32 s14, {'0' if 'nocw0' in X else 'GM_CODE_END-' + KNAME}
      s_mov_b32 s15, 0x20000
      s_lshr_b32 s5, s2, 3
      {"s_and_b32 s5, s5, 7" if 'cwo' in X else ";"}
      {"s_lshl_b32 s5, s5, 2" if 'cwo' in X else ";"}
      {"s_add_u32 s5, s5, s3" if 'cwo' in X else ";"}
      s_lshl_b32 s5, s5, 7
      v_lshlrev_b32 v8, 12, v2
      buffer_load_dword v246, v8, s[12:15], s5 offen
    F_NOCW:
      s_cmp_ge_u32 s2, 144
      s_cbranch_scc1 F_OTHER
    """)
    def zero_gm():
        a(f"""
          v_mov_b32 v248, 0
          v_lshlrev_b32 v249, 2, v0
          s_lshl_b32 s46, s2, 10
          s_add_u32 s46, s46, {ST2}
          buffer_store_dword v248, v249, s[8:11], s46 offen sc1
          s_lshl_b32 s46, s2, 2
          s_add_u32 s46, s46, s3
          s_lshl_b32 s46, s46, 7
          s_add_u32 s46, s46, {FLB}
          buffer_store_dword v248, {L0}, s[8:11], s46 offen sc1
          s_add_u32 s46, s46, {FLP-FLB}
          buffer_store_dword v248, {L0}, s[8:11], s46 offen sc1
        """)
    a(f"""
      s_and_b32 s5, s4, 15                ; rb
      s_lshr_b32 s6, s4, 4                ; cb
      v_lshrrev_b32 v6, 5, v0
      v_and_b32 v7, 31, v0                ; cp
      s_lshl_b32 s7, s5, 7
      v_lshl_add_u32 v8, v6, 4, s7        ; s0
      s_lshl_b32 s7, s6, 7
      v_lshl_add_u32 v9, v7, 2, s7
      v_mul_u32_u24 v11, 1152, v8
      v_add_u32 v11, v11, v9              ; row s0
      v_subrev_u32 v10, 4608, v11         ; row s0-4
      v_add_u32 v12, 4608, v11
      v_add_u32 v13, 9216, v11
      v_add_u32 v14, 13824, v11
      v_lshlrev_b32 v15, 2, v9
    """)
    a.srd(12, "k"); a.srd(16, "v"); a.srd(20, "shk"); a.srd(24, "q"); a.srd(32, "ssmk")
    KR, VR, SQ, SH, KU, VU, RES, PK = 20, 40, 224, 56, 64, 104, 136, 168
    seq = [VM("buffer_load_dwordx4 v[16:19], v15, s[20:23], 0 offen", "sh")]
    for i in range(1, 20):
        seq.append(VM(f"buffer_load_dword v{KR+i}, v{10+i//4}, s[12:15], 0 offen offset:{1152*(i%4)}", ("k", i)))
        if i >= 4: seq.append(VM(f"buffer_load_dword v{VR+i-4}, v{10+i//4}, s[16:19], 0 offen offset:{1152*(i%4)}", ("v", i)))
    seq.append(VM(f"buffer_load_dword {NT}, {NT}, s[28:31], 0 offen sc1", "nt"))
    seq += f"""
      s_mul_i32 s38, s3, {CH_LDS}
      s_lshl_b32 s7, s4, 2
      s_add_u32 s7, s7, s3
      s_lshl_b32 s44, s7, 12
      s_add_u32 s45, s44, {UR}
      v_lshlrev_b32 v13, 1, v6
      v_sub_u32 v13, 15, v13
      v_and_b32 v11, 7, v7
      v_xor_b32 v13, v13, v11
      v_lshlrev_b32 v13, 4, v13
      v_lshl_add_u32 v13, v7, 9, v13
      v_add_u32 v13, {YO}, v13
      v_xor_b32 v10, 16, v13
      s_lshl_b32 s46, s4, 4
      s_lshl_b32 s47, s3, 2
      s_add_u32 s46, s46, s47
      v_lshrrev_b32 v14, 5, v2
      v_add_u32 v15, s46, v14
      v_mul_u32_u24 v15, 1152, v15
      v_lshl_add_u32 v15, v7, 2, v15""".split("\n")
    def kcopy(t):
        return [f"s_add_u32 m0, s38, {t*KCS + 60 - 4*t}", "s_nop 0"] + [VM(f"buffer_load_dwordx4 v3, s[32:35], s44 offen offset:{1024*i} lds", ("K", t, i)) for i in range(4)]
    def half(h):
        o = []
        ks = range(1, 12) if h == 0 else range(12, 20)
        for i in ks: o += [f"v_lshlrev_b32 v{KU+2*i}, 16, v{KR+i}", f"v_and_b32 v{KU+1+2*i}, 0xffff0000, v{KR+i}"]
        for i in range(8*h, 8*h+8): o += [f"v_lshlrev_b32 v{VU+2*i}, 16, v{VR+i}", f"v_and_b32 v{VU+1+2*i}, 0xffff0000, v{VR+i}"]
        for i in range(8*h, 8*h+8):
            d = f"v[{RES+2*i}:{RES+1+2*i}]"
            kk = lambda j: f"v[{KU+2*(i+4-j)}:{KU+1+2*(i+4-j)}]"
            o.append(f"v_pk_mul_f32 {d}, {kk(3)}, v[{SH+6}:{SH+7}]")
            for j in (2, 1, 0): o.append(f"v_pk_fma_f32 {d}, {kk(j)}, v[{SH+2*j}:{SH+1+2*j}], {d}")
            o.append(f"v_pk_mul_f32 {d}, {d}, v[{VU+2*i}:{VU+1+2*i}]")
        for ch in range(2):
            p = PK + 8*h + 4*ch
            for dd in range(4): o.append(f"v_cvt_pk_bf16_f32 v{p+dd}, v{RES+2*(8*h+7-2*dd)+ch}, v{RES+2*(8*h+6-2*dd)+ch}")
            o.append(f"ds_write_b128 {'v13' if h == 0 else 'v10'}, v[{p}:{p+3}] offset:{ch*256}")
        return o
    seq.append(WAIT([("v", 11)]))
    for j in range(4):
        op = "v_lshlrev_b32 {d}, 16, {s}" if j % 2 == 0 else "v_and_b32 {d}, 0xffff0000, {s}"
        seq += [op.format(d=f"v{SH+2*j}", s=f"v{16+j//2}"), op.format(d=f"v{SH+1+2*j}", s=f"v{18+j//2}")]
    seq += half(0)
    seq += [WAIT([("v", 19)]), a.stamp(1)]
    sq = [VM(f"buffer_load_dword v{SQ+9*r+i}, v15, s[24:27], 0 offen offset:{128*i + 2304*r}", ("sq", r, i)) for r in range(2) for i in range(9)]
    seq += interleave(half(1), sq + kcopy(0))
    seq += f"""
      v_lshrrev_b32 v11, 4, v0
      v_xor_b32 v12, v4, v6
      v_lshlrev_b32 v12, 4, v12
      v_lshl_add_u32 v12, v11, 8, v12
      v_add_u32 v12, {YO}, v12
      v_lshlrev_b32 v11, 12, v11
      v_lshl_add_u32 v11, v4, 4, v11
      s_lshl_b32 s46, s6, 18
      s_sub_u32 s47, 15, s5
      s_lshl_b32 s47, s47, 8
      s_add_u32 s46, s46, s47
      s_add_u32 s46, s46, {UR}
      s_waitcnt lgkmcnt(0)
      s_barrier""".split("\n")
    for i in range(4): seq.append(f"ds_read_b128 v[{60+4*i}:{63+4*i}], v12 offset:{4096*i}")
    for i in range(4):
        seq += [f"s_waitcnt lgkmcnt({3-i})", VM(f"buffer_store_dwordx4 v[{60+4*i}:{63+4*i}], v11, s[8:11], s46 offen sc1", ("ur", i))]
        if i < 3: seq.append(f"s_add_u32 s46, s46, {16*4096}")
    for t in range(1, 4): seq += kcopy(t)
    seq += f"""
      v_lshrrev_b32 v8, 1, v7
      v_and_b32 v9, 7, v8
      s_lshl_b32 s7, s3, 1
      v_xor_b32 v9, s7, v9
      v_lshlrev_b32 v8, 7, v8
      v_lshl_add_u32 v8, v14, 3, v8
      v_and_b32 v10, 1, v7
      v_lshl_add_u32 v8, v10, 2, v8
      v_add_u32 v8, {QO}, v8
      v_lshl_add_u32 v10, v9, 4, v8
      v_xor_b32 v9, 1, v9
      v_lshl_add_u32 v11, v9, 4, v8""".split("\n")
    seq.append(WAIT([("sq", 1, 8)]))
    U = [80, 100]
    for r in range(2):
        for i in range(9): seq.append(f"ds_write_b32 v{10+r}, v{SQ+9*r+i} offset:{2048*i}")
        for i in range(9): seq += [f"v_lshlrev_b32 v{U[r]+2*i}, 16, v{SQ+9*r+i}", f"v_and_b32 v{U[r]+1+2*i}, 0xffff0000, v{SQ+9*r+i}"]
        seq.append("s_waitcnt lgkmcnt(0)")
    M_ = [16, 18]; R_ = [20, 22]
    for r in range(2):
        seq.append(f"v_pk_add_f32 v[{M_[r]}:{M_[r]+1}], v[{U[r]}:{U[r]+1}], v[{U[r]+2}:{U[r]+3}]")
        for i in range(2, 9): seq.append(f"v_pk_add_f32 v[{M_[r]}:{M_[r]+1}], v[{M_[r]}:{M_[r]+1}], v[{U[r]+2*i}:{U[r]+1+2*i}]")
    seq += ["v_add_f32 v16, v16, v17", "v_add_f32 v18, v18, v19", WAIT([("ur", 3)])]
    resolve(seq); emit(a, seq)
    check_nonce(a, "F_C", NT)
    a(f"""
      {a.stamp(2)}
      v_mov_b32 v24, s42
      s_lshr_b32 s7, s44, 5
      s_add_u32 s7, s7, {FU}
      buffer_store_dword v24, {L0}, s[8:11], s7 offen sc1
    """)
    red32x2(a, "v16", "v18", "v17", "v19")
    for r in range(2):
        a(f"v_mul_f32 v{M_[r]}, {float_hex(1.0/576)}, v{M_[r]}")
        for i in range(9): a(f"v_pk_add_f32 v[{U[r]+2*i}:{U[r]+1+2*i}], v[{U[r]+2*i}:{U[r]+1+2*i}], v[{M_[r]}:{M_[r]+1}] op_sel_hi:[1,0] neg_lo:[0,1] neg_hi:[0,1]")
        a(f"v_pk_mul_f32 v[{R_[r]}:{R_[r]+1}], v[{U[r]}:{U[r]+1}], v[{U[r]}:{U[r]+1}]")
        for i in range(1, 9): a(f"v_pk_fma_f32 v[{R_[r]}:{R_[r]+1}], v[{U[r]+2*i}:{U[r]+1+2*i}], v[{U[r]+2*i}:{U[r]+1+2*i}], v[{R_[r]}:{R_[r]+1}]")
    a("v_add_f32 v20, v20, v21\nv_add_f32 v22, v22, v23\ns_nop 0")
    red32x2(a, "v20", "v22", "v21", "v23")
    a(f"""
      v_mov_b32 v21, {float_hex(1e-5)}
      v_mov_b32 v23, {float_hex(1e-5)}
      v_fmac_f32 v21, {float_hex(1.0/576)}, v20
      v_fmac_f32 v23, {float_hex(1.0/576)}, v22
      v_rsq_f32 v20, v21
      v_rsq_f32 v22, v23
      s_lshl_b32 s7, s3, 5
      s_add_u32 s7, s7, {STL}
      v_lshl_add_u32 v8, v14, 3, s7
      v_mul_f32 v21, -v16, v20
      v_mul_f32 v23, -v18, v22
      ds_write_b64 v8, v[20:21]
      ds_write_b64 v8, v[22:23] offset:16
      v_lshrrev_b32 v10, 3, v0            ; cg' (+32 i)
      v_and_b32 v11, 7, v2
      v_xor_b32 v12, v11, v10
      v_and_b32 v12, 7, v12
      v_lshlrev_b32 v12, 4, v12
      v_lshl_add_u32 v12, v10, 7, v12
      v_add_u32 v12, {QO}, v12
      v_lshlrev_b32 v10, 14, v10
      v_lshl_add_u32 v10, v11, 4, v10
      s_lshl_b32 s47, s4, 7
      s_add_u32 s46, s47, {ST1}
      s_add_u32 s47, s47, {QP}
      s_waitcnt lgkmcnt(0)
      s_barrier
      s_cmp_ge_u32 s4, 128
      s_cbranch_scc1 F_Q_SKIP
    """)
    for i in range(4): a(f"ds_read_b128 v[{60+4*i}:{63+4*i}], v12 offset:{4096*i}")
    for i in range(4):
        a(f"s_waitcnt lgkmcnt({3-i})")
        a(f"buffer_store_dwordx4 v[{60+4*i}:{63+4*i}], v10, s[8:11], s47 offen sc1")
        a(f"s_add_u32 s47, s47, {32*16384}")
    a(f"""
      s_cmp_eq_u32 s3, 3
      s_cbranch_scc1 F_Q_SKIP
      s_cmp_eq_u32 s3, 2
      s_cbranch_scc1 F_Q_ST
      ds_read_b128 v[76:79], v12 offset:16384
      s_waitcnt lgkmcnt(0)
      buffer_store_dwordx4 v[76:79], v10, s[8:11], s47 offen sc1
      s_branch F_Q_SKIP
    F_Q_ST:
      v_lshlrev_b32 v11, 4, v11
      v_add_u32 v12, {STL}, v11
      ds_read_b128 v[76:79], v12
      s_mov_b64 exec, 0xff
      s_waitcnt lgkmcnt(0)
      buffer_store_dwordx4 v[76:79], v11, s[8:11], s46 offen sc1
      s_mov_b64 exec, -1
    F_Q_SKIP:
    """)
    zero_gm()
    p = a.ptr("ssmD")
    Q, STT, MD, HP, XA, YA = 176, 192, 208, 220, 222, 223
    a(f"""
      s_lshl_b32 s7, s4, 3
      s_load_dwordx2 s[20:21], s[{p}:{p+1}], s7
      s_lshl_b32 s7, s6, 6
      s_and_b32 s22, s4, 3
      s_add_u32 s7, s7, s22
      v_lshl_add_u32 v14, v4, 2, s7
      v_lshlrev_b32 v14, 7, v14
      v_add_u32 v14, {FU}, v14
      v_mov_b32 v8, 0
      v_mov_b32 v9, 0
      v_mov_b32 v10, 0
      v_mov_b32 v11, 0
      v_mul_u32_u24 v12, {KCS}, v5
      v_lshl_add_u32 v12, v4, 2, v12
      v_add_u32 v12, s38, v12
      v_add_u32 v13, v4, v5
      v_lshrrev_b32 v16, 5, v2
      v_mul_u32_u24 v16, {URS}, v16
      v_lshl_add_u32 v16, v7, 4, v16
      v_add_u32 v16, s38, v16
      v_cmp_gt_u32 vcc, 15, v13
      s_and_saveexec_b64 s[46:47], vcc
      ds_write_b32 v12, v8
      s_mov_b64 exec, s[46:47]
      v_cmp_gt_u32 vcc, 28, v7
      s_and_saveexec_b64 s[46:47], vcc
      ds_write_b128 v16, v[8:11] offset:{URO+4096}
      s_mov_b64 exec, s[46:47]
      v_and_b32 v12, 3, v4
      v_mul_u32_u24 v12, {KCS}, v12
      v_lshrrev_b32 v13, 2, v4
      v_add_u32 v13, v13, v5
      v_lshl_add_u32 v12, v13, 4, v12
      v_add_u32 v12, s38, v12
      v_lshrrev_b32 v13, 3, v4
      v_mul_u32_u24 v13, {URS}, v13
      v_lshl_add_u32 v13, v5, 4, v13
      v_and_b32 v16, 7, v4
      v_lshlrev_b32 v16, 6, v16
      v_sub_u32 v13, v13, v16
      s_add_u32 s7, s38, {URO + 448}
      v_add_u32 v13, s7, v13
      v_lshrrev_b32 v15, 2, v2
      v_lshlrev_b32 v15, 4, v15
      v_and_b32 v16, 3, v2
      s_lshl_b32 s7, s3, 2
      v_add3_u32 v15, v15, v16, s7
      v_lshlrev_b32 v15, 7, v15
      v_add_u32 v15, {FH2}, v15
      v_bfe_u32 v17, v2, 3, 2
      v_min_u32 v17, 2, v17
      v_mul_u32_u24 v17, 576, v17
      v_bfe_u32 v18, v2, 2, 1
      v_mul_u32_u24 v18, 3456, v18
      s_lshl_b32 s7, s4, 2
      v_add3_u32 v16, v16, v17, v18
      v_add_u32 v16, s7, v16
      v_lshlrev_b32 v16, 3, v16
      v_add_u32 v16, {MODP}, v16
      v_cmp_gt_u32 vcc, 32, v2
      v_lshlrev_b32 v{HP+1}, 3, v0        ; t*8
      v_mul_u32_u24 v{YA}, 144, v6
      v_cndmask_b32 v{HP}, v16, v15, vcc
      v_and_b32 v15, 24, v0
      v_and_b32 v16, 1, v0
      v_lshl_add_u32 v15, v16, 2, v15
      v_bfe_u32 v16, v0, 1, 2
      v_add_u32 v15, v15, v16
      v_lshl_add_u32 v{YA}, v15, 2, v{YA}
      v_add_u32 v{YA}, {YO}, v{YA}
      v_mul_u32_u24 v{XA}, 36864, v6
      v_bfe_u32 v15, v0, 2, 1
      v_mul_u32_u24 v15, 18432, v15
      v_add_u32 v{XA}, v{XA}, v15
      v_bfe_u32 v15, v0, 3, 2
      v_lshl_add_u32 v{XA}, v15, 5, v{XA}
      v_and_b32 v15, 3, v0
      v_lshl_add_u32 v{XA}, v15, 3, v{XA}
      v_and_b32 v6, 7, v4
      v_mul_u32_u24 v6, 144, v6
      v_lshl_add_u32 v6, v5, 5, v6
      v_lshrrev_b32 v15, 3, v4
      v_lshl_add_u32 v6, v15, 4, v6
      s_mul_i32 s7, s3, {YS}
      s_add_u32 s7, s7, {YO}
      v_add_u32 v6, s7, v6
      s_lshl_b32 s36, s4, 14
      s_add_u32 s36, s36, {QP}
      s_mov_b32 s37, {ST1}
      s_waitcnt lgkmcnt(0)
      s_cmp_ge_u32 s3, 2
      s_cselect_b32 s7, s21, s20
      s_and_b32 s22, s3, 1
      s_lshl_b32 s22, s22, 4
      s_lshr_b32 s7, s7, s22
      s_and_b32 s7, s7, 0xffff
      v_mov_b32 v15, s7
      v_lshl_add_u32 v16, v5, 2, v4
    """)
    for dd in range(4):
        a(f"v_cmp_eq_u32 vcc, {15-dd}, v16\ns_nop 1\nv_cndmask_b32 v{8+dd}, 0, v15, vcc")
    ACC = 16; FR = [48, 112]
    def reads(buf, r, which="AB"):
        out = []
        for i in range(8):
            if "B" in which: out.append(f"ds_read_b128 v[{FR[buf]+32+4*i}:{FR[buf]+35+4*i}], v13 offset:{64*r + 512*(7-i)}")
            if "A" in which: out.append(f"ds_read_b128 v[{FR[buf]+4*i}:{FR[buf]+3+4*i}], v12 offset:{64*r + 512*i}")
        return out
    def mfmas(buf):
        out = []
        for p_ in range(8):
            for q_ in range(8 - p_):
                j = p_ + q_
                out.append(f"v_mfma_f32_16x16x32_bf16 v[{ACC+4*j}:{ACC+4*j+3}], v[{FR[buf]+4*p_}:{FR[buf]+4*p_+3}], v[{FR[buf]+32+4*q_}:{FR[buf]+35+4*q_}], v[{ACC+4*j}:{ACC+4*j+3}]")
        return out
    a(f"""
      s_waitcnt vmcnt(0)
      s_barrier
      s_cmp_lg_u32 s3, 1
      s_cbranch_scc1 F_H_NOF
      s_lshl_b32 s7, s4, 7
      s_add_u32 s7, s7, {FH2}
      buffer_store_dword v24, {L0}, s[8:11], s7 offen offset:4 sc1
    F_H_NOF:
      s_cmp_lg_u32 s3, 0
      s_cbranch_scc1 F_U_GO
    """)
    poll(a, "F_U", "v14", "v15")
    a("s_barrier")
    a(a.stamp(3))
    UB = 112
    for i in range(4):
        a(f"buffer_load_dwordx4 v[{UB+8*i}:{UB+8*i+3}], v3, s[8:11], s45 offen offset:{1024*i} sc1")
        a(f"buffer_load_dword v{UB+8*i+4}, v3, s[8:11], s45 offen offset:{1024*i+16} sc1")
    a(f"s_add_u32 s7, s38, {URO}\nv_add_u32 v14, s7, v3\nv_cmp_eq_u32 vcc, 63, v2")
    for x in reads(0, 0, "A"): a(x)
    for i in range(4):
        b = UB + 8*i
        a(f"s_waitcnt vmcnt({6-2*i})")
        if i == 3: a(f"v_cndmask_b32 v{b+4}, v{b+4}, 0, vcc")
        a(f"ds_write_b128 v14, v[{b}:{b+3}] offset:{URS + 1024*i}")
        for d_ in range(4): a(f"v_alignbit_b32 v{144+4*i+d_}, v{b+d_+1}, v{b+d_}, 16")
        a(f"ds_write_b128 v14, v[{144+4*i}:{147+4*i}] offset:{1024*i}")
        if i == 1: a("s_waitcnt lgkmcnt(0)")
    a("s_waitcnt lgkmcnt(0)")
    a(a.stamp(4))
    for x in reads(0, 0, "B"): a(x)
    a("s_waitcnt lgkmcnt(0)")
    for q_ in range(8):
        a(f"v_mfma_f32_16x16x32_bf16 v[{ACC+4*q_}:{ACC+4*q_+3}], v[8:11], v[{FR[0]+32+4*q_}:{FR[0]+35+4*q_}], 0")
    hp = f"buffer_load_dwordx2 v[14:15], v{HP}, s[8:11], 0 offen sc1"
    a("s_mov_b32 s7, 0\nF_CLOOP:")
    for x in interleave(mfmas(0), reads(1, 1) + [hp], per=1): a(x)
    a("s_waitcnt lgkmcnt(0)")
    for x in interleave(mfmas(1), reads(0, 2), per=1): a(x)
    a(f"""
      v_add_u32 v12, 128, v12
      v_add_u32 v13, 128, v13
      s_add_u32 s7, s7, 1
      s_cmp_lt_u32 s7, 2
      s_waitcnt lgkmcnt(0)
      s_cbranch_scc1 F_CLOOP
      s_mov_b32 s43, 0
    F_HR_CHK:
      s_waitcnt vmcnt(0)
      v_cmp_ne_u32 vcc, s42, v15
      s_add_u32 s43, s43, 1
      s_cmp_ge_u32 s43, 0x80000
      s_cbranch_scc1 F_HR_GO
      s_nop 2
      s_cmp_eq_u32 vcc_lo, 0
      s_cbranch_scc1 F_HR_GO
      s_sleep {SLP}
      {hp}
      s_branch F_HR_CHK
    F_HR_GO:
    """)
    ql = []
    for i in range(8):
        ql += [f"buffer_load_dwordx2 v[{STT+2*i}:{STT+1+2*i}], v{HP+1}, s[8:11], s37 offen offset:{2048*(i%2)} sc1",
               f"buffer_load_dwordx2 v[{Q+2*i}:{Q+1+2*i}], v{HP+1}, s[8:11], s36 offen offset:{2048*(i%2)} sc1"]
        if i % 2 == 1 and i < 7: ql += ["s_add_u32 s37, s37, 4096", "s_add_u32 s36, s36, 4096"]
    def mix(r_, q_):
        o = []
        for i in range(max(len(r_), len(q_))): o += r_[i:i+1] + q_[i:i+1]
        return o
    for x in interleave(mfmas(0), mix(reads(1, 1), ql[:12]), per=1): a(x)
    a("s_waitcnt lgkmcnt(0)")
    for x in interleave(mfmas(1), mix(reads(0, 2), ql[12:]), per=1): a(x)
    a("s_waitcnt lgkmcnt(0)")
    for x in interleave(mfmas(0), reads(1, 3) + [hp], per=1): a(x)
    a("s_waitcnt lgkmcnt(0)")
    H = 48
    pre = """v_add_f32_dpp v14, v14, v14 row_shl:4 row_mask:0xf bank_mask:0xf
      v_bfe_u32 v15, v2, 3, 2
      v_cmp_eq_u32 vcc, 1, v15
      v_cvt_pk_bf16_f32 v14, v14, v14
      v_lshlrev_b32 v14, 16, v14
      v_cndmask_b32 v15, 0, 1.0, vcc
      v_add_f32 v14, v14, v15
      v_cvt_pk_bf16_f32 v14, v14, v14
      v_lshlrev_b32 v14, 16, v14
      s_nop 0""".split("\n")
    pre += [f"v_readlane_b32 s{12+i}, v14, {32 + 8*(i//4) + i%4}" for i in range(12)]
    pre += ["s_lshl_b32 s7, s4, 7", f"s_add_u32 s7, s7, {X1F}"]
    pre += [f"v_mov_b32 v{MD+8+c}, s{20+c}" for c in range(4)]
    pre += [f"v_mul_f32 v{MD+c}, s{12+c}, v{MD+8+c}" for c in range(4)] + [f"v_mul_f32 v{MD+4+c}, s{16+c}, v{MD+8+c}" for c in range(4)]
    p1 = ["s_waitcnt vmcnt(1)"]; p2 = []
    for i in range(8):
        q0, q1 = Q+2*i, Q+1+2*i
        t = H + 8*i
        p1 += [f"v_lshlrev_b32 v{t}, 16, v{q0}", f"v_and_b32 v{t+1}, 0xffff0000, v{q0}", f"v_lshlrev_b32 v{t+2}, 16, v{q1}", f"v_and_b32 v{t+3}, 0xffff0000, v{q1}"]
        p1 += [f"v_fma_f32 v{t+4+c}, v{t+c}, v{STT+2*i}, v{STT+2*i+1}" for c in range(4)]
        p2 += [f"v_pk_fma_f32 v[{t+4+c}:{t+5+c}], v[{t+4+c}:{t+5+c}], v[{MD+4+c}:{MD+5+c}], v[{MD+c}:{MD+1+c}]" for c in (0, 2)]
    for x in interleave(mfmas(1), p1): a(x)
    a(a.stamp(5))
    a("s_waitcnt vmcnt(0)\nv_cmp_ne_u32 vcc, s42, v15")
    wr = [f"ds_write_b128 v6, v[{ACC+4*j}:{ACC+4*j+3}] offset:{j*8*144}" for j in range(8)]
    for x in wr[:6]: a(x)
    a("s_cbranch_vccz F_HP_GO")
    poll(a, "F_HP", f"v{HP}", "v15", pair="v[14:15]")
    for x in wr[6:] + pre + ["s_waitcnt lgkmcnt(0)", "s_barrier"]: a(x)
    Y = 112
    def yrd(i):
        for c in range(4): a(f"ds_read_b32 v{Y+4*i+c}, v{YA} offset:{c*YS + i*8*144}")
    for i in range(3): yrd(i)
    for x in p2: a(x)
    for i in range(8):
        q0, q1 = Q+2*i, Q+1+2*i
        t = H + 8*i
        a(f"s_waitcnt lgkmcnt({min(8, 28-4*i)})")
        if i + 3 < 8: yrd(i+3)
        a(f"""
          v_pk_fma_f32 v[{t}:{t+1}], v[{t+4}:{t+5}], v[{Y+4*i}:{Y+1+4*i}], v[{t}:{t+1}]
          v_pk_fma_f32 v[{t+2}:{t+3}], v[{t+6}:{t+7}], v[{Y+2+4*i}:{Y+3+4*i}], v[{t+2}:{t+3}]
          v_cvt_pk_bf16_f32 v{q0}, v{t}, v{t+1}
          v_cvt_pk_bf16_f32 v{q1}, v{t+2}, v{t+3}
          buffer_store_dwordx2 v[{q0}:{q1}], v{XA}, s[8:11], s7 offen sc1
        """)
        if i < 7: a(f"s_add_u32 s7, s7, {8*36864}")
    a("s_branch F_JOIN")

    a("F_OTHER:")
    a.srd(32, "wout")
    def wo_issue():
        a(f"""
          s_mul_i32 s37, s36, 7282
          s_lshr_b32 s37, s37, 16
          s_mul_i32 s38, s37, 9
          s_sub_u32 s39, s36, s38
          s_lshl_b32 s44, s37, 2
          s_add_u32 s44, s44, s3
          s_mul_i32 s44, s44, {72*1152}
          s_lshl_b32 s45, s39, 7
          s_add_u32 s44, s44, s45
          s_mul_i32 s38, s38, 36864
          s_lshl_b32 s39, s39, 2
          s_add_u32 s39, s39, s3
          s_lshl_b32 s39, s39, 10
          s_add_u32 s38, s38, s39
          s_add_u32 s38, s38, {WOUTF}
          s_mul_i32 s45, s3, 9216
          s_add_u32 s45, s45, 81920
        """)
        for i in range(9):
            a(f"s_add_u32 m0, s45, {1024*i}\ns_nop 0")
            a(f"buffer_load_dwordx4 v245, s[32:35], s44 offen lds")
            if i < 8: a(f"s_add_u32 s44, s44, {8*1152}")
    def wo_finish():
        a("s_waitcnt vmcnt(0)\ns_barrier")
        for i in range(9):
            b1, b2 = (32*i, 32*i+16) if i < 4 else ((144+32*(i-4), 144+32*(i-4)+16) if i < 8 else (128, 272))
            r = 16 + 4*i
            a(f"ds_read_b64_tr_b16 v[{r}:{r+1}], v244 offset:{b1*128}")
            a(f"ds_read_b64_tr_b16 v[{r+2}:{r+3}], v244 offset:{b2*128}")
            if i == 4: a("s_waitcnt lgkmcnt(0)")
        a("s_waitcnt lgkmcnt(0)")
        for i in range(9):
            r = 16 + 4*i
            a(f"buffer_store_dwordx4 v[{r}:{r+3}], v3, s[8:11], s38 offen sc1")
            if i < 8: a("s_add_u32 s38, s38, 36864")
    a("""
      v_lshrrev_b32 v10, 3, v2
      v_and_b32 v11, 7, v2
      v_and_b32 v12, 6, v10
      v_xor_b32 v11, v11, v12
      v_lshlrev_b32 v11, 4, v11           ; chunk*16
      v_lshrrev_b32 v9, 2, v2
      v_lshlrev_b32 v9, 7, v9
      v_and_b32 v12, 3, v10
      v_xor_b32 v12, s3, v12
      v_lshl_add_u32 v9, v12, 5, v9
      v_and_b32 v12, 3, v2
      v_lshl_add_u32 v9, v12, 3, v9
      v_add_u32 v247, 36864, v9
      v_add_u32 v244, 81920, v9
      v_mul_u32_u24 v245, 1152, v10
      v_add_u32 v245, v245, v11
      s_mul_i32 s6, s3, 18432
      s_cmp_ge_u32 s2, 252
      s_cbranch_scc1 F_LAST
      s_cmp_lt_u32 s2, 216
      s_cbranch_scc1 F_WIN
    """)
    a.srd(12, "wmod"); a.srd(16, "c")
    MT = 73728
    a(f"""
      s_sub_u32 s4, s2, 216
      s_mov_b32 s36, s4
      s_mov_b32 s96, s4
      s_and_b32 s5, s4, 1                 ; half
      s_lshr_b32 s4, s4, 1                ; cbk
      s_mul_i32 s26, s5, 288
      v_and_b32 v6, 7, v0
      v_lshrrev_b32 v7, 3, v0
      v_add_u32 v10, s26, v7
      v_mul_u32_u24 v8, 6912, v10
      v_lshl_add_u32 v8, v6, 4, v8
      v_lshlrev_b32 v12, 1, v10
      s_add_u32 s20, s4, 27
      s_mov_b32 s21, s4
      s_add_u32 s22, s4, 18
      s_add_u32 s23, s4, 36
      s_cmp_lt_u32 s4, 9
      s_cselect_b32 s22, s22, s23
    """)
    C, T, AC = 16, 26, 36
    for i in range(9): a(f"buffer_load_ushort v{C+i}, v12, s[16:19], 0 offen offset:{64*i}")
    def mloads(r):
        b = 56 + 36*(r % 2)
        a(f"s_lshl_b32 s24, s{20+r}, 7")
        for i in range(9):
            a(f"buffer_load_dwordx4 v[{b+4*i}:{b+3+4*i}], v8, s[12:15], s24 offen")
            if i < 8: a(f"s_add_u32 s24, s24, {32*6912}")
    mloads(0)
    a(f"buffer_load_dword {NT}, {NT}, s[28:31], 0 offen sc1")
    a("s_waitcnt vmcnt(10)")
    for fmt in ("v_lshlrev_b32 v{c}, 16, v{c}", "v_mul_f32 v{t}, " + float_hex(-1.4426950408889634) + ", v{c}", "v_exp_f32 v{t}, v{t}", "v_add_f32 v{t}, 1.0, v{t}",
                "v_rcp_f32 v{t}, v{t}", "v_mul_f32 v{c}, v{c}, v{t}", "v_cvt_pk_bf16_f32 v{c}, v{c}, v{c}", "v_lshlrev_b32 v{c}, 16, v{c}"):
        for i in range(9): a(fmt.format(c=C+i, t=T+i))
    a(f"""
      v_lshlrev_b32 v13, 8, v1
      v_lshl_add_u32 v13, v6, 5, v13
      v_add_u32 v13, {MT}, v13
      v_lshlrev_b32 v14, 2, v2
      v_add_u32 v14, {MT}, v14
      v_lshlrev_b32 v15, 3, v2
      s_mul_i32 s25, s5, {3456*8}
      s_add_u32 s25, s25, {MODP}
      s_waitcnt vmcnt(0)
    """)
    check_nonce(a, "F_M", NT)
    for r in range(3):
        b = 56 + 36*(r % 2)
        if r > 0: a("s_waitcnt vmcnt(0)")
        if r < 2: mloads(r+1)
        else: wo_issue()
        for i in range(9):
            for dd in range(4):
                src = f"v{b+4*i+dd}"
                a(f"v_lshlrev_b32 v26, 16, {src}\nv_and_b32 v27, 0xffff0000, {src}")
                if i == 0: a(f"v_mul_f32 v{AC+2*dd}, v{C}, v26\nv_mul_f32 v{AC+1+2*dd}, v{C}, v27")
                else: a(f"v_fmac_f32 v{AC+2*dd}, v{C+i}, v26\nv_fmac_f32 v{AC+1+2*dd}, v{C+i}, v27")
        a("s_nop 1")
        for j in range(8): a(f"v_add_f32_dpp v{AC+j}, v{AC+j}, v{AC+j} row_ror:8 row_mask:0xf bank_mask:0xf")
        for sw in ("16", "32"):
            for j in range(8): a(f"v_mov_b32 v{44+j}, v{AC+j}")
            a("s_nop 1")
            for j in range(8): a(f"v_permlane{sw}_swap_b32 v{AC+j}, v{44+j}")
            a("s_nop 1")
            for j in range(8): a(f"v_add_f32 v{AC+j}, v{AC+j}, v{44+j}")
        a(f"""
          s_mov_b64 exec, 0xff
          ds_write_b128 v13, v[{AC}:{AC+3}] offset:{1024*r}
          ds_write_b128 v13, v[{AC+4}:{AC+7}] offset:{1024*r+16}
          s_mov_b64 exec, -1
          s_waitcnt lgkmcnt(0)
          s_barrier
          s_cmp_lg_u32 s3, {3-r}
          s_cbranch_scc1 F_MOD_N{r}
        """)
        for i in range(4): a(f"ds_read_b32 v{AC+i}, v14 offset:{1024*r + 256*i}")
        a(f"""
          s_lshl_b32 s24, s{20+r}, 9
          s_add_u32 s24, s24, s25
          s_waitcnt lgkmcnt(0)
          v_add_f32 v{AC}, v{AC}, v{AC+1}
          v_add_f32 v{AC+2}, v{AC+2}, v{AC+3}
          v_add_f32 v{AC}, v{AC}, v{AC+2}
          v_mov_b32 v{AC+1}, s42
          buffer_store_dwordx2 v[{AC}:{AC+1}], v15, s[8:11], s24 offen sc1
          s_nop 1
        F_MOD_N{r}:
        """)
        a(a.stamp(1+r))
    zero_gm()
    a(a.stamp(4))
    wo_finish()
    a("s_branch F_JOIN")
    TB = 73728
    a("F_WIN:")
    a.srd(20, "win"); a.srd(16, "ssmk")
    a(f"""
      s_sub_u32 s4, s2, 144
      s_lshr_b32 s5, s4, 3
      s_and_b32 s4, s4, 7
      s_mul_i32 s4, s4, 9
      s_add_u32 s4, s4, s5                ; unit
      s_mul_i32 s7, s3, {144*9216}
      s_lshl_b32 s5, s4, 7
      s_add_u32 s7, s7, s5
      v_mul_u32_u24 v10, 9216, v10
      v_add_u32 v11, v11, v10
      v_lshlrev_b32 v14, 4, v0
      s_lshl_b32 s5, s4, 15
    """)
    for i in range(8):
        a(f"buffer_load_dwordx4 v[16:19], v14, s[16:19], s5 offen")
        if i < 7: a("s_add_u32 s5, s5, 4096")
    for i in range(18):
        a(f"s_add_u32 m0, s6, {1024*i}\ns_nop 0")
        a(f"buffer_load_dwordx4 v11, s[20:23], s7 offen lds")
        if i < 17: a(f"s_add_u32 s7, s7, {8*9216}")
    zero_gm()
    get_nonce(a, "F_W", "v14")
    a(f"""
      v_add_u32 v7, 256, v0
      v_min_u32 v7, 287, v7
      v_lshlrev_b32 v12, 4, v0
      v_lshlrev_b32 v13, 4, v7
      s_mov_b32 s16, {MODP + 3*576*8}
      s_mov_b32 s17, {MODP + 3*576*8 + 3456*8}
      s_mov_b32 s18, {MODP + 4*576*8}
      s_mov_b32 s19, {MODP + 4*576*8 + 3456*8}
      s_mov_b32 s43, 0
    F_WG_POLL:
    """)
    for h in range(2):
        for i in range(4): a(f"buffer_load_dwordx4 v[{16+16*h+4*i}:{19+16*h+4*i}], v{12+h}, s[8:11], s{16+i} offen sc1")
    a("s_waitcnt vmcnt(0)\nv_xor_b32 v14, s42, v17")
    for r_ in range(19, 48, 2): a(f"v_xor_b32 v15, s42, v{r_}\nv_or_b32 v14, v14, v15")
    a(f"""
      v_cmp_ne_u32 vcc, 0, v14
      s_add_u32 s43, s43, 1
      s_cmp_ge_u32 s43, 0x80000
      s_cbranch_scc1 F_WG_GO
      s_nop 2
      s_cbranch_vccz F_WG_GO
      s_sleep {SLP}
      s_branch F_WG_POLL
    F_WG_GO:
    """)
    for h in range(2):
        b = 16 + 16*h; idx = ["v0", "v7"][h]
        a(f"""
          v_add_f32 v{b}, v{b}, v{b+4}
          v_add_f32 v{b+2}, v{b+2}, v{b+6}
          v_add_f32 v{b+8}, v{b+8}, v{b+12}
          v_add_f32 v{b+10}, v{b+10}, v{b+14}
          v_cvt_pk_bf16_f32 v{b}, v{b}, v{b+2}
          v_cvt_pk_bf16_f32 v{b+8}, v{b+8}, v{b+10}
          v_and_b32 v{b+9}, 0xffff0000, v{b+8}
          v_lshlrev_b32 v{b+8}, 16, v{b+8}
          v_add_f32 v{b+8}, 1.0, v{b+8}
          v_add_f32 v{b+9}, 1.0, v{b+9}
          v_cvt_pk_bf16_f32 v{b+8}, v{b+8}, v{b+9}
          v_and_b32 v{b+9}, 0xffff0000, v{b+8}
          v_lshlrev_b32 v{b+8}, 16, v{b+8}
          v_lshlrev_b32 v13, 3, {idx}
          v_lshlrev_b32 v14, 2, {idx}
          v_add_u32 v13, {TB}, v13
          v_add_u32 v14, {TB+3072}, v14
          ds_write_b64 v13, v[{b+8}:{b+9}]
          ds_write_b32 v14, v{b}
        """)
    a(f"""
      {a.stamp(1)}
      s_lshl_b32 s16, s4, 2
      s_add_u32 s16, s16, s3              ; fc
      s_cmp_ge_u32 s16, 144
      s_cselect_b32 s17, 144, 0
      s_cselect_b32 s18, 0, {18*9216}
      s_cselect_b32 s23, 1, 0             ; is z2
      s_sub_u32 s26, s16, s17             ; fcl
      s_mul_i32 s19, s26, 7282
      s_lshr_b32 s19, s19, 16             ; nt
      s_mul_i32 s20, s19, 9
      s_sub_u32 s20, s26, s20             ; j
      s_mul_i32 s19, s19, {36*9216}
      s_lshl_b32 s20, s20, 10
      s_add_u32 s19, s19, s20
      s_add_u32 s19, s19, s18
      s_add_u32 s27, s19, {WINF}
      v_lshlrev_b32 v12, 4, v5
      v_add_u32 v12, {TB}, v12
      v_lshlrev_b32 v13, 3, v5
      v_add_u32 v13, {TB+3072}, v13
      v_mov_b32 v14, 0
      v_mov_b32 v15, 0
      s_mov_b32 s21, 0x3f803f80
      s_waitcnt lgkmcnt(0)
      s_barrier
      {a.stamp(2)}
      s_lshr_b32 s36, s4, 1
      s_add_u32 s36, s36, 48
      s_bitcmp1_b32 s4, 0
      s_cselect_b32 s36, 72, s36
      s_sub_u32 s96, s4, 8
      s_cmp_lt_u32 s4, 44
      s_cselect_b32 s96, 64, s96
      s_cmp_ge_u32 s36, 72
      s_cbranch_scc1 F_WIN_R
    """)
    wo_issue()
    a("F_WIN_R:")
    def rd(ks):
        b = 16 + 16*(ks % 3); base = "v9" if ks < 9 else "v247"; k9 = ks % 9
        a(f"""
          ds_read_b64_tr_b16 v[{b}:{b+1}], {base} offset:{4096*k9}
          ds_read_b64_tr_b16 v[{b+2}:{b+3}], {base} offset:{4096*k9+2048}
          ds_read_b128 v[{b+4}:{b+7}], v12 offset:{128*ks}
          ds_read_b128 v[{b+8}:{b+11}], v12 offset:{128*ks+64}
          ds_read_b64 v[{b+12}:{b+13}], v13 offset:{64*ks}
          ds_read_b64 v[{b+14}:{b+15}], v13 offset:{64*ks+32}
        """)
    if Asm.STAMPS: a("s_waitcnt lgkmcnt(0)")
    rd(0); rd(1)
    for ks in range(18):
        b = 16 + 16*(ks % 3); t = 64; o = 72 + 4*(ks % 2)
        if ks + 2 < 18:
            a("s_waitcnt lgkmcnt(6)"); rd(ks+2)
        else: a(f"s_waitcnt lgkmcnt({6 if ks + 1 < 18 else 0})")
        for dd in range(4):
            a(f"v_lshlrev_b32 v{t+2*dd}, 16, v{b+dd}\nv_and_b32 v{t+1+2*dd}, 0xffff0000, v{b+dd}")
        for dd in range(4): a(f"v_dot2c_f32_bf16 v15, v{b+dd}, v{b+12+dd}")
        for dd in range(4): a(f"v_pk_mul_f32 v[{t+2*dd}:{t+1+2*dd}], v[{t+2*dd}:{t+1+2*dd}], v[{b+4+2*dd}:{b+5+2*dd}]")
        for dd in range(4): a(f"v_cvt_pk_bf16_f32 v{o+dd}, v{t+2*dd}, v{t+1+2*dd}")
        a(f"buffer_store_dwordx4 v[{o}:{o+3}], v3, s[8:11], s27 offen sc1")
        for dd in range(4): a(f"v_dot2c_f32_bf16 v14, s21, v{o+dd}")
        if ks < 17: a("s_add_u32 s27, s27, 9216")
    a("s_nop 2")
    for sw in ("16", "32"):
        a(f"""
          v_mov_b32 v16, v14
          v_mov_b32 v17, v15
          s_nop 1
          v_permlane{sw}_swap_b32 v14, v16
          v_permlane{sw}_swap_b32 v15, v17
          s_nop 1
          v_add_f32 v14, v14, v16
          v_add_f32 v15, v15, v17
        """)
    a(f"""
      {a.stamp(3)}
      v_lshlrev_b32 v16, 2, v4
      v_lshlrev_b32 v17, 3, v4
      s_mov_b64 exec, 0xffff
      s_cmp_eq_u32 s23, 1
      s_cbranch_scc1 F_WIN_Z2
      s_lshl_b32 s16, s26, 6
      s_add_u32 s16, s16, {UV1}
      buffer_store_dword v14, v16, s[8:11], s16 offen sc1
      s_add_u32 s16, s16, 9216
      buffer_store_dword v15, v16, s[8:11], s16 offen sc1
      s_branch F_WIN_E
    F_WIN_Z2:
      s_lshl_b32 s16, s26, 7
      s_add_u32 s16, s16, {UV2}
      buffer_store_dwordx2 v[14:15], v17, s[8:11], s16 offen sc1
    F_WIN_E:
      s_mov_b64 exec, -1
      s_cmp_ge_u32 s36, 72
      s_cbranch_scc1 F_JOIN
      s_branch F_WO_F
    F_LAST:
    """)
    zero_gm()
    a("s_mov_b32 s42, 0\ns_sub_u32 s36, s2, 216\nF_WO:\ns_barrier")
    wo_issue()
    a("F_WO_F:")
    wo_finish()
    a("s_add_u32 s36, s36, 4\ns_cmp_lt_u32 s36, 48\ns_cbranch_scc1 F_WO\ns_cmp_lg_u32 s42, 0\ns_cbranch_scc1 F_JOIN")
    get_nonce(a, "F_L", "v14")
    a("F_JOIN:")
    a(a.stamp(6))
```

```python
import sys
from gen_common import *
parts = sys.argv[2].split(",") if len(sys.argv) > 2 else ["f","gm"]
a = Asm()
Asm.STAMPS = len(sys.argv) > 3 and sys.argv[3] == 'stamp'
hdr = open("adaLN_cond__ssm_conv_h3__mixer_gmlp__prompt.s.ref").read().split("; Override launch")[0]
a.raw(hdr.rstrip())
launch = {}; gens = {}
try:
    from gen_g import *
    launch.update(G_LAUNCH); gens.update(G_GENS)
except ImportError:
    pass
from gen_m import *
launch["gm"] = f"; @launch kernel=gm_kernel grid=(256,1,1) block=(256,1,1) lds=163840"
gens["gm"] = gen_gm
from gen_f import *
launch["f"] = f"; @launch kernel=f_kernel grid=({F_GRID},1,1) block=(512,1,1) lds={F_LDS}"
gens["f"] = gen_f
from gen_s import gen_front, KNAME
def gen_single(a):
    gen_front(a); gen_gm(a, merged=True)
launch["s"] = f"; @launch kernel={KNAME} grid=(256,1,1) block=(256,1,1) lds=163840"
launch["s1"] = f"; @launch grid=(256,1,1) block=(256,1,1) lds=163840"
gens["s"] = gens["s1"] = gen_single
for p in parts: a.raw(launch[p])
a.raw('.amdgcn_target "amdgcn-amd-amdhsa--gfx950"')
a.raw("""; One persistent launch, 256 workgroups (one per CU) x 4 waves.  Generated by my own python scripts.
; s_sleep appears only as back-off inside the bounded polls.""")
for p in parts: gens[p](a)
open(sys.argv[1], "w").write("\n".join(a.L) + "\n")
```

```python
from gen_common import *
from gen_g import VM, WAIT, resolve, emit
from gen_f import poll, get_nonce, check_nonce, CH_LDS, KCS, URO, URS, YO, YS, QO, BIG, FU, FH2
import os
X = os.environ.get('X', '').split(',')
FD = FLF + 768*128
STL = QO + 18432
L0, NT = "v250", "v251"
KNAME = "adaLN_cond__ssm_conv_h3__mixer_gmlp__prompt_kernel"

def red32x2(a, r0, r1, t0, t1):
    for op in ("quad_perm:[1,0,3,2]", "quad_perm:[2,3,0,1]", "row_half_mirror", "row_mirror"):
        a(f"s_nop 0\nv_add_f32_dpp {r0}, {r0}, {r0} {op} row_mask:0xf bank_mask:0xf\nv_add_f32_dpp {r1}, {r1}, {r1} {op} row_mask:0xf bank_mask:0xf")
    a(f"""
      v_mov_b32 {t0}, {r0}
      v_mov_b32 {t1}, {r1}
      s_nop 1
      v_permlane16_swap_b32 {r0}, {t0}
      v_permlane16_swap_b32 {r1}, {t1}
      s_nop 1
      v_add_f32 {r0}, {r0}, {t0}
      v_add_f32 {r1}, {r1}, {t1}
    """)

def gen_front(a):
    a.begin(KNAME)
    a(f"s_cmp_ge_u32 s2, 256\ns_cbranch_scc1 GM_END")
    a(a.stamp(0))
    a.load_args()
    a("""
      s_memrealtime s[40:41]
      s_mov_b32 s96, 64
      v_lshrrev_b32 v1, 6, v0
      v_and_b32 v2, 63, v0                ; lane
      v_readfirstlane_b32 s3, v1          ; wave
      v_lshlrev_b32 v3, 4, v2             ; lane*16
      v_and_b32 v4, 15, v2                ; l&15
      v_lshrrev_b32 v5, 4, v2             ; g
      s_and_b32 s4, s2, 7
      s_mul_i32 s4, s4, 18
      s_lshr_b32 s5, s2, 3
      s_add_u32 s4, s4, s5
      s_waitcnt lgkmcnt(0)
    """)
    a.srd(8, "ws"); a.srd(28, "dbg", 256)
    a(f"v_cmp_eq_u32 vcc, 0, v2\nv_mov_b32 {L0}, {BIG}\nv_mov_b32 {NT}, 0\nv_cndmask_b32 {L0}, {L0}, 0, vcc")
    a(f"""
      s_or_b32 s5, s2, s3
      s_cmp_lg_u32 s5, 0
      s_cbranch_scc1 F_NOTAG
      s_mul_i32 s41, s41, 0x9e3779b1
      s_xor_b32 s40, s40, s41
      s_or_b32 s40, s40, 1
      v_mov_b32 v8, s40
      buffer_store_dword v8, {L0}, s[28:31], 0 offen sc1
    F_NOTAG:
      s_cmp_ge_u32 s2, 144
      s_cbranch_scc1 F_OTHER
    """)
    def zero_gm():
        a(f"""
          v_mov_b32 v248, 0
          v_lshlrev_b32 v249, 2, v0
          s_lshl_b32 s46, s2, 10
          s_add_u32 s46, s46, {ST2}
          buffer_store_dword v248, v249, s[8:11], s46 offen sc1
          s_lshl_b32 s46, s2, 2
          s_add_u32 s46, s46, s3
          s_lshl_b32 s46, s46, 7
          s_add_u32 s46, s46, {FLB}
          buffer_store_dword v248, {L0}, s[8:11], s46 offen sc1
          s_add_u32 s46, s46, {FLP-FLB}
          buffer_store_dword v248, {L0}, s[8:11], s46 offen sc1
        """)
    a(f"""
      s_and_b32 s5, s4, 15                ; rb
      s_lshr_b32 s6, s4, 4                ; cb
      v_lshrrev_b32 v6, 5, v0
      v_and_b32 v7, 31, v0                ; cp
      s_lshl_b32 s7, s5, 7
      v_lshl_add_u32 v8, v6, 4, s7        ; s0
      s_lshl_b32 s7, s6, 7
      v_lshl_add_u32 v9, v7, 2, s7
      v_mul_u32_u24 v11, 1152, v8
      v_add_u32 v11, v11, v9              ; row s0
      v_subrev_u32 v10, 4608, v11         ; row s0-4
      v_add_u32 v12, 4608, v11
      v_add_u32 v13, 9216, v11
      v_add_u32 v14, 13824, v11
      v_lshlrev_b32 v15, 2, v9
    """)
    a.srd(12, "k"); a.srd(16, "v"); a.srd(20, "shk"); a.srd(24, "q"); a.srd(32, "ssmk")
    KR, VR, SQ, SH, KU, VU, RES, PK = 20, 40, 224, 56, 64, 104, 136, 168
    seq = [VM("buffer_load_dwordx4 v[16:19], v15, s[20:23], 0 offen", "sh")]
    for i in range(1, 20):
        seq.append(VM(f"buffer_load_dword v{KR+i}, v{10+i//4}, s[12:15], 0 offen offset:{1152*(i%4)}", ("k", i)))
        if i >= 4: seq.append(VM(f"buffer_load_dword v{VR+i-4}, v{10+i//4}, s[16:19], 0 offen offset:{1152*(i%4)}", ("v", i)))
    seq.append(VM(f"buffer_load_dword {NT}, {NT}, s[28:31], 0 offen sc1", "nt"))
    seq += f"""
      s_mul_i32 s38, s3, {CH_LDS}
      s_lshl_b32 s7, s4, 2
      s_add_u32 s7, s7, s3
      s_lshl_b32 s44, s7, 12
      s_add_u32 s45, s44, {UR}
      v_lshlrev_b32 v13, 1, v6
      v_sub_u32 v13, 15, v13
      v_and_b32 v11, 7, v7
      v_xor_b32 v13, v13, v11
      v_lshlrev_b32 v13, 4, v13
      v_lshl_add_u32 v13, v7, 9, v13
      v_add_u32 v13, {YO}, v13
      v_xor_b32 v10, 16, v13
      s_lshl_b32 s46, s4, 4
      s_lshl_b32 s47, s3, 2
      s_add_u32 s46, s46, s47
      v_lshrrev_b32 v14, 5, v2
      v_add_u32 v15, s46, v14
      v_mul_u32_u24 v15, 1152, v15
      v_lshl_add_u32 v15, v7, 2, v15""".split("\n")
    def kcopy(t):
        return [f"s_add_u32 m0, s38, {t*KCS + 60 - 4*t}", "s_nop 0"] + [VM(f"buffer_load_dwordx4 v3, s[32:35], s44 offen offset:{1024*i} lds", ("K", t, i)) for i in range(4)]
    def half(h):
        o = []
        ks = range(1, 12) if h == 0 else range(12, 20)
        for i in ks: o += [f"v_lshlrev_b32 v{KU+2*i}, 16, v{KR+i}", f"v_and_b32 v{KU+1+2*i}, 0xffff0000, v{KR+i}"]
        for i in range(8*h, 8*h+8): o += [f"v_lshlrev_b32 v{VU+2*i}, 16, v{VR+i}", f"v_and_b32 v{VU+1+2*i}, 0xffff0000, v{VR+i}"]
        for i in range(8*h, 8*h+8):
            d = f"v[{RES+2*i}:{RES+1+2*i}]"
            kk = lambda j: f"v[{KU+2*(i+4-j)}:{KU+1+2*(i+4-j)}]"
            o.append(f"v_pk_mul_f32 {d}, {kk(3)}, v[{SH+6}:{SH+7}]")
            for j in (2, 1, 0): o.append(f"v_pk_fma_f32 {d}, {kk(j)}, v[{SH+2*j}:{SH+1+2*j}], {d}")
            o.append(f"v_pk_mul_f32 {d}, {d}, v[{VU+2*i}:{VU+1+2*i}]")
        for ch in range(2):
            p = PK + 8*h + 4*ch
            for dd in range(4): o.append(f"v_cvt_pk_bf16_f32 v{p+dd}, v{RES+2*(8*h+7-2*dd)+ch}, v{RES+2*(8*h+6-2*dd)+ch}")
            o.append(f"ds_write_b128 {'v13' if h == 0 else 'v10'}, v[{p}:{p+3}] offset:{ch*256}")
        return o
    seq.append(WAIT([("v", 11)]))
    for j in range(4):
        op = "v_lshlrev_b32 {d}, 16, {s}" if j % 2 == 0 else "v_and_b32 {d}, 0xffff0000, {s}"
        seq += [op.format(d=f"v{SH+2*j}", s=f"v{16+j//2}"), op.format(d=f"v{SH+1+2*j}", s=f"v{18+j//2}")]
    seq += half(0)
    seq += [WAIT([("v", 19)]), a.stamp(1)]
    sq = [VM(f"buffer_load_dword v{SQ+9*r+i}, v15, s[24:27], 0 offen offset:{128*i + 2304*r}", ("sq", r, i)) for r in range(2) for i in range(9)]
    seq += interleave(half(1), sq + kcopy(0))
    seq += f"""
      v_lshrrev_b32 v11, 4, v0
      v_xor_b32 v12, v4, v6
      v_lshlrev_b32 v12, 4, v12
      v_lshl_add_u32 v12, v11, 8, v12
      v_add_u32 v12, {YO}, v12
      v_lshlrev_b32 v11, 12, v11
      v_lshl_add_u32 v11, v4, 4, v11
      s_lshl_b32 s46, s6, 18
      s_sub_u32 s47, 15, s5
      s_lshl_b32 s47, s47, 8
      s_add_u32 s46, s46, s47
      s_add_u32 s46, s46, {UR}
      s_waitcnt lgkmcnt(0)
      s_barrier""".split("\n")
    for i in range(4): seq.append(f"ds_read_b128 v[{60+4*i}:{63+4*i}], v12 offset:{4096*i}")
    for i in range(4):
        seq += [f"s_waitcnt lgkmcnt({3-i})", VM(f"buffer_store_dwordx4 v[{60+4*i}:{63+4*i}], v11, s[8:11], s46 offen sc1", ("ur", i))]
        if i < 3: seq.append(f"s_add_u32 s46, s46, {16*4096}")
    for t in range(1, 4): seq += kcopy(t)
    seq += f"""
      v_lshrrev_b32 v8, 1, v7
      v_and_b32 v9, 7, v8
      s_lshl_b32 s7, s3, 1
      v_xor_b32 v9, s7, v9
      v_lshlrev_b32 v8, 7, v8
      v_lshl_add_u32 v8, v14, 3, v8
      v_and_b32 v10, 1, v7
      v_lshl_add_u32 v8, v10, 2, v8
      v_add_u32 v8, {QO}, v8
      v_lshl_add_u32 v10, v9, 4, v8
      v_xor_b32 v9, 1, v9
      v_lshl_add_u32 v11, v9, 4, v8""".split("\n")
    seq.append(WAIT([("sq", 1, 8)]))
    U = [80, 100]
    for r in range(2):
        for i in range(9): seq.append(f"ds_write_b32 v{10+r}, v{SQ+9*r+i} offset:{2048*i}")
        for i in range(9): seq += [f"v_lshlrev_b32 v{U[r]+2*i}, 16, v{SQ+9*r+i}", f"v_and_b32 v{U[r]+1+2*i}, 0xffff0000, v{SQ+9*r+i}"]
        seq.append("s_waitcnt lgkmcnt(0)")
    M_ = [16, 18]; R_ = [20, 22]
    for r in range(2):
        seq.append(f"v_pk_add_f32 v[{M_[r]}:{M_[r]+1}], v[{U[r]}:{U[r]+1}], v[{U[r]+2}:{U[r]+3}]")
        for i in range(2, 9): seq.append(f"v_pk_add_f32 v[{M_[r]}:{M_[r]+1}], v[{M_[r]}:{M_[r]+1}], v[{U[r]+2*i}:{U[r]+1+2*i}]")
    seq += ["v_add_f32 v16, v16, v17", "v_add_f32 v18, v18, v19", WAIT([("ur", 3)])]
    resolve(seq); emit(a, seq)
    check_nonce(a, "F_C", NT)
    a(f"""
      {a.stamp(2)}
      v_mov_b32 v24, s42
      s_lshr_b32 s7, s44, 5
      s_add_u32 s7, s7, {FU}
      buffer_store_dword v24, {L0}, s[8:11], s7 offen sc1
    """)
    red32x2(a, "v16", "v18", "v17", "v19")
    for r in range(2):
        a(f"v_mul_f32 v{M_[r]}, {float_hex(1.0/576)}, v{M_[r]}")
        for i in range(9): a(f"v_pk_add_f32 v[{U[r]+2*i}:{U[r]+1+2*i}], v[{U[r]+2*i}:{U[r]+1+2*i}], v[{M_[r]}:{M_[r]+1}] op_sel_hi:[1,0] neg_lo:[0,1] neg_hi:[0,1]")
        a(f"v_pk_mul_f32 v[{R_[r]}:{R_[r]+1}], v[{U[r]}:{U[r]+1}], v[{U[r]}:{U[r]+1}]")
        for i in range(1, 9): a(f"v_pk_fma_f32 v[{R_[r]}:{R_[r]+1}], v[{U[r]+2*i}:{U[r]+1+2*i}], v[{U[r]+2*i}:{U[r]+1+2*i}], v[{R_[r]}:{R_[r]+1}]")
    a("v_add_f32 v20, v20, v21\nv_add_f32 v22, v22, v23\ns_nop 0")
    red32x2(a, "v20", "v22", "v21", "v23")
    a(f"""
      v_mov_b32 v21, {float_hex(1e-5)}
      v_mov_b32 v23, {float_hex(1e-5)}
      v_fmac_f32 v21, {float_hex(1.0/576)}, v20
      v_fmac_f32 v23, {float_hex(1.0/576)}, v22
      v_rsq_f32 v20, v21
      v_rsq_f32 v22, v23
      s_lshl_b32 s7, s3, 5
      s_add_u32 s7, s7, {STL}
      v_lshl_add_u32 v8, v14, 3, s7
      v_mul_f32 v21, -v16, v20
      v_mul_f32 v23, -v18, v22
      ds_write_b64 v8, v[20:21]
      ds_write_b64 v8, v[22:23] offset:16
      v_lshrrev_b32 v10, 3, v0            ; cg' (+32 i)
      v_and_b32 v11, 7, v2
      v_xor_b32 v12, v11, v10
      v_and_b32 v12, 7, v12
      v_lshlrev_b32 v12, 4, v12
      v_lshl_add_u32 v12, v10, 7, v12
      v_add_u32 v12, {QO}, v12
      v_lshlrev_b32 v10, 14, v10
      v_lshl_add_u32 v10, v11, 4, v10
      s_lshl_b32 s47, s4, 7
      s_add_u32 s46, s47, {ST1}
      s_add_u32 s47, s47, {QP}
      s_waitcnt lgkmcnt(0)
      s_barrier
      s_cmp_ge_u32 s4, 128
      s_cbranch_scc1 F_Q_SKIP
    """)
    for i in range(4): a(f"ds_read_b128 v[{60+4*i}:{63+4*i}], v12 offset:{4096*i}")
    for i in range(4):
        a(f"s_waitcnt lgkmcnt({3-i})")
        a(f"buffer_store_dwordx4 v[{60+4*i}:{63+4*i}], v10, s[8:11], s47 offen sc1")
        a(f"s_add_u32 s47, s47, {32*16384}")
    a(f"""
      s_cmp_eq_u32 s3, 3
      s_cbranch_scc1 F_Q_SKIP
      s_cmp_eq_u32 s3, 2
      s_cbranch_scc1 F_Q_ST
      ds_read_b128 v[76:79], v12 offset:16384
      s_waitcnt lgkmcnt(0)
      buffer_store_dwordx4 v[76:79], v10, s[8:11], s47 offen sc1
      s_branch F_Q_SKIP
    F_Q_ST:
      v_lshlrev_b32 v11, 4, v11
      v_add_u32 v12, {STL}, v11
      ds_read_b128 v[76:79], v12
      s_mov_b64 exec, 0xff
      s_waitcnt lgkmcnt(0)
      buffer_store_dwordx4 v[76:79], v11, s[8:11], s46 offen sc1
      s_mov_b64 exec, -1
    F_Q_SKIP:
    """)
    zero_gm()
    p = a.ptr("ssmD")
    Q, STT, MD, HP, XA, YA = 176, 192, 208, 220, 222, 223
    a(f"""
      s_lshl_b32 s7, s4, 3
      s_load_dwordx2 s[20:21], s[{p}:{p+1}], s7
      s_lshl_b32 s7, s6, 6
      s_and_b32 s22, s4, 3
      s_add_u32 s7, s7, s22
      v_lshl_add_u32 v14, v4, 2, s7
      v_lshlrev_b32 v14, 7, v14
      v_add_u32 v14, {FU}, v14
      v_mov_b32 v8, 0
      v_mov_b32 v9, 0
      v_mov_b32 v10, 0
      v_mov_b32 v11, 0
      v_mul_u32_u24 v12, {KCS}, v5
      v_lshl_add_u32 v12, v4, 2, v12
      v_add_u32 v12, s38, v12
      v_add_u32 v13, v4, v5
      v_lshrrev_b32 v16, 5, v2
      v_mul_u32_u24 v16, {URS}, v16
      v_lshl_add_u32 v16, v7, 4, v16
      v_add_u32 v16, s38, v16
      v_cmp_gt_u32 vcc, 15, v13
      s_and_saveexec_b64 s[46:47], vcc
      ds_write_b32 v12, v8
      s_mov_b64 exec, s[46:47]
      v_cmp_gt_u32 vcc, 28, v7
      s_and_saveexec_b64 s[46:47], vcc
      ds_write_b128 v16, v[8:11] offset:{URO+4096}
      s_mov_b64 exec, s[46:47]
      v_and_b32 v12, 3, v4
      v_mul_u32_u24 v12, {KCS}, v12
      v_lshrrev_b32 v13, 2, v4
      v_add_u32 v13, v13, v5
      v_lshl_add_u32 v12, v13, 4, v12
      v_add_u32 v12, s38, v12
      v_lshrrev_b32 v13, 3, v4
      v_mul_u32_u24 v13, {URS}, v13
      v_lshl_add_u32 v13, v5, 4, v13
      v_and_b32 v16, 7, v4
      v_lshlrev_b32 v16, 6, v16
      v_sub_u32 v13, v13, v16
      s_add_u32 s7, s38, {URO + 448}
      v_add_u32 v13, s7, v13
      v_lshrrev_b32 v15, 2, v2
      v_lshlrev_b32 v15, 4, v15
      v_and_b32 v16, 3, v2
      s_lshl_b32 s7, s3, 2
      v_add3_u32 v15, v15, v16, s7
      v_lshlrev_b32 v15, 7, v15
      v_add_u32 v15, {FH2}, v15
      v_bfe_u32 v17, v2, 3, 2
      v_min_u32 v17, 2, v17
      v_mul_u32_u24 v17, 576, v17
      v_bfe_u32 v18, v2, 2, 1
      v_mul_u32_u24 v18, 3456, v18
      s_lshl_b32 s7, s4, 2
      v_add3_u32 v16, v16, v17, v18
      v_add_u32 v16, s7, v16
      v_lshlrev_b32 v16, 3, v16
      v_add_u32 v16, {MODP}, v16
      v_cmp_gt_u32 vcc, 32, v2
      v_lshlrev_b32 v{HP+1}, 3, v0        ; t*8
      v_mul_u32_u24 v{YA}, 144, v6
      v_cndmask_b32 v{HP}, v16, v15, vcc
      v_and_b32 v15, 24, v0
      v_and_b32 v16, 1, v0
      v_lshl_add_u32 v15, v16, 2, v15
      v_bfe_u32 v16, v0, 1, 2
      v_add_u32 v15, v15, v16
      v_lshl_add_u32 v{YA}, v15, 2, v{YA}
      v_add_u32 v{YA}, {YO}, v{YA}
      v_mul_u32_u24 v{XA}, 36864, v6
      v_bfe_u32 v15, v0, 2, 1
      v_mul_u32_u24 v15, 18432, v15
      v_add_u32 v{XA}, v{XA}, v15
      v_bfe_u32 v15, v0, 3, 2
      v_lshl_add_u32 v{XA}, v15, 5, v{XA}
      v_and_b32 v15, 3, v0
      v_lshl_add_u32 v{XA}, v15, 3, v{XA}
      v_and_b32 v6, 7, v4
      v_mul_u32_u24 v6, 144, v6
      v_lshl_add_u32 v6, v5, 5, v6
      v_lshrrev_b32 v15, 3, v4
      v_lshl_add_u32 v6, v15, 4, v6
      s_mul_i32 s7, s3, {YS}
      s_add_u32 s7, s7, {YO}
      v_add_u32 v6, s7, v6
      s_lshl_b32 s36, s4, 14
      s_add_u32 s36, s36, {QP}
      s_mov_b32 s37, {ST1}
      s_waitcnt lgkmcnt(0)
      s_cmp_ge_u32 s3, 2
      s_cselect_b32 s7, s21, s20
      s_and_b32 s22, s3, 1
      s_lshl_b32 s22, s22, 4
      s_lshr_b32 s7, s7, s22
      s_and_b32 s7, s7, 0xffff
      v_mov_b32 v15, s7
      v_lshl_add_u32 v16, v5, 2, v4
    """)
    for dd in range(4):
        a(f"v_cmp_eq_u32 vcc, {15-dd}, v16\ns_nop 1\nv_cndmask_b32 v{8+dd}, 0, v15, vcc")
    ACC = 16; FR = [48, 112]
    def reads(buf, r, which="AB"):
        out = []
        for i in range(8):
            if "B" in which: out.append(f"ds_read_b128 v[{FR[buf]+32+4*i}:{FR[buf]+35+4*i}], v13 offset:{64*r + 512*(7-i)}")
            if "A" in which: out.append(f"ds_read_b128 v[{FR[buf]+4*i}:{FR[buf]+3+4*i}], v12 offset:{64*r + 512*i}")
        return out
    def mfmas(buf):
        out = []
        for p_ in range(8):
            for q_ in range(8 - p_):
                j = p_ + q_
                out.append(f"v_mfma_f32_16x16x32_bf16 v[{ACC+4*j}:{ACC+4*j+3}], v[{FR[buf]+4*p_}:{FR[buf]+4*p_+3}], v[{FR[buf]+32+4*q_}:{FR[buf]+35+4*q_}], v[{ACC+4*j}:{ACC+4*j+3}]")
        return out
    a(f"""
      s_waitcnt vmcnt(0)
      s_barrier
      s_cmp_lg_u32 s3, 1
      s_cbranch_scc1 F_H_NOF
      s_lshl_b32 s7, s4, 7
      s_add_u32 s7, s7, {FH2}
      buffer_store_dword v24, {L0}, s[8:11], s7 offen offset:4 sc1
    F_H_NOF:
      s_cmp_lg_u32 s3, 0
      s_cbranch_scc1 F_U_GO
    """)
    poll(a, "F_U", "v14", "v15")
    a("s_barrier")
    a(a.stamp(3))
    UB = 112
    for i in range(4):
        a(f"buffer_load_dwordx4 v[{UB+8*i}:{UB+8*i+3}], v3, s[8:11], s45 offen offset:{1024*i} sc1")
        a(f"buffer_load_dword v{UB+8*i+4}, v3, s[8:11], s45 offen offset:{1024*i+16} sc1")
    a(f"s_add_u32 s7, s38, {URO}\nv_add_u32 v14, s7, v3\nv_cmp_eq_u32 vcc, 63, v2")
    for x in reads(0, 0, "A"): a(x)
    for i in range(4):
        b = UB + 8*i
        a(f"s_waitcnt vmcnt({6-2*i})")
        if i == 3: a(f"v_cndmask_b32 v{b+4}, v{b+4}, 0, vcc")
        a(f"ds_write_b128 v14, v[{b}:{b+3}] offset:{URS + 1024*i}")
        for d_ in range(4): a(f"v_alignbit_b32 v{144+4*i+d_}, v{b+d_+1}, v{b+d_}, 16")
        a(f"ds_write_b128 v14, v[{144+4*i}:{147+4*i}] offset:{1024*i}")
        if i == 1: a("s_waitcnt lgkmcnt(0)")
    a("s_waitcnt lgkmcnt(0)")
    a(a.stamp(4))
    for x in reads(0, 0, "B"): a(x)
    a("s_waitcnt lgkmcnt(0)")
    for q_ in range(8):
        a(f"v_mfma_f32_16x16x32_bf16 v[{ACC+4*q_}:{ACC+4*q_+3}], v[8:11], v[{FR[0]+32+4*q_}:{FR[0]+35+4*q_}], 0")
    hp = f"buffer_load_dwordx2 v[14:15], v{HP}, s[8:11], 0 offen sc1"
    a("s_mov_b32 s7, 0\nF_CLOOP:")
    for x in interleave(mfmas(0), reads(1, 1) + [hp], per=1): a(x)
    a("s_waitcnt lgkmcnt(0)")
    for x in interleave(mfmas(1), reads(0, 2), per=1): a(x)
    a(f"""
      v_add_u32 v12, 128, v12
      v_add_u32 v13, 128, v13
      s_add_u32 s7, s7, 1
      s_cmp_lt_u32 s7, 2
      s_waitcnt lgkmcnt(0)
      s_cbranch_scc1 F_CLOOP
      s_mov_b32 s43, 0
    F_HR_CHK:
      s_waitcnt vmcnt(0)
      v_cmp_ne_u32 vcc, s42, v15
      s_add_u32 s43, s43, 1
      s_cmp_ge_u32 s43, 0x80000
      s_cbranch_scc1 F_HR_GO
      s_nop 2
      s_cmp_eq_u32 vcc_lo, 0
      s_cbranch_scc1 F_HR_GO
      s_sleep {SLP}
      {hp}
      s_branch F_HR_CHK
    F_HR_GO:
    """)
    ql = []
    for i in range(8):
        ql += [f"buffer_load_dwordx2 v[{STT+2*i}:{STT+1+2*i}], v{HP+1}, s[8:11], s37 offen offset:{2048*(i%2)} sc1",
               f"buffer_load_dwordx2 v[{Q+2*i}:{Q+1+2*i}], v{HP+1}, s[8:11], s36 offen offset:{2048*(i%2)} sc1"]
        if i % 2 == 1 and i < 7: ql += ["s_add_u32 s37, s37, 4096", "s_add_u32 s36, s36, 4096"]
    def mix(r_, q_):
        o = []
        for i in range(max(len(r_), len(q_))): o += r_[i:i+1] + q_[i:i+1]
        return o
    for x in interleave(mfmas(0), mix(reads(1, 1), ql[:12]), per=1): a(x)
    a("s_waitcnt lgkmcnt(0)")
    for x in interleave(mfmas(1), mix(reads(0, 2), ql[12:]), per=1): a(x)
    a("s_waitcnt lgkmcnt(0)")
    for x in interleave(mfmas(0), reads(1, 3) + [hp], per=1): a(x)
    a("s_waitcnt lgkmcnt(0)")
    H = 48
    pre = """v_add_f32_dpp v14, v14, v14 row_shl:4 row_mask:0xf bank_mask:0xf
      v_bfe_u32 v15, v2, 3, 2
      v_cmp_eq_u32 vcc, 1, v15
      v_cvt_pk_bf16_f32 v14, v14, v14
      v_lshlrev_b32 v14, 16, v14
      v_cndmask_b32 v15, 0, 1.0, vcc
      v_add_f32 v14, v14, v15
      v_cvt_pk_bf16_f32 v14, v14, v14
      v_lshlrev_b32 v14, 16, v14
      s_nop 0""".split("\n")
    pre += [f"v_readlane_b32 s{12+i}, v14, {32 + 8*(i//4) + i%4}" for i in range(12)]
    pre += ["s_lshl_b32 s7, s4, 7", f"s_add_u32 s7, s7, {X1F}"]
    pre += [f"v_mov_b32 v{MD+8+c}, s{20+c}" for c in range(4)]
    pre += [f"v_mul_f32 v{MD+c}, s{12+c}, v{MD+8+c}" for c in range(4)] + [f"v_mul_f32 v{MD+4+c}, s{16+c}, v{MD+8+c}" for c in range(4)]
    p1 = ["s_waitcnt vmcnt(1)"]; p2 = []
    for i in range(8):
        q0, q1 = Q+2*i, Q+1+2*i
        t = H + 8*i
        p1 += [f"v_lshlrev_b32 v{t}, 16, v{q0}", f"v_and_b32 v{t+1}, 0xffff0000, v{q0}", f"v_lshlrev_b32 v{t+2}, 16, v{q1}", f"v_and_b32 v{t+3}, 0xffff0000, v{q1}"]
        p1 += [f"v_fma_f32 v{t+4+c}, v{t+c}, v{STT+2*i}, v{STT+2*i+1}" for c in range(4)]
        p2 += [f"v_pk_fma_f32 v[{t+4+c}:{t+5+c}], v[{t+4+c}:{t+5+c}], v[{MD+4+c}:{MD+5+c}], v[{MD+c}:{MD+1+c}]" for c in (0, 2)]
    for x in interleave(mfmas(1), p1): a(x)
    a(a.stamp(5))
    a("s_waitcnt vmcnt(0)\nv_cmp_ne_u32 vcc, s42, v15")
    wr = [f"ds_write_b128 v6, v[{ACC+4*j}:{ACC+4*j+3}] offset:{j*8*144}" for j in range(8)]
    for x in wr[:6]: a(x)
    a("s_cbranch_vccz F_HP_GO")
    poll(a, "F_HP", f"v{HP}", "v15", pair="v[14:15]")
    for x in wr[6:] + pre + ["s_waitcnt lgkmcnt(0)", "s_barrier"]: a(x)
    Y = 112
    def yrd(i):
        for c in range(4): a(f"ds_read_b32 v{Y+4*i+c}, v{YA} offset:{c*YS + i*8*144}")
    for i in range(3): yrd(i)
    for x in p2: a(x)
    for i in range(8):
        q0, q1 = Q+2*i, Q+1+2*i
        t = H + 8*i
        a(f"s_waitcnt lgkmcnt({min(8, 28-4*i)})")
        if i + 3 < 8: yrd(i+3)
        a(f"""
          v_pk_fma_f32 v[{t}:{t+1}], v[{t+4}:{t+5}], v[{Y+4*i}:{Y+1+4*i}], v[{t}:{t+1}]
          v_pk_fma_f32 v[{t+2}:{t+3}], v[{t+6}:{t+7}], v[{Y+2+4*i}:{Y+3+4*i}], v[{t+2}:{t+3}]
          v_cvt_pk_bf16_f32 v{q0}, v{t}, v{t+1}
          v_cvt_pk_bf16_f32 v{q1}, v{t+2}, v{t+3}
          buffer_store_dwordx2 v[{q0}:{q1}], v{XA}, s[8:11], s7 offen sc1
        """)
        if i < 7: a(f"s_add_u32 s7, s7, {8*36864}")
    a("s_branch F_JOIN")

    a("F_OTHER:")
    a.srd(32, "wout")
    def wo_issue():
        a(f"""
          s_mul_i32 s37, s36, 7282
          s_lshr_b32 s37, s37, 16
          s_mul_i32 s38, s37, 9
          s_sub_u32 s39, s36, s38
          s_lshl_b32 s44, s37, 2
          s_add_u32 s44, s44, s3
          s_mul_i32 s44, s44, {72*1152}
          s_lshl_b32 s45, s39, 7
          s_add_u32 s44, s44, s45
          s_mul_i32 s38, s38, 36864
          s_lshl_b32 s39, s39, 2
          s_add_u32 s39, s39, s3
          s_lshl_b32 s39, s39, 10
          s_add_u32 s38, s38, s39
          s_add_u32 s38, s38, {WOUTF}
          s_mul_i32 s45, s3, 9216
          s_add_u32 s45, s45, 81920
        """)
        for i in range(9):
            a(f"s_add_u32 m0, s45, {1024*i}\ns_nop 0")
            a(f"buffer_load_dwordx4 v245, s[32:35], s44 offen lds")
            if i < 8: a(f"s_add_u32 s44, s44, {8*1152}")
    def wo_finish():
        a("s_waitcnt vmcnt(0)\ns_barrier")
        for i in range(9):
            b1, b2 = (32*i, 32*i+16) if i < 4 else ((144+32*(i-4), 144+32*(i-4)+16) if i < 8 else (128, 272))
            r = 16 + 4*i
            a(f"ds_read_b64_tr_b16 v[{r}:{r+1}], v244 offset:{b1*128}")
            a(f"ds_read_b64_tr_b16 v[{r+2}:{r+3}], v244 offset:{b2*128}")
            if i == 4: a("s_waitcnt lgkmcnt(0)")
        a("s_waitcnt lgkmcnt(0)")
        for i in range(9):
            r = 16 + 4*i
            a(f"buffer_store_dwordx4 v[{r}:{r+3}], v3, s[8:11], s38 offen sc1")
            if i < 8: a("s_add_u32 s38, s38, 36864")
    a("""
      v_lshrrev_b32 v10, 3, v2
      v_and_b32 v11, 7, v2
      v_and_b32 v12, 6, v10
      v_xor_b32 v11, v11, v12
      v_lshlrev_b32 v11, 4, v11           ; chunk*16
      v_lshrrev_b32 v9, 2, v2
      v_lshlrev_b32 v9, 7, v9
      v_and_b32 v12, 3, v10
      v_xor_b32 v12, s3, v12
      v_lshl_add_u32 v9, v12, 5, v9
      v_and_b32 v12, 3, v2
      v_lshl_add_u32 v9, v12, 3, v9
      v_add_u32 v247, 36864, v9
      v_add_u32 v244, 81920, v9
      v_mul_u32_u24 v245, 1152, v10
      v_add_u32 v245, v245, v11
      s_mul_i32 s6, s3, 18432
      s_cmp_ge_u32 s2, 252
      s_cbranch_scc1 F_LAST
      s_cmp_lt_u32 s2, 216
      s_cbranch_scc1 F_WIN
    """)
    a.srd(12, "wmod"); a.srd(16, "c")
    MT = 73728
    a(f"""
      s_sub_u32 s4, s2, 216
      s_mov_b32 s36, s4
      s_mov_b32 s96, s4
      s_and_b32 s5, s4, 1                 ; half
      s_lshr_b32 s4, s4, 1                ; cbk
      s_mul_i32 s26, s5, 288
      v_and_b32 v6, 7, v0
      v_lshrrev_b32 v7, 3, v0
      v_add_u32 v10, s26, v7
      v_mul_u32_u24 v8, 6912, v10
      v_lshl_add_u32 v8, v6, 4, v8
      v_lshlrev_b32 v12, 1, v10
      s_add_u32 s20, s4, 27
      s_mov_b32 s21, s4
      s_add_u32 s22, s4, 18
      s_add_u32 s23, s4, 36
      s_cmp_lt_u32 s4, 9
      s_cselect_b32 s22, s22, s23
    """)
    C, T, AC = 16, 26, 36
    for i in range(9): a(f"buffer_load_ushort v{C+i}, v12, s[16:19], 0 offen offset:{64*i}")
    def mloads(r):
        b = 56 + 36*(r % 2)
        a(f"s_lshl_b32 s24, s{20+r}, 7")
        for i in range(9):
            a(f"buffer_load_dwordx4 v[{b+4*i}:{b+3+4*i}], v8, s[12:15], s24 offen")
            if i < 8: a(f"s_add_u32 s24, s24, {32*6912}")
    mloads(0)
    a(f"buffer_load_dword {NT}, {NT}, s[28:31], 0 offen sc1")
    a("s_waitcnt vmcnt(10)")
    for fmt in ("v_lshlrev_b32 v{c}, 16, v{c}", "v_mul_f32 v{t}, " + float_hex(-1.4426950408889634) + ", v{c}", "v_exp_f32 v{t}, v{t}", "v_add_f32 v{t}, 1.0, v{t}",
                "v_rcp_f32 v{t}, v{t}", "v_mul_f32 v{c}, v{c}, v{t}", "v_cvt_pk_bf16_f32 v{c}, v{c}, v{c}", "v_lshlrev_b32 v{c}, 16, v{c}"):
        for i in range(9): a(fmt.format(c=C+i, t=T+i))
    a(f"""
      v_lshlrev_b32 v13, 8, v1
      v_lshl_add_u32 v13, v6, 5, v13
      v_add_u32 v13, {MT}, v13
      v_lshlrev_b32 v14, 2, v2
      v_add_u32 v14, {MT}, v14
      v_lshlrev_b32 v15, 3, v2
      s_mul_i32 s25, s5, {3456*8}
      s_add_u32 s25, s25, {MODP}
      s_waitcnt vmcnt(0)
    """)
    check_nonce(a, "F_M", NT)
    for r in range(3):
        b = 56 + 36*(r % 2)
        if r > 0: a("s_waitcnt vmcnt(0)")
        if r < 2: mloads(r+1)
        else: wo_issue()
        for i in range(9):
            for dd in range(4):
                src = f"v{b+4*i+dd}"
                a(f"v_lshlrev_b32 v26, 16, {src}\nv_and_b32 v27, 0xffff0000, {src}")
                if i == 0: a(f"v_mul_f32 v{AC+2*dd}, v{C}, v26\nv_mul_f32 v{AC+1+2*dd}, v{C}, v27")
                else: a(f"v_fmac_f32 v{AC+2*dd}, v{C+i}, v26\nv_fmac_f32 v{AC+1+2*dd}, v{C+i}, v27")
        a("s_nop 1")
        for j in range(8): a(f"v_add_f32_dpp v{AC+j}, v{AC+j}, v{AC+j} row_ror:8 row_mask:0xf bank_mask:0xf")
        for sw in ("16", "32"):
            for j in range(8): a(f"v_mov_b32 v{44+j}, v{AC+j}")
            a("s_nop 1")
            for j in range(8): a(f"v_permlane{sw}_swap_b32 v{AC+j}, v{44+j}")
            a("s_nop 1")
            for j in range(8): a(f"v_add_f32 v{AC+j}, v{AC+j}, v{44+j}")
        a(f"""
          s_mov_b64 exec, 0xff
          ds_write_b128 v13, v[{AC}:{AC+3}] offset:{1024*r}
          ds_write_b128 v13, v[{AC+4}:{AC+7}] offset:{1024*r+16}
          s_mov_b64 exec, -1
          s_waitcnt lgkmcnt(0)
          s_barrier
          s_cmp_lg_u32 s3, {3-r}
          s_cbranch_scc1 F_MOD_N{r}
        """)
        for i in range(4): a(f"ds_read_b32 v{AC+i}, v14 offset:{1024*r + 256*i}")
        a(f"""
          s_lshl_b32 s24, s{20+r}, 9
          s_add_u32 s24, s24, s25
          s_waitcnt lgkmcnt(0)
          v_add_f32 v{AC}, v{AC}, v{AC+1}
          v_add_f32 v{AC+2}, v{AC+2}, v{AC+3}
          v_add_f32 v{AC}, v{AC}, v{AC+2}
          v_mov_b32 v{AC+1}, s42
          buffer_store_dwordx2 v[{AC}:{AC+1}], v15, s[8:11], s24 offen sc1
          s_nop 1
        F_MOD_N{r}:
        """)
        a(a.stamp(1+r))
    zero_gm()
    a(a.stamp(4))
    wo_finish()
    a("s_branch F_JOIN")
    TB = 73728
    a("F_WIN:")
    a.srd(20, "win"); a.srd(16, "ssmk")
    a(f"""
      s_sub_u32 s4, s2, 144
      s_lshr_b32 s5, s4, 3
      s_and_b32 s4, s4, 7
      s_mul_i32 s4, s4, 9
      s_add_u32 s4, s4, s5                ; unit
      s_mul_i32 s7, s3, {144*9216}
      s_lshl_b32 s5, s4, 7
      s_add_u32 s7, s7, s5
      v_mul_u32_u24 v10, 9216, v10
      v_add_u32 v11, v11, v10
      v_lshlrev_b32 v14, 4, v0
      s_lshl_b32 s5, s4, 15
    """)
    for i in range(8):
        a(f"buffer_load_dwordx4 v[16:19], v14, s[16:19], s5 offen")
        if i < 7: a("s_add_u32 s5, s5, 4096")
    for i in range(18):
        a(f"s_add_u32 m0, s6, {1024*i}\ns_nop 0")
        a(f"buffer_load_dwordx4 v11, s[20:23], s7 offen lds")
        if i < 17: a(f"s_add_u32 s7, s7, {8*9216}")
    zero_gm()
    get_nonce(a, "F_W", "v14")
    a(f"""
      v_add_u32 v7, 256, v0
      v_min_u32 v7, 287, v7
      v_lshlrev_b32 v12, 4, v0
      v_lshlrev_b32 v13, 4, v7
      s_mov_b32 s16, {MODP + 3*576*8}
      s_mov_b32 s17, {MODP + 3*576*8 + 3456*8}
      s_mov_b32 s18, {MODP + 4*576*8}
      s_mov_b32 s19, {MODP + 4*576*8 + 3456*8}
      s_mov_b32 s43, 0
    F_WG_POLL:
    """)
    for h in range(2):
        for i in range(4): a(f"buffer_load_dwordx4 v[{16+16*h+4*i}:{19+16*h+4*i}], v{12+h}, s[8:11], s{16+i} offen sc1")
    a("s_waitcnt vmcnt(0)\nv_xor_b32 v14, s42, v17")
    for r_ in range(19, 48, 2): a(f"v_xor_b32 v15, s42, v{r_}\nv_or_b32 v14, v14, v15")
    a(f"""
      v_cmp_ne_u32 vcc, 0, v14
      s_add_u32 s43, s43, 1
      s_cmp_ge_u32 s43, 0x80000
      s_cbranch_scc1 F_WG_GO
      s_nop 2
      s_cbranch_vccz F_WG_GO
      s_sleep {SLP}
      s_branch F_WG_POLL
    F_WG_GO:
    """)
    for h in range(2):
        b = 16 + 16*h; idx = ["v0", "v7"][h]
        a(f"""
          v_add_f32 v{b}, v{b}, v{b+4}
          v_add_f32 v{b+2}, v{b+2}, v{b+6}
          v_add_f32 v{b+8}, v{b+8}, v{b+12}
          v_add_f32 v{b+10}, v{b+10}, v{b+14}
          v_cvt_pk_bf16_f32 v{b}, v{b}, v{b+2}
          v_cvt_pk_bf16_f32 v{b+8}, v{b+8}, v{b+10}
          v_and_b32 v{b+9}, 0xffff0000, v{b+8}
          v_lshlrev_b32 v{b+8}, 16, v{b+8}
          v_add_f32 v{b+8}, 1.0, v{b+8}
          v_add_f32 v{b+9}, 1.0, v{b+9}
          v_cvt_pk_bf16_f32 v{b+8}, v{b+8}, v{b+9}
          v_and_b32 v{b+9}, 0xffff0000, v{b+8}
          v_lshlrev_b32 v{b+8}, 16, v{b+8}
          v_lshlrev_b32 v13, 3, {idx}
          v_lshlrev_b32 v14, 2, {idx}
          v_add_u32 v13, {TB}, v13
          v_add_u32 v14, {TB+3072}, v14
          ds_write_b64 v13, v[{b+8}:{b+9}]
          ds_write_b32 v14, v{b}
        """)
    a(f"""
      {a.stamp(1)}
      s_lshl_b32 s16, s4, 2
      s_add_u32 s16, s16, s3              ; fc
      s_cmp_ge_u32 s16, 144
      s_cselect_b32 s17, 144, 0
      s_cselect_b32 s18, 0, {18*9216}
      s_cselect_b32 s23, 1, 0             ; is z2
      s_sub_u32 s26, s16, s17             ; fcl
      s_mul_i32 s19, s26, 7282
      s_lshr_b32 s19, s19, 16             ; nt
      s_mul_i32 s20, s19, 9
      s_sub_u32 s20, s26, s20             ; j
      s_mul_i32 s19, s19, {36*9216}
      s_lshl_b32 s20, s20, 10
      s_add_u32 s19, s19, s20
      s_add_u32 s19, s19, s18
      s_add_u32 s27, s19, {WINF}
      v_lshlrev_b32 v12, 4, v5
      v_add_u32 v12, {TB}, v12
      v_lshlrev_b32 v13, 3, v5
      v_add_u32 v13, {TB+3072}, v13
      v_mov_b32 v14, 0
      v_mov_b32 v15, 0
      s_mov_b32 s21, 0x3f803f80
      s_waitcnt lgkmcnt(0)
      s_barrier
      {a.stamp(2)}
      s_lshr_b32 s36, s4, 1
      s_add_u32 s36, s36, 48
      s_bitcmp1_b32 s4, 0
      s_cselect_b32 s36, 72, s36
      s_sub_u32 s96, s4, 8
      s_cmp_lt_u32 s4, 44
      s_cselect_b32 s96, 64, s96
      s_cmp_ge_u32 s36, 72
      s_cbranch_scc1 F_WIN_R
    """)
    wo_issue()
    a("F_WIN_R:")
    def rd(ks):
        b = 16 + 16*(ks % 3); base = "v9" if ks < 9 else "v247"; k9 = ks % 9
        a(f"""
          ds_read_b64_tr_b16 v[{b}:{b+1}], {base} offset:{4096*k9}
          ds_read_b64_tr_b16 v[{b+2}:{b+3}], {base} offset:{4096*k9+2048}
          ds_read_b128 v[{b+4}:{b+7}], v12 offset:{128*ks}
          ds_read_b128 v[{b+8}:{b+11}], v12 offset:{128*ks+64}
          ds_read_b64 v[{b+12}:{b+13}], v13 offset:{64*ks}
          ds_read_b64 v[{b+14}:{b+15}], v13 offset:{64*ks+32}
        """)
    if Asm.STAMPS: a("s_waitcnt lgkmcnt(0)")
    rd(0); rd(1)
    for ks in range(18):
        b = 16 + 16*(ks % 3); t = 64; o = 72 + 4*(ks % 2)
        if ks + 2 < 18:
            a("s_waitcnt lgkmcnt(6)"); rd(ks+2)
        else: a(f"s_waitcnt lgkmcnt({6 if ks + 1 < 18 else 0})")
        for dd in range(4):
            a(f"v_lshlrev_b32 v{t+2*dd}, 16, v{b+dd}\nv_and_b32 v{t+1+2*dd}, 0xffff0000, v{b+dd}")
        for dd in range(4): a(f"v_dot2c_f32_bf16 v15, v{b+dd}, v{b+12+dd}")
        for dd in range(4): a(f"v_pk_mul_f32 v[{t+2*dd}:{t+1+2*dd}], v[{t+2*dd}:{t+1+2*dd}], v[{b+4+2*dd}:{b+5+2*dd}]")
        for dd in range(4): a(f"v_cvt_pk_bf16_f32 v{o+dd}, v{t+2*dd}, v{t+1+2*dd}")
        a(f"buffer_store_dwordx4 v[{o}:{o+3}], v3, s[8:11], s27 offen sc1")
        for dd in range(4): a(f"v_dot2c_f32_bf16 v14, s21, v{o+dd}")
        if ks < 17: a("s_add_u32 s27, s27, 9216")
    a("s_nop 2")
    for sw in ("16", "32"):
        a(f"""
          v_mov_b32 v16, v14
          v_mov_b32 v17, v15
          s_nop 1
          v_permlane{sw}_swap_b32 v14, v16
          v_permlane{sw}_swap_b32 v15, v17
          s_nop 1
          v_add_f32 v14, v14, v16
          v_add_f32 v15, v15, v17
        """)
    a(f"""
      {a.stamp(3)}
      v_lshlrev_b32 v16, 2, v4
      v_lshlrev_b32 v17, 3, v4
      s_mov_b64 exec, 0xffff
      s_cmp_eq_u32 s23, 1
      s_cbranch_scc1 F_WIN_Z2
      s_lshl_b32 s16, s26, 6
      s_add_u32 s16, s16, {UV1}
      buffer_store_dword v14, v16, s[8:11], s16 offen sc1
      s_add_u32 s16, s16, 9216
      buffer_store_dword v15, v16, s[8:11], s16 offen sc1
      s_branch F_WIN_E
    F_WIN_Z2:
      s_lshl_b32 s16, s26, 7
      s_add_u32 s16, s16, {UV2}
      buffer_store_dwordx2 v[14:15], v17, s[8:11], s16 offen sc1
    F_WIN_E:
      s_mov_b64 exec, -1
      s_cmp_ge_u32 s36, 72
      s_cbranch_scc1 F_JOIN
      s_branch F_WO_F
    F_LAST:
    """)
    zero_gm()
    a("s_mov_b32 s42, 0\ns_sub_u32 s36, s2, 216\nF_WO:\ns_barrier")
    wo_issue()
    a("F_WO_F:")
    wo_finish()
    a("s_add_u32 s36, s36, 4\ns_cmp_lt_u32 s36, 48\ns_cbranch_scc1 F_WO\ns_cmp_lg_u32 s42, 0\ns_cbranch_scc1 F_JOIN")
    get_nonce(a, "F_L", "v14")
    a("F_JOIN:")
    a(a.stamp(6))
```

```python
from gen_common import *
from gen_g import *
P = lambda r: f"v[{r}:{r+1}]"
BIG = 0x7fffff00

def poll_loop(a, name, loads, regs, tmp):
    a(f"s_mov_b32 s27, 0\n{name}_POLL:")
    for x in loads: a(x)
    a("s_waitcnt vmcnt(0)")
    if len(regs) == 1: a(f"v_cmp_eq_u32 vcc, 0, v{regs[0]}")
    else:
        a(f"v_min_u32 v{tmp}, v{regs[0]}, v{regs[1]}")
        for r in regs[2:]: a(f"v_min_u32 v{tmp}, v{tmp}, v{r}")
        a(f"v_cmp_eq_u32 vcc, 0, v{tmp}")
    a(f"""
      s_add_u32 s27, s27, 1
      s_cmp_ge_u32 s27, 0x80000
      s_cbranch_scc1 {name}_GO
      s_nop 2
      s_cbranch_vccz {name}_GO
      s_sleep {SLP}
      s_branch {name}_POLL
    {name}_GO:
    """)

def gen_gm(a, merged=False):
    SC = ' sc1' if merged else ''
    st0 = a.stamp
    fine2 = eval(os.environ.get('FINE2', '{}'))
    if fine2:
        phase = [0]
        a.stamp = lambda i: (st0(i) if phase[0] else "; ")
    if not merged:
        a.begin("gm_kernel")
        a("s_cmp_ge_u32 s2, 256\ns_cbranch_scc1 GM_END")
        a(a.stamp(0))
        a.load_args()
    else: a("gm_kernel:")
    tile_ids(a)
    SL = 252
    a(f"""
      s_mul_i32 s20, s5, {36*9216}
      s_add_u32 s20, s20, s7
      s_add_u32 s20, s20, {WINF}
      s_mul_i32 s21, s6, 36864
      s_add_u32 s21, s21, {X1F}           ; A soffset
      s_mul_i32 s30, s3, 12288
      s_add_u32 s30, s30, {3*36864}
      v_lshl_add_u32 v13, v2, 3, s30
      v_add_u32 v8, {18432-1024}, v1
      s_mul_i32 s28, s5, {64*9216}
      s_add_u32 s28, s28, {Z2F}
      s_lshl_b32 s29, s6, 17
      s_waitcnt lgkmcnt(0)
    """)
    if not merged: a.srd(8, "ws")
    AB, BB = 0, 144
    ACC2, ACC1, ST = 16, 88, 160
    ALDS = 3*36864
    def a_dma(ks):
        if ks >= 18: return []
        o = [f"s_add_u32 m0, s30, {(ks % 6)*2048}", "s_nop 0",
             VM(f"buffer_load_dwordx4 v1, s[8:11], s21 offen{SC} lds", ("A", ks, 0)),
             VM(f"buffer_load_dwordx4 v8, s[8:11], s21 offen offset:1024{SC} lds", ("A", ks, 1)),
             "s_add_u32 s21, s21, 1024"]
        return o
    def a_reads(ks):
        if ks >= 18: return []
        return [f"ds_read_b64 a[{AB+(ks*2+t)*4+2*h}:{AB+(ks*2+t)*4+2*h+1}], v13 offset:{(ks % 6)*2048 + t*1024 + h*512}" for t in range(2) for h in range(2)]
    def atags(ks): return [("A", ks, t) for t in range(2)] if ks < 18 else []
    def b1_group(k):
        T = (k+1)//4 + 2
        if T >= 9: return []
        p0, cnt = P0[k % 4]
        o = [f"s_add_u32 m0, s7, {(T % 3)*36864 + p0*1024}", "s_nop 0"]
        for i in range(cnt): o.append(VM(f"buffer_load_dwordx4 v1, s[8:11], s20 offen offset:{1024*i}{SC} lds", ("B", T, p0+i)))
        o.append(f"s_add_u32 s20, s20, {cnt*1024 if k % 4 != 2 else 36864 - 7168}")
        return o
    def b1_reads(k):
        return [f"ds_read_b128 a[{BB + (k%2)*36 + 4*j}:{BB + (k%2)*36 + 4*j + 3}], v{SL + (k//4) % 3} offset:{(k%4)*9216 + j*1024}" for j in range(9)]
    if not merged:
        seq = []
        seq += a_dma(0)
        for k in range(-9, -5): seq += b1_group(k)
        for ks in range(1, 4): seq += a_dma(ks)
        seq += ["s_getpc_b64 s[32:33]", "GM_PC:", "s_sub_u32 s32, s32, GM_PC-gm_kernel", "s_subb_u32 s33, s33, 0", "s_and_b32 s33, s33, 0xffff",
                "s_mov_b32 s34, GM_CODE_END-gm_kernel", "s_mov_b32 s35, 0x20000", "s_lshr_b32 s31, s2, 3", "s_lshl_b32 s31, s31, 7",
                "v_lshlrev_b32 v255, 12, v0", "v_add_u32 v255, s31, v255", VM("buffer_load_dword v11, v255, s[32:35], 0 offen", "CW")]
        resolve(seq); emit(a, seq); pre = seq; seq = []
        NPB = int(os.environ.get('NPB', '2'))
        late_pro = []
        for k in range(-5, -5+NPB): late_pro += b1_group(k)
        e0 = []
        for k in range(-5+NPB, -1): e0 += b1_group(k)
        early = {0: e0 + a_dma(4) + (a_dma(5) + b1_group(-1) if NPB >= 2 else []), 1: (a_dma(5) + b1_group(-1) if NPB < 2 else []) + a_dma(6) + b1_group(0) + b1_group(1)}
    else:
        from gen_s import FD
        from gen_f import poll
        a(f"""
          s_mul_i32 s22, s5, 9
          s_lshr_b32 s22, s22, 2
          s_add_u32 s22, s22, 36
          v_and_b32 v4, 3, v2
          v_add_u32 v4, s22, v4
          v_min_u32 v4, 71, v4
          v_mul_u32_u24 v5, 7282, v4
          v_lshrrev_b32 v5, 16, v5
          v_mul_u32_u24 v6, 9, v5
          v_sub_u32 v4, v4, v6
          v_lshl_add_u32 v4, v4, 3, v5
          v_lshlrev_b32 v4, 7, v4
          v_add_u32 v4, {FD + 144*128}, v4
          v_lshlrev_b32 v5, 7, v0
          v_add_u32 v5, {FD}, v5
          buffer_load_dword v6, v4, s[8:11], 0 offen sc1
          v_mov_b32 v7, s42
          s_lshl_b32 s22, s2, 7
          s_add_u32 s22, s22, {FD}
          s_waitcnt vmcnt(0)
          s_barrier
          s_cmp_lg_u32 s3, 0
          s_cbranch_scc1 GM_NOD
          buffer_store_dword v7, v250, s[8:11], s22 offen sc1
        GM_NOD:
          {st0(7)}
          v_cmp_ne_u32 vcc, s42, v6
        """)
        if Asm.STAMPS: a.stamp_flush2(0, 8); a(a.stamp(0))
        for x_ in ["s_getpc_b64 s[32:33]", "GM_PC:", "s_sub_u32 s32, s32, GM_PC-gm_kernel", "s_subb_u32 s33, s33, 0", "s_and_b32 s33, s33, 0xffff",
            "s_mov_b32 s34, GM_CODE_END-gm_kernel", "s_mov_b32 s35, 0x20000", "s_lshr_b32 s31, s2, 3", "s_lshl_b32 s31, s31, 7",
            "v_lshlrev_b32 v255, 12, v0", "v_add_u32 v255, s31, v255"]: a(x_)
        if 'noft' not in X:
            a.srd(16, "wsp")
            a("s_cmp_ge_u32 s96, 64\ns_cbranch_scc1 GM_NOFT\ns_lshl_b32 s96, s96, 2\ns_add_u32 s96, s96, s3\ns_lshl_b32 s96, s96, 15")
            for i in range(16):
                a(f"buffer_load_dwordx4 a[216:219], v1, s[16:19], s96 offen offset:{1024*(i%2)}")
                if i % 2 == 1: a("s_add_u32 s96, s96, 4096")
            a("GM_NOFT:")
        a("s_nop 4\ns_cbranch_vccz GM_W_GO")
        poll(a, "GM_W", "v4", "v6", slp=8)
        seq = []
        for k in range(-9, -5): seq += b1_group(k)
        seq += [VM("buffer_load_dword v6, v5, s[8:11], 0 offen sc1", "DN")]
        NPF = int(os.environ.get('NPF', '2'))
        for k in range(-5, -5+NPF): seq += b1_group(k)
        seq += [VM("buffer_load_dword v11, v255, s[32:35], 0 offen", "CW"), WAIT(["DN"]), "v_cmp_ne_u32 vcc, s42, v6", "s_nop 4", "s_cbranch_vccz GM_D_GO"]
        resolve(seq); emit(a, seq); pre = seq; seq = []
        poll(a, "GM_D", "v5", "v6", slp=int(os.environ.get('DSL', '1')))
        a("s_barrier")
        late_pro = []
        for ks in range(6): late_pro += a_dma(ks)
        emit(a, late_pro); pre = pre + late_pro; late_pro = [WAIT(atags(0))]
        rem = list(range(-5+NPF, 3))
        early = {0: [], 1: a_dma(6), 2: []}
        for i, k in enumerate(rem): early[(3*i)//len(rem)] += b1_group(k)
    a.srd(12, "ws", 64*9216, "s28"); a.srd(16, "wsp"); a.srd(36, "bsp")
    a(f"""
      v_mov_b32 v{SL}, v1
      v_add_u32 v{SL+1}, 36864, v1
      v_add_u32 v{SL+2}, {2*36864}, v1
      v_mov_b32 v4, 0x3f803f80
      v_mov_b32 v5, 0x3f803f80
      v_mov_b32 v6, 0x3f803f80
      v_mov_b32 v7, 0x3f803f80
      s_mov_b32 s40, {float_hex(C1)}
      s_mov_b32 s41, {float_hex(C1)}
      v_mov_b32 v14, {float_hex(C0)}
      v_mov_b32 v15, {float_hex(C0)}
      s_mul_i32 s22, s5, {144*8}
      s_add_u32 s22, s22, {UV2}
      v_lshlrev_b32 v9, 3, v3             ; n*8
      v_add_u32 v9, 159744, v9
      v_lshrrev_b32 v248, 2, v3
      v_lshlrev_b32 v248, 3, v248
      v_and_b32 v249, 3, v3
      v_add_u32 v248, v248, v249
      v_add_u32 v251, 4096, v1
    """)
    seq += late_pro + [WAIT(btags(0)), "s_barrier", a.stamp(1)]
    seq += a_reads(0) + b1_reads(0)
    ARD = {k_: [k_+1] for k_ in range(14)}; ARD[14] = [15]; ARD[15] = [16, 17]
    STK = {k_: [k_] for k_ in range(16)}; STK[16] = [16, 17]
    def kstep(kk, extra=[], need_extra=[]):
        ks = kk % 18; ps = kk // 18
        o = []
        need = [t_ for x in ARD.get(kk, []) for t_ in atags(x)] + need_extra
        bar = (kk % 4 == 3 and kk < 35)
        if bar: need = need + btags((kk+1)//4)
        o.append(WAIT(need, lgkm=True))
        if bar: o.append("s_barrier")
        m = []
        for j in range(9):
            for t in range(2):
                A = f"a[{AB+(ks*2+t)*4}:{AB+(ks*2+t)*4+3}]"
                B = f"a[{BB+(kk%2)*36+4*j}:{BB+(kk%2)*36+4*j+3}]"
                r = (ACC2 if ps == 0 else ACC1) + (j*2+t)*4
                C = "0" if ks == 0 else f"v[{r}:{r+3}]"
                m.append(f"{MF} v[{r}:{r+3}], {A}, {B}, {C}" if ps == 0 else f"{MF} v[{r}:{r+3}], {B}, {A}, {C}")
        sm = []
        for k2 in STK.get(kk, []):
            for t in range(2):
                A = f"a[{AB+(k2*2+t)*4}:{AB+(k2*2+t)*4+3}]"
                r = ST + 4*t
                sm.append(f"{MF} v[{r}:{r+3}], {A}, v[4:7], {'0' if k2 == 0 else f'v[{r}:{r+3}]'}")
                r = ST + 8 + 4*t
                sm.append(f"{MF} v[{r}:{r+3}], {A}, {A}, {'0' if k2 == 0 else f'v[{r}:{r+3}]'}")
        m = (sm + m) if kk == 16 else (m + sm)
        f = (b1_reads(kk+1) if kk < 35 else []) + [x for k2 in ARD.get(kk, []) for x in a_reads(k2)] + early.get(kk, []) + (a_dma(kk+5) + (b1_group(kk) if not (merged and kk < 3) else []) if kk >= 2 else []) + extra
        if 'nosch' in X: return o + interleave(m, f)
        ds = [x for x in f if isinstance(x, str) and x.startswith("ds_")]
        base = [x for x in f[:len(f)-len(extra)] if not (isinstance(x, str) and x.startswith("ds_"))]
        if any(isinstance(x, str) and x.startswith("v_") for x in extra):
            gs_, rest = vgroups(base)
            mo = [i for i, x in enumerate(extra) if isinstance(x, str) and "m0" in x]
            cut = mo[0] if mo else len(extra)
            g2_, rest2 = vgroups(rest + extra[cut:])
            o += sched(m, ds, gs_ + g2_, extra[:cut]) + rest2
        else:
            gs_, rest = vgroups(base + extra)
            o += sched(m, ds, gs_) + rest
        return o
    UV = 176; WS = 216
    UVL = 159744
    uvd = [f"s_mov_b32 m0, {UVL}", "s_nop 0", VM(f"buffer_load_dwordx4 v1, s[8:11], s22 offen{SC} lds", ("UVD", 0)), VM(f"buffer_load_dwordx4 v1, s[8:11], s22 offen offset:1024{SC} lds", ("UVD", 1)),
           f"s_mul_i32 s22, s5, {144*4}", f"s_add_u32 s22, s22, {UV1}", f"s_mov_b32 m0, {UVL+2048}", "s_nop 0", VM(f"buffer_load_dwordx4 v1, s[8:11], s22 offen{SC} lds", ("UVD", 2)),
           f"s_add_u32 s22, s22, {9216-1024}", VM(f"buffer_load_dwordx4 v1, s[8:11], s22 offen offset:1024{SC} lds", ("UVD", 3))]
    uv2 = [f"ds_read_b64 v[{UV+2*j}:{UV+2*j+1}], v9 offset:{128*j}" for j in range(9)]
    touch = ["v_lshlrev_b32 v10, 12, v12", "v_lshl_add_u32 v10, v3, 4, v10", "s_lshl_b32 s31, s5, 8", "s_add_u32 s31, s31, s29"]
    for i in range(8):
        touch += [VM(f"buffer_load_dwordx4 a[{WS}:{WS+3}], v10, s[16:19], s31 offen", ("WL", i)), "s_add_u32 s31, s31, 16384"]
    CW1 = [int(x) for x in os.environ.get('CW1', '-1').split(',')]
    if merged and 'noft' not in X:
        touch = ["v_lshrrev_b32 v10, 3, v2", "v_lshlrev_b32 v10, 12, v10", "v_and_b32 v194, 7, v2", "v_lshl_add_u32 v10, v194, 4, v10"]
        t2 = ["s_lshl_b32 s31, s5, 7", "s_add_u32 s31, s31, s29"]
        for i in range(4): t2 += [VM(f"buffer_load_dwordx4 a[{WS}:{WS+3}], v10, s[16:19], s31 offen offset:2048", ("WL", i)), "s_add_u32 s31, s31, 32768"]
        touch += t2[:8] + t2[8:]
    TK0 = int(os.environ.get('TK0', '13'))
    for kk in range(18):
        ex = []
        ne = []
        if kk in CW1: ex = [VM("buffer_load_dword v195, v255, s[32:35], 0 offen", ("CW1", kk))]
        if kk == min(13, TK0-2): ex = uvd
        if kk == TK0-1: ex = touch[:4]
        if kk == TK0: ex = touch[4:12]
        if kk == TK0+1: ex = touch[12:]
        if kk == 6: ex = ["v_mul_u32_u24 v11, 80, v12"]
        if kk == 16: early[16] = [f"ds_bpermute_b32 v{ST+8+4*t+r}, v11, v{ST+8+4*t+r} offset:{4*r}" for t in range(2) for r in range(4)]
        if kk == 17:
            ex = ln_finish([ST+i for i in range(8)], [ST+8+i for i in range(8)], 576, 8, None)
            early[17] = uv2[:5]; ne = [("UVD", 3)]
        seq += kstep(kk, ex, ne)
    seq += [a.stamp(2), "s_waitcnt lgkmcnt(0)"] + uv2[5:] + ["s_nop 3"]
    ZR = [240, 244]; ZN = [242, 246]
    zst = ["v_and_b32 v210, 3, v3", "v_lshrrev_b32 v211, 2, v3", "v_lshl_add_u32 v211, v211, 4, v3", "v_lshlrev_b32 v211, 2, v211"]
    for t in range(2):
        zst += [f"v_mov_b32 v{ZR[t]}, v{ST+8+4*t}", f"v_mov_b32 v{ZN[t]}, v{ST+4*t}"]
    for r in range(1, 4):
        zst += [f"v_cmp_eq_u32 vcc, {r}, v210", "s_nop 1"]
        for t in range(2):
            zst += [f"v_cndmask_b32 v{ZR[t]}, v{ZR[t]}, v{ST+8+4*t+r}, vcc", f"v_cndmask_b32 v{ZN[t]}, v{ZN[t]}, v{ST+4*t+r}, vcc"]
    zbp = [f"ds_bpermute_b32 v{r}, v211, v{r}" for r in ZR + ZN]
    DL0 = int(os.environ.get('DL0', '18'))
    dlist = []
    for kk in range(DL0, 18): dlist += b1_group(kk)
    g2start = len(seq)
    Z1S, Z2S, TMP, GR = 196, 204, 212, 220
    for j in range(9):
        xs = [ACC2 + j*8 + 2*i for i in range(4)]; ts = [TMP + 2*i for i in range(4)]
        uv = P(UV + 2*j)
        if j == 3: seq.append("s_waitcnt lgkmcnt(0)")
        seq.append(f"v_mov_b32 v194, v{UV+2*j+1}")
        for i in range(4): seq.append(f"v_pk_fma_f32 {P(ts[i])}, {P(ST+2*i)}, {uv}, v[194:195] op_sel_hi:[1,0,0]")
        for i in range(4): seq.append(f"v_pk_fma_f32 {P(xs[i])}, {P(xs[i])}, {P(ST+8+2*i)}, {P(ts[i])}")
        seq += gelu_pairs(xs, ts)
        for i in range(4):
            if j == 0: seq += [f"v_pk_mul_f32 {P(Z2S+2*i)}, {P(xs[i])}, {P(xs[i])}"]
            elif j == 1: seq += [f"v_pk_add_f32 {P(Z1S+2*i)}, {P(xs[i])}, {P(ACC2+2*i)}", f"v_pk_fma_f32 {P(Z2S+2*i)}, {P(xs[i])}, {P(xs[i])}, {P(Z2S+2*i)}"]
            else: seq += [f"v_pk_add_f32 {P(Z1S+2*i)}, {P(xs[i])}, {P(Z1S+2*i)}", f"v_pk_fma_f32 {P(Z2S+2*i)}, {P(xs[i])}, {P(xs[i])}, {P(Z2S+2*i)}"]
    NG = int(os.environ.get('NG', '60'))
    seq = seq[:g2start] + interleave(seq[g2start:g2start+NG], dlist) + seq[g2start+NG:]
    gspos = len(seq)
    V = [(Z1S if i % 2 == 0 else Z2S) + i//2 for i in range(16)]
    T0, T1 = TMP, TMP+4
    seq += ["v_and_b32 v11, 3, v3", "v_cmp_eq_u32 vcc, 0, v11"]
    for r in range(4):
        seq += [f"v_add_f32_dpp v{T0+r}, v{V[r]}, v{V[r]} row_ror:8 row_mask:0xf bank_mask:0x3", f"v_add_f32_dpp v{T0+r}, v{V[8+r]}, v{V[8+r]} row_ror:8 row_mask:0xf bank_mask:0xc"]
    for r in range(4):
        seq += [f"v_add_f32_dpp v{T1+r}, v{V[4+r]}, v{V[4+r]} row_ror:8 row_mask:0xf bank_mask:0x3", f"v_add_f32_dpp v{T1+r}, v{V[12+r]}, v{V[12+r]} row_ror:8 row_mask:0xf bank_mask:0xc"]
    for r in range(4): seq.append(f"v_add_f32_dpp v{GR+r}, v{T0+r}, v{T0+r} row_shl:4 row_mask:0xf bank_mask:0x5")
    for r in range(4): seq.append(f"v_add_f32_dpp v{GR+r}, v{T1+r}, v{T1+r} row_shr:4 row_mask:0xf bank_mask:0xa")
    for qp in ("[1,0,3,2]", "[2,3,0,1]"):
        for r in range(4): seq.append(f"v_add_f32_dpp v{GR+r}, v{GR+r}, v{GR+r} quad_perm:{qp} row_mask:0xf bank_mask:0xf")
    seq += [f"v_or_b32 v{GR+1}, 1, v{GR+1}", f"v_or_b32 v{GR+3}, 1, v{GR+3}",
            f"s_lshl_b32 s23, s6, 12", f"s_add_u32 s23, s23, {ST2}", "s_lshl_b32 s24, s5, 8", "s_add_u32 s24, s24, s23",
            "v_lshlrev_b32 v10, 2, v2", f"v_mov_b32 v194, {BIG}", "v_cndmask_b32 v10, v194, v10, vcc",
            "v_lshlrev_b32 v9, 4, v12", f"v_add_u32 v9, {UVL+2048}, v9", a.stamp(3)]
    gs = [VM(f"buffer_store_dwordx4 v[{GR}:{GR+3}], v10, s[8:11], s24 offen sc1", "GS")]
    seq += gs
    U1 = 160
    uv1 = []
    for j in range(9):
        uv1.append(f"ds_read_b128 v[{U1+8*j}:{U1+8*j+3}], v9 offset:{64*j}")
        uv1.append(f"ds_read_b128 v[{U1+8*j+4}:{U1+8*j+7}], v9 offset:{64*j+1024}")
    PL = 176; R1 = [200+i for i in range(8)]; R2 = [192+i for i in range(8)]
    pl = [f"buffer_load_dwordx4 v[{PL+4*i}:{PL+4*i+3}], v1, s[8:11], s23 offen offset:{1024*i} sc1" for i in range(4)]
    bl = [VM("buffer_load_ushort v6, v5, s[36:39], s26 offen", "b0"), VM("buffer_load_ushort v7, v5, s[36:39], s26 offen offset:8", "b1")]
    chk = [f"v_min_u32 v209, v{PL+1}, v{PL+3}"] + [f"v_min_u32 v209, v209, v{PL+2*i+1}" for i in range(2, 8)] + ["v_cmp_eq_u32 vcc, 0, v209"]
    pollS = [WAIT([("PL", 3)])] + chk + ["s_mov_b32 s27, 0", "s_nop 3", "s_cbranch_vccz GM_S_GO", "GM_S_POLL:"] + pl + ["s_waitcnt vmcnt(0)"] + chk + \
            ["s_add_u32 s27, s27, 1", "s_cmp_ge_u32 s27, 0x80000", "s_cbranch_scc1 GM_S_GO", "s_nop 2", "s_cbranch_vccz GM_S_GO", f"s_sleep {SLP}", "s_branch GM_S_POLL", "GM_S_GO:", a.stamp(4)]
    nrm = [f"v_add_f32 v{PL+r}, v{PL+r}, v{PL+4+r}" for r in range(4)] + [f"v_add_f32 v{PL+8+r}, v{PL+8+r}, v{PL+12+r}" for r in range(4)]
    nrm += [f"v_add_f32 v{PL+r}, v{PL+r}, v{PL+8+r}" for r in range(4)]
    for sw in ("16", "32"):
        nrm += [f"v_mov_b32 v{PL+4+r}, v{PL+r}" for r in range(4)] + ["s_nop 1"]
        nrm += [f"v_permlane{sw}_swap_b32 v{PL+r}, v{PL+4+r}" for r in range(4)] + ["s_nop 1"]
        nrm += [f"v_add_f32 v{PL+r}, v{PL+r}, v{PL+4+r}" for r in range(4)]
    nrm += ln_finish([PL, PL+2], [PL+1, PL+3], FH, 2, None)
    nrm += ["v_lshlrev_b32 v11, 4, v12"]
    bp = []
    for i in range(8):
        bp += [f"ds_bpermute_b32 v{R1[i]}, v11, v{PL+2*(i%2)} offset:{4*(i//2)}", f"ds_bpermute_b32 v{R2[i]}, v11, v{PL+2*(i%2)+1} offset:{4*(i//2)}"]
    nrm += ["s_mul_i32 s26, s6, 9216", "v_add_u32 v208, 8192, v1"]
    nrm0 = nrm; nrm = []
    for j in range(9):
        for i in range(8): nrm.append(f"v_fma_f32 v{ACC2+8*j+i}, v{ACC2+8*j+i}, v{R2[i]}, v{R1[i]}")
        for i in range(4): nrm.append(f"v_cvt_pk_bf16_f32 v{ACC2+8*j+i}, v{ACC2+8*j+2*i}, v{ACC2+8*j+2*i+1}")
        nrm.append(VM(f"buffer_store_dwordx4 v[{ACC2+8*j}:{ACC2+8*j+3}], {['v1','v251','v208'][j//4]}, s[12:15], s26 offen offset:{1024*(j%4)} sc1", ("Z2", j)))
    KT = -1
    KP, KN0, KN1, JPK, KF = [int(x) for x in os.environ.get('P2', '22,24,25,3,31').split(',')]
    per = (len(nrm0) + (KN1-KN0) - 1) // (KN1-KN0)
    pb = "buffer_load_dword v11, v10, s[8:11], s23 offen sc1"
    CW2 = [int(x) for x in os.environ.get('CW2', '19').split(',')]
    flagprep = ["s_lshl_b32 s24, s6, 4", "s_add_u32 s24, s24, s5", "s_lshl_b32 s24, s24, 7", f"s_add_u32 s24, s24, {FLB}",
            "v_cmp_eq_u32 vcc, 0, v2", f"v_mov_b32 v13, {BIG}", "v_mov_b32 v5, 1", "v_cndmask_b32 v13, v13, 0, vcc"]
    ACC, B2V = 16, 88
    AV = [241, 243, 245, 247]
    aprep = ["v_lshrrev_b32 v4, 3, v2", "v_lshrrev_b32 v249, 2, v4", "v_lshlrev_b32 v249, 3, v249", "v_and_b32 v250, 3, v4", "v_add_u32 v249, v249, v250", "v_lshlrev_b32 v249, 12, v249",
            "v_lshrrev_b32 v4, 1, v4", "v_and_b32 v250, 7, v2", "v_xor_b32 v4, v4, v250",
            f"v_lshl_add_u32 v{AV[0]}, v4, 4, v249", "v_xor_b32 v4, 4, v4", f"v_lshl_add_u32 v{AV[1]}, v4, 4, v249", f"v_add_u32 v{AV[1]}, {65536-1024}, v{AV[1]}",
            f"v_add_u32 v{AV[2]}, {16384-2048}, v{AV[0]}", f"v_add_u32 v{AV[3]}, {16384-2048}, v{AV[1]}"]
    aprep2 = ["v_lshrrev_b32 v4, 1, v3", "v_xor_b32 v4, v4, v12", "v_lshlrev_b32 v4, 4, v4", "v_lshl_add_u32 v4, v3, 7, v4",
            "v_add_u32 v249, s7, v4", "v_xor_b32 v250, 64, v249", "v_add_u32 v4, s30, v4", "v_xor_b32 v8, 64, v4"]
    PLACE = {"R0": ("s30", 0), "R1": ("s30", 4096), "R2": ("s30", 8192), "S0a": ("s7", 0), "S0b": ("s7", 4096), "S1a": ("s7", 36864), "S1b": ("s7", 36864+4096)}
    def a2_dma(Pp, pl):
        b, off = PLACE[pl]
        return [f"s_add_u32 m0, {b}, {off}", f"s_add_u32 s21, s29, {128*Pp}"] + \
               [VM(f"buffer_load_dwordx4 v{AV[i]}, s[16:19], s21 offen offset:{1024*i} lds", ("A2", Pp, i)) for i in range(4)]
    def a2_rd(Pp, pl):
        b, off = PLACE[pl]
        regs = ("v4", "v8") if b == "s30" else ("v249", "v250")
        return [f"ds_read_b128 a[{8*((2*Pp+e) % 32)+4*t}:{8*((2*Pp+e) % 32)+4*t+3}], {regs[e]} offset:{off + t*2048}" for e in range(2) for t in range(2)]
    def a2tags(Pp): return [("A2", Pp, i) for i in range(4)]
    r1 = {21: [(3, "R2")], 23: [(4, "R0")], 25: [(5, "R1")], 27: [(6, "R2")], 28: [(7, "S0a")], 29: [(8, "S0b")],
          31: [(9, "S1a")], 32: [(10, "S1b")], 33: [(11, "R0")], 34: [(12, "R1")], 35: [(13, "R2")]}
    rr1 = {20: [(0, "R2")], 22: [(1, "R0")], 24: [(2, "R1")], 26: [(3, "R2")], 28: [(4, "R0")], 33: [(5, "R1")], 34: [(6, "R2")], 35: [(7, "S0a")]}
    if 'r1b' in X:
        r1 = {21: [(3, "R2")], 23: [(4, "R0")], 29: [(5, "R1")], 30: [(6, "R2"), (7, "S0a")], 31: [(8, "S0b"), (9, "S1a")], 32: [(10, "S1b")], 33: [(11, "R0")], 34: [(12, "R1")], 35: [(13, "R2")]}
    if 'r1a' not in X:
        r1 = {21: [(3, "R2")], 23: [(4, "R0")], 28: [(5, "R1")], 29: [(6, "R2")], 30: [(7, "S0a"), (8, "S0b")], 31: [(9, "S1a")], 32: [(10, "S1b")], 33: [(11, "R0")], 34: [(12, "R1")], 35: [(13, "R2")]}
    GA, GB_ = [int(x) for x in os.environ.get('GA', '300,440').split(',')]
    g2 = seq[g2start:gspos]
    g2 = g2[:GA] + aprep + aprep2 + interleave(g2[GA:GA+60], a2_dma(14, "R0") + a2_dma(15, "R1") + a2_dma(0, "R2")) + g2[GA+60:GB_] + \
         [WAIT(a2tags(15))] + a2_rd(14, "R0") + a2_rd(15, "R1") + g2[GB_:GB_+30] + ["s_waitcnt lgkmcnt(0)"] + interleave(g2[GB_+30:], a2_dma(1, "R0") + a2_dma(2, "R1"))
    seq = seq[:g2start] + g2 + seq[gspos:]
    for kk in range(18, 36):
        ex = []; ne = []
        if kk == 18: ex = ["v_lshlrev_b32 v5, 1, v248", "s_lshl_b32 s26, s6, 6"] + bl
        if kk == 20: ex = zst
        if kk == 21: early[kk] = early.get(kk, []) + zbp
        if kk == KP: ex = [VM(x, ("PL", i)) for i, x in enumerate(pl)]
        if kk in fine2: seq.append(st0(fine2[kk]))
        if kk == KN0: seq += pollS
        if kk == KN0: ex = nrm0
        if kk == KN0+1: seq += ["s_waitcnt lgkmcnt(0)"] + bp[:12] + ["s_waitcnt lgkmcnt(4)"] + bp[12:]
        if kk >= KN1: ex = nrm[13*JPK*(kk-KN1):13*JPK*(kk-KN1+1)]
        if kk == 30:
            assert not ex
            ex = flagprep + ["s_lshl_b32 s23, s3, 4", "s_add_u32 s23, s23, s5", "s_lshl_b32 s23, s23, 7", f"s_add_u32 s23, s23, {FLB}", "v_lshlrev_b32 v10, 13, v3"]
        if kk == KF: ex = [VM("buffer_store_dword v5, v13, s[8:11], s24 offen sc1", "FB")] + ex; ne = [("Z2", 8)]
        if kk in (30, 31): early[kk] = early.get(kk, []) + uv1[5*(kk-30):5*(kk-30)+5]
        if kk == 35: early[kk] = early.get(kk, []) + uv1[10:]
        for Pp, pl_ in r1.get(kk, []): ex = ex + a2_dma(Pp, pl_)
        for Pp, pl_ in rr1.get(kk, []): early[kk] = early.get(kk, []) + a2_rd(Pp, pl_); ne = ne + a2tags(Pp)
        if kk in CW2: early[kk] = early.get(kk, []) + [VM("buffer_load_dword v15, v255, s[32:35], 0 offen", ("CW2", kk))]
        if kk == 35: ex = [VM(pb, "PB")] + ex
        seq += kstep(kk, ex, ne)
    seq += [a.stamp(5)]
    TM1 = 232
    JF = int(os.environ.get('JF', '0'))
    def z1g(j):
        o = []
        xs = [ACC1 + j*8 + 2*i for i in range(4)]; ts = [TM1 + 2*i for i in range(4)]
        for i in range(4):
            o.append(f"v_pk_fma_f32 {P(ts[i])}, {P(U1+8*j+2*(i%2))}, {P(ZN[i//2])}, {P(U1+8*j+4+2*(i%2))} op_sel_hi:[1,0,1]")
        for i in range(4):
            o.append(f"v_pk_fma_f32 {P(xs[i])}, {P(xs[i])}, {P(ZR[i//2])}, {P(ts[i])} op_sel_hi:[1,0,1]")
        if j < JF: o += gelu_pairs(xs, ts)
        for i in range(4): o.append(f"v_cvt_pk_bf16_f32 v{U1+8*j+i}, v{xs[i]}, v{xs[i]+1}")
        return o
    def late_gelu(j, hf):
        xs = [(U1+8*j+4+i) if hf == 1 else (236+i) for i in range(4)]; ts = [232+i for i in range(4)]
        o = []
        for d in range(2): o += [f"v_lshlrev_b32 v{xs[2*d]}, 16, v{U1+8*j+2*hf+d}", f"v_and_b32 v{xs[2*d+1]}, 0xffff0000, v{U1+8*j+2*hf+d}"]
        for x, t in zip(xs, ts): o.append(f"v_mul_f32 v{t}, v{x}, v{x}")
        for x, t in zip(xs, ts): o.append(f"v_fma_f32 v{t}, v{t}, s40, v14")
        for x, t in zip(xs, ts): o.append(f"v_mul_f32 v{t}, v{t}, v{x}")
        for x, t in zip(xs, ts): o.append(f"v_exp_f32 v{t}, v{t}")
        for x, t in zip(xs, ts): o.append(f"v_add_f32 v{t}, 1.0, v{t}")
        for x, t in zip(xs, ts): o.append(f"v_rcp_f32 v{t}, v{t}")
        for i, (x, t) in enumerate(zip(xs, ts)): o.append(f"v_mul_f32 v{U1+8*j+4*hf+i}, v{x}, v{t}")
        return o
    def b2_group(k):
        T = (k+1)//4 + 2
        if T >= 15: return []
        p0, cnt = P0[k % 4]
        o = [f"s_add_u32 m0, s7, {(T % 3)*36864 + p0*1024}", "s_nop 0"]
        for i in range(cnt): o.append(VM(f"buffer_load_dwordx4 v1, s[12:15], s20 offen offset:{1024*i} sc1 lds", ("B2", T, p0+i)))
        o.append(f"s_add_u32 s20, s20, {cnt*1024 if k % 4 != 2 else 36864 - 7168}")
        return o
    def b2tags(T): return [("B2", T, p) for p in range(9)]
    def b2_reads(k):
        return [f"ds_read_b128 v[{B2V + (k%2)*36 + 4*j}:{B2V + (k%2)*36 + 4*j + 3}], v{SL + (k//4) % 3} offset:{(k%4)*9216 + j*1024}" for j in range(9)]
    seq += ["s_mov_b32 s20, s7", WAIT(a2tags(10), lgkm=True)] + a2_rd(8, "S0b") + a2_rd(9, "S1a") + a2_rd(10, "S1b")
    J2 = int(os.environ.get('J2', '4'))
    for j in range(J2): seq += z1g(j)
    seq += [WAIT(["PB"]), "v_cmp_eq_u32 vcc, 0, v11", "s_barrier", "s_waitcnt lgkmcnt(0)", "s_nop 2", "s_cbranch_vccz GM_B_GO"]
    resolve(pre + seq); emit(a, seq); pre2 = [VM("; ", x.tag) for x in seq if isinstance(x, VM) and x.tag[0] == "A2" and x.tag[1] in (11, 12, 13)]
    poll_loop(a, "GM_B", [pb], [11], None)
    a(a.stamp(6))
    seq = list(pre2)
    for k in range(-9, -5): seq += b2_group(k)
    fl = []
    for k in range(-5, -3): fl += b2_group(k)
    val = []
    for j in range(J2, 9): val += z1g(j)
    seq += interleave(val, fl)
    if fine2: phase[0] = 1
    if Asm.STAMPS: seq += [a.stamp(7), "STAMPFLUSH"]
    seq += [f"v_lshlrev_b32 v{232+i}, 16, v{6 + i//4}" for i in range(8)]
    seq += [WAIT(b2tags(0)), "s_barrier"] + b2_reads(0)
    KA = 46
    PS_ = [11, 12, 13] + list(range(16, 32))
    RPi = lambda i: 2 + ((KA-2)*i)//(len(PS_)-1)
    KT0 = 52
    rd_at = {RPi(i): (Pp, f"R{i % 3}") for i, Pp in enumerate(PS_)}
    assert len(rd_at) == len(PS_) and all(RPi(i) <= 2*p_-1 and RPi(i) >= 2*(p_-16)+2 for i, p_ in enumerate(PS_))
    dma_at = {RPi(i-3)+1: (PS_[i], f"R{i % 3}") for i in range(3, len(PS_))}
    def areg(k, t): return f"a[{8*(k%32)+4*t}:{8*(k%32)+4*t+3}]"
    def mf2(k, j, t, breg):
        r = ACC + (j*2+t)*4
        return f"{MF} v[{r}:{r+3}], v[{breg}:{breg+3}], {areg(k, t)}, {f'v[{232+4*t}:{235+4*t}]' if k == 0 else f'v[{r}:{r+3}]'}"
    g3prep = f"""
      s_and_b32 s44, s2, 7
      s_lshl_b32 s44, s44, 2
      s_lshr_b32 s45, s2, 3
      s_and_b32 s38, s45, 3
      s_add_u32 s44, s44, s38             ; mb
      s_lshr_b32 s45, s45, 2
      s_mul_i32 s45, s45, 9
      s_lshr_b32 s45, s45, 1              ; n0
      s_mul_i32 s39, s3, {18*36864}
      s_lshl_b32 s38, s45, 10
      s_add_u32 s39, s39, s38
      s_add_u32 s39, s39, {WOUTF}         ; W soffset (registers part)
      s_add_u32 s36, s39, {11*36864}      ; W soffset (lds part)
      s_mul_i32 s37, s3, 30720
      s_add_u32 s37, s37, 36864           ; lds W area""".split("\n")
    NWR = 11
    def w_reg(k): return 20*k if k < NWR else (20*(k-NWR) if k < 17 else 224)
    def w_loads(k, so="s39"):
        r = w_reg(k)
        return [VM(f"buffer_load_dwordx4 a[{r+4*j}:{r+4*j+3}], {'v1' if j < 4 else 'v251'}, s[8:11], {so} offen offset:{1024*(j%4)}{SC}", ("W", k, j)) for j in range(5)] + [f"s_add_u32 {so}, {so}, 36864"]
    def w_dma(k):
        o = [f"s_add_u32 m0, s37, {(k-NWR)*5120}", "s_nop 0"]
        o += [VM(f"buffer_load_dwordx4 v1, s[8:11], s36 offen offset:{1024*j}{SC} lds", ("W", k, j)) for j in range(4)]
        o += [f"s_add_u32 m0, s37, {(k-NWR)*5120 + 4096}", "s_nop 0", VM(f"buffer_load_dwordx4 v251, s[8:11], s36 offen{SC} lds", ("W", k, 4)), "s_add_u32 s36, s36, 36864"]
        return o
    apieces = {}
    for k0, (Pp, pl_) in dma_at.items():
        b, off = PLACE[pl_]
        ks_ = [k0, k0, k0+1, k0+1] if (k0+1) not in dma_at else [k0]*4
        for i in range(4):
            gr = [f"s_add_u32 m0, {b}, {off}", VM(f"buffer_load_dwordx4 v{AV[i]}, s[16:19], s21 offen offset:{1024*i} lds", ("A2", Pp, i))]
            if i > 0 and ks_[i] == ks_[i-1]: gr = gr[1:]
            if i == 0: gr = [f"s_add_u32 s21, s29, {128*Pp}"] + gr
            apieces.setdefault(ks_[i], []).append(gr)
    CWK = [int(x) for x in os.environ.get('CWK', '1,9,17,25,33,41,49').split(',')]
    def t15_group(k):
        p0, cnt = P0[k % 4]
        o = [f"s_add_u32 m0, s7, {ALDS + p0*1024}"]
        for i in range(cnt): o.append(VM(f"buffer_load_dwordx4 v1, s[12:15], s21 offen offset:{1024*i} sc1 lds", ("B2", 15, p0+i)))
        o.append(f"s_add_u32 s21, s21, {cnt*1024}")
        return o
    tailprep = f"""
      v_add_u32 v4, {ALDS}, v1
      v_lshlrev_b32 v8, 3, v2
      s_lshr_b32 s22, s5, 1
      s_mul_i32 s22, s22, 9216
      s_mul_i32 s23, s6, {2*73728}
      s_add_u32 s22, s22, s23
      s_add_u32 s22, s22, {PF}
      s_and_b32 s23, s5, 1
      s_lshl_b32 s28, s23, 12
      s_add_u32 s28, s28, s22
      s_add_u32 s29, s28, 73728
      s_lshl_b32 s23, s23, 9
      s_add_u32 s30, s22, s23
      s_add_u32 s30, s30, 8192
      s_add_u32 s31, s30, 73728
      s_add_u32 s24, s24, {FLP-FLB}""".split("\n")
    TK = [52, 53, 54, 55, 60, 61, 62, 63, 56, 57, 58, 59]
    def ureg(u): return B2V + 24*(u % 3)
    def u_reads(u):
        if u >= 18: return []
        j, hf = divmod(u, 2)
        o = []
        for i, k in enumerate(TK[6*hf:6*hf+6]):
            ad = "v4" if k >= 60 else f"v{SL + (k//4) % 3}"
            o.append(f"ds_read_b128 v[{ureg(u)+4*i}:{ureg(u)+4*i+3}], {ad} offset:{(k%4)*9216 + j*1024}")
        return o
    WE = [int(x) for x in os.environ.get('WE', '43,45').split(',')]
    wq = [w_loads(k) for k in range(0, NWR)] + [w_dma(k) for k in range(NWR, 17)] + [w_loads(17, "s36")]
    lg = []
    for j in range(JF, 9): lg += late_gelu(j, 1) + late_gelu(j, 0)
    LG0, LG1 = 2, int(os.environ.get('LG1', '52'))
    for k in range(KT0):
        need = []
        if k in rd_at: need += a2tags(rd_at[k][0])
        if k % 4 == 3: need += b2tags((k+1)//4)
        if k == KT0-1: need += b2tags(15)
        if k == 51: need += [("G", 3)]
        seq.append(WAIT(need, lgkm=True))
        if k % 4 == 3: seq.append("s_barrier")
        mm = [mf2(k, j, t, B2V + (k%2)*36 + 4*j) for j in range(9) for t in range(2)]
        ds = b2_reads(k+1) if k+1 < KT0 else u_reads(0)
        if k in rd_at: ds += a2_rd(*rd_at[k])
        f = {0: b2_group(-3) + b2_group(-2), 1: b2_group(-1) + b2_group(0), 2: b2_group(1) + b2_group(2)}.get(k, None)
        if f is None: f = b2_group(k)
        f = f + [y for x in apieces.get(k, []) for y in x]
        if 47 <= k < 49: f = t15_group(2*k-47) + t15_group(2*k-46) + f
        if k in CWK: f += [VM("buffer_load_dword v15, v255, s[32:35], 0 offen", ("CW", k))]
        oth = []
        if k == 46: oth = [f"s_add_u32 s21, s7, {15*36864}"]
        if k == 48: oth = tailprep
        if k == 1: oth = ["s_lshr_b32 s42, s2, 5", "s_mul_i32 s42, s42, 9", "s_lshr_b32 s42, s42, 1", "s_lshl_b32 s42, s42, 7",
                           f"s_add_u32 s42, s42, {MODP + 5*576*8}", f"s_add_u32 s43, s42, {3456*8}", "v_lshlrev_b32 v9, 3, v2"]
        if k == 44: f += [VM(f"buffer_load_dword v{240+2*i}, v9, s[8:11], s{42 + i%2} offen offset:{512*(i//2)}{SC}", ("G", i)) for i in range(4)]
        if k == 51: oth = ["v_add_f32 v6, v240, v242", "v_add_f32 v7, v244, v246", "v_cvt_pk_bf16_f32 v6, v6, v7", "v_and_b32 v7, 0xffff0000, v6", "v_lshlrev_b32 v6, 16, v6"]
        if k == 0: oth = g3prep
        if k in WE: f += wq.pop(0)
        if LG0 <= k < LG1 and 'nolg' not in X: oth = oth + lg[len(lg)*(k-LG0)//(LG1-LG0):len(lg)*(k+1-LG0)//(LG1-LG0)]
        gs_, rest = vgroups(f)
        if 'nov' in X and 3 < k < 43:
            for gr in gs_: gr[-1].text = 's_nop 0'
        seq += sched(mm, ds, gs_, oth) + rest
    seq.append(a.stamp(0))
    def epi(j):
        o = []
        for t in range(2):
            x = ACC + (j*2+t)*4; z = U1 + 8*j + 4*t
            od = ACC + ((j & ~1)*2+t)*4
            for r in range(4): o.append(f"v_mul_f32 v{x+r}, v{x+r}, v{z+r}")
            for h in range(2): o.append(f"v_cvt_pk_bf16_f32 v{od + (j%2)*2 + h}, v{x+2*h}, v{x+2*h+1}")
            if j % 2 == 1: o.append(VM(f"buffer_store_dwordx4 v[{od}:{od+3}], v1, s[8:11], s{28+t} offen offset:{1024*(j//2)} sc1", ("PS", j, t)))
            if j == 8: o.append(VM(f"buffer_store_dwordx2 v[{od}:{od+1}], v8, s[8:11], s{30+t} offen sc1", ("PS", 9, t)))
        return o
    WT = [int(x) for x in os.environ.get('WT', '8,1,6').split(',')]
    CW3 = [int(x) for x in os.environ.get('CW3', '-1').split(',')]
    nleft = 8 - (18 - len(wq))
    tailw = set((i*8)//nleft for i in range(nleft)) if nleft else set()
    seq += [WAIT(b2tags(14), lgkm=True), "s_barrier"] + u_reads(1)
    for u in range(18):
        j, hf = divmod(u, 2)
        m_ = [mf2(k, j, t, ureg(u) + 4*i) for i, k in enumerate(TK[6*hf:6*hf+6]) for t in range(2)]
        if u > 0: seq.append(f"s_waitcnt lgkmcnt({6 if u < 17 else 0})")
        e = epi(j-1) if j >= 1 else []
        if hf == 0:
            seq += interleave(m_[:6], u_reads(u+2) if u < 16 else ["s_nop 1"]) + interleave(m_[6:], e)
        else:
            gs_, rest = vgroups((wq.pop(0) if j in tailw else []) + ([VM("buffer_load_dword v15, v255, s[32:35], 0 offen", ("CW3", j))] if j in CW3 else []))
            seq += sched(m_, u_reads(u+2), gs_, vm_start=1) + rest
    seq += ["s_nop 7"] + epi(8) + ["s_barrier"]
    PV, LW = 240, 244
    seq += f"""
      s_mul_i32 s20, s44, {4*73728}
      s_mul_i32 s6, s3, {18*1024}
      s_add_u32 s20, s20, s6
      s_add_u32 s20, s20, {PF}            ; P soffset
      s_lshl_b32 s23, s44, 12
      s_lshl_b32 s6, s3, 9
      s_add_u32 s23, s23, s6
      s_add_u32 s23, s23, {FLP}           ; poll address
      v_and_b32 v10, 3, v2
      v_bfe_u32 v11, v2, 2, 1
      v_lshl_add_u32 v10, v11, 4, v10
      v_lshlrev_b32 v10, 7, v10
      v_add_u32 v249, s37, v1""".split("\n")
    for u in range(4):
        seq += [f"s_add_u32 s6, s3, {u}", "s_and_b32 s6, s6, 3", "s_mul_i32 s7, s6, 73728", f"v_add_u32 v{PV+u}, s7, v1"]
        if u > 0: seq += ["s_mul_i32 s7, s6, 15360", f"s_add_u32 s7, s7, {(u-1)*5120}", f"v_add_u32 v{LW+u}, s7, v1"]
    for _ in range(WT[1]): seq += wq.pop(0)
    seq += [a.stamp(1), WAIT([("PS", 9, 1)]), VM("buffer_store_dword v5, v13, s[8:11], s24 offen sc1", "FP"), a.stamp(2)]
    DEP = 6; AC3 = 16; PR = 96; XR, GB, GR_ = 192, 204, 96
    seq += [f"s_lshl_b32 s22, s44, 2", "s_add_u32 s22, s22, s3", "s_mul_i32 s25, s22, 18432", "s_lshl_b32 s24, s45, 9", "s_add_u32 s25, s25, s24", f"s_add_u32 s25, s25, {X1F}",
            "v_lshlrev_b32 v8, 4, v12"]
    xl = [VM(f"buffer_load_dwordx2 v[{XR+2*j}:{XR+1+2*j}], v9, s[8:11], s25 offen offset:{512*j}{SC}", ("X", j)) for j in range(5)]
    for _ in range(WT[2]): seq += wq.pop(0)
    for j in range(5):
        for r in range(4): seq.append(f"ds_bpermute_b32 v{GB+4*j+r}, v8, v{6 if j < 4 else 7} offset:{64*(j%4) + 4*r}")
        if j == 2: seq.append("s_waitcnt lgkmcnt(0)")
    resolve(seq)
    for it in seq:
        if it == "STAMPFLUSH": a.stamp_flush2(2, 8)
        else: emit(a, [it])
    a.srd(12, "out")
    poll_loop(a, "GM_P", ["buffer_load_dword v11, v10, s[8:11], s23 offen sc1"], [11], None)
    a(a.stamp(3))
    done = [VM("; ", x.tag) for x in seq if isinstance(x, VM) and x.tag[0] == "W"]
    def p_loads(k):
        if k >= 18: return []
        r = PR + (k % DEP)*16
        if k % 9 != 8: o = [VM(f"buffer_load_dwordx4 v[{r+4*u}:{r+4*u+3}], v{PV+u}, s[8:11], s20 offen offset:{1024*(k%4)} sc1", ("P", k, u)) for u in range(4)]
        else:
            o = []
            for u in range(4):
                o += [f"v_sub_u32 v11, v{PV+u}, v9", VM(f"buffer_load_dwordx2 v[{r+4*u}:{r+4*u+1}], v11, s[8:11], s20 offen offset:{1024*(k%4)} sc1", ("Ph", k, u)),
                      VM(f"buffer_load_dwordx2 v[{r+4*u+2}:{r+4*u+3}], v11, s[8:11], s20 offen offset:{1024*(k%4)+512} sc1", ("P", k, u))]
        if k % 4 == 3: o.append("s_add_u32 s20, s20, 4096")
        return o
    def w_rd(k): return [f"ds_read_b128 a[{w_reg(k)+4*j}:{w_reg(k)+4*j+3}], v249 offset:{(k-NWR)*5120 + 1024*j}" for j in range(5)]
    seq = list(done)
    for k in range(DEP-1): seq += p_loads(k)
    for k in range(18):
        kr = k + 4
        need = [("P", k, 3)] + ([("W", k, 4)] if (k < NWR or k == 17) else []) + ([("W", kr, 4)] if NWR <= kr < 17 else [])
        seq.append(WAIT(need, lgkm=(NWR <= k < 17)))
        if k == 0: seq.append(a.stamp(4))
        if k == 14: seq.append("s_barrier")
        r = PR + (k % DEP)*16
        mm = []
        for u in ((1, 2, 3, 0) if k == 17 else range(4)):
            for j in range(5):
                c = AC3 + (u*5+j)*4
                mm.append(f"{MF} v[{c}:{c+3}], a[{w_reg(k)+4*j}:{w_reg(k)+4*j+3}], v[{r+4*u}:{r+4*u+3}], {'0' if k == 0 else f'v[{c}:{c+3}]'}")
        f = p_loads(k+DEP-1) + (wq.pop(0) if wq else []) + (w_rd(kr) if NWR <= kr < 17 else []) + (xl if k == 13 else [])
        ds = [x for x in f if isinstance(x, str) and x.startswith("ds_")]
        gs_, rest = vgroups([x for x in f if not (isinstance(x, str) and x.startswith("ds_"))])
        if k < 17: seq += sched(mm, ds, gs_, vm_start=1) + rest
        else:
            wr = [f"ds_write_b128 v{LW+u}, v[{AC3+(u*5+j)*4}:{AC3+(u*5+j)*4+3}] offset:{1024*j}" for u in range(1, 4) for j in range(5)]
            seq += mm[:9] + interleave(mm[9:], wr[:11]) + [a.stamp(5), "s_mul_i32 s7, s3, 15360", "v_add_u32 v11, s7, v1"] + wr[11:]
    seq += ["v_mul_u32_u24 v4, 1152, v248",
            "v_lshl_add_u32 v4, v12, 3, v4", "s_lshr_b32 s25, s22, 1", f"s_mul_i32 s25, s25, {32*1152}", "s_and_b32 s26, s22, 1", f"s_mul_i32 s26, s26, {4*1152}",
            "s_add_u32 s25, s25, s26", "s_lshl_b32 s26, s45, 5", "s_add_u32 s25, s25, s26",
            "s_waitcnt lgkmcnt(0)", "s_barrier"]
    for i in range(15):
        c = AC3 + 20 + 4*i
        seq.append(f"ds_read_b128 v[{c}:{c+3}], v11 offset:{1024*i}")
        if i == 13: seq.append("s_waitcnt lgkmcnt(8)")
    seq += [WAIT([("X", 4)], lgkm=True)]
    for j in range(5):
        for h in range(2):
            x = AC3 + 4*j + 2*h
            seq += [f"v_pk_add_f32 {P(x)}, {P(x)}, {P(x+20)}", f"v_pk_add_f32 {P(x+40)}, {P(x+40)}, {P(x+60)}",
                    f"v_lshlrev_b32 v{x+20}, 16, v{XR+2*j+h}", f"v_and_b32 v{x+21}, 0xffff0000, v{XR+2*j+h}",
                    f"v_pk_add_f32 {P(x)}, {P(x)}, {P(x+40)}",
                    f"v_pk_fma_f32 {P(x)}, {P(x)}, {P(GB+4*j+2*h)}, {P(x+20)}",
                    f"v_cvt_pk_bf16_f32 v{XR+2*j+h}, v{x}, v{x+1}"]
        seq.append(VM(f"buffer_store_dwordx2 v[{XR+2*j}:{XR+1+2*j}], v4, s[12:15], s25 offen offset:{32*j}", ("O", j)))
    resolve(seq); emit(a, seq)
    a(a.stamp(6))
    a.stamp_end(3, 8)
    a("GM_END:\ns_endpgm\nGM_CODE_END:")
    a.stamp = st0
    if merged:
        from gen_s import KNAME
        a.desc(KNAME, 512, 256, 100)
    else: a.desc("gm_kernel", 512, 256)
```

```python
from gen_common import *
from gen_g import *
P = lambda r: f"v[{r}:{r+1}]"
BIG = 0x7fffff00

def poll_loop(a, name, loads, regs, tmp):
    a(f"s_mov_b32 s27, 0\n{name}_POLL:")
    for x in loads: a(x)
    a("s_waitcnt vmcnt(0)")
    if len(regs) == 1: a(f"v_cmp_eq_u32 vcc, 0, v{regs[0]}")
    else:
        a(f"v_min_u32 v{tmp}, v{regs[0]}, v{regs[1]}")
        for r in regs[2:]: a(f"v_min_u32 v{tmp}, v{tmp}, v{r}")
        a(f"v_cmp_eq_u32 vcc, 0, v{tmp}")
    a(f"""
      s_add_u32 s27, s27, 1
      s_cmp_ge_u32 s27, 0x80000
      s_cbranch_scc1 {name}_GO
      s_nop 2
      s_cbranch_vccz {name}_GO
      s_sleep {SLP}
      s_branch {name}_POLL
    {name}_GO:
    """)

def gen_gm(a, merged=False):
    SC = ' sc1' if merged else ''
    st0 = a.stamp
    fine2 = eval(os.environ.get('FINE2', '{}'))
    if fine2:
        phase = [0]
        a.stamp = lambda i: (st0(i) if phase[0] else "; ")
    if not merged:
        a.begin("gm_kernel")
        a("s_cmp_ge_u32 s2, 256\ns_cbranch_scc1 GM_END")
        a(a.stamp(0))
        a.load_args()
    else: a("gm_kernel:")
    tile_ids(a)
    SL = 252
    a(f"""
      s_mul_i32 s20, s5, {36*9216}
      s_add_u32 s20, s20, s7
      s_add_u32 s20, s20, {WINF}
      s_mul_i32 s21, s6, 36864
      s_add_u32 s21, s21, {X1F}           ; A soffset
      s_mul_i32 s30, s3, 12288
      s_add_u32 s30, s30, {3*36864}
      v_lshl_add_u32 v13, v2, 3, s30
      v_add_u32 v8, {18432-1024}, v1
      s_mul_i32 s28, s5, {64*9216}
      s_add_u32 s28, s28, {Z2F}
      s_lshl_b32 s29, s6, 17
      s_waitcnt lgkmcnt(0)
    """)
    if not merged: a.srd(8, "ws")
    AB, BB = 0, 144
    ACC2, ACC1, ST = 16, 88, 160
    ALDS = 3*36864
    def a_dma(ks):
        if ks >= 18: return []
        o = [f"s_add_u32 m0, s30, {(ks % 6)*2048}", "s_nop 0",
             VM(f"buffer_load_dwordx4 v1, s[8:11], s21 offen{SC} lds", ("A", ks, 0)),
             VM(f"buffer_load_dwordx4 v8, s[8:11], s21 offen offset:1024{SC} lds", ("A", ks, 1)),
             "s_add_u32 s21, s21, 1024"]
        return o
    def a_reads(ks):
        if ks >= 18: return []
        return [f"ds_read_b64 a[{AB+(ks*2+t)*4+2*h}:{AB+(ks*2+t)*4+2*h+1}], v13 offset:{(ks % 6)*2048 + t*1024 + h*512}" for t in range(2) for h in range(2)]
    def atags(ks): return [("A", ks, t) for t in range(2)] if ks < 18 else []
    def b1_group(k):
        T = (k+1)//4 + 2
        if T >= 9: return []
        p0, cnt = P0[k % 4]
        o = [f"s_add_u32 m0, s7, {(T % 3)*36864 + p0*1024}", "s_nop 0"]
        for i in range(cnt): o.append(VM(f"buffer_load_dwordx4 v1, s[8:11], s20 offen offset:{1024*i}{SC} lds", ("B", T, p0+i)))
        o.append(f"s_add_u32 s20, s20, {cnt*1024 if k % 4 != 2 else 36864 - 7168}")
        return o
    def b1_reads(k):
        return [f"ds_read_b128 a[{BB + (k%2)*36 + 4*j}:{BB + (k%2)*36 + 4*j + 3}], v{SL + (k//4) % 3} offset:{(k%4)*9216 + j*1024}" for j in range(9)]
    if not merged:
        seq = []
        seq += a_dma(0)
        for k in range(-9, -5): seq += b1_group(k)
        for ks in range(1, 4): seq += a_dma(ks)
        seq += ["s_getpc_b64 s[32:33]", "GM_PC:", "s_sub_u32 s32, s32, GM_PC-gm_kernel", "s_subb_u32 s33, s33, 0", "s_and_b32 s33, s33, 0xffff",
                "s_mov_b32 s34, GM_CODE_END-gm_kernel", "s_mov_b32 s35, 0x20000", "s_lshr_b32 s31, s2, 3", "s_lshl_b32 s31, s31, 7",
                "v_lshlrev_b32 v255, 12, v0", "v_add_u32 v255, s31, v255", VM("buffer_load_dword v11, v255, s[32:35], 0 offen", "CW")]
        resolve(seq); emit(a, seq); pre = seq; seq = []
        NPB = int(os.environ.get('NPB', '2'))
        late_pro = []
        for k in range(-5, -5+NPB): late_pro += b1_group(k)
        e0 = []
        for k in range(-5+NPB, -1): e0 += b1_group(k)
        early = {0: e0 + a_dma(4) + (a_dma(5) + b1_group(-1) if NPB >= 2 else []), 1: (a_dma(5) + b1_group(-1) if NPB < 2 else []) + a_dma(6) + b1_group(0) + b1_group(1)}
    else:
        from gen_s import FD
        from gen_f import poll
        a(f"""
          s_mul_i32 s22, s5, 9
          s_lshr_b32 s22, s22, 2
          s_add_u32 s22, s22, 36
          v_and_b32 v4, 3, v2
          v_add_u32 v4, s22, v4
          v_min_u32 v4, 71, v4
          v_mul_u32_u24 v5, 7282, v4
          v_lshrrev_b32 v5, 16, v5
          v_mul_u32_u24 v6, 9, v5
          v_sub_u32 v4, v4, v6
          v_lshl_add_u32 v4, v4, 3, v5
          v_lshlrev_b32 v4, 7, v4
          v_add_u32 v4, {FD + 144*128}, v4
          v_lshlrev_b32 v5, 7, v0
          v_add_u32 v5, {FD}, v5
          buffer_load_dword v6, v4, s[8:11], 0 offen sc1
          v_mov_b32 v7, s42
          s_lshl_b32 s22, s2, 7
          s_add_u32 s22, s22, {FD}
          s_waitcnt vmcnt(0)
          s_barrier
          s_cmp_lg_u32 s3, 0
          s_cbranch_scc1 GM_NOD
          buffer_store_dword v7, v250, s[8:11], s22 offen sc1
        GM_NOD:
          {st0(7)}
          v_cmp_ne_u32 vcc, s42, v6
        """)
        if Asm.STAMPS: a.stamp_flush2(0, 8); a(a.stamp(0))
        for x_ in ["s_getpc_b64 s[32:33]", "GM_PC:", "s_sub_u32 s32, s32, GM_PC-gm_kernel", "s_subb_u32 s33, s33, 0", "s_and_b32 s33, s33, 0xffff",
            "s_mov_b32 s34, GM_CODE_END-gm_kernel", "s_mov_b32 s35, 0x20000", "s_lshr_b32 s31, s2, 3", "s_lshl_b32 s31, s31, 7",
            "v_lshlrev_b32 v255, 12, v0", "v_add_u32 v255, s31, v255"]: a(x_)
        if 'noft' not in X:
            a.srd(16, "wsp")
            a("s_cmp_ge_u32 s96, 64\ns_cbranch_scc1 GM_NOFT\ns_lshl_b32 s96, s96, 2\ns_add_u32 s96, s96, s3\ns_lshl_b32 s96, s96, 15")
            for i in range(16):
                a(f"buffer_load_dwordx4 a[216:219], v1, s[16:19], s96 offen offset:{1024*(i%2)}")
                if i % 2 == 1: a("s_add_u32 s96, s96, 4096")
            a("GM_NOFT:")
        a("s_nop 4\ns_cbranch_vccz GM_W_GO")
        poll(a, "GM_W", "v4", "v6", slp=8)
        seq = []
        for k in range(-9, -5): seq += b1_group(k)
        seq += [VM("buffer_load_dword v6, v5, s[8:11], 0 offen sc1", "DN")]
        NPF = int(os.environ.get('NPF', '4'))
        for k in range(-5, -5+NPF): seq += b1_group(k)
        seq += [VM("buffer_load_dword v11, v255, s[32:35], 0 offen", "CW"), WAIT(["DN"]), "v_cmp_ne_u32 vcc, s42, v6", "s_nop 4", "s_cbranch_vccz GM_D_GO"]
        resolve(seq); emit(a, seq); pre = seq; seq = []
        poll(a, "GM_D", "v5", "v6", slp=int(os.environ.get('DSL', '1')))
        a("s_barrier")
        late_pro = []
        for ks in range(6): late_pro += a_dma(ks)
        emit(a, late_pro); pre = pre + late_pro; late_pro = [WAIT(atags(0))]
        rem = list(range(-5+NPF, 3))
        early = {0: [], 1: a_dma(6), 2: []}
        for i, k in enumerate(rem): early[(3*i)//len(rem)] += b1_group(k)
    a.srd(12, "ws", 64*9216, "s28"); a.srd(16, "wsp"); a.srd(36, "bsp")
    a(f"""
      v_mov_b32 v{SL}, v1
      v_add_u32 v{SL+1}, 36864, v1
      v_add_u32 v{SL+2}, {2*36864}, v1
      v_mov_b32 v4, 0x3f803f80
      v_mov_b32 v5, 0x3f803f80
      v_mov_b32 v6, 0x3f803f80
      v_mov_b32 v7, 0x3f803f80
      s_mov_b32 s40, {float_hex(C1)}
      s_mov_b32 s41, {float_hex(C1)}
      v_mov_b32 v14, {float_hex(C0)}
      v_mov_b32 v15, {float_hex(C0)}
      s_mul_i32 s22, s5, {144*8}
      s_add_u32 s22, s22, {UV2}
      v_lshlrev_b32 v9, 3, v3             ; n*8
      v_add_u32 v9, 159744, v9
      v_lshrrev_b32 v248, 2, v3
      v_lshlrev_b32 v248, 3, v248
      v_and_b32 v249, 3, v3
      v_add_u32 v248, v248, v249
      v_add_u32 v251, 4096, v1
    """)
    seq += late_pro + [WAIT(btags(0)), "s_barrier", a.stamp(1)]
    seq += a_reads(0) + b1_reads(0)
    ARD = {k_: [k_+1] for k_ in range(14)}; ARD[14] = [15]; ARD[15] = [16, 17]
    STK = {k_: [k_] for k_ in range(16)}; STK[16] = [16, 17]
    def kstep(kk, extra=[], need_extra=[]):
        ks = kk % 18; ps = kk // 18
        o = []
        need = [t_ for x in ARD.get(kk, []) for t_ in atags(x)] + need_extra
        bar = (kk % 4 == 3 and kk < 35)
        if bar: need = need + btags((kk+1)//4)
        o.append(WAIT(need, lgkm=True))
        if bar: o.append("s_barrier")
        m = []
        for j in range(9):
            for t in range(2):
                A = f"a[{AB+(ks*2+t)*4}:{AB+(ks*2+t)*4+3}]"
                B = f"a[{BB+(kk%2)*36+4*j}:{BB+(kk%2)*36+4*j+3}]"
                r = (ACC2 if ps == 0 else ACC1) + (j*2+t)*4
                C = "0" if ks == 0 else f"v[{r}:{r+3}]"
                m.append(f"{MF} v[{r}:{r+3}], {A}, {B}, {C}" if ps == 0 else f"{MF} v[{r}:{r+3}], {B}, {A}, {C}")
        sm = []
        for k2 in STK.get(kk, []):
            for t in range(2):
                A = f"a[{AB+(k2*2+t)*4}:{AB+(k2*2+t)*4+3}]"
                r = ST + 4*t
                sm.append(f"{MF} v[{r}:{r+3}], {A}, v[4:7], {'0' if k2 == 0 else f'v[{r}:{r+3}]'}")
                r = ST + 8 + 4*t
                sm.append(f"{MF} v[{r}:{r+3}], {A}, {A}, {'0' if k2 == 0 else f'v[{r}:{r+3}]'}")
        m = (sm + m) if kk == 16 else (m + sm)
        f = (b1_reads(kk+1) if kk < 35 else []) + [x for k2 in ARD.get(kk, []) for x in a_reads(k2)] + early.get(kk, []) + (a_dma(kk+5) + (b1_group(kk) if not (merged and kk < 3) else []) if kk >= 2 else []) + extra
        if 'nosch' in X: return o + interleave(m, f)
        ds = [x for x in f if isinstance(x, str) and x.startswith("ds_")]
        base = [x for x in f[:len(f)-len(extra)] if not (isinstance(x, str) and x.startswith("ds_"))]
        if any(isinstance(x, str) and x.startswith("v_") for x in extra):
            gs_, rest = vgroups(base)
            mo = [i for i, x in enumerate(extra) if isinstance(x, str) and "m0" in x]
            cut = mo[0] if mo else len(extra)
            g2_, rest2 = vgroups(rest + extra[cut:])
            o += sched(m, ds, gs_ + g2_, extra[:cut]) + rest2
        else:
            gs_, rest = vgroups(base + extra)
            o += sched(m, ds, gs_) + rest
        return o
    UV = 176; WS = 216
    UVL = 159744
    uvd = [f"s_mov_b32 m0, {UVL}", "s_nop 0", VM(f"buffer_load_dwordx4 v1, s[8:11], s22 offen{SC} lds", ("UVD", 0)), VM(f"buffer_load_dwordx4 v1, s[8:11], s22 offen offset:1024{SC} lds", ("UVD", 1)),
           f"s_mul_i32 s22, s5, {144*4}", f"s_add_u32 s22, s22, {UV1}", f"s_mov_b32 m0, {UVL+2048}", "s_nop 0", VM(f"buffer_load_dwordx4 v1, s[8:11], s22 offen{SC} lds", ("UVD", 2)),
           f"s_add_u32 s22, s22, {9216-1024}", VM(f"buffer_load_dwordx4 v1, s[8:11], s22 offen offset:1024{SC} lds", ("UVD", 3))]
    uv2 = [f"ds_read_b64 v[{UV+2*j}:{UV+2*j+1}], v9 offset:{128*j}" for j in range(9)]
    touch = ["v_lshlrev_b32 v10, 12, v12", "v_lshl_add_u32 v10, v3, 4, v10", "s_lshl_b32 s31, s5, 8", "s_add_u32 s31, s31, s29"]
    for i in range(8):
        touch += [VM(f"buffer_load_dwordx4 a[{WS}:{WS+3}], v10, s[16:19], s31 offen", ("WL", i)), "s_add_u32 s31, s31, 16384"]
    CW1 = [int(x) for x in os.environ.get('CW1', '-1').split(',')]
    if merged and 'noft' not in X:
        touch = ["v_lshrrev_b32 v10, 3, v2", "v_lshlrev_b32 v10, 12, v10", "v_and_b32 v194, 7, v2", "v_lshl_add_u32 v10, v194, 4, v10"]
        t2 = ["s_lshl_b32 s31, s5, 7", "s_add_u32 s31, s31, s29"]
        for i in range(4): t2 += [VM(f"buffer_load_dwordx4 a[{WS}:{WS+3}], v10, s[16:19], s31 offen offset:2048", ("WL", i)), "s_add_u32 s31, s31, 32768"]
        touch += t2[:8] + t2[8:]
    TK0 = int(os.environ.get('TK0', '13'))
    for kk in range(18):
        ex = []
        ne = []
        if kk in CW1: ex = [VM("buffer_load_dword v195, v255, s[32:35], 0 offen", ("CW1", kk))]
        if kk == min(13, TK0-2): ex = uvd
        if kk == TK0-1: ex = touch[:4]
        if kk == TK0: ex = touch[4:12]
        if kk == TK0+1: ex = touch[12:]
        if kk == 6: ex = ["v_mul_u32_u24 v11, 80, v12"]
        if kk == 16: early[16] = [f"ds_bpermute_b32 v{ST+8+4*t+r}, v11, v{ST+8+4*t+r} offset:{4*r}" for t in range(2) for r in range(4)]
        if kk == 17:
            ex = ln_finish([ST+i for i in range(8)], [ST+8+i for i in range(8)], 576, 8, None)
            early[17] = uv2[:5]; ne = [("UVD", 3)]
        seq += kstep(kk, ex, ne)
    seq += [a.stamp(2), "s_waitcnt lgkmcnt(0)"] + uv2[5:] + ["s_nop 3"]
    ZR = [240, 244]; ZN = [242, 246]
    zst = ["v_and_b32 v210, 3, v3", "v_lshrrev_b32 v211, 2, v3", "v_lshl_add_u32 v211, v211, 4, v3", "v_lshlrev_b32 v211, 2, v211"]
    for t in range(2):
        zst += [f"v_mov_b32 v{ZR[t]}, v{ST+8+4*t}", f"v_mov_b32 v{ZN[t]}, v{ST+4*t}"]
    for r in range(1, 4):
        zst += [f"v_cmp_eq_u32 vcc, {r}, v210", "s_nop 1"]
        for t in range(2):
            zst += [f"v_cndmask_b32 v{ZR[t]}, v{ZR[t]}, v{ST+8+4*t+r}, vcc", f"v_cndmask_b32 v{ZN[t]}, v{ZN[t]}, v{ST+4*t+r}, vcc"]
    zbp = [f"ds_bpermute_b32 v{r}, v211, v{r}" for r in ZR + ZN]
    DL0 = int(os.environ.get('DL0', '18'))
    dlist = []
    for kk in range(DL0, 18): dlist += b1_group(kk)
    g2start = len(seq)
    Z1S, Z2S, TMP, GR = 196, 204, 212, 220
    for j in range(9):
        xs = [ACC2 + j*8 + 2*i for i in range(4)]; ts = [TMP + 2*i for i in range(4)]
        uv = P(UV + 2*j)
        if j == 3: seq.append("s_waitcnt lgkmcnt(0)")
        seq.append(f"v_mov_b32 v194, v{UV+2*j+1}")
        for i in range(4): seq.append(f"v_pk_fma_f32 {P(ts[i])}, {P(ST+2*i)}, {uv}, v[194:195] op_sel_hi:[1,0,0]")
        for i in range(4): seq.append(f"v_pk_fma_f32 {P(xs[i])}, {P(xs[i])}, {P(ST+8+2*i)}, {P(ts[i])}")
        seq += gelu_pairs(xs, ts)
        for i in range(4):
            if j == 0: seq += [f"v_pk_mul_f32 {P(Z2S+2*i)}, {P(xs[i])}, {P(xs[i])}"]
            elif j == 1: seq += [f"v_pk_add_f32 {P(Z1S+2*i)}, {P(xs[i])}, {P(ACC2+2*i)}", f"v_pk_fma_f32 {P(Z2S+2*i)}, {P(xs[i])}, {P(xs[i])}, {P(Z2S+2*i)}"]
            else: seq += [f"v_pk_add_f32 {P(Z1S+2*i)}, {P(xs[i])}, {P(Z1S+2*i)}", f"v_pk_fma_f32 {P(Z2S+2*i)}, {P(xs[i])}, {P(xs[i])}, {P(Z2S+2*i)}"]
    NG = int(os.environ.get('NG', '60'))
    seq = seq[:g2start] + interleave(seq[g2start:g2start+NG], dlist) + seq[g2start+NG:]
    gspos = len(seq)
    V = [(Z1S if i % 2 == 0 else Z2S) + i//2 for i in range(16)]
    T0, T1 = TMP, TMP+4
    seq += ["v_and_b32 v11, 3, v3", "v_cmp_eq_u32 vcc, 0, v11"]
    for r in range(4):
        seq += [f"v_add_f32_dpp v{T0+r}, v{V[r]}, v{V[r]} row_ror:8 row_mask:0xf bank_mask:0x3", f"v_add_f32_dpp v{T0+r}, v{V[8+r]}, v{V[8+r]} row_ror:8 row_mask:0xf bank_mask:0xc"]
    for r in range(4):
        seq += [f"v_add_f32_dpp v{T1+r}, v{V[4+r]}, v{V[4+r]} row_ror:8 row_mask:0xf bank_mask:0x3", f"v_add_f32_dpp v{T1+r}, v{V[12+r]}, v{V[12+r]} row_ror:8 row_mask:0xf bank_mask:0xc"]
    for r in range(4): seq.append(f"v_add_f32_dpp v{GR+r}, v{T0+r}, v{T0+r} row_shl:4 row_mask:0xf bank_mask:0x5")
    for r in range(4): seq.append(f"v_add_f32_dpp v{GR+r}, v{T1+r}, v{T1+r} row_shr:4 row_mask:0xf bank_mask:0xa")
    for qp in ("[1,0,3,2]", "[2,3,0,1]"):
        for r in range(4): seq.append(f"v_add_f32_dpp v{GR+r}, v{GR+r}, v{GR+r} quad_perm:{qp} row_mask:0xf bank_mask:0xf")
    seq += [f"v_or_b32 v{GR+1}, 1, v{GR+1}", f"v_or_b32 v{GR+3}, 1, v{GR+3}",
            f"s_lshl_b32 s23, s6, 12", f"s_add_u32 s23, s23, {ST2}", "s_lshl_b32 s24, s5, 8", "s_add_u32 s24, s24, s23",
            "v_lshlrev_b32 v10, 2, v2", f"v_mov_b32 v194, {BIG}", "v_cndmask_b32 v10, v194, v10, vcc",
            "v_lshlrev_b32 v9, 4, v12", f"v_add_u32 v9, {UVL+2048}, v9", a.stamp(3)]
    gs = [VM(f"buffer_store_dwordx4 v[{GR}:{GR+3}], v10, s[8:11], s24 offen sc1", "GS")]
    seq += gs
    U1 = 160
    uv1 = []
    for j in range(9):
        uv1.append(f"ds_read_b128 v[{U1+8*j}:{U1+8*j+3}], v9 offset:{64*j}")
        uv1.append(f"ds_read_b128 v[{U1+8*j+4}:{U1+8*j+7}], v9 offset:{64*j+1024}")
    PL = 176; R1 = [200+i for i in range(8)]; R2 = [192+i for i in range(8)]
    pl = [f"buffer_load_dwordx4 v[{PL+4*i}:{PL+4*i+3}], v1, s[8:11], s23 offen offset:{1024*i} sc1" for i in range(4)]
    bl = [VM("buffer_load_ushort v6, v5, s[36:39], s26 offen", "b0"), VM("buffer_load_ushort v7, v5, s[36:39], s26 offen offset:8", "b1")]
    chk = [f"v_min_u32 v209, v{PL+1}, v{PL+3}"] + [f"v_min_u32 v209, v209, v{PL+2*i+1}" for i in range(2, 8)] + ["v_cmp_eq_u32 vcc, 0, v209"]
    pollS = [WAIT([("PL", 3)])] + chk + ["s_mov_b32 s27, 0", "s_nop 3", "s_cbranch_vccz GM_S_GO", "GM_S_POLL:"] + pl + ["s_waitcnt vmcnt(0)"] + chk + \
            ["s_add_u32 s27, s27, 1", "s_cmp_ge_u32 s27, 0x80000", "s_cbranch_scc1 GM_S_GO", "s_nop 2", "s_cbranch_vccz GM_S_GO", f"s_sleep {SLP}", "s_branch GM_S_POLL", "GM_S_GO:", a.stamp(4)]
    nrm = [f"v_add_f32 v{PL+r}, v{PL+r}, v{PL+4+r}" for r in range(4)] + [f"v_add_f32 v{PL+8+r}, v{PL+8+r}, v{PL+12+r}" for r in range(4)]
    nrm += [f"v_add_f32 v{PL+r}, v{PL+r}, v{PL+8+r}" for r in range(4)]
    for sw in ("16", "32"):
        nrm += [f"v_mov_b32 v{PL+4+r}, v{PL+r}" for r in range(4)] + ["s_nop 1"]
        nrm += [f"v_permlane{sw}_swap_b32 v{PL+r}, v{PL+4+r}" for r in range(4)] + ["s_nop 1"]
        nrm += [f"v_add_f32 v{PL+r}, v{PL+r}, v{PL+4+r}" for r in range(4)]
    nrm += ln_finish([PL, PL+2], [PL+1, PL+3], FH, 2, None)
    nrm += ["v_lshlrev_b32 v11, 4, v12"]
    bp = []
    for i in range(8):
        bp += [f"ds_bpermute_b32 v{R1[i]}, v11, v{PL+2*(i%2)} offset:{4*(i//2)}", f"ds_bpermute_b32 v{R2[i]}, v11, v{PL+2*(i%2)+1} offset:{4*(i//2)}"]
    nrm += ["s_mul_i32 s26, s6, 9216", "v_add_u32 v208, 8192, v1"]
    nrm0 = nrm; nrm = []
    for j in range(9):
        for i in range(8): nrm.append(f"v_fma_f32 v{ACC2+8*j+i}, v{ACC2+8*j+i}, v{R2[i]}, v{R1[i]}")
        for i in range(4): nrm.append(f"v_cvt_pk_bf16_f32 v{ACC2+8*j+i}, v{ACC2+8*j+2*i}, v{ACC2+8*j+2*i+1}")
        nrm.append(VM(f"buffer_store_dwordx4 v[{ACC2+8*j}:{ACC2+8*j+3}], {['v1','v251','v208'][j//4]}, s[12:15], s26 offen offset:{1024*(j%4)} sc1", ("Z2", j)))
    KT = -1
    KP, KN0, KN1, JPK, KF = [int(x) for x in os.environ.get('P2', '22,24,25,3,31').split(',')]
    per = (len(nrm0) + (KN1-KN0) - 1) // (KN1-KN0)
    pb = "buffer_load_dword v11, v10, s[8:11], s23 offen sc1"
    CW2 = [int(x) for x in os.environ.get('CW2', '19').split(',')]
    flagprep = ["s_lshl_b32 s24, s6, 4", "s_add_u32 s24, s24, s5", "s_lshl_b32 s24, s24, 7", f"s_add_u32 s24, s24, {FLB}",
            "v_cmp_eq_u32 vcc, 0, v2", f"v_mov_b32 v13, {BIG}", "v_mov_b32 v5, 1", "v_cndmask_b32 v13, v13, 0, vcc"]
    ACC, B2V = 16, 160
    AV = [241, 243, 245, 247]
    aprep = ["v_lshrrev_b32 v4, 3, v2", "v_lshrrev_b32 v249, 2, v4", "v_lshlrev_b32 v249, 3, v249", "v_and_b32 v250, 3, v4", "v_add_u32 v249, v249, v250", "v_lshlrev_b32 v249, 12, v249",
            "v_lshrrev_b32 v4, 1, v4", "v_and_b32 v250, 7, v2", "v_xor_b32 v4, v4, v250",
            f"v_lshl_add_u32 v{AV[0]}, v4, 4, v249", "v_xor_b32 v4, 4, v4", f"v_lshl_add_u32 v{AV[1]}, v4, 4, v249", f"v_add_u32 v{AV[1]}, {65536-1024}, v{AV[1]}",
            f"v_add_u32 v{AV[2]}, {16384-2048}, v{AV[0]}", f"v_add_u32 v{AV[3]}, {16384-2048}, v{AV[1]}"]
    aprep2 = ["v_lshrrev_b32 v4, 1, v3", "v_xor_b32 v4, v4, v12", "v_lshlrev_b32 v4, 4, v4", "v_lshl_add_u32 v4, v3, 7, v4",
            "v_add_u32 v249, s7, v4", "v_xor_b32 v250, 64, v249", "v_add_u32 v4, s30, v4", "v_xor_b32 v8, 64, v4"]
    PLACE = {"R0": ("s30", 0), "R1": ("s30", 4096), "R2": ("s30", 8192), "S0a": ("s7", 0), "S0b": ("s7", 4096), "S1a": ("s7", 36864), "S1b": ("s7", 36864+4096)}
    def a2_dma(Pp, pl):
        b, off = PLACE[pl]
        return [f"s_add_u32 m0, {b}, {off}", f"s_add_u32 s21, s29, {128*Pp}"] + \
               [VM(f"buffer_load_dwordx4 v{AV[i]}, s[16:19], s21 offen offset:{1024*i} lds", ("A2", Pp, i)) for i in range(4)]
    def a2_rd(Pp, pl):
        b, off = PLACE[pl]
        regs = ("v4", "v8") if b == "s30" else ("v249", "v250")
        return [f"ds_read_b128 a[{8*((2*Pp+e) % 32)+4*t}:{8*((2*Pp+e) % 32)+4*t+3}], {regs[e]} offset:{off + t*2048}" for e in range(2) for t in range(2)]
    def a2tags(Pp): return [("A2", Pp, i) for i in range(4)]
    r1 = {21: [(3, "R2")], 23: [(4, "R0")], 25: [(5, "R1")], 27: [(6, "R2")], 28: [(7, "S0a")], 29: [(8, "S0b")],
          31: [(9, "S1a")], 32: [(10, "S1b")], 33: [(11, "R0")], 34: [(12, "R1")], 35: [(13, "R2")]}
    rr1 = {20: [(0, "R2")], 22: [(1, "R0")], 24: [(2, "R1")], 26: [(3, "R2")], 28: [(4, "R0")], 33: [(5, "R1")], 34: [(6, "R2")], 35: [(7, "S0a")]}
    if 'r1b' in X:
        r1 = {21: [(3, "R2")], 23: [(4, "R0")], 29: [(5, "R1")], 30: [(6, "R2"), (7, "S0a")], 31: [(8, "S0b"), (9, "S1a")], 32: [(10, "S1b")], 33: [(11, "R0")], 34: [(12, "R1")], 35: [(13, "R2")]}
    if 'r1a' not in X:
        r1 = {21: [(3, "R2")], 23: [(4, "R0")], 28: [(5, "R1")], 29: [(6, "R2")], 30: [(7, "S0a"), (8, "S0b")], 31: [(9, "S1a")], 32: [(10, "S1b")], 33: [(11, "R0")], 34: [(12, "R1")], 35: [(13, "R2")]}
    GA, GB_ = [int(x) for x in os.environ.get('GA', '300,440').split(',')]
    g2 = seq[g2start:gspos]
    g2 = g2[:GA] + aprep + aprep2 + interleave(g2[GA:GA+60], a2_dma(14, "R0") + a2_dma(15, "R1") + a2_dma(0, "R2")) + g2[GA+60:GB_] + \
         [WAIT(a2tags(15))] + a2_rd(14, "R0") + a2_rd(15, "R1") + g2[GB_:GB_+30] + ["s_waitcnt lgkmcnt(0)"] + interleave(g2[GB_+30:], a2_dma(1, "R0") + a2_dma(2, "R1"))
    seq = seq[:g2start] + g2 + seq[gspos:]
    for kk in range(18, 36):
        ex = []; ne = []
        if kk == 18: ex = ["v_lshlrev_b32 v5, 1, v248", "s_lshl_b32 s26, s6, 6"] + bl
        if kk == 20: ex = zst
        if kk == 21: early[kk] = early.get(kk, []) + zbp
        if kk == KP: ex = [VM(x, ("PL", i)) for i, x in enumerate(pl)]
        if kk in fine2: seq.append(st0(fine2[kk]))
        if kk == KN0: seq += pollS
        if kk == KN0: ex = nrm0
        if kk == KN0+1: seq += ["s_waitcnt lgkmcnt(0)"] + bp[:12] + ["s_waitcnt lgkmcnt(4)"] + bp[12:]
        if kk >= KN1: ex = nrm[13*JPK*(kk-KN1):13*JPK*(kk-KN1+1)]
        if kk == 30:
            assert not ex
            ex = flagprep + ["s_lshl_b32 s23, s3, 4", "s_add_u32 s23, s23, s5", "s_lshl_b32 s23, s23, 7", f"s_add_u32 s23, s23, {FLB}", "v_lshlrev_b32 v10, 13, v3"]
        if kk == KF: ex = [VM("buffer_store_dword v5, v13, s[8:11], s24 offen sc1", "FB")] + ex; ne = [("Z2", 8)]
        if kk in (30, 31): early[kk] = early.get(kk, []) + uv1[5*(kk-30):5*(kk-30)+5]
        if kk == 35: early[kk] = early.get(kk, []) + uv1[10:]
        for Pp, pl_ in r1.get(kk, []): ex = ex + a2_dma(Pp, pl_)
        for Pp, pl_ in rr1.get(kk, []): early[kk] = early.get(kk, []) + a2_rd(Pp, pl_); ne = ne + a2tags(Pp)
        if kk in CW2: early[kk] = early.get(kk, []) + [VM("buffer_load_dword v15, v255, s[32:35], 0 offen", ("CW2", kk))]
        if kk == 35: ex = [VM(pb, "PB")] + ex
        seq += kstep(kk, ex, ne)
    seq += [a.stamp(5)]
    TM1 = 232
    JF = int(os.environ.get('JF', '0'))
    def z1g(j):
        o = []
        xs = [ACC1 + j*8 + 2*i for i in range(4)]; ts = [TM1 + 2*i for i in range(4)]
        for i in range(4):
            o.append(f"v_pk_fma_f32 {P(ts[i])}, {P(U1+8*j+2*(i%2))}, {P(ZN[i//2])}, {P(U1+8*j+4+2*(i%2))} op_sel_hi:[1,0,1]")
        for i in range(4):
            o.append(f"v_pk_fma_f32 {P(xs[i])}, {P(xs[i])}, {P(ZR[i//2])}, {P(ts[i])} op_sel_hi:[1,0,1]")
        return o
    def late_gelu(j, hf):
        xs = [ACC1+8*j+4*hf+i for i in range(4)]; ts = [232+4*hf+i for i in range(4)]
        o = []
        for x, t in zip(xs, ts): o.append(f"v_mul_f32 v{t}, v{x}, v{x}")
        for x, t in zip(xs, ts): o.append(f"v_fma_f32 v{t}, v{t}, s40, v14")
        for x, t in zip(xs, ts): o.append(f"v_mul_f32 v{t}, v{t}, v{x}")
        for x, t in zip(xs, ts): o.append(f"v_exp_f32 v{t}, v{t}")
        for x, t in zip(xs, ts): o.append(f"v_add_f32 v{t}, 1.0, v{t}")
        for x, t in zip(xs, ts): o.append(f"v_rcp_f32 v{t}, v{t}")
        for x, t in zip(xs, ts): o.append(f"v_mul_f32 v{x}, v{x}, v{t}")
        return o
    def b2_group(k):
        T = (k+1)//4 + 2
        if T >= 15: return []
        p0, cnt = P0[k % 4]
        o = [f"s_add_u32 m0, s7, {(T % 3)*36864 + p0*1024}", "s_nop 0"]
        for i in range(cnt): o.append(VM(f"buffer_load_dwordx4 v1, s[12:15], s20 offen offset:{1024*i} sc1 lds", ("B2", T, p0+i)))
        o.append(f"s_add_u32 s20, s20, {cnt*1024 if k % 4 != 2 else 36864 - 7168}")
        return o
    def b2tags(T): return [("B2", T, p) for p in range(9)]
    def b2_reads(k):
        return [f"ds_read_b128 v[{B2V + (k%2)*36 + 4*j}:{B2V + (k%2)*36 + 4*j + 3}], v{SL + (k//4) % 3} offset:{(k%4)*9216 + j*1024}" for j in range(9)]
    seq += ["s_mov_b32 s20, s7", WAIT(a2tags(10), lgkm=True)] + a2_rd(8, "S0b") + a2_rd(9, "S1a") + a2_rd(10, "S1b")
    J2 = int(os.environ.get('J2', '2'))
    for j in range(J2): seq += z1g(j)
    seq += [WAIT(["PB"]), "v_cmp_eq_u32 vcc, 0, v11", "s_waitcnt lgkmcnt(0)", "s_nop 3", "s_cbranch_vccz GM_B_GO"]
    resolve(pre + seq); emit(a, seq); pre2 = [VM("; ", x.tag) for x in seq if isinstance(x, VM) and x.tag[0] == "A2" and x.tag[1] in (11, 12, 13)]
    poll_loop(a, "GM_B", [pb], [11], None)
    a(a.stamp(6))
    seq = list(pre2)
    for k in range(-9, -5): seq += b2_group(k)
    fl = []
    for k in range(-5, -3): fl += b2_group(k)
    val = []
    for j in range(J2, 9): val += z1g(j)
    seq += interleave(val, fl)
    if fine2: phase[0] = 1
    if Asm.STAMPS: seq += [a.stamp(7), "STAMPFLUSH"]
    seq += [f"v_lshlrev_b32 v{232+i}, 16, v{6 + i//4}" for i in range(8)]
    seq += [WAIT(b2tags(0)), "s_barrier"] + b2_reads(0)
    KA = 46
    PS_ = [11, 12, 13] + list(range(16, 32))
    RPi = lambda i: 2 + ((KA-2)*i)//(len(PS_)-1)
    KT0 = 52
    rd_at = {RPi(i): (Pp, f"R{i % 3}") for i, Pp in enumerate(PS_)}
    assert len(rd_at) == len(PS_) and all(RPi(i) <= 2*p_-1 and RPi(i) >= 2*(p_-16)+2 for i, p_ in enumerate(PS_))
    dma_at = {RPi(i-3)+1: (PS_[i], f"R{i % 3}") for i in range(3, len(PS_))}
    def areg(k, t): return f"a[{8*(k%32)+4*t}:{8*(k%32)+4*t+3}]"
    def mf2(k, j, t, breg):
        r = ACC + (j*2+t)*4
        return f"{MF} v[{r}:{r+3}], v[{breg}:{breg+3}], {areg(k, t)}, {f'v[{232+4*t}:{235+4*t}]' if k == 0 else f'v[{r}:{r+3}]'}"
    g3prep = f"""
      s_and_b32 s44, s2, 7
      s_lshl_b32 s44, s44, 2
      s_lshr_b32 s45, s2, 3
      s_and_b32 s38, s45, 3
      s_add_u32 s44, s44, s38             ; mb
      s_lshr_b32 s45, s45, 2
      s_mul_i32 s45, s45, 9
      s_lshr_b32 s45, s45, 1              ; n0
      s_mul_i32 s39, s3, {18*36864}
      s_lshl_b32 s38, s45, 10
      s_add_u32 s39, s39, s38
      s_add_u32 s39, s39, {WOUTF}         ; W soffset (registers part)
      s_add_u32 s36, s39, {11*36864}      ; W soffset (lds part)
      s_mul_i32 s37, s3, 30720
      s_add_u32 s37, s37, 36864           ; lds W area
      s_bitcmp1_b32 s2, 5                 ; odd column block: lower half of tile 0 belongs to the neighbour, else upper half of tile 4
      s_cselect_b32 s46, 0, 16
      s_cselect_b32 s47, 16, 8
      v_and_b32 v250, 8, v3
      v_mov_b32 v11, {BIG}
      v_cmp_eq_u32 vcc, s46, v250
      s_nop 1
      v_cndmask_b32 v3, v1, v11, vcc
      v_cmp_eq_u32 vcc, s47, v250
      s_nop 1
      v_cndmask_b32 v250, v251, v11, vcc""".split("\n")
    ib = [i for i, x in enumerate(g3prep) if 's_bitcmp1' in x][0]
    g3prep = g3prep[:ib] + ["\n".join(g3prep[ib:ib+3])] + g3prep[ib+3:]
    NWR = 11
    def w_reg(k): return 20*k if k < NWR else (20*(k-NWR) if k < 17 else 224)
    def w_loads(k, so="s39"):
        r = w_reg(k)
        return [VM(f"buffer_load_dwordx4 a[{r+4*j}:{r+4*j+3}], {['v3','v1','v1','v1','v250'][j]}, s[8:11], {so} offen offset:{1024*(j%4)}{SC}", ("W", k, j)) for j in range(5)] + [f"s_add_u32 {so}, {so}, 36864"]
    def w_dma(k):
        o = [f"s_add_u32 m0, s37, {(k-NWR)*5120}", "s_nop 0"]
        o += [VM(f"buffer_load_dwordx4 {'v3' if j == 0 else 'v1'}, s[8:11], s36 offen offset:{1024*j}{SC} lds", ("W", k, j)) for j in range(4)]
        o += [f"s_add_u32 m0, s37, {(k-NWR)*5120 + 4096}", "s_nop 0", VM(f"buffer_load_dwordx4 v250, s[8:11], s36 offen{SC} lds", ("W", k, 4)), "s_add_u32 s36, s36, 36864"]
        return o
    apieces = {}
    for k0, (Pp, pl_) in dma_at.items():
        b, off = PLACE[pl_]
        ks_ = [k0, k0, k0+1, k0+1] if (k0+1) not in dma_at else [k0]*4
        for i in range(4):
            gr = [f"s_add_u32 m0, {b}, {off}", VM(f"buffer_load_dwordx4 v{AV[i]}, s[16:19], s21 offen offset:{1024*i} lds", ("A2", Pp, i))]
            if i > 0 and ks_[i] == ks_[i-1]: gr = gr[1:]
            if i == 0: gr = [f"s_add_u32 s21, s29, {128*Pp}"] + gr
            apieces.setdefault(ks_[i], []).append(gr)
    CWK = [int(x) for x in os.environ.get('CWK', '1,9,17,25,33,41,49').split(',')]
    def t15_group(k):
        p0, cnt = P0[k % 4]
        o = [f"s_add_u32 m0, s7, {ALDS + p0*1024}"]
        for i in range(cnt): o.append(VM(f"buffer_load_dwordx4 v1, s[12:15], s21 offen offset:{1024*i} sc1 lds", ("B2", 15, p0+i)))
        o.append(f"s_add_u32 s21, s21, {cnt*1024}")
        return o
    tailprep = f"""
      v_add_u32 v4, {ALDS}, v1
      v_lshlrev_b32 v8, 3, v2
      s_lshr_b32 s22, s5, 1
      s_mul_i32 s22, s22, 9216
      s_mul_i32 s23, s6, {2*73728}
      s_add_u32 s22, s22, s23
      s_add_u32 s22, s22, {PF}
      s_and_b32 s23, s5, 1
      s_lshl_b32 s28, s23, 12
      s_add_u32 s28, s28, s22
      s_add_u32 s29, s28, 73728
      s_lshl_b32 s23, s23, 9
      s_add_u32 s30, s22, s23
      s_add_u32 s30, s30, 8192
      s_add_u32 s31, s30, 73728
      s_add_u32 s24, s24, {FLP-FLB}""".split("\n")
    TK = [52, 53, 54, 55, 60, 61, 62, 63, 56, 57, 58, 59]
    def ureg(u): return B2V + 24*(u % 3)
    def u_reads(u):
        if u >= 18: return []
        j, hf = divmod(u, 2)
        o = []
        for i, k in enumerate(TK[6*hf:6*hf+6]):
            ad = "v4" if k >= 60 else f"v{SL + (k//4) % 3}"
            o.append(f"ds_read_b128 v[{ureg(u)+4*i}:{ureg(u)+4*i+3}], {ad} offset:{(k%4)*9216 + j*1024}")
        return o
    WE = [int(x) for x in os.environ.get('WE', '43,45').split(',')]
    wq = [w_loads(k) for k in range(0, NWR)] + [w_dma(k) for k in range(NWR, 17)] + [w_loads(17, "s36")]
    lg = []
    for j in range(JF, 9): lg += late_gelu(j, 1) + late_gelu(j, 0)
    LG0, LG1 = 2, int(os.environ.get('LG1', '52'))
    for k in range(KT0):
        need = []
        if k in rd_at: need += a2tags(rd_at[k][0])
        if k % 4 == 3: need += b2tags((k+1)//4)
        if k == KT0-1: need += b2tags(15)
        if k == 51: need += [("G", 3)]
        seq.append(WAIT(need, lgkm=True))
        if k % 4 == 3: seq.append("s_barrier")
        mm = [mf2(k, j, t, B2V + (k%2)*36 + 4*j) for j in range(9) for t in range(2)]
        ds = b2_reads(k+1) if k+1 < KT0 else u_reads(0)
        if k in rd_at: ds += a2_rd(*rd_at[k])
        f = {0: b2_group(-3) + b2_group(-2), 1: b2_group(-1) + b2_group(0), 2: b2_group(1) + b2_group(2)}.get(k, None)
        if f is None: f = b2_group(k)
        f = f + [y for x in apieces.get(k, []) for y in x]
        if 47 <= k < 49: f = t15_group(2*k-47) + t15_group(2*k-46) + f
        if k in CWK: f += [VM("buffer_load_dword v15, v255, s[32:35], 0 offen", ("CW", k))]
        oth = []
        if k == 46: oth = [f"s_add_u32 s21, s7, {15*36864}"]
        if k == 48: oth = tailprep
        if k == 1: oth = ["s_lshr_b32 s42, s2, 5", "s_mul_i32 s42, s42, 9", "s_lshr_b32 s42, s42, 1", "s_lshl_b32 s42, s42, 7",
                           f"s_add_u32 s42, s42, {MODP + 5*576*8}", f"s_add_u32 s43, s42, {3456*8}", "v_lshlrev_b32 v9, 3, v2"]
        if k == 44: f += [VM(f"buffer_load_dword v{240+2*i}, v9, s[8:11], s{42 + i%2} offen offset:{512*(i//2)}{SC}", ("G", i)) for i in range(4)]
        if k == 51: oth = ["v_add_f32 v6, v240, v242", "v_add_f32 v7, v244, v246", "v_cvt_pk_bf16_f32 v6, v6, v7", "v_and_b32 v7, 0xffff0000, v6", "v_lshlrev_b32 v6, 16, v6"]
        if k == 0: oth = g3prep
        if k in WE: f += wq.pop(0)
        if LG0 <= k < LG1 and 'nolg' not in X: oth = oth + lg[len(lg)*(k-LG0)//(LG1-LG0):len(lg)*(k+1-LG0)//(LG1-LG0)]
        gs_, rest = vgroups(f)
        if 'nov' in X and 3 < k < 43:
            for gr in gs_: gr[-1].text = 's_nop 0'
        seq += sched(mm, ds, gs_, oth) + rest
    seq.append(a.stamp(0))
    def epi(j):
        o = []
        for t in range(2):
            x = ACC + (j*2+t)*4; z = ACC1 + 8*j + 4*t
            od = ACC + ((j & ~1)*2+t)*4
            for r in range(4): o.append(f"v_mul_f32 v{x+r}, v{x+r}, v{z+r}")
            for h in range(2): o.append(f"v_cvt_pk_bf16_f32 v{od + (j%2)*2 + h}, v{x+2*h}, v{x+2*h+1}")
            if j % 2 == 1: o.append(VM(f"buffer_store_dwordx4 v[{od}:{od+3}], v1, s[8:11], s{28+t} offen offset:{1024*(j//2)} sc1", ("PS", j, t)))
            if j == 8: o.append(VM(f"buffer_store_dwordx2 v[{od}:{od+1}], v8, s[8:11], s{30+t} offen sc1", ("PS", 9, t)))
        return o
    WT = [int(x) for x in os.environ.get('WT', '8,1,6').split(',')]
    CW3 = [int(x) for x in os.environ.get('CW3', '-1').split(',')]
    nleft = 8 - (18 - len(wq))
    tailw = set((i*8)//nleft for i in range(nleft)) if nleft else set()
    seq += [WAIT(b2tags(14), lgkm=True), "s_barrier"] + u_reads(1)
    for u in range(18):
        j, hf = divmod(u, 2)
        m_ = [mf2(k, j, t, ureg(u) + 4*i) for i, k in enumerate(TK[6*hf:6*hf+6]) for t in range(2)]
        if u > 0: seq.append(f"s_waitcnt lgkmcnt({6 if u < 17 else 0})")
        e = epi(j-1) if j >= 1 else []
        if hf == 0:
            seq += interleave(m_[:6], u_reads(u+2) if u < 16 else ["s_nop 1"]) + interleave(m_[6:], e)
        else:
            gs_, rest = vgroups((wq.pop(0) if j in tailw else []) + ([VM("buffer_load_dword v15, v255, s[32:35], 0 offen", ("CW3", j))] if j in CW3 else []))
            seq += sched(m_, u_reads(u+2), gs_, vm_start=1) + rest
    seq += ["s_nop 7"] + epi(8) + ["s_barrier"]
    PV, LW = 240, 244
    seq += f"""
      s_mul_i32 s20, s44, {4*73728}
      s_mul_i32 s6, s3, {18*1024}
      s_add_u32 s20, s20, s6
      s_add_u32 s20, s20, {PF}            ; P soffset
      s_lshl_b32 s23, s44, 12
      s_lshl_b32 s6, s3, 9
      s_add_u32 s23, s23, s6
      s_add_u32 s23, s23, {FLP}           ; poll address
      v_and_b32 v10, 3, v2
      v_bfe_u32 v11, v2, 2, 1
      v_lshl_add_u32 v10, v11, 4, v10
      v_lshlrev_b32 v10, 7, v10
      v_add_u32 v249, s37, v1""".split("\n")
    for u in range(4):
        seq += [f"s_add_u32 s6, s3, {u}", "s_and_b32 s6, s6, 3", "s_mul_i32 s7, s6, 73728", f"v_add_u32 v{PV+u}, s7, v1"]
        if u > 0: seq += ["s_mul_i32 s7, s6, 15360", f"s_add_u32 s7, s7, {(u-1)*5120}", f"v_add_u32 v{LW+u}, s7, v1"]
    for _ in range(WT[1]): seq += wq.pop(0)
    seq += [a.stamp(1), WAIT([("PS", 9, 1)]), VM("buffer_store_dword v5, v13, s[8:11], s24 offen sc1", "FP"), a.stamp(2)]
    DEP = 6; AC3 = 16; PR = 96; XR, GB, GR_ = 192, 204, 96
    seq += [f"s_lshl_b32 s22, s44, 2", "s_add_u32 s22, s22, s3", "s_mul_i32 s25, s22, 18432", "s_lshl_b32 s24, s45, 9", "s_add_u32 s25, s25, s24", f"s_add_u32 s25, s25, {X1F}",
            "v_lshlrev_b32 v8, 4, v12"]
    xl = [VM(f"buffer_load_dwordx2 v[{XR+2*j}:{XR+1+2*j}], v9, s[8:11], s25 offen offset:{512*j}{SC}", ("X", j)) for j in range(5)]
    for _ in range(WT[2]): seq += wq.pop(0)
    for j in range(5):
        for r in range(4): seq.append(f"ds_bpermute_b32 v{GB+4*j+r}, v8, v{6 if j < 4 else 7} offset:{64*(j%4) + 4*r}")
        if j == 2: seq.append("s_waitcnt lgkmcnt(0)")
    resolve(seq)
    for it in seq:
        if it == "STAMPFLUSH": a.stamp_flush2(2, 8)
        else: emit(a, [it])
    a.srd(12, "out")
    poll_loop(a, "GM_P", ["buffer_load_dword v11, v10, s[8:11], s23 offen sc1"], [11], None)
    a(a.stamp(3))
    done = [VM("; ", x.tag) for x in seq if isinstance(x, VM) and x.tag[0] == "W"]
    def p_loads(k):
        if k >= 18: return []
        r = PR + (k % DEP)*16
        if k % 9 != 8: o = [VM(f"buffer_load_dwordx4 v[{r+4*u}:{r+4*u+3}], v{PV+u}, s[8:11], s20 offen offset:{1024*(k%4)} sc1", ("P", k, u)) for u in range(4)]
        else:
            o = []
            for u in range(4):
                o += [f"v_sub_u32 v11, v{PV+u}, v9", VM(f"buffer_load_dwordx2 v[{r+4*u}:{r+4*u+1}], v11, s[8:11], s20 offen offset:{1024*(k%4)} sc1", ("Ph", k, u)),
                      VM(f"buffer_load_dwordx2 v[{r+4*u+2}:{r+4*u+3}], v11, s[8:11], s20 offen offset:{1024*(k%4)+512} sc1", ("P", k, u))]
        if k % 4 == 3: o.append("s_add_u32 s20, s20, 4096")
        return o
    def w_rd(k): return [f"ds_read_b128 a[{w_reg(k)+4*j}:{w_reg(k)+4*j+3}], v249 offset:{(k-NWR)*5120 + 1024*j}" for j in range(5)]
    seq = list(done)
    for k in range(DEP-1): seq += p_loads(k)
    for k in range(18):
        kr = k + 4
        need = [("P", k, 3)] + ([("W", k, 4)] if (k < NWR or k == 17) else []) + ([("W", kr, 4)] if NWR <= kr < 17 else [])
        seq.append(WAIT(need, lgkm=(NWR <= k < 17)))
        if k == 0: seq.append(a.stamp(4))
        if k == 14: seq.append("s_barrier")
        r = PR + (k % DEP)*16
        mm = []
        for u in ((1, 2, 3, 0) if k == 17 else range(4)):
            for j in range(5):
                c = AC3 + (u*5+j)*4
                mm.append(f"{MF} v[{c}:{c+3}], a[{w_reg(k)+4*j}:{w_reg(k)+4*j+3}], v[{r+4*u}:{r+4*u+3}], {'0' if k == 0 else f'v[{c}:{c+3}]'}")
        f = p_loads(k+DEP-1) + (wq.pop(0) if wq else []) + (w_rd(kr) if NWR <= kr < 17 else []) + (xl if k == 13 else [])
        ds = [x for x in f if isinstance(x, str) and x.startswith("ds_")]
        gs_, rest = vgroups([x for x in f if not (isinstance(x, str) and x.startswith("ds_"))])
        if k < 17: seq += sched(mm, ds, gs_, vm_start=1) + rest
        else:
            wr = [f"ds_write_b128 v{LW+u}, v[{AC3+(u*5+j)*4}:{AC3+(u*5+j)*4+3}] offset:{1024*j}" for u in range(1, 4) for j in range(5)]
            seq += mm[:9] + interleave(mm[9:], wr[:11]) + [a.stamp(5), "s_mul_i32 s7, s3, 15360", "v_add_u32 v11, s7, v1"] + wr[11:]
    seq += ["v_mul_u32_u24 v4, 1152, v248",
            "v_lshl_add_u32 v4, v12, 3, v4", "s_lshr_b32 s25, s22, 1", f"s_mul_i32 s25, s25, {32*1152}", "s_and_b32 s26, s22, 1", f"s_mul_i32 s26, s26, {4*1152}",
            "s_add_u32 s25, s25, s26", "s_lshl_b32 s26, s45, 5", "s_add_u32 s25, s25, s26",
            "v_lshlrev_b32 v8, 2, v12", "v_and_b32 v8, 8, v8", f"v_mov_b32 v9, {BIG}", "v_cmp_eq_u32 vcc, s46, v8", "s_nop 1", "v_cndmask_b32 v5, v4, v9, vcc",
            "v_cmp_eq_u32 vcc, s47, v8", "s_nop 1", "v_cndmask_b32 v6, v4, v9, vcc",
            "s_waitcnt lgkmcnt(0)", "s_barrier"]
    for i in range(15):
        c = AC3 + 20 + 4*i
        seq.append(f"ds_read_b128 v[{c}:{c+3}], v11 offset:{1024*i}")
        if i == 13: seq.append("s_waitcnt lgkmcnt(8)")
    seq += [WAIT([("X", 4)], lgkm=True)]
    for j in range(5):
        for h in range(2):
            x = AC3 + 4*j + 2*h
            seq += [f"v_pk_add_f32 {P(x)}, {P(x)}, {P(x+20)}", f"v_pk_add_f32 {P(x+40)}, {P(x+40)}, {P(x+60)}",
                    f"v_lshlrev_b32 v{x+20}, 16, v{XR+2*j+h}", f"v_and_b32 v{x+21}, 0xffff0000, v{XR+2*j+h}",
                    f"v_pk_add_f32 {P(x)}, {P(x)}, {P(x+40)}",
                    f"v_pk_fma_f32 {P(x)}, {P(x)}, {P(GB+4*j+2*h)}, {P(x+20)}",
                    f"v_cvt_pk_bf16_f32 v{XR+2*j+h}, v{x}, v{x+1}"]
        seq.append(VM(f"buffer_store_dwordx2 v[{XR+2*j}:{XR+1+2*j}], {['v5','v4','v4','v4','v6'][j]}, s[12:15], s25 offen offset:{32*j}", ("O", j)))
    resolve(seq); emit(a, seq)
    a(a.stamp(6))
    a.stamp_end(3, 8)
    a("GM_END:\ns_endpgm\nGM_CODE_END:")
    a.stamp = st0
    if merged:
        from gen_s import KNAME
        a.desc(KNAME, 512, 256, 100)
    else: a.desc("gm_kernel", 512, 256)
```

```python
from gen_common import *
from gen_g import VM, WAIT, resolve, emit
from gen_f import poll, get_nonce, check_nonce, CH_LDS, KCS, URO, URS, YO, YS, QO, BIG, FU, FH2
import os
X = os.environ.get('X', '').split(',')
FD = FLF + 768*128
STL = QO + 18432
L0, NT = "v250", "v251"
KNAME = "adaLN_cond__ssm_conv_h3__mixer_gmlp__prompt_kernel"

CWS = '''
      s_getpc_b64 s[12:13]
    F_PC{n}:
      s_sub_u32 s12, s12, F_PC{n}-{K}
      s_subb_u32 s13, s13, 0
      s_and_b32 s13, s13, 0xffff
      s_mov_b32 s14, {end}-{K}
      s_mov_b32 s15, 0x20000
'''
def red32x2(a, r0, r1, t0, t1):
    for op in ("quad_perm:[1,0,3,2]", "quad_perm:[2,3,0,1]", "row_half_mirror", "row_mirror"):
        a(f"s_nop 0\nv_add_f32_dpp {r0}, {r0}, {r0} {op} row_mask:0xf bank_mask:0xf\nv_add_f32_dpp {r1}, {r1}, {r1} {op} row_mask:0xf bank_mask:0xf")
    a(f"""
      v_mov_b32 {t0}, {r0}
      v_mov_b32 {t1}, {r1}
      s_nop 1
      v_permlane16_swap_b32 {r0}, {t0}
      v_permlane16_swap_b32 {r1}, {t1}
      s_nop 1
      v_add_f32 {r0}, {r0}, {t0}
      v_add_f32 {r1}, {r1}, {t1}
    """)

def gen_front(a):
    a.begin(KNAME)
    a(f"s_cmp_ge_u32 s2, 256\ns_cbranch_scc1 GM_END")
    a(a.stamp(0))
    a.load_args()
    a("""
      s_memrealtime s[40:41]
      s_mov_b32 s96, 64
      v_lshrrev_b32 v1, 6, v0
      v_and_b32 v2, 63, v0                ; lane
      v_readfirstlane_b32 s3, v1          ; wave
      v_lshlrev_b32 v3, 4, v2             ; lane*16
      v_and_b32 v4, 15, v2                ; l&15
      v_lshrrev_b32 v5, 4, v2             ; g
      s_and_b32 s4, s2, 7
      s_mul_i32 s4, s4, 18
      s_lshr_b32 s5, s2, 3
      s_add_u32 s4, s4, s5
      s_waitcnt lgkmcnt(0)
    """)
    a.srd(8, "ws"); a.srd(28, "dbg", 256)
    a(f"v_cmp_eq_u32 vcc, 0, v2\nv_mov_b32 {L0}, {BIG}\nv_mov_b32 {NT}, 0\nv_cndmask_b32 {L0}, {L0}, 0, vcc")
    a(f"""
      s_or_b32 s5, s2, s3
      s_cmp_lg_u32 s5, 0
      s_cbranch_scc1 F_NOTAG
      s_mul_i32 s41, s41, 0x9e3779b1
      s_xor_b32 s40, s40, s41
      s_or_b32 s40, s40, 1
      v_mov_b32 v8, s40
      buffer_store_dword v8, {L0}, s[28:31], 0 offen sc1
    F_NOTAG:
      s_cmp_ge_u32 s2, 144
      s_cbranch_scc1 F_OTHER
    """)
    def zero_gm():
        a(f"""
          v_mov_b32 v248, 0
          v_lshlrev_b32 v249, 2, v0
          s_lshl_b32 s46, s2, 10
          s_add_u32 s46, s46, {ST2}
          buffer_store_dword v248, v249, s[8:11], s46 offen sc1
          s_lshl_b32 s46, s2, 2
          s_add_u32 s46, s46, s3
          s_lshl_b32 s46, s46, 7
          s_add_u32 s46, s46, {FLB}
          buffer_store_dword v248, {L0}, s[8:11], s46 offen sc1
          s_add_u32 s46, s46, {FLP-FLB}
          buffer_store_dword v248, {L0}, s[8:11], s46 offen sc1
        """)
    a(f"""
      s_and_b32 s5, s4, 15                ; rb
      s_lshr_b32 s6, s4, 4                ; cb
      v_lshrrev_b32 v6, 5, v0
      v_and_b32 v7, 31, v0                ; cp
      s_lshl_b32 s7, s5, 7
      v_lshl_add_u32 v8, v6, 4, s7        ; s0
      s_lshl_b32 s7, s6, 7
      v_lshl_add_u32 v9, v7, 2, s7
      v_mul_u32_u24 v11, 1152, v8
      v_add_u32 v11, v11, v9              ; row s0
      v_subrev_u32 v10, 4608, v11         ; row s0-4
      v_add_u32 v12, 4608, v11
      v_add_u32 v13, 9216, v11
      v_add_u32 v14, 13824, v11
      v_lshlrev_b32 v15, 2, v9
    """)
    a.srd(12, "k"); a.srd(16, "v"); a.srd(20, "shk"); a.srd(24, "q"); a.srd(32, "ssmk")
    KR, VR, SQ, SH, KU, VU, RES, PK = 20, 40, 224, 56, 64, 104, 136, 168
    seq = [VM("buffer_load_dwordx4 v[16:19], v15, s[20:23], 0 offen", "sh")]
    for i in range(1, 20):
        seq.append(VM(f"buffer_load_dword v{KR+i}, v{10+i//4}, s[12:15], 0 offen offset:{1152*(i%4)}", ("k", i)))
        if i >= 4: seq.append(VM(f"buffer_load_dword v{VR+i-4}, v{10+i//4}, s[16:19], 0 offen offset:{1152*(i%4)}", ("v", i)))
    seq.append(VM(f"buffer_load_dword {NT}, {NT}, s[28:31], 0 offen sc1", "nt"))
    if 'cwc' in X:
        seq += CWS.format(n=1, K=KNAME, end="F_OTHER").split("\n") + ["s_lshr_b32 s7, s2, 3", "s_and_b32 s7, s7, 15", "s_lshl_b32 s7, s7, 7", "v_lshlrev_b32 v8, 11, v0",
                VM("buffer_load_dword v246, v8, s[12:15], s7 offen", "cw")]
    seq += f"""
      s_mul_i32 s38, s3, {CH_LDS}
      s_lshl_b32 s7, s4, 2
      s_add_u32 s7, s7, s3
      s_lshl_b32 s44, s7, 12
      s_add_u32 s45, s44, {UR}
      v_lshlrev_b32 v13, 1, v6
      v_sub_u32 v13, 15, v13
      v_and_b32 v11, 7, v7
      v_xor_b32 v13, v13, v11
      v_lshlrev_b32 v13, 4, v13
      v_lshl_add_u32 v13, v7, 9, v13
      v_add_u32 v13, {YO}, v13
      v_xor_b32 v10, 16, v13
      s_lshl_b32 s46, s4, 4
      s_lshl_b32 s47, s3, 2
      s_add_u32 s46, s46, s47
      v_lshrrev_b32 v14, 5, v2
      v_add_u32 v15, s46, v14
      v_mul_u32_u24 v15, 1152, v15
      v_lshl_add_u32 v15, v7, 2, v15""".split("\n")
    def kcopy(t):
        return [f"s_add_u32 m0, s38, {t*KCS + 60 - 4*t}", "s_nop 0"] + [VM(f"buffer_load_dwordx4 v3, s[32:35], s44 offen offset:{1024*i} lds", ("K", t, i)) for i in range(4)]
    def half(h):
        o = []
        ks = range(1, 12) if h == 0 else range(12, 20)
        for i in ks: o += [f"v_lshlrev_b32 v{KU+2*i}, 16, v{KR+i}", f"v_and_b32 v{KU+1+2*i}, 0xffff0000, v{KR+i}"]
        for i in range(8*h, 8*h+8): o += [f"v_lshlrev_b32 v{VU+2*i}, 16, v{VR+i}", f"v_and_b32 v{VU+1+2*i}, 0xffff0000, v{VR+i}"]
        for i in range(8*h, 8*h+8):
            d = f"v[{RES+2*i}:{RES+1+2*i}]"
            kk = lambda j: f"v[{KU+2*(i+4-j)}:{KU+1+2*(i+4-j)}]"
            o.append(f"v_pk_mul_f32 {d}, {kk(3)}, v[{SH+6}:{SH+7}]")
            for j in (2, 1, 0): o.append(f"v_pk_fma_f32 {d}, {kk(j)}, v[{SH+2*j}:{SH+1+2*j}], {d}")
            o.append(f"v_pk_mul_f32 {d}, {d}, v[{VU+2*i}:{VU+1+2*i}]")
        for ch in range(2):
            p = PK + 8*h + 4*ch
            for dd in range(4): o.append(f"v_cvt_pk_bf16_f32 v{p+dd}, v{RES+2*(8*h+7-2*dd)+ch}, v{RES+2*(8*h+6-2*dd)+ch}")
            o.append(f"ds_write_b128 {'v13' if h == 0 else 'v10'}, v[{p}:{p+3}] offset:{ch*256}")
        return o
    seq.append(WAIT([("v", 11)]))
    for j in range(4):
        op = "v_lshlrev_b32 {d}, 16, {s}" if j % 2 == 0 else "v_and_b32 {d}, 0xffff0000, {s}"
        seq += [op.format(d=f"v{SH+2*j}", s=f"v{16+j//2}"), op.format(d=f"v{SH+1+2*j}", s=f"v{18+j//2}")]
    seq += half(0)
    seq += [WAIT([("v", 19)]), a.stamp(1)]
    sq = [VM(f"buffer_load_dword v{SQ+9*r+i}, v15, s[24:27], 0 offen offset:{128*i + 2304*r}", ("sq", r, i)) for r in range(2) for i in range(9)]
    seq += interleave(half(1), sq + kcopy(0))
    seq += f"""
      v_lshrrev_b32 v11, 4, v0
      v_xor_b32 v12, v4, v6
      v_lshlrev_b32 v12, 4, v12
      v_lshl_add_u32 v12, v11, 8, v12
      v_add_u32 v12, {YO}, v12
      v_lshlrev_b32 v11, 12, v11
      v_lshl_add_u32 v11, v4, 4, v11
      s_lshl_b32 s46, s6, 18
      s_sub_u32 s47, 15, s5
      s_lshl_b32 s47, s47, 8
      s_add_u32 s46, s46, s47
      s_add_u32 s46, s46, {UR}
      s_waitcnt lgkmcnt(0)
      s_barrier""".split("\n")
    for i in range(4): seq.append(f"ds_read_b128 v[{60+4*i}:{63+4*i}], v12 offset:{4096*i}")
    for i in range(4):
        seq += [f"s_waitcnt lgkmcnt({3-i})", VM(f"buffer_store_dwordx4 v[{60+4*i}:{63+4*i}], v11, s[8:11], s46 offen sc1", ("ur", i))]
        if i < 3: seq.append(f"s_add_u32 s46, s46, {16*4096}")
    for t in range(1, 4): seq += kcopy(t)
    seq += f"""
      v_lshrrev_b32 v8, 1, v7
      v_and_b32 v9, 7, v8
      s_lshl_b32 s7, s3, 1
      v_xor_b32 v9, s7, v9
      v_lshlrev_b32 v8, 7, v8
      v_lshl_add_u32 v8, v14, 3, v8
      v_and_b32 v10, 1, v7
      v_lshl_add_u32 v8, v10, 2, v8
      v_add_u32 v8, {QO}, v8
      v_lshl_add_u32 v10, v9, 4, v8
      v_xor_b32 v9, 1, v9
      v_lshl_add_u32 v11, v9, 4, v8""".split("\n")
    seq.append(WAIT([("sq", 1, 8)]))
    U = [80, 100]
    for r in range(2):
        for i in range(9): seq.append(f"ds_write_b32 v{10+r}, v{SQ+9*r+i} offset:{2048*i}")
        for i in range(9): seq += [f"v_lshlrev_b32 v{U[r]+2*i}, 16, v{SQ+9*r+i}", f"v_and_b32 v{U[r]+1+2*i}, 0xffff0000, v{SQ+9*r+i}"]
        seq.append("s_waitcnt lgkmcnt(0)")
    M_ = [16, 18]; R_ = [20, 22]
    for r in range(2):
        seq.append(f"v_pk_add_f32 v[{M_[r]}:{M_[r]+1}], v[{U[r]}:{U[r]+1}], v[{U[r]+2}:{U[r]+3}]")
        for i in range(2, 9): seq.append(f"v_pk_add_f32 v[{M_[r]}:{M_[r]+1}], v[{M_[r]}:{M_[r]+1}], v[{U[r]+2*i}:{U[r]+1+2*i}]")
    seq += ["v_add_f32 v16, v16, v17", "v_add_f32 v18, v18, v19", WAIT([("ur", 3)])]
    resolve(seq); emit(a, seq)
    check_nonce(a, "F_C", NT)
    a(f"""
      {a.stamp(2)}
      v_mov_b32 v24, s42
      s_lshr_b32 s7, s44, 5
      s_add_u32 s7, s7, {FU}
      buffer_store_dword v24, {L0}, s[8:11], s7 offen sc1
    """)
    red32x2(a, "v16", "v18", "v17", "v19")
    for r in range(2):
        a(f"v_mul_f32 v{M_[r]}, {float_hex(1.0/576)}, v{M_[r]}")
        for i in range(9): a(f"v_pk_add_f32 v[{U[r]+2*i}:{U[r]+1+2*i}], v[{U[r]+2*i}:{U[r]+1+2*i}], v[{M_[r]}:{M_[r]+1}] op_sel_hi:[1,0] neg_lo:[0,1] neg_hi:[0,1]")
        a(f"v_pk_mul_f32 v[{R_[r]}:{R_[r]+1}], v[{U[r]}:{U[r]+1}], v[{U[r]}:{U[r]+1}]")
        for i in range(1, 9): a(f"v_pk_fma_f32 v[{R_[r]}:{R_[r]+1}], v[{U[r]+2*i}:{U[r]+1+2*i}], v[{U[r]+2*i}:{U[r]+1+2*i}], v[{R_[r]}:{R_[r]+1}]")
    a("v_add_f32 v20, v20, v21\nv_add_f32 v22, v22, v23\ns_nop 0")
    red32x2(a, "v20", "v22", "v21", "v23")
    a(f"""
      v_mov_b32 v21, {float_hex(1e-5)}
      v_mov_b32 v23, {float_hex(1e-5)}
      v_fmac_f32 v21, {float_hex(1.0/576)}, v20
      v_fmac_f32 v23, {float_hex(1.0/576)}, v22
      v_rsq_f32 v20, v21
      v_rsq_f32 v22, v23
      s_lshl_b32 s7, s3, 5
      s_add_u32 s7, s7, {STL}
      v_lshl_add_u32 v8, v14, 3, s7
      v_mul_f32 v21, -v16, v20
      v_mul_f32 v23, -v18, v22
      ds_write_b64 v8, v[20:21]
      ds_write_b64 v8, v[22:23] offset:16
      v_subrev_u32 v10, 64, v0
      v_lshrrev_b32 v10, 3, v10
      v_and_b32 v11, 7, v2
      v_xor_b32 v12, v11, v10
      v_and_b32 v12, 7, v12
      v_lshlrev_b32 v12, 4, v12
      v_lshl_add_u32 v12, v10, 7, v12
      v_add_u32 v12, {QO}, v12
      v_lshlrev_b32 v10, 14, v10
      v_lshl_add_u32 v10, v11, 4, v10
      s_lshl_b32 s47, s4, 7
      s_add_u32 s46, s47, {ST1}
      s_add_u32 s47, s47, {QP}
      s_waitcnt lgkmcnt(0)
      s_barrier
      s_cmp_ge_u32 s4, 128
      s_cbranch_scc1 F_Q_SKIP
      s_cmp_eq_u32 s3, 0
      s_cbranch_scc1 F_Q_SKIP
    """)
    for i in range(6): a(f"ds_read_b128 v[{60+4*i}:{63+4*i}], v12 offset:{3072*i}")
    for i in range(6):
        a(f"s_waitcnt lgkmcnt({5-i})")
        a(f"buffer_store_dwordx4 v[{60+4*i}:{63+4*i}], v10, s[8:11], s47 offen sc1")
        if i < 5: a(f"s_add_u32 s47, s47, {24*16384}")
    a(f"""
      s_cmp_lg_u32 s3, 2
      s_cbranch_scc1 F_Q_SKIP
      v_lshlrev_b32 v11, 4, v11
      v_add_u32 v12, {STL}, v11
      ds_read_b128 v[84:87], v12
      s_mov_b64 exec, 0xff
      s_waitcnt lgkmcnt(0)
      buffer_store_dwordx4 v[84:87], v11, s[8:11], s46 offen sc1
      s_mov_b64 exec, -1
    F_Q_SKIP:
    """)
    p = a.ptr("ssmD")
    Q, STT, MD, HP, XA, YA = 176, 192, 208, 220, 222, 242
    a(f"""
      s_lshl_b32 s7, s4, 3
      s_load_dwordx2 s[20:21], s[{p}:{p+1}], s7
      s_lshl_b32 s7, s6, 6
      s_and_b32 s22, s4, 3
      s_add_u32 s7, s7, s22
      v_lshl_add_u32 v14, v4, 2, s7
      v_lshlrev_b32 v14, 7, v14
      v_add_u32 v14, {FU}, v14
      v_mov_b32 v8, 0
      v_mov_b32 v9, 0
      v_mov_b32 v10, 0
      v_mov_b32 v11, 0
      v_mul_u32_u24 v12, {KCS}, v5
      v_lshl_add_u32 v12, v4, 2, v12
      v_add_u32 v12, s38, v12
      v_add_u32 v13, v4, v5
      v_lshrrev_b32 v16, 5, v2
      v_mul_u32_u24 v16, {URS}, v16
      v_lshl_add_u32 v16, v7, 4, v16
      v_add_u32 v16, s38, v16
      v_cmp_gt_u32 vcc, 15, v13
      s_and_saveexec_b64 s[46:47], vcc
      ds_write_b32 v12, v8
      s_mov_b64 exec, s[46:47]
      v_cmp_gt_u32 vcc, 28, v7
      s_and_saveexec_b64 s[46:47], vcc
      ds_write_b128 v16, v[8:11] offset:{URO+4096}
      s_mov_b64 exec, s[46:47]
      v_and_b32 v12, 3, v4
      v_mul_u32_u24 v12, {KCS}, v12
      v_lshrrev_b32 v13, 2, v4
      v_add_u32 v13, v13, v5
      v_lshl_add_u32 v12, v13, 4, v12
      v_add_u32 v12, s38, v12
      v_lshrrev_b32 v13, 3, v4
      v_mul_u32_u24 v13, {URS}, v13
      v_lshl_add_u32 v13, v5, 4, v13
      v_and_b32 v16, 7, v4
      v_lshlrev_b32 v16, 6, v16
      v_sub_u32 v13, v13, v16
      s_add_u32 s7, s38, {URO + 448}
      v_add_u32 v13, s7, v13
      v_lshrrev_b32 v15, 3, v2
      v_lshlrev_b32 v15, 5, v15
      v_and_b32 v16, 7, v2
      s_lshl_b32 s7, s3, 3
      v_add3_u32 v15, v15, v16, s7
      v_and_b32 v16, 3, v2
      v_lshlrev_b32 v15, 7, v15
      v_add_u32 v15, {FH2}, v15
      v_bfe_u32 v17, v2, 3, 2
      v_min_u32 v17, 2, v17
      v_mul_u32_u24 v17, 576, v17
      v_bfe_u32 v18, v2, 2, 1
      v_mul_u32_u24 v18, 3456, v18
      s_lshl_b32 s7, s4, 2
      v_add3_u32 v16, v16, v17, v18
      v_add_u32 v16, s7, v16
      v_lshlrev_b32 v16, 3, v16
      v_add_u32 v16, {MODP}, v16
      v_cmp_gt_u32 vcc, 32, v2
      v_lshlrev_b32 v{HP+1}, 4, v0
      v_lshrrev_b32 v17, 4, v0
      v_cndmask_b32 v{HP}, v16, v15, vcc
      v_mul_u32_u24 v{YA}, 144, v17
      v_bfe_u32 v15, v0, 2, 2             ; (s>>3)&3
      v_and_b32 v16, 3, v0                ; (s>>1)&3
      v_lshl_add_u32 v16, v15, 3, v16
      v_lshl_add_u32 v{YA}, v16, 2, v{YA}
      v_add_u32 v{YA}, {YO}, v{YA}
      v_mul_u32_u24 v{XA}, 36864, v17
      v_bfe_u32 v16, v0, 1, 1             ; tau = (s>>2)&1
      v_mul_u32_u24 v16, 18432, v16
      v_add_u32 v{XA}, v{XA}, v16
      v_lshl_add_u32 v{XA}, v15, 5, v{XA}
      v_and_b32 v15, 1, v0
      v_lshl_add_u32 v{XA}, v15, 4, v{XA}
      v_add_u32 v{YA+1}, {YS}, v{YA}
      v_add_u32 v{YA+2}, {2*YS}, v{YA}
      v_add_u32 v{YA+3}, {3*YS}, v{YA}
      v_and_b32 v6, 7, v4
      v_mul_u32_u24 v6, 144, v6
      v_lshl_add_u32 v6, v5, 5, v6
      v_lshrrev_b32 v15, 3, v4
      v_lshl_add_u32 v6, v15, 4, v6
      s_mul_i32 s7, s3, {YS}
      s_add_u32 s7, s7, {YO}
      v_add_u32 v6, s7, v6
      s_lshl_b32 s36, s4, 14
      s_add_u32 s36, s36, {QP}
      s_mov_b32 s37, {ST1}
      s_waitcnt lgkmcnt(0)
      s_cmp_ge_u32 s3, 2
      s_cselect_b32 s7, s21, s20
      s_and_b32 s22, s3, 1
      s_lshl_b32 s22, s22, 4
      s_lshr_b32 s7, s7, s22
      s_and_b32 s7, s7, 0xffff
      v_mov_b32 v15, s7
      v_lshl_add_u32 v16, v5, 2, v4
    """)
    for dd in range(4):
        a(f"v_cmp_eq_u32 vcc, {15-dd}, v16\ns_nop 1\nv_cndmask_b32 v{8+dd}, 0, v15, vcc")
    ACC = 16; FR = [48, 112]
    def reads(buf, r, which="AB"):
        out = []
        for i in range(8):
            if "B" in which: out.append(f"ds_read_b128 v[{FR[buf]+32+4*i}:{FR[buf]+35+4*i}], v13 offset:{64*r + 512*(7-i)}")
            if "A" in which: out.append(f"ds_read_b128 v[{FR[buf]+4*i}:{FR[buf]+3+4*i}], v12 offset:{64*r + 512*i}")
        return out
    def mfmas(buf):
        out = []
        for p_ in range(8):
            for q_ in range(8 - p_):
                j = p_ + q_
                out.append(f"v_mfma_f32_16x16x32_bf16 v[{ACC+4*j}:{ACC+4*j+3}], v[{FR[buf]+4*p_}:{FR[buf]+4*p_+3}], v[{FR[buf]+32+4*q_}:{FR[buf]+35+4*q_}], v[{ACC+4*j}:{ACC+4*j+3}]")
        return out
    a("s_cmp_lg_u32 s3, 0\ns_cbranch_scc1 F_U_GO")
    poll(a, "F_U", "v14", "v15", slp=1)
    a(f"""
      s_waitcnt vmcnt(0)
      s_barrier
      {a.stamp(3)}
      s_cmp_lg_u32 s3, 1
      s_cbranch_scc1 F_H_NOF
      s_lshl_b32 s7, s4, 7
      s_add_u32 s7, s7, {FH2}
      buffer_store_dword v24, {L0}, s[8:11], s7 offen offset:4 sc1
    F_H_NOF:
    """)
    UB = 112
    for i in range(4):
        a(f"buffer_load_dwordx4 v[{UB+8*i}:{UB+8*i+3}], v3, s[8:11], s45 offen offset:{1024*i} sc1")
        a(f"buffer_load_dword v{UB+8*i+4}, v3, s[8:11], s45 offen offset:{1024*i+16} sc1")
    a(f"s_add_u32 s7, s38, {URO}\nv_add_u32 v14, s7, v3\nv_cmp_eq_u32 vcc, 63, v2")
    for x in reads(0, 0, "A"): a(x)
    for i in range(4):
        b = UB + 8*i
        a(f"s_waitcnt vmcnt({6-2*i})")
        if i == 3: a(f"v_cndmask_b32 v{b+4}, v{b+4}, 0, vcc")
        a(f"ds_write_b128 v14, v[{b}:{b+3}] offset:{URS + 1024*i}")
        for d_ in range(4): a(f"v_alignbit_b32 v{144+4*i+d_}, v{b+d_+1}, v{b+d_}, 16")
        a(f"ds_write_b128 v14, v[{144+4*i}:{147+4*i}] offset:{1024*i}")
        if i == 1: a("s_waitcnt lgkmcnt(0)")
    a("s_waitcnt lgkmcnt(0)")
    a(a.stamp(4))
    for x in reads(0, 0, "B"): a(x)
    zero_gm()
    if 'nocwm' not in X:
        a(CWS.format(n=2, K=KNAME, end="GM_CODE_END") + "s_lshr_b32 s7, s2, 3\ns_lshl_b32 s7, s7, 7\nv_mul_u32_u24 v7, 2304, v0\nbuffer_load_dword v246, v7, s[12:15], s7 offen")
    a("s_waitcnt lgkmcnt(0)")
    for q_ in range(8):
        a(f"v_mfma_f32_16x16x32_bf16 v[{ACC+4*q_}:{ACC+4*q_+3}], v[8:11], v[{FR[0]+32+4*q_}:{FR[0]+35+4*q_}], 0")
    hp = f"buffer_load_dwordx2 v[14:15], v{HP}, s[8:11], 0 offen sc1"
    a("s_mov_b32 s7, 0\nF_CLOOP:")
    for x in interleave(mfmas(0), reads(1, 1) + [hp], per=1): a(x)
    a("s_waitcnt lgkmcnt(0)")
    for x in interleave(mfmas(1), reads(0, 2), per=1): a(x)
    a(f"""
      v_add_u32 v12, 128, v12
      v_add_u32 v13, 128, v13
      s_add_u32 s7, s7, 1
      s_cmp_lt_u32 s7, 2
      s_waitcnt lgkmcnt(0)
      s_cbranch_scc1 F_CLOOP
      s_mov_b32 s43, 0
    F_HR_CHK:
      s_waitcnt vmcnt(0)
      v_cmp_ne_u32 vcc, s42, v15
      s_add_u32 s43, s43, 1
      s_cmp_ge_u32 s43, 0x80000
      s_cbranch_scc1 F_HR_GO
      s_nop 2
      s_cmp_eq_u32 vcc_lo, 0
      s_cbranch_scc1 F_HR_GO
      s_sleep {SLP}
      {hp}
      s_branch F_HR_CHK
    F_HR_GO:
    """)
    ql = []
    for i in range(4):
        ql += [f"buffer_load_dwordx4 v[{STT+4*i}:{STT+3+4*i}], v{HP+1}, s[8:11], s37 offen sc1",
               f"buffer_load_dwordx4 v[{Q+4*i}:{Q+3+4*i}], v{HP+1}, s[8:11], s36 offen sc1"]
        if i < 3: ql += ["s_add_u32 s37, s37, 4096", "s_add_u32 s36, s36, 4096"]
    def mix(r_, q_):
        o = []
        for i in range(max(len(r_), len(q_))): o += r_[i:i+1] + q_[i:i+1]
        return o
    for x in interleave(mfmas(0), mix(reads(1, 1), ql), per=1): a(x)
    a("s_waitcnt lgkmcnt(0)")
    for x in interleave(mfmas(1), reads(0, 2), per=1): a(x)
    a("s_waitcnt lgkmcnt(0)")
    for x in interleave(mfmas(0), reads(1, 3) + [hp], per=1): a(x)
    a("s_waitcnt lgkmcnt(0)")
    H = 48
    pre = """v_add_f32_dpp v14, v14, v14 row_shl:4 row_mask:0xf bank_mask:0xf
      v_bfe_u32 v15, v2, 3, 2
      v_cmp_eq_u32 vcc, 1, v15
      v_cvt_pk_bf16_f32 v14, v14, v14
      v_lshlrev_b32 v14, 16, v14
      v_cndmask_b32 v15, 0, 1.0, vcc
      v_add_f32 v14, v14, v15
      v_cvt_pk_bf16_f32 v14, v14, v14
      v_lshlrev_b32 v14, 16, v14
      s_nop 0""".split("\n")
    pre += [f"v_readlane_b32 s{12+i}, v14, {32 + 8*(i//4) + i%4}" for i in range(12)]
    pre += ["s_lshl_b32 s7, s4, 7", f"s_add_u32 s7, s7, {X1F}"]
    pre += [f"v_mov_b32 v{MD+8+c}, s{20+c}" for c in range(4)]
    pre += [f"v_mul_f32 v{MD+c}, s{12+c}, v{MD+8+c}" for c in range(4)] + [f"v_mul_f32 v{MD+4+c}, s{16+c}, v{MD+8+c}" for c in range(4)]
    p1 = ["s_waitcnt vmcnt(1)"]; p2 = []
    for i in range(8):
        q0, q1 = Q+2*i, Q+1+2*i
        t = H + 8*i
        p1 += [f"v_lshlrev_b32 v{t}, 16, v{q0}", f"v_and_b32 v{t+1}, 0xffff0000, v{q0}", f"v_lshlrev_b32 v{t+2}, 16, v{q1}", f"v_and_b32 v{t+3}, 0xffff0000, v{q1}"]
        p1 += [f"v_fma_f32 v{t+4+c}, v{t+c}, v{STT+2*i}, v{STT+2*i+1}" for c in range(4)]
        p2 += [f"v_pk_fma_f32 v[{t+4+c}:{t+5+c}], v[{t+4+c}:{t+5+c}], v[{MD+4+c}:{MD+5+c}], v[{MD+c}:{MD+1+c}]" for c in (0, 2)]
    for x in interleave(mfmas(1), p1): a(x)
    a(a.stamp(5))
    a("s_waitcnt vmcnt(0)\nv_cmp_ne_u32 vcc, s42, v15")
    wr = [f"ds_write_b128 v6, v[{ACC+4*j}:{ACC+4*j+3}] offset:{j*8*144}" for j in range(8)]
    for x in wr[:6]: a(x)
    a("s_cbranch_vccz F_HP_GO")
    poll(a, "F_HP", f"v{HP}", "v15", pair="v[14:15]")
    for x in wr[6:] + pre + ["s_waitcnt lgkmcnt(0)", "s_barrier"]: a(x)
    Y = 112
    for c in range(4): a(f"ds_read2_b32 v[{Y+2*c}:{Y+2*c+1}], v{YA+c} offset1:4")
    for i in range(1, 4):
        for c in range(4): a(f"v_add_u32 v{YA+c}, {16*144}, v{YA+c}\nds_read2_b32 v[{Y+8*i+2*c}:{Y+8*i+2*c+1}], v{YA+c} offset1:4")
        if i == 2: a("s_waitcnt lgkmcnt(8)")
    for x in p2: a(x)
    for i in range(4):
        a(f"s_waitcnt lgkmcnt({min(8, 12-4*i)})")
        for e in range(2):
            t = H + 8*(2*i+e)
            for c in range(4): a(f"v_fma_f32 v{t+c}, v{t+4+c}, v{Y+8*i+2*c+e}, v{t+c}")
            a(f"v_cvt_pk_bf16_f32 v{Q+4*i+2*e}, v{t}, v{t+1}\nv_cvt_pk_bf16_f32 v{Q+4*i+2*e+1}, v{t+2}, v{t+3}")
        a(f"buffer_store_dwordx4 v[{Q+4*i}:{Q+4*i+3}], v{XA}, s[8:11], s7 offen sc1")
        if i < 3: a(f"s_add_u32 s7, s7, {16*36864}")
    a("s_branch F_JOIN")

    a("F_OTHER:")
    a.srd(32, "wout")
    def wo_issue():
        a(f"""
          s_mul_i32 s37, s36, 7282
          s_lshr_b32 s37, s37, 16
          s_mul_i32 s38, s37, 9
          s_sub_u32 s39, s36, s38
          s_lshl_b32 s44, s37, 2
          s_add_u32 s44, s44, s3
          s_mul_i32 s44, s44, {72*1152}
          s_lshl_b32 s45, s39, 7
          s_add_u32 s44, s44, s45
          s_mul_i32 s38, s38, 36864
          s_lshl_b32 s39, s39, 2
          s_add_u32 s39, s39, s3
          s_lshl_b32 s39, s39, 10
          s_add_u32 s38, s38, s39
          s_add_u32 s38, s38, {WOUTF}
          s_mul_i32 s45, s3, 9216
          s_add_u32 s45, s45, 81920
        """)
        for i in range(9):
            a(f"s_add_u32 m0, s45, {1024*i}\ns_nop 0")
            a(f"buffer_load_dwordx4 v245, s[32:35], s44 offen lds")
            if i < 8: a(f"s_add_u32 s44, s44, {8*1152}")
    def wo_finish():
        a("s_waitcnt vmcnt(0)\ns_barrier")
        for i in range(9):
            b1, b2 = (32*i, 32*i+16) if i < 4 else ((144+32*(i-4), 144+32*(i-4)+16) if i < 8 else (128, 272))
            r = 16 + 4*i
            a(f"ds_read_b64_tr_b16 v[{r}:{r+1}], v244 offset:{b1*128}")
            a(f"ds_read_b64_tr_b16 v[{r+2}:{r+3}], v244 offset:{b2*128}")
            if i == 4: a("s_waitcnt lgkmcnt(0)")
        a("s_waitcnt lgkmcnt(0)")
        for i in range(9):
            r = 16 + 4*i
            a(f"buffer_store_dwordx4 v[{r}:{r+3}], v3, s[8:11], s38 offen sc1")
            if i < 8: a("s_add_u32 s38, s38, 36864")
    a("""
      v_lshrrev_b32 v10, 3, v2
      v_and_b32 v11, 7, v2
      v_and_b32 v12, 6, v10
      v_xor_b32 v11, v11, v12
      v_lshlrev_b32 v11, 4, v11           ; chunk*16
      v_lshrrev_b32 v9, 2, v2
      v_lshlrev_b32 v9, 7, v9
      v_and_b32 v12, 3, v10
      v_xor_b32 v12, s3, v12
      v_lshl_add_u32 v9, v12, 5, v9
      v_and_b32 v12, 3, v2
      v_lshl_add_u32 v9, v12, 3, v9
      v_add_u32 v247, 36864, v9
      v_add_u32 v244, 81920, v9
      v_mul_u32_u24 v245, 1152, v10
      v_add_u32 v245, v245, v11
      s_mul_i32 s6, s3, 18432
      s_cmp_ge_u32 s2, 252
      s_cbranch_scc1 F_LAST
      s_cmp_lt_u32 s2, 216
      s_cbranch_scc1 F_WIN
    """)
    a.srd(12, "wmod"); a.srd(16, "c")
    MT = 73728
    a(f"""
      s_sub_u32 s4, s2, 216
      s_mov_b32 s36, s4
      s_mov_b32 s96, s4
      s_and_b32 s5, s4, 1                 ; half
      s_lshr_b32 s4, s4, 1                ; cbk
      s_mul_i32 s26, s5, 288
      v_and_b32 v6, 7, v0
      v_lshrrev_b32 v7, 3, v0
      v_add_u32 v10, s26, v7
      v_mul_u32_u24 v8, 6912, v10
      v_lshl_add_u32 v8, v6, 4, v8
      v_lshlrev_b32 v12, 1, v10
      s_add_u32 s20, s4, 27
      s_mov_b32 s21, s4
      s_add_u32 s22, s4, 18
      s_add_u32 s23, s4, 36
      s_cmp_lt_u32 s4, 9
      s_cselect_b32 s22, s22, s23
    """)
    C, T, AC = 16, 26, 36
    for i in range(9): a(f"buffer_load_ushort v{C+i}, v12, s[16:19], 0 offen offset:{64*i}")
    def mloads(r):
        b = 56 + 36*(r % 2)
        a(f"s_lshl_b32 s24, s{20+r}, 7")
        for i in range(9):
            a(f"buffer_load_dwordx4 v[{b+4*i}:{b+3+4*i}], v8, s[12:15], s24 offen")
            if i < 8: a(f"s_add_u32 s24, s24, {32*6912}")
    mloads(0)
    a(f"buffer_load_dword {NT}, {NT}, s[28:31], 0 offen sc1")
    a("s_waitcnt vmcnt(10)")
    for fmt in ("v_lshlrev_b32 v{c}, 16, v{c}", "v_mul_f32 v{t}, " + float_hex(-1.4426950408889634) + ", v{c}", "v_exp_f32 v{t}, v{t}", "v_add_f32 v{t}, 1.0, v{t}",
                "v_rcp_f32 v{t}, v{t}", "v_mul_f32 v{c}, v{c}, v{t}", "v_cvt_pk_bf16_f32 v{c}, v{c}, v{c}", "v_lshlrev_b32 v{c}, 16, v{c}"):
        for i in range(9): a(fmt.format(c=C+i, t=T+i))
    a(f"""
      v_lshlrev_b32 v13, 8, v1
      v_lshl_add_u32 v13, v6, 5, v13
      v_add_u32 v13, {MT}, v13
      v_lshlrev_b32 v14, 2, v2
      v_add_u32 v14, {MT}, v14
      v_lshlrev_b32 v15, 3, v2
      s_mul_i32 s25, s5, {3456*8}
      s_add_u32 s25, s25, {MODP}
      s_waitcnt vmcnt(0)
    """)
    check_nonce(a, "F_M", NT)
    for r in range(3):
        b = 56 + 36*(r % 2)
        if r > 0: a("s_waitcnt vmcnt(0)")
        if r < 2: mloads(r+1)
        else: wo_issue()
        for i in range(9):
            for dd in range(4):
                src = f"v{b+4*i+dd}"
                a(f"v_lshlrev_b32 v26, 16, {src}\nv_and_b32 v27, 0xffff0000, {src}")
                if i == 0: a(f"v_mul_f32 v{AC+2*dd}, v{C}, v26\nv_mul_f32 v{AC+1+2*dd}, v{C}, v27")
                else: a(f"v_fmac_f32 v{AC+2*dd}, v{C+i}, v26\nv_fmac_f32 v{AC+1+2*dd}, v{C+i}, v27")
        a("s_nop 1")
        for j in range(8): a(f"v_add_f32_dpp v{AC+j}, v{AC+j}, v{AC+j} row_ror:8 row_mask:0xf bank_mask:0xf")
        for sw in ("16", "32"):
            for j in range(8): a(f"v_mov_b32 v{44+j}, v{AC+j}")
            a("s_nop 1")
            for j in range(8): a(f"v_permlane{sw}_swap_b32 v{AC+j}, v{44+j}")
            a("s_nop 1")
            for j in range(8): a(f"v_add_f32 v{AC+j}, v{AC+j}, v{44+j}")
        a(f"""
          s_mov_b64 exec, 0xff
          ds_write_b128 v13, v[{AC}:{AC+3}] offset:{1024*r}
          ds_write_b128 v13, v[{AC+4}:{AC+7}] offset:{1024*r+16}
          s_mov_b64 exec, -1
          s_waitcnt lgkmcnt(0)
          s_barrier
          s_cmp_lg_u32 s3, {3-r}
          s_cbranch_scc1 F_MOD_N{r}
        """)
        for i in range(4): a(f"ds_read_b32 v{AC+i}, v14 offset:{1024*r + 256*i}")
        a(f"""
          s_lshl_b32 s24, s{20+r}, 9
          s_add_u32 s24, s24, s25
          s_waitcnt lgkmcnt(0)
          v_add_f32 v{AC}, v{AC}, v{AC+1}
          v_add_f32 v{AC+2}, v{AC+2}, v{AC+3}
          v_add_f32 v{AC}, v{AC}, v{AC+2}
          v_mov_b32 v{AC+1}, s42
          buffer_store_dwordx2 v[{AC}:{AC+1}], v15, s[8:11], s24 offen sc1
          s_nop 1
        F_MOD_N{r}:
        """)
        a(a.stamp(1+r))
    zero_gm()
    a(a.stamp(4))
    wo_finish()
    a("s_branch F_JOIN")
    TB = 73728
    a("F_WIN:")
    a.srd(20, "win"); a.srd(16, "ssmk")
    a(f"""
      s_sub_u32 s4, s2, 144
      s_lshr_b32 s5, s4, 3
      s_and_b32 s4, s4, 7
      s_mul_i32 s4, s4, 9
      s_add_u32 s4, s4, s5                ; unit
      s_mul_i32 s7, s3, {144*9216}
      s_lshl_b32 s5, s4, 7
      s_add_u32 s7, s7, s5
      v_mul_u32_u24 v10, 9216, v10
      v_add_u32 v11, v11, v10
      v_lshlrev_b32 v14, 4, v0
      s_lshl_b32 s5, s4, 15
    """)
    for i in range(8):
        a(f"buffer_load_dwordx4 v[16:19], v14, s[16:19], s5 offen")
        if i < 7: a("s_add_u32 s5, s5, 4096")
    for i in range(18):
        a(f"s_add_u32 m0, s6, {1024*i}\ns_nop 0")
        a(f"buffer_load_dwordx4 v11, s[20:23], s7 offen lds")
        if i < 17: a(f"s_add_u32 s7, s7, {8*9216}")
    zero_gm()
    get_nonce(a, "F_W", "v14")
    a(f"""
      v_add_u32 v7, 256, v0
      v_min_u32 v7, 287, v7
      v_lshlrev_b32 v12, 4, v0
      v_lshlrev_b32 v13, 4, v7
      s_mov_b32 s16, {MODP + 3*576*8}
      s_mov_b32 s17, {MODP + 3*576*8 + 3456*8}
      s_mov_b32 s18, {MODP + 4*576*8}
      s_mov_b32 s19, {MODP + 4*576*8 + 3456*8}
      s_mov_b32 s43, 0
    F_WG_POLL:
    """)
    for h in range(2):
        for i in range(4): a(f"buffer_load_dwordx4 v[{16+16*h+4*i}:{19+16*h+4*i}], v{12+h}, s[8:11], s{16+i} offen sc1")
    a("s_waitcnt vmcnt(0)\nv_xor_b32 v14, s42, v17")
    for r_ in range(19, 48, 2): a(f"v_xor_b32 v15, s42, v{r_}\nv_or_b32 v14, v14, v15")
    a(f"""
      v_cmp_ne_u32 vcc, 0, v14
      s_add_u32 s43, s43, 1
      s_cmp_ge_u32 s43, 0x80000
      s_cbranch_scc1 F_WG_GO
      s_nop 2
      s_cbranch_vccz F_WG_GO
      s_sleep {SLP}
      s_branch F_WG_POLL
    F_WG_GO:
    """)
    for h in range(2):
        b = 16 + 16*h; idx = ["v0", "v7"][h]
        a(f"""
          v_add_f32 v{b}, v{b}, v{b+4}
          v_add_f32 v{b+2}, v{b+2}, v{b+6}
          v_add_f32 v{b+8}, v{b+8}, v{b+12}
          v_add_f32 v{b+10}, v{b+10}, v{b+14}
          v_cvt_pk_bf16_f32 v{b}, v{b}, v{b+2}
          v_cvt_pk_bf16_f32 v{b+8}, v{b+8}, v{b+10}
          v_and_b32 v{b+9}, 0xffff0000, v{b+8}
          v_lshlrev_b32 v{b+8}, 16, v{b+8}
          v_add_f32 v{b+8}, 1.0, v{b+8}
          v_add_f32 v{b+9}, 1.0, v{b+9}
          v_cvt_pk_bf16_f32 v{b+8}, v{b+8}, v{b+9}
          v_and_b32 v{b+9}, 0xffff0000, v{b+8}
          v_lshlrev_b32 v{b+8}, 16, v{b+8}
          v_lshlrev_b32 v13, 3, {idx}
          v_lshlrev_b32 v14, 2, {idx}
          v_add_u32 v13, {TB}, v13
          v_add_u32 v14, {TB+3072}, v14
          ds_write_b64 v13, v[{b+8}:{b+9}]
          ds_write_b32 v14, v{b}
        """)
    a(f"""
      {a.stamp(1)}
      s_lshl_b32 s16, s4, 2
      s_add_u32 s16, s16, s3              ; fc
      s_cmp_ge_u32 s16, 144
      s_cselect_b32 s17, 144, 0
      s_cselect_b32 s18, 0, {18*9216}
      s_cselect_b32 s23, 1, 0             ; is z2
      s_sub_u32 s26, s16, s17             ; fcl
      s_mul_i32 s19, s26, 7282
      s_lshr_b32 s19, s19, 16             ; nt
      s_mul_i32 s20, s19, 9
      s_sub_u32 s20, s26, s20             ; j
      s_mul_i32 s19, s19, {36*9216}
      s_lshl_b32 s20, s20, 10
      s_add_u32 s19, s19, s20
      s_add_u32 s19, s19, s18
      s_add_u32 s27, s19, {WINF}
      v_lshlrev_b32 v12, 4, v5
      v_add_u32 v12, {TB}, v12
      v_lshlrev_b32 v13, 3, v5
      v_add_u32 v13, {TB+3072}, v13
      v_mov_b32 v14, 0
      v_mov_b32 v15, 0
      s_mov_b32 s21, 0x3f803f80
      s_waitcnt lgkmcnt(0)
      s_barrier
      {a.stamp(2)}
      s_lshr_b32 s36, s4, 1
      s_add_u32 s36, s36, 48
      s_bitcmp1_b32 s4, 0
      s_cselect_b32 s36, 72, s36
      s_sub_u32 s96, s4, 8
      s_cmp_lt_u32 s4, 44
      s_cselect_b32 s96, 64, s96
      s_cmp_ge_u32 s36, 72
      s_cbranch_scc1 F_WIN_R
    """)
    wo_issue()
    a("F_WIN_R:")
    def rd(ks):
        b = 16 + 16*(ks % 3); base = "v9" if ks < 9 else "v247"; k9 = ks % 9
        a(f"""
          ds_read_b64_tr_b16 v[{b}:{b+1}], {base} offset:{4096*k9}
          ds_read_b64_tr_b16 v[{b+2}:{b+3}], {base} offset:{4096*k9+2048}
          ds_read_b128 v[{b+4}:{b+7}], v12 offset:{128*ks}
          ds_read_b128 v[{b+8}:{b+11}], v12 offset:{128*ks+64}
          ds_read_b64 v[{b+12}:{b+13}], v13 offset:{64*ks}
          ds_read_b64 v[{b+14}:{b+15}], v13 offset:{64*ks+32}
        """)
    if Asm.STAMPS: a("s_waitcnt lgkmcnt(0)")
    rd(0); rd(1)
    for ks in range(18):
        b = 16 + 16*(ks % 3); t = 64; o = 72 + 4*(ks % 2)
        if ks + 2 < 18:
            a("s_waitcnt lgkmcnt(6)"); rd(ks+2)
        else: a(f"s_waitcnt lgkmcnt({6 if ks + 1 < 18 else 0})")
        for dd in range(4):
            a(f"v_lshlrev_b32 v{t+2*dd}, 16, v{b+dd}\nv_and_b32 v{t+1+2*dd}, 0xffff0000, v{b+dd}")
        for dd in range(4): a(f"v_dot2c_f32_bf16 v15, v{b+dd}, v{b+12+dd}")
        for dd in range(4): a(f"v_pk_mul_f32 v[{t+2*dd}:{t+1+2*dd}], v[{t+2*dd}:{t+1+2*dd}], v[{b+4+2*dd}:{b+5+2*dd}]")
        for dd in range(4): a(f"v_cvt_pk_bf16_f32 v{o+dd}, v{t+2*dd}, v{t+1+2*dd}")
        a(f"buffer_store_dwordx4 v[{o}:{o+3}], v3, s[8:11], s27 offen sc1")
        for dd in range(4): a(f"v_dot2c_f32_bf16 v14, s21, v{o+dd}")
        if ks < 17: a("s_add_u32 s27, s27, 9216")
    a("s_nop 2")
    for sw in ("16", "32"):
        a(f"""
          v_mov_b32 v16, v14
          v_mov_b32 v17, v15
          s_nop 1
          v_permlane{sw}_swap_b32 v14, v16
          v_permlane{sw}_swap_b32 v15, v17
          s_nop 1
          v_add_f32 v14, v14, v16
          v_add_f32 v15, v15, v17
        """)
    a(f"""
      {a.stamp(3)}
      v_lshlrev_b32 v16, 2, v4
      v_lshlrev_b32 v17, 3, v4
      s_mov_b64 exec, 0xffff
      s_cmp_eq_u32 s23, 1
      s_cbranch_scc1 F_WIN_Z2
      s_lshl_b32 s16, s26, 6
      s_add_u32 s16, s16, {UV1}
      buffer_store_dword v14, v16, s[8:11], s16 offen sc1
      s_add_u32 s16, s16, 9216
      buffer_store_dword v15, v16, s[8:11], s16 offen sc1
      s_branch F_WIN_E
    F_WIN_Z2:
      s_lshl_b32 s16, s26, 7
      s_add_u32 s16, s16, {UV2}
      buffer_store_dwordx2 v[14:15], v17, s[8:11], s16 offen sc1
    F_WIN_E:
      s_mov_b64 exec, -1
      s_cmp_ge_u32 s36, 72
      s_cbranch_scc1 F_JOIN
      s_branch F_WO_F
    F_LAST:
    """)
    if 'cwi' in X:
        a(CWS.format(n=0, K=KNAME, end="GM_CODE_END") + "v_lshlrev_b32 v8, 7, v0\ns_mov_b32 s5, 32768\ns_mov_b32 s7, 65536\nbuffer_load_dword v246, v8, s[12:15], 0 offen\nbuffer_load_dword v246, v8, s[12:15], s5 offen\nbuffer_load_dword v246, v8, s[12:15], s7 offen")
    zero_gm()
    a("s_mov_b32 s42, 0\ns_sub_u32 s36, s2, 216\nF_WO:\ns_barrier")
    wo_issue()
    a("F_WO_F:")
    wo_finish()
    a("s_add_u32 s36, s36, 4\ns_cmp_lt_u32 s36, 48\ns_cbranch_scc1 F_WO\ns_cmp_lg_u32 s42, 0\ns_cbranch_scc1 F_JOIN")
    get_nonce(a, "F_L", "v14")
    a("F_JOIN:")
    a(a.stamp(6))
```

```python
from gen_common import *
from gen_g import *
P = lambda r: f"v[{r}:{r+1}]"
BIG = 0x7fffff00

def poll_loop(a, name, loads, regs, tmp):
    a(f"s_mov_b32 s27, 0\n{name}_POLL:")
    for x in loads: a(x)
    a("s_waitcnt vmcnt(0)")
    if len(regs) == 1: a(f"v_cmp_eq_u32 vcc, 0, v{regs[0]}")
    else:
        a(f"v_min_u32 v{tmp}, v{regs[0]}, v{regs[1]}")
        for r in regs[2:]: a(f"v_min_u32 v{tmp}, v{tmp}, v{r}")
        a(f"v_cmp_eq_u32 vcc, 0, v{tmp}")
    a(f"""
      s_add_u32 s27, s27, 1
      s_cmp_ge_u32 s27, 0x80000
      s_cbranch_scc1 {name}_GO
      s_nop 2
      s_cbranch_vccz {name}_GO
      s_sleep {SLP}
      s_branch {name}_POLL
    {name}_GO:
    """)

def gen_gm(a, merged=False):
    SC = ' sc1' if merged else ''
    st0 = a.stamp
    fine2 = eval(os.environ.get('FINE2', '{}'))
    if fine2:
        phase = [0]
        a.stamp = lambda i: (st0(i) if phase[0] else "; ")
    if not merged:
        a.begin("gm_kernel")
        a("s_cmp_ge_u32 s2, 256\ns_cbranch_scc1 GM_END")
        a(a.stamp(0))
        a.load_args()
    else: a("gm_kernel:")
    tile_ids(a)
    SL = 252
    a(f"""
      s_mul_i32 s20, s5, {36*9216}
      s_add_u32 s20, s20, s7
      s_add_u32 s20, s20, {WINF}
      s_mul_i32 s21, s6, 36864
      s_add_u32 s21, s21, {X1F}           ; A soffset
      s_mul_i32 s30, s3, 12288
      s_add_u32 s30, s30, {3*36864}
      v_lshl_add_u32 v13, v2, 3, s30
      v_add_u32 v8, {18432-1024}, v1
      s_mul_i32 s28, s5, {64*9216}
      s_add_u32 s28, s28, {Z2F}
      s_lshl_b32 s29, s6, 17
      s_waitcnt lgkmcnt(0)
    """)
    if not merged: a.srd(8, "ws")
    AB, BB = 0, 144
    ACC2, ACC1, ST = 16, 88, 160
    ALDS = 3*36864
    def a_dma(ks):
        if ks >= 18: return []
        o = [f"s_add_u32 m0, s30, {(ks % 6)*2048}", "s_nop 0",
             VM(f"buffer_load_dwordx4 v1, s[8:11], s21 offen{SC} lds", ("A", ks, 0)),
             VM(f"buffer_load_dwordx4 v8, s[8:11], s21 offen offset:1024{SC} lds", ("A", ks, 1)),
             "s_add_u32 s21, s21, 1024"]
        return o
    def a_reads(ks):
        if ks >= 18: return []
        return [f"ds_read_b64 a[{AB+(ks*2+t)*4+2*h}:{AB+(ks*2+t)*4+2*h+1}], v13 offset:{(ks % 6)*2048 + t*1024 + h*512}" for t in range(2) for h in range(2)]
    def atags(ks): return [("A", ks, t) for t in range(2)] if ks < 18 else []
    def b1_group(k):
        T = (k+1)//4 + 2
        if T >= 9: return []
        p0, cnt = P0[k % 4]
        o = [f"s_add_u32 m0, s7, {(T % 3)*36864 + p0*1024}", "s_nop 0"]
        for i in range(cnt): o.append(VM(f"buffer_load_dwordx4 v1, s[8:11], s20 offen offset:{1024*i}{SC} lds", ("B", T, p0+i)))
        o.append(f"s_add_u32 s20, s20, {cnt*1024 if k % 4 != 2 else 36864 - 7168}")
        return o
    def b1_reads(k):
        return [f"ds_read_b128 a[{BB + (k%2)*36 + 4*j}:{BB + (k%2)*36 + 4*j + 3}], v{SL + (k//4) % 3} offset:{(k%4)*9216 + j*1024}" for j in range(9)]
    if not merged:
        seq = []
        seq += a_dma(0)
        for k in range(-9, -5): seq += b1_group(k)
        for ks in range(1, 4): seq += a_dma(ks)
        seq += ["s_getpc_b64 s[32:33]", "GM_PC:", "s_sub_u32 s32, s32, GM_PC-gm_kernel", "s_subb_u32 s33, s33, 0", "s_and_b32 s33, s33, 0xffff",
                "s_mov_b32 s34, GM_CODE_END-gm_kernel", "s_mov_b32 s35, 0x20000", "s_lshr_b32 s31, s2, 3", "s_lshl_b32 s31, s31, 7",
                "v_lshlrev_b32 v255, 12, v0", "v_add_u32 v255, s31, v255", VM("buffer_load_dword v11, v255, s[32:35], 0 offen", "CW")]
        resolve(seq); emit(a, seq); pre = seq; seq = []
        NPB = int(os.environ.get('NPB', '2'))
        late_pro = []
        for k in range(-5, -5+NPB): late_pro += b1_group(k)
        e0 = []
        for k in range(-5+NPB, -1): e0 += b1_group(k)
        early = {0: e0 + a_dma(4) + (a_dma(5) + b1_group(-1) if NPB >= 2 else []), 1: (a_dma(5) + b1_group(-1) if NPB < 2 else []) + a_dma(6) + b1_group(0) + b1_group(1)}
    else:
        from gen_s import FD
        from gen_f import poll
        a(f"""
          s_mul_i32 s22, s5, 9
          s_lshr_b32 s22, s22, 2
          s_add_u32 s22, s22, 36
          v_and_b32 v4, 3, v2
          v_add_u32 v4, s22, v4
          v_min_u32 v4, 71, v4
          v_mul_u32_u24 v5, 7282, v4
          v_lshrrev_b32 v5, 16, v5
          v_mul_u32_u24 v6, 9, v5
          v_sub_u32 v4, v4, v6
          v_lshl_add_u32 v4, v4, 3, v5
          v_lshlrev_b32 v4, 7, v4
          v_add_u32 v4, {FD + 144*128}, v4
          v_lshlrev_b32 v5, 7, v0
          v_add_u32 v5, {FD}, v5
          buffer_load_dword v6, v4, s[8:11], 0 offen sc1
          v_mov_b32 v7, s42
          s_lshl_b32 s22, s2, 7
          s_add_u32 s22, s22, {FD}
          s_waitcnt vmcnt(0)
          s_barrier
          s_cmp_lg_u32 s3, 0
          s_cbranch_scc1 GM_NOD
          buffer_store_dword v7, v250, s[8:11], s22 offen sc1
        GM_NOD:
          {st0(7)}
          v_cmp_ne_u32 vcc, s42, v6
        """)
        if Asm.STAMPS: a.stamp_flush2(0, 8); a(a.stamp(0))
        for x_ in ["s_getpc_b64 s[32:33]", "GM_PC:", "s_sub_u32 s32, s32, GM_PC-gm_kernel", "s_subb_u32 s33, s33, 0", "s_and_b32 s33, s33, 0xffff",
            "s_mov_b32 s34, GM_CODE_END-gm_kernel", "s_mov_b32 s35, 0x20000", "s_lshr_b32 s31, s2, 3", "s_lshl_b32 s31, s31, 7",
            "v_lshlrev_b32 v255, 12, v0", "v_add_u32 v255, s31, v255"]: a(x_)
        if 'noft' not in X:
            a.srd(16, "wsp")
            a("s_cmp_ge_u32 s96, 64\ns_cbranch_scc1 GM_NOFT\ns_lshl_b32 s96, s96, 2\ns_add_u32 s96, s96, s3\ns_lshl_b32 s96, s96, 15")
            for i in range(16):
                a(f"buffer_load_dwordx4 a[216:219], v1, s[16:19], s96 offen offset:{1024*(i%2)}")
                if i % 2 == 1: a("s_add_u32 s96, s96, 4096")
            a("GM_NOFT:")
        a("s_nop 4\ns_cbranch_vccz GM_W_GO")
        poll(a, "GM_W", "v4", "v6", slp=8)
        seq = []
        for k in range(-9, -5): seq += b1_group(k)
        seq += [VM("buffer_load_dword v6, v5, s[8:11], 0 offen sc1", "DN")]
        NPF = int(os.environ.get('NPF', '4'))
        for k in range(-5, -5+NPF): seq += b1_group(k)
        seq += [VM("buffer_load_dword v11, v255, s[32:35], 0 offen", "CW"), WAIT(["DN"]), "v_cmp_ne_u32 vcc, s42, v6", "s_nop 4", "s_cbranch_vccz GM_D_GO"]
        resolve(seq); emit(a, seq); pre = seq; seq = []
        poll(a, "GM_D", "v5", "v6", slp=int(os.environ.get('DSL', '1')))
        a("s_barrier")
        late_pro = []
        for ks in range(6): late_pro += a_dma(ks)
        emit(a, late_pro); pre = pre + late_pro; late_pro = [WAIT(atags(0))]
        rem = list(range(-5+NPF, 3))
        early = {0: [], 1: a_dma(6), 2: []}
        for i, k in enumerate(rem): early[(3*i)//len(rem)] += b1_group(k)
    a.srd(12, "ws", 64*9216, "s28"); a.srd(16, "wsp"); a.srd(36, "bsp")
    a(f"""
      v_mov_b32 v{SL}, v1
      v_add_u32 v{SL+1}, 36864, v1
      v_add_u32 v{SL+2}, {2*36864}, v1
      v_mov_b32 v4, 0x3f803f80
      v_mov_b32 v5, 0x3f803f80
      v_mov_b32 v6, 0x3f803f80
      v_mov_b32 v7, 0x3f803f80
      s_mov_b32 s40, {float_hex(C1)}
      s_mov_b32 s41, {float_hex(C1)}
      v_mov_b32 v14, {float_hex(C0)}
      v_mov_b32 v15, {float_hex(C0)}
      s_mul_i32 s22, s5, {144*8}
      s_add_u32 s22, s22, {UV2}
      v_lshlrev_b32 v9, 3, v3             ; n*8
      v_add_u32 v9, 159744, v9
      v_lshrrev_b32 v248, 2, v3
      v_lshlrev_b32 v248, 3, v248
      v_and_b32 v249, 3, v3
      v_add_u32 v248, v248, v249
      v_add_u32 v251, 4096, v1
    """)
    seq += late_pro + [WAIT(btags(0)), "s_barrier", a.stamp(1)]
    seq += a_reads(0) + b1_reads(0)
    ARD = {k_: [k_+1] for k_ in range(14)}; ARD[14] = [15]; ARD[15] = [16, 17]
    STK = {k_: [k_] for k_ in range(16)}; STK[16] = [16, 17]
    def kstep(kk, extra=[], need_extra=[]):
        ks = kk % 18; ps = kk // 18
        o = []
        need = [t_ for x in ARD.get(kk, []) for t_ in atags(x)] + need_extra
        bar = (kk % 4 == 3 and kk < 35)
        if bar: need = need + btags((kk+1)//4)
        o.append(WAIT(need, lgkm=True))
        if bar: o.append("s_barrier")
        m = []
        for j in range(9):
            for t in range(2):
                A = f"a[{AB+(ks*2+t)*4}:{AB+(ks*2+t)*4+3}]"
                B = f"a[{BB+(kk%2)*36+4*j}:{BB+(kk%2)*36+4*j+3}]"
                r = (ACC2 if ps == 0 else ACC1) + (j*2+t)*4
                C = "0" if ks == 0 else f"v[{r}:{r+3}]"
                m.append(f"{MF} v[{r}:{r+3}], {A}, {B}, {C}" if ps == 0 else f"{MF} v[{r}:{r+3}], {B}, {A}, {C}")
        sm = []
        for k2 in STK.get(kk, []):
            for t in range(2):
                A = f"a[{AB+(k2*2+t)*4}:{AB+(k2*2+t)*4+3}]"
                r = ST + 4*t
                sm.append(f"{MF} v[{r}:{r+3}], {A}, v[4:7], {'0' if k2 == 0 else f'v[{r}:{r+3}]'}")
                r = ST + 8 + 4*t
                sm.append(f"{MF} v[{r}:{r+3}], {A}, {A}, {'0' if k2 == 0 else f'v[{r}:{r+3}]'}")
        m = (sm + m) if kk == 16 else (m + sm)
        f = (b1_reads(kk+1) if kk < 35 else []) + [x for k2 in ARD.get(kk, []) for x in a_reads(k2)] + early.get(kk, []) + (a_dma(kk+5) + (b1_group(kk) if not (merged and kk < 3) else []) if kk >= 2 else []) + extra
        if 'nosch' in X: return o + interleave(m, f)
        ds = [x for x in f if isinstance(x, str) and x.startswith("ds_")]
        base = [x for x in f[:len(f)-len(extra)] if not (isinstance(x, str) and x.startswith("ds_"))]
        if any(isinstance(x, str) and x.startswith("v_") for x in extra):
            gs_, rest = vgroups(base)
            mo = [i for i, x in enumerate(extra) if isinstance(x, str) and "m0" in x]
            cut = mo[0] if mo else len(extra)
            g2_, rest2 = vgroups(rest + extra[cut:])
            o += sched(m, ds, gs_ + g2_, extra[:cut]) + rest2
        else:
            gs_, rest = vgroups(base + extra)
            o += sched(m, ds, gs_) + rest
        return o
    UV = 176; WS = 216
    UVL = 159744
    uvd = [f"s_mov_b32 m0, {UVL}", "s_nop 0", VM(f"buffer_load_dwordx4 v1, s[8:11], s22 offen{SC} lds", ("UVD", 0)), VM(f"buffer_load_dwordx4 v1, s[8:11], s22 offen offset:1024{SC} lds", ("UVD", 1)),
           f"s_mul_i32 s22, s5, {144*4}", f"s_add_u32 s22, s22, {UV1}", f"s_mov_b32 m0, {UVL+2048}", "s_nop 0", VM(f"buffer_load_dwordx4 v1, s[8:11], s22 offen{SC} lds", ("UVD", 2)),
           f"s_add_u32 s22, s22, {9216-1024}", VM(f"buffer_load_dwordx4 v1, s[8:11], s22 offen offset:1024{SC} lds", ("UVD", 3))]
    uv2 = [f"ds_read_b64 v[{UV+2*j}:{UV+2*j+1}], v9 offset:{128*j}" for j in range(9)]
    touch = ["v_lshlrev_b32 v10, 12, v12", "v_lshl_add_u32 v10, v3, 4, v10", "s_lshl_b32 s31, s5, 8", "s_add_u32 s31, s31, s29"]
    for i in range(8):
        touch += [VM(f"buffer_load_dwordx4 a[{WS}:{WS+3}], v10, s[16:19], s31 offen", ("WL", i)), "s_add_u32 s31, s31, 16384"]
    CW1 = [int(x) for x in os.environ.get('CW1', '-1').split(',')]
    if merged and 'noft' not in X:
        touch = ["v_lshrrev_b32 v10, 3, v2", "v_lshlrev_b32 v10, 12, v10", "v_and_b32 v194, 7, v2", "v_lshl_add_u32 v10, v194, 4, v10"]
        t2 = ["s_lshl_b32 s31, s5, 7", "s_add_u32 s31, s31, s29"]
        for i in range(4): t2 += [VM(f"buffer_load_dwordx4 a[{WS}:{WS+3}], v10, s[16:19], s31 offen offset:2048", ("WL", i)), "s_add_u32 s31, s31, 32768"]
        touch += t2[:8] + t2[8:]
    TK0 = int(os.environ.get('TK0', '13'))
    for kk in range(18):
        ex = []
        ne = []
        if kk in CW1: ex = [VM("buffer_load_dword v195, v255, s[32:35], 0 offen", ("CW1", kk))]
        if kk == min(13, TK0-2): ex = uvd
        if kk == TK0-1: ex = touch[:4]
        if kk == TK0: ex = touch[4:12]
        if kk == TK0+1: ex = touch[12:]
        if kk == 6: ex = ["v_mul_u32_u24 v11, 80, v12"]
        if kk == 16: early[16] = [f"ds_bpermute_b32 v{ST+8+4*t+r}, v11, v{ST+8+4*t+r} offset:{4*r}" for t in range(2) for r in range(4)]
        if kk == 17:
            ex = ln_finish([ST+i for i in range(8)], [ST+8+i for i in range(8)], 576, 8, None)
            early[17] = uv2[:5]; ne = [("UVD", 3)]
        seq += kstep(kk, ex, ne)
    seq += [a.stamp(2), "s_waitcnt lgkmcnt(0)"] + uv2[5:] + ["s_nop 3"]
    ZR = [240, 244]; ZN = [242, 246]
    zst = ["v_and_b32 v210, 3, v3", "v_lshrrev_b32 v211, 2, v3", "v_lshl_add_u32 v211, v211, 4, v3", "v_lshlrev_b32 v211, 2, v211"]
    for t in range(2):
        zst += [f"v_mov_b32 v{ZR[t]}, v{ST+8+4*t}", f"v_mov_b32 v{ZN[t]}, v{ST+4*t}"]
    for r in range(1, 4):
        zst += [f"v_cmp_eq_u32 vcc, {r}, v210", "s_nop 1"]
        for t in range(2):
            zst += [f"v_cndmask_b32 v{ZR[t]}, v{ZR[t]}, v{ST+8+4*t+r}, vcc", f"v_cndmask_b32 v{ZN[t]}, v{ZN[t]}, v{ST+4*t+r}, vcc"]
    zbp = [f"ds_bpermute_b32 v{r}, v211, v{r}" for r in ZR + ZN]
    DL0 = int(os.environ.get('DL0', '18'))
    dlist = []
    for kk in range(DL0, 18): dlist += b1_group(kk)
    g2start = len(seq)
    Z1S, Z2S, TMP, GR = 196, 204, 212, 220
    for j in range(9):
        xs = [ACC2 + j*8 + 2*i for i in range(4)]; ts = [TMP + 2*i for i in range(4)]
        uv = P(UV + 2*j)
        if j == 3: seq.append("s_waitcnt lgkmcnt(0)")
        seq.append(f"v_mov_b32 v194, v{UV+2*j+1}")
        for i in range(4): seq.append(f"v_pk_fma_f32 {P(ts[i])}, {P(ST+2*i)}, {uv}, v[194:195] op_sel_hi:[1,0,0]")
        for i in range(4): seq.append(f"v_pk_fma_f32 {P(xs[i])}, {P(xs[i])}, {P(ST+8+2*i)}, {P(ts[i])}")
        seq += gelu_pairs(xs, ts)
        for i in range(4):
            if j == 0: seq += [f"v_pk_mul_f32 {P(Z2S+2*i)}, {P(xs[i])}, {P(xs[i])}"]
            elif j == 1: seq += [f"v_pk_add_f32 {P(Z1S+2*i)}, {P(xs[i])}, {P(ACC2+2*i)}", f"v_pk_fma_f32 {P(Z2S+2*i)}, {P(xs[i])}, {P(xs[i])}, {P(Z2S+2*i)}"]
            else: seq += [f"v_pk_add_f32 {P(Z1S+2*i)}, {P(xs[i])}, {P(Z1S+2*i)}", f"v_pk_fma_f32 {P(Z2S+2*i)}, {P(xs[i])}, {P(xs[i])}, {P(Z2S+2*i)}"]
    NG = int(os.environ.get('NG', '60'))
    seq = seq[:g2start] + interleave(seq[g2start:g2start+NG], dlist) + seq[g2start+NG:]
    gspos = len(seq)
    V = [(Z1S if i % 2 == 0 else Z2S) + i//2 for i in range(16)]
    T0, T1 = TMP, TMP+4
    seq += ["v_and_b32 v11, 3, v3", "v_cmp_eq_u32 vcc, 0, v11"]
    for r in range(4):
        seq += [f"v_add_f32_dpp v{T0+r}, v{V[r]}, v{V[r]} row_ror:8 row_mask:0xf bank_mask:0x3", f"v_add_f32_dpp v{T0+r}, v{V[8+r]}, v{V[8+r]} row_ror:8 row_mask:0xf bank_mask:0xc"]
    for r in range(4):
        seq += [f"v_add_f32_dpp v{T1+r}, v{V[4+r]}, v{V[4+r]} row_ror:8 row_mask:0xf bank_mask:0x3", f"v_add_f32_dpp v{T1+r}, v{V[12+r]}, v{V[12+r]} row_ror:8 row_mask:0xf bank_mask:0xc"]
    for r in range(4): seq.append(f"v_add_f32_dpp v{GR+r}, v{T0+r}, v{T0+r} row_shl:4 row_mask:0xf bank_mask:0x5")
    for r in range(4): seq.append(f"v_add_f32_dpp v{GR+r}, v{T1+r}, v{T1+r} row_shr:4 row_mask:0xf bank_mask:0xa")
    for qp in ("[1,0,3,2]", "[2,3,0,1]"):
        for r in range(4): seq.append(f"v_add_f32_dpp v{GR+r}, v{GR+r}, v{GR+r} quad_perm:{qp} row_mask:0xf bank_mask:0xf")
    seq += [f"v_or_b32 v{GR+1}, 1, v{GR+1}", f"v_or_b32 v{GR+3}, 1, v{GR+3}",
            f"s_lshl_b32 s23, s6, 12", f"s_add_u32 s23, s23, {ST2}", "s_lshl_b32 s24, s5, 8", "s_add_u32 s24, s24, s23",
            "v_lshlrev_b32 v10, 2, v2", f"v_mov_b32 v194, {BIG}", "v_cndmask_b32 v10, v194, v10, vcc",
            "v_lshlrev_b32 v9, 4, v12", f"v_add_u32 v9, {UVL+2048}, v9", a.stamp(3)]
    gs = [VM(f"buffer_store_dwordx4 v[{GR}:{GR+3}], v10, s[8:11], s24 offen sc1", "GS")]
    seq += gs
    U1 = 160
    uv1 = []
    for j in range(9):
        uv1.append(f"ds_read_b128 v[{U1+8*j}:{U1+8*j+3}], v9 offset:{64*j}")
        uv1.append(f"ds_read_b128 v[{U1+8*j+4}:{U1+8*j+7}], v9 offset:{64*j+1024}")
    PL = 176; R1 = [200+i for i in range(8)]; R2 = [192+i for i in range(8)]
    pl = [f"buffer_load_dwordx4 v[{PL+4*i}:{PL+4*i+3}], v1, s[8:11], s23 offen offset:{1024*i} sc1" for i in range(4)]
    bl = [VM("buffer_load_ushort v6, v5, s[36:39], s26 offen", "b0"), VM("buffer_load_ushort v7, v5, s[36:39], s26 offen offset:8", "b1")]
    chk = [f"v_min_u32 v209, v{PL+1}, v{PL+3}"] + [f"v_min_u32 v209, v209, v{PL+2*i+1}" for i in range(2, 8)] + ["v_cmp_eq_u32 vcc, 0, v209"]
    pollS = [WAIT([("PL", 3)])] + chk + ["s_mov_b32 s27, 0", "s_nop 3", "s_cbranch_vccz GM_S_GO", "GM_S_POLL:"] + pl + ["s_waitcnt vmcnt(0)"] + chk + \
            ["s_add_u32 s27, s27, 1", "s_cmp_ge_u32 s27, 0x80000", "s_cbranch_scc1 GM_S_GO", "s_nop 2", "s_cbranch_vccz GM_S_GO", f"s_sleep {SLP}", "s_branch GM_S_POLL", "GM_S_GO:", a.stamp(4)]
    nrm = [f"v_add_f32 v{PL+r}, v{PL+r}, v{PL+4+r}" for r in range(4)] + [f"v_add_f32 v{PL+8+r}, v{PL+8+r}, v{PL+12+r}" for r in range(4)]
    nrm += [f"v_add_f32 v{PL+r}, v{PL+r}, v{PL+8+r}" for r in range(4)]
    for sw in ("16", "32"):
        nrm += [f"v_mov_b32 v{PL+4+r}, v{PL+r}" for r in range(4)] + ["s_nop 1"]
        nrm += [f"v_permlane{sw}_swap_b32 v{PL+r}, v{PL+4+r}" for r in range(4)] + ["s_nop 1"]
        nrm += [f"v_add_f32 v{PL+r}, v{PL+r}, v{PL+4+r}" for r in range(4)]
    nrm += ln_finish([PL, PL+2], [PL+1, PL+3], FH, 2, None)
    nrm += ["v_lshlrev_b32 v11, 4, v12"]
    bp = []
    for i in range(8):
        bp += [f"ds_bpermute_b32 v{R1[i]}, v11, v{PL+2*(i%2)} offset:{4*(i//2)}", f"ds_bpermute_b32 v{R2[i]}, v11, v{PL+2*(i%2)+1} offset:{4*(i//2)}"]
    nrm += ["s_mul_i32 s26, s6, 9216", "v_add_u32 v208, 8192, v1"]
    nrm0 = nrm; nrm = []
    for j in range(9):
        for i in range(8): nrm.append(f"v_fma_f32 v{ACC2+8*j+i}, v{ACC2+8*j+i}, v{R2[i]}, v{R1[i]}")
        for i in range(4): nrm.append(f"v_cvt_pk_bf16_f32 v{ACC2+8*j+i}, v{ACC2+8*j+2*i}, v{ACC2+8*j+2*i+1}")
        nrm.append(VM(f"buffer_store_dwordx4 v[{ACC2+8*j}:{ACC2+8*j+3}], {['v1','v251','v208'][j//4]}, s[12:15], s26 offen offset:{1024*(j%4)} sc1", ("Z2", j)))
    KT = -1
    KP, KN0, KN1, JPK, KF = [int(x) for x in os.environ.get('P2', '22,24,25,3,31').split(',')]
    per = (len(nrm0) + (KN1-KN0) - 1) // (KN1-KN0)
    pb = "buffer_load_dword v11, v10, s[8:11], s23 offen sc1"
    CW2 = [int(x) for x in os.environ.get('CW2', '19').split(',')]
    flagprep = ["s_lshl_b32 s24, s6, 4", "s_add_u32 s24, s24, s5", "s_lshl_b32 s24, s24, 7", f"s_add_u32 s24, s24, {FLB}",
            "v_cmp_eq_u32 vcc, 0, v2", f"v_mov_b32 v13, {BIG}", "v_mov_b32 v5, 1", "v_cndmask_b32 v13, v13, 0, vcc"]
    ACC, B2V = 16, 160
    AV = [241, 243, 245, 247]
    aprep = ["v_lshrrev_b32 v4, 3, v2", "v_lshrrev_b32 v249, 2, v4", "v_lshlrev_b32 v249, 3, v249", "v_and_b32 v250, 3, v4", "v_add_u32 v249, v249, v250", "v_lshlrev_b32 v249, 12, v249",
            "v_lshrrev_b32 v4, 1, v4", "v_and_b32 v250, 7, v2", "v_xor_b32 v4, v4, v250",
            f"v_lshl_add_u32 v{AV[0]}, v4, 4, v249", "v_xor_b32 v4, 4, v4", f"v_lshl_add_u32 v{AV[1]}, v4, 4, v249", f"v_add_u32 v{AV[1]}, {65536-1024}, v{AV[1]}",
            f"v_add_u32 v{AV[2]}, {16384-2048}, v{AV[0]}", f"v_add_u32 v{AV[3]}, {16384-2048}, v{AV[1]}"]
    aprep2 = ["v_lshrrev_b32 v4, 1, v3", "v_xor_b32 v4, v4, v12", "v_lshlrev_b32 v4, 4, v4", "v_lshl_add_u32 v4, v3, 7, v4",
            "v_add_u32 v249, s7, v4", "v_xor_b32 v250, 64, v249", "v_add_u32 v4, s30, v4", "v_xor_b32 v8, 64, v4"]
    PLACE = {"R0": ("s30", 0), "R1": ("s30", 4096), "R2": ("s30", 8192), "S0a": ("s7", 0), "S0b": ("s7", 4096), "S1a": ("s7", 36864), "S1b": ("s7", 36864+4096)}
    def a2_dma(Pp, pl):
        b, off = PLACE[pl]
        return [f"s_add_u32 m0, {b}, {off}", f"s_add_u32 s21, s29, {128*Pp}"] + \
               [VM(f"buffer_load_dwordx4 v{AV[i]}, s[16:19], s21 offen offset:{1024*i} lds", ("A2", Pp, i)) for i in range(4)]
    def a2_rd(Pp, pl):
        b, off = PLACE[pl]
        regs = ("v4", "v8") if b == "s30" else ("v249", "v250")
        return [f"ds_read_b128 a[{8*((2*Pp+e) % 32)+4*t}:{8*((2*Pp+e) % 32)+4*t+3}], {regs[e]} offset:{off + t*2048}" for e in range(2) for t in range(2)]
    def a2tags(Pp): return [("A2", Pp, i) for i in range(4)]
    r1 = {21: [(3, "R2")], 23: [(4, "R0")], 25: [(5, "R1")], 27: [(6, "R2")], 28: [(7, "S0a")], 29: [(8, "S0b")],
          31: [(9, "S1a")], 32: [(10, "S1b")], 33: [(11, "R0")], 34: [(12, "R1")], 35: [(13, "R2")]}
    rr1 = {20: [(0, "R2")], 22: [(1, "R0")], 24: [(2, "R1")], 26: [(3, "R2")], 28: [(4, "R0")], 33: [(5, "R1")], 34: [(6, "R2")], 35: [(7, "S0a")]}
    if 'r1b' in X:
        r1 = {21: [(3, "R2")], 23: [(4, "R0")], 29: [(5, "R1")], 30: [(6, "R2"), (7, "S0a")], 31: [(8, "S0b"), (9, "S1a")], 32: [(10, "S1b")], 33: [(11, "R0")], 34: [(12, "R1")], 35: [(13, "R2")]}
    if 'r1a' not in X:
        r1 = {21: [(3, "R2")], 23: [(4, "R0")], 28: [(5, "R1")], 29: [(6, "R2")], 30: [(7, "S0a"), (8, "S0b")], 31: [(9, "S1a")], 32: [(10, "S1b")], 33: [(11, "R0")], 34: [(12, "R1")], 35: [(13, "R2")]}
    GA, GB_ = [int(x) for x in os.environ.get('GA', '300,440').split(',')]
    g2 = seq[g2start:gspos]
    g2 = g2[:GA] + aprep + aprep2 + interleave(g2[GA:GA+60], a2_dma(14, "R0") + a2_dma(15, "R1") + a2_dma(0, "R2")) + g2[GA+60:GB_] + \
         [WAIT(a2tags(15))] + a2_rd(14, "R0") + a2_rd(15, "R1") + g2[GB_:GB_+30] + ["s_waitcnt lgkmcnt(0)"] + interleave(g2[GB_+30:], a2_dma(1, "R0") + a2_dma(2, "R1"))
    seq = seq[:g2start] + g2 + seq[gspos:]
    for kk in range(18, 36):
        ex = []; ne = []
        if kk == 18: ex = ["v_lshlrev_b32 v5, 1, v248", "s_lshl_b32 s26, s6, 6"] + bl
        if kk == 20: ex = zst
        if kk == 21: early[kk] = early.get(kk, []) + zbp
        if kk == KP: ex = [VM(x, ("PL", i)) for i, x in enumerate(pl)]
        if kk in fine2: seq.append(st0(fine2[kk]))
        if kk == KN0: seq += pollS
        if kk == KN0: ex = nrm0
        if kk == KN0+1: seq += ["s_waitcnt lgkmcnt(0)"] + bp[:12] + ["s_waitcnt lgkmcnt(4)"] + bp[12:]
        if kk >= KN1: ex = nrm[13*JPK*(kk-KN1):13*JPK*(kk-KN1+1)]
        if kk == 30:
            assert not ex
            ex = flagprep + ["s_lshl_b32 s23, s3, 4", "s_add_u32 s23, s23, s5", "s_lshl_b32 s23, s23, 7", f"s_add_u32 s23, s23, {FLB}", "v_lshlrev_b32 v10, 13, v3"]
        if kk == KF: ex = [VM("buffer_store_dword v5, v13, s[8:11], s24 offen sc1", "FB")] + ex; ne = [("Z2", 8)]
        if kk in (30, 31): early[kk] = early.get(kk, []) + uv1[5*(kk-30):5*(kk-30)+5]
        if kk == 35: early[kk] = early.get(kk, []) + uv1[10:]
        for Pp, pl_ in r1.get(kk, []): ex = ex + a2_dma(Pp, pl_)
        for Pp, pl_ in rr1.get(kk, []): early[kk] = early.get(kk, []) + a2_rd(Pp, pl_); ne = ne + a2tags(Pp)
        if kk in CW2: early[kk] = early.get(kk, []) + [VM("buffer_load_dword v15, v255, s[32:35], 0 offen", ("CW2", kk))]
        if kk == 35: ex = [VM(pb, "PB")] + ex
        seq += kstep(kk, ex, ne)
    seq += [a.stamp(5)]
    TM1 = 232
    JF = int(os.environ.get('JF', '0'))
    def z1g(j):
        o = []
        xs = [ACC1 + j*8 + 2*i for i in range(4)]; ts = [TM1 + 2*i for i in range(4)]
        for i in range(4):
            o.append(f"v_pk_fma_f32 {P(ts[i])}, {P(U1+8*j+2*(i%2))}, {P(ZN[i//2])}, {P(U1+8*j+4+2*(i%2))} op_sel_hi:[1,0,1]")
        for i in range(4):
            o.append(f"v_pk_fma_f32 {P(xs[i])}, {P(xs[i])}, {P(ZR[i//2])}, {P(ts[i])} op_sel_hi:[1,0,1]")
        return o
    def late_gelu(j, hf):
        xs = [ACC1+8*j+4*hf+i for i in range(4)]; ts = [232+4*hf+i for i in range(4)]
        o = []
        for x, t in zip(xs, ts): o.append(f"v_mul_f32 v{t}, v{x}, v{x}")
        for x, t in zip(xs, ts): o.append(f"v_fma_f32 v{t}, v{t}, s40, v14")
        for x, t in zip(xs, ts): o.append(f"v_mul_f32 v{t}, v{t}, v{x}")
        for x, t in zip(xs, ts): o.append(f"v_exp_f32 v{t}, v{t}")
        for x, t in zip(xs, ts): o.append(f"v_add_f32 v{t}, 1.0, v{t}")
        for x, t in zip(xs, ts): o.append(f"v_rcp_f32 v{t}, v{t}")
        for x, t in zip(xs, ts): o.append(f"v_mul_f32 v{x}, v{x}, v{t}")
        return o
    def b2_group(k):
        T = (k+1)//4 + 2
        if T >= 15: return []
        p0, cnt = P0[k % 4]
        o = [f"s_add_u32 m0, s7, {(T % 3)*36864 + p0*1024}", "s_nop 0"]
        for i in range(cnt): o.append(VM(f"buffer_load_dwordx4 v1, s[12:15], s20 offen offset:{1024*i} sc1 lds", ("B2", T, p0+i)))
        o.append(f"s_add_u32 s20, s20, {cnt*1024 if k % 4 != 2 else 36864 - 7168}")
        return o
    def b2tags(T): return [("B2", T, p) for p in range(9)]
    def b2_reads(k):
        return [f"ds_read_b128 v[{B2V + (k%2)*36 + 4*j}:{B2V + (k%2)*36 + 4*j + 3}], v{SL + (k//4) % 3} offset:{(k%4)*9216 + j*1024}" for j in range(9)]
    seq += ["s_mov_b32 s20, s7", WAIT(a2tags(10), lgkm=True)] + a2_rd(8, "S0b") + a2_rd(9, "S1a") + a2_rd(10, "S1b")
    J2 = int(os.environ.get('J2', '2'))
    for j in range(J2): seq += z1g(j)
    seq += [WAIT(["PB"]), "v_cmp_eq_u32 vcc, 0, v11", "s_waitcnt lgkmcnt(0)", "s_nop 3", "s_cbranch_vccz GM_B_GO"]
    resolve(pre + seq); emit(a, seq); pre2 = [VM("; ", x.tag) for x in seq if isinstance(x, VM) and x.tag[0] == "A2" and x.tag[1] in (11, 12, 13)]
    poll_loop(a, "GM_B", [pb], [11], None)
    a(a.stamp(6))
    seq = list(pre2)
    for k in range(-9, -5): seq += b2_group(k)
    fl = []
    for k in range(-5, -3): fl += b2_group(k)
    val = []
    for j in range(J2, 9): val += z1g(j)
    seq += interleave(val, fl)
    if fine2: phase[0] = 1
    if Asm.STAMPS: seq += [a.stamp(7), "STAMPFLUSH"]
    seq += [f"v_lshlrev_b32 v{232+i}, 16, v{6 + i//4}" for i in range(8)]
    seq += [WAIT(b2tags(0)), "s_barrier"] + b2_reads(0)
    KA = 46
    PS_ = [11, 12, 13] + list(range(16, 32))
    RPi = lambda i: 2 + ((KA-2)*i)//(len(PS_)-1)
    KT0 = 52
    rd_at = {RPi(i): (Pp, f"R{i % 3}") for i, Pp in enumerate(PS_)}
    assert len(rd_at) == len(PS_) and all(RPi(i) <= 2*p_-1 and RPi(i) >= 2*(p_-16)+2 for i, p_ in enumerate(PS_))
    dma_at = {RPi(i-3)+1: (PS_[i], f"R{i % 3}") for i in range(3, len(PS_))}
    def areg(k, t): return f"a[{8*(k%32)+4*t}:{8*(k%32)+4*t+3}]"
    def mf2(k, j, t, breg):
        r = ACC + (j*2+t)*4
        return f"{MF} v[{r}:{r+3}], v[{breg}:{breg+3}], {areg(k, t)}, {f'v[{232+4*t}:{235+4*t}]' if k == 0 else f'v[{r}:{r+3}]'}"
    g3prep = f"""
      s_and_b32 s44, s2, 7
      s_lshl_b32 s44, s44, 2
      s_lshr_b32 s45, s2, 3
      s_and_b32 s38, s45, 3
      s_add_u32 s44, s44, s38             ; mb
      s_lshr_b32 s45, s45, 2
      s_mul_i32 s45, s45, 9
      s_lshr_b32 s45, s45, 1              ; n0
      s_mul_i32 s39, s3, {18*36864}
      s_lshl_b32 s38, s45, 10
      s_add_u32 s39, s39, s38
      s_add_u32 s39, s39, {WOUTF}         ; W soffset (registers part)
      s_bitcmp1_b32 s2, 5                 ; odd column block: lower half of tile 0 belongs to the neighbour, else upper half of tile 4
      s_cselect_b32 s46, 0, 16
      s_cselect_b32 s47, 16, 8
      v_and_b32 v250, 8, v3
      v_mov_b32 v11, {BIG}
      v_cmp_eq_u32 vcc, s46, v250
      s_nop 1
      v_cndmask_b32 v3, v1, v11, vcc
      v_cmp_eq_u32 vcc, s47, v250
      s_nop 1
      v_cndmask_b32 v250, v251, v11, vcc""".split("\n")
    ib = [i for i, x in enumerate(g3prep) if 's_bitcmp1' in x][0]
    g3prep = g3prep[:ib] + ["\n".join(g3prep[ib:ib+3])] + g3prep[ib+3:]
    KP3 = [0, 1, 4, 5, 9, 10, 13, 14, 2, 3, 6, 7, 11, 12, 15, 16, 8, 17]
    def w_reg(k): return 20*(k % 12)
    def w_loads(k):
        r = w_reg(k)
        return [f"s_add_u32 s36, s39, {KP3[k]*36864}"] + [VM(f"buffer_load_dwordx4 a[{r+4*j}:{r+4*j+3}], {['v3','v1','v1','v1','v250'][j]}, s[8:11], s36 offen offset:{1024*(j%4)}{SC}", ("W", k, j)) for j in range(5)]
    apieces = {}
    for k0, (Pp, pl_) in dma_at.items():
        b, off = PLACE[pl_]
        ks_ = [k0, k0, k0+1, k0+1] if (k0+1) not in dma_at else [k0]*4
        for i in range(4):
            gr = [f"s_add_u32 m0, {b}, {off}", VM(f"buffer_load_dwordx4 v{AV[i]}, s[16:19], s21 offen offset:{1024*i} lds", ("A2", Pp, i))]
            if i > 0 and ks_[i] == ks_[i-1]: gr = gr[1:]
            if i == 0: gr = [f"s_add_u32 s21, s29, {128*Pp}"] + gr
            apieces.setdefault(ks_[i], []).append(gr)
    CWK = [int(x) for x in os.environ.get('CWK', '1,9,17,25,33,41,49').split(',')]
    def t15_group(k):
        p0, cnt = P0[k % 4]
        o = [f"s_add_u32 m0, s7, {ALDS + p0*1024}"]
        for i in range(cnt): o.append(VM(f"buffer_load_dwordx4 v1, s[12:15], s21 offen offset:{1024*i} sc1 lds", ("B2", 15, p0+i)))
        o.append(f"s_add_u32 s21, s21, {cnt*1024}")
        return o
    tailprep = f"""
      v_add_u32 v4, {ALDS}, v1
      v_lshlrev_b32 v8, 3, v2
      s_lshr_b32 s22, s5, 1
      s_mul_i32 s22, s22, 9216
      s_mul_i32 s23, s6, {2*73728}
      s_add_u32 s22, s22, s23
      s_add_u32 s22, s22, {PF}
      s_and_b32 s23, s5, 1
      s_lshl_b32 s28, s23, 12
      s_add_u32 s28, s28, s22
      s_add_u32 s29, s28, 73728
      s_lshl_b32 s23, s23, 9
      s_add_u32 s30, s22, s23
      s_add_u32 s30, s30, 8192
      s_add_u32 s31, s30, 73728
      s_add_u32 s24, s24, {FLP-FLB}""".split("\n")
    TK = [52, 53, 54, 55, 60, 61, 62, 63, 56, 57, 58, 59]
    def ureg(u): return B2V + 24*(u % 3)
    def u_reads(u):
        if u >= 18: return []
        j, hf = divmod(u, 2)
        o = []
        for i, k in enumerate(TK[6*hf:6*hf+6]):
            ad = "v4" if k >= 60 else f"v{SL + (k//4) % 3}"
            o.append(f"ds_read_b128 v[{ureg(u)+4*i}:{ureg(u)+4*i+3}], {ad} offset:{(k%4)*9216 + j*1024}")
        return o
    WE = [int(x) for x in os.environ.get('WE', '43,45').split(',')]
    wq = [w_loads(k) for k in range(18)]
    lg = []
    for j in range(JF, 9): lg += late_gelu(j, 1) + late_gelu(j, 0)
    LG0, LG1 = 2, int(os.environ.get('LG1', '52'))
    for k in range(KT0):
        need = []
        if k in rd_at: need += a2tags(rd_at[k][0])
        if k % 4 == 3: need += b2tags((k+1)//4)
        if k == KT0-1: need += b2tags(15)
        if k == 51: need += [("G", 3)]
        seq.append(WAIT(need, lgkm=True))
        if k % 4 == 3: seq.append("s_barrier")
        mm = [mf2(k, j, t, B2V + (k%2)*36 + 4*j) for j in range(9) for t in range(2)]
        ds = b2_reads(k+1) if k+1 < KT0 else u_reads(0)
        if k in rd_at: ds += a2_rd(*rd_at[k])
        f = {0: b2_group(-3) + b2_group(-2), 1: b2_group(-1) + b2_group(0), 2: b2_group(1) + b2_group(2)}.get(k, None)
        if f is None: f = b2_group(k)
        f = f + [y for x in apieces.get(k, []) for y in x]
        if 47 <= k < 49: f = t15_group(2*k-47) + t15_group(2*k-46) + f
        if k in CWK: f += [VM("buffer_load_dword v15, v255, s[32:35], 0 offen", ("CW", k))]
        oth = []
        if k == 46: oth = [f"s_add_u32 s21, s7, {15*36864}"]
        if k == 48: oth = tailprep
        if k == 1: oth = ["s_lshr_b32 s42, s2, 5", "s_mul_i32 s42, s42, 9", "s_lshr_b32 s42, s42, 1", "s_lshl_b32 s42, s42, 7",
                           f"s_add_u32 s42, s42, {MODP + 5*576*8}", f"s_add_u32 s43, s42, {3456*8}", "v_lshlrev_b32 v9, 3, v2"]
        if k == 44: f += [VM(f"buffer_load_dword v{240+2*i}, v9, s[8:11], s{42 + i%2} offen offset:{512*(i//2)}{SC}", ("G", i)) for i in range(4)]
        if k == 51: oth = ["v_add_f32 v6, v240, v242", "v_add_f32 v7, v244, v246", "v_cvt_pk_bf16_f32 v6, v6, v7", "v_and_b32 v7, 0xffff0000, v6", "v_lshlrev_b32 v6, 16, v6"]
        if k == 0: oth = g3prep
        if k in WE: f += wq.pop(0)
        if LG0 <= k < LG1 and 'nolg' not in X: oth = oth + lg[len(lg)*(k-LG0)//(LG1-LG0):len(lg)*(k+1-LG0)//(LG1-LG0)]
        gs_, rest = vgroups(f)
        if 'nov' in X and 3 < k < 43:
            for gr in gs_: gr[-1].text = 's_nop 0'
        seq += sched(mm, ds, gs_, oth) + rest
    seq.append(a.stamp(0))
    def epi(j):
        o = []
        for t in range(2):
            x = ACC + (j*2+t)*4; z = ACC1 + 8*j + 4*t
            od = ACC + ((j & ~1)*2+t)*4
            for r in range(4): o.append(f"v_mul_f32 v{x+r}, v{x+r}, v{z+r}")
            for h in range(2): o.append(f"v_cvt_pk_bf16_f32 v{od + (j%2)*2 + h}, v{x+2*h}, v{x+2*h+1}")
            if j % 2 == 1: o.append(VM(f"buffer_store_dwordx4 v[{od}:{od+3}], v1, s[8:11], s{28+t} offen offset:{1024*(j//2)} sc1", ("PS", j, t)))
            if j == 8: o.append(VM(f"buffer_store_dwordx2 v[{od}:{od+1}], v8, s[8:11], s{30+t} offen sc1", ("PS", 9, t)))
        return o
    nleft = 8 - (18 - len(wq))
    tailw = set((i*8)//nleft for i in range(nleft)) if nleft else set()
    PV, LW = 240, 244
    DEP = 6; AC3 = 16; PR = 96; XR, GB = 192, 204
    g3a = f"""s_mul_i32 s20, s44, {4*73728}
      s_mul_i32 s6, s3, {18*1024}
      s_add_u32 s20, s20, s6
      s_add_u32 s20, s20, {PF}
      s_lshl_b32 s23, s44, 12
      s_lshl_b32 s6, s3, 9
      s_add_u32 s23, s23, s6
      s_add_u32 s23, s23, {FLP}
      v_and_b32 v10, 3, v2
      v_bfe_u32 v11, v2, 2, 1
      v_lshl_add_u32 v10, v11, 4, v10
      v_lshlrev_b32 v10, 7, v10
      s_lshl_b32 s22, s44, 2
      s_add_u32 s22, s22, s3
      s_mul_i32 s25, s22, 18432
      s_lshl_b32 s26, s45, 9
      s_add_u32 s25, s25, s26
      s_add_u32 s25, s25, {X1F}
      v_lshlrev_b32 v249, 4, v12""".split("\n")
    for u in range(4):
        g3a += [f"s_add_u32 s6, s3, {u}", "s_and_b32 s6, s6, 3", "s_mul_i32 s7, s6, 73728", f"v_add_u32 v{PV+u}, s7, v1"]
        if u > 0: g3a += ["s_mul_i32 s7, s6, 15360", f"s_add_u32 s7, s7, {(u-1)*5120}", f"v_add_u32 v{LW+u}, s7, v1"]
    fst = "buffer_store_dword v5, v13, s[8:11], s24 offen sc1"
    pp = "buffer_load_dword v11, v10, s[8:11], s23 offen sc1"
    UF1, UP1, KC2 = [int(x) for x in os.environ.get('G3S', '11,17,5').split(',')]
    def pcheck(name, lvl, tag, pre_slow=[]):
        cmp_ = f"v_cmp_gt_u32 vcc, {lvl}, v11"
        return [WAIT([tag]), cmp_, "s_mov_b32 s27, 0", "s_nop 3", f"s_cbranch_vccz {name}_GO"] + pre_slow + [f"{name}_POLL:", pp, "s_waitcnt vmcnt(0)", cmp_,
                "s_add_u32 s27, s27, 1", "s_cmp_ge_u32 s27, 0x80000", f"s_cbranch_scc1 {name}_GO", "s_nop 2", f"s_cbranch_vccz {name}_GO", f"s_sleep 1", f"s_branch {name}_POLL", f"{name}_GO:"]
    seq += [WAIT(b2tags(14), lgkm=True), "s_barrier"] + u_reads(1)
    for u in range(18):
        j, hf = divmod(u, 2)
        m_ = [mf2(k, j, t, ureg(u) + 4*i) for i, k in enumerate(TK[6*hf:6*hf+6]) for t in range(2)]
        if u > 0: seq.append(f"s_waitcnt lgkmcnt({6 if u < 17 else 0})")
        if u == UF1: seq += [WAIT([("PS", 3, 1)]), VM(fst, "FP1")]
        if u == UP1: seq += [VM(pp, "PP1"), "v_mov_b32 v5, 2"]
        e = epi(j-1) if j >= 1 else []
        if hf == 0:
            seq += interleave(m_[:6], u_reads(u+2) if u < 16 else ["s_nop 1"]) + interleave(m_[6:], e)
        else:
            gs_, rest = vgroups(wq.pop(0) if j in tailw else [])
            seq += sched(m_, u_reads(u+2), gs_, g3a[len(g3a)*j//6:len(g3a)*(j+1)//6] if j < 6 else [], vm_start=1) + rest
    seq += ["s_nop 7"] + epi(8) + [a.stamp(1)]
    def p_loads(k):
        if k >= 18: return []
        r = PR + (k % DEP)*16
        o = [f"s_add_u32 s21, s20, {KP3[k]*1024}"]
        if k < 16: o += [VM(f"buffer_load_dwordx4 v[{r+4*u}:{r+4*u+3}], v{PV+u}, s[8:11], s21 offen sc1", ("P", k, u)) for u in range(4)]
        else:
            for u in range(4):
                o += [f"v_sub_u32 v8, v{PV+u}, v9", VM(f"buffer_load_dwordx2 v[{r+4*u}:{r+4*u+1}], v8, s[8:11], s21 offen sc1", ("Ph", k, u)),
                      VM(f"buffer_load_dwordx2 v[{r+4*u+2}:{r+4*u+3}], v8, s[8:11], s21 offen offset:512 sc1", ("P", k, u))]
        return o
    NW0 = int(os.environ.get('NW0', '2'))
    for _ in range(NW0): seq += wq.pop(0)
    seq += pcheck("GM_P1", 1, "PP1", ["s_waitcnt vmcnt(0)", fst]) + [a.stamp(2)]
    seq += p_loads(0) + p_loads(1) + [WAIT([("PS", 9, 1)]), VM(fst, "FP2"), a.stamp(3)] + p_loads(2) + p_loads(3) + p_loads(4)
    p_ = a.ptr("out")
    seq += [f"s_mov_b32 s12, s{p_}", f"s_and_b32 s13, s{p_+1}, 0xffff", f"s_mov_b32 s14, {SZ['out']}", "s_mov_b32 s15, 0x20000"]
    for j in range(5):
        for r in range(4): seq.append(f"ds_bpermute_b32 v{GB+4*j+r}, v249, v{6 if j < 4 else 7} offset:{64*(j%4) + 4*r}")
        if j == 2: seq.append("s_waitcnt lgkmcnt(0)")
    xl = [VM(f"buffer_load_dwordx2 v[{XR+2*j}:{XR+1+2*j}], v9, s[8:11], s25 offen offset:{512*j}{SC}", ("X", j)) for j in range(5)]
    pnext = 5; wnext = 8 + NW0
    for k in range(18):
        if k == KC2: seq += pcheck("GM_P2", 2, "PP2")
        seq.append(WAIT([("P", k, 3), ("W", k, 4)]))
        if k == 0: seq.append(a.stamp(4))
        if k == 10: seq.append("s_barrier")
        r = PR + (k % DEP)*16
        mm = []
        for u in ((1, 2, 3, 0) if k == 17 else range(4)):
            for j in range(5):
                c = AC3 + (u*5+j)*4
                mm.append(f"{MF} v[{c}:{c+3}], a[{w_reg(k)+4*j}:{w_reg(k)+4*j+3}], v[{r+4*u}:{r+4*u+3}], {'0' if k == 0 else f'v[{c}:{c+3}]'}")
        f = []; budget = 2
        if k == KC2-2: f += [VM(pp, "PP2")]
        while budget and pnext < 18 and pnext <= k+DEP-1 and (pnext < 8 or k >= KC2): f += p_loads(pnext); pnext += 1; budget -= 1
        while budget and wnext < 18 and (wnext < 12 or wnext-12 < k): f += wq.pop(0); wnext += 1; budget -= 1
        if k == 13: f += xl
        gs_, rest = vgroups(f)
        if k < 17: seq += sched(mm, [], gs_, vm_start=1) + rest
        else:
            wr = [f"ds_write_b128 v{LW+u}, v[{AC3+(u*5+j)*4}:{AC3+(u*5+j)*4+3}] offset:{1024*j}" for u in range(1, 4) for j in range(5)]
            seq += mm[:9] + interleave(mm[9:], wr[:11]) + [a.stamp(5), "s_mul_i32 s7, s3, 15360", "v_add_u32 v11, s7, v1"] + wr[11:]
    seq += ["v_mul_u32_u24 v4, 1152, v248",
            "v_lshl_add_u32 v4, v12, 3, v4", "s_lshr_b32 s25, s22, 1", f"s_mul_i32 s25, s25, {32*1152}", "s_and_b32 s26, s22, 1", f"s_mul_i32 s26, s26, {4*1152}",
            "s_add_u32 s25, s25, s26", "s_lshl_b32 s26, s45, 5", "s_add_u32 s25, s25, s26",
            "v_lshlrev_b32 v8, 2, v12", "v_and_b32 v8, 8, v8", f"v_mov_b32 v9, {BIG}", "v_cmp_eq_u32 vcc, s46, v8", "s_nop 1", "v_cndmask_b32 v5, v4, v9, vcc",
            "v_cmp_eq_u32 vcc, s47, v8", "s_nop 1", "v_cndmask_b32 v6, v4, v9, vcc",
            "s_waitcnt lgkmcnt(0)", "s_barrier"]
    for i in range(15):
        c = AC3 + 20 + 4*i
        seq.append(f"ds_read_b128 v[{c}:{c+3}], v11 offset:{1024*i}")
        if i == 13: seq.append("s_waitcnt lgkmcnt(8)")
    seq += [WAIT([("X", 4)], lgkm=True)]
    for j in range(5):
        for h in range(2):
            x = AC3 + 4*j + 2*h
            seq += [f"v_pk_add_f32 {P(x)}, {P(x)}, {P(x+20)}", f"v_pk_add_f32 {P(x+40)}, {P(x+40)}, {P(x+60)}",
                    f"v_lshlrev_b32 v{x+20}, 16, v{XR+2*j+h}", f"v_and_b32 v{x+21}, 0xffff0000, v{XR+2*j+h}",
                    f"v_pk_add_f32 {P(x)}, {P(x)}, {P(x+40)}",
                    f"v_pk_fma_f32 {P(x)}, {P(x)}, {P(GB+4*j+2*h)}, {P(x+20)}",
                    f"v_cvt_pk_bf16_f32 v{XR+2*j+h}, v{x}, v{x+1}"]
        seq.append(VM(f"buffer_store_dwordx2 v[{XR+2*j}:{XR+1+2*j}], {['v5','v4','v4','v4','v6'][j]}, s[12:15], s25 offen offset:{32*j}", ("O", j)))
    resolve(seq)
    for it in seq:
        if it == "STAMPFLUSH": a.stamp_flush2(2, 8)
        else: emit(a, [it])
    a(a.stamp(6))
    a.stamp_end(3, 8)
    a("GM_END:\ns_endpgm\nGM_CODE_END:")
    a.stamp = st0
    if merged:
        from gen_s import KNAME
        a.desc(KNAME, 512, 256, 100)
    else: a.desc("gm_kernel", 512, 256)
```

```python
from gen_common import *
from gen_g import *
P = lambda r: f"v[{r}:{r+1}]"
BIG = 0x7fffff00

def poll_loop(a, name, loads, regs, tmp):
    a(f"s_mov_b32 s27, 0\n{name}_POLL:")
    for x in loads: a(x)
    a("s_waitcnt vmcnt(0)")
    if len(regs) == 1: a(f"v_cmp_eq_u32 vcc, 0, v{regs[0]}")
    else:
        a(f"v_min_u32 v{tmp}, v{regs[0]}, v{regs[1]}")
        for r in regs[2:]: a(f"v_min_u32 v{tmp}, v{tmp}, v{r}")
        a(f"v_cmp_eq_u32 vcc, 0, v{tmp}")
    a(f"""
      s_add_u32 s27, s27, 1
      s_cmp_ge_u32 s27, 0x80000
      s_cbranch_scc1 {name}_GO
      s_nop 2
      s_cbranch_vccz {name}_GO
      s_sleep {SLP}
      s_branch {name}_POLL
    {name}_GO:
    """)

def gen_gm(a, merged=False):
    SC = ' sc1' if merged else ''
    st0 = a.stamp
    fine2 = eval(os.environ.get('FINE2', '{}'))
    if fine2:
        phase = [0]
        a.stamp = lambda i: (st0(i) if phase[0] else "; ")
    if not merged:
        a.begin("gm_kernel")
        a("s_cmp_ge_u32 s2, 256\ns_cbranch_scc1 GM_END")
        a(a.stamp(0))
        a.load_args()
    else: a("gm_kernel:")
    tile_ids(a)
    SL = 252
    a(f"""
      s_mul_i32 s20, s5, {36*9216}
      s_add_u32 s20, s20, s7
      s_add_u32 s20, s20, {WINF}
      s_mul_i32 s21, s6, 36864
      s_add_u32 s21, s21, {X1F}           ; A soffset
      s_mul_i32 s30, s3, 12288
      s_add_u32 s30, s30, {3*36864}
      v_lshl_add_u32 v13, v2, 3, s30
      v_add_u32 v8, {18432-1024}, v1
      s_mul_i32 s28, s5, {64*9216}
      s_add_u32 s28, s28, {Z2F}
      s_lshl_b32 s29, s6, 17
      s_waitcnt lgkmcnt(0)
    """)
    if not merged: a.srd(8, "ws")
    AB, BB = 0, 144
    ACC2, ACC1, ST = 16, 88, 160
    ALDS = 3*36864
    def a_dma(ks):
        if ks >= 18: return []
        o = [f"s_add_u32 m0, s30, {(ks % 6)*2048}", "s_nop 0",
             VM(f"buffer_load_dwordx4 v1, s[8:11], s21 offen{SC} lds", ("A", ks, 0)),
             VM(f"buffer_load_dwordx4 v8, s[8:11], s21 offen offset:1024{SC} lds", ("A", ks, 1)),
             "s_add_u32 s21, s21, 1024"]
        return o
    def a_reads(ks):
        if ks >= 18: return []
        return [f"ds_read_b64 a[{AB+(ks*2+t)*4+2*h}:{AB+(ks*2+t)*4+2*h+1}], v13 offset:{(ks % 6)*2048 + t*1024 + h*512}" for t in range(2) for h in range(2)]
    def atags(ks): return [("A", ks, t) for t in range(2)] if ks < 18 else []
    def b1_group(k):
        T = (k+1)//4 + 2
        if T >= 9: return []
        p0, cnt = P0[k % 4]
        o = [f"s_add_u32 m0, s7, {(T % 3)*36864 + p0*1024}", "s_nop 0"]
        for i in range(cnt): o.append(VM(f"buffer_load_dwordx4 v1, s[8:11], s20 offen offset:{1024*i}{SC} lds", ("B", T, p0+i)))
        o.append(f"s_add_u32 s20, s20, {cnt*1024 if k % 4 != 2 else 36864 - 7168}")
        return o
    def b1_reads(k):
        return [f"ds_read_b128 a[{BB + (k%2)*36 + 4*j}:{BB + (k%2)*36 + 4*j + 3}], v{SL + (k//4) % 3} offset:{(k%4)*9216 + j*1024}" for j in range(9)]
    if not merged:
        seq = []
        seq += a_dma(0)
        for k in range(-9, -5): seq += b1_group(k)
        for ks in range(1, 4): seq += a_dma(ks)
        seq += ["s_getpc_b64 s[32:33]", "GM_PC:", "s_sub_u32 s32, s32, GM_PC-gm_kernel", "s_subb_u32 s33, s33, 0", "s_and_b32 s33, s33, 0xffff",
                "s_mov_b32 s34, GM_CODE_END-gm_kernel", "s_mov_b32 s35, 0x20000", "s_lshr_b32 s31, s2, 3", "s_lshl_b32 s31, s31, 7",
                "v_lshlrev_b32 v255, 12, v0", "v_add_u32 v255, s31, v255", VM("buffer_load_dword v11, v255, s[32:35], 0 offen", "CW")]
        resolve(seq); emit(a, seq); pre = seq; seq = []
        NPB = int(os.environ.get('NPB', '2'))
        late_pro = []
        for k in range(-5, -5+NPB): late_pro += b1_group(k)
        e0 = []
        for k in range(-5+NPB, -1): e0 += b1_group(k)
        early = {0: e0 + a_dma(4) + (a_dma(5) + b1_group(-1) if NPB >= 2 else []), 1: (a_dma(5) + b1_group(-1) if NPB < 2 else []) + a_dma(6) + b1_group(0) + b1_group(1)}
    else:
        from gen_s import FD
        from gen_f import poll
        a(f"""
          s_mul_i32 s22, s5, 9
          s_lshr_b32 s22, s22, 2
          s_add_u32 s22, s22, 36
          v_and_b32 v4, 3, v2
          v_add_u32 v4, s22, v4
          v_min_u32 v4, 71, v4
          v_mul_u32_u24 v5, 7282, v4
          v_lshrrev_b32 v5, 16, v5
          v_mul_u32_u24 v6, 9, v5
          v_sub_u32 v4, v4, v6
          v_lshl_add_u32 v4, v4, 3, v5
          v_lshlrev_b32 v4, 7, v4
          v_add_u32 v4, {FD + 144*128}, v4
          v_lshlrev_b32 v5, 7, v0
          v_add_u32 v5, {FD}, v5
          buffer_load_dword v6, v4, s[8:11], 0 offen sc1
          v_mov_b32 v7, s42
          s_lshl_b32 s22, s2, 7
          s_add_u32 s22, s22, {FD}
          s_waitcnt vmcnt(0)
          s_barrier
          s_cmp_lg_u32 s3, 0
          s_cbranch_scc1 GM_NOD
          buffer_store_dword v7, v250, s[8:11], s22 offen sc1
        GM_NOD:
          {st0(7)}
          v_cmp_ne_u32 vcc, s42, v6
        """)
        if Asm.STAMPS: a.stamp_flush2(0, 8); a(a.stamp(0))
        for x_ in ["s_getpc_b64 s[32:33]", "GM_PC:", "s_sub_u32 s32, s32, GM_PC-gm_kernel", "s_subb_u32 s33, s33, 0", "s_and_b32 s33, s33, 0xffff",
            "s_mov_b32 s34, GM_CODE_END-gm_kernel", "s_mov_b32 s35, 0x20000", "s_lshr_b32 s31, s2, 3", "s_lshl_b32 s31, s31, 7",
            "v_lshlrev_b32 v255, 12, v0", "v_add_u32 v255, s31, v255"]: a(x_)
        if 'noft' not in X:
            a.srd(16, "wsp")
            a("s_cmp_ge_u32 s96, 64\ns_cbranch_scc1 GM_NOFT\ns_lshl_b32 s97, s96, 2\ns_add_u32 s97, s97, s3\ns_lshl_b32 s97, s97, 15")
            for i in range(16):
                a(f"buffer_load_dwordx4 a[216:219], v1, s[16:19], s97 offen offset:{1024*(i%2)}")
                if i % 2 == 1: a("s_add_u32 s97, s97, 4096")
            a("GM_NOFT:")
        a("s_nop 4\ns_cbranch_vccz GM_W_GO")
        poll(a, "GM_W", "v4", "v6", slp=8)
        seq = []
        for k in range(-9, -5): seq += b1_group(k)
        seq += [VM("buffer_load_dword v6, v5, s[8:11], 0 offen sc1", "DN")]
        NPF = int(os.environ.get('NPF', '4'))
        for k in range(-5, -5+NPF): seq += b1_group(k)
        seq += [VM("buffer_load_dword v11, v255, s[32:35], 0 offen", "CW"), WAIT(["DN"]), "v_cmp_ne_u32 vcc, s42, v6", "s_nop 4", "s_cbranch_vccz GM_D_GO"]
        resolve(seq); emit(a, seq); pre = seq; seq = []
        poll(a, "GM_D", "v5", "v6", slp=int(os.environ.get('DSL', '1')))
        a("s_barrier")
        late_pro = []
        for ks in range(6): late_pro += a_dma(ks)
        emit(a, late_pro); pre = pre + late_pro; late_pro = [WAIT(atags(0))]
        a("s_cmp_lg_u32 s2, 255\ns_cbranch_scc1 GM_NOCLR")
        a.srd(12, "dbg", 256)
        a("v_mov_b32 v6, 0\nv_lshlrev_b32 v7, 8, v0\nbuffer_store_dword v6, v7, s[12:15], 0 offen sc1\ns_nop 1\nGM_NOCLR:")
        rem = list(range(-5+NPF, 3))
        early = {0: [], 1: a_dma(6), 2: []}
        for i, k in enumerate(rem): early[(3*i)//len(rem)] += b1_group(k)
    a.srd(12, "ws", 64*9216, "s28"); a.srd(16, "wsp"); a.srd(36, "bsp")
    a(f"""
      v_mov_b32 v{SL}, v1
      v_add_u32 v{SL+1}, 36864, v1
      v_add_u32 v{SL+2}, {2*36864}, v1
      v_mov_b32 v4, 0x3f803f80
      v_mov_b32 v5, 0x3f803f80
      v_mov_b32 v6, 0x3f803f80
      v_mov_b32 v7, 0x3f803f80
      s_mov_b32 s40, {float_hex(C1)}
      s_mov_b32 s41, {float_hex(C1)}
      v_mov_b32 v14, {float_hex(C0)}
      v_mov_b32 v15, {float_hex(C0)}
      s_mul_i32 s22, s5, {144*8}
      s_add_u32 s22, s22, {UV2}
      v_lshlrev_b32 v9, 3, v3             ; n*8
      v_add_u32 v9, 159744, v9
      v_lshrrev_b32 v248, 2, v3
      v_lshlrev_b32 v248, 3, v248
      v_and_b32 v249, 3, v3
      v_add_u32 v248, v248, v249
      v_add_u32 v251, 4096, v1
    """)
    seq += late_pro + [WAIT(btags(0)), "s_barrier", a.stamp(1)]
    seq += a_reads(0) + b1_reads(0)
    ARD = {k_: [k_+1] for k_ in range(14)}; ARD[14] = [15]; ARD[15] = [16, 17]
    STK = {k_: [k_] for k_ in range(16)}; STK[16] = [16, 17]
    def kstep(kk, extra=[], need_extra=[]):
        ks = kk % 18; ps = kk // 18
        o = []
        need = [t_ for x in ARD.get(kk, []) for t_ in atags(x)] + need_extra
        bar = (kk % 4 == 3 and kk < 35)
        if bar: need = need + btags((kk+1)//4)
        o.append(WAIT(need, lgkm=True))
        if bar: o.append("s_barrier")
        m = []
        for j in range(9):
            for t in range(2):
                A = f"a[{AB+(ks*2+t)*4}:{AB+(ks*2+t)*4+3}]"
                B = f"a[{BB+(kk%2)*36+4*j}:{BB+(kk%2)*36+4*j+3}]"
                r = (ACC2 if ps == 0 else ACC1) + (j*2+t)*4
                C = "0" if ks == 0 else f"v[{r}:{r+3}]"
                m.append(f"{MF} v[{r}:{r+3}], {A}, {B}, {C}" if ps == 0 else f"{MF} v[{r}:{r+3}], {B}, {A}, {C}")
        sm = []
        for k2 in STK.get(kk, []):
            for t in range(2):
                A = f"a[{AB+(k2*2+t)*4}:{AB+(k2*2+t)*4+3}]"
                r = ST + 4*t
                sm.append(f"{MF} v[{r}:{r+3}], {A}, v[4:7], {'0' if k2 == 0 else f'v[{r}:{r+3}]'}")
                r = ST + 8 + 4*t
                sm.append(f"{MF} v[{r}:{r+3}], {A}, {A}, {'0' if k2 == 0 else f'v[{r}:{r+3}]'}")
        m = (sm + m) if kk == 16 else (m + sm)
        f = (b1_reads(kk+1) if kk < 35 else []) + [x for k2 in ARD.get(kk, []) for x in a_reads(k2)] + early.get(kk, []) + (a_dma(kk+5) + (b1_group(kk) if not (merged and kk < 3) else []) if kk >= 2 else []) + extra
        if 'nosch' in X: return o + interleave(m, f)
        ds = [x for x in f if isinstance(x, str) and x.startswith("ds_")]
        base = [x for x in f[:len(f)-len(extra)] if not (isinstance(x, str) and x.startswith("ds_"))]
        if any(isinstance(x, str) and x.startswith("v_") for x in extra):
            gs_, rest = vgroups(base)
            mo = [i for i, x in enumerate(extra) if isinstance(x, str) and "m0" in x]
            cut = mo[0] if mo else len(extra)
            g2_, rest2 = vgroups(rest + extra[cut:])
            o += sched(m, ds, gs_ + g2_, extra[:cut]) + rest2
        else:
            gs_, rest = vgroups(base + extra)
            o += sched(m, ds, gs_) + rest
        return o
    UV = 176; WS = 216
    UVL = 159744
    uvd = [f"s_mov_b32 m0, {UVL}", "s_nop 0", VM(f"buffer_load_dwordx4 v1, s[8:11], s22 offen{SC} lds", ("UVD", 0)), VM(f"buffer_load_dwordx4 v1, s[8:11], s22 offen offset:1024{SC} lds", ("UVD", 1)),
           f"s_mul_i32 s22, s5, {144*4}", f"s_add_u32 s22, s22, {UV1}", f"s_mov_b32 m0, {UVL+2048}", "s_nop 0", VM(f"buffer_load_dwordx4 v1, s[8:11], s22 offen{SC} lds", ("UVD", 2)),
           f"s_add_u32 s22, s22, {9216-1024}", VM(f"buffer_load_dwordx4 v1, s[8:11], s22 offen offset:1024{SC} lds", ("UVD", 3))]
    uv2 = [f"ds_read_b64 v[{UV+2*j}:{UV+2*j+1}], v9 offset:{128*j}" for j in range(9)]
    touch = ["v_lshlrev_b32 v10, 12, v12", "v_lshl_add_u32 v10, v3, 4, v10", "s_lshl_b32 s31, s5, 8", "s_add_u32 s31, s31, s29"]
    for i in range(8):
        touch += [VM(f"buffer_load_dwordx4 a[{WS}:{WS+3}], v10, s[16:19], s31 offen", ("WL", i)), "s_add_u32 s31, s31, 16384"]
    CW1 = [int(x) for x in os.environ.get('CW1', '-1').split(',')]
    if merged and 'noft' not in X:
        touch = ["v_lshrrev_b32 v10, 3, v2", "v_lshlrev_b32 v10, 12, v10", "v_and_b32 v194, 7, v2", "v_lshl_add_u32 v10, v194, 4, v10"]
        t2 = ["s_lshl_b32 s31, s5, 7", "s_add_u32 s31, s31, s29"]
        for i in range(4): t2 += [VM(f"buffer_load_dwordx4 a[{WS}:{WS+3}], v10, s[16:19], s31 offen offset:2048", ("WL", i)), "s_add_u32 s31, s31, 32768"]
        touch += t2[:8] + t2[8:]
    TK0 = int(os.environ.get('TK0', '13'))
    for kk in range(18):
        ex = []
        ne = []
        if kk in CW1: ex = [VM("buffer_load_dword v195, v255, s[32:35], 0 offen", ("CW1", kk))]
        if kk == min(13, TK0-2): ex = uvd
        if kk == TK0-1: ex = touch[:4]
        if kk == TK0: ex = touch[4:12]
        if kk == TK0+1: ex = touch[12:]
        if kk == 6: ex = ["v_mul_u32_u24 v11, 80, v12"]
        if kk == 16: early[16] = [f"ds_bpermute_b32 v{ST+8+4*t+r}, v11, v{ST+8+4*t+r} offset:{4*r}" for t in range(2) for r in range(4)]
        if kk == 17:
            ex = ln_finish([ST+i for i in range(8)], [ST+8+i for i in range(8)], 576, 8, None)
            early[17] = uv2[:5]; ne = [("UVD", 3)]
        seq += kstep(kk, ex, ne)
    seq += [a.stamp(2), "s_waitcnt lgkmcnt(0)"] + uv2[5:] + ["s_nop 3"]
    ZR = [240, 244]; ZN = [242, 246]
    zst = ["v_and_b32 v210, 3, v3", "v_lshrrev_b32 v211, 2, v3", "v_lshl_add_u32 v211, v211, 4, v3", "v_lshlrev_b32 v211, 2, v211"]
    for t in range(2):
        zst += [f"v_mov_b32 v{ZR[t]}, v{ST+8+4*t}", f"v_mov_b32 v{ZN[t]}, v{ST+4*t}"]
    for r in range(1, 4):
        zst += [f"v_cmp_eq_u32 vcc, {r}, v210", "s_nop 1"]
        for t in range(2):
            zst += [f"v_cndmask_b32 v{ZR[t]}, v{ZR[t]}, v{ST+8+4*t+r}, vcc", f"v_cndmask_b32 v{ZN[t]}, v{ZN[t]}, v{ST+4*t+r}, vcc"]
    zbp = [f"ds_bpermute_b32 v{r}, v211, v{r}" for r in ZR + ZN]
    DL0 = int(os.environ.get('DL0', '18'))
    dlist = []
    for kk in range(DL0, 18): dlist += b1_group(kk)
    g2start = len(seq)
    Z1S, Z2S, TMP, GR = 196, 204, 212, 220
    for j in range(9):
        xs = [ACC2 + j*8 + 2*i for i in range(4)]; ts = [TMP + 2*i for i in range(4)]
        uv = P(UV + 2*j)
        if j == 3: seq.append("s_waitcnt lgkmcnt(0)")
        seq.append(f"v_mov_b32 v194, v{UV+2*j+1}")
        for i in range(4): seq.append(f"v_pk_fma_f32 {P(ts[i])}, {P(ST+2*i)}, {uv}, v[194:195] op_sel_hi:[1,0,0]")
        for i in range(4): seq.append(f"v_pk_fma_f32 {P(xs[i])}, {P(xs[i])}, {P(ST+8+2*i)}, {P(ts[i])}")
        seq += gelu_pairs(xs, ts)
        for i in range(4):
            if j == 0: seq += [f"v_pk_mul_f32 {P(Z2S+2*i)}, {P(xs[i])}, {P(xs[i])}"]
            elif j == 1: seq += [f"v_pk_add_f32 {P(Z1S+2*i)}, {P(xs[i])}, {P(ACC2+2*i)}", f"v_pk_fma_f32 {P(Z2S+2*i)}, {P(xs[i])}, {P(xs[i])}, {P(Z2S+2*i)}"]
            else: seq += [f"v_pk_add_f32 {P(Z1S+2*i)}, {P(xs[i])}, {P(Z1S+2*i)}", f"v_pk_fma_f32 {P(Z2S+2*i)}, {P(xs[i])}, {P(xs[i])}, {P(Z2S+2*i)}"]
    NG = int(os.environ.get('NG', '60'))
    seq = seq[:g2start] + interleave(seq[g2start:g2start+NG], dlist) + seq[g2start+NG:]
    gspos = len(seq)
    V = [(Z1S if i % 2 == 0 else Z2S) + i//2 for i in range(16)]
    T0, T1 = TMP, TMP+4
    seq += ["v_and_b32 v11, 3, v3", "v_cmp_eq_u32 vcc, 0, v11"]
    for r in range(4):
        seq += [f"v_add_f32_dpp v{T0+r}, v{V[r]}, v{V[r]} row_ror:8 row_mask:0xf bank_mask:0x3", f"v_add_f32_dpp v{T0+r}, v{V[8+r]}, v{V[8+r]} row_ror:8 row_mask:0xf bank_mask:0xc"]
    for r in range(4):
        seq += [f"v_add_f32_dpp v{T1+r}, v{V[4+r]}, v{V[4+r]} row_ror:8 row_mask:0xf bank_mask:0x3", f"v_add_f32_dpp v{T1+r}, v{V[12+r]}, v{V[12+r]} row_ror:8 row_mask:0xf bank_mask:0xc"]
    for r in range(4): seq.append(f"v_add_f32_dpp v{GR+r}, v{T0+r}, v{T0+r} row_shl:4 row_mask:0xf bank_mask:0x5")
    for r in range(4): seq.append(f"v_add_f32_dpp v{GR+r}, v{T1+r}, v{T1+r} row_shr:4 row_mask:0xf bank_mask:0xa")
    for qp in ("[1,0,3,2]", "[2,3,0,1]"):
        for r in range(4): seq.append(f"v_add_f32_dpp v{GR+r}, v{GR+r}, v{GR+r} quad_perm:{qp} row_mask:0xf bank_mask:0xf")
    seq += [f"v_or_b32 v{GR+1}, 1, v{GR+1}", f"v_or_b32 v{GR+3}, 1, v{GR+3}",
            f"s_lshl_b32 s23, s6, 12", f"s_add_u32 s23, s23, {ST2}", "s_lshl_b32 s24, s5, 8", "s_add_u32 s24, s24, s23",
            "v_lshlrev_b32 v10, 2, v2", f"v_mov_b32 v194, {BIG}", "v_cndmask_b32 v10, v194, v10, vcc",
            "v_lshlrev_b32 v9, 4, v12", f"v_add_u32 v9, {UVL+2048}, v9", a.stamp(3)]
    gs = [VM(f"buffer_store_dwordx4 v[{GR}:{GR+3}], v10, s[8:11], s24 offen sc1", "GS")]
    seq += gs
    U1 = 160
    uv1 = []
    for j in range(9):
        uv1.append(f"ds_read_b128 v[{U1+8*j}:{U1+8*j+3}], v9 offset:{64*j}")
        uv1.append(f"ds_read_b128 v[{U1+8*j+4}:{U1+8*j+7}], v9 offset:{64*j+1024}")
    PL = 176; R1 = [200+i for i in range(8)]; R2 = [192+i for i in range(8)]
    pl = [f"buffer_load_dwordx4 v[{PL+4*i}:{PL+4*i+3}], v1, s[8:11], s23 offen offset:{1024*i} sc1" for i in range(4)]
    bl = [VM("buffer_load_ushort v6, v5, s[36:39], s26 offen", "b0"), VM("buffer_load_ushort v7, v5, s[36:39], s26 offen offset:8", "b1")]
    chk = [f"v_min_u32 v209, v{PL+1}, v{PL+3}"] + [f"v_min_u32 v209, v209, v{PL+2*i+1}" for i in range(2, 8)] + ["v_cmp_eq_u32 vcc, 0, v209"]
    pollS = [WAIT([("PL", 3)])] + chk + ["s_mov_b32 s27, 0", "s_nop 3", "s_cbranch_vccz GM_S_GO", "GM_S_POLL:"] + pl + ["s_waitcnt vmcnt(0)"] + chk + \
            ["s_add_u32 s27, s27, 1", "s_cmp_ge_u32 s27, 0x80000", "s_cbranch_scc1 GM_S_GO", "s_nop 2", "s_cbranch_vccz GM_S_GO", f"s_sleep {SLP}", "s_branch GM_S_POLL", "GM_S_GO:", a.stamp(4)]
    nrm = [f"v_add_f32 v{PL+r}, v{PL+r}, v{PL+4+r}" for r in range(4)] + [f"v_add_f32 v{PL+8+r}, v{PL+8+r}, v{PL+12+r}" for r in range(4)]
    nrm += [f"v_add_f32 v{PL+r}, v{PL+r}, v{PL+8+r}" for r in range(4)]
    for sw in ("16", "32"):
        nrm += [f"v_mov_b32 v{PL+4+r}, v{PL+r}" for r in range(4)] + ["s_nop 1"]
        nrm += [f"v_permlane{sw}_swap_b32 v{PL+r}, v{PL+4+r}" for r in range(4)] + ["s_nop 1"]
        nrm += [f"v_add_f32 v{PL+r}, v{PL+r}, v{PL+4+r}" for r in range(4)]
    nrm += ln_finish([PL, PL+2], [PL+1, PL+3], FH, 2, None)
    nrm += ["v_lshlrev_b32 v11, 4, v12"]
    bp = []
    for i in range(8):
        bp += [f"ds_bpermute_b32 v{R1[i]}, v11, v{PL+2*(i%2)} offset:{4*(i//2)}", f"ds_bpermute_b32 v{R2[i]}, v11, v{PL+2*(i%2)+1} offset:{4*(i//2)}"]
    nrm += ["s_mul_i32 s26, s6, 9216", "v_add_u32 v208, 8192, v1"]
    nrm0 = nrm; nrm = []
    for j in range(9):
        for i in range(8): nrm.append(f"v_fma_f32 v{ACC2+8*j+i}, v{ACC2+8*j+i}, v{R2[i]}, v{R1[i]}")
        for i in range(4): nrm.append(f"v_cvt_pk_bf16_f32 v{ACC2+8*j+i}, v{ACC2+8*j+2*i}, v{ACC2+8*j+2*i+1}")
        nrm.append(VM(f"buffer_store_dwordx4 v[{ACC2+8*j}:{ACC2+8*j+3}], {['v1','v251','v208'][j//4]}, s[12:15], s26 offen offset:{1024*(j%4)} sc1", ("Z2", j)))
    KT = -1
    KP, KN0, KN1, JPK, KF = [int(x) for x in os.environ.get('P2', '21,23,24,2,31').split(',')]
    per = (len(nrm0) + (KN1-KN0) - 1) // (KN1-KN0)
    pb = "buffer_load_dword v11, v10, s[8:11], s23 offen sc1"
    CW2 = [int(x) for x in os.environ.get('CW2', '19').split(',')]
    flagprep = ["s_lshl_b32 s24, s6, 4", "s_add_u32 s24, s24, s5", "s_lshl_b32 s24, s24, 7", f"s_add_u32 s24, s24, {FLB}",
            "v_cmp_eq_u32 vcc, 0, v2", f"v_mov_b32 v13, {BIG}", "v_mov_b32 v5, 1", "v_cndmask_b32 v13, v13, 0, vcc"]
    ACC, B2V = 16, 160
    AV = [241, 243, 245, 247]
    aprep = ["v_lshrrev_b32 v4, 3, v2", "v_lshrrev_b32 v249, 2, v4", "v_lshlrev_b32 v249, 3, v249", "v_and_b32 v250, 3, v4", "v_add_u32 v249, v249, v250", "v_lshlrev_b32 v249, 12, v249",
            "v_lshrrev_b32 v4, 1, v4", "v_and_b32 v250, 7, v2", "v_xor_b32 v4, v4, v250",
            f"v_lshl_add_u32 v{AV[0]}, v4, 4, v249", "v_xor_b32 v4, 4, v4", f"v_lshl_add_u32 v{AV[1]}, v4, 4, v249", f"v_add_u32 v{AV[1]}, {65536-1024}, v{AV[1]}",
            f"v_add_u32 v{AV[2]}, {16384-2048}, v{AV[0]}", f"v_add_u32 v{AV[3]}, {16384-2048}, v{AV[1]}"]
    aprep2 = ["v_lshrrev_b32 v4, 1, v3", "v_xor_b32 v4, v4, v12", "v_lshlrev_b32 v4, 4, v4", "v_lshl_add_u32 v4, v3, 7, v4",
            "v_add_u32 v249, s7, v4", "v_xor_b32 v250, 64, v249", "v_add_u32 v4, s30, v4", "v_xor_b32 v8, 64, v4"]
    PLACE = {"R0": ("s30", 0), "R1": ("s30", 4096), "R2": ("s30", 8192), "S0a": ("s7", 0), "S0b": ("s7", 4096), "S1a": ("s7", 36864), "S1b": ("s7", 36864+4096)}
    def a2_dma(Pp, pl):
        b, off = PLACE[pl]
        return [f"s_add_u32 m0, {b}, {off}", f"s_add_u32 s21, s29, {128*Pp}"] + \
               [VM(f"buffer_load_dwordx4 v{AV[i]}, s[16:19], s21 offen offset:{1024*i} lds", ("A2", Pp, i)) for i in range(4)]
    def a2_rd(Pp, pl):
        b, off = PLACE[pl]
        regs = ("v4", "v8") if b == "s30" else ("v249", "v250")
        return [f"ds_read_b128 a[{8*((2*Pp+e) % 32)+4*t}:{8*((2*Pp+e) % 32)+4*t+3}], {regs[e]} offset:{off + t*2048}" for e in range(2) for t in range(2)]
    def a2tags(Pp): return [("A2", Pp, i) for i in range(4)]
    r1 = {21: [(3, "R2")], 23: [(4, "R0")], 25: [(5, "R1")], 27: [(6, "R2")], 28: [(7, "S0a")], 29: [(8, "S0b")],
          31: [(9, "S1a")], 32: [(10, "S1b")], 33: [(11, "R0")], 34: [(12, "R1")], 35: [(13, "R2")]}
    rr1 = {20: [(0, "R2")], 22: [(1, "R0")], 24: [(2, "R1")], 26: [(3, "R2")], 28: [(4, "R0")], 33: [(5, "R1")], 34: [(6, "R2")], 35: [(7, "S0a")]}
    if 'r1b' in X:
        r1 = {21: [(3, "R2")], 23: [(4, "R0")], 29: [(5, "R1")], 30: [(6, "R2"), (7, "S0a")], 31: [(8, "S0b"), (9, "S1a")], 32: [(10, "S1b")], 33: [(11, "R0")], 34: [(12, "R1")], 35: [(13, "R2")]}
    if 'r1a' not in X:
        r1 = {21: [(3, "R2")], 23: [(4, "R0")], 28: [(5, "R1")], 29: [(6, "R2")], 30: [(7, "S0a"), (8, "S0b")], 31: [(9, "S1a")], 32: [(10, "S1b")], 33: [(11, "R0")], 34: [(12, "R1")], 35: [(13, "R2")]}
    GA, GB_ = [int(x) for x in os.environ.get('GA', '300,440').split(',')]
    g2 = seq[g2start:gspos]
    g2 = g2[:GA] + aprep + aprep2 + interleave(g2[GA:GA+60], a2_dma(14, "R0") + a2_dma(15, "R1") + a2_dma(0, "R2")) + g2[GA+60:GB_] + \
         [WAIT(a2tags(15))] + a2_rd(14, "R0") + a2_rd(15, "R1") + g2[GB_:GB_+30] + ["s_waitcnt lgkmcnt(0)"] + interleave(g2[GB_+30:], a2_dma(1, "R0") + a2_dma(2, "R1"))
    seq = seq[:g2start] + g2 + seq[gspos:]
    for kk in range(18, 36):
        ex = []; ne = []
        if kk == 18: ex = ["v_lshlrev_b32 v5, 1, v248", "s_lshl_b32 s26, s6, 6"] + bl
        if kk == 20: ex = zst
        if kk == 21: early[kk] = early.get(kk, []) + zbp
        if kk == KP: ex = [VM(x, ("PL", i)) for i, x in enumerate(pl)]
        if kk in fine2: seq.append(st0(fine2[kk]))
        if kk == KN0: seq += pollS
        if kk == KN0: ex = nrm0
        if kk == KN0+1: seq += ["s_waitcnt lgkmcnt(0)"] + bp[:12] + ["s_waitcnt lgkmcnt(4)"] + bp[12:]
        if kk >= KN1: ex = nrm[13*JPK*(kk-KN1):13*JPK*(kk-KN1+1)]
        if kk == 30:
            assert not ex
            ex = flagprep + ["s_lshl_b32 s23, s3, 4", "s_add_u32 s23, s23, s5", "s_lshl_b32 s23, s23, 7", f"s_add_u32 s23, s23, {FLB}", "v_lshlrev_b32 v10, 13, v3"]
        if kk == KF: ex = [VM("buffer_store_dword v5, v13, s[8:11], s24 offen sc1", "FB")] + ex; ne = [("Z2", 8)]
        if kk in (30, 31): early[kk] = early.get(kk, []) + uv1[5*(kk-30):5*(kk-30)+5]
        if kk == 35: early[kk] = early.get(kk, []) + uv1[10:]
        for Pp, pl_ in r1.get(kk, []): ex = ex + a2_dma(Pp, pl_)
        for Pp, pl_ in rr1.get(kk, []): early[kk] = early.get(kk, []) + a2_rd(Pp, pl_); ne = ne + a2tags(Pp)
        if kk in CW2: early[kk] = early.get(kk, []) + [VM("buffer_load_dword v15, v255, s[32:35], 0 offen", ("CW2", kk))]
        if kk == 35: ex = [VM(pb, "PB")] + ex
        seq += kstep(kk, ex, ne)
    seq += [a.stamp(5)]
    TM1 = 232
    JF = int(os.environ.get('JF', '0'))
    def z1g(j):
        o = []
        xs = [ACC1 + j*8 + 2*i for i in range(4)]; ts = [TM1 + 2*i for i in range(4)]
        for i in range(4):
            o.append(f"v_pk_fma_f32 {P(ts[i])}, {P(U1+8*j+2*(i%2))}, {P(ZN[i//2])}, {P(U1+8*j+4+2*(i%2))} op_sel_hi:[1,0,1]")
        for i in range(4):
            o.append(f"v_pk_fma_f32 {P(xs[i])}, {P(xs[i])}, {P(ZR[i//2])}, {P(ts[i])} op_sel_hi:[1,0,1]")
        return o
    def late_gelu(j, hf):
        xs = [ACC1+8*j+4*hf+i for i in range(4)]; ts = [232+4*hf+i for i in range(4)]
        o = []
        for x, t in zip(xs, ts): o.append(f"v_mul_f32 v{t}, v{x}, v{x}")
        for x, t in zip(xs, ts): o.append(f"v_fma_f32 v{t}, v{t}, s40, v14")
        for x, t in zip(xs, ts): o.append(f"v_mul_f32 v{t}, v{t}, v{x}")
        for x, t in zip(xs, ts): o.append(f"v_exp_f32 v{t}, v{t}")
        for x, t in zip(xs, ts): o.append(f"v_add_f32 v{t}, 1.0, v{t}")
        for x, t in zip(xs, ts): o.append(f"v_rcp_f32 v{t}, v{t}")
        for x, t in zip(xs, ts): o.append(f"v_mul_f32 v{x}, v{x}, v{t}")
        return o
    def b2_group(k):
        T = (k+1)//4 + 2
        if T >= 15: return []
        p0, cnt = P0[k % 4]
        o = [f"s_add_u32 m0, s7, {(T % 3)*36864 + p0*1024}", "s_nop 0"]
        for i in range(cnt): o.append(VM(f"buffer_load_dwordx4 v1, s[12:15], s20 offen offset:{1024*i} sc1 lds", ("B2", T, p0+i)))
        o.append(f"s_add_u32 s20, s20, {cnt*1024 if k % 4 != 2 else 36864 - 7168}")
        return o
    def b2tags(T): return [("B2", T, p) for p in range(9)]
    def b2_reads(k):
        return [f"ds_read_b128 v[{B2V + (k%2)*36 + 4*j}:{B2V + (k%2)*36 + 4*j + 3}], v{SL + (k//4) % 3} offset:{(k%4)*9216 + j*1024}" for j in range(9)]
    seq += ["s_mov_b32 s20, s7", WAIT(a2tags(10), lgkm=True)] + a2_rd(8, "S0b") + a2_rd(9, "S1a") + a2_rd(10, "S1b")
    J2 = int(os.environ.get('J2', '2'))
    for j in range(J2): seq += z1g(j)
    seq += [WAIT(["PB"]), "v_cmp_eq_u32 vcc, 0, v11", "s_waitcnt lgkmcnt(0)", "s_nop 3", "s_cbranch_vccz GM_B_GO"]
    resolve(pre + seq); emit(a, seq); pre2 = [VM("; ", x.tag) for x in seq if isinstance(x, VM) and x.tag[0] == "A2" and x.tag[1] in (11, 12, 13)]
    poll_loop(a, "GM_B", [pb], [11], None)
    a(a.stamp(6))
    seq = list(pre2)
    for k in range(-9, -5): seq += b2_group(k)
    fl = []
    for k in range(-5, -3): fl += b2_group(k)
    val = []
    for j in range(J2, 9): val += z1g(j)
    seq += interleave(val, fl)
    if fine2: phase[0] = 1
    if Asm.STAMPS: seq += [a.stamp(7), "STAMPFLUSH"]
    seq += [f"v_lshlrev_b32 v{232+i}, 16, v{6 + i//4}" for i in range(8)]
    seq += [WAIT(b2tags(0)), "s_barrier"] + b2_reads(0)
    KA = 46
    PS_ = [11, 12, 13] + list(range(16, 32))
    RPi = lambda i: 2 + ((KA-2)*i)//(len(PS_)-1)
    KT0 = 52
    rd_at = {RPi(i): (Pp, f"R{i % 3}") for i, Pp in enumerate(PS_)}
    assert len(rd_at) == len(PS_) and all(RPi(i) <= 2*p_-1 and RPi(i) >= 2*(p_-16)+2 for i, p_ in enumerate(PS_))
    dma_at = {RPi(i-3)+1: (PS_[i], f"R{i % 3}") for i in range(3, len(PS_))}
    def areg(k, t): return f"a[{8*(k%32)+4*t}:{8*(k%32)+4*t+3}]"
    def mf2(k, j, t, breg):
        r = ACC + (j*2+t)*4
        return f"{MF} v[{r}:{r+3}], v[{breg}:{breg+3}], {areg(k, t)}, {f'v[{232+4*t}:{235+4*t}]' if k == 0 else f'v[{r}:{r+3}]'}"
    g3prep = f"""
      s_and_b32 s44, s2, 7
      s_lshl_b32 s44, s44, 2
      s_lshr_b32 s45, s2, 3
      s_and_b32 s38, s45, 3
      s_add_u32 s44, s44, s38             ; mb
      s_lshr_b32 s45, s45, 2
      s_mul_i32 s45, s45, 9
      s_lshr_b32 s45, s45, 1              ; n0
      s_mul_i32 s39, s3, {18*36864}
      s_lshl_b32 s38, s45, 10
      s_add_u32 s39, s39, s38
      s_add_u32 s39, s39, {WOUTF}         ; W soffset (registers part)
      s_bitcmp1_b32 s2, 5                 ; odd column block: lower half of tile 0 belongs to the neighbour, else upper half of tile 4
      s_cselect_b32 s46, 0, 16
      s_cselect_b32 s47, 16, 8
      v_and_b32 v250, 8, v3
      v_mov_b32 v11, {BIG}
      v_cmp_eq_u32 vcc, s46, v250
      s_nop 1
      v_cndmask_b32 v3, v1, v11, vcc
      v_cmp_eq_u32 vcc, s47, v250
      s_nop 1
      v_cndmask_b32 v250, v251, v11, vcc""".split("\n")
    ib = [i for i, x in enumerate(g3prep) if 's_bitcmp1' in x][0]
    g3prep = g3prep[:ib] + ["\n".join(g3prep[ib:ib+3])] + g3prep[ib+3:]
    KP3 = [0, 1, 4, 5, 9, 10, 13, 14, 2, 3, 6, 7, 11, 12, 15, 16, 8, 17]
    def w_reg(k): return 20*(k % 12)
    def w_loads(k):
        r = w_reg(k)
        return [f"s_add_u32 s36, s39, {KP3[k]*36864}"] + [VM(f"buffer_load_dwordx4 a[{r+4*j}:{r+4*j+3}], {['v3','v1','v1','v1','v250'][j]}, s[8:11], s36 offen offset:{1024*(j%4)}{SC}", ("W", k, j)) for j in range(5)]
    apieces = {}
    for k0, (Pp, pl_) in dma_at.items():
        b, off = PLACE[pl_]
        ks_ = [k0, k0, k0+1, k0+1] if (k0+1) not in dma_at else [k0]*4
        for i in range(4):
            gr = [f"s_add_u32 m0, {b}, {off}", VM(f"buffer_load_dwordx4 v{AV[i]}, s[16:19], s21 offen offset:{1024*i} lds", ("A2", Pp, i))]
            if i > 0 and ks_[i] == ks_[i-1]: gr = gr[1:]
            if i == 0: gr = [f"s_add_u32 s21, s29, {128*Pp}"] + gr
            apieces.setdefault(ks_[i], []).append(gr)
    CWK = [int(x) for x in os.environ.get('CWK', '1,9,17,25,33,41,49').split(',')]
    def t15_group(k):
        p0, cnt = P0[k % 4]
        o = [f"s_add_u32 m0, s7, {ALDS + p0*1024}"]
        for i in range(cnt): o.append(VM(f"buffer_load_dwordx4 v1, s[12:15], s21 offen offset:{1024*i} sc1 lds", ("B2", 15, p0+i)))
        o.append(f"s_add_u32 s21, s21, {cnt*1024}")
        return o
    tailprep = f"""
      v_add_u32 v4, {ALDS}, v1
      v_lshlrev_b32 v8, 3, v2
      s_lshr_b32 s22, s5, 1
      s_mul_i32 s22, s22, 9216
      s_mul_i32 s23, s6, {2*73728}
      s_add_u32 s22, s22, s23
      s_add_u32 s22, s22, {PF}
      s_and_b32 s23, s5, 1
      s_lshl_b32 s28, s23, 12
      s_add_u32 s28, s28, s22
      s_add_u32 s29, s28, 73728
      s_lshl_b32 s23, s23, 9
      s_add_u32 s30, s22, s23
      s_add_u32 s30, s30, 8192
      s_add_u32 s31, s30, 73728
      s_add_u32 s24, s24, {FLP-FLB}""".split("\n")
    TK = [52, 53, 54, 55, 60, 61, 62, 63, 56, 57, 58, 59]
    def ureg(u): return B2V + 24*(u % 3)
    def u_reads(u):
        if u >= 18: return []
        j, hf = divmod(u, 2)
        o = []
        for i, k in enumerate(TK[6*hf:6*hf+6]):
            ad = "v4" if k >= 60 else f"v{SL + (k//4) % 3}"
            o.append(f"ds_read_b128 v[{ureg(u)+4*i}:{ureg(u)+4*i+3}], {ad} offset:{(k%4)*9216 + j*1024}")
        return o
    WE = [int(x) for x in os.environ.get('WE', '43,45').split(',')]
    wq = [w_loads(k) for k in range(18)]
    lg = []
    for j in range(JF, 9): lg += late_gelu(j, 1) + late_gelu(j, 0)
    LG0, LG1 = 2, int(os.environ.get('LG1', '52'))
    for k in range(KT0):
        need = []
        if k in rd_at: need += a2tags(rd_at[k][0])
        if k % 4 == 3: need += b2tags((k+1)//4)
        if k == KT0-1: need += b2tags(15)
        if k == 51: need += [("G", 3)]
        seq.append(WAIT(need, lgkm=True))
        if k % 4 == 3: seq.append("s_barrier")
        mm = [mf2(k, j, t, B2V + (k%2)*36 + 4*j) for j in range(9) for t in range(2)]
        ds = b2_reads(k+1) if k+1 < KT0 else u_reads(0)
        if k in rd_at: ds += a2_rd(*rd_at[k])
        f = {0: b2_group(-3) + b2_group(-2), 1: b2_group(-1) + b2_group(0), 2: b2_group(1) + b2_group(2)}.get(k, None)
        if f is None: f = b2_group(k)
        f = f + [y for x in apieces.get(k, []) for y in x]
        if 47 <= k < 49: f = t15_group(2*k-47) + t15_group(2*k-46) + f
        if k in CWK: f += [VM("buffer_load_dword v15, v255, s[32:35], 0 offen", ("CW", k))]
        oth = []
        if k == 46: oth = [f"s_add_u32 s21, s7, {15*36864}"]
        if k == 48: oth = tailprep
        if k == 1: oth = ["s_lshr_b32 s42, s2, 5", "s_mul_i32 s42, s42, 9", "s_lshr_b32 s42, s42, 1", "s_lshl_b32 s42, s42, 7",
                           f"s_add_u32 s42, s42, {MODP + 5*576*8}", f"s_add_u32 s43, s42, {3456*8}", "v_lshlrev_b32 v9, 3, v2"]
        if k == 44: f += [VM(f"buffer_load_dword v{240+2*i}, v9, s[8:11], s{42 + i%2} offen offset:{512*(i//2)}{SC}", ("G", i)) for i in range(4)]
        if k == 51: oth = ["v_add_f32 v6, v240, v242", "v_add_f32 v7, v244, v246", "v_cvt_pk_bf16_f32 v6, v6, v7", "v_and_b32 v7, 0xffff0000, v6", "v_lshlrev_b32 v6, 16, v6"]
        if k == 0: oth = g3prep
        if k in WE: f += wq.pop(0)
        if LG0 <= k < LG1 and 'nolg' not in X: oth = oth + lg[len(lg)*(k-LG0)//(LG1-LG0):len(lg)*(k+1-LG0)//(LG1-LG0)]
        gs_, rest = vgroups(f)
        if 'nov' in X and 3 < k < 43:
            for gr in gs_: gr[-1].text = 's_nop 0'
        seq += sched(mm, ds, gs_, oth) + rest
    seq.append(a.stamp(0))
    def epi(j):
        o = []
        for t in range(2):
            x = ACC + (j*2+t)*4; z = ACC1 + 8*j + 4*t
            od = ACC + ((j & ~1)*2+t)*4
            for r in range(4): o.append(f"v_mul_f32 v{x+r}, v{x+r}, v{z+r}")
            for h in range(2): o.append(f"v_cvt_pk_bf16_f32 v{od + (j%2)*2 + h}, v{x+2*h}, v{x+2*h+1}")
            if j % 2 == 1: o.append(VM(f"buffer_store_dwordx4 v[{od}:{od+3}], v1, s[8:11], s{28+t} offen offset:{1024*(j//2)} sc1", ("PS", j, t)))
            if j == 8: o.append(VM(f"buffer_store_dwordx2 v[{od}:{od+1}], v8, s[8:11], s{30+t} offen sc1", ("PS", 9, t)))
        return o
    nleft = 8 - (18 - len(wq))
    tailw = set((i*8)//nleft for i in range(nleft)) if nleft else set()
    PV, LW = 240, 244
    DEP = 6; AC3 = 16; PR = 96; XR, GB = 192, 204
    g3a = f"""s_mul_i32 s20, s44, {4*73728}
      s_mul_i32 s6, s3, {18*1024}
      s_add_u32 s20, s20, s6
      s_add_u32 s20, s20, {PF}
      s_lshl_b32 s23, s44, 12
      s_lshl_b32 s6, s3, 9
      s_add_u32 s23, s23, s6
      s_add_u32 s23, s23, {FLP}
      v_and_b32 v10, 3, v2
      v_bfe_u32 v11, v2, 2, 1
      v_lshl_add_u32 v10, v11, 4, v10
      v_lshlrev_b32 v10, 7, v10
      s_lshl_b32 s22, s44, 2
      s_add_u32 s22, s22, s3
      s_mul_i32 s25, s22, 18432
      s_lshl_b32 s26, s45, 9
      s_add_u32 s25, s25, s26
      s_add_u32 s25, s25, {X1F}
      v_lshlrev_b32 v249, 4, v12""".split("\n")
    for u in range(4):
        g3a += [f"s_add_u32 s6, s3, {u}", "s_and_b32 s6, s6, 3", "s_mul_i32 s7, s6, 73728", f"v_add_u32 v{PV+u}, s7, v1"]
        if u > 0: g3a += ["s_mul_i32 s7, s6, 15360", f"s_add_u32 s7, s7, {(u-1)*5120}", f"v_add_u32 v{LW+u}, s7, v1"]
    fst = "buffer_store_dword v5, v13, s[8:11], s24 offen sc1"
    pp = "buffer_load_dword v11, v10, s[8:11], s23 offen sc1"
    UF1, UP1, KC2 = [int(x) for x in os.environ.get('G3S', '11,17,5').split(',')]
    def pcheck(name, lvl, tag, pre_slow=[]):
        cmp_ = f"v_cmp_gt_u32 vcc, {lvl}, v11"
        return [WAIT([tag]), cmp_, "s_mov_b32 s27, 0", "s_nop 3", f"s_cbranch_vccz {name}_GO"] + pre_slow + [f"{name}_POLL:", pp, "s_waitcnt vmcnt(0)", cmp_,
                "s_add_u32 s27, s27, 1", "s_cmp_ge_u32 s27, 0x80000", f"s_cbranch_scc1 {name}_GO", "s_nop 2", f"s_cbranch_vccz {name}_GO", f"s_sleep 1", f"s_branch {name}_POLL", f"{name}_GO:"]
    seq += [WAIT(b2tags(14), lgkm=True), "s_barrier"] + u_reads(1)
    for u in range(18):
        j, hf = divmod(u, 2)
        m_ = [mf2(k, j, t, ureg(u) + 4*i) for i, k in enumerate(TK[6*hf:6*hf+6]) for t in range(2)]
        if u > 0: seq.append(f"s_waitcnt lgkmcnt({6 if u < 17 else 0})")
        if u == UF1: seq += [WAIT([("PS", 3, 1)]), VM(fst, "FP1")]
        if u == UP1: seq += [VM(pp, "PP1"), "v_mov_b32 v5, 2"]
        e = epi(j-1) if j >= 1 else []
        if hf == 0:
            seq += interleave(m_[:6], u_reads(u+2) if u < 16 else ["s_nop 1"]) + interleave(m_[6:], e)
        else:
            gs_, rest = vgroups(wq.pop(0) if j in tailw else [])
            seq += sched(m_, u_reads(u+2), gs_, g3a[len(g3a)*j//6:len(g3a)*(j+1)//6] if j < 6 else [], vm_start=1) + rest
    seq += ["s_nop 7"] + epi(8) + [a.stamp(1)]
    def p_loads(k):
        if k >= 18: return []
        r = PR + (k % DEP)*16
        o = [f"s_add_u32 s21, s20, {KP3[k]*1024}"]
        if k < 16: o += [VM(f"buffer_load_dwordx4 v[{r+4*u}:{r+4*u+3}], v{PV+u}, s[8:11], s21 offen sc1", ("P", k, u)) for u in range(4)]
        else:
            for u in range(4):
                o += [f"v_sub_u32 v8, v{PV+u}, v9", VM(f"buffer_load_dwordx2 v[{r+4*u}:{r+4*u+1}], v8, s[8:11], s21 offen sc1", ("Ph", k, u)),
                      VM(f"buffer_load_dwordx2 v[{r+4*u+2}:{r+4*u+3}], v8, s[8:11], s21 offen offset:512 sc1", ("P", k, u))]
        return o
    NW0 = int(os.environ.get('NW0', '2'))
    for _ in range(NW0): seq += wq.pop(0)
    seq += pcheck("GM_P1", 1, "PP1", ["s_waitcnt vmcnt(0)", fst]) + [a.stamp(2)]
    F2P = int(os.environ.get('F2P', '2'))
    for k in range(6):
        if k == F2P: seq += [WAIT([("PS", 9, 1)]), VM(fst, "FP2"), a.stamp(3)]
        if k < 5: seq += p_loads(k)
    p_ = a.ptr("out")
    seq += [f"s_mov_b32 s12, s{p_}", f"s_and_b32 s13, s{p_+1}, 0xffff", f"s_mov_b32 s14, {SZ['out']}", "s_mov_b32 s15, 0x20000"]
    for j in range(5):
        for r in range(4): seq.append(f"ds_bpermute_b32 v{GB+4*j+r}, v249, v{6 if j < 4 else 7} offset:{64*(j%4) + 4*r}")
        if j == 2: seq.append("s_waitcnt lgkmcnt(0)")
    xl = [VM(f"buffer_load_dwordx2 v[{XR+2*j}:{XR+1+2*j}], v9, s[8:11], s25 offen offset:{512*j}{SC}", ("X", j)) for j in range(5)]
    pnext = 5; wnext = 8 + NW0
    for k in range(18):
        if k == KC2: seq += pcheck("GM_P2", 2, "PP2")
        seq.append(WAIT([("P", k, 3), ("W", k, 4)]))
        if k == 0: seq.append(a.stamp(4))
        if k == 10: seq.append("s_barrier")
        r = PR + (k % DEP)*16
        mm = []
        for u in ((1, 2, 3, 0) if k == 17 else range(4)):
            for j in range(5):
                c = AC3 + (u*5+j)*4
                mm.append(f"{MF} v[{c}:{c+3}], a[{w_reg(k)+4*j}:{w_reg(k)+4*j+3}], v[{r+4*u}:{r+4*u+3}], {'0' if k == 0 else f'v[{c}:{c+3}]'}")
        f = []; budget = 2
        if k == KC2-2: f += [VM(pp, "PP2")]
        while budget and pnext < 18 and pnext <= k+DEP-1 and (pnext < 8 or k >= KC2): f += p_loads(pnext); pnext += 1; budget -= 1
        while budget and wnext < 18 and (wnext < 12 or wnext-12 < k): f += wq.pop(0); wnext += 1; budget -= 1
        if k == 13: f += xl
        gs_, rest = vgroups(f)
        if k < 17: seq += sched(mm, [], gs_, vm_start=1) + rest
        else:
            wr = [f"ds_write_b128 v{LW+u}, v[{AC3+(u*5+j)*4}:{AC3+(u*5+j)*4+3}] offset:{1024*j}" for u in range(1, 4) for j in range(5)]
            seq += mm[:9] + interleave(mm[9:], wr[:11]) + [a.stamp(5), "s_mul_i32 s7, s3, 15360", "v_add_u32 v11, s7, v1"] + wr[11:]
    seq += ["v_mul_u32_u24 v4, 1152, v248",
            "v_lshl_add_u32 v4, v12, 3, v4", "s_lshr_b32 s25, s22, 1", f"s_mul_i32 s25, s25, {32*1152}", "s_and_b32 s26, s22, 1", f"s_mul_i32 s26, s26, {4*1152}",
            "s_add_u32 s25, s25, s26", "s_lshl_b32 s26, s45, 5", "s_add_u32 s25, s25, s26",
            "v_lshlrev_b32 v8, 2, v12", "v_and_b32 v8, 8, v8", f"v_mov_b32 v9, {BIG}", "v_cmp_eq_u32 vcc, s46, v8", "s_nop 1", "v_cndmask_b32 v5, v4, v9, vcc",
            "v_cmp_eq_u32 vcc, s47, v8", "s_nop 1", "v_cndmask_b32 v6, v4, v9, vcc",
            "s_waitcnt lgkmcnt(0)", "s_barrier"]
    for i in range(15):
        c = AC3 + 20 + 4*i
        seq.append(f"ds_read_b128 v[{c}:{c+3}], v11 offset:{1024*i}")
        if i == 13: seq.append("s_waitcnt lgkmcnt(8)")
    seq += [WAIT([("X", 4)], lgkm=True)]
    for j in range(5):
        for h in range(2):
            x = AC3 + 4*j + 2*h
            seq += [f"v_pk_add_f32 {P(x)}, {P(x)}, {P(x+20)}", f"v_pk_add_f32 {P(x+40)}, {P(x+40)}, {P(x+60)}",
                    f"v_lshlrev_b32 v{x+20}, 16, v{XR+2*j+h}", f"v_and_b32 v{x+21}, 0xffff0000, v{XR+2*j+h}",
                    f"v_pk_add_f32 {P(x)}, {P(x)}, {P(x+40)}",
                    f"v_pk_fma_f32 {P(x)}, {P(x)}, {P(GB+4*j+2*h)}, {P(x+20)}",
                    f"v_cvt_pk_bf16_f32 v{XR+2*j+h}, v{x}, v{x+1}"]
        seq.append(VM(f"buffer_store_dwordx2 v[{XR+2*j}:{XR+1+2*j}], {['v5','v4','v4','v4','v6'][j]}, s[12:15], s25 offen offset:{32*j}", ("O", j)))
    resolve(seq)
    for it in seq:
        if it == "STAMPFLUSH": a.stamp_flush2(2, 8)
        else: emit(a, [it])
    a(a.stamp(6))
    a.stamp_end(3, 8)
    a("GM_END:\ns_endpgm\nGM_CODE_END:")
    a.stamp = st0
    if merged:
        from gen_s import KNAME
        a.desc(KNAME, 512, 256, 100)
    else: a.desc("gm_kernel", 512, 256)
```

```python
from gen_common import *
from gen_g import VM, WAIT, resolve, emit
from gen_f import poll, get_nonce, check_nonce, CH_LDS, KCS, URO, URS, YO, YS, QO, BIG, FU, FH2
import os
X = os.environ.get('X', '').split(',')
FD = FLF + 768*128
STL = QO + 18432
L0, NT = "v250", "v251"
KNAME = "adaLN_cond__ssm_conv_h3__mixer_gmlp__prompt_kernel"

CWS = '''
      s_getpc_b64 s[12:13]
    F_PC{n}:
      s_sub_u32 s12, s12, F_PC{n}-{K}
      s_subb_u32 s13, s13, 0
      s_and_b32 s13, s13, 0xffff
      s_mov_b32 s14, {end}-{K}
      s_mov_b32 s15, 0x20000
'''
def red32x2(a, r0, r1, t0, t1):
    for op in ("quad_perm:[1,0,3,2]", "quad_perm:[2,3,0,1]", "row_half_mirror", "row_mirror"):
        a(f"s_nop 0\nv_add_f32_dpp {r0}, {r0}, {r0} {op} row_mask:0xf bank_mask:0xf\nv_add_f32_dpp {r1}, {r1}, {r1} {op} row_mask:0xf bank_mask:0xf")
    a(f"""
      v_mov_b32 {t0}, {r0}
      v_mov_b32 {t1}, {r1}
      s_nop 1
      v_permlane16_swap_b32 {r0}, {t0}
      v_permlane16_swap_b32 {r1}, {t1}
      s_nop 1
      v_add_f32 {r0}, {r0}, {t0}
      v_add_f32 {r1}, {r1}, {t1}
    """)

def gen_front(a):
    a.begin(KNAME)
    a(f"s_cmp_ge_u32 s2, 256\ns_cbranch_scc1 GM_END")
    a(a.stamp(0))
    a.load_args()
    a("""
      s_memrealtime s[40:41]
      s_mov_b32 s96, 64
      v_lshrrev_b32 v1, 6, v0
      v_and_b32 v2, 63, v0                ; lane
      v_readfirstlane_b32 s3, v1          ; wave
      v_lshlrev_b32 v3, 4, v2             ; lane*16
      v_and_b32 v4, 15, v2                ; l&15
      v_lshrrev_b32 v5, 4, v2             ; g
      s_and_b32 s4, s2, 7
      s_mul_i32 s4, s4, 18
      s_lshr_b32 s5, s2, 3
      s_add_u32 s4, s4, s5
      s_waitcnt lgkmcnt(0)
    """)
    a.srd(8, "ws"); a.srd(28, "dbg", 256)
    a(f"v_cmp_eq_u32 vcc, 0, v2\nv_mov_b32 {L0}, {BIG}\nv_mov_b32 {NT}, 0\nv_cndmask_b32 {L0}, {L0}, 0, vcc")
    a(f"""
      s_or_b32 s5, s2, s3
      s_cmp_lg_u32 s5, 0
      s_cbranch_scc1 F_NOTAG
      s_mul_i32 s41, s41, 0x9e3779b1
      s_xor_b32 s40, s40, s41
      s_or_b32 s40, s40, 1
      v_mov_b32 v8, s40
      buffer_store_dword v8, {L0}, s[28:31], 0 offen sc1
    F_NOTAG:
      s_cmp_ge_u32 s2, 144
      s_cbranch_scc1 F_OTHER
    """)
    def zero_gm():
        a(f"""
          v_mov_b32 v248, 0
          v_lshlrev_b32 v249, 2, v0
          s_lshl_b32 s46, s2, 10
          s_add_u32 s46, s46, {ST2}
          buffer_store_dword v248, v249, s[8:11], s46 offen sc1
          s_lshl_b32 s46, s2, 2
          s_add_u32 s46, s46, s3
          s_lshl_b32 s46, s46, 7
          s_add_u32 s46, s46, {FLB}
          buffer_store_dword v248, {L0}, s[8:11], s46 offen sc1
          s_add_u32 s46, s46, {FLP-FLB}
          buffer_store_dword v248, {L0}, s[8:11], s46 offen sc1
        """)
    a(f"""
      s_and_b32 s5, s4, 15                ; rb
      s_lshr_b32 s6, s4, 4                ; cb
      v_lshrrev_b32 v6, 5, v0
      v_and_b32 v7, 31, v0                ; cp
      s_lshl_b32 s7, s5, 7
      v_lshl_add_u32 v8, v6, 4, s7        ; s0
      s_lshl_b32 s7, s6, 7
      v_lshl_add_u32 v9, v7, 2, s7
      v_mul_u32_u24 v11, 1152, v8
      v_add_u32 v11, v11, v9              ; row s0
      v_subrev_u32 v10, 4608, v11         ; row s0-4
      v_add_u32 v12, 4608, v11
      v_add_u32 v13, 9216, v11
      v_add_u32 v14, 13824, v11
      v_lshlrev_b32 v15, 2, v9
    """)
    a.srd(12, "k"); a.srd(16, "v"); a.srd(20, "shk"); a.srd(24, "q"); a.srd(32, "ssmk")
    KR, VR, SQ, SH, KU, VU, RES, PK = 20, 40, 224, 56, 64, 104, 136, 168
    seq = [VM("buffer_load_dwordx4 v[16:19], v15, s[20:23], 0 offen", "sh")]
    for i in range(1, 20):
        seq.append(VM(f"buffer_load_dword v{KR+i}, v{10+i//4}, s[12:15], 0 offen offset:{1152*(i%4)}", ("k", i)))
        if i >= 4: seq.append(VM(f"buffer_load_dword v{VR+i-4}, v{10+i//4}, s[16:19], 0 offen offset:{1152*(i%4)}", ("v", i)))
    seq.append(VM(f"buffer_load_dword {NT}, {NT}, s[28:31], 0 offen sc1", "nt"))
    if 'cwc' in X:
        seq += CWS.format(n=1, K=KNAME, end="F_OTHER").split("\n") + ["s_lshr_b32 s7, s2, 3", "s_and_b32 s7, s7, 15", "s_lshl_b32 s7, s7, 7", "v_lshlrev_b32 v8, 11, v0",
                VM("buffer_load_dword v246, v8, s[12:15], s7 offen", "cw")]
    seq += f"""
      s_mul_i32 s38, s3, {CH_LDS}
      s_lshl_b32 s7, s4, 2
      s_add_u32 s7, s7, s3
      s_lshl_b32 s44, s7, 12
      s_add_u32 s45, s44, {UR}
      v_lshlrev_b32 v13, 1, v6
      v_sub_u32 v13, 15, v13
      v_and_b32 v11, 7, v7
      v_xor_b32 v13, v13, v11
      v_lshlrev_b32 v13, 4, v13
      v_lshl_add_u32 v13, v7, 9, v13
      v_add_u32 v13, {YO}, v13
      v_xor_b32 v10, 16, v13
      s_lshl_b32 s46, s4, 4
      s_lshl_b32 s47, s3, 2
      s_add_u32 s46, s46, s47
      v_lshrrev_b32 v14, 5, v2
      v_add_u32 v15, s46, v14
      v_mul_u32_u24 v15, 1152, v15
      v_lshl_add_u32 v15, v7, 2, v15""".split("\n")
    def kcopy(t):
        return [f"s_add_u32 m0, s38, {t*KCS + 60 - 4*t}", "s_nop 0"] + [VM(f"buffer_load_dwordx4 v3, s[32:35], s44 offen offset:{1024*i} lds", ("K", t, i)) for i in range(4)]
    def half(h):
        o = []
        ks = range(1, 12) if h == 0 else range(12, 20)
        for i in ks: o += [f"v_lshlrev_b32 v{KU+2*i}, 16, v{KR+i}", f"v_and_b32 v{KU+1+2*i}, 0xffff0000, v{KR+i}"]
        for i in range(8*h, 8*h+8): o += [f"v_lshlrev_b32 v{VU+2*i}, 16, v{VR+i}", f"v_and_b32 v{VU+1+2*i}, 0xffff0000, v{VR+i}"]
        for i in range(8*h, 8*h+8):
            d = f"v[{RES+2*i}:{RES+1+2*i}]"
            kk = lambda j: f"v[{KU+2*(i+4-j)}:{KU+1+2*(i+4-j)}]"
            o.append(f"v_pk_mul_f32 {d}, {kk(3)}, v[{SH+6}:{SH+7}]")
            for j in (2, 1, 0): o.append(f"v_pk_fma_f32 {d}, {kk(j)}, v[{SH+2*j}:{SH+1+2*j}], {d}")
            o.append(f"v_pk_mul_f32 {d}, {d}, v[{VU+2*i}:{VU+1+2*i}]")
        for ch in range(2):
            p = PK + 8*h + 4*ch
            for dd in range(4): o.append(f"v_cvt_pk_bf16_f32 v{p+dd}, v{RES+2*(8*h+7-2*dd)+ch}, v{RES+2*(8*h+6-2*dd)+ch}")
            o.append(f"ds_write_b128 {'v13' if h == 0 else 'v10'}, v[{p}:{p+3}] offset:{ch*256}")
        return o
    seq.append(WAIT([("v", 11)]))
    for j in range(4):
        op = "v_lshlrev_b32 {d}, 16, {s}" if j % 2 == 0 else "v_and_b32 {d}, 0xffff0000, {s}"
        seq += [op.format(d=f"v{SH+2*j}", s=f"v{16+j//2}"), op.format(d=f"v{SH+1+2*j}", s=f"v{18+j//2}")]
    seq += half(0)
    seq += [WAIT([("v", 19)]), a.stamp(1)]
    sq = [VM(f"buffer_load_dword v{SQ+9*r+i}, v15, s[24:27], 0 offen offset:{128*i + 2304*r}", ("sq", r, i)) for r in range(2) for i in range(9)]
    seq += interleave(half(1), sq + kcopy(0))
    seq += f"""
      v_lshrrev_b32 v11, 4, v0
      v_xor_b32 v12, v4, v6
      v_lshlrev_b32 v12, 4, v12
      v_lshl_add_u32 v12, v11, 8, v12
      v_add_u32 v12, {YO}, v12
      v_lshlrev_b32 v11, 12, v11
      v_lshl_add_u32 v11, v4, 4, v11
      s_lshl_b32 s46, s6, 18
      s_sub_u32 s47, 15, s5
      s_lshl_b32 s47, s47, 8
      s_add_u32 s46, s46, s47
      s_add_u32 s46, s46, {UR}
      s_waitcnt lgkmcnt(0)
      s_barrier""".split("\n")
    for i in range(4): seq.append(f"ds_read_b128 v[{60+4*i}:{63+4*i}], v12 offset:{4096*i}")
    for i in range(4):
        seq += [f"s_waitcnt lgkmcnt({3-i})", VM(f"buffer_store_dwordx4 v[{60+4*i}:{63+4*i}], v11, s[8:11], s46 offen sc1", ("ur", i))]
        if i < 3: seq.append(f"s_add_u32 s46, s46, {16*4096}")
    for t in range(1, 4): seq += kcopy(t)
    seq += f"""
      v_lshrrev_b32 v8, 1, v7
      v_and_b32 v9, 7, v8
      s_lshl_b32 s7, s3, 1
      v_xor_b32 v9, s7, v9
      v_lshlrev_b32 v8, 7, v8
      v_lshl_add_u32 v8, v14, 3, v8
      v_and_b32 v10, 1, v7
      v_lshl_add_u32 v8, v10, 2, v8
      v_add_u32 v8, {QO}, v8
      v_lshl_add_u32 v10, v9, 4, v8
      v_xor_b32 v9, 1, v9
      v_lshl_add_u32 v11, v9, 4, v8""".split("\n")
    seq.append(WAIT([("sq", 1, 8)]))
    U = [80, 100]
    for r in range(2):
        for i in range(9): seq.append(f"ds_write_b32 v{10+r}, v{SQ+9*r+i} offset:{2048*i}")
        for i in range(9): seq += [f"v_lshlrev_b32 v{U[r]+2*i}, 16, v{SQ+9*r+i}", f"v_and_b32 v{U[r]+1+2*i}, 0xffff0000, v{SQ+9*r+i}"]
        seq.append("s_waitcnt lgkmcnt(0)")
    M_ = [16, 18]; R_ = [20, 22]
    for r in range(2):
        seq.append(f"v_pk_add_f32 v[{M_[r]}:{M_[r]+1}], v[{U[r]}:{U[r]+1}], v[{U[r]+2}:{U[r]+3}]")
        for i in range(2, 9): seq.append(f"v_pk_add_f32 v[{M_[r]}:{M_[r]+1}], v[{M_[r]}:{M_[r]+1}], v[{U[r]+2*i}:{U[r]+1+2*i}]")
    seq += ["v_add_f32 v16, v16, v17", "v_add_f32 v18, v18, v19", WAIT([("ur", 3)])]
    resolve(seq); emit(a, seq)
    check_nonce(a, "F_C", NT)
    a(f"""
      {a.stamp(2)}
      v_mov_b32 v24, s42
      s_lshr_b32 s7, s44, 5
      s_add_u32 s7, s7, {FU}
      buffer_store_dword v24, {L0}, s[8:11], s7 offen sc1
    """)
    red32x2(a, "v16", "v18", "v17", "v19")
    for r in range(2):
        a(f"v_mul_f32 v{M_[r]}, {float_hex(1.0/576)}, v{M_[r]}")
        for i in range(9): a(f"v_pk_add_f32 v[{U[r]+2*i}:{U[r]+1+2*i}], v[{U[r]+2*i}:{U[r]+1+2*i}], v[{M_[r]}:{M_[r]+1}] op_sel_hi:[1,0] neg_lo:[0,1] neg_hi:[0,1]")
        a(f"v_pk_mul_f32 v[{R_[r]}:{R_[r]+1}], v[{U[r]}:{U[r]+1}], v[{U[r]}:{U[r]+1}]")
        for i in range(1, 9): a(f"v_pk_fma_f32 v[{R_[r]}:{R_[r]+1}], v[{U[r]+2*i}:{U[r]+1+2*i}], v[{U[r]+2*i}:{U[r]+1+2*i}], v[{R_[r]}:{R_[r]+1}]")
    a("v_add_f32 v20, v20, v21\nv_add_f32 v22, v22, v23\ns_nop 0")
    red32x2(a, "v20", "v22", "v21", "v23")
    a(f"""
      v_mov_b32 v21, {float_hex(1e-5)}
      v_mov_b32 v23, {float_hex(1e-5)}
      v_fmac_f32 v21, {float_hex(1.0/576)}, v20
      v_fmac_f32 v23, {float_hex(1.0/576)}, v22
      v_rsq_f32 v20, v21
      v_rsq_f32 v22, v23
      s_lshl_b32 s7, s3, 5
      s_add_u32 s7, s7, {STL}
      v_lshl_add_u32 v8, v14, 3, s7
      v_mul_f32 v21, -v16, v20
      v_mul_f32 v23, -v18, v22
      ds_write_b64 v8, v[20:21]
      ds_write_b64 v8, v[22:23] offset:16
      v_subrev_u32 v10, 64, v0
      v_lshrrev_b32 v10, 3, v10
      v_and_b32 v11, 7, v2
      v_xor_b32 v12, v11, v10
      v_and_b32 v12, 7, v12
      v_lshlrev_b32 v12, 4, v12
      v_lshl_add_u32 v12, v10, 7, v12
      v_add_u32 v12, {QO}, v12
      v_lshlrev_b32 v10, 14, v10
      v_lshl_add_u32 v10, v11, 4, v10
      s_lshl_b32 s47, s4, 7
      s_add_u32 s46, s47, {ST1}
      s_add_u32 s47, s47, {QP}
      s_waitcnt lgkmcnt(0)
      s_barrier
      s_cmp_ge_u32 s4, 128
      s_cbranch_scc1 F_Q_SKIP
      s_cmp_eq_u32 s3, 0
      s_cbranch_scc1 F_Q_SKIP
    """)
    for i in range(6): a(f"ds_read_b128 v[{60+4*i}:{63+4*i}], v12 offset:{3072*i}")
    for i in range(6):
        a(f"s_waitcnt lgkmcnt({5-i})")
        a(f"buffer_store_dwordx4 v[{60+4*i}:{63+4*i}], v10, s[8:11], s47 offen sc1")
        if i < 5: a(f"s_add_u32 s47, s47, {24*16384}")
    a(f"""
      s_cmp_lg_u32 s3, 2
      s_cbranch_scc1 F_Q_SKIP
      v_lshlrev_b32 v11, 4, v11
      v_add_u32 v12, {STL}, v11
      ds_read_b128 v[84:87], v12
      s_mov_b64 exec, 0xff
      s_waitcnt lgkmcnt(0)
      buffer_store_dwordx4 v[84:87], v11, s[8:11], s46 offen sc1
      s_mov_b64 exec, -1
    F_Q_SKIP:
    """)
    p = a.ptr("ssmD")
    Q, STT, MD, HP, XA, YA = 176, 192, 208, 220, 222, 242
    a(f"""
      s_lshl_b32 s7, s4, 3
      s_load_dwordx2 s[20:21], s[{p}:{p+1}], s7
      s_lshl_b32 s7, s6, 6
      s_and_b32 s22, s4, 3
      s_add_u32 s7, s7, s22
      v_lshl_add_u32 v14, v4, 2, s7
      v_lshlrev_b32 v14, 7, v14
      v_add_u32 v14, {FU}, v14
      v_mov_b32 v8, 0
      v_mov_b32 v9, 0
      v_mov_b32 v10, 0
      v_mov_b32 v11, 0
      v_mul_u32_u24 v12, {KCS}, v5
      v_lshl_add_u32 v12, v4, 2, v12
      v_add_u32 v12, s38, v12
      v_add_u32 v13, v4, v5
      v_lshrrev_b32 v16, 5, v2
      v_mul_u32_u24 v16, {URS}, v16
      v_lshl_add_u32 v16, v7, 4, v16
      v_add_u32 v16, s38, v16
      v_cmp_gt_u32 vcc, 15, v13
      s_and_saveexec_b64 s[46:47], vcc
      ds_write_b32 v12, v8
      s_mov_b64 exec, s[46:47]
      v_cmp_gt_u32 vcc, 28, v7
      s_and_saveexec_b64 s[46:47], vcc
      ds_write_b128 v16, v[8:11] offset:{URO+4096}
      s_mov_b64 exec, s[46:47]
      v_and_b32 v12, 3, v4
      v_mul_u32_u24 v12, {KCS}, v12
      v_lshrrev_b32 v13, 2, v4
      v_add_u32 v13, v13, v5
      v_lshl_add_u32 v12, v13, 4, v12
      v_add_u32 v12, s38, v12
      v_lshrrev_b32 v13, 3, v4
      v_mul_u32_u24 v13, {URS}, v13
      v_lshl_add_u32 v13, v5, 4, v13
      v_and_b32 v16, 7, v4
      v_lshlrev_b32 v16, 6, v16
      v_sub_u32 v13, v13, v16
      s_add_u32 s7, s38, {URO + 448}
      v_add_u32 v13, s7, v13
      v_lshrrev_b32 v15, 3, v2
      v_lshlrev_b32 v15, 5, v15
      v_and_b32 v16, 7, v2
      s_lshl_b32 s7, s3, 3
      v_add3_u32 v15, v15, v16, s7
      v_and_b32 v16, 3, v2
      v_lshlrev_b32 v15, 7, v15
      v_add_u32 v15, {FH2}, v15
      v_bfe_u32 v17, v2, 3, 2
      v_min_u32 v17, 2, v17
      v_mul_u32_u24 v17, 576, v17
      v_bfe_u32 v18, v2, 2, 1
      v_mul_u32_u24 v18, 3456, v18
      s_lshl_b32 s7, s4, 2
      v_add3_u32 v16, v16, v17, v18
      v_add_u32 v16, s7, v16
      v_lshlrev_b32 v16, 3, v16
      v_add_u32 v16, {MODP}, v16
      v_cmp_gt_u32 vcc, 32, v2
      v_lshlrev_b32 v{HP+1}, 4, v0
      v_lshrrev_b32 v17, 4, v0
      v_cndmask_b32 v{HP}, v16, v15, vcc
      v_mul_u32_u24 v{YA}, 144, v17
      v_bfe_u32 v15, v0, 2, 2             ; (s>>3)&3
      v_and_b32 v16, 3, v0                ; (s>>1)&3
      v_lshl_add_u32 v16, v15, 3, v16
      v_lshl_add_u32 v{YA}, v16, 2, v{YA}
      v_add_u32 v{YA}, {YO}, v{YA}
      v_mul_u32_u24 v{XA}, 36864, v17
      v_bfe_u32 v16, v0, 1, 1             ; tau = (s>>2)&1
      v_mul_u32_u24 v16, 18432, v16
      v_add_u32 v{XA}, v{XA}, v16
      v_lshl_add_u32 v{XA}, v15, 5, v{XA}
      v_and_b32 v15, 1, v0
      v_lshl_add_u32 v{XA}, v15, 4, v{XA}
      v_add_u32 v{YA+1}, {YS}, v{YA}
      v_add_u32 v{YA+2}, {2*YS}, v{YA}
      v_add_u32 v{YA+3}, {3*YS}, v{YA}
      v_and_b32 v6, 7, v4
      v_mul_u32_u24 v6, 144, v6
      v_lshl_add_u32 v6, v5, 5, v6
      v_lshrrev_b32 v15, 3, v4
      v_lshl_add_u32 v6, v15, 4, v6
      s_mul_i32 s7, s3, {YS}
      s_add_u32 s7, s7, {YO}
      v_add_u32 v6, s7, v6
      s_lshl_b32 s36, s4, 14
      s_add_u32 s36, s36, {QP}
      s_mov_b32 s37, {ST1}
      s_waitcnt lgkmcnt(0)
      s_cmp_ge_u32 s3, 2
      s_cselect_b32 s7, s21, s20
      s_and_b32 s22, s3, 1
      s_lshl_b32 s22, s22, 4
      s_lshr_b32 s7, s7, s22
      s_and_b32 s7, s7, 0xffff
      v_mov_b32 v15, s7
      v_lshl_add_u32 v16, v5, 2, v4
    """)
    for dd in range(4):
        a(f"v_cmp_eq_u32 vcc, {15-dd}, v16\ns_nop 1\nv_cndmask_b32 v{8+dd}, 0, v15, vcc")
    ACC = 16; FR = [48, 112]
    def reads(buf, r, which="AB"):
        out = []
        for i in range(8):
            if "B" in which: out.append(f"ds_read_b128 v[{FR[buf]+32+4*i}:{FR[buf]+35+4*i}], v13 offset:{64*r + 512*(7-i)}")
            if "A" in which: out.append(f"ds_read_b128 v[{FR[buf]+4*i}:{FR[buf]+3+4*i}], v12 offset:{64*r + 512*i}")
        return out
    def mfmas(buf):
        out = []
        for p_ in range(8):
            for q_ in range(8 - p_):
                j = p_ + q_
                out.append(f"v_mfma_f32_16x16x32_bf16 v[{ACC+4*j}:{ACC+4*j+3}], v[{FR[buf]+4*p_}:{FR[buf]+4*p_+3}], v[{FR[buf]+32+4*q_}:{FR[buf]+35+4*q_}], v[{ACC+4*j}:{ACC+4*j+3}]")
        return out
    a("s_cmp_lg_u32 s3, 0\ns_cbranch_scc1 F_U_GO")
    poll(a, "F_U", "v14", "v15", slp=1)
    a(f"""
      s_waitcnt vmcnt(0)
      s_barrier
      {a.stamp(3)}
    """)
    UB = 112
    for i in range(4):
        a(f"buffer_load_dwordx4 v[{UB+8*i}:{UB+8*i+3}], v3, s[8:11], s45 offen offset:{1024*i} sc1")
        a(f"buffer_load_dword v{UB+8*i+4}, v3, s[8:11], s45 offen offset:{1024*i+16} sc1")
    a(f"""
      s_lshl_b32 s7, s4, 7
      s_add_u32 s7, s7, {FH2}
      s_cmp_lg_u32 s3, 1
      s_cselect_b32 s7, 0x40000000, s7
      buffer_store_dword v24, {L0}, s[8:11], s7 offen offset:4 sc1
    """)
    a(f"s_add_u32 s7, s38, {URO}\nv_add_u32 v14, s7, v3\nv_cmp_eq_u32 vcc, 63, v2")
    for x in reads(0, 0, "A"): a(x)
    zero_gm()
    if 'nocwm' not in X:
        a(CWS.format(n=2, K=KNAME, end="GM_CODE_END") + "s_lshr_b32 s7, s2, 3\ns_lshl_b32 s7, s7, 7\nv_mul_u32_u24 v7, 2304, v0\nbuffer_load_dword v246, v7, s[12:15], s7 offen")
    for i in range(4):
        b = UB + 8*i
        a(f"s_waitcnt vmcnt({11-2*i})")
        if i == 3: a(f"v_cndmask_b32 v{b+4}, v{b+4}, 0, vcc")
        a(f"ds_write_b128 v14, v[{b}:{b+3}] offset:{URS + 1024*i}")
        for d_ in range(4): a(f"v_alignbit_b32 v{144+4*i+d_}, v{b+d_+1}, v{b+d_}, 16")
        a(f"ds_write_b128 v14, v[{144+4*i}:{147+4*i}] offset:{1024*i}")
        if i == 1: a("s_waitcnt lgkmcnt(0)")
    a("s_waitcnt lgkmcnt(0)")
    a(a.stamp(4))
    for x in reads(0, 0, "B"): a(x)
    a("s_waitcnt lgkmcnt(0)")
    for q_ in range(8):
        a(f"v_mfma_f32_16x16x32_bf16 v[{ACC+4*q_}:{ACC+4*q_+3}], v[8:11], v[{FR[0]+32+4*q_}:{FR[0]+35+4*q_}], 0")
    hp = f"buffer_load_dwordx2 v[14:15], v{HP}, s[8:11], 0 offen sc1"
    a("s_mov_b32 s7, 0\nF_CLOOP:")
    for x in interleave(mfmas(0), reads(1, 1) + [hp], per=1): a(x)
    a("s_waitcnt lgkmcnt(0)")
    for x in interleave(mfmas(1), reads(0, 2), per=1): a(x)
    a(f"""
      v_add_u32 v12, 128, v12
      v_add_u32 v13, 128, v13
      s_add_u32 s7, s7, 1
      s_cmp_lt_u32 s7, 2
      s_waitcnt lgkmcnt(0)
      s_cbranch_scc1 F_CLOOP
      s_mov_b32 s43, 0
    F_HR_CHK:
      s_waitcnt vmcnt(0)
      v_cmp_ne_u32 vcc, s42, v15
      s_add_u32 s43, s43, 1
      s_cmp_ge_u32 s43, 0x80000
      s_cbranch_scc1 F_HR_GO
      s_nop 2
      s_cmp_eq_u32 vcc_lo, 0
      s_cbranch_scc1 F_HR_GO
      s_sleep {SLP}
      {hp}
      s_branch F_HR_CHK
    F_HR_GO:
    """)
    ql = []
    for i in range(4):
        ql += [f"buffer_load_dwordx4 v[{STT+4*i}:{STT+3+4*i}], v{HP+1}, s[8:11], s37 offen sc1",
               f"buffer_load_dwordx4 v[{Q+4*i}:{Q+3+4*i}], v{HP+1}, s[8:11], s36 offen sc1"]
        if i < 3: ql += ["s_add_u32 s37, s37, 4096", "s_add_u32 s36, s36, 4096"]
    def mix(r_, q_):
        o = []
        for i in range(max(len(r_), len(q_))): o += r_[i:i+1] + q_[i:i+1]
        return o
    for x in interleave(mfmas(0), mix(reads(1, 1), ql), per=1): a(x)
    a("s_waitcnt lgkmcnt(0)")
    for x in interleave(mfmas(1), reads(0, 2), per=1): a(x)
    a("s_waitcnt lgkmcnt(0)")
    for x in interleave(mfmas(0), reads(1, 3) + [hp], per=1): a(x)
    a("s_waitcnt lgkmcnt(0)")
    H = 48
    pre = """v_add_f32_dpp v14, v14, v14 row_shl:4 row_mask:0xf bank_mask:0xf
      v_bfe_u32 v15, v2, 3, 2
      v_cmp_eq_u32 vcc, 1, v15
      v_cvt_pk_bf16_f32 v14, v14, v14
      v_lshlrev_b32 v14, 16, v14
      v_cndmask_b32 v15, 0, 1.0, vcc
      v_add_f32 v14, v14, v15
      v_cvt_pk_bf16_f32 v14, v14, v14
      v_lshlrev_b32 v14, 16, v14
      s_nop 0""".split("\n")
    pre += [f"v_readlane_b32 s{12+i}, v14, {32 + 8*(i//4) + i%4}" for i in range(12)]
    pre += ["s_lshl_b32 s7, s4, 7", f"s_add_u32 s7, s7, {X1F}"]
    pre += [f"v_mov_b32 v{MD+8+c}, s{20+c}" for c in range(4)]
    pre += [f"v_mul_f32 v{MD+c}, s{12+c}, v{MD+8+c}" for c in range(4)] + [f"v_mul_f32 v{MD+4+c}, s{16+c}, v{MD+8+c}" for c in range(4)]
    p1 = ["s_waitcnt vmcnt(1)"]; p2 = []
    for i in range(8):
        q0, q1 = Q+2*i, Q+1+2*i
        t = H + 8*i
        p1 += [f"v_lshlrev_b32 v{t}, 16, v{q0}", f"v_and_b32 v{t+1}, 0xffff0000, v{q0}", f"v_lshlrev_b32 v{t+2}, 16, v{q1}", f"v_and_b32 v{t+3}, 0xffff0000, v{q1}"]
        p1 += [f"v_fma_f32 v{t+4+c}, v{t+c}, v{STT+2*i}, v{STT+2*i+1}" for c in range(4)]
        p2 += [f"v_pk_fma_f32 v[{t+4+c}:{t+5+c}], v[{t+4+c}:{t+5+c}], v[{MD+4+c}:{MD+5+c}], v[{MD+c}:{MD+1+c}]" for c in (0, 2)]
    for x in interleave(mfmas(1), p1): a(x)
    a(a.stamp(5))
    a("s_waitcnt vmcnt(0)\nv_cmp_ne_u32 vcc, s42, v15")
    wr = [f"ds_write_b128 v6, v[{ACC+4*j}:{ACC+4*j+3}] offset:{j*8*144}" for j in range(8)]
    for x in wr[:6]: a(x)
    a("s_cbranch_vccz F_HP_GO")
    poll(a, "F_HP", f"v{HP}", "v15", pair="v[14:15]")
    for x in wr[6:] + pre + ["s_waitcnt lgkmcnt(0)", "s_barrier"]: a(x)
    Y = 112
    for c in range(4): a(f"ds_read2_b32 v[{Y+2*c}:{Y+2*c+1}], v{YA+c} offset1:4")
    for i in range(1, 4):
        for c in range(4): a(f"v_add_u32 v{YA+c}, {16*144}, v{YA+c}\nds_read2_b32 v[{Y+8*i+2*c}:{Y+8*i+2*c+1}], v{YA+c} offset1:4")
        if i == 2: a("s_waitcnt lgkmcnt(8)")
    for x in p2: a(x)
    for i in range(4):
        a(f"s_waitcnt lgkmcnt({min(8, 12-4*i)})")
        for e in range(2):
            t = H + 8*(2*i+e)
            for c in range(4): a(f"v_fma_f32 v{t+c}, v{t+4+c}, v{Y+8*i+2*c+e}, v{t+c}")
            a(f"v_cvt_pk_bf16_f32 v{Q+4*i+2*e}, v{t}, v{t+1}\nv_cvt_pk_bf16_f32 v{Q+4*i+2*e+1}, v{t+2}, v{t+3}")
        a(f"buffer_store_dwordx4 v[{Q+4*i}:{Q+4*i+3}], v{XA}, s[8:11], s7 offen sc1")
        if i < 3: a(f"s_add_u32 s7, s7, {16*36864}")
    a("s_branch F_JOIN")

    a("F_OTHER:")
    a.srd(32, "wout")
    def wo_issue():
        a(f"""
          s_mul_i32 s37, s36, 7282
          s_lshr_b32 s37, s37, 16
          s_mul_i32 s38, s37, 9
          s_sub_u32 s39, s36, s38
          s_lshl_b32 s44, s37, 2
          s_add_u32 s44, s44, s3
          s_mul_i32 s44, s44, {72*1152}
          s_lshl_b32 s45, s39, 7
          s_add_u32 s44, s44, s45
          s_mul_i32 s38, s38, 36864
          s_lshl_b32 s39, s39, 2
          s_add_u32 s39, s39, s3
          s_lshl_b32 s39, s39, 10
          s_add_u32 s38, s38, s39
          s_add_u32 s38, s38, {WOUTF}
          s_mul_i32 s45, s3, 9216
          s_add_u32 s45, s45, 81920
        """)
        for i in range(9):
            a(f"s_add_u32 m0, s45, {1024*i}\ns_nop 0")
            a(f"buffer_load_dwordx4 v245, s[32:35], s44 offen lds")
            if i < 8: a(f"s_add_u32 s44, s44, {8*1152}")
    def wo_finish():
        a("s_waitcnt vmcnt(0)\ns_barrier")
        for i in range(9):
            b1, b2 = (32*i, 32*i+16) if i < 4 else ((144+32*(i-4), 144+32*(i-4)+16) if i < 8 else (128, 272))
            r = 16 + 4*i
            a(f"ds_read_b64_tr_b16 v[{r}:{r+1}], v244 offset:{b1*128}")
            a(f"ds_read_b64_tr_b16 v[{r+2}:{r+3}], v244 offset:{b2*128}")
            if i == 4: a("s_waitcnt lgkmcnt(0)")
        a("s_waitcnt lgkmcnt(0)")
        for i in range(9):
            r = 16 + 4*i
            a(f"buffer_store_dwordx4 v[{r}:{r+3}], v3, s[8:11], s38 offen sc1")
            if i < 8: a("s_add_u32 s38, s38, 36864")
    a("""
      v_lshrrev_b32 v10, 3, v2
      v_and_b32 v11, 7, v2
      v_and_b32 v12, 6, v10
      v_xor_b32 v11, v11, v12
      v_lshlrev_b32 v11, 4, v11           ; chunk*16
      v_lshrrev_b32 v9, 2, v2
      v_lshlrev_b32 v9, 7, v9
      v_and_b32 v12, 3, v10
      v_xor_b32 v12, s3, v12
      v_lshl_add_u32 v9, v12, 5, v9
      v_and_b32 v12, 3, v2
      v_lshl_add_u32 v9, v12, 3, v9
      v_add_u32 v247, 36864, v9
      v_add_u32 v244, 81920, v9
      v_mul_u32_u24 v245, 1152, v10
      v_add_u32 v245, v245, v11
      s_mul_i32 s6, s3, 18432
      s_cmp_ge_u32 s2, 252
      s_cbranch_scc1 F_LAST
      s_cmp_lt_u32 s2, 216
      s_cbranch_scc1 F_WIN
    """)
    a.srd(12, "wmod"); a.srd(16, "c")
    MT = 73728
    a(f"""
      s_sub_u32 s4, s2, 216
      s_mov_b32 s36, s4
      s_mov_b32 s96, s4
      s_and_b32 s5, s4, 1                 ; half
      s_lshr_b32 s4, s4, 1                ; cbk
      s_mul_i32 s26, s5, 288
      v_and_b32 v6, 7, v0
      v_lshrrev_b32 v7, 3, v0
      v_add_u32 v10, s26, v7
      v_mul_u32_u24 v8, 6912, v10
      v_lshl_add_u32 v8, v6, 4, v8
      v_lshlrev_b32 v12, 1, v10
      s_add_u32 s20, s4, 27
      s_mov_b32 s21, s4
      s_add_u32 s22, s4, 18
      s_add_u32 s23, s4, 36
      s_cmp_lt_u32 s4, 9
      s_cselect_b32 s22, s22, s23
    """)
    C, T, AC = 16, 26, 36
    for i in range(9): a(f"buffer_load_ushort v{C+i}, v12, s[16:19], 0 offen offset:{64*i}")
    def mloads(r):
        b = 56 + 36*(r % 2)
        a(f"s_lshl_b32 s24, s{20+r}, 7")
        for i in range(9):
            a(f"buffer_load_dwordx4 v[{b+4*i}:{b+3+4*i}], v8, s[12:15], s24 offen")
            if i < 8: a(f"s_add_u32 s24, s24, {32*6912}")
    mloads(0)
    a(f"buffer_load_dword {NT}, {NT}, s[28:31], 0 offen sc1")
    a("s_waitcnt vmcnt(10)")
    for fmt in ("v_lshlrev_b32 v{c}, 16, v{c}", "v_mul_f32 v{t}, " + float_hex(-1.4426950408889634) + ", v{c}", "v_exp_f32 v{t}, v{t}", "v_add_f32 v{t}, 1.0, v{t}",
                "v_rcp_f32 v{t}, v{t}", "v_mul_f32 v{c}, v{c}, v{t}", "v_cvt_pk_bf16_f32 v{c}, v{c}, v{c}", "v_lshlrev_b32 v{c}, 16, v{c}"):
        for i in range(9): a(fmt.format(c=C+i, t=T+i))
    a(f"""
      v_lshlrev_b32 v13, 8, v1
      v_lshl_add_u32 v13, v6, 5, v13
      v_add_u32 v13, {MT}, v13
      v_lshlrev_b32 v14, 2, v2
      v_add_u32 v14, {MT}, v14
      v_lshlrev_b32 v15, 3, v2
      s_mul_i32 s25, s5, {3456*8}
      s_add_u32 s25, s25, {MODP}
      s_waitcnt vmcnt(0)
    """)
    check_nonce(a, "F_M", NT)
    for r in range(3):
        b = 56 + 36*(r % 2)
        if r > 0: a("s_waitcnt vmcnt(0)")
        if r < 2: mloads(r+1)
        else: wo_issue()
        for i in range(9):
            for dd in range(4):
                src = f"v{b+4*i+dd}"
                a(f"v_lshlrev_b32 v26, 16, {src}\nv_and_b32 v27, 0xffff0000, {src}")
                if i == 0: a(f"v_mul_f32 v{AC+2*dd}, v{C}, v26\nv_mul_f32 v{AC+1+2*dd}, v{C}, v27")
                else: a(f"v_fmac_f32 v{AC+2*dd}, v{C+i}, v26\nv_fmac_f32 v{AC+1+2*dd}, v{C+i}, v27")
        a("s_nop 1")
        for j in range(8): a(f"v_add_f32_dpp v{AC+j}, v{AC+j}, v{AC+j} row_ror:8 row_mask:0xf bank_mask:0xf")
        for sw in ("16", "32"):
            for j in range(8): a(f"v_mov_b32 v{44+j}, v{AC+j}")
            a("s_nop 1")
            for j in range(8): a(f"v_permlane{sw}_swap_b32 v{AC+j}, v{44+j}")
            a("s_nop 1")
            for j in range(8): a(f"v_add_f32 v{AC+j}, v{AC+j}, v{44+j}")
        a(f"""
          s_mov_b64 exec, 0xff
          ds_write_b128 v13, v[{AC}:{AC+3}] offset:{1024*r}
          ds_write_b128 v13, v[{AC+4}:{AC+7}] offset:{1024*r+16}
          s_mov_b64 exec, -1
          s_waitcnt lgkmcnt(0)
          s_barrier
          s_cmp_lg_u32 s3, {3-r}
          s_cbranch_scc1 F_MOD_N{r}
        """)
        for i in range(4): a(f"ds_read_b32 v{AC+i}, v14 offset:{1024*r + 256*i}")
        a(f"""
          s_lshl_b32 s24, s{20+r}, 9
          s_add_u32 s24, s24, s25
          s_waitcnt lgkmcnt(0)
          v_add_f32 v{AC}, v{AC}, v{AC+1}
          v_add_f32 v{AC+2}, v{AC+2}, v{AC+3}
          v_add_f32 v{AC}, v{AC}, v{AC+2}
          v_mov_b32 v{AC+1}, s42
          buffer_store_dwordx2 v[{AC}:{AC+1}], v15, s[8:11], s24 offen sc1
          s_nop 1
        F_MOD_N{r}:
        """)
        a(a.stamp(1+r))
    zero_gm()
    a(a.stamp(4))
    wo_finish()
    a("s_branch F_JOIN")
    TB = 73728
    a("F_WIN:")
    a.srd(20, "win"); a.srd(16, "ssmk")
    a(f"""
      s_sub_u32 s4, s2, 144
      s_lshr_b32 s5, s4, 3
      s_and_b32 s4, s4, 7
      s_mul_i32 s4, s4, 9
      s_add_u32 s4, s4, s5                ; unit
      s_mul_i32 s7, s3, {144*9216}
      s_lshl_b32 s5, s4, 7
      s_add_u32 s7, s7, s5
      v_mul_u32_u24 v10, 9216, v10
      v_add_u32 v11, v11, v10
      v_lshlrev_b32 v14, 4, v0
      s_lshl_b32 s5, s4, 15
    """)
    if 'wdel' in X: get_nonce(a, "F_W0", "v15")
    for i in range(8 if 'notk' not in X else 0):
        a(f"buffer_load_dwordx4 v[16:19], v14, s[16:19], s5 offen")
        if i < 7: a("s_add_u32 s5, s5, 4096")
    for i in range(18):
        a(f"s_add_u32 m0, s6, {1024*i}\ns_nop 0")
        a(f"buffer_load_dwordx4 v11, s[20:23], s7 offen lds")
        if i < 17: a(f"s_add_u32 s7, s7, {8*9216}")
    zero_gm()
    get_nonce(a, "F_W", "v14")
    a(f"""
      v_add_u32 v7, 256, v0
      v_min_u32 v7, 287, v7
      v_lshlrev_b32 v12, 4, v0
      v_lshlrev_b32 v13, 4, v7
      s_mov_b32 s16, {MODP + 3*576*8}
      s_mov_b32 s17, {MODP + 3*576*8 + 3456*8}
      s_mov_b32 s18, {MODP + 4*576*8}
      s_mov_b32 s19, {MODP + 4*576*8 + 3456*8}
      s_mov_b32 s43, 0
    F_WG_POLL:
    """)
    for h in range(2):
        for i in range(4): a(f"buffer_load_dwordx4 v[{16+16*h+4*i}:{19+16*h+4*i}], v{12+h}, s[8:11], s{16+i} offen sc1")
    a("s_waitcnt vmcnt(0)\nv_xor_b32 v14, s42, v17")
    for r_ in range(19, 48, 2): a(f"v_xor_b32 v15, s42, v{r_}\nv_or_b32 v14, v14, v15")
    a(f"""
      v_cmp_ne_u32 vcc, 0, v14
      s_add_u32 s43, s43, 1
      s_cmp_ge_u32 s43, 0x80000
      s_cbranch_scc1 F_WG_GO
      s_nop 2
      s_cbranch_vccz F_WG_GO
      s_sleep {SLP}
      s_branch F_WG_POLL
    F_WG_GO:
    """)
    for h in range(2):
        b = 16 + 16*h; idx = ["v0", "v7"][h]
        a(f"""
          v_add_f32 v{b}, v{b}, v{b+4}
          v_add_f32 v{b+2}, v{b+2}, v{b+6}
          v_add_f32 v{b+8}, v{b+8}, v{b+12}
          v_add_f32 v{b+10}, v{b+10}, v{b+14}
          v_cvt_pk_bf16_f32 v{b}, v{b}, v{b+2}
          v_cvt_pk_bf16_f32 v{b+8}, v{b+8}, v{b+10}
          v_and_b32 v{b+9}, 0xffff0000, v{b+8}
          v_lshlrev_b32 v{b+8}, 16, v{b+8}
          v_add_f32 v{b+8}, 1.0, v{b+8}
          v_add_f32 v{b+9}, 1.0, v{b+9}
          v_cvt_pk_bf16_f32 v{b+8}, v{b+8}, v{b+9}
          v_and_b32 v{b+9}, 0xffff0000, v{b+8}
          v_lshlrev_b32 v{b+8}, 16, v{b+8}
          v_lshlrev_b32 v13, 3, {idx}
          v_lshlrev_b32 v14, 2, {idx}
          v_add_u32 v13, {TB}, v13
          v_add_u32 v14, {TB+3072}, v14
          ds_write_b64 v13, v[{b+8}:{b+9}]
          ds_write_b32 v14, v{b}
        """)
    a(f"""
      {a.stamp(1)}
      s_lshl_b32 s16, s4, 2
      s_add_u32 s16, s16, s3              ; fc
      s_cmp_ge_u32 s16, 144
      s_cselect_b32 s17, 144, 0
      s_cselect_b32 s18, 0, {18*9216}
      s_cselect_b32 s23, 1, 0             ; is z2
      s_sub_u32 s26, s16, s17             ; fcl
      s_mul_i32 s19, s26, 7282
      s_lshr_b32 s19, s19, 16             ; nt
      s_mul_i32 s20, s19, 9
      s_sub_u32 s20, s26, s20             ; j
      s_mul_i32 s19, s19, {36*9216}
      s_lshl_b32 s20, s20, 10
      s_add_u32 s19, s19, s20
      s_add_u32 s19, s19, s18
      s_add_u32 s27, s19, {WINF}
      v_lshlrev_b32 v12, 4, v5
      v_add_u32 v12, {TB}, v12
      v_lshlrev_b32 v13, 3, v5
      v_add_u32 v13, {TB+3072}, v13
      v_mov_b32 v14, 0
      v_mov_b32 v15, 0
      s_mov_b32 s21, 0x3f803f80
      s_waitcnt lgkmcnt(0)
      s_barrier
      {a.stamp(2)}
      s_lshr_b32 s36, s4, 1
      s_add_u32 s36, s36, 48
      s_bitcmp1_b32 s4, 0
      s_cselect_b32 s36, 72, s36
      s_sub_u32 s96, s4, 12
      s_cmp_lt_u32 s4, 48
      s_cselect_b32 s96, 64, s96
      s_cmp_eq_u32 s4, 37
      s_cselect_b32 s96, 60, s96
      s_cmp_eq_u32 s4, 39
      s_cselect_b32 s96, 61, s96
      s_cmp_eq_u32 s4, 41
      s_cselect_b32 s96, 62, s96
      s_cmp_eq_u32 s4, 45
      s_cselect_b32 s96, 63, s96
      s_cmp_ge_u32 s36, 72
      s_cbranch_scc1 F_WIN_R
    """)
    wo_issue()
    a("F_WIN_R:")
    def rd(ks):
        b = 16 + 16*(ks % 3); base = "v9" if ks < 9 else "v247"; k9 = ks % 9
        a(f"""
          ds_read_b64_tr_b16 v[{b}:{b+1}], {base} offset:{4096*k9}
          ds_read_b64_tr_b16 v[{b+2}:{b+3}], {base} offset:{4096*k9+2048}
          ds_read_b128 v[{b+4}:{b+7}], v12 offset:{128*ks}
          ds_read_b128 v[{b+8}:{b+11}], v12 offset:{128*ks+64}
          ds_read_b64 v[{b+12}:{b+13}], v13 offset:{64*ks}
          ds_read_b64 v[{b+14}:{b+15}], v13 offset:{64*ks+32}
        """)
    if Asm.STAMPS: a("s_waitcnt lgkmcnt(0)")
    rd(0); rd(1)
    for ks in range(18):
        b = 16 + 16*(ks % 3); t = 64; o = 72 + 4*(ks % 2)
        if ks + 2 < 18:
            a("s_waitcnt lgkmcnt(6)"); rd(ks+2)
        else: a(f"s_waitcnt lgkmcnt({6 if ks + 1 < 18 else 0})")
        for dd in range(4):
            a(f"v_lshlrev_b32 v{t+2*dd}, 16, v{b+dd}\nv_and_b32 v{t+1+2*dd}, 0xffff0000, v{b+dd}")
        for dd in range(4): a(f"v_dot2c_f32_bf16 v15, v{b+dd}, v{b+12+dd}")
        for dd in range(4): a(f"v_pk_mul_f32 v[{t+2*dd}:{t+1+2*dd}], v[{t+2*dd}:{t+1+2*dd}], v[{b+4+2*dd}:{b+5+2*dd}]")
        for dd in range(4): a(f"v_cvt_pk_bf16_f32 v{o+dd}, v{t+2*dd}, v{t+1+2*dd}")
        a(f"buffer_store_dwordx4 v[{o}:{o+3}], v3, s[8:11], s27 offen sc1")
        for dd in range(4): a(f"v_dot2c_f32_bf16 v14, s21, v{o+dd}")
        if ks < 17: a("s_add_u32 s27, s27, 9216")
    a("s_nop 2")
    for sw in ("16", "32"):
        a(f"""
          v_mov_b32 v16, v14
          v_mov_b32 v17, v15
          s_nop 1
          v_permlane{sw}_swap_b32 v14, v16
          v_permlane{sw}_swap_b32 v15, v17
          s_nop 1
          v_add_f32 v14, v14, v16
          v_add_f32 v15, v15, v17
        """)
    a(f"""
      {a.stamp(3)}
      v_lshlrev_b32 v16, 2, v4
      v_lshlrev_b32 v17, 3, v4
      s_mov_b64 exec, 0xffff
      s_cmp_eq_u32 s23, 1
      s_cbranch_scc1 F_WIN_Z2
      s_lshl_b32 s16, s26, 6
      s_add_u32 s16, s16, {UV1}
      buffer_store_dword v14, v16, s[8:11], s16 offen sc1
      s_add_u32 s16, s16, 9216
      buffer_store_dword v15, v16, s[8:11], s16 offen sc1
      s_branch F_WIN_E
    F_WIN_Z2:
      s_lshl_b32 s16, s26, 7
      s_add_u32 s16, s16, {UV2}
      buffer_store_dwordx2 v[14:15], v17, s[8:11], s16 offen sc1
    F_WIN_E:
      s_mov_b64 exec, -1
      s_cmp_ge_u32 s36, 72
      s_cbranch_scc1 F_JOIN
      s_branch F_WO_F
    F_LAST:
    """)
    if 'cwi' in X:
        a(CWS.format(n=0, K=KNAME, end="GM_CODE_END") + "v_lshlrev_b32 v8, 7, v0\ns_mov_b32 s5, 32768\ns_mov_b32 s7, 65536\nbuffer_load_dword v246, v8, s[12:15], 0 offen\nbuffer_load_dword v246, v8, s[12:15], s5 offen\nbuffer_load_dword v246, v8, s[12:15], s7 offen")
    zero_gm()
    a("s_mov_b32 s42, 0\ns_sub_u32 s36, s2, 216\nF_WO:\ns_barrier")
    wo_issue()
    a("F_WO_F:")
    wo_finish()
    a("s_add_u32 s36, s36, 4\ns_cmp_lt_u32 s36, 48\ns_cbranch_scc1 F_WO\ns_cmp_lg_u32 s42, 0\ns_cbranch_scc1 F_JOIN")
    get_nonce(a, "F_L", "v14")
    a("F_JOIN:")
    a(a.stamp(6))
```

```python
from gen_common import *
from gen_g import VM, WAIT, resolve, emit
from gen_f import poll, get_nonce, check_nonce, CH_LDS, KCS, URO, URS, YO, YS, QO, BIG, FU, FH2
import os
X = os.environ.get('X', '').split(',')
FD = FLF + 768*128
STL = QO + 18432
L0, NT = "v250", "v251"
KNAME = "adaLN_cond__ssm_conv_h3__mixer_gmlp__prompt_kernel"

CWS = '''
      s_getpc_b64 s[12:13]
    F_PC{n}:
      s_sub_u32 s12, s12, F_PC{n}-{K}
      s_subb_u32 s13, s13, 0
      s_and_b32 s13, s13, 0xffff
      s_mov_b32 s14, {end}-{K}
      s_mov_b32 s15, 0x20000
'''
def red32x2(a, r0, r1, t0, t1):
    for op in ("quad_perm:[1,0,3,2]", "quad_perm:[2,3,0,1]", "row_half_mirror", "row_mirror"):
        a(f"s_nop 0\nv_add_f32_dpp {r0}, {r0}, {r0} {op} row_mask:0xf bank_mask:0xf\nv_add_f32_dpp {r1}, {r1}, {r1} {op} row_mask:0xf bank_mask:0xf")
    a(f"""
      v_mov_b32 {t0}, {r0}
      v_mov_b32 {t1}, {r1}
      s_nop 1
      v_permlane16_swap_b32 {r0}, {t0}
      v_permlane16_swap_b32 {r1}, {t1}
      s_nop 1
      v_add_f32 {r0}, {r0}, {t0}
      v_add_f32 {r1}, {r1}, {t1}
    """)

def gen_front(a):
    a.begin(KNAME)
    a(f"s_cmp_ge_u32 s2, 256\ns_cbranch_scc1 GM_END")
    a(a.stamp(0))
    a.load_args()
    a(f"""
      s_memrealtime s[40:41]
      s_and_b32 s4, s2, 7
      s_mul_i32 s4, s4, 18
      s_lshr_b32 s5, s2, 3
      s_add_u32 s4, s4, s5
      s_and_b32 s5, s4, 15                ; rb
      s_lshr_b32 s6, s4, 4                ; cb
      v_and_b32 v4, 15, v0
      v_lshrrev_b32 v6, 4, v0
      s_lshl_b32 s7, s5, 7
      v_lshl_add_u32 v8, v6, 3, s7        ; s0
      s_lshl_b32 s7, s6, 7
      v_lshl_add_u32 v9, v4, 3, s7
      v_mul_u32_u24 v11, 1152, v8
      v_add_u32 v11, v11, v9              ; row s0
      v_subrev_u32 v10, 4608, v11         ; row s0-4
      v_add_u32 v12, 4608, v11
      v_lshlrev_b32 v15, 2, v9
      s_cmp_ge_u32 s2, 144
      s_waitcnt lgkmcnt(0)
      s_cbranch_scc1 F_COMMON
    """)
    a.srd(20, "shk")
    a("buffer_load_dwordx4 v[16:19], v15, s[20:23], 0 offen\nbuffer_load_dwordx4 v[20:23], v15, s[20:23], 0 offen offset:16")
    a.srd(12, "k"); a.srd(16, "v")
    KR, VR, SQ, SH, KU, VU, RES, PK = 24, 48, 224, 64, 80, 128, 160, 192
    seq0 = []
    for i in range(1, 12):
        seq0.append(VM(f"buffer_load_dwordx2 v[{KR+2*i}:{KR+2*i+1}], v{10+i//4}, s[12:15], 0 offen offset:{1152*(i%4)}", ("k", i)))
        if i >= 4: seq0.append(VM(f"buffer_load_dwordx2 v[{VR+2*(i-4)}:{VR+2*(i-4)+1}], v{10+i//4}, s[16:19], 0 offen offset:{1152*(i%4)}", ("v", i)))
    emit(a, seq0)
    a("""
    F_COMMON:
      s_mov_b32 s96, 64
      v_lshrrev_b32 v1, 6, v0
      v_and_b32 v2, 63, v0                ; lane
      v_readfirstlane_b32 s3, v1          ; wave
      v_lshlrev_b32 v3, 4, v2             ; lane*16
      v_lshrrev_b32 v5, 4, v2             ; g
    """)
    a.srd(8, "ws"); a.srd(28, "dbg", 256)
    a(f"v_cmp_eq_u32 vcc, 0, v2\nv_mov_b32 {L0}, {BIG}\nv_mov_b32 {NT}, 0\nv_cndmask_b32 {L0}, {L0}, 0, vcc")
    a(f"""
      s_cmp_lg_u32 s2, 255
      s_cbranch_scc1 F_NOTAG
      s_cmp_lg_u32 s3, 0
      s_cbranch_scc1 F_NOTAG
      s_mul_i32 s41, s41, 0x9e3779b1
      s_xor_b32 s40, s40, s41
      s_or_b32 s40, s40, 1
      v_mov_b32 v8, s40
      buffer_store_dword v8, {L0}, s[28:31], 0 offen sc1
    F_NOTAG:
      s_cmp_ge_u32 s2, 144
      s_cbranch_scc1 F_OTHER
    """)
    def zero_gm():
        a(f"""
          v_mov_b32 v248, 0
          v_lshlrev_b32 v249, 2, v0
          s_lshl_b32 s46, s2, 10
          s_add_u32 s46, s46, {ST2}
          buffer_store_dword v248, v249, s[8:11], s46 offen sc1
          s_lshl_b32 s46, s2, 2
          s_add_u32 s46, s46, s3
          s_lshl_b32 s46, s46, 7
          s_add_u32 s46, s46, {FLB}
          buffer_store_dword v248, {L0}, s[8:11], s46 offen sc1
          s_add_u32 s46, s46, {FLP-FLB}
          buffer_store_dword v248, {L0}, s[8:11], s46 offen sc1
        """)
    a.srd(24, "q"); a.srd(32, "ssmk")
    seq = [VM("; ", "sh1"), "v_and_b32 v7, 31, v0"]
    seq += f"""
      s_mul_i32 s38, s3, {CH_LDS}
      s_lshl_b32 s7, s4, 2
      s_add_u32 s7, s7, s3
      s_lshl_b32 s44, s7, 12
      s_add_u32 s45, s44, {UR}
      v_sub_u32 v13, 15, v6
      v_and_b32 v11, 7, v4
      v_xor_b32 v13, v13, v11
      v_lshlrev_b32 v13, 4, v13
      v_lshl_add_u32 v13, v4, 10, v13
      v_add_u32 v13, {YO}, v13
      s_lshl_b32 s46, s4, 4
      s_lshl_b32 s47, s3, 2
      s_add_u32 s46, s46, s47
      v_lshrrev_b32 v14, 5, v2
      v_add_u32 v15, s46, v14
      v_mul_u32_u24 v15, 1152, v15
      v_lshl_add_u32 v15, v7, 2, v15""".split("\n")
    def kcopy(t):
        return [f"s_add_u32 m0, s38, {t*KCS + 60 - 4*t}", "s_nop 0"] + [VM(f"buffer_load_dwordx4 v3, s[32:35], s44 offen offset:{1024*i} lds", ("K", t, i)) for i in range(4)]
    def half(h):
        o = []
        for j in range(4):
            op = "v_lshlrev_b32 {d}, 16, {s}" if j % 2 == 0 else "v_and_b32 {d}, 0xffff0000, {s}"
            o += [op.format(d=f"v{SH+8*h+2*j}", s=f"v{16+4*h+j//2}"), op.format(d=f"v{SH+8*h+1+2*j}", s=f"v{18+4*h+j//2}")]
        ku, vu, rs, sh = KU+24*h, VU+16*h, RES+16*h, SH+8*h
        for i in range(1, 12): o += [f"v_lshlrev_b32 v{ku+2*i}, 16, v{KR+2*i+h}", f"v_and_b32 v{ku+1+2*i}, 0xffff0000, v{KR+2*i+h}"]
        for i in range(8): o += [f"v_lshlrev_b32 v{vu+2*i}, 16, v{VR+2*i+h}", f"v_and_b32 v{vu+1+2*i}, 0xffff0000, v{VR+2*i+h}"]
        for i in range(8):
            d = f"v[{rs+2*i}:{rs+1+2*i}]"
            kk = lambda j: f"v[{ku+2*(i+4-j)}:{ku+1+2*(i+4-j)}]"
            o.append(f"v_pk_mul_f32 {d}, {kk(3)}, v[{sh+6}:{sh+7}]")
            for j in (2, 1, 0): o.append(f"v_pk_fma_f32 {d}, {kk(j)}, v[{sh+2*j}:{sh+1+2*j}], {d}")
            o.append(f"v_pk_mul_f32 {d}, {d}, v[{vu+2*i}:{vu+1+2*i}]")
        for ch in range(2):
            p = PK + 8*h + 4*ch
            for dd in range(4): o.append(f"v_cvt_pk_bf16_f32 v{p+dd}, v{rs+2*(7-2*dd)+ch}, v{rs+2*(6-2*dd)+ch}")
            o.append(f"ds_write_b128 v13, v[{p}:{p+3}] offset:{(2*h+ch)*256}")
        return o
    seq += [WAIT(["sh1"]), a.stamp(1)]
    sq = [VM(f"buffer_load_dword v{SQ+9*r+i}, v15, s[24:27], 0 offen offset:{128*i + 2304*r}", ("sq", r, i)) for r in range(2) for i in range(9)]
    seq += interleave(half(0), sq + kcopy(0)) + [VM(f"buffer_load_dword {NT}, {NT}, s[28:31], 0 offen sc1", "nt")] + half(1)
    seq += f"""
      v_xor_b32 v12, v4, v1
      v_lshlrev_b32 v12, 4, v12
      v_lshl_add_u32 v12, v6, 8, v12
      v_add_u32 v12, {YO}, v12
      v_xor_b32 v10, 64, v12
      v_lshlrev_b32 v11, 12, v6
      v_lshl_add_u32 v11, v4, 4, v11
      s_lshl_b32 s46, s6, 18
      s_sub_u32 s47, 15, s5
      s_lshl_b32 s47, s47, 8
      s_add_u32 s46, s46, s47
      s_add_u32 s46, s46, {UR}
      s_waitcnt lgkmcnt(0)
      s_barrier""".split("\n")
    for i in range(4): seq.append(f"ds_read_b128 v[{60+4*i}:{63+4*i}], {['v12','v10'][i%2]} offset:{4096*i}")
    for i in range(4):
        seq += [f"s_waitcnt lgkmcnt({3-i})", VM(f"buffer_store_dwordx4 v[{60+4*i}:{63+4*i}], v11, s[8:11], s46 offen sc1", ("ur", i))]
        if i < 3: seq.append(f"s_add_u32 s46, s46, {16*4096}")
    for t in range(1, 4): seq += kcopy(t)
    seq += f"""
      v_lshrrev_b32 v8, 1, v7
      v_and_b32 v9, 7, v8
      s_lshl_b32 s7, s3, 1
      v_xor_b32 v9, s7, v9
      v_lshlrev_b32 v8, 7, v8
      v_lshl_add_u32 v8, v14, 3, v8
      v_and_b32 v10, 1, v7
      v_lshl_add_u32 v8, v10, 2, v8
      v_add_u32 v8, {QO}, v8
      v_lshl_add_u32 v10, v9, 4, v8
      v_xor_b32 v9, 1, v9
      v_lshl_add_u32 v11, v9, 4, v8""".split("\n")
    seq.append(WAIT([("sq", 1, 8)]))
    U = [80, 100]
    for r in range(2):
        for i in range(9): seq.append(f"ds_write_b32 v{10+r}, v{SQ+9*r+i} offset:{2048*i}")
        for i in range(9): seq += [f"v_lshlrev_b32 v{U[r]+2*i}, 16, v{SQ+9*r+i}", f"v_and_b32 v{U[r]+1+2*i}, 0xffff0000, v{SQ+9*r+i}"]
        seq.append("s_waitcnt lgkmcnt(0)")
    M_ = [16, 18]; R_ = [20, 22]
    for r in range(2):
        seq.append(f"v_pk_add_f32 v[{M_[r]}:{M_[r]+1}], v[{U[r]}:{U[r]+1}], v[{U[r]+2}:{U[r]+3}]")
        for i in range(2, 9): seq.append(f"v_pk_add_f32 v[{M_[r]}:{M_[r]+1}], v[{M_[r]}:{M_[r]+1}], v[{U[r]+2*i}:{U[r]+1+2*i}]")
    seq += ["v_add_f32 v16, v16, v17", "v_add_f32 v18, v18, v19", WAIT([("ur", 3)])]
    resolve(seq); emit(a, seq)
    check_nonce(a, "F_C", NT)
    a(f"""
      {a.stamp(2)}
      v_mov_b32 v24, s42
      s_lshr_b32 s7, s44, 5
      s_add_u32 s7, s7, {FU}
      buffer_store_dword v24, {L0}, s[8:11], s7 offen sc1
    """)
    red32x2(a, "v16", "v18", "v17", "v19")
    for r in range(2):
        a(f"v_mul_f32 v{M_[r]}, {float_hex(1.0/576)}, v{M_[r]}")
        for i in range(9): a(f"v_pk_add_f32 v[{U[r]+2*i}:{U[r]+1+2*i}], v[{U[r]+2*i}:{U[r]+1+2*i}], v[{M_[r]}:{M_[r]+1}] op_sel_hi:[1,0] neg_lo:[0,1] neg_hi:[0,1]")
        a(f"v_pk_mul_f32 v[{R_[r]}:{R_[r]+1}], v[{U[r]}:{U[r]+1}], v[{U[r]}:{U[r]+1}]")
        for i in range(1, 9): a(f"v_pk_fma_f32 v[{R_[r]}:{R_[r]+1}], v[{U[r]+2*i}:{U[r]+1+2*i}], v[{U[r]+2*i}:{U[r]+1+2*i}], v[{R_[r]}:{R_[r]+1}]")
    a("v_add_f32 v20, v20, v21\nv_add_f32 v22, v22, v23\ns_nop 0")
    red32x2(a, "v20", "v22", "v21", "v23")
    a(f"""
      v_mov_b32 v21, {float_hex(1e-5)}
      v_mov_b32 v23, {float_hex(1e-5)}
      v_fmac_f32 v21, {float_hex(1.0/576)}, v20
      v_fmac_f32 v23, {float_hex(1.0/576)}, v22
      v_rsq_f32 v20, v21
      v_rsq_f32 v22, v23
      s_lshl_b32 s7, s3, 5
      s_add_u32 s7, s7, {STL}
      v_lshl_add_u32 v8, v14, 3, s7
      v_mul_f32 v21, -v16, v20
      v_mul_f32 v23, -v18, v22
      ds_write_b64 v8, v[20:21]
      ds_write_b64 v8, v[22:23] offset:16
      v_subrev_u32 v10, 64, v0
      v_lshrrev_b32 v10, 3, v10
      v_and_b32 v11, 7, v2
      v_xor_b32 v12, v11, v10
      v_and_b32 v12, 7, v12
      v_lshlrev_b32 v12, 4, v12
      v_lshl_add_u32 v12, v10, 7, v12
      v_add_u32 v12, {QO}, v12
      v_lshlrev_b32 v10, 14, v10
      v_lshl_add_u32 v10, v11, 4, v10
      s_lshl_b32 s47, s4, 7
      s_add_u32 s46, s47, {ST1}
      s_add_u32 s47, s47, {QP}
      s_waitcnt lgkmcnt(0)
      s_barrier
      s_cmp_ge_u32 s4, 128
      s_cbranch_scc1 F_Q_SKIP
      s_cmp_eq_u32 s3, 0
      s_cbranch_scc1 F_Q_SKIP
    """)
    for i in range(6): a(f"ds_read_b128 v[{60+4*i}:{63+4*i}], v12 offset:{3072*i}")
    for i in range(6):
        a(f"s_waitcnt lgkmcnt({5-i})")
        a(f"buffer_store_dwordx4 v[{60+4*i}:{63+4*i}], v10, s[8:11], s47 offen sc1")
        if i < 5: a(f"s_add_u32 s47, s47, {24*16384}")
    a(f"""
      s_cmp_lg_u32 s3, 2
      s_cbranch_scc1 F_Q_SKIP
      v_lshlrev_b32 v11, 4, v11
      v_add_u32 v12, {STL}, v11
      ds_read_b128 v[84:87], v12
      s_mov_b64 exec, 0xff
      s_waitcnt lgkmcnt(0)
      buffer_store_dwordx4 v[84:87], v11, s[8:11], s46 offen sc1
      s_mov_b64 exec, -1
    F_Q_SKIP:
    """)
    p = a.ptr("ssmD")
    Q, STT, MD, HP, XA, YA = 176, 192, 208, 220, 222, 242
    a(f"""
      s_lshl_b32 s7, s4, 3
      s_load_dwordx2 s[20:21], s[{p}:{p+1}], s7
      s_lshl_b32 s7, s6, 6
      s_and_b32 s22, s4, 3
      s_add_u32 s7, s7, s22
      v_lshl_add_u32 v14, v4, 2, s7
      v_lshlrev_b32 v14, 7, v14
      v_add_u32 v14, {FU}, v14
      v_mov_b32 v8, 0
      v_mov_b32 v9, 0
      v_mov_b32 v10, 0
      v_mov_b32 v11, 0
      v_mul_u32_u24 v12, {KCS}, v5
      v_lshl_add_u32 v12, v4, 2, v12
      v_add_u32 v12, s38, v12
      v_add_u32 v13, v4, v5
      v_lshrrev_b32 v16, 5, v2
      v_mul_u32_u24 v16, {URS}, v16
      v_lshl_add_u32 v16, v7, 4, v16
      v_add_u32 v16, s38, v16
      v_cmp_gt_u32 vcc, 15, v13
      s_and_saveexec_b64 s[46:47], vcc
      ds_write_b32 v12, v8
      s_mov_b64 exec, s[46:47]
      v_cmp_gt_u32 vcc, 28, v7
      s_and_saveexec_b64 s[46:47], vcc
      ds_write_b128 v16, v[8:11] offset:{URO+4096}
      s_mov_b64 exec, s[46:47]
      v_and_b32 v12, 3, v4
      v_mul_u32_u24 v12, {KCS}, v12
      v_lshrrev_b32 v13, 2, v4
      v_add_u32 v13, v13, v5
      v_lshl_add_u32 v12, v13, 4, v12
      v_add_u32 v12, s38, v12
      v_lshrrev_b32 v13, 3, v4
      v_mul_u32_u24 v13, {URS}, v13
      v_lshl_add_u32 v13, v5, 4, v13
      v_and_b32 v16, 7, v4
      v_lshlrev_b32 v16, 6, v16
      v_sub_u32 v13, v13, v16
      s_add_u32 s7, s38, {URO + 448}
      v_add_u32 v13, s7, v13
      v_lshrrev_b32 v15, 3, v2
      v_lshlrev_b32 v15, 5, v15
      v_and_b32 v16, 7, v2
      s_lshl_b32 s7, s3, 3
      v_add3_u32 v15, v15, v16, s7
      v_and_b32 v16, 3, v2
      v_lshlrev_b32 v15, 7, v15
      v_add_u32 v15, {FH2}, v15
      v_bfe_u32 v17, v2, 3, 2
      v_min_u32 v17, 2, v17
      v_mul_u32_u24 v17, 576, v17
      v_bfe_u32 v18, v2, 2, 1
      v_mul_u32_u24 v18, 3456, v18
      s_lshl_b32 s7, s4, 2
      v_add3_u32 v16, v16, v17, v18
      v_add_u32 v16, s7, v16
      v_lshlrev_b32 v16, 3, v16
      v_add_u32 v16, {MODP}, v16
      v_cmp_gt_u32 vcc, 32, v2
      v_lshlrev_b32 v{HP+1}, 4, v0
      v_lshrrev_b32 v17, 4, v0
      v_cndmask_b32 v{HP}, v16, v15, vcc
      v_mul_u32_u24 v{YA}, 144, v17
      v_bfe_u32 v15, v0, 2, 2             ; (s>>3)&3
      v_and_b32 v16, 3, v0                ; (s>>1)&3
      v_lshl_add_u32 v16, v15, 3, v16
      v_lshl_add_u32 v{YA}, v16, 2, v{YA}
      v_add_u32 v{YA}, {YO}, v{YA}
      v_mul_u32_u24 v{XA}, 36864, v17
      v_bfe_u32 v16, v0, 1, 1             ; tau = (s>>2)&1
      v_mul_u32_u24 v16, 18432, v16
      v_add_u32 v{XA}, v{XA}, v16
      v_lshl_add_u32 v{XA}, v15, 5, v{XA}
      v_and_b32 v15, 1, v0
      v_lshl_add_u32 v{XA}, v15, 4, v{XA}
      v_add_u32 v{YA+1}, {YS}, v{YA}
      v_add_u32 v{YA+2}, {2*YS}, v{YA}
      v_add_u32 v{YA+3}, {3*YS}, v{YA}
      v_and_b32 v6, 7, v4
      v_mul_u32_u24 v6, 144, v6
      v_lshl_add_u32 v6, v5, 5, v6
      v_lshrrev_b32 v15, 3, v4
      v_lshl_add_u32 v6, v15, 4, v6
      s_mul_i32 s7, s3, {YS}
      s_add_u32 s7, s7, {YO}
      v_add_u32 v6, s7, v6
      s_lshl_b32 s36, s4, 14
      s_add_u32 s36, s36, {QP}
      s_mov_b32 s37, {ST1}
      s_waitcnt lgkmcnt(0)
      s_cmp_ge_u32 s3, 2
      s_cselect_b32 s7, s21, s20
      s_and_b32 s22, s3, 1
      s_lshl_b32 s22, s22, 4
      s_lshr_b32 s7, s7, s22
      s_and_b32 s7, s7, 0xffff
      v_mov_b32 v15, s7
      v_lshl_add_u32 v16, v5, 2, v4
    """)
    for dd in range(4):
        a(f"v_cmp_eq_u32 vcc, {15-dd}, v16\ns_nop 1\nv_cndmask_b32 v{8+dd}, 0, v15, vcc")
    ACC = 16; FR = [48, 112]
    def reads(buf, r, which="AB"):
        out = []
        for i in range(8):
            if "B" in which: out.append(f"ds_read_b128 v[{FR[buf]+32+4*i}:{FR[buf]+35+4*i}], v13 offset:{64*r + 512*(7-i)}")
            if "A" in which: out.append(f"ds_read_b128 v[{FR[buf]+4*i}:{FR[buf]+3+4*i}], v12 offset:{64*r + 512*i}")
        return out
    def mfmas(buf):
        out = []
        for p_ in range(8):
            for q_ in range(8 - p_):
                j = p_ + q_
                out.append(f"v_mfma_f32_16x16x32_bf16 v[{ACC+4*j}:{ACC+4*j+3}], v[{FR[buf]+4*p_}:{FR[buf]+4*p_+3}], v[{FR[buf]+32+4*q_}:{FR[buf]+35+4*q_}], v[{ACC+4*j}:{ACC+4*j+3}]")
        return out
    a("s_cmp_lg_u32 s3, 0\ns_cbranch_scc1 F_U_GO")
    poll(a, "F_U", "v14", "v15", slp=1)
    a(f"""
      s_waitcnt vmcnt(0)
      s_barrier
      {a.stamp(3)}
    """)
    UB = 112
    for i in range(4):
        a(f"buffer_load_dwordx4 v[{UB+8*i}:{UB+8*i+3}], v3, s[8:11], s45 offen offset:{1024*i} sc1")
        a(f"buffer_load_dword v{UB+8*i+4}, v3, s[8:11], s45 offen offset:{1024*i+16} sc1")
    a(f"""
      s_lshl_b32 s7, s4, 7
      s_add_u32 s7, s7, {FH2}
      s_cmp_lg_u32 s3, 1
      s_cselect_b32 s7, 0x40000000, s7
      buffer_store_dword v24, {L0}, s[8:11], s7 offen offset:4 sc1
    """)
    a(f"s_add_u32 s7, s38, {URO}\nv_add_u32 v14, s7, v3\nv_cmp_eq_u32 vcc, 63, v2")
    for x in reads(0, 0, "A"): a(x)
    zero_gm()
    if 'nocwm' not in X:
        a(CWS.format(n=2, K=KNAME, end="GM_CODE_END") + "s_lshr_b32 s7, s2, 3\ns_lshl_b32 s7, s7, 7\nv_mul_u32_u24 v7, 2304, v0\nbuffer_load_dword v246, v7, s[12:15], s7 offen")
    for i in range(4):
        b = UB + 8*i
        a(f"s_waitcnt vmcnt({11-2*i})")
        if i == 3: a(f"v_cndmask_b32 v{b+4}, v{b+4}, 0, vcc")
        a(f"ds_write_b128 v14, v[{b}:{b+3}] offset:{URS + 1024*i}")
        for d_ in range(4): a(f"v_alignbit_b32 v{144+4*i+d_}, v{b+d_+1}, v{b+d_}, 16")
        a(f"ds_write_b128 v14, v[{144+4*i}:{147+4*i}] offset:{1024*i}")
        if i == 1: a("s_waitcnt lgkmcnt(0)")
    a("s_waitcnt lgkmcnt(0)")
    a(a.stamp(4))
    for x in reads(0, 0, "B"): a(x)
    a("s_waitcnt lgkmcnt(0)")
    for q_ in range(8):
        a(f"v_mfma_f32_16x16x32_bf16 v[{ACC+4*q_}:{ACC+4*q_+3}], v[8:11], v[{FR[0]+32+4*q_}:{FR[0]+35+4*q_}], 0")
    hp = f"buffer_load_dwordx2 v[14:15], v{HP}, s[8:11], 0 offen sc1"
    a("s_mov_b32 s7, 0\nF_CLOOP:")
    for x in interleave(mfmas(0), reads(1, 1) + [hp], per=1): a(x)
    a("s_waitcnt lgkmcnt(0)")
    for x in interleave(mfmas(1), reads(0, 2), per=1): a(x)
    a(f"""
      v_add_u32 v12, 128, v12
      v_add_u32 v13, 128, v13
      s_add_u32 s7, s7, 1
      s_cmp_lt_u32 s7, 2
      s_waitcnt lgkmcnt(0)
      s_cbranch_scc1 F_CLOOP
      s_mov_b32 s43, 0
    F_HR_CHK:
      s_waitcnt vmcnt(0)
      v_cmp_ne_u32 vcc, s42, v15
      s_add_u32 s43, s43, 1
      s_cmp_ge_u32 s43, 0x80000
      s_cbranch_scc1 F_HR_GO
      s_nop 2
      s_cmp_eq_u32 vcc_lo, 0
      s_cbranch_scc1 F_HR_GO
      s_sleep {SLP}
      {hp}
      s_branch F_HR_CHK
    F_HR_GO:
    """)
    ql = []
    for i in range(4):
        ql += [f"buffer_load_dwordx4 v[{STT+4*i}:{STT+3+4*i}], v{HP+1}, s[8:11], s37 offen sc1",
               f"buffer_load_dwordx4 v[{Q+4*i}:{Q+3+4*i}], v{HP+1}, s[8:11], s36 offen sc1"]
        if i < 3: ql += ["s_add_u32 s37, s37, 4096", "s_add_u32 s36, s36, 4096"]
    def mix(r_, q_):
        o = []
        for i in range(max(len(r_), len(q_))): o += r_[i:i+1] + q_[i:i+1]
        return o
    for x in interleave(mfmas(0), mix(reads(1, 1), ql), per=1): a(x)
    a("s_waitcnt lgkmcnt(0)")
    for x in interleave(mfmas(1), reads(0, 2), per=1): a(x)
    a("s_waitcnt lgkmcnt(0)")
    for x in interleave(mfmas(0), reads(1, 3) + [hp], per=1): a(x)
    a("s_waitcnt lgkmcnt(0)")
    H = 48
    pre = """v_add_f32_dpp v14, v14, v14 row_shl:4 row_mask:0xf bank_mask:0xf
      v_bfe_u32 v15, v2, 3, 2
      v_cmp_eq_u32 vcc, 1, v15
      v_cvt_pk_bf16_f32 v14, v14, v14
      v_lshlrev_b32 v14, 16, v14
      v_cndmask_b32 v15, 0, 1.0, vcc
      v_add_f32 v14, v14, v15
      v_cvt_pk_bf16_f32 v14, v14, v14
      v_lshlrev_b32 v14, 16, v14
      s_nop 0""".split("\n")
    pre += [f"v_readlane_b32 s{12+i}, v14, {32 + 8*(i//4) + i%4}" for i in range(12)]
    pre += ["s_lshl_b32 s7, s4, 7", f"s_add_u32 s7, s7, {X1F}"]
    pre += [f"v_mov_b32 v{MD+8+c}, s{20+c}" for c in range(4)]
    pre += [f"v_mul_f32 v{MD+c}, s{12+c}, v{MD+8+c}" for c in range(4)] + [f"v_mul_f32 v{MD+4+c}, s{16+c}, v{MD+8+c}" for c in range(4)]
    p1 = ["s_waitcnt vmcnt(1)"]; p2 = []
    for i in range(8):
        q0, q1 = Q+2*i, Q+1+2*i
        t = H + 8*i
        p1 += [f"v_lshlrev_b32 v{t}, 16, v{q0}", f"v_and_b32 v{t+1}, 0xffff0000, v{q0}", f"v_lshlrev_b32 v{t+2}, 16, v{q1}", f"v_and_b32 v{t+3}, 0xffff0000, v{q1}"]
        p1 += [f"v_fma_f32 v{t+4+c}, v{t+c}, v{STT+2*i}, v{STT+2*i+1}" for c in range(4)]
        p2 += [f"v_pk_fma_f32 v[{t+4+c}:{t+5+c}], v[{t+4+c}:{t+5+c}], v[{MD+4+c}:{MD+5+c}], v[{MD+c}:{MD+1+c}]" for c in (0, 2)]
    for x in interleave(mfmas(1), p1): a(x)
    a(a.stamp(5))
    a("s_waitcnt vmcnt(0)\nv_cmp_ne_u32 vcc, s42, v15")
    wr = [f"ds_write_b128 v6, v[{ACC+4*j}:{ACC+4*j+3}] offset:{j*8*144}" for j in range(8)]
    for x in wr[:6]: a(x)
    a("s_cbranch_vccz F_HP_GO")
    poll(a, "F_HP", f"v{HP}", "v15", pair="v[14:15]")
    for x in wr[6:] + pre + ["s_waitcnt lgkmcnt(0)", "s_barrier"]: a(x)
    Y = 112
    for c in range(4): a(f"ds_read2_b32 v[{Y+2*c}:{Y+2*c+1}], v{YA+c} offset1:4")
    for i in range(1, 4):
        for c in range(4): a(f"v_add_u32 v{YA+c}, {16*144}, v{YA+c}\nds_read2_b32 v[{Y+8*i+2*c}:{Y+8*i+2*c+1}], v{YA+c} offset1:4")
        if i == 2: a("s_waitcnt lgkmcnt(8)")
    for x in p2: a(x)
    for i in range(4):
        a(f"s_waitcnt lgkmcnt({min(8, 12-4*i)})")
        for e in range(2):
            t = H + 8*(2*i+e)
            for c in range(4): a(f"v_fma_f32 v{t+c}, v{t+4+c}, v{Y+8*i+2*c+e}, v{t+c}")
            a(f"v_cvt_pk_bf16_f32 v{Q+4*i+2*e}, v{t}, v{t+1}\nv_cvt_pk_bf16_f32 v{Q+4*i+2*e+1}, v{t+2}, v{t+3}")
        a(f"buffer_store_dwordx4 v[{Q+4*i}:{Q+4*i+3}], v{XA}, s[8:11], s7 offen sc1")
        if i < 3: a(f"s_add_u32 s7, s7, {16*36864}")
    a("s_branch F_JOIN")

    a("F_OTHER:")
    a.srd(32, "wout")
    def wo_issue():
        a(f"""
          s_mul_i32 s37, s36, 7282
          s_lshr_b32 s37, s37, 16
          s_mul_i32 s38, s37, 9
          s_sub_u32 s39, s36, s38
          s_lshl_b32 s44, s37, 2
          s_add_u32 s44, s44, s3
          s_mul_i32 s44, s44, {72*1152}
          s_lshl_b32 s45, s39, 7
          s_add_u32 s44, s44, s45
          s_mul_i32 s38, s38, 36864
          s_lshl_b32 s39, s39, 2
          s_add_u32 s39, s39, s3
          s_lshl_b32 s39, s39, 10
          s_add_u32 s38, s38, s39
          s_add_u32 s38, s38, {WOUTF}
          s_mul_i32 s45, s3, 9216
          s_add_u32 s45, s45, 81920
        """)
        for i in range(9):
            a(f"s_add_u32 m0, s45, {1024*i}\ns_nop 0")
            a(f"buffer_load_dwordx4 v245, s[32:35], s44 offen lds")
            if i < 8: a(f"s_add_u32 s44, s44, {8*1152}")
    def wo_finish():
        a("s_waitcnt vmcnt(0)\ns_barrier")
        for i in range(9):
            b1, b2 = (32*i, 32*i+16) if i < 4 else ((144+32*(i-4), 144+32*(i-4)+16) if i < 8 else (128, 272))
            r = 16 + 4*i
            a(f"ds_read_b64_tr_b16 v[{r}:{r+1}], v244 offset:{b1*128}")
            a(f"ds_read_b64_tr_b16 v[{r+2}:{r+3}], v244 offset:{b2*128}")
            if i == 4: a("s_waitcnt lgkmcnt(0)")
        a("s_waitcnt lgkmcnt(0)")
        for i in range(9):
            r = 16 + 4*i
            a(f"buffer_store_dwordx4 v[{r}:{r+3}], v3, s[8:11], s38 offen sc1")
            if i < 8: a("s_add_u32 s38, s38, 36864")
    a("""
      v_lshrrev_b32 v10, 3, v2
      v_and_b32 v11, 7, v2
      v_and_b32 v12, 6, v10
      v_xor_b32 v11, v11, v12
      v_lshlrev_b32 v11, 4, v11           ; chunk*16
      v_lshrrev_b32 v9, 2, v2
      v_lshlrev_b32 v9, 7, v9
      v_and_b32 v12, 3, v10
      v_xor_b32 v12, s3, v12
      v_lshl_add_u32 v9, v12, 5, v9
      v_and_b32 v12, 3, v2
      v_lshl_add_u32 v9, v12, 3, v9
      v_add_u32 v247, 36864, v9
      v_add_u32 v244, 81920, v9
      v_mul_u32_u24 v245, 1152, v10
      v_add_u32 v245, v245, v11
      s_mul_i32 s6, s3, 18432
      s_cmp_ge_u32 s2, 252
      s_cbranch_scc1 F_LAST
      s_cmp_lt_u32 s2, 216
      s_cbranch_scc1 F_WIN
    """)
    a.srd(12, "wmod"); a.srd(16, "c")
    MT = 73728
    a(f"""
      s_sub_u32 s4, s2, 216
      s_mov_b32 s36, s4
      s_mov_b32 s96, s4
      s_and_b32 s5, s4, 1                 ; half
      s_lshr_b32 s4, s4, 1                ; cbk
      s_mul_i32 s26, s5, 288
      v_and_b32 v6, 7, v0
      v_lshrrev_b32 v7, 3, v0
      v_add_u32 v10, s26, v7
      v_mul_u32_u24 v8, 6912, v10
      v_lshl_add_u32 v8, v6, 4, v8
      v_lshlrev_b32 v12, 1, v10
      s_add_u32 s20, s4, 27
      s_mov_b32 s21, s4
      s_add_u32 s22, s4, 18
      s_add_u32 s23, s4, 36
      s_cmp_lt_u32 s4, 9
      s_cselect_b32 s22, s22, s23
    """)
    C, T, AC = 16, 26, 36
    for i in range(9): a(f"buffer_load_ushort v{C+i}, v12, s[16:19], 0 offen offset:{64*i}")
    def mloads(r):
        b = 56 + 36*(r % 2)
        a(f"s_lshl_b32 s24, s{20+r}, 7")
        for i in range(9):
            a(f"buffer_load_dwordx4 v[{b+4*i}:{b+3+4*i}], v8, s[12:15], s24 offen")
            if i < 8: a(f"s_add_u32 s24, s24, {32*6912}")
    mloads(0)
    a(f"buffer_load_dword {NT}, {NT}, s[28:31], 0 offen sc1")
    a("s_waitcnt vmcnt(10)")
    for fmt in ("v_lshlrev_b32 v{c}, 16, v{c}", "v_mul_f32 v{t}, " + float_hex(-1.4426950408889634) + ", v{c}", "v_exp_f32 v{t}, v{t}", "v_add_f32 v{t}, 1.0, v{t}",
                "v_rcp_f32 v{t}, v{t}", "v_mul_f32 v{c}, v{c}, v{t}", "v_cvt_pk_bf16_f32 v{c}, v{c}, v{c}", "v_lshlrev_b32 v{c}, 16, v{c}"):
        for i in range(9): a(fmt.format(c=C+i, t=T+i))
    a(f"""
      v_lshlrev_b32 v13, 8, v1
      v_lshl_add_u32 v13, v6, 5, v13
      v_add_u32 v13, {MT}, v13
      v_lshlrev_b32 v14, 2, v2
      v_add_u32 v14, {MT}, v14
      v_lshlrev_b32 v15, 3, v2
      s_mul_i32 s25, s5, {3456*8}
      s_add_u32 s25, s25, {MODP}
      s_waitcnt vmcnt(0)
    """)
    check_nonce(a, "F_M", NT)
    for r in range(3):
        b = 56 + 36*(r % 2)
        if r > 0: a("s_waitcnt vmcnt(0)")
        if r < 2: mloads(r+1)
        else: wo_issue()
        for i in range(9):
            for dd in range(4):
                src = f"v{b+4*i+dd}"
                a(f"v_lshlrev_b32 v26, 16, {src}\nv_and_b32 v27, 0xffff0000, {src}")
                if i == 0: a(f"v_mul_f32 v{AC+2*dd}, v{C}, v26\nv_mul_f32 v{AC+1+2*dd}, v{C}, v27")
                else: a(f"v_fmac_f32 v{AC+2*dd}, v{C+i}, v26\nv_fmac_f32 v{AC+1+2*dd}, v{C+i}, v27")
        a("s_nop 1")
        for j in range(8): a(f"v_add_f32_dpp v{AC+j}, v{AC+j}, v{AC+j} row_ror:8 row_mask:0xf bank_mask:0xf")
        for sw in ("16", "32"):
            for j in range(8): a(f"v_mov_b32 v{44+j}, v{AC+j}")
            a("s_nop 1")
            for j in range(8): a(f"v_permlane{sw}_swap_b32 v{AC+j}, v{44+j}")
            a("s_nop 1")
            for j in range(8): a(f"v_add_f32 v{AC+j}, v{AC+j}, v{44+j}")
        a(f"""
          s_mov_b64 exec, 0xff
          ds_write_b128 v13, v[{AC}:{AC+3}] offset:{1024*r}
          ds_write_b128 v13, v[{AC+4}:{AC+7}] offset:{1024*r+16}
          s_mov_b64 exec, -1
          s_waitcnt lgkmcnt(0)
          s_barrier
          s_cmp_lg_u32 s3, {3-r}
          s_cbranch_scc1 F_MOD_N{r}
        """)
        for i in range(4): a(f"ds_read_b32 v{AC+i}, v14 offset:{1024*r + 256*i}")
        a(f"""
          s_lshl_b32 s24, s{20+r}, 9
          s_add_u32 s24, s24, s25
          s_waitcnt lgkmcnt(0)
          v_add_f32 v{AC}, v{AC}, v{AC+1}
          v_add_f32 v{AC+2}, v{AC+2}, v{AC+3}
          v_add_f32 v{AC}, v{AC}, v{AC+2}
          v_mov_b32 v{AC+1}, s42
          buffer_store_dwordx2 v[{AC}:{AC+1}], v15, s[8:11], s24 offen sc1
          s_nop 1
        F_MOD_N{r}:
        """)
        a(a.stamp(1+r))
    zero_gm()
    a(a.stamp(4))
    wo_finish()
    a("s_branch F_JOIN")
    TB = 73728
    a("F_WIN:")
    a.srd(20, "win"); a.srd(16, "ssmk")
    a(f"""
      s_sub_u32 s4, s2, 144
      s_lshr_b32 s5, s4, 3
      s_and_b32 s4, s4, 7
      s_mul_i32 s4, s4, 9
      s_add_u32 s4, s4, s5                ; unit
      s_mul_i32 s7, s3, {144*9216}
      s_lshl_b32 s5, s4, 7
      s_add_u32 s7, s7, s5
      v_mul_u32_u24 v10, 9216, v10
      v_add_u32 v11, v11, v10
      v_lshlrev_b32 v14, 4, v0
      s_lshl_b32 s5, s4, 15
    """)
    for i in range(8):
        a(f"buffer_load_dwordx4 v[16:19], v14, s[16:19], s5 offen")
        if i < 7: a("s_add_u32 s5, s5, 4096")
    for i in range(18):
        a(f"s_add_u32 m0, s6, {1024*i}\ns_nop 0")
        a(f"buffer_load_dwordx4 v11, s[20:23], s7 offen lds")
        if i < 17: a(f"s_add_u32 s7, s7, {8*9216}")
    zero_gm()
    get_nonce(a, "F_W", "v14")
    a(f"""
      v_add_u32 v7, 256, v0
      v_min_u32 v7, 287, v7
      v_lshlrev_b32 v12, 4, v0
      v_lshlrev_b32 v13, 4, v7
      s_mov_b32 s16, {MODP + 3*576*8}
      s_mov_b32 s17, {MODP + 3*576*8 + 3456*8}
      s_mov_b32 s18, {MODP + 4*576*8}
      s_mov_b32 s19, {MODP + 4*576*8 + 3456*8}
      s_mov_b32 s43, 0
    F_WG_POLL:
    """)
    for h in range(2):
        for i in range(4): a(f"buffer_load_dwordx4 v[{16+16*h+4*i}:{19+16*h+4*i}], v{12+h}, s[8:11], s{16+i} offen sc1")
    a("s_waitcnt vmcnt(0)\nv_xor_b32 v14, s42, v17")
    for r_ in range(19, 48, 2): a(f"v_xor_b32 v15, s42, v{r_}\nv_or_b32 v14, v14, v15")
    a(f"""
      v_cmp_ne_u32 vcc, 0, v14
      s_add_u32 s43, s43, 1
      s_cmp_ge_u32 s43, 0x80000
      s_cbranch_scc1 F_WG_GO
      s_nop 2
      s_cbranch_vccz F_WG_GO
      s_sleep {SLP}
      s_branch F_WG_POLL
    F_WG_GO:
    """)
    for h in range(2):
        b = 16 + 16*h; idx = ["v0", "v7"][h]
        a(f"""
          v_add_f32 v{b}, v{b}, v{b+4}
          v_add_f32 v{b+2}, v{b+2}, v{b+6}
          v_add_f32 v{b+8}, v{b+8}, v{b+12}
          v_add_f32 v{b+10}, v{b+10}, v{b+14}
          v_cvt_pk_bf16_f32 v{b}, v{b}, v{b+2}
          v_cvt_pk_bf16_f32 v{b+8}, v{b+8}, v{b+10}
          v_and_b32 v{b+9}, 0xffff0000, v{b+8}
          v_lshlrev_b32 v{b+8}, 16, v{b+8}
          v_add_f32 v{b+8}, 1.0, v{b+8}
          v_add_f32 v{b+9}, 1.0, v{b+9}
          v_cvt_pk_bf16_f32 v{b+8}, v{b+8}, v{b+9}
          v_and_b32 v{b+9}, 0xffff0000, v{b+8}
          v_lshlrev_b32 v{b+8}, 16, v{b+8}
          v_lshlrev_b32 v13, 3, {idx}
          v_lshlrev_b32 v14, 2, {idx}
          v_add_u32 v13, {TB}, v13
          v_add_u32 v14, {TB+3072}, v14
          ds_write_b64 v13, v[{b+8}:{b+9}]
          ds_write_b32 v14, v{b}
        """)
    a(f"""
      {a.stamp(1)}
      s_lshl_b32 s16, s4, 2
      s_add_u32 s16, s16, s3              ; fc
      s_cmp_ge_u32 s16, 144
      s_cselect_b32 s17, 144, 0
      s_cselect_b32 s18, 0, {18*9216}
      s_cselect_b32 s23, 1, 0             ; is z2
      s_sub_u32 s26, s16, s17             ; fcl
      s_mul_i32 s19, s26, 7282
      s_lshr_b32 s19, s19, 16             ; nt
      s_mul_i32 s20, s19, 9
      s_sub_u32 s20, s26, s20             ; j
      s_mul_i32 s19, s19, {36*9216}
      s_lshl_b32 s20, s20, 10
      s_add_u32 s19, s19, s20
      s_add_u32 s19, s19, s18
      s_add_u32 s27, s19, {WINF}
      v_lshlrev_b32 v12, 4, v5
      v_add_u32 v12, {TB}, v12
      v_lshlrev_b32 v13, 3, v5
      v_add_u32 v13, {TB+3072}, v13
      v_mov_b32 v14, 0
      v_mov_b32 v15, 0
      s_mov_b32 s21, 0x3f803f80
      s_waitcnt lgkmcnt(0)
      s_barrier
      {a.stamp(2)}
      s_lshr_b32 s36, s4, 1
      s_add_u32 s36, s36, 48
      s_bitcmp1_b32 s4, 0
      s_cselect_b32 s36, 72, s36
      s_sub_u32 s96, s4, 12
      s_cmp_lt_u32 s4, 48
      s_cselect_b32 s96, 64, s96
      s_cmp_eq_u32 s4, 37
      s_cselect_b32 s96, 60, s96
      s_cmp_eq_u32 s4, 39
      s_cselect_b32 s96, 61, s96
      s_cmp_eq_u32 s4, 41
      s_cselect_b32 s96, 62, s96
      s_cmp_eq_u32 s4, 45
      s_cselect_b32 s96, 63, s96
      s_cmp_ge_u32 s36, 72
      s_cbranch_scc1 F_WIN_R
    """)
    wo_issue()
    a("F_WIN_R:")
    def rd(ks):
        b = 16 + 16*(ks % 3); base = "v9" if ks < 9 else "v247"; k9 = ks % 9
        a(f"""
          ds_read_b64_tr_b16 v[{b}:{b+1}], {base} offset:{4096*k9}
          ds_read_b64_tr_b16 v[{b+2}:{b+3}], {base} offset:{4096*k9+2048}
          ds_read_b128 v[{b+4}:{b+7}], v12 offset:{128*ks}
          ds_read_b128 v[{b+8}:{b+11}], v12 offset:{128*ks+64}
          ds_read_b64 v[{b+12}:{b+13}], v13 offset:{64*ks}
          ds_read_b64 v[{b+14}:{b+15}], v13 offset:{64*ks+32}
        """)
    if Asm.STAMPS: a("s_waitcnt lgkmcnt(0)")
    rd(0); rd(1)
    for ks in range(18):
        b = 16 + 16*(ks % 3); t = 64; o = 72 + 4*(ks % 2)
        if ks + 2 < 18:
            a("s_waitcnt lgkmcnt(6)"); rd(ks+2)
        else: a(f"s_waitcnt lgkmcnt({6 if ks + 1 < 18 else 0})")
        for dd in range(4):
            a(f"v_lshlrev_b32 v{t+2*dd}, 16, v{b+dd}\nv_and_b32 v{t+1+2*dd}, 0xffff0000, v{b+dd}")
        for dd in range(4): a(f"v_dot2c_f32_bf16 v15, v{b+dd}, v{b+12+dd}")
        for dd in range(4): a(f"v_pk_mul_f32 v[{t+2*dd}:{t+1+2*dd}], v[{t+2*dd}:{t+1+2*dd}], v[{b+4+2*dd}:{b+5+2*dd}]")
        for dd in range(4): a(f"v_cvt_pk_bf16_f32 v{o+dd}, v{t+2*dd}, v{t+1+2*dd}")
        a(f"buffer_store_dwordx4 v[{o}:{o+3}], v3, s[8:11], s27 offen sc1")
        for dd in range(4): a(f"v_dot2c_f32_bf16 v14, s21, v{o+dd}")
        if ks < 17: a("s_add_u32 s27, s27, 9216")
    a("s_nop 2")
    for sw in ("16", "32"):
        a(f"""
          v_mov_b32 v16, v14
          v_mov_b32 v17, v15
          s_nop 1
          v_permlane{sw}_swap_b32 v14, v16
          v_permlane{sw}_swap_b32 v15, v17
          s_nop 1
          v_add_f32 v14, v14, v16
          v_add_f32 v15, v15, v17
        """)
    a(f"""
      {a.stamp(3)}
      v_lshlrev_b32 v16, 2, v4
      v_lshlrev_b32 v17, 3, v4
      s_mov_b64 exec, 0xffff
      s_cmp_eq_u32 s23, 1
      s_cbranch_scc1 F_WIN_Z2
      s_lshl_b32 s16, s26, 6
      s_add_u32 s16, s16, {UV1}
      buffer_store_dword v14, v16, s[8:11], s16 offen sc1
      s_add_u32 s16, s16, 9216
      buffer_store_dword v15, v16, s[8:11], s16 offen sc1
      s_branch F_WIN_E
    F_WIN_Z2:
      s_lshl_b32 s16, s26, 7
      s_add_u32 s16, s16, {UV2}
      buffer_store_dwordx2 v[14:15], v17, s[8:11], s16 offen sc1
    F_WIN_E:
      s_mov_b64 exec, -1
      s_cmp_ge_u32 s36, 72
      s_cbranch_scc1 F_JOIN
      s_branch F_WO_F
    F_LAST:
    """)
    if 'cwi' in X:
        a(CWS.format(n=0, K=KNAME, end="GM_CODE_END") + "v_lshlrev_b32 v8, 7, v0\ns_mov_b32 s5, 32768\ns_mov_b32 s7, 65536\nbuffer_load_dword v246, v8, s[12:15], 0 offen\nbuffer_load_dword v246, v8, s[12:15], s5 offen\nbuffer_load_dword v246, v8, s[12:15], s7 offen")
    zero_gm()
    a("s_mov_b32 s42, 0\ns_sub_u32 s36, s2, 216\nF_WO:\ns_barrier")
    wo_issue()
    a("F_WO_F:")
    wo_finish()
    a("s_add_u32 s36, s36, 4\ns_cmp_lt_u32 s36, 48\ns_cbranch_scc1 F_WO\ns_cmp_lg_u32 s42, 0\ns_cbranch_scc1 F_JOIN")
    get_nonce(a, "F_L", "v14")
    a("F_JOIN:")
    a(a.stamp(6))
```

```python
from gen_common import *
from gen_g import VM, WAIT, resolve, emit
from gen_f import poll, get_nonce, check_nonce, CH_LDS, KCS, URO, URS, YO, YS, QO, BIG, FU, FH2
import os
X = os.environ.get('X', '').split(',')
FD = FLF + 768*128
STL = QO + 18432
L0, NT = "v250", "v251"
KNAME = "adaLN_cond__ssm_conv_h3__mixer_gmlp__prompt_kernel"

CWS = '''
      s_getpc_b64 s[12:13]
    F_PC{n}:
      s_sub_u32 s12, s12, F_PC{n}-{K}
      s_subb_u32 s13, s13, 0
      s_and_b32 s13, s13, 0xffff
      s_mov_b32 s14, {end}-{K}
      s_mov_b32 s15, 0x20000
'''
def red32x2(a, r0, r1, t0, t1):
    for op in ("quad_perm:[1,0,3,2]", "quad_perm:[2,3,0,1]", "row_half_mirror", "row_mirror"):
        a(f"s_nop 0\nv_add_f32_dpp {r0}, {r0}, {r0} {op} row_mask:0xf bank_mask:0xf\nv_add_f32_dpp {r1}, {r1}, {r1} {op} row_mask:0xf bank_mask:0xf")
    a(f"""
      v_mov_b32 {t0}, {r0}
      v_mov_b32 {t1}, {r1}
      s_nop 1
      v_permlane16_swap_b32 {r0}, {t0}
      v_permlane16_swap_b32 {r1}, {t1}
      s_nop 1
      v_add_f32 {r0}, {r0}, {t0}
      v_add_f32 {r1}, {r1}, {t1}
    """)

def gen_front(a):
    a.begin(KNAME)
    a(f"s_cmp_ge_u32 s2, 256\ns_cbranch_scc1 GM_END")
    a(a.stamp(0))
    a.load_args()
    a(f"""
      s_memrealtime s[40:41]
      s_and_b32 s4, s2, 7
      s_mul_i32 s4, s4, 18
      s_lshr_b32 s5, s2, 3
      s_add_u32 s4, s4, s5
      s_and_b32 s5, s4, 15                ; rb
      s_lshr_b32 s6, s4, 4                ; cb
      v_and_b32 v4, 15, v0
      v_lshrrev_b32 v6, 4, v0
      s_lshl_b32 s7, s5, 7
      v_lshl_add_u32 v8, v6, 3, s7        ; s0
      s_lshl_b32 s7, s6, 7
      v_lshl_add_u32 v9, v4, 3, s7
      v_mul_u32_u24 v11, 1152, v8
      v_add_u32 v11, v11, v9              ; row s0
      v_subrev_u32 v10, 4608, v11         ; row s0-4
      v_add_u32 v12, 4608, v11
      v_lshlrev_b32 v15, 2, v9
      s_cmp_ge_u32 s2, 144
      s_waitcnt lgkmcnt(0)
      s_cbranch_scc1 F_COMMON
    """)
    a.srd(20, "shk")
    a("buffer_load_dwordx4 v[16:19], v15, s[20:23], 0 offen\nbuffer_load_dwordx4 v[20:23], v15, s[20:23], 0 offen offset:16")
    a.srd(12, "k"); a.srd(16, "v")
    KR, VR, SQ, SH, KU, VU, RES, PK = 24, 48, 224, 64, 80, 128, 160, 192
    seq0 = []
    for i in range(1, 12):
        seq0.append(VM(f"buffer_load_dwordx2 v[{KR+2*i}:{KR+2*i+1}], v{10+i//4}, s[12:15], 0 offen offset:{1152*(i%4)}", ("k", i)))
        if i >= 4: seq0.append(VM(f"buffer_load_dwordx2 v[{VR+2*(i-4)}:{VR+2*(i-4)+1}], v{10+i//4}, s[16:19], 0 offen offset:{1152*(i%4)}", ("v", i)))
    emit(a, seq0)
    a("""
    F_COMMON:
      s_mov_b32 s96, 64
      v_lshrrev_b32 v1, 6, v0
      v_and_b32 v2, 63, v0                ; lane
      v_readfirstlane_b32 s3, v1          ; wave
      v_lshlrev_b32 v3, 4, v2             ; lane*16
      v_lshrrev_b32 v5, 4, v2             ; g
    """)
    a.srd(8, "ws"); a.srd(28, "dbg", 256)
    a(f"v_cmp_eq_u32 vcc, 0, v2\nv_mov_b32 {L0}, {BIG}\nv_mov_b32 {NT}, 0\nv_cndmask_b32 {L0}, {L0}, 0, vcc")
    a(f"""
      s_cmp_lg_u32 s2, 255
      s_cbranch_scc1 F_NOTAG
      s_cmp_lg_u32 s3, 0
      s_cbranch_scc1 F_NOTAG
      s_mul_i32 s41, s41, 0x9e3779b1
      s_xor_b32 s40, s40, s41
      s_or_b32 s40, s40, 1
      v_mov_b32 v8, s40
      buffer_store_dword v8, {L0}, s[28:31], 0 offen sc1
    F_NOTAG:
      s_cmp_ge_u32 s2, 144
      s_cbranch_scc1 F_OTHER
    """)
    def zero_gm():
        a(f"""
          v_mov_b32 v248, 0
          v_lshlrev_b32 v249, 2, v0
          s_lshl_b32 s46, s2, 10
          s_add_u32 s46, s46, {ST2}
          buffer_store_dword v248, v249, s[8:11], s46 offen sc1
          s_lshl_b32 s46, s2, 2
          s_add_u32 s46, s46, s3
          s_lshl_b32 s46, s46, 7
          s_add_u32 s46, s46, {FLB}
          buffer_store_dword v248, {L0}, s[8:11], s46 offen sc1
          s_add_u32 s46, s46, {FLP-FLB}
          buffer_store_dword v248, {L0}, s[8:11], s46 offen sc1
        """)
    a.srd(24, "q"); a.srd(32, "ssmk")
    MK = "s97"
    seq = [VM("; ", "sh1")]
    seq += f"""
      s_mov_b32 {MK}, 0xffff0000
      s_mul_i32 s38, s3, {CH_LDS}
      s_lshl_b32 s7, s4, 2
      s_add_u32 s7, s7, s3
      s_lshl_b32 s44, s7, 12
      s_mul_i32 s46, s7, {4*1152}         ; q rows 16cg + 4w + g
      v_sub_u32 v13, 15, v6
      v_and_b32 v11, 7, v4
      v_xor_b32 v13, v13, v11
      v_lshlrev_b32 v13, 4, v13
      v_lshl_add_u32 v13, v4, 10, v13
      v_add_u32 v13, {YO}, v13
      v_mul_u32_u24 v15, 1152, v5
      v_lshl_add_u32 v15, v4, 3, v15
      s_mov_b32 s7, 0""".split("\n")
    def kcopy(t):
        return [f"s_add_u32 m0, s38, {t*KCS + 60 - 4*t}", "s_nop 0"] + [VM(f"buffer_load_dwordx4 v3, s[32:35], s44 offen offset:{1024*i} lds", ("K", t, i)) for i in range(4)]
    seq += [WAIT(["sh1"]), a.stamp(1)]
    seq += [VM(f"buffer_load_dwordx2 v[{SQ+2*i}:{SQ+2*i+1}], v15, s[24:27], s46 offen offset:{128*i}", ("sq", i)) for i in range(9)] + kcopy(0)
    seq.append("F_KV:")
    for j in range(4):
        op = "v_lshlrev_b32 {d}, 16, {s}" if j % 2 == 0 else "v_and_b32 {d}, " + MK + ", {s}"
        seq += [op.format(d=f"v{SH+2*j}", s=f"v{16+j//2}"), op.format(d=f"v{SH+1+2*j}", s=f"v{18+j//2}")]
    for i in range(1, 12): seq += [f"v_lshlrev_b32 v{KU+2*i}, 16, v{KR+2*i}", f"v_and_b32 v{KU+1+2*i}, {MK}, v{KR+2*i}", f"v_mov_b32 v{KR+2*i}, v{KR+2*i+1}"]
    for i in range(8): seq += [f"v_lshlrev_b32 v{VU+2*i}, 16, v{VR+2*i}", f"v_and_b32 v{VU+1+2*i}, {MK}, v{VR+2*i}", f"v_mov_b32 v{VR+2*i}, v{VR+2*i+1}"]
    seq += [f"v_mov_b32 v{16+i}, v{20+i}" for i in range(4)]
    for i in range(8):
        d = f"v[{RES+2*i}:{RES+1+2*i}]"
        kk = lambda j: f"v[{KU+2*(i+4-j)}:{KU+1+2*(i+4-j)}]"
        seq.append(f"v_pk_mul_f32 {d}, {kk(3)}, v[{SH+6}:{SH+7}]")
        for j in (2, 1, 0): seq.append(f"v_pk_fma_f32 {d}, {kk(j)}, v[{SH+2*j}:{SH+1+2*j}], {d}")
        seq.append(f"v_pk_mul_f32 {d}, {d}, v[{VU+2*i}:{VU+1+2*i}]")
    for ch in range(2):
        p = PK + 4*ch
        for dd in range(4): seq.append(f"v_cvt_pk_bf16_f32 v{p+dd}, v{RES+2*(7-2*dd)+ch}, v{RES+2*(6-2*dd)+ch}")
        seq.append(f"ds_write_b128 v13, v[{p}:{p+3}] offset:{ch*256}")
    seq += ["v_add_u32 v13, 512, v13", "s_xor_b32 s7, s7, 1", "s_cbranch_scc1 F_KV"]
    seq.append(VM(f"buffer_load_dword {NT}, {NT}, s[28:31], 0 offen sc1", "nt"))
    seq += f"""
      v_xor_b32 v12, v4, v1
      v_lshlrev_b32 v12, 4, v12
      v_lshl_add_u32 v12, v6, 8, v12
      v_add_u32 v12, {YO}, v12
      v_xor_b32 v10, 64, v12
      v_lshlrev_b32 v11, 12, v6
      v_lshl_add_u32 v11, v4, 4, v11
      s_lshl_b32 s46, s6, 18
      s_sub_u32 s47, 15, s5
      s_lshl_b32 s47, s47, 8
      s_add_u32 s46, s46, s47
      s_waitcnt lgkmcnt(0)
      s_barrier""".split("\n")
    assert UR == 0
    for i in range(4): seq.append(f"ds_read_b128 v[{60+4*i}:{63+4*i}], {['v12','v10'][i%2]} offset:{4096*i}")
    for i in range(4):
        seq += [f"s_waitcnt lgkmcnt({3-i})", VM(f"buffer_store_dwordx4 v[{60+4*i}:{63+4*i}], v11, s[8:11], s46 offen sc1", ("ur", i))]
        if i < 3: seq.append(f"s_add_u32 s46, s46, {16*4096}")
    for t in range(1, 4): seq += kcopy(t)
    seq += f"""
      s_mov_b32 s45, s44
      v_and_b32 v7, 31, v0
      v_lshrrev_b32 v8, 1, v6
      v_and_b32 v9, 7, v4
      v_xor_b32 v8, v8, v9
      v_and_b32 v9, 1, v5
      v_lshlrev_b32 v9, 3, v9
      v_lshl_add_u32 v9, v4, 7, v9
      v_lshl_add_u32 v10, v8, 4, v9
      v_add_u32 v10, {QO}, v10""".split("\n")
    seq.append(WAIT([("sq", 8)]))
    U = 80
    for i in range(9): seq.append(f"ds_write_b64 v10, v[{SQ+2*i}:{SQ+2*i+1}] offset:{2048*i}")
    for i in range(18): seq += [f"v_lshlrev_b32 v{U+2*i}, 16, v{SQ+i}", f"v_and_b32 v{U+1+2*i}, {MK}, v{SQ+i}"]
    seq.append(f"v_pk_add_f32 v[16:17], v[{U}:{U+1}], v[{U+2}:{U+3}]")
    for i in range(2, 18): seq.append(f"v_pk_add_f32 v[16:17], v[16:17], v[{U+2*i}:{U+1+2*i}]")
    seq += ["v_add_f32 v16, v16, v17", WAIT([("ur", 3)])]
    resolve(seq); emit(a, seq)
    check_nonce(a, "F_C", NT)
    a(f"""
      {a.stamp(2)}
      v_mov_b32 v24, s42
      s_lshr_b32 s7, s44, 5
      s_add_u32 s7, s7, {FU}
      buffer_store_dword v24, {L0}, s[8:11], s7 offen sc1
    """)
    def red16(r):
        for rot in (8, 4, 2, 1): a(f"s_nop 1\nv_add_f32_dpp {r}, {r}, {r} row_ror:{rot} row_mask:0xf bank_mask:0xf")
    red16("v16")
    a(f"v_mul_f32 v16, {float_hex(1.0/576)}, v16")
    for i in range(18): a(f"v_pk_add_f32 v[{U+2*i}:{U+1+2*i}], v[{U+2*i}:{U+1+2*i}], v[16:17] op_sel_hi:[1,0] neg_lo:[0,1] neg_hi:[0,1]")
    a(f"v_pk_mul_f32 v[20:21], v[{U}:{U+1}], v[{U}:{U+1}]")
    for i in range(1, 18): a(f"v_pk_fma_f32 v[20:21], v[{U+2*i}:{U+1+2*i}], v[{U+2*i}:{U+1+2*i}], v[20:21]")
    a("v_add_f32 v20, v20, v21")
    red16("v20")
    a(f"""
      v_mov_b32 v21, {float_hex(1e-5)}
      v_fmac_f32 v21, {float_hex(1.0/576)}, v20
      v_rsq_f32 v20, v21
      v_lshlrev_b32 v8, 3, v6
      v_add_u32 v8, {STL}, v8
      v_mul_f32 v21, -v16, v20
      ds_write_b64 v8, v[20:21]
      v_subrev_u32 v10, 64, v0
      v_lshrrev_b32 v10, 3, v10
      v_and_b32 v11, 7, v2
      v_xor_b32 v12, v11, v10
      v_and_b32 v12, 7, v12
      v_lshlrev_b32 v12, 4, v12
      v_lshl_add_u32 v12, v10, 7, v12
      v_add_u32 v12, {QO}, v12
      v_lshlrev_b32 v10, 14, v10
      v_lshl_add_u32 v10, v11, 4, v10
      s_lshl_b32 s47, s4, 7
      s_add_u32 s46, s47, {ST1}
      s_add_u32 s47, s47, {QP}
      s_waitcnt lgkmcnt(0)
      s_barrier
      s_cmp_ge_u32 s4, 128
      s_cbranch_scc1 F_Q_SKIP
      s_cmp_eq_u32 s3, 0
      s_cbranch_scc1 F_Q_SKIP
    """)
    for i in range(6): a(f"ds_read_b128 v[{60+4*i}:{63+4*i}], v12 offset:{3072*i}")
    for i in range(6):
        a(f"s_waitcnt lgkmcnt({5-i})")
        a(f"buffer_store_dwordx4 v[{60+4*i}:{63+4*i}], v10, s[8:11], s47 offen sc1")
        if i < 5: a(f"s_add_u32 s47, s47, {24*16384}")
    a(f"""
      s_cmp_lg_u32 s3, 2
      s_cbranch_scc1 F_Q_SKIP
      v_lshlrev_b32 v11, 4, v11
      v_add_u32 v12, {STL}, v11
      ds_read_b128 v[84:87], v12
      s_mov_b64 exec, 0xff
      s_waitcnt lgkmcnt(0)
      buffer_store_dwordx4 v[84:87], v11, s[8:11], s46 offen sc1
      s_mov_b64 exec, -1
    F_Q_SKIP:
    """)
    p = a.ptr("ssmD")
    Q, STT, MD, HP, XA, YA = 176, 192, 208, 220, 222, 242
    a(f"""
      s_lshl_b32 s7, s4, 3
      s_load_dwordx2 s[20:21], s[{p}:{p+1}], s7
      s_lshl_b32 s7, s6, 6
      s_and_b32 s22, s4, 3
      s_add_u32 s7, s7, s22
      v_lshl_add_u32 v14, v4, 2, s7
      v_lshlrev_b32 v14, 7, v14
      v_add_u32 v14, {FU}, v14
      v_mov_b32 v8, 0
      v_mov_b32 v9, 0
      v_mov_b32 v10, 0
      v_mov_b32 v11, 0
      v_mul_u32_u24 v12, {KCS}, v5
      v_lshl_add_u32 v12, v4, 2, v12
      v_add_u32 v12, s38, v12
      v_add_u32 v13, v4, v5
      v_lshrrev_b32 v16, 5, v2
      v_mul_u32_u24 v16, {URS}, v16
      v_lshl_add_u32 v16, v7, 4, v16
      v_add_u32 v16, s38, v16
      v_cmp_gt_u32 vcc, 15, v13
      s_and_saveexec_b64 s[46:47], vcc
      ds_write_b32 v12, v8
      s_mov_b64 exec, s[46:47]
      v_cmp_gt_u32 vcc, 28, v7
      s_and_saveexec_b64 s[46:47], vcc
      ds_write_b128 v16, v[8:11] offset:{URO+4096}
      s_mov_b64 exec, s[46:47]
      v_and_b32 v12, 3, v4
      v_mul_u32_u24 v12, {KCS}, v12
      v_lshrrev_b32 v13, 2, v4
      v_add_u32 v13, v13, v5
      v_lshl_add_u32 v12, v13, 4, v12
      v_add_u32 v12, s38, v12
      v_lshrrev_b32 v13, 3, v4
      v_mul_u32_u24 v13, {URS}, v13
      v_lshl_add_u32 v13, v5, 4, v13
      v_and_b32 v16, 7, v4
      v_lshlrev_b32 v16, 6, v16
      v_sub_u32 v13, v13, v16
      s_add_u32 s7, s38, {URO + 448}
      v_add_u32 v13, s7, v13
      v_lshrrev_b32 v15, 3, v2
      v_lshlrev_b32 v15, 5, v15
      v_and_b32 v16, 7, v2
      s_lshl_b32 s7, s3, 3
      v_add3_u32 v15, v15, v16, s7
      v_and_b32 v16, 3, v2
      v_lshlrev_b32 v15, 7, v15
      v_add_u32 v15, {FH2}, v15
      v_bfe_u32 v17, v2, 3, 2
      v_min_u32 v17, 2, v17
      v_mul_u32_u24 v17, 576, v17
      v_bfe_u32 v18, v2, 2, 1
      v_mul_u32_u24 v18, 3456, v18
      s_lshl_b32 s7, s4, 2
      v_add3_u32 v16, v16, v17, v18
      v_add_u32 v16, s7, v16
      v_lshlrev_b32 v16, 3, v16
      v_add_u32 v16, {MODP}, v16
      v_cmp_gt_u32 vcc, 32, v2
      v_lshlrev_b32 v{HP+1}, 4, v0
      v_lshrrev_b32 v17, 4, v0
      v_cndmask_b32 v{HP}, v16, v15, vcc
      v_mul_u32_u24 v{YA}, 144, v17
      v_bfe_u32 v15, v0, 2, 2             ; (s>>3)&3
      v_and_b32 v16, 3, v0                ; (s>>1)&3
      v_lshl_add_u32 v16, v15, 3, v16
      v_lshl_add_u32 v{YA}, v16, 2, v{YA}
      v_add_u32 v{YA}, {YO}, v{YA}
      v_mul_u32_u24 v{XA}, 36864, v17
      v_bfe_u32 v16, v0, 1, 1             ; tau = (s>>2)&1
      v_mul_u32_u24 v16, 18432, v16
      v_add_u32 v{XA}, v{XA}, v16
      v_lshl_add_u32 v{XA}, v15, 5, v{XA}
      v_and_b32 v15, 1, v0
      v_lshl_add_u32 v{XA}, v15, 4, v{XA}
      v_add_u32 v{YA+1}, {YS}, v{YA}
      v_add_u32 v{YA+2}, {2*YS}, v{YA}
      v_add_u32 v{YA+3}, {3*YS}, v{YA}
      v_and_b32 v6, 7, v4
      v_mul_u32_u24 v6, 144, v6
      v_lshl_add_u32 v6, v5, 5, v6
      v_lshrrev_b32 v15, 3, v4
      v_lshl_add_u32 v6, v15, 4, v6
      s_mul_i32 s7, s3, {YS}
      s_add_u32 s7, s7, {YO}
      v_add_u32 v6, s7, v6
      s_lshl_b32 s36, s4, 14
      s_add_u32 s36, s36, {QP}
      s_mov_b32 s37, {ST1}
      s_waitcnt lgkmcnt(0)
      s_cmp_ge_u32 s3, 2
      s_cselect_b32 s7, s21, s20
      s_and_b32 s22, s3, 1
      s_lshl_b32 s22, s22, 4
      s_lshr_b32 s7, s7, s22
      s_and_b32 s7, s7, 0xffff
      v_mov_b32 v15, s7
      v_lshl_add_u32 v16, v5, 2, v4
    """)
    for dd in range(4):
        a(f"v_cmp_eq_u32 vcc, {15-dd}, v16\ns_nop 1\nv_cndmask_b32 v{8+dd}, 0, v15, vcc")
    ACC = 16; FR = [48, 112]
    def reads(buf, r, which="AB"):
        out = []
        for i in range(8):
            if "B" in which: out.append(f"ds_read_b128 v[{FR[buf]+32+4*i}:{FR[buf]+35+4*i}], v13 offset:{64*r + 512*(7-i)}")
            if "A" in which: out.append(f"ds_read_b128 v[{FR[buf]+4*i}:{FR[buf]+3+4*i}], v12 offset:{64*r + 512*i}")
        return out
    def mfmas(buf):
        out = []
        for p_ in range(8):
            for q_ in range(8 - p_):
                j = p_ + q_
                out.append(f"v_mfma_f32_16x16x32_bf16 v[{ACC+4*j}:{ACC+4*j+3}], v[{FR[buf]+4*p_}:{FR[buf]+4*p_+3}], v[{FR[buf]+32+4*q_}:{FR[buf]+35+4*q_}], v[{ACC+4*j}:{ACC+4*j+3}]")
        return out
    a("s_cmp_lg_u32 s3, 0\ns_cbranch_scc1 F_U_GO")
    poll(a, "F_U", "v14", "v15", slp=1)
    a(f"""
      s_waitcnt vmcnt(0)
      s_barrier
      {a.stamp(3)}
    """)
    UB = 112
    for i in range(4):
        a(f"buffer_load_dwordx4 v[{UB+8*i}:{UB+8*i+3}], v3, s[8:11], s45 offen offset:{1024*i} sc1")
        a(f"buffer_load_dword v{UB+8*i+4}, v3, s[8:11], s45 offen offset:{1024*i+16} sc1")
    a(f"""
      s_lshl_b32 s7, s4, 7
      s_add_u32 s7, s7, {FH2}
      s_cmp_lg_u32 s3, 1
      s_cselect_b32 s7, 0x40000000, s7
      buffer_store_dword v24, {L0}, s[8:11], s7 offen offset:4 sc1
    """)
    a(f"s_add_u32 s7, s38, {URO}\nv_add_u32 v14, s7, v3\nv_cmp_eq_u32 vcc, 63, v2")
    for x in reads(0, 0, "A"): a(x)
    zero_gm()
    if 'nocwm' not in X:
        a(CWS.format(n=2, K=KNAME, end="GM_CODE_END") + "s_lshr_b32 s7, s2, 3\ns_lshl_b32 s7, s7, 7\nv_mul_u32_u24 v7, 2304, v0\nbuffer_load_dword v246, v7, s[12:15], s7 offen")
    for i in range(4):
        b = UB + 8*i
        a(f"s_waitcnt vmcnt({11-2*i})")
        if i == 3: a(f"v_cndmask_b32 v{b+4}, v{b+4}, 0, vcc")
        a(f"ds_write_b128 v14, v[{b}:{b+3}] offset:{URS + 1024*i}")
        for d_ in range(4): a(f"v_alignbit_b32 v{144+4*i+d_}, v{b+d_+1}, v{b+d_}, 16")
        a(f"ds_write_b128 v14, v[{144+4*i}:{147+4*i}] offset:{1024*i}")
        if i == 1: a("s_waitcnt lgkmcnt(0)")
    a("s_waitcnt lgkmcnt(0)")
    a(a.stamp(4))
    for x in reads(0, 0, "B"): a(x)
    a("s_waitcnt lgkmcnt(0)")
    for q_ in range(8):
        a(f"v_mfma_f32_16x16x32_bf16 v[{ACC+4*q_}:{ACC+4*q_+3}], v[8:11], v[{FR[0]+32+4*q_}:{FR[0]+35+4*q_}], 0")
    hp = f"buffer_load_dwordx2 v[14:15], v{HP}, s[8:11], 0 offen sc1"
    a("s_mov_b32 s7, 0\nF_CLOOP:")
    for x in interleave(mfmas(0), reads(1, 1) + [hp], per=1): a(x)
    a("s_waitcnt lgkmcnt(0)")
    for x in interleave(mfmas(1), reads(0, 2), per=1): a(x)
    a(f"""
      v_add_u32 v12, 128, v12
      v_add_u32 v13, 128, v13
      s_add_u32 s7, s7, 1
      s_cmp_lt_u32 s7, 2
      s_waitcnt lgkmcnt(0)
      s_cbranch_scc1 F_CLOOP
      s_mov_b32 s43, 0
    F_HR_CHK:
      s_waitcnt vmcnt(0)
      v_cmp_ne_u32 vcc, s42, v15
      s_add_u32 s43, s43, 1
      s_cmp_ge_u32 s43, 0x80000
      s_cbranch_scc1 F_HR_GO
      s_nop 2
      s_cmp_eq_u32 vcc_lo, 0
      s_cbranch_scc1 F_HR_GO
      s_sleep {SLP}
      {hp}
      s_branch F_HR_CHK
    F_HR_GO:
    """)
    ql = []
    for i in range(4):
        ql += [f"buffer_load_dwordx4 v[{STT+4*i}:{STT+3+4*i}], v{HP+1}, s[8:11], s37 offen sc1",
               f"buffer_load_dwordx4 v[{Q+4*i}:{Q+3+4*i}], v{HP+1}, s[8:11], s36 offen sc1"]
        if i < 3: ql += ["s_add_u32 s37, s37, 4096", "s_add_u32 s36, s36, 4096"]
    def mix(r_, q_):
        o = []
        for i in range(max(len(r_), len(q_))): o += r_[i:i+1] + q_[i:i+1]
        return o
    for x in interleave(mfmas(0), mix(reads(1, 1), ql), per=1): a(x)
    a("s_waitcnt lgkmcnt(0)")
    for x in interleave(mfmas(1), reads(0, 2), per=1): a(x)
    a("s_waitcnt lgkmcnt(0)")
    for x in interleave(mfmas(0), reads(1, 3) + [hp], per=1): a(x)
    a("s_waitcnt lgkmcnt(0)")
    H = 48
    pre = """v_add_f32_dpp v14, v14, v14 row_shl:4 row_mask:0xf bank_mask:0xf
      v_bfe_u32 v15, v2, 3, 2
      v_cmp_eq_u32 vcc, 1, v15
      v_cvt_pk_bf16_f32 v14, v14, v14
      v_lshlrev_b32 v14, 16, v14
      v_cndmask_b32 v15, 0, 1.0, vcc
      v_add_f32 v14, v14, v15
      v_cvt_pk_bf16_f32 v14, v14, v14
      v_lshlrev_b32 v14, 16, v14
      s_nop 0""".split("\n")
    pre += [f"v_readlane_b32 s{12+i}, v14, {32 + 8*(i//4) + i%4}" for i in range(12)]
    pre += ["s_lshl_b32 s7, s4, 7", f"s_add_u32 s7, s7, {X1F}"]
    pre += [f"v_mov_b32 v{MD+8+c}, s{20+c}" for c in range(4)]
    pre += [f"v_mul_f32 v{MD+c}, s{12+c}, v{MD+8+c}" for c in range(4)] + [f"v_mul_f32 v{MD+4+c}, s{16+c}, v{MD+8+c}" for c in range(4)]
    p1 = ["s_waitcnt vmcnt(1)"]; p2 = []
    for i in range(8):
        q0, q1 = Q+2*i, Q+1+2*i
        t = H + 8*i
        p1 += [f"v_lshlrev_b32 v{t}, 16, v{q0}", f"v_and_b32 v{t+1}, 0xffff0000, v{q0}", f"v_lshlrev_b32 v{t+2}, 16, v{q1}", f"v_and_b32 v{t+3}, 0xffff0000, v{q1}"]
        p1 += [f"v_fma_f32 v{t+4+c}, v{t+c}, v{STT+2*i}, v{STT+2*i+1}" for c in range(4)]
        p2 += [f"v_pk_fma_f32 v[{t+4+c}:{t+5+c}], v[{t+4+c}:{t+5+c}], v[{MD+4+c}:{MD+5+c}], v[{MD+c}:{MD+1+c}]" for c in (0, 2)]
    for x in interleave(mfmas(1), p1): a(x)
    a(a.stamp(5))
    a("s_waitcnt vmcnt(0)\nv_cmp_ne_u32 vcc, s42, v15")
    wr = [f"ds_write_b128 v6, v[{ACC+4*j}:{ACC+4*j+3}] offset:{j*8*144}" for j in range(8)]
    for x in wr[:6]: a(x)
    a("s_cbranch_vccz F_HP_GO")
    poll(a, "F_HP", f"v{HP}", "v15", pair="v[14:15]")
    for x in wr[6:] + pre + ["s_waitcnt lgkmcnt(0)", "s_barrier"]: a(x)
    Y = 112
    for c in range(4): a(f"ds_read2_b32 v[{Y+2*c}:{Y+2*c+1}], v{YA+c} offset1:4")
    for i in range(1, 4):
        for c in range(4): a(f"v_add_u32 v{YA+c}, {16*144}, v{YA+c}\nds_read2_b32 v[{Y+8*i+2*c}:{Y+8*i+2*c+1}], v{YA+c} offset1:4")
        if i == 2: a("s_waitcnt lgkmcnt(8)")
    for x in p2: a(x)
    for i in range(4):
        a(f"s_waitcnt lgkmcnt({min(8, 12-4*i)})")
        for e in range(2):
            t = H + 8*(2*i+e)
            for c in range(4): a(f"v_fma_f32 v{t+c}, v{t+4+c}, v{Y+8*i+2*c+e}, v{t+c}")
            a(f"v_cvt_pk_bf16_f32 v{Q+4*i+2*e}, v{t}, v{t+1}\nv_cvt_pk_bf16_f32 v{Q+4*i+2*e+1}, v{t+2}, v{t+3}")
        a(f"buffer_store_dwordx4 v[{Q+4*i}:{Q+4*i+3}], v{XA}, s[8:11], s7 offen sc1")
        if i < 3: a(f"s_add_u32 s7, s7, {16*36864}")
    a("s_branch F_JOIN")

    a("F_OTHER:")
    a.srd(32, "wout")
    def wo_issue():
        a(f"""
          s_mul_i32 s37, s36, 7282
          s_lshr_b32 s37, s37, 16
          s_mul_i32 s38, s37, 9
          s_sub_u32 s39, s36, s38
          s_lshl_b32 s44, s37, 2
          s_add_u32 s44, s44, s3
          s_mul_i32 s44, s44, {72*1152}
          s_lshl_b32 s45, s39, 7
          s_add_u32 s44, s44, s45
          s_mul_i32 s38, s38, 36864
          s_lshl_b32 s39, s39, 2
          s_add_u32 s39, s39, s3
          s_lshl_b32 s39, s39, 10
          s_add_u32 s38, s38, s39
          s_add_u32 s38, s38, {WOUTF}
          s_mul_i32 s45, s3, 9216
          s_add_u32 s45, s45, 81920
        """)
        for i in range(9):
            a(f"s_add_u32 m0, s45, {1024*i}\ns_nop 0")
            a(f"buffer_load_dwordx4 v245, s[32:35], s44 offen lds")
            if i < 8: a(f"s_add_u32 s44, s44, {8*1152}")
    def wo_finish():
        a("s_waitcnt vmcnt(0)\ns_barrier")
        for i in range(9):
            b1, b2 = (32*i, 32*i+16) if i < 4 else ((144+32*(i-4), 144+32*(i-4)+16) if i < 8 else (128, 272))
            r = 16 + 4*i
            a(f"ds_read_b64_tr_b16 v[{r}:{r+1}], v244 offset:{b1*128}")
            a(f"ds_read_b64_tr_b16 v[{r+2}:{r+3}], v244 offset:{b2*128}")
            if i == 4: a("s_waitcnt lgkmcnt(0)")
        a("s_waitcnt lgkmcnt(0)")
        for i in range(9):
            r = 16 + 4*i
            a(f"buffer_store_dwordx4 v[{r}:{r+3}], v3, s[8:11], s38 offen sc1")
            if i < 8: a("s_add_u32 s38, s38, 36864")
    a("""
      v_lshrrev_b32 v10, 3, v2
      v_and_b32 v11, 7, v2
      v_and_b32 v12, 6, v10
      v_xor_b32 v11, v11, v12
      v_lshlrev_b32 v11, 4, v11           ; chunk*16
      v_lshrrev_b32 v9, 2, v2
      v_lshlrev_b32 v9, 7, v9
      v_and_b32 v12, 3, v10
      v_xor_b32 v12, s3, v12
      v_lshl_add_u32 v9, v12, 5, v9
      v_and_b32 v12, 3, v2
      v_lshl_add_u32 v9, v12, 3, v9
      v_add_u32 v247, 36864, v9
      v_add_u32 v244, 81920, v9
      v_mul_u32_u24 v245, 1152, v10
      v_add_u32 v245, v245, v11
      s_mul_i32 s6, s3, 18432
      s_cmp_ge_u32 s2, 252
      s_cbranch_scc1 F_LAST
      s_cmp_lt_u32 s2, 216
      s_cbranch_scc1 F_WIN
    """)
    a.srd(12, "wmod"); a.srd(16, "c")
    MT = 73728
    a(f"""
      s_sub_u32 s4, s2, 216
      s_mov_b32 s36, s4
      s_mov_b32 s96, s4
      s_and_b32 s5, s4, 1                 ; half
      s_lshr_b32 s4, s4, 1                ; cbk
      s_mul_i32 s26, s5, 288
      v_and_b32 v6, 7, v0
      v_lshrrev_b32 v7, 3, v0
      v_add_u32 v10, s26, v7
      v_mul_u32_u24 v8, 6912, v10
      v_lshl_add_u32 v8, v6, 4, v8
      v_lshlrev_b32 v12, 1, v10
      s_add_u32 s20, s4, 27
      s_mov_b32 s21, s4
      s_add_u32 s22, s4, 18
      s_add_u32 s23, s4, 36
      s_cmp_lt_u32 s4, 9
      s_cselect_b32 s22, s22, s23
    """)
    C, T, AC = 16, 26, 36
    for i in range(9): a(f"buffer_load_ushort v{C+i}, v12, s[16:19], 0 offen offset:{64*i}")
    def mloads(r):
        b = 56 + 36*(r % 2)
        a(f"s_lshl_b32 s24, s{20+r}, 7")
        for i in range(9):
            a(f"buffer_load_dwordx4 v[{b+4*i}:{b+3+4*i}], v8, s[12:15], s24 offen")
            if i < 8: a(f"s_add_u32 s24, s24, {32*6912}")
    mloads(0)
    a(f"buffer_load_dword {NT}, {NT}, s[28:31], 0 offen sc1")
    a("s_waitcnt vmcnt(10)")
    for fmt in ("v_lshlrev_b32 v{c}, 16, v{c}", "v_mul_f32 v{t}, " + float_hex(-1.4426950408889634) + ", v{c}", "v_exp_f32 v{t}, v{t}", "v_add_f32 v{t}, 1.0, v{t}",
                "v_rcp_f32 v{t}, v{t}", "v_mul_f32 v{c}, v{c}, v{t}", "v_cvt_pk_bf16_f32 v{c}, v{c}, v{c}", "v_lshlrev_b32 v{c}, 16, v{c}"):
        for i in range(9): a(fmt.format(c=C+i, t=T+i))
    a(f"""
      v_lshlrev_b32 v13, 8, v1
      v_lshl_add_u32 v13, v6, 5, v13
      v_add_u32 v13, {MT}, v13
      v_lshlrev_b32 v14, 2, v2
      v_add_u32 v14, {MT}, v14
      v_lshlrev_b32 v15, 3, v2
      s_mul_i32 s25, s5, {3456*8}
      s_add_u32 s25, s25, {MODP}
      s_waitcnt vmcnt(0)
    """)
    check_nonce(a, "F_M", NT)
    for r in range(3):
        b = 56 + 36*(r % 2)
        if r > 0: a("s_waitcnt vmcnt(0)")
        if r < 2: mloads(r+1)
        else: wo_issue()
        for i in range(9):
            for dd in range(4):
                src = f"v{b+4*i+dd}"
                a(f"v_lshlrev_b32 v26, 16, {src}\nv_and_b32 v27, 0xffff0000, {src}")
                if i == 0: a(f"v_mul_f32 v{AC+2*dd}, v{C}, v26\nv_mul_f32 v{AC+1+2*dd}, v{C}, v27")
                else: a(f"v_fmac_f32 v{AC+2*dd}, v{C+i}, v26\nv_fmac_f32 v{AC+1+2*dd}, v{C+i}, v27")
        a("s_nop 1")
        for j in range(8): a(f"v_add_f32_dpp v{AC+j}, v{AC+j}, v{AC+j} row_ror:8 row_mask:0xf bank_mask:0xf")
        for sw in ("16", "32"):
            for j in range(8): a(f"v_mov_b32 v{44+j}, v{AC+j}")
            a("s_nop 1")
            for j in range(8): a(f"v_permlane{sw}_swap_b32 v{AC+j}, v{44+j}")
            a("s_nop 1")
            for j in range(8): a(f"v_add_f32 v{AC+j}, v{AC+j}, v{44+j}")
        a(f"""
          s_mov_b64 exec, 0xff
          ds_write_b128 v13, v[{AC}:{AC+3}] offset:{1024*r}
          ds_write_b128 v13, v[{AC+4}:{AC+7}] offset:{1024*r+16}
          s_mov_b64 exec, -1
          s_waitcnt lgkmcnt(0)
          s_barrier
          s_cmp_lg_u32 s3, {3-r}
          s_cbranch_scc1 F_MOD_N{r}
        """)
        for i in range(4): a(f"ds_read_b32 v{AC+i}, v14 offset:{1024*r + 256*i}")
        a(f"""
          s_lshl_b32 s24, s{20+r}, 9
          s_add_u32 s24, s24, s25
          s_waitcnt lgkmcnt(0)
          v_add_f32 v{AC}, v{AC}, v{AC+1}
          v_add_f32 v{AC+2}, v{AC+2}, v{AC+3}
          v_add_f32 v{AC}, v{AC}, v{AC+2}
          v_mov_b32 v{AC+1}, s42
          buffer_store_dwordx2 v[{AC}:{AC+1}], v15, s[8:11], s24 offen sc1
          s_nop 1
        F_MOD_N{r}:
        """)
        a(a.stamp(1+r))
    zero_gm()
    a(a.stamp(4))
    wo_finish()
    a("s_branch F_JOIN")
    TB = 73728
    a("F_WIN:")
    a.srd(20, "win"); a.srd(16, "ssmk")
    a(f"""
      s_sub_u32 s4, s2, 144
      s_lshr_b32 s5, s4, 3
      s_and_b32 s4, s4, 7
      s_mul_i32 s4, s4, 9
      s_add_u32 s4, s4, s5                ; unit
      s_mul_i32 s7, s3, {144*9216}
      s_lshl_b32 s5, s4, 7
      s_add_u32 s7, s7, s5
      v_mul_u32_u24 v10, 9216, v10
      v_add_u32 v11, v11, v10
      v_lshlrev_b32 v14, 4, v0
      s_lshl_b32 s5, s4, 15
    """)
    for i in range(8):
        a(f"buffer_load_dwordx4 v[16:19], v14, s[16:19], s5 offen")
        if i < 7: a("s_add_u32 s5, s5, 4096")
    for i in range(18):
        a(f"s_add_u32 m0, s6, {1024*i}\ns_nop 0")
        a(f"buffer_load_dwordx4 v11, s[20:23], s7 offen lds")
        if i < 17: a(f"s_add_u32 s7, s7, {8*9216}")
    a(f"""
      s_lshr_b32 s36, s4, 1
      s_add_u32 s36, s36, 48
      s_bitcmp1_b32 s4, 0
      s_cselect_b32 s36, 72, s36
      s_sub_u32 s96, s4, 12
      s_cmp_lt_u32 s4, 48
      s_cselect_b32 s96, 64, s96
      s_cmp_eq_u32 s4, 37
      s_cselect_b32 s96, 60, s96
      s_cmp_eq_u32 s4, 39
      s_cselect_b32 s96, 61, s96
      s_cmp_eq_u32 s4, 41
      s_cselect_b32 s96, 62, s96
      s_cmp_eq_u32 s4, 45
      s_cselect_b32 s96, 63, s96
      s_cmp_ge_u32 s36, 72
      s_cbranch_scc1 F_WIN_R
    """)
    wo_issue()
    a("F_WIN_R:")
    zero_gm()
    get_nonce(a, "F_W", "v14")
    a(f"""
      v_add_u32 v7, 256, v0
      v_min_u32 v7, 287, v7
      v_lshlrev_b32 v12, 4, v0
      v_lshlrev_b32 v13, 4, v7
      s_mov_b32 s16, {MODP + 3*576*8}
      s_mov_b32 s17, {MODP + 3*576*8 + 3456*8}
      s_mov_b32 s18, {MODP + 4*576*8}
      s_mov_b32 s19, {MODP + 4*576*8 + 3456*8}
      s_mov_b32 s43, 0
    F_WG_POLL:
    """)
    for h in range(2):
        for i in range(4): a(f"buffer_load_dwordx4 v[{16+16*h+4*i}:{19+16*h+4*i}], v{12+h}, s[8:11], s{16+i} offen sc1")
    a("s_waitcnt vmcnt(0)\nv_xor_b32 v14, s42, v17")
    for r_ in range(19, 48, 2): a(f"v_xor_b32 v15, s42, v{r_}\nv_or_b32 v14, v14, v15")
    a(f"""
      v_cmp_ne_u32 vcc, 0, v14
      s_add_u32 s43, s43, 1
      s_cmp_ge_u32 s43, 0x80000
      s_cbranch_scc1 F_WG_GO
      s_nop 2
      s_cbranch_vccz F_WG_GO
      s_sleep {SLP}
      s_branch F_WG_POLL
    F_WG_GO:
    """)
    for h in range(2):
        b = 16 + 16*h; idx = ["v0", "v7"][h]
        a(f"""
          v_add_f32 v{b}, v{b}, v{b+4}
          v_add_f32 v{b+2}, v{b+2}, v{b+6}
          v_add_f32 v{b+8}, v{b+8}, v{b+12}
          v_add_f32 v{b+10}, v{b+10}, v{b+14}
          v_cvt_pk_bf16_f32 v{b}, v{b}, v{b+2}
          v_cvt_pk_bf16_f32 v{b+8}, v{b+8}, v{b+10}
          v_and_b32 v{b+9}, 0xffff0000, v{b+8}
          v_lshlrev_b32 v{b+8}, 16, v{b+8}
          v_add_f32 v{b+8}, 1.0, v{b+8}
          v_add_f32 v{b+9}, 1.0, v{b+9}
          v_cvt_pk_bf16_f32 v{b+8}, v{b+8}, v{b+9}
          v_and_b32 v{b+9}, 0xffff0000, v{b+8}
          v_lshlrev_b32 v{b+8}, 16, v{b+8}
          v_lshlrev_b32 v13, 3, {idx}
          v_lshlrev_b32 v14, 2, {idx}
          v_add_u32 v13, {TB}, v13
          v_add_u32 v14, {TB+3072}, v14
          ds_write_b64 v13, v[{b+8}:{b+9}]
          ds_write_b32 v14, v{b}
        """)
    a(f"""
      {a.stamp(1)}
      s_lshl_b32 s16, s4, 2
      s_add_u32 s16, s16, s3              ; fc
      s_cmp_ge_u32 s16, 144
      s_cselect_b32 s17, 144, 0
      s_cselect_b32 s18, 0, {18*9216}
      s_cselect_b32 s23, 1, 0             ; is z2
      s_sub_u32 s26, s16, s17             ; fcl
      s_mul_i32 s19, s26, 7282
      s_lshr_b32 s19, s19, 16             ; nt
      s_mul_i32 s20, s19, 9
      s_sub_u32 s20, s26, s20             ; j
      s_mul_i32 s19, s19, {36*9216}
      s_lshl_b32 s20, s20, 10
      s_add_u32 s19, s19, s20
      s_add_u32 s19, s19, s18
      s_add_u32 s27, s19, {WINF}
      v_lshlrev_b32 v12, 4, v5
      v_add_u32 v12, {TB}, v12
      v_lshlrev_b32 v13, 3, v5
      v_add_u32 v13, {TB+3072}, v13
      v_mov_b32 v14, 0
      v_mov_b32 v15, 0
      s_mov_b32 s21, 0x3f803f80
      s_waitcnt lgkmcnt(0)
      s_barrier
      {a.stamp(2)}
    """)
    def rd(ks):
        b = 16 + 16*(ks % 3); base = "v9" if ks < 9 else "v247"; k9 = ks % 9
        a(f"""
          ds_read_b64_tr_b16 v[{b}:{b+1}], {base} offset:{4096*k9}
          ds_read_b64_tr_b16 v[{b+2}:{b+3}], {base} offset:{4096*k9+2048}
          ds_read_b128 v[{b+4}:{b+7}], v12 offset:{128*ks}
          ds_read_b128 v[{b+8}:{b+11}], v12 offset:{128*ks+64}
          ds_read_b64 v[{b+12}:{b+13}], v13 offset:{64*ks}
          ds_read_b64 v[{b+14}:{b+15}], v13 offset:{64*ks+32}
        """)
    if Asm.STAMPS: a("s_waitcnt lgkmcnt(0)")
    rd(0); rd(1)
    for ks in range(18):
        b = 16 + 16*(ks % 3); t = 64; o = 72 + 4*(ks % 2)
        if ks + 2 < 18:
            a("s_waitcnt lgkmcnt(6)"); rd(ks+2)
        else: a(f"s_waitcnt lgkmcnt({6 if ks + 1 < 18 else 0})")
        for dd in range(4):
            a(f"v_lshlrev_b32 v{t+2*dd}, 16, v{b+dd}\nv_and_b32 v{t+1+2*dd}, 0xffff0000, v{b+dd}")
        for dd in range(4): a(f"v_dot2c_f32_bf16 v15, v{b+dd}, v{b+12+dd}")
        for dd in range(4): a(f"v_pk_mul_f32 v[{t+2*dd}:{t+1+2*dd}], v[{t+2*dd}:{t+1+2*dd}], v[{b+4+2*dd}:{b+5+2*dd}]")
        for dd in range(4): a(f"v_cvt_pk_bf16_f32 v{o+dd}, v{t+2*dd}, v{t+1+2*dd}")
        a(f"buffer_store_dwordx4 v[{o}:{o+3}], v3, s[8:11], s27 offen sc1")
        for dd in range(4): a(f"v_dot2c_f32_bf16 v14, s21, v{o+dd}")
        if ks < 17: a("s_add_u32 s27, s27, 9216")
    a("s_nop 2")
    for sw in ("16", "32"):
        a(f"""
          v_mov_b32 v16, v14
          v_mov_b32 v17, v15
          s_nop 1
          v_permlane{sw}_swap_b32 v14, v16
          v_permlane{sw}_swap_b32 v15, v17
          s_nop 1
          v_add_f32 v14, v14, v16
          v_add_f32 v15, v15, v17
        """)
    a(f"""
      {a.stamp(3)}
      v_lshlrev_b32 v16, 2, v4
      v_lshlrev_b32 v17, 3, v4
      s_mov_b64 exec, 0xffff
      s_cmp_eq_u32 s23, 1
      s_cbranch_scc1 F_WIN_Z2
      s_lshl_b32 s16, s26, 6
      s_add_u32 s16, s16, {UV1}
      buffer_store_dword v14, v16, s[8:11], s16 offen sc1
      s_add_u32 s16, s16, 9216
      buffer_store_dword v15, v16, s[8:11], s16 offen sc1
      s_branch F_WIN_E
    F_WIN_Z2:
      s_lshl_b32 s16, s26, 7
      s_add_u32 s16, s16, {UV2}
      buffer_store_dwordx2 v[14:15], v17, s[8:11], s16 offen sc1
    F_WIN_E:
      s_mov_b64 exec, -1
      s_cmp_ge_u32 s36, 72
      s_cbranch_scc1 F_JOIN
      s_branch F_WO_F
    F_LAST:
    """)
    if 'cwi' in X:
        a(CWS.format(n=0, K=KNAME, end="GM_CODE_END") + "v_lshlrev_b32 v8, 7, v0\ns_mov_b32 s5, 32768\ns_mov_b32 s7, 65536\nbuffer_load_dword v246, v8, s[12:15], 0 offen\nbuffer_load_dword v246, v8, s[12:15], s5 offen\nbuffer_load_dword v246, v8, s[12:15], s7 offen")
    zero_gm()
    a("s_mov_b32 s42, 0\ns_sub_u32 s36, s2, 216\nF_WO:\ns_barrier")
    wo_issue()
    a("F_WO_F:")
    wo_finish()
    a("s_add_u32 s36, s36, 4\ns_cmp_lt_u32 s36, 48\ns_cbranch_scc1 F_WO\ns_cmp_lg_u32 s42, 0\ns_cbranch_scc1 F_JOIN")
    get_nonce(a, "F_L", "v14")
    a("F_JOIN:")
    a(a.stamp(6))
```
